```python
import torch

def _softmax(x, axis=-1):
    return torch.softmax(x, dim=axis)
def _gelu(x):
    return torch.nn.functional.gelu(x, approximate="tanh")
def _silu(x):
    return torch.nn.functional.silu(x)
def _sigmoid(x):
    return torch.sigmoid(x)
def _layernorm(x, axis=-1, eps=1e-5):
    m = x.mean(dim=axis, keepdim=True)
    v = x.var(dim=axis, keepdim=True, unbiased=False)
    return (x - m) / torch.sqrt(v + eps)
def _scatter_add(tgt, idx, src, axis=0):
    return tgt.clone().index_add_(axis, idx, src)
def _segment_sum(src, seg, n):
    out = torch.zeros((n,) + src.shape[1:], dtype=src.dtype)
    return out.index_add_(0, seg, src)
def _pad(x, pw):
    flat = tuple(v for pair in reversed(pw) for v in pair)
    return torch.nn.functional.pad(x, flat)

kernel_name = 'sequential_preLN__softmax_full_mha__glu_gated_reglu__prompt'

def setup_inputs():

    _w = (lambda a: (lambda t: t.to(torch.bfloat16) if t.is_floating_point() else t)(torch.as_tensor(a)))
    def _A_setup():
        B, S, D = 1, 2048, 512
        return {
            "x": _w((lambda *s: torch.randn(*s, dtype=torch.bfloat16) * 0.05)(B, S, D)),
            "wqkv": _w((lambda *s: torch.randn(*s, dtype=torch.bfloat16) * 0.05)(D, 3 * D)),
            "wo": _w((lambda *s: torch.randn(*s, dtype=torch.bfloat16) * 0.05)(D, D)),
        }
    _A_in = _A_setup()

    def _B_setup():
        B, S, D, F = 1, 2048, 512, 1376
        return {
            "x": _w((lambda *s: torch.randn(*s, dtype=torch.bfloat16) * 0.05)(B, S, D)),
            "W_gate": _w((lambda *s: torch.randn(*s, dtype=torch.bfloat16) * 0.4)(D, F) * (2.0 / D) ** 0.5),
            "W_up": _w((lambda *s: torch.randn(*s, dtype=torch.bfloat16) * 0.4)(D, F) * (2.0 / D) ** 0.5),
            "W_down": _w((lambda *s: torch.randn(*s, dtype=torch.bfloat16) * 0.4)(F, D) * (1.0 / F) ** 0.5),
        }
    _B_in = _B_setup()

    return {
        "A_x": _A_in["x"],
        "A_wqkv": _A_in["wqkv"],
        "A_wo": _A_in["wo"],
        "B_x": _B_in["x"],
        "B_W_gate": _B_in["W_gate"],
        "B_W_up": _B_in["W_up"],
        "B_W_down": _B_in["W_down"],
    }

def reference(A_x, A_wqkv, A_wo, B_x, B_W_gate, B_W_up, B_W_down):
    def _A_ref(x, wqkv, wo):
        B, S, D = x.shape
        H = 32; Dh = D // H
        qkv = (lambda x, *d: x.permute(*d))((x @ wqkv).reshape(B, S, 3, H, Dh), 2, 0, 3, 1, 4)
        q, k, v = qkv[0], qkv[1], qkv[2]
        scale = Dh ** -0.5
        scores = torch.einsum("bhqd,bhkd->bhqk", q, k) * scale
        p = _softmax(scores, axis=-1)
        o = torch.einsum("bhqk,bhkd->bhqd", p, v)
        return (lambda x, *d: x.permute(*d))(o, 0, 2, 1, 3).reshape(B, S, D) @ wo

    def _B_ref(x, W_gate, W_up, W_down):
        gate = torch.einsum("bsd,df->bsf", x, W_gate)
        up = torch.einsum("bsd,df->bsf", x, W_up)
        gate = gate * (lambda x, dt: x.to(dt))(gate > 0, gate.dtype)
        h = gate * up
        return torch.einsum("bsf,fd->bsd", h, W_down)

    x = A_x
    h = x + _A_ref(_layernorm(x, axis=-1), A_wqkv, A_wo)
    h2 = h + _B_ref(_layernorm(h, axis=-1), B_W_gate, B_W_up, B_W_down)
    return h2
```

```python
class Kern:
    def __init__(self, name):
        self.name = name
        self.lines = []
        self.nlab = 0
    def __call__(self, s, *a):
        for l in s.strip("\n").split("\n"):
            l = l.strip()
            if l:
                self.lines.append("  " + l if not l.endswith(":") else l)
    def c(self, s):
        self.lines.append("  ; " + s)
    def label(self, base="L"):
        self.nlab += 1
        return f"{self.name}_{base}{self.nlab}"
    def place(self, lab):
        self.lines.append(lab + ":")
    def nop(self, n):
        while n > 0:
            k = min(n, 16)
            self.lines.append(f"  s_nop {k-1}")
            n -= k
    def text(self, vgpr, sgpr=96, accum=None):
        if accum is None:
            accum = (vgpr + 3) // 4 * 4
        hdr = f""".text
.globl {self.name}
.p2align 8
.type {self.name},@function
{self.name}:
"""
        tail = f"""
.section .rodata,"a"
.p2align 6
.amdhsa_kernel {self.name}
  .amdhsa_next_free_vgpr {vgpr}
  .amdhsa_next_free_sgpr {sgpr}
  .amdhsa_accum_offset {accum}
  .amdhsa_group_segment_fixed_size 0
  .amdhsa_kernarg_size 80
  .amdhsa_user_sgpr_count 2
  .amdhsa_user_sgpr_kernarg_segment_ptr 1
  .amdhsa_system_sgpr_workgroup_id_x 1
.end_amdhsa_kernel
"""
        return hdr + "\n".join(self.lines) + tail

def v(a, n=1):
    return f"v{a}" if n == 1 else f"v[{a}:{a+n-1}]"
def a_(a, n=1):
    return f"a{a}" if n == 1 else f"a[{a}:{a+n-1}]"
def s(a, n=1):
    return f"s{a}" if n == 1 else f"s[{a}:{a+n-1}]"
```

```python
import sys, math, struct
from dsl import Kern, v, s, a_

MB = 1 << 20
QF, KF, VF, OF, XF, HF, ACT = 0, 2*MB, 4*MB, 6*MB, 8*MB, 10*MB, 12*MB
WOF, WGF, WUF, WDF, ST = 18*MB, 19*MB, 20*MB + MB//2, 22*MB, 24*MB
WS_SIZE = 32*MB
def f32(x): return struct.unpack("<I", struct.pack("<f", x))[0]
ONES = 0x3f803f80
MFMA = "v_mfma_f32_32x32x16_bf16"

def srd(k, d, lo, size):
    k(f"s_mov_b32 s{d}, s{lo}")
    k(f"s_and_b32 s{d+1}, s{lo+1}, 0xffff")
    k(f"s_mov_b32 s{d+2}, {size}")
    k(f"s_mov_b32 s{d+3}, 0x20000")

def half_sum(k, r, t1, t2):
    k(f"v_mov_b32 v{t1}, v{r}")
    k(f"v_mov_b32 v{t2}, v{r}")
    k.nop(2)
    k(f"v_permlane32_swap_b32 v{t1}, v{t2}")
    k.nop(1)
    k(f"v_add_f32 v{r}, v{t1}, v{t2}")

def norm_ops(x, t, rs, nb, smask):
    ops = []
    for d in range(4):
        tt = t + 2*(d & 1)
        ops.append(f"v_lshlrev_b32 v{tt}, 16, v{x+d}")
        ops.append(f"v_and_b32 v{tt+1}, s{smask}, v{x+d}")
        ops.append(f"v_pk_fma_f32 v[{tt}:{tt+1}], v[{tt}:{tt+1}], v[{rs}:{rs+1}], v[{nb}:{nb+1}] op_sel_hi:[1,0,0]")
        ops.append(f"v_cvt_pk_bf16_f32 v{x+d}, v{tt}, v{tt+1}")
    o = []
    for p in (0, 2):
        A, B = ops[4*p:4*p+4], ops[4*p+4:4*p+8]
        o += [A[0], A[1], B[0], B[1], A[2], B[2], A[3], B[3]]
    return o

def finish_stats(k, sx, sq, rs, nb, t1, t2):
    k(f"v_mul_f32 v{sx}, {hex(f32(1/512))}, v{sx}")
    k(f"v_mul_f32 v{t1}, v{sx}, v{sx}")
    k(f"v_mov_b32 v{t2}, {hex(f32(1/512))}")
    k(f"v_fma_f32 v{t1}, v{sq}, v{t2}, -v{t1}")
    k(f"v_max_f32 v{t1}, 0, v{t1}")
    k(f"v_add_f32 v{t1}, {hex(f32(1e-5))}, v{t1}")
    k(f"v_rsq_f32 v{rs}, v{t1}")
    k.nop(1)
    k(f"v_mul_f32 v{nb}, v{sx}, v{rs}")
    k(f"v_sub_f32 v{nb}, 0, v{nb}")

def k_qkv():
    k = Kern("qkv_kernel")
    done = k.label("done")
    k(f"""
    s_cmp_ge_u32 s2, 256
    s_cbranch_scc1 {done}
    s_load_dwordx4 s[4:7], s[0:1], 0
    s_load_dwordx2 s[8:9], s[0:1], 72
    v_lshrrev_b32 v1, 6, v0
    v_and_b32 v2, 63, v0
    s_and_b32 s24, s2, 7
    s_lshr_b32 s25, s2, 3
    v_readfirstlane_b32 s26, v1
    s_lshr_b32 s27, s24, 1
    s_lshl_b32 s27, s27, 3
    s_and_b32 s28, s25, 7
    s_add_u32 s27, s27, s28
    s_and_b32 s28, s24, 1
    s_lshl_b32 s28, s28, 2
    s_lshr_b32 s29, s25, 3
    s_add_u32 s28, s28, s29
    """)
    SW, SRB, SCB = 26, 27, 28
    k(f"""
    v_lshrrev_b32 v3, 3, v2
    v_and_b32 v4, 7, v2
    v_lshrrev_b32 v5, 4, v2
    v_xor_b32 v6, v4, v5
    v_lshlrev_b32 v6, 4, v6
    s_lshl_b32 s29, s{SW}, 4
    v_add_u32 v7, s29, v3
    v_lshlrev_b32 v7, 10, v7
    v_add_u32 v8, v7, v6
    v_xor_b32 v6, 64, v6
    v_add_u32 v9, v7, v6
    v_add_u32 v9, 8192, v9
    """)
    VXE, VXO, VW = 8, 9, 10
    k(f"""
    v_and_b32 v5, 1, v5
    v_lshlrev_b32 v5, 2, v5
    v_xor_b32 v5, v4, v5
    v_lshlrev_b32 v5, 4, v5
    v_add_u32 v7, s29, v3
    v_mul_u32_u24 v7, 3072, v7
    v_add_u32 v{VW}, v7, v5
    s_waitcnt lgkmcnt(0)
    """)
    srd(k, 12, 4, 2*MB)
    srd(k, 16, 6, 512*3072)
    srd(k, 20, 8, WS_SIZE)
    k(f"s_lshl_b32 s30, s{SRB}, 16")
    k(f"s_lshl_b32 s31, s{SW}, 11")
    k(f"s_lshl_b32 s32, s{SCB}, 7")
    for c in range(8):
        for o in range(2):
            k(f"s_add_u32 s33, s30, {c*128}")
            k(f"s_add_u32 m0, s31, {c*8192 + o*1024}")
            k.nop(1)
            k(f"buffer_load_dwordx4 v{VXE if o == 0 else VXO}, s[12:15], s33 offen lds")
    slot_of = {0: 65536, 1: 65536+24576, 2: 65536+2*24576, 3: 65536+3*24576, 4: 0, 5: 24576, 6: 65536, 7: 65536+24576}
    def wdma(c):
        for p in range(3):
            for o in range(2):
                k(f"s_add_u32 s33, s32, {(64*c + 8*o)*3072 + p*1024}")
                k(f"s_add_u32 m0, s31, {slot_of[c] + p*8192 + o*1024}")
                k.nop(1)
                k(f"buffer_load_dwordx4 v{VW}, s[16:19], s33 offen lds")
    for c in range(4):
        wdma(c)
    VXA = 12
    k(f"""
    v_and_b32 v3, 31, v2
    v_lshrrev_b32 v4, 5, v2
    v_lshrrev_b32 v5, 1, v3
    v_and_b32 v5, 7, v5
    s_and_b32 s34, s{SW}, 1
    s_lshl_b32 s35, s34, 12
    v_lshlrev_b32 v6, 7, v3
    v_add_u32 v6, s35, v6
    """)
    for u in range(4):
        k(f"v_add_u32 v7, {2*u}, v4")
        k(f"v_xor_b32 v7, v7, v5")
        k(f"v_lshl_add_u32 v{VXA+u}, v7, 4, v6")
    VWA = 16
    k(f"""
    s_lshr_b32 s36, s{SW}, 1
    v_bfe_u32 v5, v2, 2, 2
    v_lshl_add_u32 v6, v4, 3, v5
    v_lshlrev_b32 v6, 7, v6
    v_bfe_u32 v7, v2, 4, 1
    v_lshlrev_b32 v7, 1, v7
    v_bfe_u32 v11, v2, 1, 1
    v_add_u32 v7, v7, v11
    s_lshl_b32 s37, s36, 2
    v_add_u32 v7, s37, v7
    v_lshrrev_b32 v5, 1, v5
    v_lshlrev_b32 v5, 2, v5
    v_xor_b32 v7, v7, v5
    v_lshl_add_u32 v6, v7, 4, v6
    v_and_b32 v7, 1, v2
    v_lshl_add_u32 v{VWA}, v7, 3, v6
    v_add_u32 v{VWA+1}, 0x10000, v{VWA}
    v_add_u32 v{VWA+2}, 0x20000, v{VWA}
    s_mov_b32 s38, 0xffff0000
    s_mov_b32 s39, {hex(ONES)}
    """)
    SMASK, SONES = 38, 39
    XFR = 64
    ACC = 192
    WB = [20, 32]
    T = 44
    RS, NB = 48, 50
    SX, SQ = 52, 56
    for i in range(8):
        k(f"v_mov_b32 v{SX+i}, 0")
    for i in range(48):
        k(f"v_mov_b32 v{ACC+i}, 0")
    k("s_waitcnt vmcnt(24)")
    k("s_barrier")
    def xread(sidx):
        c, u = divmod(sidx, 4)
        k(f"ds_read_b128 v[{XFR+4*sidx}:{XFR+4*sidx+3}], v{VXA+u} offset:{c*8192}")
    def xstat(sidx):
        for d in range(4):
            r = XFR + 4*sidx + d
            k(f"v_dot2_f32_bf16 v{SQ+d}, v{r}, v{r}, v{SQ+d}")
            k(f"v_dot2_f32_bf16 v{SX+d}, v{r}, s{SONES}, v{SX+d}")
    for i in range(8):
        xread(i)
    for i in range(32):
        if i + 8 < 32:
            xread(i + 8)
            k("s_waitcnt lgkmcnt(8)")
        else:
            k(f"s_waitcnt lgkmcnt({31-i})")
        if i == 24:
            pass
        xstat(i)
    k("s_barrier")
    wdma(4)
    wdma(5)
    k(f"v_add_f32 v{SX}, v{SX}, v{SX+1}")
    k(f"v_add_f32 v{SX+2}, v{SX+2}, v{SX+3}")
    k(f"v_add_f32 v{SQ}, v{SQ}, v{SQ+1}")
    k(f"v_add_f32 v{SQ+2}, v{SQ+2}, v{SQ+3}")
    k(f"v_add_f32 v{SX}, v{SX}, v{SX+2}")
    k(f"v_add_f32 v{SQ}, v{SQ}, v{SQ+2}")
    half_sum(k, SX, T, T+1)
    half_sum(k, SQ, T, T+1)
    finish_stats(k, SX, SQ, RS, NB, T, T+1)
    for o in norm_ops(XFR, T, RS, NB, SMASK):
        k(o)
    vmN = {0: 30, 1: 24, 2: 24, 3: 24, 4: 18, 5: 12, 6: 6, 7: 0}
    def wread(sidx):
        c, u = divmod(sidx, 4)
        b = WB[sidx & 1]
        for p in range(3):
            for r in range(2):
                off = slot_of[c] + p*8192 + u*2048 + r*512
                k(f"ds_read_b64_tr_b16 v[{b+4*p+2*r}:{b+4*p+2*r+1}], v{VWA + (off >> 16)} offset:{off & 0xffff}")
    def chunk_sync(c):
        k(f"s_waitcnt vmcnt({vmN[c]}) lgkmcnt(0)")
        k("s_barrier")
        if c in (1, 2):
            wdma(c + 5)
    chunk_sync(0)
    wread(0)
    for sidx in range(32):
        nxt = sidx + 1
        if nxt < 32:
            if nxt % 4 == 0:
                chunk_sync(nxt // 4)
            wread(nxt)
            k("s_waitcnt lgkmcnt(6)")
            ops = norm_ops(XFR + 4*nxt, T, RS, NB, SMASK)
        else:
            k("s_waitcnt lgkmcnt(0)")
            k.nop(1)
            ops = []
        b = WB[sidx & 1]
        x = XFR + 4*sidx
        k(f"{MFMA} v[{ACC}:{ACC+15}], v[{b}:{b+3}], v[{x}:{x+3}], v[{ACC}:{ACC+15}]")
        for o in ops[:5]: k(o)
        k(f"{MFMA} v[{ACC+16}:{ACC+31}], v[{b+4}:{b+7}], v[{x}:{x+3}], v[{ACC+16}:{ACC+31}]")
        for o in ops[5:11]: k(o)
        k(f"{MFMA} v[{ACC+32}:{ACC+47}], v[{x}:{x+3}], v[{b+8}:{b+11}], v[{ACC+32}:{ACC+47}]")
        for o in ops[11:]: k(o)
    k(f"""
    s_lshl_b32 s40, s{SCB}, 2
    s_lshl_b32 s41, s36, 1
    s_add_u32 s40, s40, s41
    s_lshl_b32 s40, s40, 16
    s_lshl_b32 s41, s{SRB}, 1
    s_add_u32 s41, s41, s34
    s_lshl_b32 s41, s41, 10
    s_add_u32 s40, s40, s41
    v_lshlrev_b32 v3, 4, v2
    v_bfe_u32 v4, v2, 4, 1
    v_lshlrev_b32 v4, 16, v4
    v_lshrrev_b32 v5, 5, v2
    v_lshl_add_u32 v4, v5, 8, v4
    v_and_b32 v5, 15, v2
    v_lshl_add_u32 v4, v5, 4, v4
    s_mov_b32 s42, {hex(f32(0.25*math.log2(math.e)))}
    s_add_u32 s43, s40, {QF + 65536}
    s_add_u32 s44, s40, {KF}
    s_add_u32 s45, s40, {KF + 65536}
    s_add_u32 s46, s40, {VF}
    """)
    k.nop(4)
    for i in range(16):
        k(f"v_mul_f32 v{ACC+i}, s42, v{ACC+i}")
    P = 64
    for i in range(24):
        k(f"v_cvt_pk_bf16_f32 v{P+i}, v{ACC+2*i}, v{ACC+2*i+1}")
        if i == 3:  k(f"buffer_store_dwordx4 v[{P}:{P+3}], v3, s[20:23], s40 offen")
        if i == 7:  k(f"buffer_store_dwordx4 v[{P+4}:{P+7}], v3, s[20:23], s43 offen")
        if i == 11: k(f"buffer_store_dwordx4 v[{P+8}:{P+11}], v3, s[20:23], s44 offen")
        if i == 15: k(f"buffer_store_dwordx4 v[{P+12}:{P+15}], v3, s[20:23], s45 offen")
        if i == 19: k(f"buffer_store_dwordx4 v[{P+16}:{P+19}], v4, s[20:23], s46 offen")
        if i == 23: k(f"buffer_store_dwordx4 v[{P+20}:{P+23}], v4, s[20:23], s46 offen offset:512")
    k.place(done)
    k("s_endpgm")
    return k.text(240, 64), 256, 256, 163840

def k_attn():
    k = Kern("attn_kernel")
    done = k.label("done")
    k(f"""
    s_cmp_ge_u32 s2, 256
    s_cbranch_scc1 {done}
    s_load_dwordx2 s[4:5], s[0:1], 0
    s_load_dwordx2 s[6:7], s[0:1], 16
    s_load_dwordx4 s[8:11], s[0:1], 32
    s_load_dwordx2 s[12:13], s[0:1], 48
    s_load_dwordx2 s[14:15], s[0:1], 72
    v_lshrrev_b32 v1, 6, v0
    v_and_b32 v2, 63, v0
    s_and_b32 s24, s2, 7
    s_lshr_b32 s25, s2, 3
    v_readfirstlane_b32 s26, v1
    s_lshl_b32 s27, s24, 2
    s_and_b32 s28, s25, 3
    s_add_u32 s27, s27, s28
    s_lshr_b32 s28, s25, 2
    v_lshlrev_b32 v3, 4, v2
    """)
    SW, SHEAD, SQB = 26, 27, 28
    VL16 = 3
    k(f"""
    s_lshl_b32 s29, s{SHEAD}, 16
    s_lshl_b32 s30, s{SQB}, 3
    s_add_u32 s30, s30, s{SW}
    s_lshl_b32 s31, s30, 10
    s_add_u32 s31, s31, s29
    s_lshl_b32 s32, s{SW}, 10
    s_add_u32 s33, s29, s32
    s_waitcnt lgkmcnt(0)
    """)
    srd(k, 20, 14, WS_SIZE)
    Q = 8
    KB = [12, 16]
    V1 = [20, 28]
    V2 = [24, 32]
    P = 36
    SS = [48, 64]
    CN = 80
    O = 96
    PRE = 112
    VKA, VVA = 4, 5
    k(f"buffer_load_dwordx4 v[{Q}:{Q+3}], v{VL16}, s[20:23], s31 offen")
    for c in range(8):
        k(f"s_add_u32 s34, s33, {KF + c*8192}")
        k(f"s_add_u32 m0, s32, {c*8192}")
        k.nop(1)
        k(f"buffer_load_dwordx4 v{VL16}, s[20:23], s34 offen lds")
        k(f"s_add_u32 s34, s33, {VF + c*8192}")
        k(f"s_add_u32 m0, s32, {65536 + c*8192}")
        k.nop(1)
        k(f"buffer_load_dwordx4 v{VL16}, s[20:23], s34 offen lds")
    k(f"""
    v_mov_b32 v{VKA}, v{VL16}
    v_lshrrev_b32 v6, 5, v2
    v_lshlrev_b32 v6, 8, v6
    v_and_b32 v7, 15, v2
    v_lshl_add_u32 v{VVA}, v7, 4, v6
    v_add_u32 v{VVA}, 0x10000, v{VVA}
    v_and_b32 v6, 27, v2
    v_mov_b32 v7, {hex(ONES)}
    v_cmp_eq_u32 vcc, 16, v6
    s_mov_b32 s36, 0xffff
    s_mov_b32 s37, 0xffff
    """)
    k(f"v_cndmask_b32 v6, 0, v7, vcc")
    for r in range(16):
        k(f"v_mov_b32 v{20+r}, v6")
    for r in range(8):
        k(f"v_mov_b32 v{P+r}, 0")
    for r in range(16):
        k(f"v_mov_b32 v{O+r}, 0")
    def vread(buf, off):
        k("s_mov_b64 exec, s[36:37]")
        k(f"ds_read_b128 v[{V1[buf]}:{V1[buf]+3}], v{VVA} offset:{off}")
        k(f"ds_read_b128 v[{V2[buf]}:{V2[buf]+3}], v{VVA} offset:{off+512}")
        k("s_mov_b64 exec, -1")
    k("s_waitcnt vmcnt(12)")
    k("s_barrier")
    k(f"ds_read_b128 v[{KB[0]}:{KB[0]+3}], v{VKA}")
    k(f"ds_read_b128 v[{KB[1]}:{KB[1]+3}], v{VKA} offset:1024")
    vread(0, 0)
    k("s_waitcnt lgkmcnt(3)")
    k(f"{MFMA} v[{SS[0]}:{SS[0]+15}], v[{KB[0]}:{KB[0]+3}], v[{Q}:{Q+3}], 0")
    k.nop(12)
    def rowmax(S, dst, t1, t2):
        k(f"v_max3_f32 v{dst}, v{S}, v{S+1}, v{S+2}")
        k(f"v_max3_f32 v{t1}, v{S+3}, v{S+4}, v{S+5}")
        k(f"v_max3_f32 v{dst}, v{dst}, v{S+6}, v{S+7}")
        k(f"v_max3_f32 v{t1}, v{t1}, v{S+8}, v{S+9}")
        k(f"v_max3_f32 v{dst}, v{dst}, v{S+10}, v{S+11}")
        k(f"v_max3_f32 v{t1}, v{t1}, v{S+12}, v{S+13}")
        k(f"v_max3_f32 v{dst}, v{dst}, v{S+14}, v{S+15}")
        k(f"v_max_f32 v{t1}, v{dst}, v{t1}")
        k(f"v_mov_b32 v{t2}, v{t1}")
        k.nop(2)
        k(f"v_permlane32_swap_b32 v{t1}, v{t2}")
        k.nop(1)
        k(f"v_max_f32 v{dst}, v{t1}, v{t2}")
    rowmax(SS[0], 44, 45, 46)
    for r in range(16):
        k(f"v_sub_f32 v{CN+r}, 0, v44")
    k.nop(2)
    k(f"{MFMA} v[{SS[0]}:{SS[0]+15}], v[{KB[0]}:{KB[0]+3}], v[{Q}:{Q+3}], v[{CN}:{CN+15}]")
    k("s_mov_b32 s38, 0")
    k.nop(10)
    loop = k.label("loop")
    side1, back1 = k.label("side1"), k.label("back1")
    side2, back2 = k.label("side2"), k.label("back2")
    k(".p2align 6")
    k.place(loop)
    k("s_cmp_eq_u32 s38, 1")
    k(f"s_cbranch_scc1 {side1}")
    k.place(back1)
    k("s_cmp_eq_u32 s38, 5")
    k(f"s_cbranch_scc1 {side2}")
    k.place(back2)
    for t in range(8):
        cur, nx = SS[t & 1], SS[(t+1) & 1]
        e = lambda i: k(f"v_exp_f32 v{cur+i}, v{cur+i}")
        c = lambda i: k(f"v_cvt_pk_bf16_f32 v{P+i}, v{cur+2*i}, v{cur+2*i+1}")
        k("s_waitcnt lgkmcnt(0)")
        kb = KB[(t+1) & 1]
        k(f"{MFMA} v[{nx}:{nx+15}], v[{kb}:{kb+3}], v[{Q}:{Q+3}], v[{CN}:{CN+15}]")
        k(f"ds_read_b128 v[{KB[t&1]}:{KB[t&1]+3}], v{VKA} offset:{(t+2)*1024}")
        e(0); e(1)
        pb = (t+1) & 1
        k(f"{MFMA} v[{O}:{O+15}], v[{V2[pb]}:{V2[pb]+3}], v[{P+4}:{P+7}], v[{O}:{O+15}]")
        vread(pb, (t+1)*1024)
        e(2); e(3); c(0); e(4); e(5); c(1); e(6); e(7); c(2); e(8); e(9); c(3); e(10); e(11)
        k(f"{MFMA} v[{O}:{O+15}], v[{V1[t&1]}:{V1[t&1]+3}], v[{P}:{P+3}], v[{O}:{O+15}]")
        c(4); e(12); e(13); c(5); e(14); e(15); c(6)
        if t == 7:
            k(f"v_add_u32 v{VKA}, 8192, v{VKA}")
            k(f"v_add_u32 v{VVA}, 8192, v{VVA}")
            k("s_add_u32 s38, s38, 1")
            k("s_cmp_lt_u32 s38, 8")
        c(7)
    k(f"s_cbranch_scc1 {loop}")
    k.nop(2)
    k(f"{MFMA} v[{O}:{O+15}], v[{V2[1]}:{V2[1]+3}], v[{P+4}:{P+7}], v[{O}:{O+15}]")
    k("s_waitcnt lgkmcnt(0)")
    k.nop(12)
    fb, fin = k.label("fb"), k.label("fin")
    k(f"""
    v_max3_f32 v44, abs(v{O}), abs(v{O+1}), abs(v{O+2})
    v_max3_f32 v45, abs(v{O+3}), abs(v{O+4}), abs(v{O+5})
    v_max3_f32 v44, v44, abs(v{O+6}), abs(v{O+7})
    v_add_f32 v46, v{O}, v{O+1}
    v_max3_f32 v44, v44, v45, v{O+8}
    s_mov_b32 s39, {hex(f32(2.0**100))}
    """)
    for r in range(2, 9):
        k(f"v_add_f32 v46, v46, v{O+r}")
    k(f"v_and_b32 v46, 0x7fffffff, v46")
    k(f"v_cmp_ngt_f32 vcc, s39, v44")
    k(f"v_cmp_ngt_f32 s[40:41], s39, v46")
    k.nop(1)
    k("s_or_b64 s[40:41], s[40:41], vcc")
    k("s_cmp_lg_u64 s[40:41], 0")
    k(f"s_cbranch_scc1 {fb}")
    k.place(fin)
    k(f"v_rcp_f32 v44, v{O+8}")
    k(f"s_lshl_b32 s40, s30, 15")
    k(f"s_lshl_b32 s41, s{SHEAD}, 10")
    k(f"s_add_u32 s40, s40, s41")
    k(f"s_add_u32 s40, s40, {OF}")
    for r in range(8):
        k(f"v_mul_f32 v{O+r}, v{O+r}, v44")
    for r in range(4):
        k(f"v_cvt_pk_bf16_f32 v{P+r}, v{O+2*r}, v{O+2*r+1}")
    k(f"buffer_store_dwordx4 v[{P}:{P+3}], v{VL16}, s[20:23], s40 offen")
    k.place(done)
    k("s_endpgm")

    k.place(fb)
    k(f"v_mov_b32 v{VKA}, v{VL16}")
    k(f"v_subrev_u32 v{VVA}, 0x10000, v{VVA}")
    k(f"v_mov_b32 v47, 0xff7fffff")
    for r in range(16):
        k(f"v_mov_b32 v{O+r}, 0")
    k("s_mov_b32 s38, 0")
    fl = k.label("fl")
    k.place(fl)
    S = SS[0]
    k(f"ds_read_b128 v[{KB[0]}:{KB[0]+3}], v{VKA}")
    vread(0, 0)
    k("s_waitcnt lgkmcnt(0)")
    k(f"{MFMA} v[{S}:{S+15}], v[{KB[0]}:{KB[0]+3}], v[{Q}:{Q+3}], 0")
    k.nop(14)
    rowmax(S, 44, 45, 46)
    k("v_max_f32 v44, v44, v47")
    k("v_sub_f32 v45, v47, v44")
    k("v_exp_f32 v45, v45")
    k("v_mov_b32 v47, v44")
    for r in range(16):
        k(f"v_sub_f32 v{S+r}, v{S+r}, v44")
    for r in range(16):
        k(f"v_mul_f32 v{O+r}, v{O+r}, v45")
    for r in range(16):
        k(f"v_exp_f32 v{S+r}, v{S+r}")
    k.nop(1)
    for r in range(8):
        k(f"v_cvt_pk_bf16_f32 v{P+r}, v{S+2*r}, v{S+2*r+1}")
    k.nop(2)
    k(f"{MFMA} v[{O}:{O+15}], v[{V1[0]}:{V1[0]+3}], v[{P}:{P+3}], v[{O}:{O+15}]")
    k(f"{MFMA} v[{O}:{O+15}], v[{V2[0]}:{V2[0]+3}], v[{P+4}:{P+7}], v[{O}:{O+15}]")
    k(f"v_add_u32 v{VKA}, 1024, v{VKA}")
    k(f"v_add_u32 v{VVA}, 1024, v{VVA}")
    k("s_add_u32 s38, s38, 1")
    k("s_cmp_lt_u32 s38, 64")
    k.nop(14)
    k(f"s_cbranch_scc1 {fl}")
    k(f"s_branch {fin}")

    k.place(side1)
    k("s_waitcnt vmcnt(0)")
    k("s_barrier")
    k(f"""
    s_lshl_b32 s42, s2, 3
    s_add_u32 s42, s42, s{SW}
    v_and_b32 v6, 31, v2
    v_lshrrev_b32 v7, 5, v2
    """)
    srd(k, 44, 4, 2*MB)
    k(f"""
    v_lshlrev_b32 v44, 10, v6
    v_lshl_add_u32 v44, v7, 3, v44
    s_lshr_b32 s43, s42, 5
    s_lshl_b32 s43, s43, 15
    s_and_b32 s48, s42, 31
    s_lshl_b32 s48, s48, 5
    s_add_u32 s43, s43, s48
    buffer_load_dwordx2 v[{PRE}:{PRE+1}], v44, s[44:47], s43 offen
    buffer_load_dwordx2 v[{PRE+2}:{PRE+3}], v44, s[44:47], s43 offen offset:16
    """)
    def wload(reg, voffreg, soffreg, pitch):
        for j in range(8):
            row = 8*(j >> 2) + (j & 3)
            k(f"s_add_u32 s49, s{soffreg}, {row*pitch}")
            k(f"buffer_load_ushort v{reg+j}, v{voffreg}, s[44:47], s49 offen")
    big, small, nomore = k.label("big"), k.label("small"), k.label("nomore")
    k(f"""
    v_mul_u32_u24 v45, {4*2752}, v7
    v_lshl_add_u32 v45, v6, 1, v45
    v_lshlrev_b32 v46, 12, v7
    v_lshl_add_u32 v46, v6, 1, v46
    s_cmp_lt_u32 s42, 1376
    s_cbranch_scc0 {small}
    s_mov_b32 s50, {(2**32 + 42)//43}
    s_mul_hi_u32 s51, s42, s50
    s_mul_i32 s52, s51, 43
    s_sub_u32 s52, s42, s52
    s_mul_i32 s53, s51, {16*2752}
    s_lshl_b32 s54, s52, 6
    s_add_u32 s53, s53, s54
    s_lshl_b32 s55, s52, 5
    s_add_u32 s55, s55, s51
    s_lshl_b32 s55, s55, 10
    """)
    srd(k, 44, 8, 512*2752)
    wload(PRE+4, 45, 53, 2752)
    srd(k, 44, 10, 512*2752)
    wload(PRE+12, 45, 53, 2752)
    k(f"""
    s_and_b32 s52, s42, 15
    s_lshr_b32 s51, s42, 4
    s_lshl_b32 s53, s51, 14
    s_lshl_b32 s54, s52, 6
    s_add_u32 s53, s53, s54
    s_mul_i32 s56, s52, 86
    s_add_u32 s56, s56, s51
    s_lshl_b32 s56, s56, 10
    """)
    srd(k, 44, 12, 1376*1024)
    wload(PRE+20, 46, 53, 1024)
    k(f"s_branch {back1}")
    k.place(small)
    k(f"""
    s_sub_u32 s57, s42, 1376
    s_cmp_lt_u32 s57, 512
    s_cbranch_scc0 {back1}
    s_and_b32 s52, s57, 15
    s_lshr_b32 s51, s57, 4
    s_lshl_b32 s53, s51, 14
    s_lshl_b32 s54, s52, 6
    s_add_u32 s53, s53, s54
    s_lshl_b32 s55, s52, 5
    s_add_u32 s55, s55, s51
    s_lshl_b32 s55, s55, 10
    """)
    srd(k, 44, 6, 512*1024)
    wload(PRE+4, 46, 53, 1024)
    k(f"s_branch {back1}")

    k.place(side2)
    small2 = k.label("small2")
    k("s_waitcnt vmcnt(0)")
    k(f"s_lshl_b32 s43, s42, 10")
    k(f"s_add_u32 s43, s43, {XF}")
    k(f"buffer_store_dwordx4 v[{PRE}:{PRE+3}], v{VL16}, s[20:23], s43 offen")
    def pack_store(reg, dstreg, base):
        for d in range(4):
            k(f"v_lshl_or_b32 v{reg+d}, v{reg+2*d+1}, 16, v{reg+2*d}")
        k(f"s_add_u32 s49, s{dstreg}, {base}")
        k(f"buffer_store_dwordx4 v[{reg}:{reg+3}], v{VL16}, s[20:23], s49 offen")
    k("s_cmp_lt_u32 s42, 1376")
    k(f"s_cbranch_scc0 {small2}")
    pack_store(PRE+4, 55, WGF)
    pack_store(PRE+12, 55, WUF)
    pack_store(PRE+20, 56, WDF)
    k(f"s_branch {back2}")
    k.place(small2)
    k("s_cmp_lt_u32 s57, 512")
    k(f"s_cbranch_scc0 {back2}")
    pack_store(PRE+4, 55, WOF)
    k(f"s_branch {back2}")
    return k.text(140, 64), 256, 512, 131072

def splitk(name, mode):
    k = Kern(name)
    done = k.label("done")
    if mode == 'wo':
        NKS, NST, WIN, BSRC, ASRC, RES = 32, 8, 8, OF, WOF, XF
    else:
        NKS, NST, WIN, BSRC, ASRC, RES = 86, 22, 10, ACT, WDF, HF
    k(f"""
    s_cmp_ge_u32 s2, 256
    s_cbranch_scc1 {done}
    s_load_dwordx2 s[4:5], s[0:1], 72
    s_load_dwordx2 s[6:7], s[0:1], 56
    v_lshrrev_b32 v1, 6, v0
    v_and_b32 v2, 63, v0
    s_and_b32 s24, s2, 7
    s_lshr_b32 s25, s2, 3
    v_readfirstlane_b32 s26, v1
    s_lshl_b32 s27, s24, 2
    s_and_b32 s28, s25, 3
    s_add_u32 s27, s27, s28
    s_lshr_b32 s28, s25, 2
    v_lshlrev_b32 v3, 4, v2
    """)
    SW, SRB, SCB = 26, 27, 28
    k(f"""
    s_and_b32 s29, s{SW}, 1
    s_lshl_b32 s30, s{SRB}, 1
    s_add_u32 s30, s30, s29
    s_xor_b32 s31, s30, 1
    s_lshr_b32 s29, s{SW}, 1
    s_lshl_b32 s32, s{SCB}, 1
    s_add_u32 s32, s32, s29
    s_xor_b32 s33, s32, 1
    """)
    if mode == 'wo':
        k(f"s_lshl_b32 s34, s{SW}, 3")
    else:
        k(f"""
        s_mul_i32 s34, s{SW}, 22
        s_cmp_eq_u32 s{SW}, 3
        s_cselect_b32 s34, 65, s34
        """)
    for d, src, base in ((36, 30, BSRC), (37, 31, BSRC), (38, 32, ASRC), (39, 33, ASRC)):
        k(f"s_mul_i32 s{d}, s{src}, {NKS}")
        k(f"s_add_u32 s{d}, s{d}, s34")
        k(f"s_lshl_b32 s{d}, s{d}, 10")
        k(f"s_add_u32 s{d}, s{d}, {base}")
    k(f"""
    s_lshl_b32 s40, s30, 5
    s_lshl_b32 s41, s32, 1
    s_add_u32 s40, s40, s41
    s_lshl_b32 s40, s40, 10
    s_add_u32 s41, s40, {RES}
    s_waitcnt lgkmcnt(0)
    """)
    srd(k, 20, 4, WS_SIZE)
    R = 8
    ACC = 16
    W0 = 80
    k(f"buffer_load_dwordx4 v[{R}:{R+3}], v3, s[20:23], s41 offen")
    k(f"buffer_load_dwordx4 v[{R+4}:{R+7}], v3, s[20:23], s41 offen offset:1024")
    if mode == 'down':
        k(f"s_cmp_ge_u32 s{SW}, 2")
        k(f"s_cselect_b32 s42, 0x40000000, 0")
    def loads(i):
        b = W0 + 16*(i % WIN)
        for j in range(4):
            q, r = divmod(i, 4)
            if r == 0 or True:
                pass
            so = 36 + j
            if mode == 'down' and i == NST-1:
                k(f"s_add_u32 s43, s{so}, s42")
                k(f"s_add_u32 s43, s43, {q*4096}")
                k(f"buffer_load_dwordx4 v[{b+4*j}:{b+4*j+3}], v3, s[20:23], s43 offen offset:{r*1024}")
            elif q == 0:
                k(f"buffer_load_dwordx4 v[{b+4*j}:{b+4*j+3}], v3, s[20:23], s{so} offen offset:{r*1024}")
            else:
                k(f"s_add_u32 s43, s{so}, {q*4096}")
                k(f"buffer_load_dwordx4 v[{b+4*j}:{b+4*j+3}], v3, s[20:23], s43 offen offset:{r*1024}")
    for i in range(min(WIN, NST)):
        loads(i)
    for i in range(NST):
        issued = min(NST, i + WIN)
        k(f"s_waitcnt vmcnt({4*(issued - i - 1)})")
        b = W0 + 16*(i % WIN)
        for j in range(4):
            A = b + 8 + 4*(j >> 1)
            B = b + 4*(j & 1)
            C = "0" if i == 0 else f"v[{ACC+16*j}:{ACC+16*j+15}]"
            k(f"{MFMA} v[{ACC+16*j}:{ACC+16*j+15}], v[{A}:{A+3}], v[{B}:{B+3}], {C}")
        if i + WIN < NST:
            loads(i + WIN)
    for j in range(1, 4):
        k(f"s_xor_b32 s44, s{SW}, {j}")
        k(f"s_mul_i32 s44, s44, 12288")
        k(f"s_add_u32 s44, s44, {(j-1)*4096}")
        k(f"v_add_u32 v{4+j}, s44, v3")
    k(f"s_mul_i32 s44, s{SW}, 12288")
    k(f"v_add_u32 v4, s44, v3")
    k.nop(4)
    for j in range(1, 4):
        for rq in range(4):
            r = ACC + 16*j + 4*rq
            k(f"ds_write_b128 v{4+j}, v[{r}:{r+3}] offset:{rq*1024}")
    k("s_waitcnt lgkmcnt(0)")
    k("s_barrier")
    for q in range(12):
        k(f"ds_read_b128 v[{W0+4*q}:{W0+4*q+3}], v4 offset:{q*1024}")
    U = W0 + 48
    k("s_mov_b32 s45, 0xffff0000")
    for d in range(8):
        k(f"v_lshlrev_b32 v{U+2*d}, 16, v{R+d}")
        k(f"v_and_b32 v{U+2*d+1}, s45, v{R+d}")
    for r in range(0, 16, 2):
        k(f"v_pk_add_f32 v[{ACC+r}:{ACC+r+1}], v[{ACC+r}:{ACC+r+1}], v[{U+r}:{U+r+1}]")
    for q in range(3):
        k(f"s_waitcnt lgkmcnt({8-4*q})")
        for r in range(0, 16, 2):
            k(f"v_pk_add_f32 v[{ACC+r}:{ACC+r+1}], v[{ACC+r}:{ACC+r+1}], v[{W0+16*q+r}:{W0+16*q+r+1}]")
    P = 8
    for d in range(8):
        k(f"v_cvt_pk_bf16_f32 v{P+d}, v{ACC+2*d}, v{ACC+2*d+1}")
    if mode == 'wo':
        k(f"s_add_u32 s41, s40, {HF}")
        k(f"buffer_store_dwordx4 v[{P}:{P+3}], v3, s[20:23], s41 offen")
        k(f"buffer_store_dwordx4 v[{P+4}:{P+7}], v3, s[20:23], s41 offen offset:1024")
        SX, SQ = 32, 33
        k(f"s_mov_b32 s46, {hex(ONES)}")
        k(f"v_dot2_f32_bf16 v{SX}, v{P}, s46, 0")
        k(f"v_dot2_f32_bf16 v{SQ}, v{P}, v{P}, 0")
        for d in range(1, 8):
            k(f"v_dot2_f32_bf16 v{SX}, v{P+d}, s46, v{SX}")
            k(f"v_dot2_f32_bf16 v{SQ}, v{P+d}, v{P+d}, v{SQ}")
        k.nop(3)
        half_sum(k, SX, 34, 35)
        half_sum(k, SQ, 34, 35)
        k(f"""
        s_lshl_b32 s47, s32, 14
        s_lshl_b32 s48, s30, 8
        s_add_u32 s47, s47, s48
        s_add_u32 s47, s47, {ST}
        v_lshlrev_b32 v5, 3, v2
        s_mov_b32 exec_hi, 0
        buffer_store_dwordx2 v[{SX}:{SQ}], v5, s[20:23], s47 offen
        """)
    else:
        srd(k, 12, 6, 2*MB)
        k(f"""
        v_and_b32 v5, 31, v2
        v_lshlrev_b32 v5, 10, v5
        v_lshrrev_b32 v6, 5, v2
        v_lshl_add_u32 v5, v6, 4, v5
        s_lshl_b32 s47, s30, 15
        s_lshl_b32 s48, s32, 6
        s_add_u32 s47, s47, s48
        v_permlane32_swap_b32 v{P}, v{P+2}
        v_permlane32_swap_b32 v{P+1}, v{P+3}
        v_permlane32_swap_b32 v{P+4}, v{P+6}
        v_permlane32_swap_b32 v{P+5}, v{P+7}
        """)
        k.nop(1)
        k(f"buffer_store_dwordx4 v[{P}:{P+3}], v5, s[12:15], s47 offen")
        k(f"buffer_store_dwordx4 v[{P+4}:{P+7}], v5, s[12:15], s47 offen offset:32")
    k.place(done)
    k("s_endpgm")
    return k.text(W0 + 16*WIN, 64), 256, 256, 49152

def k_gu():
    k = Kern("gu_kernel")
    done = k.label("done")
    k(f"""
    s_cmp_ge_u32 s2, 240
    s_cbranch_scc1 {done}
    s_load_dwordx2 s[4:5], s[0:1], 72
    v_lshrrev_b32 v1, 6, v0
    v_and_b32 v2, 63, v0
    s_and_b32 s24, s2, 7
    s_lshr_b32 s25, s2, 3
    v_readfirstlane_b32 s26, v1
    s_lshl_b32 s27, s24, 1
    s_cmp_ge_u32 s25, 15
    s_cselect_b32 s28, 1, 0
    s_add_u32 s27, s27, s28
    s_mul_i32 s28, s28, 15
    s_sub_u32 s28, s25, s28
    v_lshlrev_b32 v3, 4, v2
    """)
    SW, SRB, SB = 26, 27, 28
    k(f"""
    s_lshl_b32 s30, s{SRB}, 2
    s_add_u32 s30, s30, s{SW}
    s_lshl_b32 s31, s30, 15
    s_add_u32 s31, s31, {HF}
    s_lshl_b32 s32, s30, 8
    s_add_u32 s32, s32, {ST}
    s_mul_i32 s33, s{SB}, {3*32768}
    s_lshl_b32 s34, s{SW}, 10
    s_add_u32 s33, s33, s34
    v_and_b32 v4, 31, v2
    v_lshlrev_b32 v4, 3, v4
    v_lshrrev_b32 v5, 5, v2
    v_lshl_add_u32 v4, v5, 14, v4
    s_mov_b32 s38, 0xffff0000
    s_waitcnt lgkmcnt(0)
    """)
    srd(k, 20, 4, WS_SIZE)
    SMASK = 38
    STR = 8
    T = 24
    RS, NB = 28, 30
    XFR = 32
    ACC = 160
    for i in range(8):
        k(f"s_add_u32 s35, s32, {i*32768}")
        k(f"buffer_load_dwordx2 v[{STR+2*i}:{STR+2*i+1}], v4, s[20:23], s35 offen")
    def issue(c):
        k(f"s_add_u32 s35, s31, {c*4096}")
        for u in range(4):
            r = XFR + 16*c + 4*u
            k(f"buffer_load_dwordx4 v[{r}:{r+3}], v3, s[20:23], s35 offen offset:{u*1024}")
        for mt in range(6):
            base = (WGF if mt < 3 else WUF) + (mt % 3)*32768 + c*4096
            k(f"s_add_u32 s35, s33, {base}")
            k(f"s_add_u32 m0, s34, {(c % 6)*24576 + mt*4096}")
            k.nop(1)
            k(f"buffer_load_dwordx4 v3, s[20:23], s35 offen lds")
    for c in range(5):
        issue(c)
    k(f"v_add_u32 v6, 0x10000, v3")
    k(f"v_add_u32 v7, 0x20000, v3")
    VA = [3, 6, 7]
    vmN = {0: 40, 1: 40, 2: 40, 3: 40, 4: 30, 5: 20, 6: 10, 7: 0}
    def wread(sidx):
        c, u = divmod(sidx, 4)
        b = 24*(sidx & 1)
        for mt in range(6):
            off = (c % 6)*24576 + mt*4096 + u*1024
            k(f"ds_read_b128 a[{b+4*mt}:{b+4*mt+3}], v{VA[off >> 16]} offset:{off & 0xffff}")
    def chunk_sync(c):
        k(f"s_waitcnt vmcnt({vmN[c]}) lgkmcnt(0)")
        k("s_barrier")
        if 1 <= c + 0 <= 3 or c == 0:
            if c + 5 < 8:
                issue(c + 5)
    chunk_sync(0)
    wread(0)
    for i in range(1, 8):
        k(f"v_add_f32 v{STR}, v{STR}, v{STR+2*i}")
        k(f"v_add_f32 v{STR+1}, v{STR+1}, v{STR+2*i+1}")
    half_sum(k, STR, T, T+1)
    half_sum(k, STR+1, T, T+1)
    finish_stats(k, STR, STR+1, RS, NB, T, T+1)
    for o in norm_ops(XFR, T, RS, NB, SMASK):
        k(o)
    for sidx in range(32):
        nxt = sidx + 1
        if nxt < 32:
            if nxt % 4 == 0:
                chunk_sync(nxt // 4)
            wread(nxt)
            k("s_waitcnt lgkmcnt(6)")
            ops = norm_ops(XFR + 4*nxt, T, RS, NB, SMASK)
        else:
            k("s_waitcnt lgkmcnt(0)")
            k.nop(1)
            ops = []
        b = 24*(sidx & 1)
        x = XFR + 4*sidx
        cuts = [0, 3, 6, 9, 12, 14, 16]
        for mt in range(6):
            C = "0" if sidx == 0 else f"v[{ACC+16*mt}:{ACC+16*mt+15}]"
            k(f"{MFMA} v[{ACC+16*mt}:{ACC+16*mt+15}], a[{b+4*mt}:{b+4*mt+3}], v[{x}:{x+3}], {C}")
            for o in ops[cuts[mt]:cuts[mt+1]]: k(o)
    k(f"""
    s_mul_i32 s40, s30, 86
    s_mul_i32 s41, s{SB}, 6
    s_add_u32 s40, s40, s41
    s_lshl_b32 s40, s40, 10
    s_add_u32 s40, s40, {ACT}
    """)
    k.nop(6)
    P = 32
    for tile in range(3):
        G, U = ACC + 16*tile, ACC + 48 + 16*tile
        if tile == 1:
            k(f"s_cmp_eq_u32 s{SB}, 14")
            k(f"s_cbranch_scc1 {done}")
        if tile == 2: pass
        for r in range(16):
            k(f"v_max_f32 v{G+r}, 0, v{G+r}")
        for r in range(0, 16, 2):
            k(f"v_pk_mul_f32 v[{G+r}:{G+r+1}], v[{G+r}:{G+r+1}], v[{U+r}:{U+r+1}]")
        for d in range(8):
            k(f"v_cvt_pk_bf16_f32 v{P+8*tile+d}, v{G+2*d}, v{G+2*d+1}")
        k(f"s_add_u32 s41, s40, {tile*2048}")
        k(f"buffer_store_dwordx4 v[{P+8*tile}:{P+8*tile+3}], v3, s[20:23], s41 offen")
        k(f"buffer_store_dwordx4 v[{P+8*tile+4}:{P+8*tile+7}], v3, s[20:23], s41 offen offset:1024")
    k.place(done)
    k("s_endpgm")
    return k.text(256+48, 64, accum=256), 240, 256, 147456

HEADER = """; Kernarg: 0 A_x, 8 A_wqkv, 16 A_wo, 24 B_x (unused), 32 W_gate, 40 W_up, 48 W_down, 56 out, 64 debug, 72 ws
; pre-LN transformer block: qkv -> attention -> wo(+res) -> gate/up -> down(+res); generated by gen/gen.py
"""
def build(path, extra=()):
    ks = [("qkv_kernel", k_qkv()), ("attn_kernel", k_attn()), ("wo_kernel", splitk("wo_kernel", "wo")),
          ("gu_kernel", k_gu()), ("down_kernel", splitk("down_kernel", "down"))]
    out = HEADER
    for n, (t, g, b, l) in ks:
        out += f"; @launch kernel={n} grid=({g},1,1) block=({b},1,1) lds={l}\n"
    out += '.amdgcn_target "amdgcn-amd-amdhsa--gfx950"\n'
    for n, (t, g, b, l) in ks:
        out += t
    open(path, "w").write(out)

if __name__ == "__main__":
    build(sys.argv[1] if len(sys.argv) > 1 else "sequential_preLN__softmax_full_mha__glu_gated_reglu__prompt.s")
```

```python
import gen
from dsl import Kern
def noop():
    k = Kern("noop_kernel"); k("s_endpgm"); return k.text(8, 16), 256, 256, 0
def build(path, order):
    ks = {"qkv": ("qkv_kernel", gen.k_qkv()), "attn": ("attn_kernel", gen.k_attn()), "wo": ("wo_kernel", gen.splitk("wo_kernel", "wo")),
          "gu": ("gu_kernel", gen.k_gu()), "down": ("down_kernel", gen.splitk("down_kernel", "down")), "noop": ("noop_kernel", noop())}
    out = gen.HEADER
    for o in order:
        n, (t, g, b, l) = ks[o]
        out += f"; @launch kernel={n} grid=({g},1,1) block=({b},1,1) lds={l}\n"
    out += '.amdgcn_target "amdgcn-amd-amdhsa--gfx950"\n'
    for o in dict.fromkeys(order):
        out += ks[o][1][0]
    open(path, "w").write(out)
base = ["qkv", "attn", "wo", "gu", "down"]
build("t_a.s", base)
build("t_b.s", base + ["noop"])
build("t_c.s", base + ["noop"]*4)
build("t_d.s", ["qkv", "attn", "attn", "wo", "gu", "down"])
build("t_e.s", ["qkv", "qkv", "attn", "wo", "gu", "down"])
build("t_f.s", ["qkv", "attn", "wo", "gu", "gu", "down", "down"])
```

```python
class Kern:
    def __init__(self, name):
        self.name = name
        self.lines = []
        self.nlab = 0
    def __call__(self, s, *a):
        for l in s.strip("\n").split("\n"):
            l = l.strip()
            if l:
                self.lines.append("  " + l if not l.endswith(":") else l)
    def c(self, s):
        self.lines.append("  ; " + s)
    def label(self, base="L"):
        self.nlab += 1
        return f"{self.name}_{base}{self.nlab}"
    def place(self, lab):
        self.lines.append(lab + ":")
    def nop(self, n):
        while n > 0:
            k = min(n, 16)
            self.lines.append(f"  s_nop {k-1}")
            n -= k
    def stamp_begin(self):
        if Kern.DIAG is None: return
        self("s_memtime s[80:81]")
        self("s_memrealtime s[82:83]")
    def stamp_mid(self, i):
        if Kern.DIAG is None: return
        self(f"s_memtime s[{88+2*i}:{89+2*i}]")
    def stamp_end(self, kidx, wsrd, swave, nw):
        self.dbg_end(kidx, swave)
        if Kern.DIAG is None: return
        self("s_waitcnt vmcnt(0)")
        self("s_memtime s[84:85]")
        self("s_memrealtime s[86:87]")
        self("s_mov_b64 exec, -1")
        self(f"s_lshl_b32 s70, s2, 4")
        self(f"s_add_u32 s70, s70, s{swave}")
        self(f"s_add_u32 s70, s70, {kidx*4096}")
        self(f"s_lshl_b32 s70, s70, 5")
        self(f"s_add_u32 s70, s70, {Kern.DIAG}")
        self("s_waitcnt lgkmcnt(0)")
        self("s_sub_u32 s84, s84, s80")
        for i in range(4):
            self(f"s_sub_u32 s{88+2*i}, s{88+2*i}, s80")
        self("s_getreg_b32 s71, hwreg(HW_REG_XCC_ID)")
        for i, r in enumerate((82, 86, 84, 88, 90, 92, 94, 71)):
            self(f"v_mov_b32 v{8+i}, s{r}")
        self("v_mov_b32 v4, 0")
        self("s_mov_b64 exec, 1")
        self(f"buffer_store_dwordx4 v[8:11], v4, s[{wsrd}:{wsrd+3}], s70 offen")
        self(f"buffer_store_dwordx4 v[12:15], v4, s[{wsrd}:{wsrd+3}], s70 offen offset:16")
    DIAG = None
    DBG = False
    def dbg_end(self, kidx, swave):
        if not Kern.DBG: return
        lab = self.label("dbgskip")
        self("s_waitcnt vmcnt(0)")
        self("s_memtime s[84:85]")
        self("s_memrealtime s[86:87]")
        self("s_load_dwordx2 s[72:73], s[0:1], 64")
        self("s_mov_b64 exec, -1")
        self(f"s_or_b32 s70, s2, s{swave}")
        self("s_waitcnt lgkmcnt(0)")
        self("s_cmp_lg_u32 s70, 0")
        self(f"s_cbranch_scc1 {lab}")
        self(f"s_sub_u32 s72, s72, {kidx*512 - kidx*12}")
        self("s_subb_u32 s73, s73, 0")
        self("s_sub_u32 s84, s84, s80")
        self("v_mov_b32 v8, s82")
        self("v_mov_b32 v9, s86")
        self("v_mov_b32 v10, s84")
        self("v_mov_b32 v4, 0")
        self("s_mov_b64 exec, 1")
        self("global_store_dwordx3 v4, v[8:10], s[72:73]")
        self.place(lab)
    def text(self, vgpr, sgpr=96, accum=None):
        if Kern.DIAG is not None or Kern.DBG: sgpr = 100
        if accum is None:
            accum = (vgpr + 3) // 4 * 4
        hdr = f""".text
.globl {self.name}
.p2align 8
.type {self.name},@function
{self.name}:
"""
        tail = f"""
.section .rodata,"a"
.p2align 6
.amdhsa_kernel {self.name}
  .amdhsa_next_free_vgpr {vgpr}
  .amdhsa_next_free_sgpr {sgpr}
  .amdhsa_accum_offset {accum}
  .amdhsa_group_segment_fixed_size 0
  .amdhsa_kernarg_size 80
  .amdhsa_user_sgpr_count 2
  .amdhsa_user_sgpr_kernarg_segment_ptr 1
  .amdhsa_system_sgpr_workgroup_id_x 1
.end_amdhsa_kernel
"""
        return hdr + "\n".join(self.lines) + tail

def v(a, n=1):
    return f"v{a}" if n == 1 else f"v[{a}:{a+n-1}]"
def a_(a, n=1):
    return f"a{a}" if n == 1 else f"a[{a}:{a+n-1}]"
def s(a, n=1):
    return f"s{a}" if n == 1 else f"s[{a}:{a+n-1}]"
```

```python
import sys, math, struct
from dsl import Kern, v, s, a_

MB = 1 << 20
QF, KF, VF, OF, XF, HF, ACT = 0, 2*MB, 4*MB, 6*MB, 8*MB, 10*MB, 12*MB
WOF, WGF, WUF, WDF, ST = 18*MB, 19*MB, 20*MB + MB//2, 22*MB, 24*MB
WS_SIZE = 32*MB
def f32(x): return struct.unpack("<I", struct.pack("<f", x))[0]
ONES = 0x3f803f80
MFMA = "v_mfma_f32_32x32x16_bf16"

def srd(k, d, lo, size):
    k(f"s_mov_b32 s{d}, s{lo}")
    k(f"s_and_b32 s{d+1}, s{lo+1}, 0xffff")
    k(f"s_mov_b32 s{d+2}, {size}")
    k(f"s_mov_b32 s{d+3}, 0x20000")

def half_sum(k, r, t1, t2):
    k(f"v_mov_b32 v{t1}, v{r}")
    k(f"v_mov_b32 v{t2}, v{r}")
    k.nop(2)
    k(f"v_permlane32_swap_b32 v{t1}, v{t2}")
    k.nop(1)
    k(f"v_add_f32 v{r}, v{t1}, v{t2}")

def norm_ops(x, t, rs, nb, smask):
    ops = []
    for d in range(4):
        tt = t + 2*(d & 1)
        ops.append(f"v_lshlrev_b32 v{tt}, 16, v{x+d}")
        ops.append(f"v_and_b32 v{tt+1}, s{smask}, v{x+d}")
        ops.append(f"v_fma_f32 v{tt}, v{tt}, v{rs}, v{nb}")
        ops.append(f"v_fma_f32 v{tt+1}, v{tt+1}, v{rs}, v{nb}")
        ops.append(f"v_cvt_pk_bf16_f32 v{x+d}, v{tt}, v{tt+1}")
    o = []
    for p in (0, 2):
        A, B = ops[5*p:5*p+5], ops[5*p+5:5*p+10]
        for a, b in zip(A, B): o += [a, b]
    return o

def finish_stats(k, sx, sq, rs, nb, t1, t2):
    k(f"v_mul_f32 v{sx}, {hex(f32(1/512))}, v{sx}")
    k(f"v_mul_f32 v{t1}, v{sx}, v{sx}")
    k(f"v_mov_b32 v{t2}, {hex(f32(1/512))}")
    k(f"v_fma_f32 v{t1}, v{sq}, v{t2}, -v{t1}")
    k(f"v_max_f32 v{t1}, 0, v{t1}")
    k(f"v_add_f32 v{t1}, {hex(f32(1e-5))}, v{t1}")
    k(f"v_rsq_f32 v{rs}, v{t1}")
    k.nop(1)
    k(f"v_mul_f32 v{nb}, v{sx}, v{rs}")
    k(f"v_sub_f32 v{nb}, 0, v{nb}")

def k_qkv():
    k = Kern("qkv_kernel")
    done = k.label("done")
    k(f"""
    s_cmp_ge_u32 s2, 256
    s_cbranch_scc1 {done}
    ;STAMP
    s_load_dwordx4 s[4:7], s[0:1], 0
    s_load_dwordx2 s[8:9], s[0:1], 72
    v_lshrrev_b32 v1, 6, v0
    v_and_b32 v2, 63, v0
    s_and_b32 s24, s2, 7
    s_lshr_b32 s25, s2, 3
    v_readfirstlane_b32 s26, v1
    s_lshr_b32 s27, s24, 1
    s_lshl_b32 s27, s27, 3
    s_and_b32 s28, s25, 7
    s_add_u32 s27, s27, s28
    s_and_b32 s28, s24, 1
    s_lshl_b32 s28, s28, 2
    s_lshr_b32 s29, s25, 3
    s_add_u32 s28, s28, s29
    """)
    SW, SRB, SCB = 26, 27, 28
    k(f"""
    v_lshrrev_b32 v3, 3, v2
    v_and_b32 v4, 7, v2
    v_lshrrev_b32 v5, 4, v2
    v_xor_b32 v6, v4, v5
    v_lshlrev_b32 v6, 4, v6
    s_lshl_b32 s29, s{SW}, 4
    v_add_u32 v7, s29, v3
    v_lshlrev_b32 v7, 10, v7
    v_add_u32 v8, v7, v6
    v_xor_b32 v6, 64, v6
    v_add_u32 v9, v7, v6
    v_add_u32 v9, 8192, v9
    """)
    VXE, VXO, VW = 8, 9, 10
    k(f"""
    v_and_b32 v5, 1, v5
    v_lshlrev_b32 v5, 2, v5
    v_xor_b32 v5, v4, v5
    v_lshlrev_b32 v5, 4, v5
    v_add_u32 v7, s29, v3
    v_mul_u32_u24 v7, 3072, v7
    v_add_u32 v{VW}, v7, v5
    s_waitcnt lgkmcnt(0)
    """)
    srd(k, 12, 4, 2*MB)
    srd(k, 16, 6, 512*3072)
    srd(k, 20, 8, WS_SIZE)
    k(f"s_lshl_b32 s30, s{SRB}, 16")
    k(f"s_lshl_b32 s31, s{SW}, 11")
    k(f"s_lshl_b32 s32, s{SCB}, 7")
    for c in range(8):
        for o in range(2):
            k(f"s_add_u32 s33, s30, {c*128}")
            k(f"s_add_u32 m0, s31, {c*8192 + o*1024}")
            k.nop(1)
            k(f"buffer_load_dwordx4 v{VXE if o == 0 else VXO}, s[12:15], s33 offen lds")
    slot_of = {0: 65536, 1: 65536+24576, 2: 65536+2*24576, 3: 65536+3*24576, 4: 0, 5: 24576, 6: 65536, 7: 65536+24576}
    def wdma(c):
        for p in range(3):
            for o in range(2):
                k(f"s_add_u32 s33, s32, {(64*c + 8*o)*3072 + p*1024}")
                k(f"s_add_u32 m0, s31, {slot_of[c] + p*8192 + o*1024}")
                k.nop(1)
                k(f"buffer_load_dwordx4 v{VW}, s[16:19], s33 offen lds")
    for c in range(4):
        wdma(c)
    VXA = 12
    k(f"""
    v_and_b32 v3, 31, v2
    v_lshrrev_b32 v4, 5, v2
    v_lshrrev_b32 v5, 1, v3
    v_and_b32 v5, 7, v5
    s_and_b32 s34, s{SW}, 1
    s_lshl_b32 s35, s34, 12
    v_lshlrev_b32 v6, 7, v3
    v_add_u32 v6, s35, v6
    """)
    for u in range(4):
        k(f"v_add_u32 v7, {2*u}, v4")
        k(f"v_xor_b32 v7, v7, v5")
        k(f"v_lshl_add_u32 v{VXA+u}, v7, 4, v6")
    VWA = 16
    k(f"""
    s_lshr_b32 s36, s{SW}, 1
    v_bfe_u32 v5, v2, 2, 2
    v_lshl_add_u32 v6, v4, 3, v5
    v_lshlrev_b32 v6, 7, v6
    v_bfe_u32 v7, v2, 4, 1
    v_lshlrev_b32 v7, 1, v7
    v_bfe_u32 v11, v2, 1, 1
    v_add_u32 v7, v7, v11
    s_lshl_b32 s37, s36, 2
    v_add_u32 v7, s37, v7
    v_lshrrev_b32 v5, 1, v5
    v_lshlrev_b32 v5, 2, v5
    v_xor_b32 v7, v7, v5
    v_lshl_add_u32 v6, v7, 4, v6
    v_and_b32 v7, 1, v2
    v_lshl_add_u32 v{VWA}, v7, 3, v6
    v_add_u32 v{VWA+1}, 0x10000, v{VWA}
    v_add_u32 v{VWA+2}, 0x20000, v{VWA}
    s_mov_b32 s38, 0xffff0000
    s_mov_b32 s39, {hex(ONES)}
    """)
    SMASK, SONES = 38, 39
    XFR = 64
    ACC = 192
    WB = [20, 32]
    T = 44
    RS, NB = 48, 50
    SX, SQ = 52, 56
    for i in range(8):
        k(f"v_mov_b32 v{SX+i}, 0")
    for i in range(48):
        k(f"v_mov_b32 v{ACC+i}, 0")
    k.stamp_mid(0)
    k("s_waitcnt vmcnt(24)")
    k("s_barrier")
    k.stamp_mid(1)
    def xread(sidx):
        c, u = divmod(sidx, 4)
        k(f"ds_read_b128 v[{XFR+4*sidx}:{XFR+4*sidx+3}], v{VXA+u} offset:{c*8192}")
    def xstat(sidx):
        for d in range(4):
            r = XFR + 4*sidx + d
            k(f"v_dot2_f32_bf16 v{SQ+d}, v{r}, v{r}, v{SQ+d}")
            k(f"v_dot2_f32_bf16 v{SX+d}, v{r}, s{SONES}, v{SX+d}")
    for i in range(8):
        xread(i)
    for i in range(32):
        if i + 8 < 32:
            xread(i + 8)
            k("s_waitcnt lgkmcnt(8)")
        else:
            k(f"s_waitcnt lgkmcnt({31-i})")
        if i == 24:
            pass
        xstat(i)
    k("s_barrier")
    wdma(4)
    wdma(5)
    k(f"v_add_f32 v{SX}, v{SX}, v{SX+1}")
    k(f"v_add_f32 v{SX+2}, v{SX+2}, v{SX+3}")
    k(f"v_add_f32 v{SQ}, v{SQ}, v{SQ+1}")
    k(f"v_add_f32 v{SQ+2}, v{SQ+2}, v{SQ+3}")
    k(f"v_add_f32 v{SX}, v{SX}, v{SX+2}")
    k(f"v_add_f32 v{SQ}, v{SQ}, v{SQ+2}")
    half_sum(k, SX, T, T+1)
    half_sum(k, SQ, T, T+1)
    finish_stats(k, SX, SQ, RS, NB, T, T+1)
    for o in norm_ops(XFR, T, RS, NB, SMASK):
        k(o)
    k.stamp_mid(2)
    vmN = {0: 30, 1: 24, 2: 24, 3: 24, 4: 18, 5: 12, 6: 6, 7: 0}
    def wread(sidx):
        c, u = divmod(sidx, 4)
        b = WB[sidx & 1]
        for p in range(3):
            for r in range(2):
                off = slot_of[c] + p*8192 + u*2048 + r*512
                k(f"ds_read_b64_tr_b16 v[{b+4*p+2*r}:{b+4*p+2*r+1}], v{VWA + (off >> 16)} offset:{off & 0xffff}")
    def chunk_sync(c):
        k(f"s_waitcnt vmcnt({vmN[c]}) lgkmcnt(0)")
        k("s_barrier")
        if c in (1, 2):
            wdma(c + 5)
    chunk_sync(0)
    wread(0)
    for sidx in range(32):
        nxt = sidx + 1
        if nxt < 32:
            if nxt % 4 == 0:
                chunk_sync(nxt // 4)
            wread(nxt)
            k("s_waitcnt lgkmcnt(6)")
            ops = norm_ops(XFR + 4*nxt, T, RS, NB, SMASK)
        else:
            k("s_waitcnt lgkmcnt(0)")
            k.nop(1)
            ops = []
        b = WB[sidx & 1]
        x = XFR + 4*sidx
        k(f"{MFMA} v[{ACC}:{ACC+15}], v[{b}:{b+3}], v[{x}:{x+3}], v[{ACC}:{ACC+15}]")
        for o in ops[:7]: k(o)
        k(f"{MFMA} v[{ACC+16}:{ACC+31}], v[{b+4}:{b+7}], v[{x}:{x+3}], v[{ACC+16}:{ACC+31}]")
        for o in ops[7:14]: k(o)
        k(f"{MFMA} v[{ACC+32}:{ACC+47}], v[{x}:{x+3}], v[{b+8}:{b+11}], v[{ACC+32}:{ACC+47}]")
        for o in ops[14:]: k(o)
    k.stamp_mid(3)
    k(f"""
    s_lshl_b32 s40, s{SCB}, 2
    s_lshl_b32 s41, s36, 1
    s_add_u32 s40, s40, s41
    s_lshl_b32 s40, s40, 16
    s_lshl_b32 s41, s{SRB}, 1
    s_add_u32 s41, s41, s34
    s_lshl_b32 s41, s41, 10
    s_add_u32 s40, s40, s41
    v_lshlrev_b32 v3, 4, v2
    v_bfe_u32 v4, v2, 4, 1
    v_lshlrev_b32 v4, 16, v4
    v_lshrrev_b32 v5, 5, v2
    v_lshl_add_u32 v4, v5, 8, v4
    v_and_b32 v5, 15, v2
    v_lshl_add_u32 v4, v5, 4, v4
    s_mov_b32 s42, {hex(f32(0.25*math.log2(math.e)))}
    s_add_u32 s43, s40, {QF + 65536}
    s_add_u32 s44, s40, {KF}
    s_add_u32 s45, s40, {KF + 65536}
    s_add_u32 s46, s40, {VF}
    """)
    k.nop(4)
    for i in range(16):
        k(f"v_mul_f32 v{ACC+i}, s42, v{ACC+i}")
    P = 64
    for i in range(24):
        k(f"v_cvt_pk_bf16_f32 v{P+i}, v{ACC+2*i}, v{ACC+2*i+1}")
        if i == 3:  k(f"buffer_store_dwordx4 v[{P}:{P+3}], v3, s[20:23], s40 offen")
        if i == 7:  k(f"buffer_store_dwordx4 v[{P+4}:{P+7}], v3, s[20:23], s43 offen")
        if i == 11: k(f"buffer_store_dwordx4 v[{P+8}:{P+11}], v3, s[20:23], s44 offen")
        if i == 15: k(f"buffer_store_dwordx4 v[{P+12}:{P+15}], v3, s[20:23], s45 offen")
        if i == 19: k(f"buffer_store_dwordx4 v[{P+16}:{P+19}], v4, s[20:23], s46 offen")
        if i == 23: k(f"buffer_store_dwordx4 v[{P+20}:{P+23}], v4, s[20:23], s46 offen offset:512")
    k.stamp_end(0, 20, SW, 4)
    k.place(done)
    k("s_endpgm")
    return k.text(240, 64), 256, 256, 163840

def k_attn():
    k = Kern("attn_kernel")
    done = k.label("done")
    k(f"""
    s_cmp_ge_u32 s2, 256
    s_cbranch_scc1 {done}
    ;STAMP
    s_load_dwordx2 s[4:5], s[0:1], 0
    s_load_dwordx2 s[6:7], s[0:1], 16
    s_load_dwordx4 s[8:11], s[0:1], 32
    s_load_dwordx2 s[12:13], s[0:1], 48
    s_load_dwordx2 s[14:15], s[0:1], 72
    v_lshrrev_b32 v1, 6, v0
    v_and_b32 v2, 63, v0
    s_and_b32 s24, s2, 7
    s_lshr_b32 s25, s2, 3
    v_readfirstlane_b32 s26, v1
    s_lshl_b32 s27, s24, 2
    s_and_b32 s28, s25, 3
    s_add_u32 s27, s27, s28
    s_lshr_b32 s28, s25, 2
    v_lshlrev_b32 v3, 4, v2
    """)
    SW, SHEAD, SQB = 26, 27, 28
    VL16 = 3
    k(f"""
    s_lshl_b32 s29, s{SHEAD}, 16
    s_lshl_b32 s30, s{SQB}, 3
    s_add_u32 s30, s30, s{SW}
    s_lshl_b32 s31, s30, 10
    s_add_u32 s31, s31, s29
    s_lshl_b32 s32, s{SW}, 10
    s_add_u32 s33, s29, s32
    s_waitcnt lgkmcnt(0)
    """)
    srd(k, 20, 14, WS_SIZE)
    Q = 8
    KB = [12, 16]
    V1 = [20, 28]
    V2 = [24, 32]
    P = 36
    SS = [48, 64]
    CN = 80
    O = 96
    PRE = 112
    VKA, VVA = 4, 5
    k(f"buffer_load_dwordx4 v[{Q}:{Q+3}], v{VL16}, s[20:23], s31 offen")
    for c in range(8):
        k(f"s_add_u32 s34, s33, {KF + c*8192}")
        k(f"s_add_u32 m0, s32, {c*8192}")
        k.nop(1)
        k(f"buffer_load_dwordx4 v{VL16}, s[20:23], s34 offen lds")
        k(f"s_add_u32 s34, s33, {VF + c*8192}")
        k(f"s_add_u32 m0, s32, {65536 + c*8192}")
        k.nop(1)
        k(f"buffer_load_dwordx4 v{VL16}, s[20:23], s34 offen lds")
    k(f"""
    v_mov_b32 v{VKA}, v{VL16}
    v_lshrrev_b32 v6, 5, v2
    v_lshlrev_b32 v6, 8, v6
    v_and_b32 v7, 15, v2
    v_lshl_add_u32 v{VVA}, v7, 4, v6
    v_add_u32 v{VVA}, 0x10000, v{VVA}
    v_and_b32 v6, 27, v2
    v_mov_b32 v7, {hex(ONES)}
    v_cmp_eq_u32 vcc, 16, v6
    s_mov_b32 s36, 0xffff
    s_mov_b32 s37, 0xffff
    """)
    k(f"v_cndmask_b32 v6, 0, v7, vcc")
    for r in range(16):
        k(f"v_mov_b32 v{20+r}, v6")
    for r in range(8):
        k(f"v_mov_b32 v{P+r}, 0")
    for r in range(16):
        k(f"v_mov_b32 v{O+r}, 0")
    def vread(buf, off):
        k("s_mov_b64 exec, s[36:37]")
        k(f"ds_read_b128 v[{V1[buf]}:{V1[buf]+3}], v{VVA} offset:{off}")
        k(f"ds_read_b128 v[{V2[buf]}:{V2[buf]+3}], v{VVA} offset:{off+512}")
        k("s_mov_b64 exec, -1")
    k("s_waitcnt vmcnt(12)")
    k("s_barrier")
    k(f"ds_read_b128 v[{KB[0]}:{KB[0]+3}], v{VKA}")
    k(f"ds_read_b128 v[{KB[1]}:{KB[1]+3}], v{VKA} offset:1024")
    vread(0, 0)
    k("s_waitcnt lgkmcnt(3)")
    k(f"{MFMA} v[{SS[0]}:{SS[0]+15}], v[{KB[0]}:{KB[0]+3}], v[{Q}:{Q+3}], 0")
    k.nop(12)
    def rowmax(S, dst, t1, t2):
        k(f"v_max3_f32 v{dst}, v{S}, v{S+1}, v{S+2}")
        k(f"v_max3_f32 v{t1}, v{S+3}, v{S+4}, v{S+5}")
        k(f"v_max3_f32 v{dst}, v{dst}, v{S+6}, v{S+7}")
        k(f"v_max3_f32 v{t1}, v{t1}, v{S+8}, v{S+9}")
        k(f"v_max3_f32 v{dst}, v{dst}, v{S+10}, v{S+11}")
        k(f"v_max3_f32 v{t1}, v{t1}, v{S+12}, v{S+13}")
        k(f"v_max3_f32 v{dst}, v{dst}, v{S+14}, v{S+15}")
        k(f"v_max_f32 v{t1}, v{dst}, v{t1}")
        k(f"v_mov_b32 v{t2}, v{t1}")
        k.nop(2)
        k(f"v_permlane32_swap_b32 v{t1}, v{t2}")
        k.nop(1)
        k(f"v_max_f32 v{dst}, v{t1}, v{t2}")
    rowmax(SS[0], 44, 45, 46)
    for r in range(16):
        k(f"v_sub_f32 v{CN+r}, 0, v44")
    k.nop(2)
    k(f"{MFMA} v[{SS[0]}:{SS[0]+15}], v[{KB[0]}:{KB[0]+3}], v[{Q}:{Q+3}], v[{CN}:{CN+15}]")
    k("s_mov_b32 s38, 0")
    k.nop(10)
    loop = k.label("loop")
    side1, back1 = k.label("side1"), k.label("back1")
    side2, back2 = k.label("side2"), k.label("back2")
    k(".p2align 6")
    k.place(loop)
    k("s_cmp_eq_u32 s38, 1")
    k(f"s_cbranch_scc1 {side1}")
    k.place(back1)
    k("s_cmp_eq_u32 s38, 5")
    k(f"s_cbranch_scc1 {side2}")
    k.place(back2)
    for t in range(8):
        cur, nx = SS[t & 1], SS[(t+1) & 1]
        e = lambda i: k(f"v_exp_f32 v{cur+i}, v{cur+i}")
        c = lambda i: k(f"v_cvt_pk_bf16_f32 v{P+i}, v{cur+2*i}, v{cur+2*i+1}")
        k("s_waitcnt lgkmcnt(0)")
        kb = KB[(t+1) & 1]
        k(f"{MFMA} v[{nx}:{nx+15}], v[{kb}:{kb+3}], v[{Q}:{Q+3}], v[{CN}:{CN+15}]")
        k(f"ds_read_b128 v[{KB[t&1]}:{KB[t&1]+3}], v{VKA} offset:{(t+2)*1024}")
        e(0); e(1)
        pb = (t+1) & 1
        k(f"{MFMA} v[{O}:{O+15}], v[{V2[pb]}:{V2[pb]+3}], v[{P+4}:{P+7}], v[{O}:{O+15}]")
        vread(pb, (t+1)*1024)
        e(2); e(3); c(0); e(4); e(5); c(1); e(6); e(7); c(2); e(8); e(9); c(3); e(10); e(11)
        k(f"{MFMA} v[{O}:{O+15}], v[{V1[t&1]}:{V1[t&1]+3}], v[{P}:{P+3}], v[{O}:{O+15}]")
        c(4); e(12); e(13); c(5); e(14); e(15); c(6)
        if t == 7:
            k(f"v_add_u32 v{VKA}, 8192, v{VKA}")
            k(f"v_add_u32 v{VVA}, 8192, v{VVA}")
            k("s_add_u32 s38, s38, 1")
            k("s_cmp_lt_u32 s38, 8")
        c(7)
    k(f"s_cbranch_scc1 {loop}")
    k.nop(2)
    k(f"{MFMA} v[{O}:{O+15}], v[{V2[1]}:{V2[1]+3}], v[{P+4}:{P+7}], v[{O}:{O+15}]")
    k("s_waitcnt lgkmcnt(0)")
    k.nop(12)
    fb, fin = k.label("fb"), k.label("fin")
    k(f"""
    v_max3_f32 v44, abs(v{O}), abs(v{O+1}), abs(v{O+2})
    v_max3_f32 v45, abs(v{O+3}), abs(v{O+4}), abs(v{O+5})
    v_max3_f32 v44, v44, abs(v{O+6}), abs(v{O+7})
    v_add_f32 v46, v{O}, v{O+1}
    v_max3_f32 v44, v44, v45, v{O+8}
    s_mov_b32 s39, {hex(f32(2.0**100))}
    """)
    for r in range(2, 9):
        k(f"v_add_f32 v46, v46, v{O+r}")
    k(f"v_and_b32 v46, 0x7fffffff, v46")
    k(f"v_cmp_ngt_f32 vcc, s39, v44")
    k(f"v_cmp_ngt_f32 s[40:41], s39, v46")
    k.nop(1)
    k("s_or_b64 s[40:41], s[40:41], vcc")
    k("s_cmp_lg_u64 s[40:41], 0")
    k(f"s_cbranch_scc1 {fb}")
    k.place(fin)
    k(f"v_rcp_f32 v44, v{O+8}")
    k(f"s_lshl_b32 s40, s30, 15")
    k(f"s_lshl_b32 s41, s{SHEAD}, 10")
    k(f"s_add_u32 s40, s40, s41")
    k(f"s_add_u32 s40, s40, {OF}")
    for r in range(8):
        k(f"v_mul_f32 v{O+r}, v{O+r}, v44")
    for r in range(4):
        k(f"v_cvt_pk_bf16_f32 v{P+r}, v{O+2*r}, v{O+2*r+1}")
    k(f"buffer_store_dwordx4 v[{P}:{P+3}], v{VL16}, s[20:23], s40 offen")
    k.stamp_end(1, 20, SW, 8)
    k.place(done)
    k("s_endpgm")

    k.place(fb)
    k(f"v_mov_b32 v{VKA}, v{VL16}")
    k(f"v_subrev_u32 v{VVA}, 0x10000, v{VVA}")
    k(f"v_mov_b32 v47, 0xff7fffff")
    for r in range(16):
        k(f"v_mov_b32 v{O+r}, 0")
    k("s_mov_b32 s38, 0")
    fl = k.label("fl")
    k.place(fl)
    S = SS[0]
    k(f"ds_read_b128 v[{KB[0]}:{KB[0]+3}], v{VKA}")
    vread(0, 0)
    k("s_waitcnt lgkmcnt(0)")
    k(f"{MFMA} v[{S}:{S+15}], v[{KB[0]}:{KB[0]+3}], v[{Q}:{Q+3}], 0")
    k.nop(14)
    rowmax(S, 44, 45, 46)
    k("v_max_f32 v44, v44, v47")
    k("v_sub_f32 v45, v47, v44")
    k("v_exp_f32 v45, v45")
    k("v_mov_b32 v47, v44")
    for r in range(16):
        k(f"v_sub_f32 v{S+r}, v{S+r}, v44")
    for r in range(16):
        k(f"v_mul_f32 v{O+r}, v{O+r}, v45")
    for r in range(16):
        k(f"v_exp_f32 v{S+r}, v{S+r}")
    k.nop(1)
    for r in range(8):
        k(f"v_cvt_pk_bf16_f32 v{P+r}, v{S+2*r}, v{S+2*r+1}")
    k.nop(2)
    k(f"{MFMA} v[{O}:{O+15}], v[{V1[0]}:{V1[0]+3}], v[{P}:{P+3}], v[{O}:{O+15}]")
    k(f"{MFMA} v[{O}:{O+15}], v[{V2[0]}:{V2[0]+3}], v[{P+4}:{P+7}], v[{O}:{O+15}]")
    k(f"v_add_u32 v{VKA}, 1024, v{VKA}")
    k(f"v_add_u32 v{VVA}, 1024, v{VVA}")
    k("s_add_u32 s38, s38, 1")
    k("s_cmp_lt_u32 s38, 64")
    k.nop(14)
    k(f"s_cbranch_scc1 {fl}")
    k(f"s_branch {fin}")

    k.place(side1)
    k.stamp_mid(0)
    k("s_waitcnt vmcnt(0)")
    k("s_barrier")
    k(f"""
    s_lshl_b32 s42, s2, 3
    s_add_u32 s42, s42, s{SW}
    v_and_b32 v6, 31, v2
    v_lshrrev_b32 v7, 5, v2
    """)
    srd(k, 44, 4, 2*MB)
    k(f"""
    v_lshlrev_b32 v44, 10, v6
    v_lshl_add_u32 v44, v7, 3, v44
    s_lshr_b32 s43, s42, 5
    s_lshl_b32 s43, s43, 15
    s_and_b32 s48, s42, 31
    s_lshl_b32 s48, s48, 5
    s_add_u32 s43, s43, s48
    buffer_load_dwordx2 v[{PRE}:{PRE+1}], v44, s[44:47], s43 offen
    buffer_load_dwordx2 v[{PRE+2}:{PRE+3}], v44, s[44:47], s43 offen offset:16
    """)
    def wload(reg, voffreg, soffreg, pitch):
        for j in range(8):
            row = 8*(j >> 2) + (j & 3)
            k(f"s_add_u32 s49, s{soffreg}, {row*pitch}")
            k(f"buffer_load_ushort v{reg+j}, v{voffreg}, s[44:47], s49 offen")
    big, small, nomore = k.label("big"), k.label("small"), k.label("nomore")
    k(f"""
    v_mul_u32_u24 v45, {4*2752}, v7
    v_lshl_add_u32 v45, v6, 1, v45
    v_lshlrev_b32 v46, 12, v7
    v_lshl_add_u32 v46, v6, 1, v46
    s_cmp_lt_u32 s42, 1376
    s_cbranch_scc0 {small}
    s_mov_b32 s50, {(2**32 + 42)//43}
    s_mul_hi_u32 s51, s42, s50
    s_mul_i32 s52, s51, 43
    s_sub_u32 s52, s42, s52
    s_mul_i32 s53, s51, {16*2752}
    s_lshl_b32 s54, s52, 6
    s_add_u32 s53, s53, s54
    s_lshl_b32 s55, s52, 5
    s_add_u32 s55, s55, s51
    s_lshl_b32 s55, s55, 10
    """)
    srd(k, 44, 8, 512*2752)
    wload(PRE+4, 45, 53, 2752)
    srd(k, 44, 10, 512*2752)
    wload(PRE+12, 45, 53, 2752)
    k(f"""
    s_and_b32 s52, s42, 15
    s_lshr_b32 s51, s42, 4
    s_lshl_b32 s53, s51, 14
    s_lshl_b32 s54, s52, 6
    s_add_u32 s53, s53, s54
    s_mul_i32 s56, s52, 86
    s_add_u32 s56, s56, s51
    s_lshl_b32 s56, s56, 10
    """)
    srd(k, 44, 12, 1376*1024)
    wload(PRE+20, 46, 53, 1024)
    k.stamp_mid(1)
    k(f"s_branch {back1}")
    k.place(small)
    k(f"""
    s_sub_u32 s57, s42, 1376
    s_cmp_lt_u32 s57, 512
    s_cbranch_scc0 {back1}
    s_and_b32 s52, s57, 15
    s_lshr_b32 s51, s57, 4
    s_lshl_b32 s53, s51, 14
    s_lshl_b32 s54, s52, 6
    s_add_u32 s53, s53, s54
    s_lshl_b32 s55, s52, 5
    s_add_u32 s55, s55, s51
    s_lshl_b32 s55, s55, 10
    """)
    srd(k, 44, 6, 512*1024)
    wload(PRE+4, 46, 53, 1024)
    k(f"s_branch {back1}")

    k.place(side2)
    small2 = k.label("small2")
    k.stamp_mid(2)
    k("s_waitcnt vmcnt(0)")
    k(f"s_lshl_b32 s43, s42, 10")
    k(f"s_add_u32 s43, s43, {XF}")
    k(f"buffer_store_dwordx4 v[{PRE}:{PRE+3}], v{VL16}, s[20:23], s43 offen")
    def pack_store(reg, dstreg, base):
        for d in range(4):
            k(f"v_lshl_or_b32 v{reg+d}, v{reg+2*d+1}, 16, v{reg+2*d}")
        k(f"s_add_u32 s49, s{dstreg}, {base}")
        k(f"buffer_store_dwordx4 v[{reg}:{reg+3}], v{VL16}, s[20:23], s49 offen")
    k("s_cmp_lt_u32 s42, 1376")
    k(f"s_cbranch_scc0 {small2}")
    pack_store(PRE+4, 55, WGF)
    pack_store(PRE+12, 55, WUF)
    pack_store(PRE+20, 56, WDF)
    k.stamp_mid(3)
    k(f"s_branch {back2}")
    k.place(small2)
    k("s_cmp_lt_u32 s57, 512")
    k(f"s_cbranch_scc0 {back2}")
    pack_store(PRE+4, 55, WOF)
    k(f"s_branch {back2}")
    return k.text(140, 64), 256, 512, 131072

def splitk(name, mode):
    k = Kern(name)
    done = k.label("done")
    if mode == 'wo':
        NKS, NST, WIN, BSRC, ASRC, RES = 32, 8, 8, OF, WOF, XF
    else:
        NKS, NST, WIN, BSRC, ASRC, RES = 86, 22, 10, ACT, WDF, HF
    k(f"""
    s_cmp_ge_u32 s2, 256
    s_cbranch_scc1 {done}
    ;STAMP
    s_load_dwordx2 s[4:5], s[0:1], 72
    s_load_dwordx2 s[6:7], s[0:1], 56
    v_lshrrev_b32 v1, 6, v0
    v_and_b32 v2, 63, v0
    s_and_b32 s24, s2, 7
    s_lshr_b32 s25, s2, 3
    v_readfirstlane_b32 s26, v1
    s_lshl_b32 s27, s24, 2
    s_and_b32 s28, s25, 3
    s_add_u32 s27, s27, s28
    s_lshr_b32 s28, s25, 2
    v_lshlrev_b32 v3, 4, v2
    """)
    SW, SRB, SCB = 26, 27, 28
    k(f"""
    s_and_b32 s29, s{SW}, 1
    s_lshl_b32 s30, s{SRB}, 1
    s_add_u32 s30, s30, s29
    s_xor_b32 s31, s30, 1
    s_lshr_b32 s29, s{SW}, 1
    s_lshl_b32 s32, s{SCB}, 1
    s_add_u32 s32, s32, s29
    s_xor_b32 s33, s32, 1
    """)
    if mode == 'wo':
        k(f"s_lshl_b32 s34, s{SW}, 3")
    else:
        k(f"""
        s_mul_i32 s34, s{SW}, 22
        s_cmp_eq_u32 s{SW}, 3
        s_cselect_b32 s34, 65, s34
        """)
    for d, src, base in ((36, 30, BSRC), (37, 31, BSRC), (38, 32, ASRC), (39, 33, ASRC)):
        k(f"s_mul_i32 s{d}, s{src}, {NKS}")
        k(f"s_add_u32 s{d}, s{d}, s34")
        k(f"s_lshl_b32 s{d}, s{d}, 10")
        k(f"s_add_u32 s{d}, s{d}, {base}")
    k(f"""
    s_lshl_b32 s40, s30, 5
    s_lshl_b32 s41, s32, 1
    s_add_u32 s40, s40, s41
    s_lshl_b32 s40, s40, 10
    s_add_u32 s41, s40, {RES}
    s_waitcnt lgkmcnt(0)
    """)
    k.stamp_mid(1)
    srd(k, 20, 4, WS_SIZE)
    R = 8
    ACC = 16
    W0 = 80
    k(f"buffer_load_dwordx4 v[{R}:{R+3}], v3, s[20:23], s41 offen")
    k(f"buffer_load_dwordx4 v[{R+4}:{R+7}], v3, s[20:23], s41 offen offset:1024")
    if mode == 'down':
        k(f"s_cmp_ge_u32 s{SW}, 2")
        k(f"s_cselect_b32 s42, 0x40000000, 0")
    def loads(i):
        b = W0 + 16*(i % WIN)
        for j in range(4):
            q, r = divmod(i, 4)
            if r == 0 or True:
                pass
            so = 36 + j
            if mode == 'down' and i == NST-1:
                k(f"s_add_u32 s43, s{so}, s42")
                k(f"s_add_u32 s43, s43, {q*4096}")
                k(f"buffer_load_dwordx4 v[{b+4*j}:{b+4*j+3}], v3, s[20:23], s43 offen offset:{r*1024}")
            elif q == 0:
                k(f"buffer_load_dwordx4 v[{b+4*j}:{b+4*j+3}], v3, s[20:23], s{so} offen offset:{r*1024}")
            else:
                k(f"s_add_u32 s43, s{so}, {q*4096}")
                k(f"buffer_load_dwordx4 v[{b+4*j}:{b+4*j+3}], v3, s[20:23], s43 offen offset:{r*1024}")
    for i in range(min(WIN, NST)):
        loads(i)
    k.stamp_mid(0)
    for i in range(NST):
        issued = min(NST, i + WIN)
        k(f"s_waitcnt vmcnt({4*(issued - i - 1)})")
        b = W0 + 16*(i % WIN)
        for j in range(4):
            A = b + 8 + 4*(j >> 1)
            B = b + 4*(j & 1)
            C = "0" if i == 0 else f"v[{ACC+16*j}:{ACC+16*j+15}]"
            k(f"{MFMA} v[{ACC+16*j}:{ACC+16*j+15}], v[{A}:{A+3}], v[{B}:{B+3}], {C}")
        if i + WIN < NST:
            loads(i + WIN)
    k.stamp_mid(2)
    for j in range(1, 4):
        k(f"s_xor_b32 s44, s{SW}, {j}")
        k(f"s_mul_i32 s44, s44, 12288")
        k(f"s_add_u32 s44, s44, {(j-1)*4096}")
        k(f"v_add_u32 v{4+j}, s44, v3")
    k(f"s_mul_i32 s44, s{SW}, 12288")
    k(f"v_add_u32 v4, s44, v3")
    k.nop(4)
    for j in range(1, 4):
        for rq in range(4):
            r = ACC + 16*j + 4*rq
            k(f"ds_write_b128 v{4+j}, v[{r}:{r+3}] offset:{rq*1024}")
    k("s_waitcnt lgkmcnt(0)")
    k("s_barrier")
    for q in range(12):
        k(f"ds_read_b128 v[{W0+4*q}:{W0+4*q+3}], v4 offset:{q*1024}")
    U = W0 + 48
    k("s_mov_b32 s45, 0xffff0000")
    for d in range(8):
        k(f"v_lshlrev_b32 v{U+2*d}, 16, v{R+d}")
        k(f"v_and_b32 v{U+2*d+1}, s45, v{R+d}")
    for r in range(0, 16, 2):
        k(f"v_pk_add_f32 v[{ACC+r}:{ACC+r+1}], v[{ACC+r}:{ACC+r+1}], v[{U+r}:{U+r+1}]")
    for q in range(3):
        k(f"s_waitcnt lgkmcnt({8-4*q})")
        for r in range(0, 16, 2):
            k(f"v_pk_add_f32 v[{ACC+r}:{ACC+r+1}], v[{ACC+r}:{ACC+r+1}], v[{W0+16*q+r}:{W0+16*q+r+1}]")
    k.stamp_mid(3)
    P = 8
    for d in range(8):
        k(f"v_cvt_pk_bf16_f32 v{P+d}, v{ACC+2*d}, v{ACC+2*d+1}")
    if mode == 'wo':
        k(f"s_add_u32 s41, s40, {HF}")
        k(f"buffer_store_dwordx4 v[{P}:{P+3}], v3, s[20:23], s41 offen")
        k(f"buffer_store_dwordx4 v[{P+4}:{P+7}], v3, s[20:23], s41 offen offset:1024")
        SX, SQ = 32, 33
        k(f"s_mov_b32 s46, {hex(ONES)}")
        k(f"v_dot2_f32_bf16 v{SX}, v{P}, s46, 0")
        k(f"v_dot2_f32_bf16 v{SQ}, v{P}, v{P}, 0")
        for d in range(1, 8):
            k(f"v_dot2_f32_bf16 v{SX}, v{P+d}, s46, v{SX}")
            k(f"v_dot2_f32_bf16 v{SQ}, v{P+d}, v{P+d}, v{SQ}")
        k.nop(3)
        half_sum(k, SX, 34, 35)
        half_sum(k, SQ, 34, 35)
        k(f"""
        s_lshl_b32 s47, s32, 14
        s_lshl_b32 s48, s30, 8
        s_add_u32 s47, s47, s48
        s_add_u32 s47, s47, {ST}
        v_lshlrev_b32 v5, 3, v2
        s_mov_b32 exec_hi, 0
        buffer_store_dwordx2 v[{SX}:{SQ}], v5, s[20:23], s47 offen
        """)
    else:
        srd(k, 12, 6, 2*MB)
        k(f"""
        v_and_b32 v5, 31, v2
        v_lshlrev_b32 v5, 10, v5
        v_lshrrev_b32 v6, 5, v2
        v_lshl_add_u32 v5, v6, 4, v5
        s_lshl_b32 s47, s30, 15
        s_lshl_b32 s48, s32, 6
        s_add_u32 s47, s47, s48
        v_permlane32_swap_b32 v{P}, v{P+2}
        v_permlane32_swap_b32 v{P+1}, v{P+3}
        v_permlane32_swap_b32 v{P+4}, v{P+6}
        v_permlane32_swap_b32 v{P+5}, v{P+7}
        """)
        k.nop(1)
        k(f"buffer_store_dwordx4 v[{P}:{P+3}], v5, s[12:15], s47 offen")
        k(f"buffer_store_dwordx4 v[{P+4}:{P+7}], v5, s[12:15], s47 offen offset:32")
    k.stamp_end(2 if mode == 'wo' else 4, 20, SW, 4)
    k.place(done)
    k("s_endpgm")
    return k.text(W0 + 16*WIN, 64), 256, 256, 49152

def k_gu():
    k = Kern("gu_kernel")
    done = k.label("done")
    fin = k.label("fin")
    k(f"""
    s_cmp_ge_u32 s2, 240
    s_cbranch_scc1 {done}
    ;STAMP
    s_load_dwordx2 s[4:5], s[0:1], 72
    v_lshrrev_b32 v1, 6, v0
    v_and_b32 v2, 63, v0
    s_and_b32 s24, s2, 7
    s_lshr_b32 s25, s2, 3
    v_readfirstlane_b32 s26, v1
    s_lshl_b32 s27, s24, 1
    s_cmp_ge_u32 s25, 15
    s_cselect_b32 s28, 1, 0
    s_add_u32 s27, s27, s28
    s_mul_i32 s28, s28, 15
    s_sub_u32 s28, s25, s28
    v_lshlrev_b32 v3, 4, v2
    """)
    SW, SRB, SB = 26, 27, 28
    k(f"""
    s_lshl_b32 s30, s{SRB}, 2
    s_add_u32 s30, s30, s{SW}
    s_lshl_b32 s31, s30, 15
    s_add_u32 s31, s31, {HF}
    s_lshl_b32 s32, s30, 8
    s_add_u32 s32, s32, {ST}
    s_mul_i32 s33, s{SB}, {3*32768}
    s_lshl_b32 s34, s{SW}, 10
    s_add_u32 s33, s33, s34
    v_and_b32 v4, 31, v2
    v_lshlrev_b32 v4, 3, v4
    v_lshrrev_b32 v5, 5, v2
    v_lshl_add_u32 v4, v5, 14, v4
    s_mov_b32 s38, 0xffff0000
    s_waitcnt lgkmcnt(0)
    """)
    k.stamp_mid(2)
    srd(k, 20, 4, WS_SIZE)
    SMASK = 38
    STR = 8
    T = 24
    RS, NB = 28, 30
    XFR = 32
    ACC = 160
    for i in range(8):
        k(f"s_add_u32 s35, s32, {i*32768}")
        k(f"buffer_load_dwordx2 v[{STR+2*i}:{STR+2*i+1}], v4, s[20:23], s35 offen")
    def issue(c):
        k(f"s_add_u32 s35, s31, {c*4096}")
        for u in range(4):
            r = XFR + 16*c + 4*u
            k(f"buffer_load_dwordx4 v[{r}:{r+3}], v3, s[20:23], s35 offen offset:{u*1024}")
        for mt in range(6):
            base = (WGF if mt < 3 else WUF) + (mt % 3)*32768 + c*4096
            k(f"s_add_u32 s35, s33, {base}")
            k(f"s_add_u32 m0, s34, {(c % 6)*24576 + mt*4096}")
            k.nop(1)
            k(f"buffer_load_dwordx4 v3, s[20:23], s35 offen lds")
    for c in range(5):
        issue(c)
    k.stamp_mid(0)
    k(f"v_add_u32 v6, 0x10000, v3")
    k(f"v_add_u32 v7, 0x20000, v3")
    VA = [3, 6, 7]
    vmN = {0: 40, 1: 40, 2: 40, 3: 40, 4: 30, 5: 20, 6: 10, 7: 0}
    def wread(sidx):
        c, u = divmod(sidx, 4)
        b = 24*(sidx & 1)
        for mt in range(6):
            off = (c % 6)*24576 + mt*4096 + u*1024
            k(f"ds_read_b128 a[{b+4*mt}:{b+4*mt+3}], v{VA[off >> 16]} offset:{off & 0xffff}")
    def chunk_sync(c):
        k(f"s_waitcnt vmcnt({vmN[c]}) lgkmcnt(0)")
        k("s_barrier")
        if 1 <= c + 0 <= 3 or c == 0:
            if c + 5 < 8:
                issue(c + 5)
    chunk_sync(0)
    k.stamp_mid(1)
    k("s_waitcnt lgkmcnt(0)") if Kern.DIAG else None
    wread(0)
    for i in range(1, 8):
        k(f"v_add_f32 v{STR}, v{STR}, v{STR+2*i}")
        k(f"v_add_f32 v{STR+1}, v{STR+1}, v{STR+2*i+1}")
    half_sum(k, STR, T, T+1)
    half_sum(k, STR+1, T, T+1)
    finish_stats(k, STR, STR+1, RS, NB, T, T+1)
    for o in norm_ops(XFR, T, RS, NB, SMASK):
        k(o)
    for sidx in range(32):
        nxt = sidx + 1
        if nxt < 32:
            if nxt % 4 == 0:
                chunk_sync(nxt // 4)
            wread(nxt)
            k("s_waitcnt lgkmcnt(6)")
            ops = norm_ops(XFR + 4*nxt, T, RS, NB, SMASK)
        else:
            k("s_waitcnt lgkmcnt(0)")
            k.nop(1)
            ops = []
        b = 24*(sidx & 1)
        x = XFR + 4*sidx
        cuts = [0, 4, 8, 11, 14, 17, 20]
        for mt in range(6):
            C = "0" if sidx == 0 else f"v[{ACC+16*mt}:{ACC+16*mt+15}]"
            k(f"{MFMA} v[{ACC+16*mt}:{ACC+16*mt+15}], a[{b+4*mt}:{b+4*mt+3}], v[{x}:{x+3}], {C}")
            for o in ops[cuts[mt]:cuts[mt+1]]: k(o)
    k.stamp_mid(3)
    k(f"""
    s_mul_i32 s40, s30, 86
    s_mul_i32 s41, s{SB}, 6
    s_add_u32 s40, s40, s41
    s_lshl_b32 s40, s40, 10
    s_add_u32 s40, s40, {ACT}
    """)
    k.nop(6)
    P = 32
    for tile in range(3):
        G, U = ACC + 16*tile, ACC + 48 + 16*tile
        if tile == 1:
            k(f"s_cmp_eq_u32 s{SB}, 14")
            k(f"s_cbranch_scc1 {fin}")
        if tile == 2: pass
        for r in range(16):
            k(f"v_max_f32 v{G+r}, 0, v{G+r}")
        for r in range(0, 16, 2):
            k(f"v_pk_mul_f32 v[{G+r}:{G+r+1}], v[{G+r}:{G+r+1}], v[{U+r}:{U+r+1}]")
        for d in range(8):
            k(f"v_cvt_pk_bf16_f32 v{P+8*tile+d}, v{G+2*d}, v{G+2*d+1}")
        k(f"s_add_u32 s41, s40, {tile*2048}")
        k(f"buffer_store_dwordx4 v[{P+8*tile}:{P+8*tile+3}], v3, s[20:23], s41 offen")
        k(f"buffer_store_dwordx4 v[{P+8*tile+4}:{P+8*tile+7}], v3, s[20:23], s41 offen offset:1024")
    k.place(fin)
    k.stamp_end(3, 20, SW, 4)
    k.place(done)
    k("s_endpgm")
    return k.text(256+48, 64, accum=256), 240, 256, 147456

HEADER = """; Kernarg: 0 A_x, 8 A_wqkv, 16 A_wo, 24 B_x (unused), 32 W_gate, 40 W_up, 48 W_down, 56 out, 64 debug, 72 ws
; pre-LN transformer block: qkv -> attention -> wo(+res) -> gate/up -> down(+res); generated by gen/gen.py
"""
def build(path, diag=False, dbg=False):
    Kern.DBG = dbg
    Kern.DIAG = 28*MB if diag else None
    ks = [("qkv_kernel", k_qkv()), ("attn_kernel", k_attn()), ("wo_kernel", splitk("wo_kernel", "wo")),
          ("gu_kernel", k_gu()), ("down_kernel", splitk("down_kernel", "down"))]
    out = HEADER
    for n, (t, g, b, l) in ks:
        out += f"; @launch kernel={n} grid=({g},1,1) block=({b},1,1) lds={l}\n"
    out += '.amdgcn_target "amdgcn-amd-amdhsa--gfx950"\n'
    for n, (t, g, b, l) in ks:
        out += t
    st = "  s_memtime s[80:81]\n  s_memrealtime s[82:83]\n  s_mov_b64 s[88:89], 0\n  s_mov_b64 s[90:91], 0\n  s_mov_b64 s[92:93], 0\n  s_mov_b64 s[94:95], 0\n" if (diag or dbg) else ""
    out = out.replace("  ;STAMP\n", st)
    open(path, "w").write(out)

if __name__ == "__main__":
    build(sys.argv[1] if len(sys.argv) > 1 else "sequential_preLN__softmax_full_mha__glu_gated_reglu__prompt.s", diag="--diag" in sys.argv, dbg="--dbg" in sys.argv)
```

```python
class Kern:
    def __init__(self, name):
        self.name = name
        self.lines = []
        self.nlab = 0
    def __call__(self, s, *a):
        for l in s.strip("\n").split("\n"):
            l = l.strip()
            if l:
                self.lines.append("  " + l if not l.endswith(":") else l)
    def c(self, s):
        self.lines.append("  ; " + s)
    def label(self, base="L"):
        self.nlab += 1
        return f"{self.name}_{base}{self.nlab}"
    def place(self, lab):
        self.lines.append(lab + ":")
    def nop(self, n):
        while n > 0:
            k = min(n, 16)
            self.lines.append(f"  s_nop {k-1}")
            n -= k
    def stamp_begin(self):
        if Kern.DIAG is None: return
        self("s_memtime s[80:81]")
        self("s_memrealtime s[82:83]")
    def stamp_mid(self, i):
        if Kern.DIAG is None: return
        self(f"s_memtime s[{88+2*i}:{89+2*i}]")
    def stamp_end(self, kidx, wsrd, swave, nw):
        self.dbg_end(kidx, swave)
        if Kern.DIAG is None: return
        self("s_waitcnt vmcnt(0)")
        self("s_memtime s[84:85]")
        self("s_memrealtime s[86:87]")
        self("s_mov_b64 exec, -1")
        self(f"s_lshl_b32 s70, s2, 4")
        self(f"s_add_u32 s70, s70, s{swave}")
        self(f"s_add_u32 s70, s70, {kidx*4096}")
        self(f"s_lshl_b32 s70, s70, 5")
        self(f"s_add_u32 s70, s70, {Kern.DIAG}")
        self("s_waitcnt lgkmcnt(0)")
        self("s_sub_u32 s84, s84, s80")
        for i in range(4):
            self(f"s_sub_u32 s{88+2*i}, s{88+2*i}, s80")
        self("s_getreg_b32 s71, hwreg(HW_REG_XCC_ID)")
        for i, r in enumerate((82, 86, 84, 88, 90, 92, 94, 71)):
            self(f"v_mov_b32 v{8+i}, s{r}")
        self("v_mov_b32 v4, 0")
        self("s_mov_b64 exec, 1")
        self(f"buffer_store_dwordx4 v[8:11], v4, s[{wsrd}:{wsrd+3}], s70 offen")
        self(f"buffer_store_dwordx4 v[12:15], v4, s[{wsrd}:{wsrd+3}], s70 offen offset:16")
    DIAG = None
    DBG = False
    def dbg_end(self, kidx, swave):
        if not Kern.DBG: return
        lab = self.label("dbgskip")
        self("s_waitcnt vmcnt(0)")
        self("s_memtime s[84:85]")
        self("s_memrealtime s[86:87]")
        self("s_load_dwordx4 s[72:75], s[0:1], 64")
        self("s_mov_b64 exec, -1")
        self(f"s_or_b32 s70, s2, s{swave}")
        self("s_waitcnt lgkmcnt(0)")
        self("s_cmp_lg_u32 s70, 0")
        self(f"s_cbranch_scc1 {lab}")
        self("s_sub_u32 s84, s84, s80")
        self("v_mov_b32 v8, s82")
        self("v_mov_b32 v9, s86")
        self("v_mov_b32 v10, s84")
        self(f"v_mov_b32 v4, {30*(1<<20) + kidx*12}")
        self("s_mov_b64 exec, 1")
        self("global_store_dwordx3 v4, v[8:10], s[74:75]")
        if kidx == Kern.DBG_LAST:
            self("s_waitcnt vmcnt(0)")
            self("s_mov_b64 exec, 0xffff")
            self("v_lshlrev_b32 v5, 2, v0")
            self(f"v_add_u32 v4, {30*(1<<20)}, v5")
            self("global_load_dword v6, v4, s[74:75] sc0 sc1")
            self("s_waitcnt vmcnt(0)")
            self("global_store_dword v5, v6, s[72:73]")
            self(f"s_sub_u32 s72, s72, {Kern.DBG_POS*512}")
            self("s_subb_u32 s73, s73, 0")
            self("global_store_dword v5, v6, s[72:73]")
        self.place(lab)
    DBG_LAST = 4
    DBG_POS = 4
    def text(self, vgpr, sgpr=96, accum=None):
        if Kern.DIAG is not None or Kern.DBG: sgpr = 100
        if accum is None:
            accum = (vgpr + 3) // 4 * 4
        hdr = f""".text
.globl {self.name}
.p2align 8
.type {self.name},@function
{self.name}:
"""
        tail = f"""
.section .rodata,"a"
.p2align 6
.amdhsa_kernel {self.name}
  .amdhsa_next_free_vgpr {vgpr}
  .amdhsa_next_free_sgpr {sgpr}
  .amdhsa_accum_offset {accum}
  .amdhsa_group_segment_fixed_size 0
  .amdhsa_kernarg_size 80
  .amdhsa_user_sgpr_count 2
  .amdhsa_user_sgpr_kernarg_segment_ptr 1
  .amdhsa_system_sgpr_workgroup_id_x 1
.end_amdhsa_kernel
"""
        return hdr + "\n".join(self.lines) + tail

def v(a, n=1):
    return f"v{a}" if n == 1 else f"v[{a}:{a+n-1}]"
def a_(a, n=1):
    return f"a{a}" if n == 1 else f"a[{a}:{a+n-1}]"
def s(a, n=1):
    return f"s{a}" if n == 1 else f"s[{a}:{a+n-1}]"
```

```python
class Kern:
    def __init__(self, name):
        self.name = name
        self.lines = []
        self.nlab = 0
    def __call__(self, s, *a):
        for l in s.strip("\n").split("\n"):
            l = l.strip()
            if l:
                self.lines.append("  " + l if not l.endswith(":") else l)
    def c(self, s):
        self.lines.append("  ; " + s)
    def label(self, base="L"):
        self.nlab += 1
        return f"{self.name}_{base}{self.nlab}"
    def place(self, lab):
        self.lines.append(lab + ":")
    def nop(self, n):
        while n > 0:
            k = min(n, 16)
            self.lines.append(f"  s_nop {k-1}")
            n -= k
    def stamp_begin(self):
        if Kern.DIAG is None: return
        self("s_memtime s[80:81]")
        self("s_memrealtime s[82:83]")
    def stamp_mid(self, i):
        if Kern.DIAG is None: return
        self(f"s_memtime s[{88+2*i}:{89+2*i}]")
    def stamp_cond(self, i, sreg, val):
        if Kern.DIAG is None: return
        l = self.label("sc")
        self(f"s_cmp_lg_u32 s{sreg}, {val}")
        self(f"s_cbranch_scc1 {l}")
        self(f"s_memtime s[{88+2*i}:{89+2*i}]")
        self("s_waitcnt lgkmcnt(0)")
        self.place(l)
    def stamp_end(self, kidx, wsrd, swave, nw):
        self.dbg_end(kidx, swave)
        if Kern.DIAG is None: return
        self("s_waitcnt vmcnt(0)")
        self("s_memtime s[84:85]")
        self("s_memrealtime s[86:87]")
        self("s_mov_b64 exec, -1")
        self(f"s_lshl_b32 s70, s2, 4")
        self(f"s_add_u32 s70, s70, s{swave}")
        self(f"s_add_u32 s70, s70, {kidx*4096}")
        self(f"s_lshl_b32 s70, s70, 5")
        self(f"s_add_u32 s70, s70, {Kern.DIAG}")
        self("s_waitcnt lgkmcnt(0)")
        self("s_sub_u32 s84, s84, s80")
        for i in range(4):
            self(f"s_sub_u32 s{88+2*i}, s{88+2*i}, s80")
        self("s_getreg_b32 s71, hwreg(HW_REG_XCC_ID)")
        for i, r in enumerate((82, 86, 84, 88, 90, 92, 94, 71)):
            self(f"v_mov_b32 v{8+i}, s{r}")
        self("v_mov_b32 v4, 0")
        self("s_mov_b64 exec, 1")
        self(f"buffer_store_dwordx4 v[8:11], v4, s[{wsrd}:{wsrd+3}], s70 offen")
        self(f"buffer_store_dwordx4 v[12:15], v4, s[{wsrd}:{wsrd+3}], s70 offen offset:16")
    DIAG = None
    DBG = False
    def dbg_end(self, kidx, swave):
        if not Kern.DBG: return
        lab = self.label("dbgskip")
        self("s_waitcnt vmcnt(0)")
        self("s_memtime s[84:85]")
        self("s_memrealtime s[86:87]")
        self("s_load_dwordx4 s[72:75], s[0:1], 64")
        self("s_mov_b64 exec, -1")
        self(f"s_or_b32 s70, s2, s{swave}")
        self("s_waitcnt lgkmcnt(0)")
        self("s_cmp_lg_u32 s70, 0")
        self(f"s_cbranch_scc1 {lab}")
        self("s_sub_u32 s84, s84, s80")
        self("v_mov_b32 v8, s82")
        self("v_mov_b32 v9, s86")
        self("v_mov_b32 v10, s84")
        self(f"v_mov_b32 v4, {30*(1<<20) + kidx*12}")
        self("s_mov_b64 exec, 1")
        self("global_store_dwordx3 v4, v[8:10], s[74:75]")
        if kidx == Kern.DBG_LAST:
            self("s_waitcnt vmcnt(0)")
            self("s_mov_b64 exec, 0xffff")
            self("v_lshlrev_b32 v5, 2, v0")
            self(f"v_add_u32 v4, {30*(1<<20)}, v5")
            self("global_load_dword v6, v4, s[74:75] sc0 sc1")
            self("s_waitcnt vmcnt(0)")
            self("global_store_dword v5, v6, s[72:73]")
            self(f"s_sub_u32 s72, s72, {Kern.DBG_POS*512}")
            self("s_subb_u32 s73, s73, 0")
            self("global_store_dword v5, v6, s[72:73]")
        self.place(lab)
    DBG_LAST = 4
    DBG_POS = 4
    def text(self, vgpr, sgpr=96, accum=None):
        if Kern.DIAG is not None or Kern.DBG: sgpr = 100
        if accum is None:
            accum = (vgpr + 3) // 4 * 4
        hdr = f""".text
.globl {self.name}
.p2align 8
.type {self.name},@function
{self.name}:
"""
        tail = f"""
.section .rodata,"a"
.p2align 6
.amdhsa_kernel {self.name}
  .amdhsa_next_free_vgpr {vgpr}
  .amdhsa_next_free_sgpr {sgpr}
  .amdhsa_accum_offset {accum}
  .amdhsa_group_segment_fixed_size 0
  .amdhsa_kernarg_size 80
  .amdhsa_user_sgpr_count 2
  .amdhsa_user_sgpr_kernarg_segment_ptr 1
  .amdhsa_system_sgpr_workgroup_id_x 1
.end_amdhsa_kernel
"""
        return hdr + "\n".join(self.lines) + tail

def v(a, n=1):
    return f"v{a}" if n == 1 else f"v[{a}:{a+n-1}]"
def a_(a, n=1):
    return f"a{a}" if n == 1 else f"a[{a}:{a+n-1}]"
def s(a, n=1):
    return f"s{a}" if n == 1 else f"s[{a}:{a+n-1}]"
```

```python
import sys, math, struct
from dsl import Kern
from gen import (MB, QF, KF, VF, OF, XF, HF, ACT, WOF, WGF, WUF, WDF, ST, WS_SIZE, f32, ONES, MFMA, srd, half_sum,
                 norm_ops, finish_stats, HEADER)

OPT = dict(prio=1, st_pre="", st_qkv="", st_o="", st_h="", st_act="", depth3=2, depth5=3)

def prologue(k, nwg, done, loads):
    k(f"""
    s_cmp_ge_u32 s2, {nwg}
    s_cbranch_scc1 {done}
    ;STAMP
    """)
    k(loads)
    k(f"""
    v_lshrrev_b32 v1, 6, v0
    v_and_b32 v2, 63, v0
    s_and_b32 s24, s2, 7
    s_lshr_b32 s25, s2, 3
    v_readfirstlane_b32 s26, v1
    v_lshlrev_b32 v3, 4, v2
    """)

def map_b(k):
    k("""
    s_lshr_b32 s27, s24, 1
    s_lshl_b32 s27, s27, 3
    s_and_b32 s28, s25, 7
    s_add_u32 s27, s27, s28
    s_and_b32 s28, s24, 1
    s_lshl_b32 s28, s28, 2
    s_lshr_b32 s29, s25, 3
    s_add_u32 s28, s28, s29
    """)

def dma(k, vo, srd_, so, m0expr, off=0):
    k(f"s_add_u32 m0, {m0expr}")
    k.nop(1)
    k(f"buffer_load_dwordx4 v{vo}, s[{srd_}:{srd_+3}], s{so} offen" + (f" offset:{off}" if off else "") + " lds")

def k_qkv():
    k = Kern("qkv_kernel")
    done, loader = k.label("done"), k.label("loader")
    prologue(k, 256, done, "s_load_dwordx4 s[4:7], s[0:1], 0\ns_load_dwordx2 s[8:9], s[0:1], 72")
    map_b(k)
    SW, SRB, SCB = 26, 27, 28
    k(f"s_cmp_ge_u32 s{SW}, 4")
    k(f"s_cbranch_scc1 {loader}")
    VXA, VWA = 12, 16
    WB = [20, 32]; XB = [44, 48]; T = 52; RS, NB = 56, 57; SX, SQ = 60, 64; XS = 68
    ACC = 100
    k(f"""
    v_and_b32 v8, 31, v2
    v_lshrrev_b32 v4, 5, v2
    v_lshrrev_b32 v5, 1, v8
    v_and_b32 v5, 7, v5
    s_and_b32 s34, s{SW}, 1
    s_lshl_b32 s35, s34, 12
    v_lshlrev_b32 v6, 7, v8
    v_add_u32 v6, s35, v6
    """)
    for u in range(4):
        k(f"v_add_u32 v7, {2*u}, v4")
        k(f"v_xor_b32 v7, v7, v5")
        k(f"v_lshl_add_u32 v{VXA+u}, v7, 4, v6")
    k(f"""
    s_lshr_b32 s36, s{SW}, 1
    v_bfe_u32 v5, v2, 2, 2
    v_lshl_add_u32 v6, v4, 3, v5
    v_lshlrev_b32 v6, 7, v6
    v_bfe_u32 v7, v2, 4, 1
    v_lshlrev_b32 v7, 1, v7
    v_bfe_u32 v11, v2, 1, 1
    v_add_u32 v7, v7, v11
    s_lshl_b32 s37, s36, 2
    v_add_u32 v7, s37, v7
    v_lshrrev_b32 v5, 1, v5
    v_lshlrev_b32 v5, 2, v5
    v_xor_b32 v7, v7, v5
    v_lshl_add_u32 v6, v7, 4, v6
    v_and_b32 v7, 1, v2
    v_lshl_add_u32 v{VWA+1}, v7, 3, v6
    v_add_u32 v{VWA+1}, 0x10000, v{VWA+1}
    v_mov_b32 v{VWA}, v{VWA+1}
    s_mov_b32 s38, 0xffff0000
    s_mov_b32 s39, {hex(ONES)}
    """)
    SMASK, SONES = 38, 39
    for i in range(8): k(f"v_mov_b32 v{SX+i}, 0")
    for i in range(48): k(f"v_mov_b32 v{ACC+i}, 0")
    k(f"""
    s_lshl_b32 s40, s{SCB}, 2
    s_lshl_b32 s41, s36, 1
    s_add_u32 s40, s40, s41
    s_lshl_b32 s40, s40, 16
    s_lshl_b32 s41, s{SRB}, 1
    s_add_u32 s41, s41, s34
    s_lshl_b32 s41, s41, 10
    s_add_u32 s40, s40, s41
    v_bfe_u32 v9, v2, 4, 1
    v_lshlrev_b32 v9, 16, v9
    v_lshl_add_u32 v9, v4, 8, v9
    v_and_b32 v5, 15, v2
    v_lshl_add_u32 v9, v5, 4, v9
    s_mov_b32 s42, {hex(f32(0.25*math.log2(math.e)))}
    s_add_u32 s43, s40, {QF + 65536}
    s_add_u32 s44, s40, {KF}
    s_add_u32 s45, s40, {KF + 65536}
    s_add_u32 s46, s40, {VF}
    s_waitcnt lgkmcnt(0)
    """)
    srd(k, 20, 8, WS_SIZE)
    k("s_barrier")
    def xrd(dst, u, off):
        k(f"ds_read_b128 v[{dst}:{dst+3}], v{VXA+u} offset:{off}")
    def xstat(r):
        for d in range(4):
            k(f"v_dot2_f32_bf16 v{SQ+d}, v{r+d}, v{r+d}, v{SQ+d}")
            k(f"v_dot2_f32_bf16 v{SX+d}, v{r+d}, s{SONES}, v{SX+d}")
    for u in range(4): xrd(XS + 4*u, u, 0)
    sl = k.label("sl")
    k("s_mov_b32 s47, 0")
    k.place(sl)
    for half in range(2):
        for u in range(4): xrd(XS + 16*(1-half) + 4*u, u, 8192*(half+1))
        for u in range(4):
            k(f"s_waitcnt lgkmcnt({7-u})")
            xstat(XS + 16*half + 4*u)
    for u in range(4): k(f"v_add_u32 v{VXA+u}, 16384, v{VXA+u}")
    k("s_add_u32 s47, s47, 1")
    k("s_cmp_lt_u32 s47, 4")
    k(f"s_cbranch_scc1 {sl}")
    for u in range(4): k(f"v_subrev_u32 v{VXA+u}, 0x10000, v{VXA+u}")
    k("s_waitcnt lgkmcnt(0)")
    xrd(XB[0], 0, 0)
    k(f"v_add_f32 v{SX}, v{SX}, v{SX+1}")
    k(f"v_add_f32 v{SX+2}, v{SX+2}, v{SX+3}")
    k(f"v_add_f32 v{SQ}, v{SQ}, v{SQ+1}")
    k(f"v_add_f32 v{SQ+2}, v{SQ+2}, v{SQ+3}")
    k(f"v_add_f32 v{SX}, v{SX}, v{SX+2}")
    k(f"v_add_f32 v{SQ}, v{SQ}, v{SQ+2}")
    half_sum(k, SX, T, T+1)
    half_sum(k, SQ, T, T+1)
    finish_stats(k, SX, SQ, RS, NB, T, T+1)
    k("s_waitcnt lgkmcnt(0)")
    for o in norm_ops(XB[0], T, RS, NB, SMASK): k(o)
    def wread(u, b):
        for p in range(3):
            for r in range(2):
                k(f"ds_read_b64_tr_b16 v[{b+4*p+2*r}:{b+4*p+2*r+1}], v{VWA} offset:{p*8192 + u*2048 + r*512}")
    k("s_barrier")
    xrd(XB[1], 1, 0)
    wread(0, WB[0])
    k("s_mov_b32 s47, 0")
    k("s_mov_b32 s48, 0")
    ml = k.label("ml")
    k.place(ml)
    k.stamp_cond(0, 47, 3)
    k.stamp_cond(3, 47, 4)
    for u in range(4):
        if u == 3:
            k("s_add_u32 s48, s48, 24576")
            k(f"s_cmp_eq_u32 s48, {4*24576}")
            k("s_cselect_b32 s48, 0, s48")
            k("s_waitcnt lgkmcnt(0)")
            k.stamp_cond(1, 47, 3)
            k("s_barrier")
            k.stamp_cond(2, 47, 3)
            k(f"v_add_u32 v{VWA}, s48, v{VWA+1}")
            k.nop(1)
        wread((u+1) & 3, WB[(u+1) & 1])
        k("s_waitcnt lgkmcnt(6)")
        ops = norm_ops(XB[(u+1) & 1], T, RS, NB, SMASK)
        b, x = WB[u & 1], XB[u & 1]
        k(f"{MFMA} v[{ACC}:{ACC+15}], v[{b}:{b+3}], v[{x}:{x+3}], v[{ACC}:{ACC+15}]")
        for o in ops[:7]: k(o)
        k(f"{MFMA} v[{ACC+16}:{ACC+31}], v[{b+4}:{b+7}], v[{x}:{x+3}], v[{ACC+16}:{ACC+31}]")
        for o in ops[7:14]: k(o)
        k(f"{MFMA} v[{ACC+32}:{ACC+47}], v[{x}:{x+3}], v[{b+8}:{b+11}], v[{ACC+32}:{ACC+47}]")
        xrd(x, (u+2) & 3, 8192 if u >= 2 else 0)
        for o in ops[14:]: k(o)
        if u == 3:
            for q in range(4): k(f"v_add_u32 v{VXA+q}, 8192, v{VXA+q}")
            k("s_add_u32 s47, s47, 1")
            k("s_cmp_lt_u32 s47, 8")
    k(f"s_cbranch_scc1 {ml}")
    k.nop(4)
    for i in range(16): k(f"v_mul_f32 v{ACC+i}, s42, v{ACC+i}")
    P = 68
    st = OPT['st_qkv']
    for i in range(24):
        k(f"v_cvt_pk_bf16_f32 v{P+i}, v{ACC+2*i}, v{ACC+2*i+1}")
        if i == 3:  k(f"buffer_store_dwordx4 v[{P}:{P+3}], v3, s[20:23], s40 offen {st}")
        if i == 7:  k(f"buffer_store_dwordx4 v[{P+4}:{P+7}], v3, s[20:23], s43 offen {st}")
        if i == 11: k(f"buffer_store_dwordx4 v[{P+8}:{P+11}], v3, s[20:23], s44 offen {st}")
        if i == 15: k(f"buffer_store_dwordx4 v[{P+12}:{P+15}], v3, s[20:23], s45 offen {st}")
        if i == 19: k(f"buffer_store_dwordx4 v[{P+16}:{P+19}], v9, s[20:23], s46 offen {st}")
        if i == 23: k(f"buffer_store_dwordx4 v[{P+20}:{P+23}], v9, s[20:23], s46 offen offset:512 {st}")
    k("s_waitcnt lgkmcnt(0)")
    k.stamp_end(0, 20, SW, 4)
    k.place(done)
    k("s_endpgm")
    k.place(loader)
    VXE, VXO, VW = 8, 9, 10
    k(f"""
    s_sub_u32 s29, s{SW}, 4
    v_lshrrev_b32 v11, 3, v2
    v_and_b32 v4, 7, v2
    v_lshrrev_b32 v5, 4, v2
    v_xor_b32 v6, v4, v5
    v_lshlrev_b32 v6, 4, v6
    s_lshl_b32 s31, s29, 11
    s_lshl_b32 s29, s29, 4
    v_add_u32 v7, s29, v11
    v_lshlrev_b32 v12, 10, v7
    v_add_u32 v{VXE}, v12, v6
    v_xor_b32 v6, 64, v6
    v_add_u32 v{VXO}, v12, v6
    v_add_u32 v{VXO}, 8192, v{VXO}
    v_and_b32 v5, 1, v5
    v_lshlrev_b32 v5, 2, v5
    v_xor_b32 v5, v4, v5
    v_lshlrev_b32 v5, 4, v5
    v_mul_u32_u24 v7, 3072, v7
    v_add_u32 v{VW}, v7, v5
    s_lshl_b32 s30, s{SRB}, 16
    s_lshl_b32 s32, s{SCB}, 7
    s_waitcnt lgkmcnt(0)
    """)
    srd(k, 12, 4, 2*MB)
    srd(k, 16, 6, 512*3072)
    for c in range(8):
        k(f"s_add_u32 s33, s30, {c*128}")
        for o in range(2):
            dma(k, VXE if o == 0 else VXO, 12, 33, f"s31, {c*8192 + o*1024}")
    def wdma(c):
        for p in range(3):
            for o in range(2):
                k(f"s_add_u32 s33, s32, {(64*c + 8*o)*3072 + p*1024}")
                dma(k, VW, 16, 33, f"s31, {65536 + (c % 4)*24576 + p*8192 + o*1024}")
    wdma(0)
    k("s_waitcnt vmcnt(6)")
    k("s_barrier")
    wdma(1); wdma(2); wdma(3)
    issued = 4
    for c in range(9):
        k(f"s_waitcnt vmcnt({6*max(0, issued - c - 1)})")
        k("s_barrier")
        if c >= 1 and issued < 8:
            wdma(issued); issued += 1
    k("s_endpgm")
    return k.text(148, 64), 256, 512, 163840

CSTRIP = 131072
def k_attn():
    k = Kern("attn_kernel")
    done, helper = k.label("done"), k.label("helper")
    prologue(k, 256, done, """
    s_load_dwordx2 s[14:15], s[0:1], 72
    s_load_dwordx2 s[4:5], s[0:1], 0
    s_load_dwordx2 s[6:7], s[0:1], 16
    s_load_dwordx4 s[8:11], s[0:1], 32
    s_load_dwordx2 s[12:13], s[0:1], 48""")
    k("""
    s_lshl_b32 s27, s24, 2
    s_and_b32 s28, s25, 3
    s_add_u32 s27, s27, s28
    s_lshr_b32 s28, s25, 2
    s_lshl_b32 s29, s27, 16
    """)
    SW, SHEAD, SQB = 26, 27, 28
    VL16 = 3
    k(f"s_cmp_ge_u32 s{SW}, 8")
    k(f"s_cbranch_scc1 {helper}")
    k(f"""
    s_lshl_b32 s30, s{SQB}, 3
    s_add_u32 s30, s30, s{SW}
    s_lshl_b32 s31, s30, 10
    s_add_u32 s31, s31, s29
    s_waitcnt lgkmcnt(0)
    """)
    srd(k, 20, 14, WS_SIZE)
    Q = 8; KB = [12, 16]; V1 = [20, 28]; V2 = [24, 32]; P = 36; SS = [48, 64]; CN = 80; O = 96
    VKA, VVA, VINC = 4, 5, 47
    k(f"buffer_load_dwordx4 v[{Q}:{Q+3}], v{VL16}, s[20:23], s31 offen")
    k(f"""
    v_mov_b32 v{VKA}, v{VL16}
    v_lshrrev_b32 v6, 5, v2
    v_lshlrev_b32 v6, 8, v6
    v_and_b32 v7, 15, v2
    v_lshl_add_u32 v{VVA}, v7, 4, v6
    v_add_u32 v{VVA}, 0x10000, v{VVA}
    v_and_b32 v6, 31, v2
    v_add_u32 v7, -20, v6
    v_cmp_gt_u32 vcc, 8, v7
    v_mov_b32 v44, {CSTRIP}
    v_mov_b32 v45, {CSTRIP + 64}
    v_cndmask_b32 v44, v44, v45, vcc
    v_and_b32 v7, 27, v2
    v_cmp_eq_u32 vcc, 16, v7
    v_add_u32 v45, 16, v44
    s_nop 0
    v_cndmask_b32 v44, v44, v45, vcc
    v_cmp_gt_u32 vcc, 16, v6
    v_mov_b32 v45, 8192
    s_nop 0
    v_cndmask_b32 v{VVA}, v44, v{VVA}, vcc
    v_cndmask_b32 v{VINC}, 0, v45, vcc
    """)
    for r in range(4): k(f"v_mov_b32 v{V2[1]+r}, 0")
    for r in range(8): k(f"v_mov_b32 v{P+r}, 0")
    for r in range(16): k(f"v_mov_b32 v{O+r}, 0")
    def vread(buf, off):
        k(f"ds_read_b128 v[{V1[buf]}:{V1[buf]+3}], v{VVA} offset:{off}")
        k(f"ds_read_b128 v[{V2[buf]}:{V2[buf]+3}], v{VVA} offset:{off+512}")
    k.stamp_mid(0)
    k("s_barrier")
    k.stamp_mid(1)
    k(f"ds_read_b128 v[{KB[0]}:{KB[0]+3}], v{VKA}")
    k(f"ds_read_b128 v[{KB[1]}:{KB[1]+3}], v{VKA} offset:1024")
    vread(0, 0)
    k("s_waitcnt vmcnt(0) lgkmcnt(3)")
    k(f"{MFMA} v[{SS[0]}:{SS[0]+15}], v[{KB[0]}:{KB[0]+3}], v[{Q}:{Q+3}], 0")
    k.nop(12)
    def rowmax(S, dst, t1, t2):
        k(f"v_max3_f32 v{dst}, v{S}, v{S+1}, v{S+2}")
        k(f"v_max3_f32 v{t1}, v{S+3}, v{S+4}, v{S+5}")
        k(f"v_max3_f32 v{dst}, v{dst}, v{S+6}, v{S+7}")
        k(f"v_max3_f32 v{t1}, v{t1}, v{S+8}, v{S+9}")
        k(f"v_max3_f32 v{dst}, v{dst}, v{S+10}, v{S+11}")
        k(f"v_max3_f32 v{t1}, v{t1}, v{S+12}, v{S+13}")
        k(f"v_max3_f32 v{dst}, v{dst}, v{S+14}, v{S+15}")
        k(f"v_max_f32 v{t1}, v{dst}, v{t1}")
        k(f"v_mov_b32 v{t2}, v{t1}")
        k.nop(2)
        k(f"v_permlane32_swap_b32 v{t1}, v{t2}")
        k.nop(1)
        k(f"v_max_f32 v{dst}, v{t1}, v{t2}")
    rowmax(SS[0], 44, 45, 46)
    for r in range(16): k(f"v_sub_f32 v{CN+r}, 0, v44")
    k.nop(2)
    k(f"{MFMA} v[{SS[0]}:{SS[0]+15}], v[{KB[0]}:{KB[0]+3}], v[{Q}:{Q+3}], v[{CN}:{CN+15}]")
    k("s_mov_b32 s38, 0")
    k.stamp_mid(2)
    k.nop(10)
    loop, nob = k.label("loop"), k.label("nob")
    k(".p2align 6")
    k.place(loop)
    k("s_cmp_lg_u32 s38, 1")
    k(f"s_cbranch_scc1 {nob}")
    k("s_barrier")
    k("s_nop 0")
    k.place(nob)
    pr = OPT['prio']
    for t in range(8):
        cur, nx = SS[t & 1], SS[(t+1) & 1]
        e = lambda i: k(f"v_exp_f32 v{cur+i}, v{cur+i}")
        c = lambda i: k(f"v_cvt_pk_bf16_f32 v{P+i}, v{cur+2*i}, v{cur+2*i+1}")
        sp = lambda n: k(f"s_setprio {n}")
        k("s_waitcnt lgkmcnt(0)")
        if pr == 1: sp(0)
        kb = KB[(t+1) & 1]
        k(f"{MFMA} v[{nx}:{nx+15}], v[{kb}:{kb+3}], v[{Q}:{Q+3}], v[{CN}:{CN+15}]")
        k(f"ds_read_b128 v[{KB[t&1]}:{KB[t&1]+3}], v{VKA} offset:{(t+2)*1024}")
        e(0); e(1)
        pb = (t+1) & 1
        k(f"{MFMA} v[{O}:{O+15}], v[{V2[pb]}:{V2[pb]+3}], v[{P+4}:{P+7}], v[{O}:{O+15}]")
        vread(pb, (t+1)*1024)
        e(2); e(3); c(0)
        if pr == 1: sp(1)
        if pr == 0 or pr == 1: k("s_nop 0") if pr == 0 else None
        e(4); e(5); c(1); e(6); e(7); c(2); e(8); e(9); c(3); e(10); e(11)
        k(f"{MFMA} v[{O}:{O+15}], v[{V1[t&1]}:{V1[t&1]+3}], v[{P}:{P+3}], v[{O}:{O+15}]")
        c(4); e(12); e(13); c(5); e(14); e(15); c(6)
        if t == 7:
            k(f"v_add_u32 v{VKA}, 8192, v{VKA}")
            k(f"v_add_u32 v{VVA}, v{VINC}, v{VVA}")
            k("s_add_u32 s38, s38, 1")
            k("s_cmp_lt_u32 s38, 8")
            if pr == 1: k("s_nop 0")
        c(7)
    k(f"s_cbranch_scc1 {loop}")
    k.stamp_mid(3)
    k.nop(2)
    k(f"{MFMA} v[{O}:{O+15}], v[{V2[1]}:{V2[1]+3}], v[{P+4}:{P+7}], v[{O}:{O+15}]")
    k("s_waitcnt lgkmcnt(0)")
    k.nop(12)
    fb, fin = k.label("fb"), k.label("fin")
    k(f"""
    v_max3_f32 v44, abs(v{O}), abs(v{O+1}), abs(v{O+2})
    v_max3_f32 v45, abs(v{O+3}), abs(v{O+4}), abs(v{O+5})
    v_max3_f32 v44, v44, abs(v{O+6}), abs(v{O+7})
    v_add_f32 v46, v{O}, v{O+1}
    v_max3_f32 v44, v44, v45, v{O+8}
    s_mov_b32 s39, {hex(f32(2.0**100))}
    """)
    for r in range(2, 9): k(f"v_add_f32 v46, v46, v{O+r}")
    k(f"v_and_b32 v46, 0x7fffffff, v46")
    k(f"v_cmp_ngt_f32 vcc, s39, v44")
    k(f"v_cmp_ngt_f32 s[40:41], s39, v46")
    k.nop(1)
    k("s_or_b64 s[40:41], s[40:41], vcc")
    k("s_cmp_lg_u64 s[40:41], 0")
    k(f"s_cbranch_scc1 {fb}")
    k.place(fin)
    k(f"v_rcp_f32 v44, v{O+8}")
    k(f"s_lshl_b32 s40, s30, 15")
    k(f"s_lshl_b32 s41, s{SHEAD}, 10")
    k(f"s_add_u32 s40, s40, s41")
    k(f"s_add_u32 s40, s40, {OF}")
    for r in range(8): k(f"v_mul_f32 v{O+r}, v{O+r}, v44")
    for r in range(4): k(f"v_cvt_pk_bf16_f32 v{P+r}, v{O+2*r}, v{O+2*r+1}")
    k(f"buffer_store_dwordx4 v[{P}:{P+3}], v{VL16}, s[20:23], s40 offen {OPT['st_o']}")
    k.stamp_end(1, 20, SW, 8)
    k.place(done)
    k("s_endpgm")

    k.place(fb)
    k(f"v_mov_b32 v{VKA}, v{VL16}")
    k(f"v_lshlrev_b32 v44, 3, v{VINC}")
    k(f"v_sub_u32 v{VVA}, v{VVA}, v44")
    k(f"v_lshrrev_b32 v{VINC}, 3, v{VINC}")
    k(f"v_mov_b32 v7, 0xff7fffff")
    for r in range(16): k(f"v_mov_b32 v{O+r}, 0")
    k("s_mov_b32 s38, 0")
    fl = k.label("fl")
    k.place(fl)
    S = SS[0]
    k(f"ds_read_b128 v[{KB[0]}:{KB[0]+3}], v{VKA}")
    vread(0, 0)
    k("s_waitcnt lgkmcnt(0)")
    k(f"{MFMA} v[{S}:{S+15}], v[{KB[0]}:{KB[0]+3}], v[{Q}:{Q+3}], 0")
    k.nop(14)
    rowmax(S, 44, 45, 46)
    k("v_max_f32 v44, v44, v7")
    k("v_sub_f32 v45, v7, v44")
    k("v_exp_f32 v45, v45")
    k("v_mov_b32 v7, v44")
    for r in range(16): k(f"v_sub_f32 v{S+r}, v{S+r}, v44")
    for r in range(16): k(f"v_mul_f32 v{O+r}, v{O+r}, v45")
    for r in range(16): k(f"v_exp_f32 v{S+r}, v{S+r}")
    k.nop(1)
    for r in range(8): k(f"v_cvt_pk_bf16_f32 v{P+r}, v{S+2*r}, v{S+2*r+1}")
    k.nop(2)
    k(f"{MFMA} v[{O}:{O+15}], v[{V1[0]}:{V1[0]+3}], v[{P}:{P+3}], v[{O}:{O+15}]")
    k(f"{MFMA} v[{O}:{O+15}], v[{V2[0]}:{V2[0]+3}], v[{P+4}:{P+7}], v[{O}:{O+15}]")
    k(f"v_add_u32 v{VKA}, 1024, v{VKA}")
    k(f"v_add_u32 v{VVA}, v{VINC}, v{VVA}")
    k("s_add_u32 s38, s38, 1")
    k("s_cmp_lt_u32 s38, 64")
    k.nop(14)
    k(f"s_cbranch_scc1 {fl}")
    k(f"s_branch {fin}")

    k.place(helper)
    k(f"""
    s_sub_u32 s30, s{SW}, 8
    s_lshl_b32 s32, s30, 11
    s_add_u32 s33, s29, s32
    s_waitcnt lgkmcnt(0)
    """)
    srd(k, 20, 14, WS_SIZE)
    def kv(c):
        for base, l in ((KF, 0), (VF, 65536)):
            k(f"s_add_u32 s34, s33, {base + c*8192}")
            k(f"s_add_u32 m0, s32, {l + c*8192}")
            k.nop(1)
            k(f"buffer_load_dwordx4 v3, s[20:23], s34 offen lds")
            k(f"buffer_load_dwordx4 v3, s[20:23], s34 offen offset:1024 lds")
    kv(0); kv(1)
    k(f"""
    v_lshrrev_b32 v4, 2, v2
    s_lshl_b32 s35, s30, 4
    v_add_u32 v4, s35, v4
    v_cmp_gt_u32 vcc, 20, v4
    v_lshlrev_b32 v4, 9, v4
    v_and_b32 v5, 1, v2
    v_lshl_add_u32 v4, v5, 4, v4
    v_bfe_u32 v6, v2, 1, 1
    v_lshl_add_u32 v4, v6, 6, v4
    v_add_u32 v4, {CSTRIP}, v4
    v_mul_u32_u24 v8, 0x3f80, v5
    v_lshl_or_b32 v8, v8, 16, v8
    v_mov_b32 v9, v8
    v_mov_b32 v10, v8
    v_mov_b32 v11, v8
    s_and_saveexec_b64 s[36:37], vcc
    ds_write_b128 v4, v[8:11]
    s_mov_b64 exec, s[36:37]
    """)
    kv(2)
    k("s_waitcnt vmcnt(4) lgkmcnt(0)")
    k("s_barrier")
    for c in range(3, 8): kv(c)
    k("s_waitcnt vmcnt(0)")
    k("s_barrier")
    PRE = 16
    st = OPT['st_pre']
    k(f"""
    v_and_b32 v6, 31, v2
    v_lshrrev_b32 v7, 5, v2
    v_lshlrev_b32 v12, 10, v6
    v_lshl_add_u32 v12, v7, 3, v12
    v_mul_u32_u24 v13, {4*2752}, v7
    v_lshl_add_u32 v13, v6, 1, v13
    v_lshlrev_b32 v14, 12, v7
    v_lshl_add_u32 v14, v6, 1, v14
    s_lshl_b32 s42, s2, 3
    s_lshl_b32 s43, s30, 1
    s_add_u32 s42, s42, s43
    s_add_u32 s58, s42, 2
    """)
    rl, small, nxt = k.label("rl"), k.label("small"), k.label("nxt")
    k.place(rl)
    srd(k, 44, 4, 2*MB)
    k(f"""
    s_lshr_b32 s43, s42, 5
    s_lshl_b32 s43, s43, 15
    s_and_b32 s48, s42, 31
    s_lshl_b32 s48, s48, 5
    s_add_u32 s43, s43, s48
    buffer_load_dwordx2 v[{PRE}:{PRE+1}], v12, s[44:47], s43 offen
    buffer_load_dwordx2 v[{PRE+2}:{PRE+3}], v12, s[44:47], s43 offen offset:16
    """)
    def wload(reg, voffreg, soffreg, pitch):
        for j in range(8):
            row = 8*(j >> 2) + (j & 3)
            k(f"s_add_u32 s49, s{soffreg}, {row*pitch}")
            k(f"buffer_load_ushort v{reg+j}, v{voffreg}, s[44:47], s49 offen")
    def pack_store(reg, dstreg, base):
        for d in range(4):
            k(f"v_lshl_or_b32 v{reg+d}, v{reg+2*d+1}, 16, v{reg+2*d}")
        k(f"s_add_u32 s49, s{dstreg}, {base}")
        k(f"buffer_store_dwordx4 v[{reg}:{reg+3}], v3, s[20:23], s49 offen {st}")
    k(f"""
    s_cmp_lt_u32 s42, 1376
    s_cbranch_scc0 {small}
    s_mov_b32 s50, {(2**32 + 42)//43}
    s_mul_hi_u32 s51, s42, s50
    s_mul_i32 s52, s51, 43
    s_sub_u32 s52, s42, s52
    s_mul_i32 s53, s51, {16*2752}
    s_lshl_b32 s54, s52, 6
    s_add_u32 s53, s53, s54
    s_lshl_b32 s55, s52, 5
    s_add_u32 s55, s55, s51
    s_lshl_b32 s55, s55, 10
    """)
    srd(k, 44, 8, 512*2752)
    wload(PRE+4, 13, 53, 2752)
    srd(k, 44, 10, 512*2752)
    wload(PRE+12, 13, 53, 2752)
    k(f"""
    s_and_b32 s52, s42, 15
    s_lshr_b32 s51, s42, 4
    s_lshl_b32 s53, s51, 14
    s_lshl_b32 s54, s52, 6
    s_add_u32 s53, s53, s54
    s_mul_i32 s56, s52, 86
    s_add_u32 s56, s56, s51
    s_lshl_b32 s56, s56, 10
    """)
    srd(k, 44, 12, 1376*1024)
    wload(PRE+20, 14, 53, 1024)
    k("s_waitcnt vmcnt(0)")
    pack_store(PRE+4, 55, WGF)
    pack_store(PRE+12, 55, WUF)
    pack_store(PRE+20, 56, WDF)
    k(f"s_branch {nxt}")
    k.place(small)
    k(f"""
    s_sub_u32 s57, s42, 1376
    s_cmp_lt_u32 s57, 512
    s_cbranch_scc0 {nxt}
    s_and_b32 s52, s57, 15
    s_lshr_b32 s51, s57, 4
    s_lshl_b32 s53, s51, 14
    s_lshl_b32 s54, s52, 6
    s_add_u32 s53, s53, s54
    s_lshl_b32 s55, s52, 5
    s_add_u32 s55, s55, s51
    s_lshl_b32 s55, s55, 10
    """)
    srd(k, 44, 6, 512*1024)
    wload(PRE+4, 14, 53, 1024)
    k("s_waitcnt vmcnt(0)")
    pack_store(PRE+4, 55, WOF)
    k.place(nxt)
    k("s_waitcnt vmcnt(0)")
    k(f"s_lshl_b32 s43, s42, 10")
    k(f"s_add_u32 s43, s43, {XF}")
    k(f"buffer_store_dwordx4 v[{PRE}:{PRE+3}], v3, s[20:23], s43 offen {st}")
    k("s_add_u32 s42, s42, 1")
    k("s_cmp_lt_u32 s42, s58")
    k("s_waitcnt vmcnt(0)")
    k(f"s_cbranch_scc1 {rl}")
    k("s_endpgm")
    return k.text(112, 64), 256, 768, CSTRIP + 10240

def k_res(name, mode):
    k = Kern(name)
    done, loader = k.label("done"), k.label("loader")
    if mode == 'wo':
        NKS, NCH, RING, DEPTH, BSRC, ASRC, RES = 32, 4, 4, OPT['depth3'], OF, WOF, XF
    else:
        NKS, NCH, RING, DEPTH, BSRC, ASRC, RES = 86, 11, 5, OPT['depth5'], ACT, WDF, HF
    prologue(k, 256, done, "s_load_dwordx2 s[4:5], s[0:1], 72\ns_load_dwordx2 s[6:7], s[0:1], 56")
    map_b(k)
    SW, SRB, SCB = 26, 27, 28
    k(f"s_cmp_ge_u32 s{SW}, 4")
    k(f"s_cbranch_scc1 {loader}")
    k(f"""
    s_and_b32 s29, s{SW}, 1
    s_lshl_b32 s30, s{SRB}, 1
    s_add_u32 s30, s30, s29
    s_lshr_b32 s31, s{SW}, 1
    s_lshl_b32 s32, s{SCB}, 1
    s_add_u32 s32, s32, s31
    s_lshl_b32 s29, s29, 13
    s_lshl_b32 s31, s31, 13
    s_add_u32 s31, s31, 16384
    v_add_u32 v4, s29, v3
    v_add_u32 v5, s31, v3
    s_lshl_b32 s40, s30, 5
    s_lshl_b32 s41, s32, 1
    s_add_u32 s40, s40, s41
    s_lshl_b32 s40, s40, 10
    s_add_u32 s41, s40, {RES}
    s_waitcnt lgkmcnt(0)
    """)
    srd(k, 20, 4, WS_SIZE)
    R, ACC, FB = 8, 16, 32
    k(f"buffer_load_dwordx4 v[{R}:{R+3}], v3, s[20:23], s41 offen")
    k(f"buffer_load_dwordx4 v[{R+4}:{R+7}], v3, s[20:23], s41 offen offset:1024")
    for r in range(16): k(f"v_mov_b32 v{ACC+r}, 0")
    k("v_mov_b32 v6, v4")
    k("v_mov_b32 v7, v5")
    if mode == 'down':
        srd(k, 12, 6, 2*MB)
        k(f"""
        v_and_b32 v96, 31, v2
        v_lshlrev_b32 v96, 10, v96
        v_lshrrev_b32 v97, 5, v2
        v_lshl_add_u32 v96, v97, 4, v96
        s_lshl_b32 s47, s30, 15
        s_lshl_b32 s48, s32, 6
        s_add_u32 s47, s47, s48
        """)
    else:
        k(f"""
        s_lshl_b32 s47, s32, 14
        s_lshl_b32 s48, s30, 8
        s_add_u32 s47, s47, s48
        s_add_u32 s47, s47, {ST}
        v_lshlrev_b32 v96, 3, v2
        s_add_u32 s41, s40, {HF}
        s_mov_b32 s46, {hex(ONES)}
        """)
    k("s_mov_b32 s45, 0xffff0000")
    k("s_mov_b32 s43, 0")
    k("s_mov_b32 s44, 0")
    k.stamp_mid(0)
    ml = k.label("ml")
    k.place(ml)
    k("s_barrier")
    def rd(u):
        k(f"ds_read_b128 v[{FB+8*u}:{FB+8*u+3}], v6 offset:{u*1024}")
        k(f"ds_read_b128 v[{FB+8*u+4}:{FB+8*u+7}], v7 offset:{u*1024}")
    for u in range(6): rd(u)
    for u in range(8):
        issued = min(8, u + 6)
        k(f"s_waitcnt lgkmcnt({2*(issued - u - 1)})")
        k(f"{MFMA} v[{ACC}:{ACC+15}], v[{FB+8*u+4}:{FB+8*u+7}], v[{FB+8*u}:{FB+8*u+3}], v[{ACC}:{ACC+15}]")
        if u + 6 < 8: rd(u + 6)
        if u == 2:
            k("s_add_u32 s44, s44, 32768")
            k(f"s_cmp_eq_u32 s44, {RING*32768}")
            k("s_cselect_b32 s44, 0, s44")
            k("v_add_u32 v6, s44, v4")
            k("v_add_u32 v7, s44, v5")
            k("s_add_u32 s43, s43, 1")
            k(f"s_cmp_lt_u32 s43, {NCH}")
    k(f"s_cbranch_scc1 {ml}")
    k.stamp_mid(2)
    U = FB
    k("s_waitcnt vmcnt(0)")
    for d in range(8):
        k(f"v_lshlrev_b32 v{U+2*d}, 16, v{R+d}")
        k(f"v_and_b32 v{U+2*d+1}, s45, v{R+d}")
    for r in range(16):
        k(f"v_add_f32 v{ACC+r}, v{ACC+r}, v{U+r}")
    P = 8
    for d in range(8):
        k(f"v_cvt_pk_bf16_f32 v{P+d}, v{ACC+2*d}, v{ACC+2*d+1}")
    if mode == 'wo':
        k(f"buffer_store_dwordx4 v[{P}:{P+3}], v3, s[20:23], s41 offen {OPT['st_h']}")
        k(f"buffer_store_dwordx4 v[{P+4}:{P+7}], v3, s[20:23], s41 offen offset:1024 {OPT['st_h']}")
        SX, SQ = 32, 33
        k(f"v_dot2_f32_bf16 v{SX}, v{P}, s46, 0")
        k(f"v_dot2_f32_bf16 v{SQ}, v{P}, v{P}, 0")
        for d in range(1, 8):
            k(f"v_dot2_f32_bf16 v{SX}, v{P+d}, s46, v{SX}")
            k(f"v_dot2_f32_bf16 v{SQ}, v{P+d}, v{P+d}, v{SQ}")
        k.nop(3)
        half_sum(k, SX, 34, 35)
        half_sum(k, SQ, 34, 35)
        k("s_mov_b32 exec_hi, 0")
        k(f"buffer_store_dwordx2 v[{SX}:{SQ}], v96, s[20:23], s47 offen {OPT['st_h']}")
    else:
        k.nop(2)
        k(f"""
        v_permlane32_swap_b32 v{P}, v{P+2}
        v_permlane32_swap_b32 v{P+1}, v{P+3}
        v_permlane32_swap_b32 v{P+4}, v{P+6}
        v_permlane32_swap_b32 v{P+5}, v{P+7}
        """)
        k.nop(1)
        k(f"buffer_store_dwordx4 v[{P}:{P+3}], v96, s[12:15], s47 offen")
        k(f"buffer_store_dwordx4 v[{P+4}:{P+7}], v96, s[12:15], s47 offen offset:32")
    k.stamp_end(2 if mode == 'wo' else 4, 20, SW, 4)
    k.place(done)
    k("s_endpgm")
    k.place(loader)
    k(f"""
    s_sub_u32 s29, s{SW}, 4
    s_and_b32 s30, s29, 1
    s_lshl_b32 s31, s{SRB}, 1
    s_lshl_b32 s32, s{SCB}, 1
    s_mov_b32 s33, {BSRC}
    s_cmp_ge_u32 s29, 2
    s_cselect_b32 s31, s32, s31
    s_cselect_b32 s33, {ASRC}, s33
    s_add_u32 s31, s31, s30
    s_mul_i32 s31, s31, {NKS*1024}
    s_add_u32 s31, s31, s33
    s_lshl_b32 s34, s29, 13
    s_waitcnt lgkmcnt(0)
    """)
    srd(k, 20, 4, WS_SIZE)
    def issue(c):
        for g in range(2):
            k(f"s_add_u32 s35, s31, {c*8192 + g*4096}")
            k(f"s_add_u32 m0, s34, {(c % RING)*32768 + g*4096}")
            k.nop(1)
            for q in range(4):
                step = 8*c + 4*g + q
                if step == NKS:
                    k("s_add_u32 s35, s35, 0x40000000")
                k(f"buffer_load_dwordx4 v3, s[20:23], s35 offen" + (f" offset:{q*1024}" if q else "") + " lds")
    issued = min(DEPTH, NCH)
    for c in range(issued): issue(c)
    for c in range(NCH):
        k(f"s_waitcnt vmcnt({8*(issued - c - 1)})")
        k("s_barrier")
        if issued < NCH:
            assert issued - RING <= c - 1
            issue(issued); issued += 1
    k("s_endpgm")
    return k.text(98, 64), 256, 512, RING*32768

def k_gu():
    k = Kern("gu_kernel")
    done, fin, loader = k.label("done"), k.label("fin"), k.label("loader")
    prologue(k, 256, done, "s_load_dwordx2 s[4:5], s[0:1], 72")
    k(f"""
    s_lshr_b32 s27, s24, 1
    s_lshl_b32 s27, s27, 2
    s_and_b32 s28, s25, 3
    s_add_u32 s27, s27, s28
    s_and_b32 s28, s24, 1
    s_lshl_b32 s28, s28, 3
    s_lshr_b32 s29, s25, 2
    s_add_u32 s28, s28, s29
    s_cmp_eq_u32 s28, 15
    s_cbranch_scc1 {done}
    """)
    SW, SRB, SB = 26, 27, 28
    SLOT = 40960
    k(f"s_cmp_ge_u32 s{SW}, 4")
    k(f"s_cbranch_scc1 {loader}")
    k(f"""
    s_lshl_b32 s30, s{SRB}, 2
    s_add_u32 s30, s30, s{SW}
    s_lshl_b32 s32, s30, 8
    s_add_u32 s32, s32, {ST}
    v_and_b32 v4, 31, v2
    v_lshlrev_b32 v4, 3, v4
    v_lshrrev_b32 v5, 5, v2
    v_lshl_add_u32 v4, v5, 14, v4
    s_mov_b32 s38, 0xffff0000
    s_lshl_b32 s33, s{SW}, 12
    s_add_u32 s33, s33, 24576
    v_add_u32 v5, s33, v3
    v_mov_b32 v6, v3
    v_mov_b32 v7, v5
    s_waitcnt lgkmcnt(0)
    """)
    srd(k, 20, 4, WS_SIZE)
    SMASK = 38
    STR, T, RS, NB = 8, 24, 28, 29
    XB = [32, 36]; WB = [40, 64]; ACC = 88
    for i in range(8):
        k(f"s_add_u32 s35, s32, {i*32768}")
        k(f"buffer_load_dwordx2 v[{STR+2*i}:{STR+2*i+1}], v4, s[20:23], s35 offen")
    for r in range(96): k(f"v_mov_b32 v{ACC+r}, 0")
    k(f"""
    s_mul_i32 s40, s30, 86
    s_mul_i32 s41, s{SB}, 6
    s_add_u32 s40, s40, s41
    s_lshl_b32 s40, s40, 10
    s_add_u32 s40, s40, {ACT}
    s_waitcnt vmcnt(0)
    """)
    for i in range(1, 8):
        k(f"v_add_f32 v{STR}, v{STR}, v{STR+2*i}")
        k(f"v_add_f32 v{STR+1}, v{STR+1}, v{STR+2*i+1}")
    half_sum(k, STR, T, T+1)
    half_sum(k, STR+1, T, T+1)
    finish_stats(k, STR, STR+1, RS, NB, T, T+1)
    def wread(u, b):
        for mt in range(6):
            k(f"ds_read_b128 v[{b+4*mt}:{b+4*mt+3}], v6 offset:{mt*4096 + u*1024}")
    def xrd(u, b):
        k(f"ds_read_b128 v[{b}:{b+3}], v7 offset:{u*1024}")
    k.stamp_mid(0)
    k("s_barrier")
    k.stamp_mid(1)
    xrd(0, XB[0]); wread(0, WB[0])
    k("s_mov_b32 s47, 0")
    k("s_mov_b32 s48, 0")
    k("s_waitcnt lgkmcnt(6)")
    for o in norm_ops(XB[0], T, RS, NB, SMASK): k(o)
    ml = k.label("ml")
    k.place(ml)
    for u in range(4):
        if u == 3:
            k(f"s_add_u32 s48, s48, {SLOT}")
            k(f"s_cmp_eq_u32 s48, {4*SLOT}")
            k("s_cselect_b32 s48, 0, s48")
            k("s_waitcnt lgkmcnt(0)")
            k("s_barrier")
            if not OPT.get('x_slot0'):
                k("v_add_u32 v6, s48, v3")
                k("v_add_u32 v7, s48, v5")
        xrd((u+1) & 3, XB[(u+1) & 1])
        wread((u+1) & 3, WB[(u+1) & 1])
        k("s_waitcnt lgkmcnt(7)")
        ops = norm_ops(XB[(u+1) & 1], T, RS, NB, SMASK)
        if OPT.get('x_nonorm'): ops = []
        b, x = WB[u & 1], XB[u & 1]
        cuts = [0, 0, 4, 8, 12, 16, 20]
        for mt in range(6):
            k(f"{MFMA} v[{ACC+16*mt}:{ACC+16*mt+15}], v[{b+4*mt}:{b+4*mt+3}], v[{x}:{x+3}], v[{ACC+16*mt}:{ACC+16*mt+15}]")
            if mt == 1: k("s_waitcnt lgkmcnt(6)")
            for o in ops[cuts[mt]:cuts[mt+1]]: k(o)
        if u == 3:
            k("s_add_u32 s47, s47, 1")
            k("s_cmp_lt_u32 s47, 8")
    k(f"s_cbranch_scc1 {ml}")
    k.stamp_mid(3)
    k.nop(3)
    P = 40
    for tile in range(3):
        G, U = ACC + 16*tile, ACC + 48 + 16*tile
        if tile == 1:
            k(f"s_cmp_eq_u32 s{SB}, 14")
            k(f"s_cbranch_scc1 {fin}")
        for r in range(16): k(f"v_max_f32 v{G+r}, 0, v{G+r}")
        for r in range(0, 16, 2):
            k(f"v_pk_mul_f32 v[{G+r}:{G+r+1}], v[{G+r}:{G+r+1}], v[{U+r}:{U+r+1}]")
        if tile == 0: k("s_waitcnt lgkmcnt(0)")
        for d in range(8):
            k(f"v_cvt_pk_bf16_f32 v{P+8*tile+d}, v{G+2*d}, v{G+2*d+1}")
        k(f"s_add_u32 s41, s40, {tile*2048}")
        k(f"buffer_store_dwordx4 v[{P+8*tile}:{P+8*tile+3}], v3, s[20:23], s41 offen {OPT['st_act']}")
        k(f"buffer_store_dwordx4 v[{P+8*tile+4}:{P+8*tile+7}], v3, s[20:23], s41 offen offset:1024 {OPT['st_act']}")
    k.place(fin)
    k.stamp_end(3, 20, SW, 4)
    k.place(done)
    k("s_endpgm")
    k.place(loader)
    k(f"""
    s_sub_u32 s29, s{SW}, 4
    s_lshl_b32 s30, s{SRB}, 2
    s_add_u32 s30, s30, s29
    s_lshl_b32 s31, s30, 15
    s_add_u32 s31, s31, {HF}
    s_mul_i32 s33, s{SB}, {3*32768}
    s_lshl_b32 s34, s29, 10
    s_add_u32 s33, s33, s34
    s_lshl_b32 s36, s29, 12
    s_waitcnt lgkmcnt(0)
    """)
    srd(k, 20, 4, WS_SIZE)
    def issue(c):
        if OPT.get('x_nodma') and c >= OPT['x_nodma']: return
        k(f"s_add_u32 s35, s31, {c*4096}")
        k(f"s_add_u32 m0, s36, {(c % 4)*SLOT + 24576}")
        k.nop(1)
        for u in range(4):
            k(f"buffer_load_dwordx4 v3, s[20:23], s35 offen" + (f" offset:{u*1024}" if u else "") + " lds")
        for mt in range(6):
            base = (WGF if mt < 3 else WUF) + (mt % 3)*32768 + c*4096
            k(f"s_add_u32 s35, s33, {base}")
            dma(k, 3, 20, 35, f"s34, {(c % 4)*SLOT + mt*4096}")
    issued = 2
    for c in range(issued): issue(c)
    for c in range(9):
        k(f"s_waitcnt vmcnt({10*max(0, issued - c - 1)})")
        k("s_barrier")
        n = 2 if c == 0 else 1
        for _ in range(n):
            if issued < 8:
                assert issued - 4 <= c - 1
                issue(issued); issued += 1
    k("s_endpgm")
    return k.text(184, 64), 256, 512, 4*SLOT

def build(path, diag=False, dbg=False, order=None):
    Kern.DBG = dbg
    Kern.DIAG = 28*MB if diag else None
    ks = [("qkv_kernel", k_qkv()), ("attn_kernel", k_attn()), ("wo_kernel", k_res("wo_kernel", "wo")),
          ("gu_kernel", k_gu()), ("down_kernel", k_res("down_kernel", "down"))]
    out = HEADER
    for n, (t, g, b, l) in ks:
      for _ in range(OPT.get('rep', 1)):
        out += f"; @launch kernel={n} grid=({g},1,1) block=({b},1,1) lds={l}\n"
    out += '.amdgcn_target "amdgcn-amd-amdhsa--gfx950"\n'
    for n, (t, g, b, l) in ks:
        out += t
    st = "  s_memtime s[80:81]\n  s_memrealtime s[82:83]\n  s_mov_b64 s[88:89], 0\n  s_mov_b64 s[90:91], 0\n  s_mov_b64 s[92:93], 0\n  s_mov_b64 s[94:95], 0\n" if (diag or dbg) else ""
    out = out.replace("  ;STAMP\n", st)
    open(path, "w").write(out)

if __name__ == "__main__":
    for a in sys.argv[2:]:
        if "=" in a:
            kk, vv = a.split("=")
            OPT[kk] = int(vv) if vv.lstrip("-").isdigit() else vv.replace("+", " ")
    build(sys.argv[1], diag="--diag" in sys.argv, dbg="--dbg" in sys.argv)
```

```python
import sys
ITER=200
kern=[]
def mk(name, body, nv=128, lds=False):
    s=f"""
.text
.globl {name}
.p2align 8
.type {name},@function
{name}:
  s_load_dwordx2 s[4:5], s[0:1], 0
  v_lshrrev_b32 v1, 6, v0
  v_mov_b32 v2, 0x3c000000
"""
    for i in range(3,nv):
        s+=f"  v_mov_b32 v{i}, v2\n"
    s+=f"""
  v_lshlrev_b32 v3, 4, v0
  s_waitcnt lgkmcnt(0)
  s_barrier
  s_memtime s[8:9]
  s_waitcnt lgkmcnt(0)
  s_mov_b32 s6, {ITER}
.p2align 6
L_{name}:
{body}
  s_sub_u32 s6, s6, 1
  s_cmp_lg_u32 s6, 0
  s_cbranch_scc1 L_{name}
  s_nop 15
  s_memtime s[10:11]
  s_waitcnt lgkmcnt(0)
  s_sub_u32 s10, s10, s8
  v_readfirstlane_b32 s12, v1
  s_nop 4
  s_getreg_b32 s13, hwreg(HW_REG_HW_ID)
  s_mul_i32 s14, s2, NW_{name}
  s_add_u32 s14, s14, s12
  s_lshl_b32 s14, s14, 2
  v_mov_b32 v4, s14
  v_mov_b32 v5, s10
  global_store_dword v4, v5, s[4:5]
  s_endpgm
.section .rodata,"a"
.p2align 6
.amdhsa_kernel {name}
  .amdhsa_next_free_vgpr {nv}
  .amdhsa_next_free_sgpr 32
  .amdhsa_accum_offset {nv}
  .amdhsa_group_segment_fixed_size 0
  .amdhsa_kernarg_size 8
  .amdhsa_user_sgpr_count 2
  .amdhsa_user_sgpr_kernarg_segment_ptr 1
  .amdhsa_system_sgpr_workgroup_id_x 1
.end_amdhsa_kernel
"""
    return s
def meta(names, nv):
    s="""
.amdgpu_metadata
---
amdhsa.version: [1, 2]
amdhsa.kernels:
"""
    for n in names:
        s+=f"""  - .name: {n}
    .symbol: {n}.kd
    .kernarg_segment_size: 8
    .kernarg_segment_align: 8
    .group_segment_fixed_size: 0
    .private_segment_fixed_size: 0
    .wavefront_size: 64
    .sgpr_count: 32
    .vgpr_count: {nv}
    .max_flat_workgroup_size: 1024
    .args:
      - {{.name: A, .size: 8, .offset: 0, .value_kind: global_buffer, .address_space: global}}
"""
    s+="""...
.end_amdgpu_metadata
"""
    return s
```

```python
import sys
from gen1 import mk, meta
import gen1
NV=128
UN=8
bodies={}
def rep(lines): return "\n".join(lines*UN)
bodies['exp16']=rep([f"  v_exp_f32 v{8+i}, v{24+i}" for i in range(16)])
bodies['exph16']=rep([f"  v_exp_f16 v{8+i}, v{24+i}" for i in range(16)])
bodies['fma16']=rep([f"  v_fma_f32 v{8+i}, v{24+i}, v{24+i}, v{40+i}" for i in range(16)])
bodies['fmac16']=rep([f"  v_fmac_f32 v{8+i}, v{24+i}, v{40+i}" for i in range(16)])
bodies['add16']=rep([f"  v_add_f32 v{8+i}, v{24+i}, v{40+i}" for i in range(16)])
bodies['mul16']=rep([f"  v_mul_f32 v{8+i}, v{24+i}, v{40+i}" for i in range(16)])
bodies['max16']=rep([f"  v_max_f32 v{8+i}, v{24+i}, v{40+i}" for i in range(16)])
bodies['mov16']=rep([f"  v_mov_b32 v{8+i}, v{24+i}" for i in range(16)])
bodies['and16']=rep([f"  v_and_b32 v{8+i}, v{24+i}, v{40+i}" for i in range(16)])
bodies['addu16']=rep([f"  v_add_u32 v{8+i}, v{24+i}, v{40+i}" for i in range(16)])
bodies['lshladd16']=rep([f"  v_lshl_add_u32 v{8+i}, v{24+i}, 3, v{40+i}" for i in range(16)])
bodies['andor16']=rep([f"  v_and_or_b32 v{8+i}, v{24+i}, v7, v{40+i}" for i in range(16)])
bodies['pkfma16']=rep([f"  v_pk_fma_f32 v[{8+2*(i%8)}:{9+2*(i%8)}], v[{24+2*(i%8)}:{25+2*(i%8)}], v[{24+2*(i%8)}:{25+2*(i%8)}], v[{40+2*(i%8)}:{41+2*(i%8)}]" for i in range(16)])
bodies['pkadd16']=rep([f"  v_pk_add_f32 v[{8+2*(i%8)}:{9+2*(i%8)}], v[{24+2*(i%8)}:{25+2*(i%8)}], v[{40+2*(i%8)}:{41+2*(i%8)}]" for i in range(16)])
bodies['cvt16']=rep([f"  v_cvt_pk_bf16_f32 v{8+i}, v{24+i}, v{40+i}" for i in range(16)])
bodies['cvtrtz16']=rep([f"  v_cvt_pkrtz_f16_f32 v{8+i}, v{24+i}, v{40+i}" for i in range(16)])
bodies['perm16']=rep([f"  v_perm_b32 v{8+i}, v{24+i}, v{40+i}, v6" for i in range(16)])
bodies['max316']=rep([f"  v_max3_f32 v{8+i}, v{24+i}, v{40+i}, v7" for i in range(16)])
bodies['sdwamov16']=rep([f"  v_mov_b32_sdwa v{8+i}, v{24+i} dst_sel:WORD_0 dst_unused:UNUSED_PRESERVE src0_sel:WORD_1" for i in range(16)])
bodies['sdwaor16']=rep([f"  v_or_b32_sdwa v{8+i}, v{24+i}, v{40+i} dst_sel:DWORD dst_unused:UNUSED_PAD src0_sel:WORD_1 src1_sel:DWORD" for i in range(16)])
b=[]
for i in range(8):
    b.append(f"  v_exp_f32 v{8+2*i}, v{24+2*i}")
    b.append(f"  v_exp_f32 v{9+2*i}, v{25+2*i}")
    b.append(f"  v_cvt_pk_bf16_f32 v{40+i}, v{48+i}, v{49+i}")
bodies['exp16cvt8']=rep(b)
b=[]
for i in range(16):
    b.append(f"  v_exp_f32 v{8+i}, v{24+i}")
    b.append(f"  v_fma_f32 v{40+i}, v{56}, v{57}, v58")
bodies['exp16fma16']=rep(b)
b=[]
for i in range(16):
    b.append(f"  v_exp_f32 v{8+i}, v{24+i}")
    b.append(f"  v_add_f32 v{40+i}, v{56}, v{57}")
    b.append(f"  v_add_f32 v{64+i}, v{56}, v{57}")
bodies['exp16add32']=rep(b)
bodies['mfma3']=rep([f"  v_mfma_f32_32x32x16_bf16 v[8:23], v[56:59], v[60:63], v[24:39]",
   f"  v_mfma_f32_32x32x16_bf16 v[40:55], v[56:59], v[60:63], v[40:55]",
   f"  v_mfma_f32_32x32x16_bf16 v[40:55], v[56:59], v[60:63], v[40:55]"])
def attn(nm, extra=[]):
    b=[]
    mf=[f"  v_mfma_f32_32x32x16_bf16 v[64:79], v[56:59], v[60:63], v[80:95]",
        f"  v_mfma_f32_32x32x16_bf16 v[96:111], v[56:59], v[60:63], v[96:111]",
        f"  v_mfma_f32_32x32x16_bf16 v[96:111], v[56:59], v[60:63], v[96:111]"][:nm]
    for i in range(8):
        if i in (0,3,6) and mf: b.append(mf.pop(0))
        b.append(f"  v_exp_f32 v{8+2*i}, v{24+2*i}")
        b.append(f"  v_exp_f32 v{9+2*i}, v{25+2*i}")
        b.append(f"  v_cvt_pk_bf16_f32 v{40+i}, v{48+i}, v{49+i}")
    return b
bodies['attn3']=rep(attn(3))
bodies['attn2']=rep(attn(2))
b=[]
mf=[f"  v_mfma_f32_32x32x16_bf16 v[64:79], v[56:59], v[60:63], v[80:95]",
        f"  v_mfma_f32_32x32x16_bf16 v[96:111], v[56:59], v[60:63], v[96:111]",
        f"  v_mfma_f32_32x32x16_bf16 v[96:111], v[56:59], v[60:63], v[96:111]"]
for i in range(8):
    if i in (0,3,6): b.append(mf.pop(0))
    b.append(f"  v_exp_f32 v{8+2*i}, v{24+2*i}")
    b.append(f"  v_exp_f32 v{9+2*i}, v{25+2*i}")
bodies['exp16mfma3']=rep(b)
from common import build
build('mb2',bodies,NV)
```

```python
import sys, math
from dsl import Kern
from gen import (MB, QF, KF, VF, OF, XF, HF, ACT, WOF, WGF, WUF, WDF, ST, WS_SIZE, f32, ONES, MFMA, srd, half_sum,
                 norm_ops, finish_stats, HEADER)
import gen2
from gen2 import OPT, prologue, map_b, dma, k_attn, k_res

class Rec:
    def __init__(self): self.g = []
    def __call__(self, s): self.g.append(s)
    def nop(self, n): self.g.append(f"s_nop {n-1}")

def interleave(k, groups, ops):
    n = len(groups)
    if n == 0:
        for o in ops: k(o)
        return
    pos = [(i*len(ops))//n for i in range(n)]
    gi = 0
    for i in range(len(ops) + 1):
        while gi < n and pos[gi] == i:
            for l in groups[gi]: k(l)
            gi += 1
        if i < len(ops): k(ops[i])

def row8_sum(k, regs):
    for ctl in ("quad_perm:[1,0,3,2]", "quad_perm:[2,3,0,1]", "row_half_mirror"):
        k.nop(2)
        for r in regs:
            k(f"v_add_f32_dpp v{r}, v{r}, v{r} {ctl} row_mask:0xf bank_mask:0xf")

def k_qkv():
    k = Kern("qkv_kernel")
    done, loader = k.label("done"), k.label("loader")
    prologue(k, 256, done, "s_load_dwordx4 s[4:7], s[0:1], 0\ns_load_dwordx2 s[8:9], s[0:1], 72")
    map_b(k)
    SW, SRB, SCB = 26, 27, 28
    k(f"s_cmp_ge_u32 s{SW}, 4")
    k(f"s_cbranch_scc1 {loader}")
    VXA, VWA = 12, 16
    WB = [20, 32, 44, 56]; XB = [68, 72, 76, 80]
    ACC = 84
    k(f"""
    v_and_b32 v8, 31, v2
    v_lshrrev_b32 v4, 5, v2
    v_lshrrev_b32 v5, 1, v8
    v_and_b32 v5, 7, v5
    s_and_b32 s34, s{SW}, 1
    s_lshl_b32 s35, s34, 12
    v_lshlrev_b32 v6, 7, v8
    v_add_u32 v6, s35, v6
    """)
    for u in range(4):
        k(f"v_add_u32 v7, {2*u}, v4")
        k(f"v_xor_b32 v7, v7, v5")
        k(f"v_lshl_add_u32 v{VXA+u}, v7, 4, v6")
    k(f"""
    s_lshr_b32 s36, s{SW}, 1
    v_bfe_u32 v5, v2, 2, 2
    v_lshl_add_u32 v6, v4, 3, v5
    v_lshlrev_b32 v6, 7, v6
    v_bfe_u32 v7, v2, 4, 1
    v_lshlrev_b32 v7, 1, v7
    v_bfe_u32 v11, v2, 1, 1
    v_add_u32 v7, v7, v11
    s_lshl_b32 s37, s36, 2
    v_add_u32 v7, s37, v7
    v_lshrrev_b32 v5, 1, v5
    v_lshlrev_b32 v5, 2, v5
    v_xor_b32 v7, v7, v5
    v_lshl_add_u32 v6, v7, 4, v6
    v_and_b32 v7, 1, v2
    v_lshl_add_u32 v{VWA+1}, v7, 3, v6
    v_add_u32 v{VWA+1}, 0x10000, v{VWA+1}
    v_mov_b32 v{VWA}, v{VWA+1}
    """)
    for i in range(48): k(f"v_mov_b32 v{ACC+i}, 0")
    k(f"""
    s_lshl_b32 s40, s{SCB}, 2
    s_lshl_b32 s41, s36, 1
    s_add_u32 s40, s40, s41
    s_lshl_b32 s40, s40, 16
    s_lshl_b32 s41, s{SRB}, 1
    s_add_u32 s41, s41, s34
    s_lshl_b32 s41, s41, 10
    s_add_u32 s40, s40, s41
    v_bfe_u32 v9, v2, 4, 1
    v_lshlrev_b32 v9, 16, v9
    v_lshl_add_u32 v9, v4, 8, v9
    v_and_b32 v5, 15, v2
    v_lshl_add_u32 v9, v5, 4, v9
    s_mov_b32 s42, {hex(f32(0.25*math.log2(math.e)))}
    s_add_u32 s43, s40, {QF + 65536}
    s_add_u32 s44, s40, {KF}
    s_add_u32 s45, s40, {KF + 65536}
    s_add_u32 s46, s40, {VF}
    s_mov_b32 s47, 0
    s_mov_b32 s48, 0
    s_waitcnt lgkmcnt(0)
    """)
    srd(k, 20, 8, WS_SIZE)
    def xrd(u, b):
        k(f"ds_read_b128 v[{b}:{b+3}], v{VXA+u}")
    def wrd(u, b, p):
        for r in range(2):
            k(f"ds_read_b64_tr_b16 v[{b+4*p+2*r}:{b+4*p+2*r+1}], v{VWA} offset:{p*4096 + (u & 1)*2048 + r*512}")
    k.stamp_mid(0)
    k("s_barrier")
    k.stamp_mid(1)
    for u in range(2):
        xrd(u, XB[u])
        for p in range(3): wrd(u, WB[u], p)
    ml = k.label("ml")
    k(".p2align 3")
    k.place(ml)
    for u in range(4):
        if not (u & 1):
            k("s_add_u32 s48, s48, 12288")
            k(f"s_cmp_eq_u32 s48, {8*12288}")
            k("s_cselect_b32 s48, 0, s48")
            if u == 2:
                k(f"v_add_u32 v{VXA}, 8192, v{VXA}")
                k(f"v_add_u32 v{VXA+1}, 8192, v{VXA+1}")
            k("s_barrier")
            k(f"v_add_u32 v{VWA}, s48, v{VWA+1}")
        b, x = WB[u], XB[u]
        nu = (u+2) & 3
        k("s_waitcnt lgkmcnt(7)")
        k(f"{MFMA} v[{ACC}:{ACC+15}], v[{b}:{b+3}], v[{x}:{x+3}], v[{ACC}:{ACC+15}]")
        xrd(nu, XB[nu])
        wrd(nu, WB[nu], 0)
        k(f"{MFMA} v[{ACC+16}:{ACC+31}], v[{b+4}:{b+7}], v[{x}:{x+3}], v[{ACC+16}:{ACC+31}]")
        wrd(nu, WB[nu], 1)
        k(f"{MFMA} v[{ACC+32}:{ACC+47}], v[{x}:{x+3}], v[{b+8}:{b+11}], v[{ACC+32}:{ACC+47}]")
        wrd(nu, WB[nu], 2)
        if u == 3:
            for q in range(2, 4): k(f"v_add_u32 v{VXA+q}, 8192, v{VXA+q}")
            k("s_add_u32 s47, s47, 1")
            k("s_cmp_lt_u32 s47, 8")
    k(f"s_cbranch_scc1 {ml}")
    k.stamp_mid(3)
    k.nop(2)
    for i in range(16): k(f"v_mul_f32 v{ACC+i}, s42, v{ACC+i}")
    P = 20
    k("s_waitcnt lgkmcnt(0)")
    st = OPT['st_qkv']
    for i in range(24):
        k(f"v_cvt_pk_bf16_f32 v{P+i}, v{ACC+2*i}, v{ACC+2*i+1}")
        if i == 3:  k(f"buffer_store_dwordx4 v[{P}:{P+3}], v3, s[20:23], s40 offen {st}")
        if i == 7:  k(f"buffer_store_dwordx4 v[{P+4}:{P+7}], v3, s[20:23], s43 offen {st}")
        if i == 11: k(f"buffer_store_dwordx4 v[{P+8}:{P+11}], v3, s[20:23], s44 offen {st}")
        if i == 15: k(f"buffer_store_dwordx4 v[{P+12}:{P+15}], v3, s[20:23], s45 offen {st}")
        if i == 19: k(f"buffer_store_dwordx4 v[{P+16}:{P+19}], v9, s[20:23], s46 offen {st}")
        if i == 23: k(f"buffer_store_dwordx4 v[{P+20}:{P+23}], v9, s[20:23], s46 offen offset:512 {st}")
    k("s_waitcnt lgkmcnt(0)")
    k.stamp_end(0, 20, SW, 4)
    k.place(done)
    k("s_endpgm")
    k.place(loader)
    normer = k.label("normer")
    k(f"s_cmp_ge_u32 s{SW}, 8")
    k(f"s_cbranch_scc1 {normer}")
    VW = 10
    k(f"""
    s_sub_u32 s29, s{SW}, 4
    v_and_b32 v4, 7, v2
    v_lshrrev_b32 v7, 3, v2
    s_lshl_b32 s35, s29, 3
    v_add_u32 v7, s35, v7
    v_bfe_u32 v6, v2, 4, 1
    v_lshlrev_b32 v6, 2, v6
    v_xor_b32 v6, v4, v6
    v_lshlrev_b32 v6, 4, v6
    v_mul_u32_u24 v7, 3072, v7
    v_add_u32 v{VW}, v7, v6
    s_lshl_b32 s31, s29, 10
    s_lshl_b32 s32, s{SCB}, 7
    s_waitcnt lgkmcnt(0)
    """)
    srd(k, 16, 6, 512*3072)
    if OPT.get('wdelay', 0): k(f"s_sleep {OPT['wdelay']}")
    def wissue(c):
        if OPT.get('y_nodma') and c > 1: return
        for p in range(3):
            k(f"s_add_u32 s33, s32, {32*c*3072 + p*1024}")
            dma(k, VW, 16, 33, f"s31, {65536 + (c % 8)*12288 + p*4096}")
    issued = 8
    for c in range(issued): wissue(c)
    for c in range(17):
        k(f"s_waitcnt vmcnt({3*max(0, issued - c - 1)})")
        k("s_barrier")
        if c >= 2 and issued < 16:
            assert issued - 8 <= c - 2
            wissue(issued); issued += 1
    k("s_endpgm")
    k.place(normer)
    k(f"s_setprio {OPT.get('lprio', 2)}")
    VX, VLD = 8, 11
    X = 16
    SQ, SX = 80, 84
    T, RS, NB = 88, 92, 94
    k(f"""
    s_sub_u32 s29, s{SW}, 8
    v_lshrrev_b32 v5, 3, v2
    v_and_b32 v4, 7, v2
    s_lshl_b32 s31, s29, 3
    v_add_u32 v5, s31, v5
    v_lshlrev_b32 v{VX}, 10, v5
    v_lshl_add_u32 v{VX}, v4, 4, v{VX}
    v_add_u32 v{VX+1}, 32768, v{VX}
    v_bfe_u32 v6, v5, 1, 3
    v_xor_b32 v6, v6, v4
    v_lshlrev_b32 v6, 4, v6
    v_lshl_add_u32 v{VLD}, v5, 7, v6
    s_lshl_b32 s30, s{SRB}, 16
    s_mov_b32 s38, 0xffff0000
    s_mov_b32 s39, {hex(ONES)}
    s_waitcnt lgkmcnt(0)
    """)
    srd(k, 12, 4, 2*MB)
    for c in range(8):
        for hf in range(2):
            r = X + 8*c + 4*hf
            k(f"buffer_load_dwordx4 v[{r}:{r+3}], v{VX+hf}, s[12:15], s30 offen offset:{c*128}")
    for c in range(8):
        k(f"s_waitcnt vmcnt({2*(7-c)})")
        for hf in range(2):
            for d in range(4):
                r = X + 8*c + 4*hf + d
                q, sx = SQ + 2*hf + (d & 1), SX + 2*hf + (d & 1)
                first = (c == 0 and d < 2)
                k(f"v_dot2_f32_bf16 v{q}, v{r}, v{r}, {'0' if first else 'v%d' % q}")
                k(f"v_dot2_f32_bf16 v{sx}, v{r}, s39, {'0' if first else 'v%d' % sx}")
    k.nop(2)
    k(f"v_add_f32 v{SQ}, v{SQ}, v{SQ+1}")
    k(f"v_add_f32 v{SQ+2}, v{SQ+2}, v{SQ+3}")
    k(f"v_add_f32 v{SX}, v{SX}, v{SX+1}")
    k(f"v_add_f32 v{SX+2}, v{SX+2}, v{SX+3}")
    row8_sum(k, [SQ, SQ+2, SX, SX+2])
    for hf in range(2):
        finish_stats(k, SX + 2*hf, SQ + 2*hf, RS + hf, NB + hf, T, T+1)
    def nops(c, hf):
        rr = X + 8*c + 4*hf
        if OPT.get('y_nonorm') and c > 0: return []
        if OPT.get('y_nowrite') and c > 0: return norm_ops(rr, T, RS + hf, NB + hf, 38)
        if OPT.get('y_novalu') and c > 0: return [f"ds_write_b128 v{VLD}, v[{rr}:{rr+3}] offset:{c*8192 + hf*4096}"]
        if OPT.get('y_w64') and c > 0: return norm_ops(rr, T, RS + hf, NB + hf, 38) + [f"ds_write_b64 v{VLD}, v[{rr}:{rr+1}] offset:{c*8192 + hf*4096}"]
        return norm_ops(rr, T, RS + hf, NB + hf, 38) + [f"ds_write_b128 v{VLD}, v[{rr}:{rr+3}] offset:{c*8192 + hf*4096}"]
    for o in nops(0, 0) + nops(0, 1): k(o)
    todo = [(c, hf) for c in range(1, 8) for hf in range(2)]
    written = [(0, 0), (0, 1)]
    c = 0
    while True:
        late = sum(1 for (cc, hf) in written if 2*cc > c)
        k(f"s_waitcnt lgkmcnt({late})")
        if not todo and late == 0:
            break
        k("s_barrier")
        n = 2 if c < OPT.get('nfast', 1) else 1
        for _ in range(n):
            if todo:
                cc, hf = todo.pop(0)
                assert 2*cc > c
                for o in nops(cc, hf): k(o)
                written.append((cc, hf))
        if todo: assert 2*todo[0][0] > c + 1
        c += 1
    k("s_endpgm")
    return k.text(132, 64), 256, 768, 163840

def k_gu():
    k = Kern("gu_kernel")
    done, fin, loader = k.label("done"), k.label("fin"), k.label("loader")
    prologue(k, 256, done, "s_load_dwordx2 s[4:5], s[0:1], 72")
    k(f"""
    s_lshr_b32 s27, s24, 1
    s_lshl_b32 s27, s27, 2
    s_and_b32 s28, s25, 3
    s_add_u32 s27, s27, s28
    s_and_b32 s28, s24, 1
    s_lshl_b32 s28, s28, 3
    s_lshr_b32 s29, s25, 2
    s_add_u32 s28, s28, s29
    s_cmp_eq_u32 s28, 15
    s_cbranch_scc1 {done}
    """)
    SW, SRB, SB = 26, 27, 28
    SLOT, RING, NCH = 20480, 8, 16
    D = OPT.get('depth4', 5)
    k(f"s_cmp_ge_u32 s{SW}, 4")
    k(f"s_cbranch_scc1 {loader}")
    XB = [8, 12, 16, 20]; WB = [24, 48]; ACC = 72; T, RS, NB = 168, 172, 173; STR = 24
    k(f"""
    s_lshl_b32 s30, s{SRB}, 2
    s_add_u32 s30, s30, s{SW}
    s_lshl_b32 s33, s{SW}, 11
    s_add_u32 s33, s33, 12288
    v_add_u32 v5, s33, v3
    v_mov_b32 v6, v3
    v_mov_b32 v7, v5
    s_mul_i32 s40, s30, 86
    s_mul_i32 s41, s{SB}, 6
    s_add_u32 s40, s40, s41
    s_lshl_b32 s40, s40, 10
    s_add_u32 s40, s40, {ACT}
    s_mov_b32 s47, 0
    s_lshl_b32 s32, s30, 8
    s_add_u32 s32, s32, {ST}
    v_and_b32 v4, 31, v2
    v_lshlrev_b32 v4, 3, v4
    v_lshrrev_b32 v8, 5, v2
    v_lshl_add_u32 v4, v8, 14, v4
    s_mov_b32 s38, 0xffff0000
    s_waitcnt lgkmcnt(0)
    """)
    srd(k, 20, 4, WS_SIZE)
    for i in range(8):
        k(f"s_add_u32 s35, s32, {i*32768}")
        k(f"buffer_load_dwordx2 v[{STR+2*i}:{STR+2*i+1}], v4, s[20:23], s35 offen")
    for r in range(96): k(f"v_mov_b32 v{ACC+r}, 0")
    k("s_waitcnt vmcnt(0)")
    for i in range(1, 8):
        k(f"v_add_f32 v{STR}, v{STR}, v{STR+2*i}")
        k(f"v_add_f32 v{STR+1}, v{STR+1}, v{STR+2*i+1}")
    half_sum(k, STR, T, T+1)
    half_sum(k, STR+1, T, T+1)
    finish_stats(k, STR, STR+1, RS, NB, T, T+1)
    def wrd(u, b, mt):
        return f"ds_read_b128 v[{b+4*mt}:{b+4*mt+3}], v6 offset:{mt*2048 + (u & 1)*1024}"
    def xrd(u, b):
        return f"ds_read_b128 v[{b}:{b+3}], v7 offset:{(u & 1)*1024}"
    k.stamp_mid(0)
    k("s_barrier")
    k.stamp_mid(1)
    k(xrd(0, XB[0])); k(xrd(1, XB[1]))
    for mt in range(6): k(wrd(0, WB[0], mt))
    k(f"s_mov_b32 s48, 0")
    k("s_waitcnt lgkmcnt(7)")
    for o in norm_ops(XB[0], T, RS, NB, 38): k(o)
    ml = k.label("ml")
    k(".p2align 3")
    k.place(ml)
    for u in range(4):
        if not (u & 1):
            k(f"s_add_u32 s48, s48, {SLOT}")
            k(f"s_cmp_eq_u32 s48, {RING*SLOT}")
            k("s_cselect_b32 s48, 0, s48")
            k("s_barrier")
            k("v_add_u32 v7, s48, v5")
        else:
            k("v_add_u32 v6, s48, v3")
            if u == 3:
                k("s_add_u32 s47, s47, 1")
                k(f"s_cmp_lt_u32 s47, {NCH//2}")
        b, x = WB[u & 1], XB[u]
        nb_ = WB[(u+1) & 1]
        ops = norm_ops(XB[(u+1) & 3], T, RS, NB, 38)
        cuts = [0, 3, 7, 10, 14, 17, 20]
        for mt in range(6):
            if mt == 0: k("s_waitcnt lgkmcnt(3)")
            if mt == 3: k("s_waitcnt lgkmcnt(4)")
            k(f"{MFMA} v[{ACC+16*mt}:{ACC+16*mt+15}], v[{b+4*mt}:{b+4*mt+3}], v[{x}:{x+3}], v[{ACC+16*mt}:{ACC+16*mt+15}]")
            if mt == 0: k(xrd(u, XB[(u+2) & 3]))
            k(wrd(u+1, nb_, mt))
            for o in ops[cuts[mt]:cuts[mt+1]]: k(o)
    k(f"s_cbranch_scc1 {ml}")
    k.stamp_mid(3)
    k.nop(2)
    P = 24
    for tile in range(3):
        G, U = ACC + 16*tile, ACC + 48 + 16*tile
        if tile == 1:
            k(f"s_cmp_eq_u32 s{SB}, 14")
            k(f"s_cbranch_scc1 {fin}")
        for r in range(16): k(f"v_max_f32 v{G+r}, 0, v{G+r}")
        for r in range(0, 16, 2):
            k(f"v_pk_mul_f32 v[{G+r}:{G+r+1}], v[{G+r}:{G+r+1}], v[{U+r}:{U+r+1}]")
        if tile == 0: k("s_waitcnt lgkmcnt(0)")
        for d in range(8):
            k(f"v_cvt_pk_bf16_f32 v{P+8*tile+d}, v{G+2*d}, v{G+2*d+1}")
        k(f"s_add_u32 s41, s40, {tile*2048}")
        k(f"buffer_store_dwordx4 v[{P+8*tile}:{P+8*tile+3}], v3, s[20:23], s41 offen {OPT['st_act']}")
        k(f"buffer_store_dwordx4 v[{P+8*tile+4}:{P+8*tile+7}], v3, s[20:23], s41 offen offset:1024 {OPT['st_act']}")
    k.place(fin)
    k("s_waitcnt lgkmcnt(0)")
    k.stamp_end(3, 20, SW, 4)
    k.place(done)
    k("s_endpgm")
    k.place(loader)
    k(f"s_setprio {OPT.get('lprio', 2)}")
    k(f"""
    s_sub_u32 s29, s{SW}, 4
    s_lshl_b32 s30, s{SRB}, 2
    s_add_u32 s30, s30, s29
    s_lshl_b32 s31, s30, 15
    s_add_u32 s31, s31, {HF}
    s_mul_i32 s33, s{SB}, {3*32768}
    s_and_b32 s34, s29, 1
    s_lshl_b32 s34, s34, 10
    s_add_u32 s33, s33, s34
    s_lshr_b32 s35, s29, 1
    s_mul_i32 s37, s35, {WUF - WGF}
    s_add_u32 s33, s33, s37
    s_mul_i32 s35, s35, 6144
    s_add_u32 s34, s34, s35
    s_lshl_b32 s36, s29, 11
    s_waitcnt lgkmcnt(0)
    """)
    srd(k, 20, 4, WS_SIZE)
    def issue(c):
        k(f"s_add_u32 s35, s31, {c*2048}")
        dma(k, 3, 20, 35, f"s36, {(c % RING)*SLOT + 12288}")
        k(f"buffer_load_dwordx4 v3, s[20:23], s35 offen offset:1024 lds")
        for t in range(3):
            k(f"s_add_u32 s35, s33, {WGF + t*32768 + c*2048}")
            dma(k, 3, 20, 35, f"s34, {(c % RING)*SLOT + t*2048}")
    issued = 2
    for c in range(issued): issue(c)
    for c in range(NCH + 1):
        k(f"s_waitcnt vmcnt({5*max(0, issued - c - 1)})")
        k("s_barrier")
        n = 0
        while issued < NCH and issued <= c + D and n < 2:
            assert issued - RING <= c - 3
            issue(issued); issued += 1; n += 1
    k("s_endpgm")
    return k.text(174, 64), 256, 512, RING*SLOT

def build(path, diag=False, dbg=False):
    Kern.DBG = dbg
    Kern.DIAG = 28*MB if diag else None
    ks = [("qkv_kernel", k_qkv()), ("attn_kernel", k_attn()), ("wo_kernel", k_res("wo_kernel", "wo")),
          ("gu_kernel", k_gu()), ("down_kernel", k_res("down_kernel", "down"))]
    out = HEADER
    for n, (t, g, b, l) in ks:
        for _ in range(OPT.get('rep', 1)):
            out += f"; @launch kernel={n} grid=({g},1,1) block=({b},1,1) lds={l}\n"
    out += '.amdgcn_target "amdgcn-amd-amdhsa--gfx950"\n'
    for n, (t, g, b, l) in ks:
        out += t
    st = "  s_memtime s[80:81]\n  s_memrealtime s[82:83]\n  s_mov_b64 s[88:89], 0\n  s_mov_b64 s[90:91], 0\n  s_mov_b64 s[92:93], 0\n  s_mov_b64 s[94:95], 0\n" if (diag or dbg) else ""
    out = out.replace("  ;STAMP\n", st)
    open(path, "w").write(out)

if __name__ == "__main__":
    for a in sys.argv[2:]:
        if "=" in a:
            kk, vv = a.split("=")
            OPT[kk] = int(vv) if vv.lstrip("-").isdigit() else vv.replace("+", " ")
    build(sys.argv[1], diag="--diag" in sys.argv, dbg="--dbg" in sys.argv)
```

```python
import sys, math
from dsl import Kern
from gen import (MB, QF, KF, VF, OF, XF, HF, ACT, WOF, WGF, WUF, WDF, ST, WS_SIZE, f32, ONES, MFMA, srd, half_sum,
                 finish_stats)
CNT = 25*MB
DIAGB = 28*MB
C1, C2, C3, C4, CW = 0, 8, 16, 32, 48
CSTRIP = 131072
PROG = CSTRIP + 10240
NAME = "sequential_preLN__softmax_full_mha__glu_gated_reglu__prompt_kernel"
OPT = dict(prio=1, ld="sc1", st="sc1", nb2=4, depth4=5)
SXCD, SIDX, SW = 24, 25, 26
MF16 = "v_mfma_f32_16x16x32_bf16"
DIAG = False

def stamp(k, i):
    if DIAG: k(f"s_memtime s[{64+2*i}:{65+2*i}]")

def norm4(x, t, rs, nb, smask):
    ops = []
    for d in range(4):
        a, b = t[2*(d & 1)], t[2*(d & 1) + 1]
        ops.append([f"v_lshlrev_b32 v{a}, 16, v{x+d}", f"v_and_b32 v{b}, s{smask}, v{x+d}",
                    f"v_fma_f32 v{a}, v{a}, v{rs}, v{nb}", f"v_fma_f32 v{b}, v{b}, v{rs}, v{nb}",
                    f"v_cvt_pk_bf16_f32 v{x+d}, v{a}, v{b}"])
    o = []
    for p in (0, 2):
        for a, b in zip(ops[p], ops[p+1]): o += [a, b]
    return o

def lane_regs(k):
    k("v_mbcnt_lo_u32_b32 v2, -1, 0")
    k("v_mbcnt_hi_u32_b32 v2, -1, v2")
    k("v_lshlrev_b32 v3, 4, v2")

def dma(k, vo, srd_, so, m0expr, off=0, flag=""):
    k(f"s_add_u32 m0, {m0expr}")
    k.nop(1)
    k(f"buffer_load_dwordx4 v{vo}, s[{srd_}:{srd_+3}], s{so} offen" + (f" offset:{off}" if off else "") + f" {flag} lds")

def row8_sum(k, regs):
    for ctl in ("quad_perm:[1,0,3,2]", "quad_perm:[2,3,0,1]", "row_half_mirror"):
        k.nop(2)
        for r in regs:
            k(f"v_add_f32_dpp v{r}, v{r}, v{r} {ctl} row_mask:0xf bank_mask:0xf")

def arrive(k, sidx, va=8, vb=9):
    k(f"s_lshl_b32 s40, s{sidx}, 8")
    k(f"s_add_u32 s40, s40, {CNT}")
    k("s_mov_b64 exec, 1")
    k(f"v_mov_b32 v{va}, 1")
    k(f"v_mov_b32 v{vb}, 0")
    k(f"buffer_atomic_add v{va}, v{vb}, s[20:23], s40 offen sc1")

FLG = CNT + 65536
def flag_set(k, sline):
    k(f"s_lshl_b32 s40, s{sline}, 7")
    k(f"s_add_u32 s40, s40, {FLG}")
    k("s_mov_b64 exec, 1")
    k("v_mov_b32 v8, 1")
    k("v_mov_b32 v9, 0")
    k("buffer_store_dword v8, v9, s[20:23], s40 offen sc1")

def flag_poll(k, sline):
    poll(k, sline, 1, 32, None, sh=7, base=FLG)

def poll(k, sidx, target, nlines=1, slp=None, sh=8, base=None):
    lp, out = k.label("poll"), k.label("pollx")
    k(f"s_lshl_b32 s40, s{sidx}, {sh}")
    k(f"s_add_u32 s40, s40, {CNT if base is None else base}")
    k(f"s_mov_b32 exec_lo, {hex((1 << nlines) - 1)}")
    k("s_mov_b32 exec_hi, 0")
    k(f"v_lshlrev_b32 v9, {sh}, v2")
    k("s_mov_b32 s41, 0")
    k.place(lp)
    slp = OPT.get('slp', 2) if slp is None else slp
    if slp: k(f"s_sleep {slp}")
    k("buffer_load_dword v10, v9, s[20:23], s40 offen sc1")
    k("s_add_u32 s41, s41, 1")
    k("s_cmp_gt_u32 s41, 0x40000")
    k(f"s_cbranch_scc1 {out}")
    k("s_waitcnt vmcnt(0)")
    k(f"v_cmp_gt_u32 vcc, {target}, v10" if target <= 64 else f"v_cmp_gt_u32 vcc, {hex(target)}, v10")
    k(f"s_cmp_lg_u64 vcc, 0")
    k(f"s_cbranch_scc1 {lp}")
    k.place(out)
    k("s_waitcnt vmcnt(0)")
    k("s_mov_b64 exec, -1")

def p1_map(k):
    k(f"""
    s_lshr_b32 s27, s{SXCD}, 1
    s_lshl_b32 s27, s27, 3
    s_and_b32 s28, s{SIDX}, 7
    s_add_u32 s27, s27, s28
    s_and_b32 s28, s{SXCD}, 1
    s_lshl_b32 s28, s28, 2
    s_lshr_b32 s29, s{SIDX}, 3
    s_add_u32 s28, s28, s29
    """)
EXC = 65536 + 3*12288
EXS = 65536 + 2*12288

def p1_consumer(k):
    SRB, SCB = 27, 28
    VXA, VWA = 12, 16
    WB = [20, 32, 44, 56]; XB = [68, 72, 76, 80]; ACC = 84; CS = 132; SEL = 144
    k(f"""
    v_and_b32 v8, 31, v2
    v_lshrrev_b32 v4, 5, v2
    v_lshrrev_b32 v5, 1, v8
    v_and_b32 v5, 7, v5
    s_and_b32 s34, s{SW}, 1
    s_lshl_b32 s35, s34, 12
    v_lshlrev_b32 v6, 7, v8
    v_add_u32 v6, s35, v6
    """)
    for u in range(4):
        k(f"v_add_u32 v7, {2*u}, v4")
        k(f"v_xor_b32 v7, v7, v5")
        k(f"v_lshl_add_u32 v{VXA+u}, v7, 4, v6")
    k(f"""
    s_lshr_b32 s36, s{SW}, 1
    v_bfe_u32 v5, v2, 2, 2
    v_lshl_add_u32 v6, v4, 3, v5
    v_lshlrev_b32 v6, 7, v6
    v_bfe_u32 v7, v2, 4, 1
    v_lshlrev_b32 v7, 1, v7
    v_bfe_u32 v11, v2, 1, 1
    v_add_u32 v7, v7, v11
    s_lshl_b32 s37, s36, 2
    v_add_u32 v7, s37, v7
    v_lshrrev_b32 v5, 1, v5
    v_lshlrev_b32 v5, 2, v5
    v_xor_b32 v7, v7, v5
    v_lshl_add_u32 v6, v7, 4, v6
    v_and_b32 v7, 1, v2
    v_lshl_add_u32 v{VWA+1}, v7, 3, v6
    v_add_u32 v{VWA+1}, 0x10000, v{VWA+1}
    v_mov_b32 v{VWA}, v{VWA+1}
    v_and_b32 v5, 15, v2
    v_bfe_u32 v7, v2, 4, 1
    v_cmp_eq_u32 vcc, v5, v7
    v_mov_b32 v6, {hex(ONES)}
    s_mov_b32 s47, 0
    v_cndmask_b32 v{SEL}, 0, v6, vcc
    """)
    for i in range(1, 4): k(f"v_mov_b32 v{SEL+i}, v{SEL}")
    for i in range(60): k(f"v_mov_b32 v{ACC+i}, 0")
    k(f"""
    s_lshl_b32 s40, s{SCB}, 2
    s_lshl_b32 s41, s36, 1
    s_add_u32 s40, s40, s41
    s_lshl_b32 s40, s40, 16
    s_lshl_b32 s41, s{SRB}, 1
    s_add_u32 s41, s41, s34
    s_lshl_b32 s41, s41, 10
    s_add_u32 s40, s40, s41
    v_bfe_u32 v9, v2, 4, 1
    v_lshlrev_b32 v9, 16, v9
    v_lshl_add_u32 v9, v4, 8, v9
    v_lshl_add_u32 v9, v5, 4, v9
    s_add_u32 s43, s40, {QF + 65536}
    s_add_u32 s44, s40, {KF}
    s_add_u32 s45, s40, {KF + 65536}
    s_add_u32 s46, s40, {VF}
    s_mov_b32 s48, 0
    """)
    def xrd(u, b): k(f"ds_read_b128 v[{b}:{b+3}], v{VXA+u}")
    def wrd(u, b, p):
        for r in range(2):
            k(f"ds_read_b64_tr_b16 v[{b+4*p+2*r}:{b+4*p+2*r+1}], v{VWA} offset:{p*4096 + (u & 1)*2048 + r*512}")
    stamp(k, 0)
    k("s_barrier")
    stamp(k, 1)
    for u in range(2):
        xrd(u, XB[u])
        for p in range(3): wrd(u, WB[u], p)
    odd, ep = k.label("p1odd"), k.label("p1ep")
    k("s_cmp_eq_u32 s34, 1")
    k(f"s_cbranch_scc1 {odd}")
    for par in range(2):
        if par == 1: k.place(odd)
        ml = k.label("p1ml")
        k(".p2align 3")
        k.place(ml)
        for u in range(4):
            if not (u & 1):
                k("s_add_u32 s48, s48, 12288")
                k(f"s_cmp_eq_u32 s48, {8*12288}")
                k("s_cselect_b32 s48, 0, s48")
                if u == 2:
                    k(f"v_add_u32 v{VXA}, 8192, v{VXA}")
                    k(f"v_add_u32 v{VXA+1}, 8192, v{VXA+1}")
                k("s_barrier")
                k(f"v_add_u32 v{VWA}, s48, v{VWA+1}")
            b, x = WB[u], XB[u]
            nu = (u+2) & 3
            cs = (u & 1) == par
            k("s_waitcnt lgkmcnt(7)")
            k(f"{MFMA} v[{ACC}:{ACC+15}], v[{b}:{b+3}], v[{x}:{x+3}], v[{ACC}:{ACC+15}]")
            xrd(nu, XB[nu])
            wrd(nu, WB[nu], 0)
            if cs: k(f"{MF16} v[{CS}:{CS+3}], v[{SEL}:{SEL+3}], v[{b}:{b+3}], v[{CS}:{CS+3}]")
            k(f"{MFMA} v[{ACC+16}:{ACC+31}], v[{b+4}:{b+7}], v[{x}:{x+3}], v[{ACC+16}:{ACC+31}]")
            wrd(nu, WB[nu], 1)
            if cs: k(f"{MF16} v[{CS+4}:{CS+7}], v[{SEL}:{SEL+3}], v[{b+4}:{b+7}], v[{CS+4}:{CS+7}]")
            k(f"{MFMA} v[{ACC+32}:{ACC+47}], v[{x}:{x+3}], v[{b+8}:{b+11}], v[{ACC+32}:{ACC+47}]")
            wrd(nu, WB[nu], 2)
            if cs: k(f"{MF16} v[{CS+8}:{CS+11}], v[{SEL}:{SEL+3}], v[{b+8}:{b+11}], v[{CS+8}:{CS+11}]")
            if u == 3:
                for q in range(2, 4): k(f"v_add_u32 v{VXA+q}, 8192, v{VXA+q}")
                k("s_add_u32 s47, s47, 1")
                k("s_cmp_lt_u32 s47, 8")
        k(f"s_cbranch_scc1 {ml}")
        if par == 0: k(f"s_branch {ep}")
    k.place(ep)
    stamp(k, 2)
    k(f"""
    s_lshl_b32 s35, s34, 1
    s_add_u32 s35, s35, s36
    s_mul_i32 s35, s35, 384
    s_add_u32 s35, s35, {EXC}
    v_lshl_add_u32 v5, v2, 2, s35
    s_mul_i32 s37, s36, 384
    s_add_u32 s37, s37, {EXC}
    v_lshl_add_u32 v6, v4, 4, s37
    v_lshl_add_u32 v7, v8, 2, s37
    s_lshl_b32 s38, s34, 7
    s_add_u32 s38, s38, {EXS}
    v_lshl_add_u32 v10, v8, 2, s38
    v_lshl_add_u32 v11, v4, 4, s38
    s_mov_b64 exec, 0xffff
    """)
    for p in range(3):
        k(f"ds_write2_b32 v5, v{CS+4*p}, v{CS+4*p+1} offset0:{32*p} offset1:{32*p+16}")
    k("s_mov_b64 exec, -1")
    k("s_waitcnt lgkmcnt(0)")
    k("s_barrier")
    A, B, RSV, NBV = 20, 36, 52, 68
    RS, NB, CV = 132, 134, 136
    k(f"ds_read_b32 v{RS}, v10")
    k(f"ds_read_b32 v{NB}, v10 offset:256")
    def csrd(p):
        for g in range(4):
            k(f"ds_read_b128 v[{A+4*g}:{A+4*g+3}], v6 offset:{p*128 + g*32}")
            k(f"ds_read_b128 v[{B+4*g}:{B+4*g+3}], v6 offset:{768 + p*128 + g*32}")
    csrd(0)
    k(f"ds_read_b32 v{CV}, v7 offset:256")
    k(f"ds_read_b32 v{CV+1}, v7 offset:{768 + 256}")
    k(f"s_mov_b32 s42, {hex(f32(0.25*math.log2(math.e)))}")
    k("s_waitcnt lgkmcnt(10)")
    k(f"v_mul_f32 v138, s42, v{RS}")
    k(f"v_mul_f32 v140, s42, v{NB}")
    st = OPT['st']
    P = 144
    def fold(acc, rs, nb):
        for r in range(0, 16, 2):
            k(f"v_pk_add_f32 v[{A+r}:{A+r+1}], v[{A+r}:{A+r+1}], v[{B+r}:{B+r+1}]")
        for r in range(0, 16, 2):
            k(f"v_pk_mul_f32 v[{A+r}:{A+r+1}], v[{A+r}:{A+r+1}], v[{nb}:{nb+1}] op_sel_hi:[1,0]")
        for r in range(0, 16, 2):
            k(f"v_pk_fma_f32 v[{acc+r}:{acc+r+1}], v[{acc+r}:{acc+r+1}], v[{rs}:{rs+1}], v[{A+r}:{A+r+1}] op_sel_hi:[1,0,1]")
    def pack(acc, p, so0, so1, va, off1=0):
        for d in range(8):
            k(f"v_cvt_pk_bf16_f32 v{p+d}, v{acc+2*d}, v{acc+2*d+1}")
            if d == 3: k(f"buffer_store_dwordx4 v[{p}:{p+3}], v{va}, s[20:23], s{so0} offen {st}")
        k(f"buffer_store_dwordx4 v[{p+4}:{p+7}], v{va}, s[20:23], s{so1} offen" + (f" offset:{off1}" if off1 else "") + f" {st}")
    k("s_waitcnt lgkmcnt(2)")
    fold(ACC, 138, 140)
    csrd(1)
    for g in range(4):
        k(f"ds_read_b128 v[{RSV+4*g}:{RSV+4*g+3}], v11 offset:{g*32}")
    pack(ACC, P, 40, 43, 3)
    k("s_waitcnt lgkmcnt(4)")
    for g in range(4):
        k(f"ds_read_b128 v[{NBV+4*g}:{NBV+4*g+3}], v11 offset:{256 + g*32}")
    fold(ACC+16, RS, NB)
    pack(ACC+16, P+8, 44, 45, 3)
    k(f"v_add_f32 v{CV}, v{CV}, v{CV+1}")
    k("s_waitcnt lgkmcnt(0)")
    for r in range(0, 16, 2):
        k(f"v_pk_mul_f32 v[{NBV+r}:{NBV+r+1}], v[{NBV+r}:{NBV+r+1}], v[{CV}:{CV+1}] op_sel_hi:[1,0]")
    for r in range(0, 16, 2):
        k(f"v_pk_fma_f32 v[{ACC+32+r}:{ACC+33+r}], v[{ACC+32+r}:{ACC+33+r}], v[{RSV+r}:{RSV+r+1}], v[{NBV+r}:{NBV+r+1}]")
    pack(ACC+32, P+16, 46, 46, 9, 512)
    stamp(k, 3)
    k("s_waitcnt vmcnt(0)")
    k("s_barrier")
    k("s_barrier")

def relayout(k):
    st = OPT['st']
    PRE = [16, 44]
    k(f"""
    v_and_b32 v6, 31, v2
    v_lshrrev_b32 v7, 5, v2
    v_lshlrev_b32 v12, 10, v6
    v_lshl_add_u32 v12, v7, 3, v12
    v_mul_u32_u24 v13, {4*2752}, v7
    v_lshl_add_u32 v13, v6, 1, v13
    v_lshlrev_b32 v14, 12, v7
    v_lshl_add_u32 v14, v6, 1, v14
    s_lshl_b32 s42, s2, 3
    s_lshl_b32 s43, s29, 1
    s_add_u32 s42, s42, s43
    """)
    def wload(reg, voffreg, soffreg, pitch):
        for j in range(8):
            row = 8*(j >> 2) + (j & 3)
            k(f"s_add_u32 s49, s{soffreg}, {row*pitch}")
            k(f"buffer_load_ushort v{reg+j}, v{voffreg}, s[44:47], s49 offen")
    def item_loads(i):
        P_, D0 = PRE[i], (37, 52)[i]
        k(f"s_add_u32 s{D0+2}, s42, {i}")
        G = D0 + 2
        srd(k, 44, 4, 2*MB)
        k(f"""
        s_lshr_b32 s43, s{G}, 5
        s_lshl_b32 s43, s43, 15
        s_and_b32 s48, s{G}, 31
        s_lshl_b32 s48, s48, 5
        s_add_u32 s43, s43, s48
        buffer_load_dwordx2 v[{P_}:{P_+1}], v12, s[44:47], s43 offen
        buffer_load_dwordx2 v[{P_+2}:{P_+3}], v12, s[44:47], s43 offen offset:16
        s_mov_b32 s50, {(2**32 + 42)//43}
        s_mul_hi_u32 s51, s{G}, s50
        s_mul_i32 s58, s51, 43
        s_sub_u32 s58, s{G}, s58
        s_mul_i32 s59, s51, {16*2752}
        s_lshl_b32 s48, s58, 6
        s_add_u32 s59, s59, s48
        s_lshl_b32 s{D0}, s58, 5
        s_add_u32 s{D0}, s{D0}, s51
        s_lshl_b32 s{D0}, s{D0}, 10
        s_cmp_lt_u32 s{G}, 1376
        s_cselect_b32 s50, {512*2752}, 0
        s_mov_b32 s44, s12
        s_and_b32 s45, s13, 0xffff
        s_mov_b32 s46, s50
        """)
        wload(P_+4, 13, 59, 2752)
        k("s_mov_b32 s44, s14")
        k("s_and_b32 s45, s15, 0xffff")
        wload(P_+12, 13, 59, 2752)
        k(f"""
        s_sub_u32 s48, s{G}, 1376
        s_cmp_lt_u32 s{G}, 1376
        s_cselect_b32 s48, s{G}, s48
        s_cselect_b32 s44, s16, s8
        s_cselect_b32 s45, s17, s9
        s_cselect_b32 s46, {1376*1024}, 0
        s_cselect_b32 s50, 86, 32
        s_cselect_b32 s43, {WDF - WOF}, 0
        s_and_b32 s45, s45, 0xffff
        s_sub_u32 s51, s{G}, 1376
        s_cmp_lt_u32 s51, 512
        s_cselect_b32 s46, {512*1024}, s46
        s_and_b32 s58, s48, 15
        s_lshr_b32 s51, s48, 4
        s_lshl_b32 s59, s51, 14
        s_lshl_b32 s48, s58, 6
        s_add_u32 s59, s59, s48
        s_mul_i32 s{D0+1}, s58, s50
        s_add_u32 s{D0+1}, s{D0+1}, s51
        s_lshl_b32 s{D0+1}, s{D0+1}, 10
        s_add_u32 s{D0+1}, s{D0+1}, s43
        """)
        wload(P_+20, 14, 59, 1024)
    def pack_store(reg, dstreg, base):
        for d in range(4):
            k(f"v_lshl_or_b32 v{reg+d}, v{reg+2*d+1}, 16, v{reg+2*d}")
        k(f"s_add_u32 s49, s{dstreg}, {base}")
        k(f"buffer_store_dwordx4 v[{reg}:{reg+3}], v3, s[20:23], s49 offen {st}")
    def item_stores(i):
        P_, D0 = PRE[i], (37, 52)[i]
        G = D0 + 2
        l1, l2 = k.label("is1"), k.label("is2")
        k(f"s_lshl_b32 s43, s{G}, 10")
        k(f"s_add_u32 s43, s43, {XF}")
        k(f"buffer_store_dwordx4 v[{P_}:{P_+3}], v3, s[20:23], s43 offen {st}")
        k(f"s_cmp_lt_u32 s{G}, 1376")
        k(f"s_cbranch_scc0 {l1}")
        pack_store(P_+4, D0, WGF)
        pack_store(P_+12, D0, WUF)
        k.place(l1)
        k(f"s_cmp_lt_u32 s{G}, 1888")
        k(f"s_cbranch_scc0 {l2}")
        pack_store(P_+20, D0+1, WOF)
        k.place(l2)
    return item_loads, item_stores

def p1_loader(k):
    SRB, SCB = 27, 28
    VXE, VXO, VW = 8, 9, 10
    k(f"""
    s_sub_u32 s29, s{SW}, 4
    v_lshrrev_b32 v11, 3, v2
    v_and_b32 v4, 7, v2
    v_lshrrev_b32 v5, 4, v2
    v_xor_b32 v6, v4, v5
    v_lshlrev_b32 v6, 4, v6
    s_lshl_b32 s35, s29, 4
    v_add_u32 v7, s35, v11
    v_lshlrev_b32 v12, 10, v7
    v_add_u32 v{VXE}, v12, v6
    v_xor_b32 v6, 64, v6
    v_add_u32 v{VXO}, v12, v6
    v_add_u32 v{VXO}, 8192, v{VXO}
    s_lshl_b32 s35, s29, 3
    v_add_u32 v7, s35, v11
    v_and_b32 v5, 1, v5
    v_lshlrev_b32 v5, 2, v5
    v_xor_b32 v5, v4, v5
    v_lshlrev_b32 v5, 4, v5
    v_mul_u32_u24 v7, 3072, v7
    v_add_u32 v{VW}, v7, v5
    s_lshl_b32 s31, s29, 10
    s_lshl_b32 s36, s29, 11
    s_lshl_b32 s30, s{SRB}, 16
    s_lshl_b32 s32, s{SCB}, 7
    """)
    srd(k, 52, 4, 2*MB)
    srd(k, 56, 6, 512*3072)
    n = lambda c: 3 + (0 if c & 1 else 2)
    def issue(c):
        if not c & 1:
            k(f"s_add_u32 s33, s30, {(c//2)*128}")
            for o in range(2):
                dma(k, VXE if o == 0 else VXO, 52, 33, f"s36, {(c//2)*8192 + o*1024}")
        for p in range(3):
            k(f"s_add_u32 s33, s32, {32*c*3072 + p*1024}")
            dma(k, VW, 56, 33, f"s31, {65536 + (c % 8)*12288 + p*4096}")
    issued = OPT.get('d1', 3)
    for c in range(issued): issue(c)
    for c in range(17):
        k(f"s_waitcnt vmcnt({sum(n(j) for j in range(c+1, issued))})")
        k("s_barrier")
        m = 0
        while issued < 16 and issued - 8 <= c - 2 and m < 2:
            issue(issued); issued += 1; m += 1
    k("s_barrier")
    k("s_barrier")
    k("s_barrier")

def p1_helper(k):
    k(f"s_setprio {OPT.get('hprio', 3)}")
    X, SQ, SX, T, RS, NB = 16, 24, 28, 32, 36, 38
    init_done = k.label("initd")
    k(f"""
    s_or_b32 s29, s2, s{SW}
    s_cmp_lg_u32 s29, 9
    s_cbranch_scc1 {init_done}
    s_cmp_lg_u32 s2, 0
    s_cbranch_scc1 {init_done}
    v_lshlrev_b32 v4, 8, v2
    v_mov_b32 v5, 0
    s_mov_b32 s30, {CNT}
    buffer_store_dword v5, v4, s[20:23], s30 offen sc1
    v_lshlrev_b32 v4, 7, v2
    """)
    for i in range(8):
        k(f"s_mov_b32 s30, {FLG + i*8192}")
        k("buffer_store_dword v5, v4, s[20:23], s30 offen sc1")
    k(f"""
    s_waitcnt vmcnt(0)
    v_mov_b32 v6, 1
    s_mov_b64 exec, 1
    global_store_dword v5, v6, s[60:61] sc1
    s_mov_b64 exec, -1
    """)
    k.place(init_done)
    k(f"""
    s_sub_u32 s29, s{SW}, 8
    s_lshl_b32 s30, s29, 10
    v_add_u32 v4, s30, v3
    s_mov_b32 s39, {hex(ONES)}
    """)
    for c in range(17):
        k("s_barrier")
        if c % 2 == 0 and c < 16:
            cc = c // 2
            k(f"ds_read_b128 v[{X}:{X+3}], v4 offset:{cc*8192}")
            k(f"ds_read_b128 v[{X+4}:{X+7}], v4 offset:{cc*8192 + 4096}")
            for hf in range(2):
                k(f"s_waitcnt lgkmcnt({1-hf})")
                for d in range(4):
                    r = X + 4*hf + d
                    q, sx = SQ + 2*hf + (d & 1), SX + 2*hf + (d & 1)
                    first = (cc == 0 and d < 2)
                    k(f"v_dot2_f32_bf16 v{q}, v{r}, v{r}, {'0' if first else 'v%d' % q}")
                    k(f"v_dot2_f32_bf16 v{sx}, v{r}, s39, {'0' if first else 'v%d' % sx}")
        if c == 14:
            k.nop(3)
            k(f"v_add_f32 v{SQ}, v{SQ}, v{SQ+1}")
            k(f"v_add_f32 v{SQ+2}, v{SQ+2}, v{SQ+3}")
            k(f"v_add_f32 v{SX}, v{SX}, v{SX+1}")
            k(f"v_add_f32 v{SX+2}, v{SX+2}, v{SX+3}")
            row8_sum(k, [SQ, SQ+2, SX, SX+2])
        if c == 15:
            for hf in range(2):
                finish_stats(k, SX + 2*hf, SQ + 2*hf, RS + hf, NB + hf, T, T+1)
            k(f"""
            v_lshrrev_b32 v5, 3, v2
            s_lshl_b32 s30, s29, 5
            s_add_u32 s30, s30, {EXS}
            v_lshl_add_u32 v5, v5, 2, s30
            ds_write2_b32 v5, v{RS}, v{RS+1} offset0:0 offset1:32
            ds_write2_b32 v5, v{NB}, v{NB+1} offset0:64 offset1:96
            """)
    k("s_waitcnt lgkmcnt(0)")
    k("s_barrier")
    k("s_barrier")
    stamp(k, 0)
    nop_ = k.label("h1n")
    k(f"s_cmp_lg_u32 s{SW}, 8")
    k(f"s_cbranch_scc1 {nop_}")
    g, gx = k.label("gate"), k.label("gatex")
    k("s_mov_b32 s41, 0")
    k("v_mov_b32 v9, 0")
    k.place(g)
    k("global_load_dword v10, v9, s[60:61] sc1")
    k("s_add_u32 s41, s41, 1")
    k("s_cmp_gt_u32 s41, 0x40000")
    k(f"s_cbranch_scc1 {gx}")
    k("s_waitcnt vmcnt(0)")
    k("v_cmp_eq_u32 vcc, 0, v10")
    k("s_cmp_lg_u64 vcc, 0")
    k(f"s_cbranch_scc1 {g}")
    k.place(gx)
    stamp(k, 1)
    k(f"s_lshl_b32 s42, s28, 5")
    k(f"s_add_u32 s42, s42, s27")
    flag_set(k, 42)
    k(f"s_lshr_b32 s42, s{SIDX}, 2")
    k(f"s_lshl_b32 s42, s42, 5")
    flag_poll(k, 42)
    stamp(k, 2)
    k.place(nop_)
    k("s_barrier")

def rowmax(k, S, dst, t1, t2):
    k(f"v_max3_f32 v{dst}, v{S}, v{S+1}, v{S+2}")
    k(f"v_max3_f32 v{t1}, v{S+3}, v{S+4}, v{S+5}")
    k(f"v_max3_f32 v{dst}, v{dst}, v{S+6}, v{S+7}")
    k(f"v_max3_f32 v{t1}, v{t1}, v{S+8}, v{S+9}")
    k(f"v_max3_f32 v{dst}, v{dst}, v{S+10}, v{S+11}")
    k(f"v_max3_f32 v{t1}, v{t1}, v{S+12}, v{S+13}")
    k(f"v_max3_f32 v{dst}, v{dst}, v{S+14}, v{S+15}")
    k(f"v_max_f32 v{t1}, v{dst}, v{t1}")
    k(f"v_mov_b32 v{t2}, v{t1}")
    k.nop(2)
    k(f"v_permlane32_swap_b32 v{t1}, v{t2}")
    k.nop(1)
    k(f"v_max_f32 v{dst}, v{t1}, v{t2}")

def p2_compute(k, tail):
    Q = 8; KB = [12, 16]; V1 = [20, 28]; V2 = [24, 32]; P = 36; SS = [48, 64]; CN = 80; O = 96
    VKA, VVA, VINC = 4, 5, 47
    PRG, VPR = 112, 6
    chk, spin = k.label("chk"), k.label("spin")
    def spinf(k):
        k.place(spin)
        k("s_sleep 1")
        k(f"ds_read_b128 v[{PRG}:{PRG+3}], v{VPR}")
        k("s_waitcnt lgkmcnt(0)")
        k(f"s_branch {chk}")
    tail.append(spinf)
    k(f"""
    s_lshl_b32 s30, s{SXCD}, 3
    s_add_u32 s30, s30, s{SW}
    s_lshl_b32 s31, s30, 10
    s_lshl_b32 s29, s{SIDX}, 16
    s_add_u32 s31, s31, s29
    buffer_load_dwordx4 v[{Q}:{Q+3}], v3, s[20:23], s31 offen {OPT['ld']}
    v_mov_b32 v{VKA}, v3
    v_lshrrev_b32 v6, 5, v2
    v_lshlrev_b32 v6, 8, v6
    v_and_b32 v7, 15, v2
    v_lshl_add_u32 v{VVA}, v7, 4, v6
    v_add_u32 v{VVA}, 0x10000, v{VVA}
    v_and_b32 v6, 31, v2
    v_add_u32 v7, -20, v6
    v_cmp_gt_u32 vcc, 8, v7
    v_mov_b32 v44, {CSTRIP}
    v_mov_b32 v45, {CSTRIP + 64}
    v_cndmask_b32 v44, v44, v45, vcc
    v_and_b32 v7, 27, v2
    v_cmp_eq_u32 vcc, 16, v7
    v_add_u32 v45, 16, v44
    s_nop 0
    v_cndmask_b32 v44, v44, v45, vcc
    v_cmp_gt_u32 vcc, 16, v6
    v_mov_b32 v45, 8192
    s_nop 0
    v_cndmask_b32 v{VVA}, v44, v{VVA}, vcc
    v_cndmask_b32 v{VINC}, 0, v45, vcc
    """)
    k(f"v_mov_b32 v{VPR}, {PROG}")
    for r in range(4): k(f"v_mov_b32 v{V2[1]+r}, 0")
    for r in range(8): k(f"v_mov_b32 v{P+r}, 0")
    for r in range(16): k(f"v_mov_b32 v{O+r}, 0")
    def vread(kk, buf, off):
        kk(f"ds_read_b128 v[{V1[buf]}:{V1[buf]+3}], v{VVA} offset:{off}")
        kk(f"ds_read_b128 v[{V2[buf]}:{V2[buf]+3}], v{VVA} offset:{off+512}")
    stamp(k, 4)
    k("s_barrier")
    stamp(k, 5)
    k(f"ds_read_b128 v[{KB[0]}:{KB[0]+3}], v{VKA}")
    k(f"ds_read_b128 v[{KB[1]}:{KB[1]+3}], v{VKA} offset:1024")
    vread(k, 0, 0)
    k("s_waitcnt vmcnt(0) lgkmcnt(3)")
    k(f"{MFMA} v[{SS[0]}:{SS[0]+15}], v[{KB[0]}:{KB[0]+3}], v[{Q}:{Q+3}], 0")
    k.nop(12)
    rowmax(k, SS[0], 44, 45, 46)
    for r in range(16): k(f"v_sub_f32 v{CN+r}, 0, v44")
    k.nop(2)
    k(f"{MFMA} v[{SS[0]}:{SS[0]+15}], v[{KB[0]}:{KB[0]+3}], v[{Q}:{Q+3}], v[{CN}:{CN+15}]")
    k("s_mov_b32 s38, 0")
    k.nop(10)
    loop = k.label("loop")
    k(".p2align 6")
    k.place(loop)
    pr = OPT['prio']
    for t in range(8):
        cur, nx = SS[t & 1], SS[(t+1) & 1]
        e = lambda i: k(f"v_exp_f32 v{cur+i}, v{cur+i}")
        c = lambda i: k(f"v_cvt_pk_bf16_f32 v{P+i}, v{cur+2*i}, v{cur+2*i+1}")
        k("s_waitcnt lgkmcnt(0)")
        if t == 6:
            k.place(chk)
            k(f"v_min3_u32 v{PRG}, v{PRG}, v{PRG+1}, v{PRG+2}")
            k(f"v_min_u32 v{PRG}, v{PRG}, v{PRG+3}")
            k(f"v_cmp_ge_u32 vcc, s38, v{PRG}")
            k("s_cmp_lg_u64 vcc, 0")
            k(f"s_cbranch_scc1 {spin}")
        k("s_setprio 0" if pr else "s_nop 0")
        kb = KB[(t+1) & 1]
        k(f"{MFMA} v[{nx}:{nx+15}], v[{kb}:{kb+3}], v[{Q}:{Q+3}], v[{CN}:{CN+15}]")
        k(f"ds_read_b128 v[{KB[t&1]}:{KB[t&1]+3}], v{VKA} offset:{(t+2)*1024}")
        e(0); e(1)
        pb = (t+1) & 1
        k(f"{MFMA} v[{O}:{O+15}], v[{V2[pb]}:{V2[pb]+3}], v[{P+4}:{P+7}], v[{O}:{O+15}]")
        vread(k, pb, (t+1)*1024)
        if t == 5: k(f"ds_read_b128 v[{PRG}:{PRG+3}], v{VPR}")
        e(2); e(3); c(0)
        if pr: k("s_setprio 1")
        e(4); e(5); c(1); e(6); e(7); c(2); e(8); e(9); c(3); e(10); e(11)
        k(f"{MFMA} v[{O}:{O+15}], v[{V1[t&1]}:{V1[t&1]+3}], v[{P}:{P+3}], v[{O}:{O+15}]")
        c(4); e(12); e(13); c(5); e(14); e(15); c(6)
        if t == 7:
            k(f"v_add_u32 v{VKA}, 8192, v{VKA}")
            k(f"v_add_u32 v{VVA}, v{VINC}, v{VVA}")
            k("s_add_u32 s38, s38, 1")
            k("s_cmp_lt_u32 s38, 8")
        c(7)
    k(f"s_cbranch_scc1 {loop}")
    k("s_setprio 0")
    stamp(k, 6)
    k.nop(1)
    k(f"{MFMA} v[{O}:{O+15}], v[{V2[1]}:{V2[1]+3}], v[{P+4}:{P+7}], v[{O}:{O+15}]")
    k("s_waitcnt lgkmcnt(0)")
    k.nop(12)
    fb, fin = k.label("fb"), k.label("fin")
    k(f"""
    v_max3_f32 v44, abs(v{O}), abs(v{O+1}), abs(v{O+2})
    v_max3_f32 v45, abs(v{O+3}), abs(v{O+4}), abs(v{O+5})
    v_max3_f32 v44, v44, abs(v{O+6}), abs(v{O+7})
    v_add_f32 v46, v{O}, v{O+1}
    v_max3_f32 v44, v44, v45, v{O+8}
    s_mov_b32 s39, {hex(f32(2.0**100))}
    """)
    for r in range(2, 9): k(f"v_add_f32 v46, v46, v{O+r}")
    k(f"v_and_b32 v46, 0x7fffffff, v46")
    k(f"v_cmp_ngt_f32 vcc, s39, v44")
    k(f"v_cmp_ngt_f32 s[40:41], s39, v46")
    k.nop(1)
    k("s_or_b64 s[40:41], s[40:41], vcc")
    k("s_cmp_lg_u64 s[40:41], 0")
    k(f"s_cbranch_scc1 {fb}")
    k.place(fin)
    k(f"v_rcp_f32 v44, v{O+8}")
    k(f"s_lshl_b32 s40, s30, 15")
    k(f"s_lshl_b32 s41, s{SIDX}, 10")
    k(f"s_add_u32 s40, s40, s41")
    k(f"s_add_u32 s40, s40, {OF}")
    for r in range(8): k(f"v_mul_f32 v{O+r}, v{O+r}, v44")
    for r in range(4): k(f"v_cvt_pk_bf16_f32 v{P+r}, v{O+2*r}, v{O+2*r+1}")
    k(f"buffer_store_dwordx4 v[{P}:{P+3}], v3, s[20:23], s40 offen {OPT['st']}")
    k("s_waitcnt vmcnt(0)")
    k("s_barrier")
    k("s_barrier")
    def fallback(k):
        k.place(fb)
        k(f"v_mov_b32 v{VKA}, v3")
        k(f"v_lshlrev_b32 v44, 3, v{VINC}")
        k(f"v_sub_u32 v{VVA}, v{VVA}, v44")
        k(f"v_lshrrev_b32 v{VINC}, 3, v{VINC}")
        k(f"v_mov_b32 v7, 0xff7fffff")
        for r in range(16): k(f"v_mov_b32 v{O+r}, 0")
        k("s_mov_b32 s38, 0")
        fl = k.label("fl")
        k.place(fl)
        S = SS[0]
        k(f"ds_read_b128 v[{KB[0]}:{KB[0]+3}], v{VKA}")
        vread(k, 0, 0)
        k("s_waitcnt lgkmcnt(0)")
        k(f"{MFMA} v[{S}:{S+15}], v[{KB[0]}:{KB[0]+3}], v[{Q}:{Q+3}], 0")
        k.nop(14)
        rowmax(k, S, 44, 45, 46)
        k("v_max_f32 v44, v44, v7")
        k("v_sub_f32 v45, v7, v44")
        k("v_exp_f32 v45, v45")
        k("v_mov_b32 v7, v44")
        for r in range(16): k(f"v_sub_f32 v{S+r}, v{S+r}, v44")
        for r in range(16): k(f"v_mul_f32 v{O+r}, v{O+r}, v45")
        for r in range(16): k(f"v_exp_f32 v{S+r}, v{S+r}")
        k.nop(1)
        for r in range(8): k(f"v_cvt_pk_bf16_f32 v{P+r}, v{S+2*r}, v{S+2*r+1}")
        k.nop(2)
        k(f"{MFMA} v[{O}:{O+15}], v[{V1[0]}:{V1[0]+3}], v[{P}:{P+3}], v[{O}:{O+15}]")
        k(f"{MFMA} v[{O}:{O+15}], v[{V2[0]}:{V2[0]+3}], v[{P+4}:{P+7}], v[{O}:{O+15}]")
        k(f"v_add_u32 v{VKA}, 1024, v{VKA}")
        k(f"v_add_u32 v{VVA}, v{VINC}, v{VVA}")
        k("s_add_u32 s38, s38, 1")
        k("s_cmp_lt_u32 s38, 64")
        k.nop(14)
        k(f"s_cbranch_scc1 {fl}")
        k(f"s_branch {fin}")
    tail.append(fallback)

def p2_helper(k, done):
    NB2 = OPT['nb2']
    ld, st = OPT['ld'], OPT['st']
    k(f"""
    s_sub_u32 s30, s{SW}, 8
    s_lshl_b32 s32, s30, 11
    s_lshl_b32 s29, s{SIDX}, 16
    s_add_u32 s33, s29, s32
    """)
    def kv(c):
        for base, l in ((KF, 0), (VF, 65536)):
            k(f"s_add_u32 s34, s33, {base + c*8192}")
            dma(k, 3, 20, 34, f"s32, {l + c*8192}", 0, ld)
            k(f"buffer_load_dwordx4 v3, s[20:23], s34 offen offset:1024 {ld} lds")
    kv(0); kv(1)
    k(f"""
    v_lshrrev_b32 v4, 2, v2
    s_lshl_b32 s35, s30, 4
    v_add_u32 v4, s35, v4
    v_cmp_gt_u32 vcc, 20, v4
    v_lshlrev_b32 v4, 9, v4
    v_and_b32 v5, 1, v2
    v_lshl_add_u32 v4, v5, 4, v4
    v_bfe_u32 v6, v2, 1, 1
    v_lshl_add_u32 v4, v6, 6, v4
    v_add_u32 v4, {CSTRIP}, v4
    v_mul_u32_u24 v8, 0x3f80, v5
    v_lshl_or_b32 v8, v8, 16, v8
    v_mov_b32 v9, v8
    v_mov_b32 v10, v8
    v_mov_b32 v11, v8
    s_and_saveexec_b64 s[36:37], vcc
    ds_write_b128 v4, v[8:11]
    s_mov_b64 exec, s[36:37]
    s_lshl_b32 s35, s30, 2
    s_add_u32 s35, s35, {PROG}
    v_mov_b32 v4, s35
    v_mov_b32 v5, 0
    ds_write_b32 v4, v5
    s_waitcnt vmcnt(4) lgkmcnt(0)
    s_barrier
    """)
    KD = OPT.get('kvd', 3)
    issued = 2
    def publish(c):
        k(f"v_mov_b32 v5, {c if c < 7 else 64}")
        k("ds_write_b32 v4, v5")
    while issued < KD: kv(issued); issued += 1
    c = 1
    while issued < 8:
        k(f"s_waitcnt vmcnt({4*(issued - 1 - c)})")
        publish(c); c += 1
        kv(issued); issued += 1
    stamp(k, 3)
    k("s_mov_b32 s29, s30")
    loads, stores = relayout(k)
    if OPT.get('z_nopre'):
        loads = stores = (lambda i: None)
    while c < 8:
        k(f"s_waitcnt vmcnt({4*(7 - c)})")
        publish(c); c += 1
    loads(0)
    stamp(k, 12)
    if 'hprio2' in OPT: k(f"s_setprio {OPT['hprio2']}")
    loads(1)
    k("s_waitcnt vmcnt(26)")
    stores(0)
    k("s_waitcnt vmcnt(0)")
    stamp(k, 13)
    stores(1)
    k("s_waitcnt vmcnt(0)")
    stamp(k, 4)
    k(f"s_add_u32 s42, s{SXCD}, {CW}")
    arrive(k, 42)
    k(f"s_cmp_lg_u32 s{SW}, 8")
    k(f"s_cbranch_scc1 {done}")
    k("s_setprio 3")

def res_cfg(mode):
    if mode == 'wo':
        return dict(NKS=32, NCH=4, RING=4, BSRC=OF, ASRC=WOF, RES=XF)
    return dict(NKS=86, NCH=11, RING=5, BSRC=ACT, ASRC=WDF, RES=HF)

def res_map(k):
    k(f"""
    s_lshl_b32 s27, s{SXCD}, 2
    s_and_b32 s28, s{SIDX}, 3
    s_add_u32 s27, s27, s28
    s_lshr_b32 s28, s{SIDX}, 2
    """)

def res_consumer(k, mode, sb):
    c_ = res_cfg(mode); NCH, RING, RES = c_['NCH'], c_['RING'], c_['RES']
    SRB, SCB = 27, 28
    ld, st = OPT['ld'], OPT['st']
    R, ACC, FB = 8, 16, 32
    res_map(k)
    k(f"""
    s_and_b32 s29, s{SW}, 1
    s_lshl_b32 s30, s{SRB}, 1
    s_add_u32 s30, s30, s29
    s_lshr_b32 s31, s{SW}, 1
    s_lshl_b32 s32, s{SCB}, 1
    s_add_u32 s32, s32, s31
    s_lshl_b32 s29, s29, 13
    s_lshl_b32 s31, s31, 13
    s_add_u32 s31, s31, 16384
    v_add_u32 v4, s29, v3
    v_add_u32 v5, s31, v3
    s_lshl_b32 s40, s30, 5
    s_lshl_b32 s41, s32, 1
    s_add_u32 s40, s40, s41
    s_lshl_b32 s40, s40, 10
    s_add_u32 s41, s40, {RES}
    buffer_load_dwordx4 v[{R}:{R+3}], v3, s[20:23], s41 offen {ld}
    buffer_load_dwordx4 v[{R+4}:{R+7}], v3, s[20:23], s41 offen offset:1024 {ld}
    """)
    for r in range(16): k(f"v_mov_b32 v{ACC+r}, 0")
    k("v_mov_b32 v6, v4")
    k("v_mov_b32 v7, v5")
    if mode == 'down':
        srd(k, 52, 18, 2*MB)
        k(f"""
        v_and_b32 v96, 31, v2
        v_lshlrev_b32 v96, 10, v96
        v_lshrrev_b32 v97, 5, v2
        v_lshl_add_u32 v96, v97, 4, v96
        s_lshl_b32 s47, s30, 15
        s_lshl_b32 s48, s32, 6
        s_add_u32 s47, s47, s48
        """)
    else:
        k(f"""
        s_lshl_b32 s47, s32, 14
        s_lshl_b32 s48, s30, 8
        s_add_u32 s47, s47, s48
        s_add_u32 s47, s47, {ST}
        v_lshlrev_b32 v96, 3, v2
        s_add_u32 s41, s40, {HF}
        s_mov_b32 s46, {hex(ONES)}
        """)
    k("s_mov_b32 s45, 0xffff0000")
    k("s_mov_b32 s43, 0")
    k("s_mov_b32 s44, 0")
    k("s_barrier")
    stamp(k, sb)
    ml = k.label("rml")
    k.place(ml)
    k("s_barrier")
    def rd(u):
        k(f"ds_read_b128 v[{FB+8*u}:{FB+8*u+3}], v6 offset:{u*1024}")
        k(f"ds_read_b128 v[{FB+8*u+4}:{FB+8*u+7}], v7 offset:{u*1024}")
    for u in range(6): rd(u)
    for u in range(8):
        issued = min(8, u + 6)
        k(f"s_waitcnt lgkmcnt({2*(issued - u - 1)})")
        k(f"{MFMA} v[{ACC}:{ACC+15}], v[{FB+8*u+4}:{FB+8*u+7}], v[{FB+8*u}:{FB+8*u+3}], v[{ACC}:{ACC+15}]")
        if u + 6 < 8: rd(u + 6)
        if u == 2:
            k("s_add_u32 s44, s44, 32768")
            k(f"s_cmp_eq_u32 s44, {RING*32768}")
            k("s_cselect_b32 s44, 0, s44")
            k("v_add_u32 v6, s44, v4")
            k("v_add_u32 v7, s44, v5")
            k("s_add_u32 s43, s43, 1")
            k(f"s_cmp_lt_u32 s43, {NCH}")
    k(f"s_cbranch_scc1 {ml}")
    stamp(k, sb + 1)
    U = FB
    k("s_waitcnt vmcnt(0)")
    for d in range(8):
        k(f"v_lshlrev_b32 v{U+2*d}, 16, v{R+d}")
        k(f"v_and_b32 v{U+2*d+1}, s45, v{R+d}")
    for r in range(0, 16, 2):
        k(f"v_pk_add_f32 v[{ACC+r}:{ACC+r+1}], v[{ACC+r}:{ACC+r+1}], v[{U+r}:{U+r+1}]")
    P = 8
    for d in range(8):
        k(f"v_cvt_pk_bf16_f32 v{P+d}, v{ACC+2*d}, v{ACC+2*d+1}")
    if mode == 'wo':
        k(f"buffer_store_dwordx4 v[{P}:{P+3}], v3, s[20:23], s41 offen {st}")
        k(f"buffer_store_dwordx4 v[{P+4}:{P+7}], v3, s[20:23], s41 offen offset:1024 {st}")
        SX, SQ = 32, 33
        k(f"v_dot2_f32_bf16 v{SX}, v{P}, s46, 0")
        k(f"v_dot2_f32_bf16 v{SQ}, v{P}, v{P}, 0")
        for d in range(1, 8):
            k(f"v_dot2_f32_bf16 v{SX}, v{P+d}, s46, v{SX}")
            k(f"v_dot2_f32_bf16 v{SQ}, v{P+d}, v{P+d}, v{SQ}")
        k.nop(3)
        half_sum(k, SX, 34, 35)
        half_sum(k, SQ, 34, 35)
        k("s_mov_b32 exec_hi, 0")
        k(f"buffer_store_dwordx2 v[{SX}:{SQ}], v96, s[20:23], s47 offen {st}")
        k("s_mov_b64 exec, -1")
        k("s_waitcnt vmcnt(0)")
        k("s_barrier")
    else:
        k.nop(2)
        k(f"""
        v_permlane32_swap_b32 v{P}, v{P+2}
        v_permlane32_swap_b32 v{P+1}, v{P+3}
        v_permlane32_swap_b32 v{P+4}, v{P+6}
        v_permlane32_swap_b32 v{P+5}, v{P+7}
        """)
        k.nop(1)
        k(f"buffer_store_dwordx4 v[{P}:{P+3}], v96, s[52:55], s47 offen")
        k(f"buffer_store_dwordx4 v[{P+4}:{P+7}], v96, s[52:55], s47 offen offset:32")

def res_loader(k, mode):
    c_ = res_cfg(mode); NKS, NCH, RING = c_['NKS'], c_['NCH'], c_['RING']
    ld = OPT['ld']
    res_map(k)
    k(f"""
    s_sub_u32 s29, s{SW}, 4
    s_lshr_b32 s30, s29, 1
    s_and_b32 s33, s29, 1
    s_lshl_b32 s33, s33, 12
    s_lshl_b32 s31, s27, 1
    s_add_u32 s31, s31, s30
    s_mul_i32 s31, s31, {NKS*1024}
    s_add_u32 s31, s31, s33
    s_add_u32 s31, s31, {c_['BSRC']}
    s_lshl_b32 s32, s28, 1
    s_add_u32 s32, s32, s30
    s_mul_i32 s32, s32, {NKS*1024}
    s_add_u32 s32, s32, s33
    s_add_u32 s32, s32, {c_['ASRC']}
    s_lshl_b32 s34, s30, 13
    s_add_u32 s34, s34, s33
    s_lshr_b32 s36, s33, 12
    s_mul_i32 s36, s36, 0x40000000
    """)
    def part(c, isA):
        k(f"s_add_u32 s35, s{32 if isA else 31}, {c*8192}")
        k(f"s_add_u32 m0, s34, {(c % RING)*32768 + (16384 if isA else 0)}")
        k.nop(1)
        for q in range(4):
            if 8*c + 4 + q == NKS: k("s_add_u32 s35, s35, s36")
            k(f"buffer_load_dwordx4 v3, s[20:23], s35 offen" + (f" offset:{q*1024}" if q else "") + f" {ld} lds")
    npre = min(RING, NCH)
    for c in range(npre): part(c, True)
    k("s_barrier")
    order = [('A', c) for c in range(npre)]
    depth = OPT.get('depth5', 3) if mode == 'down' else OPT.get('depth3', 2)
    nb = min(depth, NCH)
    for c in range(nb):
        part(c, False); order.append(('B', c))
    for c in range(NCH):
        last = max(order.index(('A', c)), order.index(('B', c)))
        k(f"s_waitcnt vmcnt({4*(len(order) - 1 - last)})")
        k("s_barrier")
        if c >= 1 and c - 1 + RING < NCH:
            part(c - 1 + RING, True); order.append(('A', c - 1 + RING))
        if nb < NCH:
            assert nb - RING <= c - 1
            part(nb, False); order.append(('B', nb)); nb += 1

SLOT4, RING4, NCH4 = 20480, 8, 16
def p4_map(k):
    k(f"""
    s_lshl_b32 s27, s{SXCD}, 1
    s_cmp_ge_u32 s{SIDX}, 15
    s_cselect_b32 s28, 1, 0
    s_add_u32 s27, s27, s28
    s_mul_i32 s28, s28, 15
    s_sub_u32 s28, s{SIDX}, s28
    s_min_u32 s28, s28, 15
    """)

def p4_consumer(k):
    ld, st = OPT['ld'], OPT['st']
    skip, fin = k.label("p4skip"), k.label("p4fin")
    XB = [8, 12, 16, 20]; WB = [24, 48]; ACC = 72; T = [0, 1, 2, 4]; RS, NB = 5, 3; STR = 24
    p4_map(k)
    k("s_cmp_eq_u32 s28, 15")
    k(f"s_cbranch_scc1 {skip}")
    k(f"""
    s_lshl_b32 s30, s27, 2
    s_add_u32 s30, s30, s{SW}
    s_lshl_b32 s33, s{SW}, 11
    s_add_u32 s33, s33, 12288
    v_mov_b32 v6, v3
    v_add_u32 v7, s33, v3
    s_mul_i32 s40, s30, 86
    s_mul_i32 s41, s28, 6
    s_add_u32 s40, s40, s41
    s_lshl_b32 s40, s40, 10
    s_add_u32 s40, s40, {ACT}
    s_mov_b32 s47, 0
    s_lshl_b32 s32, s30, 8
    s_add_u32 s32, s32, {ST}
    v_and_b32 v4, 31, v2
    v_lshlrev_b32 v4, 3, v4
    v_lshrrev_b32 v8, 5, v2
    v_lshl_add_u32 v4, v8, 14, v4
    s_mov_b32 s38, 0xffff0000
    """)
    for r in range(96): k(f"v_mov_b32 v{ACC+r}, 0")
    k("s_barrier")
    stamp(k, 9)
    for i in range(8):
        k(f"s_add_u32 s35, s32, {i*32768}")
        k(f"buffer_load_dwordx2 v[{STR+2*i}:{STR+2*i+1}], v4, s[20:23], s35 offen {ld}")
    k("s_waitcnt vmcnt(0)")
    for i in range(1, 8):
        k(f"v_add_f32 v{STR}, v{STR}, v{STR+2*i}")
        k(f"v_add_f32 v{STR+1}, v{STR+1}, v{STR+2*i+1}")
    half_sum(k, STR, 0, 1)
    half_sum(k, STR+1, 0, 1)
    finish_stats(k, STR, STR+1, RS, NB, 0, 1)
    def wrd(u, b, mt):
        return f"ds_read_b128 v[{b+4*mt}:{b+4*mt+3}], v6 offset:{mt*2048 + (u & 1)*1024}"
    def xrd(u, b):
        return f"ds_read_b128 v[{b}:{b+3}], v7 offset:{(u & 1)*1024}"
    k("s_barrier")
    stamp(k, 10)
    k(xrd(0, XB[0])); k(xrd(1, XB[1]))
    for mt in range(6): k(wrd(0, WB[0], mt))
    k(f"s_mov_b32 s48, 0")
    k("s_waitcnt lgkmcnt(7)")
    for o in norm4(XB[0], T, RS, NB, 38): k(o)
    ml = k.label("p4ml")
    k(".p2align 3")
    k.place(ml)
    for u in range(4):
        if not (u & 1):
            k(f"s_add_u32 s48, s48, 1")
            k(f"s_and_b32 s48, s48, {RING4-1}")
            k(f"s_cselect_b32 s49, s50, s51")
            k("s_barrier")
            k("v_add_u32 v7, s49, v7")
        else:
            k("v_add_u32 v6, s49, v6")
            if u == 3:
                k("s_add_u32 s47, s47, 1")
                k(f"s_cmp_lt_u32 s47, {NCH4//2}")
        b, x = WB[u & 1], XB[u]
        nb_ = WB[(u+1) & 1]
        ops = norm4(XB[(u+1) & 3], T, RS, NB, 38)
        cuts = [0, 3, 7, 10, 14, 17, 20]
        for mt in range(6):
            if mt == 0: k("s_waitcnt lgkmcnt(3)")
            if mt == 3: k("s_waitcnt lgkmcnt(4)")
            k(f"{MFMA} v[{ACC+16*mt}:{ACC+16*mt+15}], v[{b+4*mt}:{b+4*mt+3}], v[{x}:{x+3}], v[{ACC+16*mt}:{ACC+16*mt+15}]")
            if mt == 0: k(xrd(u, XB[(u+2) & 3]))
            k(wrd(u+1, nb_, mt))
            for o in ops[cuts[mt]:cuts[mt+1]]: k(o)
    k(f"s_cbranch_scc1 {ml}")
    stamp(k, 11)
    lane_regs(k)
    P = 24
    for tile in range(3):
        G, U = ACC + 16*tile, ACC + 48 + 16*tile
        if tile == 1:
            k(f"s_cmp_eq_u32 s28, 14")
            k(f"s_cbranch_scc1 {fin}")
        for r in range(16): k(f"v_max_f32 v{G+r}, 0, v{G+r}")
        for r in range(0, 16, 2):
            k(f"v_pk_mul_f32 v[{G+r}:{G+r+1}], v[{G+r}:{G+r+1}], v[{U+r}:{U+r+1}]")
        if tile == 0: k("s_waitcnt lgkmcnt(0)")
        for d in range(8):
            k(f"v_cvt_pk_bf16_f32 v{P+8*tile+d}, v{G+2*d}, v{G+2*d+1}")
        k(f"s_add_u32 s41, s40, {tile*2048}")
        k(f"buffer_store_dwordx4 v[{P+8*tile}:{P+8*tile+3}], v3, s[20:23], s41 offen {st}")
        k(f"buffer_store_dwordx4 v[{P+8*tile+4}:{P+8*tile+7}], v3, s[20:23], s41 offen offset:1024 {st}")
    k.place(fin)
    k("s_waitcnt vmcnt(0)")
    k.place(skip)
    k("s_barrier")

def p4_loader(k):
    ld = OPT['ld']
    D = OPT['depth4']
    skip = k.label("p4lskip")
    p4_map(k)
    k("s_cmp_eq_u32 s28, 15")
    k(f"s_cbranch_scc1 {skip}")
    k(f"""
    s_sub_u32 s29, s{SW}, 4
    s_lshl_b32 s30, s27, 2
    s_add_u32 s30, s30, s29
    s_lshl_b32 s31, s30, 15
    s_add_u32 s31, s31, {HF}
    s_mul_i32 s33, s28, {3*32768}
    s_and_b32 s34, s29, 1
    s_lshl_b32 s34, s34, 10
    s_add_u32 s33, s33, s34
    s_lshr_b32 s35, s29, 1
    s_mul_i32 s37, s35, {WUF - WGF}
    s_add_u32 s33, s33, s37
    s_mul_i32 s35, s35, 6144
    s_add_u32 s34, s34, s35
    s_lshl_b32 s36, s29, 11
    """)
    order = []
    def hpart(c):
        k(f"s_add_u32 s35, s31, {c*2048}")
        dma(k, 3, 20, 35, f"s36, {(c % RING4)*SLOT4 + 12288}", 0, ld)
        k(f"buffer_load_dwordx4 v3, s[20:23], s35 offen offset:1024 {ld} lds")
        order.extend([('h', c)]*2)
    def wpart(c):
        for t in range(3):
            k(f"s_add_u32 s35, s33, {WGF + t*32768 + c*2048}")
            dma(k, 3, 20, 35, f"s34, {(c % RING4)*SLOT4 + t*2048}", 0, ld)
        order.extend([('w', c)]*3)
    for c in range(RING4): wpart(c)
    k("s_barrier")
    nh = 4
    for c in range(nh): hpart(c)
    nw = RING4
    for c in range(NCH4 + 1):
        if c < NCH4:
            last = max(i for i, o in enumerate(order) if o[1] == c)
            k(f"s_waitcnt vmcnt({len(order) - 1 - last})")
        k("s_barrier")
        m = 0
        while nh < NCH4 and nh <= c + D and m < 2:
            assert nh - RING4 <= c - 2
            hpart(nh); nh += 1; m += 1
        if nw < NCH4 and nw - RING4 <= c - 2:
            wpart(nw); nw += 1
    k.place(skip)
    k("s_barrier")

def poller(k):
    stamp(k, 5)
    k("s_barrier")
    stamp(k, 6)
    k(f"s_lshl_b32 s43, s{SXCD}, 5")
    k(f"s_add_u32 s43, s43, 256")
    k(f"s_add_u32 s42, s43, s{SIDX}")
    flag_set(k, 42)
    k(f"s_mov_b32 s42, {CW}")
    poll(k, 42, 128, 8)
    k("s_barrier")
    flag_poll(k, 43)
    stamp(k, 7)
    k("s_barrier")
    for _ in range(4): k("s_barrier")
    k("s_barrier")
    stamp(k, 8)
    res_map(k)
    k("s_lshr_b32 s43, s27, 1")
    k(f"s_add_u32 s42, s43, {C3}")
    arrive(k, 42)
    idle = k.label("pidle")
    p4_map(k)
    k("s_cmp_eq_u32 s28, 15")
    k(f"s_cbranch_scc1 {idle}")
    k(f"s_add_u32 s42, s27, {C3}")
    poll(k, 42, 16)
    stamp(k, 9)
    k("s_barrier")
    for _ in range(NCH4 + 1): k("s_barrier")
    k("s_barrier")
    stamp(k, 10)
    k(f"s_add_u32 s42, s27, {C4}")
    arrive(k, 42)
    j = k.label("pjoin")
    k(f"s_branch {j}")
    k.place(idle)
    k("s_barrier")
    k.place(j)
    k(f"s_add_u32 s42, s43, {C4}")
    poll(k, 42, 15)
    stamp(k, 11)
    k("s_barrier")
    diag_end(k)

def diag_end(k):
    if not DIAG: return
    k("s_waitcnt vmcnt(0)")
    stamp(k, 14)
    k("s_memrealtime s[94:95]")
    k(f"s_lshl_b32 s40, s2, 4")
    k(f"s_add_u32 s40, s40, s{SW}")
    k(f"s_lshl_b32 s40, s40, 7")
    k(f"s_add_u32 s40, s40, {DIAGB}")
    k("s_waitcnt lgkmcnt(0)")
    for i in range(15):
        k(f"s_sub_u32 s{64+2*i}, s{64+2*i}, s96")
        k(f"v_mov_b32 v{8+i}, s{64+2*i}")
    k("v_mov_b32 v23, s94")
    k("v_mov_b32 v24, s98")
    k("v_mov_b32 v4, 0")
    k("s_mov_b64 exec, 1")
    for i in range(4):
        k(f"buffer_store_dwordx4 v[{8+4*i}:{11+4*i}], v4, s[20:23], s40 offen offset:{16*i}")
    k(f"buffer_store_dword v24, v4, s[20:23], s40 offen offset:64")
    if OPT.get('dbgout') is not None:
        l = k.label("dbo")
        k(f"s_lshl_b32 s41, s{SW}, 8")
        k(f"s_or_b32 s41, s41, s2")
        k(f"s_cmp_lg_u32 s41, {OPT['dbgout']}")
        k(f"s_cbranch_scc1 {l}")
        k("v_sub_u32 v8, v23, v24")
        for i in range(4):
            k(f"global_store_dwordx4 v4, v[{8+4*i}:{11+4*i}], s[60:61] offset:{4+16*i}")
        k.place(l)

def build(path):
    k = Kern(NAME)
    done, roleL, roleH, p2 = k.label("done"), k.label("L"), k.label("H"), k.label("p2")
    tail = []
    k(f"""
    s_cmp_ge_u32 s2, 256
    s_cbranch_scc1 {done}
    s_load_dwordx16 s[4:19], s[0:1], 0
    s_load_dwordx4 s[60:63], s[0:1], 64
    """)
    if DIAG:
        k("s_memtime s[96:97]")
        k("s_memrealtime s[98:99]")
    k(f"""
    v_lshrrev_b32 v1, 6, v0
    v_and_b32 v2, 63, v0
    s_and_b32 s{SXCD}, s2, 7
    s_lshr_b32 s{SIDX}, s2, 3
    v_readfirstlane_b32 s{SW}, v1
    v_lshlrev_b32 v3, 4, v2
    s_mov_b32 s50, {SLOT4}
    s_mov_b32 s51, {-(RING4-1)*SLOT4}
    """)
    p1_map(k)
    k("s_waitcnt lgkmcnt(0)")
    srd(k, 20, 62, WS_SIZE)
    k(f"s_cmp_ge_u32 s{SW}, 8")
    k(f"s_cbranch_scc1 {roleH}")
    k(f"s_cmp_ge_u32 s{SW}, 4")
    k(f"s_cbranch_scc1 {roleL}")
    p1_consumer(k)
    k.place(p2)
    p2_compute(k, tail)
    L3 = k.label("L3")
    k(f"s_cmp_ge_u32 s{SW}, 4")
    k(f"s_cbranch_scc1 {L3}")
    res_consumer(k, 'wo', 7)
    p4_consumer(k)
    res_consumer(k, 'down', 12)
    diag_end(k)
    k.place(done)
    k("s_endpgm")
    k.place(roleL)
    p1_loader(k)
    k(f"s_branch {p2}")
    k.place(L3)
    res_loader(k, 'wo')
    k("s_barrier")
    p4_loader(k)
    res_loader(k, 'down')
    diag_end(k)
    k("s_endpgm")
    k.place(roleH)
    p1_helper(k)
    p2_helper(k, done)
    poller(k)
    k("s_endpgm")
    for f in tail: f(k)
    hdr = """; Kernarg: 0 A_x, 8 A_wqkv, 16 A_wo, 24 B_x (unused), 32 W_gate, 40 W_up, 48 W_down, 56 out, 64 debug, 72 ws
; pre-LN transformer block in one persistent launch (256 workgroups, one per CU); generated by gen/gen4.py
; @launch grid=(256,1,1) block=(768,1,1) lds=163840
.amdgcn_target "amdgcn-amd-amdhsa--gfx950"
"""
    open(path, "w").write(hdr + k.text(168, 102 if DIAG else 64))

if __name__ == "__main__":
    for a in sys.argv[2:]:
        if "=" in a:
            kk, vv = a.split("=")
            OPT[kk] = int(vv) if vv.lstrip("-").isdigit() else vv.replace("+", " ")
    DIAG = "--diag" in sys.argv
    build(sys.argv[1])
```

```python
import sys, math
from dsl import Kern
from gen import (MB, QF, KF, VF, OF, XF, HF, ACT, WOF, WGF, WUF, WDF, ST, WS_SIZE, f32, ONES, MFMA, srd, half_sum,
                 finish_stats)
CNT = 25*MB
DIAGB = 28*MB
C1, C2, C3, C4, CW = 0, 8, 16, 32, 48
CSTRIP = 131072
PROG = CSTRIP + 10240
NAME = "sequential_preLN__softmax_full_mha__glu_gated_reglu__prompt_kernel"
OPT = dict(slp=8, kvd=2, d1=4, prio=1, ld="sc1", st="sc1", nb2=4, depth4=5)
SXCD, SIDX, SW = 24, 25, 26
MF16 = "v_mfma_f32_16x16x32_bf16"
DIAG = False

def stamp(k, i):
    if DIAG: k(f"s_memtime s[{64+2*i}:{65+2*i}]")

def norm4(x, t, rs, nb, smask):
    ops = []
    for d in range(4):
        a, b = t[2*(d & 1)], t[2*(d & 1) + 1]
        ops.append([f"v_lshlrev_b32 v{a}, 16, v{x+d}", f"v_and_b32 v{b}, s{smask}, v{x+d}",
                    f"v_fma_f32 v{a}, v{a}, v{rs}, v{nb}", f"v_fma_f32 v{b}, v{b}, v{rs}, v{nb}",
                    f"v_cvt_pk_bf16_f32 v{x+d}, v{a}, v{b}"])
    o = []
    for p in (0, 2):
        for a, b in zip(ops[p], ops[p+1]): o += [a, b]
    return o

def lane_regs(k):
    k("v_mbcnt_lo_u32_b32 v2, -1, 0")
    k("v_mbcnt_hi_u32_b32 v2, -1, v2")
    k("v_lshlrev_b32 v3, 4, v2")

def dma(k, vo, srd_, so, m0expr, off=0, flag=""):
    k(f"s_add_u32 m0, {m0expr}")
    k.nop(1)
    k(f"buffer_load_dwordx4 v{vo}, s[{srd_}:{srd_+3}], s{so} offen" + (f" offset:{off}" if off else "") + f" {flag} lds")

def row8_sum(k, regs):
    for ctl in ("quad_perm:[1,0,3,2]", "quad_perm:[2,3,0,1]", "row_half_mirror"):
        k.nop(2)
        for r in regs:
            k(f"v_add_f32_dpp v{r}, v{r}, v{r} {ctl} row_mask:0xf bank_mask:0xf")

def arrive(k, sidx, va=8, vb=9):
    k(f"s_lshl_b32 s40, s{sidx}, 8")
    k(f"s_add_u32 s40, s40, {CNT}")
    k("s_mov_b64 exec, 1")
    k(f"v_mov_b32 v{va}, 1")
    k(f"v_mov_b32 v{vb}, 0")
    k(f"buffer_atomic_add v{va}, v{vb}, s[20:23], s40 offen sc1")

FLG = CNT + 65536
F1, F2, FX, F3, F4 = 0, 256, 512, 768, 1024
SLOC = 59
def pub_store(k, lines):
    if not OPT.get('loc', 1):
        for l in lines: k(l + " " + OPT['st'])
        return
    a, b = k.label("ps"), k.label("pe")
    k(f"s_cmp_eq_u32 s{SLOC}, 1")
    k(f"s_cbranch_scc1 {a}")
    for l in lines: k(l + " " + OPT['st'])
    k(f"s_branch {b}")
    k.place(a)
    for l in lines: k(l)
    k.place(b)

def flag_set(k, sline, val="1", local=False):
    k(f"s_lshl_b32 s40, s{sline}, 7")
    k(f"s_add_u32 s40, s40, {FLG}")
    k("s_mov_b64 exec, 1")
    k(f"v_mov_b32 v8, {val}")
    k("v_mov_b32 v9, 0")
    if local: pub_store(k, ["buffer_store_dword v8, v9, s[20:23], s40 offen"])
    else: k("buffer_store_dword v8, v9, s[20:23], s40 offen sc1")

def flag_poll(k, sline, n=32, slp=None):
    poll(k, sline, 1, n, slp, sh=7, base=FLG)

def poll(k, sidx, target, nlines=1, slp=None, sh=8, base=None):
    lp, out = k.label("poll"), k.label("pollx")
    k(f"s_lshl_b32 s40, s{sidx}, {sh}")
    k(f"s_add_u32 s40, s40, {CNT if base is None else base}")
    k(f"s_mov_b32 exec_lo, {hex((1 << nlines) - 1)}")
    k("s_mov_b32 exec_hi, 0")
    k(f"v_lshlrev_b32 v9, {sh}, v2")
    k("s_mov_b32 s41, 0")
    k.place(lp)
    slp = OPT.get('slp', 2) if slp is None else slp
    if slp: k(f"s_sleep {slp}")
    k("buffer_load_dword v10, v9, s[20:23], s40 offen sc1")
    k("s_add_u32 s41, s41, 1")
    k("s_cmp_gt_u32 s41, 0x40000")
    k(f"s_cbranch_scc1 {out}")
    k("s_waitcnt vmcnt(0)")
    k(f"v_cmp_gt_u32 vcc, {target}, v10" if target <= 64 else f"v_cmp_gt_u32 vcc, {hex(target)}, v10")
    k(f"s_cmp_lg_u64 vcc, 0")
    k(f"s_cbranch_scc1 {lp}")
    k.place(out)
    k("s_waitcnt vmcnt(0)")
    k("s_mov_b64 exec, -1")

def touch(k, base_s, nlines, reg=40):
    k("v_lshlrev_b32 v12, 7, v2")
    for i in range((nlines + 63)//64):
        rem = nlines - 64*i
        if rem < 64:
            k(f"s_mov_b32 exec_lo, {hex((1 << min(rem, 32)) - 1)}")
            k(f"s_mov_b32 exec_hi, {hex((1 << max(rem - 32, 0)) - 1)}")
        k(f"s_add_u32 s41, s{base_s}, {i*8192}")
        k(f"buffer_load_dword v{reg+i}, v12, s[20:23], s41 offen sc1")
    k("s_mov_b64 exec, -1")

def p1_map(k):
    k(f"""
    s_lshr_b32 s27, s{SXCD}, 1
    s_lshl_b32 s27, s27, 3
    s_and_b32 s28, s{SIDX}, 7
    s_add_u32 s27, s27, s28
    s_and_b32 s28, s{SXCD}, 1
    s_lshl_b32 s28, s28, 2
    s_lshr_b32 s29, s{SIDX}, 3
    s_add_u32 s28, s28, s29
    """)
EXC = 65536 + 3*12288
EXS = 65536 + 2*12288

def p1_consumer(k):
    SRB, SCB = 27, 28
    VXA, VWA = 12, 16
    WB = [20, 32, 44, 56]; XB = [68, 72, 76, 80]; ACC = 84; CS = 132; SEL = 144
    k(f"""
    v_and_b32 v8, 31, v2
    v_lshrrev_b32 v4, 5, v2
    v_lshrrev_b32 v5, 1, v8
    v_and_b32 v5, 7, v5
    s_and_b32 s34, s{SW}, 1
    s_lshl_b32 s35, s34, 12
    v_lshlrev_b32 v6, 7, v8
    v_add_u32 v6, s35, v6
    """)
    for u in range(4):
        k(f"v_add_u32 v7, {2*u}, v4")
        k(f"v_xor_b32 v7, v7, v5")
        k(f"v_lshl_add_u32 v{VXA+u}, v7, 4, v6")
    k(f"""
    s_lshr_b32 s36, s{SW}, 1
    v_bfe_u32 v5, v2, 2, 2
    v_lshl_add_u32 v6, v4, 3, v5
    v_lshlrev_b32 v6, 7, v6
    v_bfe_u32 v7, v2, 4, 1
    v_lshlrev_b32 v7, 1, v7
    v_bfe_u32 v11, v2, 1, 1
    v_add_u32 v7, v7, v11
    s_lshl_b32 s37, s36, 2
    v_add_u32 v7, s37, v7
    v_lshrrev_b32 v5, 1, v5
    v_lshlrev_b32 v5, 2, v5
    v_xor_b32 v7, v7, v5
    v_lshl_add_u32 v6, v7, 4, v6
    v_and_b32 v7, 1, v2
    v_lshl_add_u32 v{VWA+1}, v7, 3, v6
    v_add_u32 v{VWA+1}, 0x10000, v{VWA+1}
    v_mov_b32 v{VWA}, v{VWA+1}
    v_and_b32 v5, 15, v2
    v_bfe_u32 v7, v2, 4, 1
    v_cmp_eq_u32 vcc, v5, v7
    v_mov_b32 v6, {hex(ONES)}
    s_mov_b32 s47, 0
    v_cndmask_b32 v{SEL}, 0, v6, vcc
    """)
    for i in range(1, 4): k(f"v_mov_b32 v{SEL+i}, v{SEL}")
    for i in range(60): k(f"v_mov_b32 v{ACC+i}, 0")
    k(f"""
    s_lshl_b32 s40, s{SCB}, 2
    s_lshl_b32 s41, s36, 1
    s_add_u32 s40, s40, s41
    s_lshl_b32 s40, s40, 16
    s_lshl_b32 s41, s{SRB}, 1
    s_add_u32 s41, s41, s34
    s_lshl_b32 s41, s41, 10
    s_add_u32 s40, s40, s41
    v_bfe_u32 v9, v2, 4, 1
    v_lshlrev_b32 v9, 16, v9
    v_lshl_add_u32 v9, v4, 8, v9
    v_lshl_add_u32 v9, v5, 4, v9
    s_add_u32 s43, s40, {QF + 65536}
    s_add_u32 s44, s40, {KF}
    s_add_u32 s45, s40, {KF + 65536}
    s_add_u32 s46, s40, {VF}
    s_mov_b32 s48, 0
    """)
    def xrd(u, b): k(f"ds_read_b128 v[{b}:{b+3}], v{VXA+u}")
    def wrd(u, b, p):
        for r in range(2):
            k(f"ds_read_b64_tr_b16 v[{b+4*p+2*r}:{b+4*p+2*r+1}], v{VWA} offset:{(u >> 1)*12288 + p*4096 + (u & 1)*2048 + r*512}")
    stamp(k, 0)
    k("s_barrier")
    stamp(k, 1)
    for u in range(2):
        xrd(u, XB[u])
        for p in range(3): wrd(u, WB[u], p)
    odd, ep = k.label("p1odd"), k.label("p1ep")
    k("s_cmp_eq_u32 s34, 1")
    k(f"s_cbranch_scc1 {odd}")
    for par in range(2):
        if par == 1: k.place(odd)
        ml = k.label("p1ml")
        k(".p2align 3")
        k.place(ml)
        for u in range(4):
            if u == 2:
                k("s_add_u32 s48, s48, 24576")
                k(f"s_cmp_eq_u32 s48, {8*12288}")
                k("s_cselect_b32 s48, 0, s48")
                k(f"v_add_u32 v{VXA}, 8192, v{VXA}")
                k(f"v_add_u32 v{VXA+1}, 8192, v{VXA+1}")
                k("s_barrier")
                k(f"v_add_u32 v{VWA}, s48, v{VWA+1}")
            b, x = WB[u], XB[u]
            nu = (u+2) & 3
            cs = (u & 1) == par and not OPT.get('z_nocs')
            k("s_waitcnt lgkmcnt(7)")
            k(f"{MFMA} v[{ACC}:{ACC+15}], v[{b}:{b+3}], v[{x}:{x+3}], v[{ACC}:{ACC+15}]")
            xrd(nu, XB[nu])
            wrd(nu, WB[nu], 0)
            if cs: k(f"{MF16} v[{CS}:{CS+3}], v[{SEL}:{SEL+3}], v[{b}:{b+3}], v[{CS}:{CS+3}]")
            k(f"{MFMA} v[{ACC+16}:{ACC+31}], v[{b+4}:{b+7}], v[{x}:{x+3}], v[{ACC+16}:{ACC+31}]")
            wrd(nu, WB[nu], 1)
            if cs: k(f"{MF16} v[{CS+4}:{CS+7}], v[{SEL}:{SEL+3}], v[{b+4}:{b+7}], v[{CS+4}:{CS+7}]")
            k(f"{MFMA} v[{ACC+32}:{ACC+47}], v[{x}:{x+3}], v[{b+8}:{b+11}], v[{ACC+32}:{ACC+47}]")
            wrd(nu, WB[nu], 2)
            if cs: k(f"{MF16} v[{CS+8}:{CS+11}], v[{SEL}:{SEL+3}], v[{b+8}:{b+11}], v[{CS+8}:{CS+11}]")
            if u == 3:
                for q in range(2, 4): k(f"v_add_u32 v{VXA+q}, 8192, v{VXA+q}")
                k("s_add_u32 s47, s47, 1")
                k("s_cmp_lt_u32 s47, 8")
        k(f"s_cbranch_scc1 {ml}")
        if par == 0: k(f"s_branch {ep}")
    k.place(ep)
    stamp(k, 2)
    k(f"""
    s_lshl_b32 s35, s34, 1
    s_add_u32 s35, s35, s36
    s_mul_i32 s35, s35, 384
    s_add_u32 s35, s35, {EXC}
    v_lshl_add_u32 v5, v2, 2, s35
    s_mul_i32 s37, s36, 384
    s_add_u32 s37, s37, {EXC}
    v_lshl_add_u32 v6, v4, 4, s37
    v_lshl_add_u32 v7, v8, 2, s37
    s_lshl_b32 s38, s34, 7
    s_add_u32 s38, s38, {EXS}
    v_lshl_add_u32 v10, v8, 2, s38
    v_lshl_add_u32 v11, v4, 4, s38
    s_mov_b64 exec, 0xffff
    """)
    for p in range(3):
        k(f"ds_write2_b32 v5, v{CS+4*p}, v{CS+4*p+1} offset0:{32*p} offset1:{32*p+16}")
    k("s_mov_b64 exec, -1")
    k("s_waitcnt lgkmcnt(0)")
    k("s_barrier")
    A, B, RSV, NBV = 20, 36, 52, 68
    RS, NB, CV = 132, 134, 136
    k(f"ds_read_b32 v{RS}, v10")
    k(f"ds_read_b32 v{NB}, v10 offset:256")
    def csrd(p):
        for g in range(4):
            k(f"ds_read_b128 v[{A+4*g}:{A+4*g+3}], v6 offset:{p*128 + g*32}")
            k(f"ds_read_b128 v[{B+4*g}:{B+4*g+3}], v6 offset:{768 + p*128 + g*32}")
    csrd(0)
    k(f"ds_read_b32 v{CV}, v7 offset:256")
    k(f"ds_read_b32 v{CV+1}, v7 offset:{768 + 256}")
    k(f"s_mov_b32 s42, {hex(f32(0.25*math.log2(math.e)))}")
    k("s_waitcnt lgkmcnt(10)")
    k(f"v_mul_f32 v138, s42, v{RS}")
    k(f"v_mul_f32 v140, s42, v{NB}")
    st = OPT['st']
    P = 144
    def fold(acc, rs, nb):
        for r in range(0, 16, 2):
            k(f"v_pk_add_f32 v[{A+r}:{A+r+1}], v[{A+r}:{A+r+1}], v[{B+r}:{B+r+1}]")
        for r in range(0, 16, 2):
            k(f"v_pk_mul_f32 v[{A+r}:{A+r+1}], v[{A+r}:{A+r+1}], v[{nb}:{nb+1}] op_sel_hi:[1,0]")
        for r in range(0, 16, 2):
            k(f"v_pk_fma_f32 v[{acc+r}:{acc+r+1}], v[{acc+r}:{acc+r+1}], v[{rs}:{rs+1}], v[{A+r}:{A+r+1}] op_sel_hi:[1,0,1]")
    def pack(acc, p, so0, so1, va, off1=0):
        for d in range(8):
            k(f"v_cvt_pk_bf16_f32 v{p+d}, v{acc+2*d}, v{acc+2*d+1}")
            if d == 3: k(f"buffer_store_dwordx4 v[{p}:{p+3}], v{va}, s[20:23], s{so0} offen {st}")
        k(f"buffer_store_dwordx4 v[{p+4}:{p+7}], v{va}, s[20:23], s{so1} offen" + (f" offset:{off1}" if off1 else "") + f" {st}")
    k("s_waitcnt lgkmcnt(2)")
    fold(ACC, 138, 140)
    csrd(1)
    for g in range(4):
        k(f"ds_read_b128 v[{RSV+4*g}:{RSV+4*g+3}], v11 offset:{g*32}")
    pack(ACC, P, 40, 43, 3)
    k("s_waitcnt lgkmcnt(4)")
    for g in range(4):
        k(f"ds_read_b128 v[{NBV+4*g}:{NBV+4*g+3}], v11 offset:{256 + g*32}")
    fold(ACC+16, RS, NB)
    pack(ACC+16, P+8, 44, 45, 3)
    k(f"v_add_f32 v{CV}, v{CV}, v{CV+1}")
    k("s_waitcnt lgkmcnt(0)")
    for r in range(0, 16, 2):
        k(f"v_pk_mul_f32 v[{NBV+r}:{NBV+r+1}], v[{NBV+r}:{NBV+r+1}], v[{CV}:{CV+1}] op_sel_hi:[1,0]")
    for r in range(0, 16, 2):
        k(f"v_pk_fma_f32 v[{ACC+32+r}:{ACC+33+r}], v[{ACC+32+r}:{ACC+33+r}], v[{RSV+r}:{RSV+r+1}], v[{NBV+r}:{NBV+r+1}]")
    pack(ACC+32, P+16, 46, 46, 9, 512)
    stamp(k, 3)
    k("s_waitcnt vmcnt(0)")
    k("s_barrier")
    k("s_barrier")

def relayout(k):
    st = OPT['st']
    PRE = [16, 44]
    k(f"""
    v_and_b32 v6, 31, v2
    v_lshrrev_b32 v7, 5, v2
    v_lshlrev_b32 v12, 10, v6
    v_lshl_add_u32 v12, v7, 3, v12
    v_mul_u32_u24 v13, {4*2752}, v7
    v_lshl_add_u32 v13, v6, 1, v13
    v_lshlrev_b32 v14, 12, v7
    v_lshl_add_u32 v14, v6, 1, v14
    s_lshl_b32 s42, s2, 3
    s_lshl_b32 s43, s29, 1
    s_add_u32 s42, s42, s43
    """)
    def wload(reg, voffreg, soffreg, pitch):
        for j in range(8):
            row = 8*(j >> 2) + (j & 3)
            k(f"s_add_u32 s49, s{soffreg}, {row*pitch}")
            k(f"buffer_load_ushort v{reg+j}, v{voffreg}, s[44:47], s49 offen")
    def item_loads(i):
        P_, D0 = PRE[i], (37, 52)[i]
        k(f"s_add_u32 s{D0+2}, s42, {i}")
        G = D0 + 2
        srd(k, 44, 4, 2*MB)
        k(f"""
        s_lshr_b32 s43, s{G}, 5
        s_lshl_b32 s43, s43, 15
        s_and_b32 s48, s{G}, 31
        s_lshl_b32 s48, s48, 5
        s_add_u32 s43, s43, s48
        buffer_load_dwordx2 v[{P_}:{P_+1}], v12, s[44:47], s43 offen
        buffer_load_dwordx2 v[{P_+2}:{P_+3}], v12, s[44:47], s43 offen offset:16
        s_mov_b32 s50, {(2**32 + 42)//43}
        s_mul_hi_u32 s51, s{G}, s50
        s_mul_i32 s58, s51, 43
        s_sub_u32 s58, s{G}, s58
        s_mul_i32 s59, s51, {16*2752}
        s_lshl_b32 s48, s58, 6
        s_add_u32 s59, s59, s48
        s_lshl_b32 s{D0}, s58, 5
        s_add_u32 s{D0}, s{D0}, s51
        s_lshl_b32 s{D0}, s{D0}, 10
        s_cmp_lt_u32 s{G}, 1376
        s_cselect_b32 s50, {512*2752}, 0
        s_mov_b32 s44, s12
        s_and_b32 s45, s13, 0xffff
        s_mov_b32 s46, s50
        """)
        wload(P_+4, 13, 59, 2752)
        k("s_mov_b32 s44, s14")
        k("s_and_b32 s45, s15, 0xffff")
        wload(P_+12, 13, 59, 2752)
        k(f"""
        s_sub_u32 s48, s{G}, 1376
        s_cmp_lt_u32 s{G}, 1376
        s_cselect_b32 s48, s{G}, s48
        s_cselect_b32 s44, s16, s8
        s_cselect_b32 s45, s17, s9
        s_cselect_b32 s46, {1376*1024}, 0
        s_cselect_b32 s50, 86, 32
        s_cselect_b32 s43, {WDF - WOF}, 0
        s_and_b32 s45, s45, 0xffff
        s_sub_u32 s51, s{G}, 1376
        s_cmp_lt_u32 s51, 512
        s_cselect_b32 s46, {512*1024}, s46
        s_and_b32 s58, s48, 15
        s_lshr_b32 s51, s48, 4
        s_lshl_b32 s59, s51, 14
        s_lshl_b32 s48, s58, 6
        s_add_u32 s59, s59, s48
        s_mul_i32 s{D0+1}, s58, s50
        s_add_u32 s{D0+1}, s{D0+1}, s51
        s_lshl_b32 s{D0+1}, s{D0+1}, 10
        s_add_u32 s{D0+1}, s{D0+1}, s43
        """)
        wload(P_+20, 14, 59, 1024)
    def pack_store(reg, dstreg, base):
        for d in range(4):
            k(f"v_lshl_or_b32 v{reg+d}, v{reg+2*d+1}, 16, v{reg+2*d}")
        k(f"s_add_u32 s49, s{dstreg}, {base}")
        k(f"buffer_store_dwordx4 v[{reg}:{reg+3}], v3, s[20:23], s49 offen {st}")
    def item_stores(i):
        P_, D0 = PRE[i], (37, 52)[i]
        G = D0 + 2
        l1, l2 = k.label("is1"), k.label("is2")
        k(f"s_lshl_b32 s43, s{G}, 10")
        k(f"s_add_u32 s43, s43, {XF}")
        k(f"buffer_store_dwordx4 v[{P_}:{P_+3}], v3, s[20:23], s43 offen {st}")
        k(f"s_cmp_lt_u32 s{G}, 1376")
        k(f"s_cbranch_scc0 {l1}")
        pack_store(P_+4, D0, WGF)
        pack_store(P_+12, D0, WUF)
        k.place(l1)
        k(f"s_cmp_lt_u32 s{G}, 1888")
        k(f"s_cbranch_scc0 {l2}")
        pack_store(P_+20, D0+1, WOF)
        k.place(l2)
    return item_loads, item_stores

def p1_loader(k):
    SRB, SCB = 27, 28
    VXE, VXO, VW = 8, 9, 10
    k(f"""
    s_sub_u32 s29, s{SW}, 4
    v_lshrrev_b32 v11, 3, v2
    v_and_b32 v4, 7, v2
    v_lshrrev_b32 v5, 4, v2
    v_xor_b32 v6, v4, v5
    v_lshlrev_b32 v6, 4, v6
    s_lshl_b32 s35, s29, 4
    v_add_u32 v7, s35, v11
    v_lshlrev_b32 v12, 10, v7
    v_add_u32 v{VXE}, v12, v6
    v_xor_b32 v6, 64, v6
    v_add_u32 v{VXO}, v12, v6
    v_add_u32 v{VXO}, 8192, v{VXO}
    s_lshl_b32 s35, s29, 3
    v_add_u32 v7, s35, v11
    v_and_b32 v5, 1, v5
    v_lshlrev_b32 v5, 2, v5
    v_xor_b32 v5, v4, v5
    v_lshlrev_b32 v5, 4, v5
    v_mul_u32_u24 v7, 3072, v7
    v_add_u32 v{VW}, v7, v5
    s_lshl_b32 s31, s29, 10
    s_lshl_b32 s36, s29, 11
    s_lshl_b32 s30, s{SRB}, 16
    s_lshl_b32 s32, s{SCB}, 7
    """)
    srd(k, 52, 4, 2*MB)
    srd(k, 56, 6, 512*3072)
    n = lambda c: 3 + (0 if c & 1 else 2)
    def issue(c):
        if OPT.get('z_nodma1') and c > 2: return
        if not c & 1:
            k(f"s_add_u32 s33, s30, {(c//2)*128}")
            for o in range(2):
                dma(k, VXE if o == 0 else VXO, 52, 33, f"s36, {(c//2)*8192 + o*1024}")
        for p in range(3):
            k(f"s_add_u32 s33, s32, {32*c*3072 + p*1024}")
            dma(k, VW, 56, 33, f"s31, {65536 + (c % 8)*12288 + p*4096}")
    issued = OPT.get('d1', 4)
    for c in range(issued): issue(c)
    for P in range(9):
        k(f"s_waitcnt vmcnt({sum(n(j) for j in range(2*P+2, issued))})")
        k("s_barrier")
        m = 0
        while issued < 16 and issued - 8 <= 2*P - 3 and m < 4:
            issue(issued); issued += 1; m += 1
    k("s_barrier")
    k("s_barrier")
    k("s_barrier")

def p1_helper(k):
    k(f"s_setprio {OPT.get('hprio', 3)}")
    X, SQ, SX, T, RS, NB = 16, 24, 28, 32, 36, 38
    init_done = k.label("initd")
    k(f"""
    s_or_b32 s29, s2, s{SW}
    s_cmp_lg_u32 s29, 9
    s_cbranch_scc1 {init_done}
    s_cmp_lg_u32 s2, 0
    s_cbranch_scc1 {init_done}
    v_lshlrev_b32 v4, 8, v2
    v_mov_b32 v5, 0
    s_mov_b32 s30, {CNT}
    buffer_store_dword v5, v4, s[20:23], s30 offen sc1
    v_lshlrev_b32 v4, 7, v2
    """)
    for i in range(20):
        k(f"s_mov_b32 s30, {FLG + i*8192}")
        k("buffer_store_dword v5, v4, s[20:23], s30 offen sc1")
    k(f"""
    s_waitcnt vmcnt(0)
    v_mov_b32 v6, 1
    s_mov_b64 exec, 1
    global_store_dword v5, v6, s[60:61] sc1
    s_mov_b64 exec, -1
    """)
    k.place(init_done)
    k(f"""
    s_sub_u32 s29, s{SW}, 8
    s_lshl_b32 s30, s29, 10
    v_add_u32 v4, s30, v3
    s_mov_b32 s39, {hex(ONES)}
    """)
    if OPT.get('t1', 0):
        srd(k, 44, 4, 2*MB)
        srd(k, 52, 6, 512*3072)
        k(f"""
        s_lshr_b32 s31, s{SXCD}, 1
        s_lshl_b32 s31, s31, 9
        s_lshl_b32 s32, s{SIDX}, 4
        s_add_u32 s31, s31, s32
        s_lshl_b32 s31, s31, 10
        s_lshl_b32 s32, s29, 7
        s_add_u32 s31, s31, s32
        v_lshlrev_b32 v12, 10, v2
        v_mul_u32_u24 v13, 43, v2
        v_lshrrev_b32 v13, 9, v13
        v_mul_u32_u24 v14, 12, v13
        v_sub_u32 v14, v2, v14
        v_lshrrev_b32 v15, 2, v14
        v_and_b32 v14, 3, v14
        v_lshlrev_b32 v14, 7, v14
        v_lshl_add_u32 v14, v15, 10, v14
        v_mul_u32_u24 v13, 3072, v13
        v_add_u32 v13, v13, v14
        s_lshl_b32 s32, s29, 6
        s_lshl_b32 s33, s{SIDX}, 1
        s_add_u32 s32, s32, s33
        s_mul_i32 s32, s32, 3072
        s_and_b32 s33, s{SXCD}, 1
        s_lshl_b32 s33, s33, 9
        s_add_u32 s32, s32, s33
        s_add_u32 s33, s32, {256*3072}
        s_mov_b32 exec_hi, 0
        s_mov_b32 exec_lo, 0xffff
        buffer_load_dword v40, v12, s[44:47], s31 offen
        s_mov_b32 exec_lo, 0xffffff
        buffer_load_dword v41, v13, s[52:55], s32 offen
        s_mov_b32 exec_lo, 0xffff
        buffer_load_dword v42, v12, s[44:47], s31 offen offset:512
        s_mov_b32 exec_lo, 0xffffff
        buffer_load_dword v43, v13, s[52:55], s33 offen
        s_mov_b64 exec, -1
        """)
    for c in range(9):
        k("s_barrier")
        if c < 8 and not (OPT.get('z_nostat') and c > 0):
            cc = c
            k(f"ds_read_b128 v[{X}:{X+3}], v4 offset:{cc*8192}")
            k(f"ds_read_b128 v[{X+4}:{X+7}], v4 offset:{cc*8192 + 4096}")
            for hf in range(2):
                k(f"s_waitcnt lgkmcnt({1-hf})")
                for d in range(4):
                    r = X + 4*hf + d
                    q, sx = SQ + 2*hf + (d & 1), SX + 2*hf + (d & 1)
                    first = (cc == 0 and d < 2)
                    k(f"v_dot2_f32_bf16 v{q}, v{r}, v{r}, {'0' if first else 'v%d' % q}")
                    k(f"v_dot2_f32_bf16 v{sx}, v{r}, s39, {'0' if first else 'v%d' % sx}")
        if c == 7:
            k.nop(3)
            k(f"v_add_f32 v{SQ}, v{SQ}, v{SQ+1}")
            k(f"v_add_f32 v{SQ+2}, v{SQ+2}, v{SQ+3}")
            k(f"v_add_f32 v{SX}, v{SX}, v{SX+1}")
            k(f"v_add_f32 v{SX+2}, v{SX+2}, v{SX+3}")
            row8_sum(k, [SQ, SQ+2, SX, SX+2])
        if c == 7:
            for hf in range(2):
                finish_stats(k, SX + 2*hf, SQ + 2*hf, RS + hf, NB + hf, T, T+1)
            k(f"""
            v_lshrrev_b32 v5, 3, v2
            s_lshl_b32 s30, s29, 5
            s_add_u32 s30, s30, {EXS}
            v_lshl_add_u32 v5, v5, 2, s30
            ds_write2_b32 v5, v{RS}, v{RS+1} offset0:0 offset1:32
            ds_write2_b32 v5, v{NB}, v{NB+1} offset0:64 offset1:96
            """)
    k("s_waitcnt lgkmcnt(0)")
    k("s_barrier")
    k("s_barrier")
    stamp(k, 0)
    nop_ = k.label("h1n")
    k(f"s_cmp_lg_u32 s{SW}, 8")
    k(f"s_cbranch_scc1 {nop_}")
    g, gx = k.label("gate"), k.label("gatex")
    k("s_mov_b32 s41, 0")
    k("v_mov_b32 v9, 0")
    k.place(g)
    k("global_load_dword v10, v9, s[60:61] sc1")
    k("s_add_u32 s41, s41, 1")
    k("s_cmp_gt_u32 s41, 0x40000")
    k(f"s_cbranch_scc1 {gx}")
    k("s_waitcnt vmcnt(0)")
    k("v_cmp_eq_u32 vcc, 0, v10")
    k("s_cmp_lg_u64 vcc, 0")
    k(f"s_cbranch_scc1 {g}")
    k.place(gx)
    stamp(k, 1)
    k(f"s_lshl_b32 s42, s28, 5")
    k(f"s_add_u32 s42, s42, s27")
    flag_set(k, 42)
    k("s_getreg_b32 s58, hwreg(HW_REG_XCC_ID, 0, 4)")
    k("s_add_u32 s58, s58, 1")
    k(f"s_lshl_b32 s42, s{SXCD}, 5")
    k(f"s_add_u32 s42, s42, s{SIDX}")
    k(f"s_add_u32 s42, s42, {FX}")
    flag_set(k, 42, "s58")
    k(f"s_lshr_b32 s42, s{SIDX}, 2")
    k(f"s_lshl_b32 s42, s42, 5")
    flag_poll(k, 42)
    stamp(k, 2)
    k.place(nop_)
    k("s_barrier")

def rowmax(k, S, dst, t1, t2):
    k(f"v_max3_f32 v{dst}, v{S}, v{S+1}, v{S+2}")
    k(f"v_max3_f32 v{t1}, v{S+3}, v{S+4}, v{S+5}")
    k(f"v_max3_f32 v{dst}, v{dst}, v{S+6}, v{S+7}")
    k(f"v_max3_f32 v{t1}, v{t1}, v{S+8}, v{S+9}")
    k(f"v_max3_f32 v{dst}, v{dst}, v{S+10}, v{S+11}")
    k(f"v_max3_f32 v{t1}, v{t1}, v{S+12}, v{S+13}")
    k(f"v_max3_f32 v{dst}, v{dst}, v{S+14}, v{S+15}")
    k(f"v_max_f32 v{t1}, v{dst}, v{t1}")
    k(f"v_mov_b32 v{t2}, v{t1}")
    k.nop(2)
    k(f"v_permlane32_swap_b32 v{t1}, v{t2}")
    k.nop(1)
    k(f"v_max_f32 v{dst}, v{t1}, v{t2}")

def p2_compute(k, tail):
    Q = 8; KB = [12, 16]; V1 = [20, 28]; V2 = [24, 32]; P = 36; SS = [48, 64]; CN = 80; O = 96
    VKA, VVA, VINC = 4, 5, 47
    PRG, VPR = 112, 6
    chk, spin = k.label("chk"), k.label("spin")
    def spinf(k):
        k.place(spin)
        k("s_sleep 1")
        k(f"ds_read_b128 v[{PRG}:{PRG+3}], v{VPR}")
        k("s_waitcnt lgkmcnt(0)")
        k(f"s_branch {chk}")
    tail.append(spinf)
    k(f"""
    s_lshl_b32 s30, s{SXCD}, 3
    s_add_u32 s30, s30, s{SW}
    s_lshl_b32 s31, s30, 10
    s_lshl_b32 s29, s{SIDX}, 16
    s_add_u32 s31, s31, s29
    buffer_load_dwordx4 v[{Q}:{Q+3}], v3, s[20:23], s31 offen {OPT['ld']}
    v_mov_b32 v{VKA}, v3
    v_lshrrev_b32 v6, 5, v2
    v_lshlrev_b32 v6, 8, v6
    v_and_b32 v7, 15, v2
    v_lshl_add_u32 v{VVA}, v7, 4, v6
    v_add_u32 v{VVA}, 0x10000, v{VVA}
    v_and_b32 v6, 31, v2
    v_add_u32 v7, -20, v6
    v_cmp_gt_u32 vcc, 8, v7
    v_mov_b32 v44, {CSTRIP}
    v_mov_b32 v45, {CSTRIP + 64}
    v_cndmask_b32 v44, v44, v45, vcc
    v_and_b32 v7, 27, v2
    v_cmp_eq_u32 vcc, 16, v7
    v_add_u32 v45, 16, v44
    s_nop 0
    v_cndmask_b32 v44, v44, v45, vcc
    v_cmp_gt_u32 vcc, 16, v6
    v_mov_b32 v45, 8192
    s_nop 0
    v_cndmask_b32 v{VVA}, v44, v{VVA}, vcc
    v_cndmask_b32 v{VINC}, 0, v45, vcc
    """)
    k(f"v_mov_b32 v{VPR}, {PROG}")
    for r in range(4): k(f"v_mov_b32 v{V2[1]+r}, 0")
    for r in range(8): k(f"v_mov_b32 v{P+r}, 0")
    for r in range(16): k(f"v_mov_b32 v{O+r}, 0")
    def vread(kk, buf, off):
        kk(f"ds_read_b128 v[{V1[buf]}:{V1[buf]+3}], v{VVA} offset:{off}")
        kk(f"ds_read_b128 v[{V2[buf]}:{V2[buf]+3}], v{VVA} offset:{off+512}")
    stamp(k, 4)
    k("s_barrier")
    stamp(k, 5)
    k(f"ds_read_b128 v[{KB[0]}:{KB[0]+3}], v{VKA}")
    k(f"ds_read_b128 v[{KB[1]}:{KB[1]+3}], v{VKA} offset:1024")
    vread(k, 0, 0)
    k("s_waitcnt vmcnt(0) lgkmcnt(3)")
    k(f"{MFMA} v[{SS[0]}:{SS[0]+15}], v[{KB[0]}:{KB[0]+3}], v[{Q}:{Q+3}], 0")
    k.nop(12)
    rowmax(k, SS[0], 44, 45, 46)
    for r in range(16): k(f"v_sub_f32 v{CN+r}, 0, v44")
    k.nop(2)
    k(f"{MFMA} v[{SS[0]}:{SS[0]+15}], v[{KB[0]}:{KB[0]+3}], v[{Q}:{Q+3}], v[{CN}:{CN+15}]")
    k("s_mov_b32 s38, 0")
    k.nop(10)
    loop = k.label("loop")
    k(".p2align 6")
    k.place(loop)
    pr = OPT['prio']
    for t in range(8):
        cur, nx = SS[t & 1], SS[(t+1) & 1]
        e = lambda i: k(f"v_exp_f32 v{cur+i}, v{cur+i}")
        c = lambda i: k(f"v_cvt_pk_bf16_f32 v{P+i}, v{cur+2*i}, v{cur+2*i+1}")
        k("s_waitcnt lgkmcnt(0)")
        if t == 6:
            k.place(chk)
            k(f"v_min3_u32 v{PRG}, v{PRG}, v{PRG+1}, v{PRG+2}")
            k(f"v_min_u32 v{PRG}, v{PRG}, v{PRG+3}")
            k(f"v_cmp_ge_u32 vcc, s38, v{PRG}")
            k("s_cmp_lg_u64 vcc, 0")
            k(f"s_cbranch_scc1 {spin}")
        k("s_setprio 0" if pr else "s_nop 0")
        kb = KB[(t+1) & 1]
        k(f"{MFMA} v[{nx}:{nx+15}], v[{kb}:{kb+3}], v[{Q}:{Q+3}], v[{CN}:{CN+15}]")
        k(f"ds_read_b128 v[{KB[t&1]}:{KB[t&1]+3}], v{VKA} offset:{(t+2)*1024}")
        e(0); e(1)
        pb = (t+1) & 1
        k(f"{MFMA} v[{O}:{O+15}], v[{V2[pb]}:{V2[pb]+3}], v[{P+4}:{P+7}], v[{O}:{O+15}]")
        vread(k, pb, (t+1)*1024)
        if t == 5: k(f"ds_read_b128 v[{PRG}:{PRG+3}], v{VPR}")
        e(2); e(3); c(0)
        if pr: k("s_setprio 1")
        e(4); e(5); c(1); e(6); e(7); c(2); e(8); e(9); c(3); e(10); e(11)
        k(f"{MFMA} v[{O}:{O+15}], v[{V1[t&1]}:{V1[t&1]+3}], v[{P}:{P+3}], v[{O}:{O+15}]")
        c(4); e(12); e(13); c(5); e(14); e(15); c(6)
        if t == 7:
            k(f"v_add_u32 v{VKA}, 8192, v{VKA}")
            k(f"v_add_u32 v{VVA}, v{VINC}, v{VVA}")
            k("s_add_u32 s38, s38, 1")
            k(f"v_mov_b32 v{PRG}, s38")
            k(f"ds_write_b32 v{VPR}, v{PRG} offset:32")
            k("s_cmp_lt_u32 s38, 8")
        c(7)
    k(f"s_cbranch_scc1 {loop}")
    k("s_setprio 0")
    stamp(k, 6)
    k.nop(1)
    k(f"{MFMA} v[{O}:{O+15}], v[{V2[1]}:{V2[1]+3}], v[{P+4}:{P+7}], v[{O}:{O+15}]")
    k(f"ds_read_b32 v{PRG}, v{VPR} offset:16")
    k("s_waitcnt lgkmcnt(0)")
    k(f"v_readfirstlane_b32 s{SLOC}, v{PRG}")
    k.nop(11)
    fb, fin = k.label("fb"), k.label("fin")
    k(f"""
    v_max3_f32 v44, abs(v{O}), abs(v{O+1}), abs(v{O+2})
    v_max3_f32 v45, abs(v{O+3}), abs(v{O+4}), abs(v{O+5})
    v_max3_f32 v44, v44, abs(v{O+6}), abs(v{O+7})
    v_add_f32 v46, v{O}, v{O+1}
    v_max3_f32 v44, v44, v45, v{O+8}
    s_mov_b32 s39, {hex(f32(2.0**100))}
    """)
    for r in range(2, 9): k(f"v_add_f32 v46, v46, v{O+r}")
    k(f"v_and_b32 v46, 0x7fffffff, v46")
    k(f"v_cmp_ngt_f32 vcc, s39, v44")
    k(f"v_cmp_ngt_f32 s[40:41], s39, v46")
    k.nop(1)
    k("s_or_b64 s[40:41], s[40:41], vcc")
    k("s_cmp_lg_u64 s[40:41], 0")
    k(f"s_cbranch_scc1 {fb}")
    k.place(fin)
    k(f"v_rcp_f32 v44, v{O+8}")
    k(f"s_lshl_b32 s40, s30, 15")
    k(f"s_lshl_b32 s41, s{SIDX}, 10")
    k(f"s_add_u32 s40, s40, s41")
    k(f"s_add_u32 s40, s40, {OF}")
    for r in range(8): k(f"v_mul_f32 v{O+r}, v{O+r}, v44")
    for r in range(4): k(f"v_cvt_pk_bf16_f32 v{P+r}, v{O+2*r}, v{O+2*r+1}")
    pub_store(k, [f"buffer_store_dwordx4 v[{P}:{P+3}], v3, s[20:23], s40 offen"])
    k("s_waitcnt vmcnt(0)")
    k("s_barrier")
    k("s_barrier")
    def fallback(k):
        k.place(fb)
        k(f"v_mov_b32 v{VKA}, v3")
        k(f"v_lshlrev_b32 v44, 3, v{VINC}")
        k(f"v_sub_u32 v{VVA}, v{VVA}, v44")
        k(f"v_lshrrev_b32 v{VINC}, 3, v{VINC}")
        k(f"v_mov_b32 v7, 0xff7fffff")
        for r in range(16): k(f"v_mov_b32 v{O+r}, 0")
        k("s_mov_b32 s38, 0")
        fl = k.label("fl")
        k.place(fl)
        S = SS[0]
        k(f"ds_read_b128 v[{KB[0]}:{KB[0]+3}], v{VKA}")
        vread(k, 0, 0)
        k("s_waitcnt lgkmcnt(0)")
        k(f"{MFMA} v[{S}:{S+15}], v[{KB[0]}:{KB[0]+3}], v[{Q}:{Q+3}], 0")
        k.nop(14)
        rowmax(k, S, 44, 45, 46)
        k("v_max_f32 v44, v44, v7")
        k("v_sub_f32 v45, v7, v44")
        k("v_exp_f32 v45, v45")
        k("v_mov_b32 v7, v44")
        for r in range(16): k(f"v_sub_f32 v{S+r}, v{S+r}, v44")
        for r in range(16): k(f"v_mul_f32 v{O+r}, v{O+r}, v45")
        for r in range(16): k(f"v_exp_f32 v{S+r}, v{S+r}")
        k.nop(1)
        for r in range(8): k(f"v_cvt_pk_bf16_f32 v{P+r}, v{S+2*r}, v{S+2*r+1}")
        k.nop(2)
        k(f"{MFMA} v[{O}:{O+15}], v[{V1[0]}:{V1[0]+3}], v[{P}:{P+3}], v[{O}:{O+15}]")
        k(f"{MFMA} v[{O}:{O+15}], v[{V2[0]}:{V2[0]+3}], v[{P+4}:{P+7}], v[{O}:{O+15}]")
        k(f"v_add_u32 v{VKA}, 1024, v{VKA}")
        k(f"v_add_u32 v{VVA}, v{VINC}, v{VVA}")
        k("s_add_u32 s38, s38, 1")
        k("s_cmp_lt_u32 s38, 64")
        k.nop(14)
        k(f"s_cbranch_scc1 {fl}")
        k(f"s_branch {fin}")
    tail.append(fallback)

def p2_helper(k, done):
    NB2 = OPT['nb2']
    ld, st = OPT['ld'], OPT['st']
    k(f"""
    s_sub_u32 s30, s{SW}, 8
    s_lshl_b32 s32, s30, 11
    s_lshl_b32 s29, s{SIDX}, 16
    s_add_u32 s33, s29, s32
    """)
    def kv(c):
        k(f"s_add_u32 s31, s{SXCD}, {c}" if OPT.get('rot', 1) else f"s_mov_b32 s31, {c}")
        k("s_and_b32 s31, s31, 7")
        k("s_lshl_b32 s31, s31, 13")
        k("s_add_u32 s31, s31, s33")
        for base, l in ((KF, 0), (VF, 65536)):
            k(f"s_add_u32 s34, s31, {base}")
            dma(k, 3, 20, 34, f"s32, {l + c*8192}", 0, ld)
            k(f"buffer_load_dwordx4 v3, s[20:23], s34 offen offset:1024 {ld} lds")
    kv(0); kv(1)
    k(f"""
    v_lshrrev_b32 v4, 2, v2
    s_lshl_b32 s35, s30, 4
    v_add_u32 v4, s35, v4
    v_cmp_gt_u32 vcc, 20, v4
    v_lshlrev_b32 v4, 9, v4
    v_and_b32 v5, 1, v2
    v_lshl_add_u32 v4, v5, 4, v4
    v_bfe_u32 v6, v2, 1, 1
    v_lshl_add_u32 v4, v6, 6, v4
    v_add_u32 v4, {CSTRIP}, v4
    v_mul_u32_u24 v8, 0x3f80, v5
    v_lshl_or_b32 v8, v8, 16, v8
    v_mov_b32 v9, v8
    v_mov_b32 v10, v8
    v_mov_b32 v11, v8
    s_and_saveexec_b64 s[36:37], vcc
    ds_write_b128 v4, v[8:11]
    s_mov_b64 exec, s[36:37]
    s_lshl_b32 s35, s30, 2
    s_add_u32 s35, s35, {PROG}
    v_mov_b32 v4, s35
    v_mov_b32 v5, 0
    ds_write_b32 v4, v5
    ds_write_b32 v4, v5 offset:16
    ds_write_b32 v4, v5 offset:32
    ds_write_b32 v4, v5 offset:48
    s_waitcnt vmcnt(4) lgkmcnt(0)
    s_barrier
    """)
    KD = OPT.get('kvd', 3)
    issued = 2
    def publish(c):
        k(f"v_mov_b32 v5, {c if c < 7 else 64}")
        k("ds_write_b32 v4, v5")
    while issued < KD: kv(issued); issued += 1
    c = 1
    while issued < 8:
        k(f"s_waitcnt vmcnt({4*(issued - 1 - c)})")
        publish(c); c += 1
        kv(issued); issued += 1
    stamp(k, 3)
    k("s_mov_b32 s29, s30")
    loads, stores = relayout(k)
    if OPT.get('z_nopre'):
        loads = stores = (lambda i: None)
    loads(0)
    while c < 8:
        k(f"s_waitcnt vmcnt({(0 if OPT.get('z_nopre') else 26) + 4*(7 - c)})")
        publish(c); c += 1
    stamp(k, 12)
    if 'hprio2' in OPT: k(f"s_setprio {OPT['hprio2']}")
    loads(1)
    k("s_waitcnt vmcnt(26)")
    stores(0)
    k("s_waitcnt vmcnt(0)")
    stamp(k, 13)
    stores(1)
    k("s_waitcnt vmcnt(0)")
    stamp(k, 4)
    na = k.label("noarr")
    k(f"v_mov_b32 v5, {PROG + 48}")
    k("v_mov_b32 v6, 1")
    k("s_mov_b64 exec, 1")
    k("ds_add_rtn_u32 v7, v5, v6")
    k("s_waitcnt lgkmcnt(0)")
    k("v_readfirstlane_b32 s42, v7")
    k("s_cmp_lg_u32 s42, 3")
    k(f"s_cbranch_scc1 {na}")
    k(f"s_add_u32 s42, s{SXCD}, {CW}")
    arrive(k, 42)
    k.place(na)
    k(f"s_cmp_lg_u32 s{SW}, 8")
    k(f"s_cbranch_scc1 {done}")
    k("s_setprio 3")
    k(f"s_lshl_b32 s42, s{SXCD}, 5")
    k(f"s_add_u32 s42, s42, {FX}")
    flag_poll(k, 42)
    k("s_getreg_b32 s58, hwreg(HW_REG_XCC_ID, 0, 4)")
    k("s_add_u32 s58, s58, 1")
    k("s_mov_b32 exec_hi, 0")
    k("v_cmp_ne_u32 vcc, s58, v10")
    k("s_cmp_eq_u64 vcc, 0")
    k(f"s_cselect_b32 s{SLOC}, 1, 0")
    k(f"v_mov_b32 v5, s{SLOC}")
    k("ds_write_b32 v4, v5 offset:16")
    k("s_mov_b64 exec, -1")
    if OPT.get('t2', 1):
        again, skip, ok = k.label("t2a"), k.label("t2s"), k.label("t2o")
        k(f"""
        s_mov_b32 s40, {CNT + CW*256}
        s_mov_b32 exec_lo, 0xff
        s_mov_b32 exec_hi, 0
        v_lshlrev_b32 v9, 8, v2
        s_mov_b32 s41, 0
        """)
        k.place(again)
        k(f"s_sleep {OPT.get('slpw', 32)}")
        k("buffer_load_dword v10, v9, s[20:23], s40 offen sc1")
        k("ds_read_b32 v11, v4 offset:32")
        k("s_waitcnt vmcnt(0) lgkmcnt(0)")
        k("v_readfirstlane_b32 s41, v11")
        k("v_cmp_gt_u32 vcc, 32, v10")
        k(f"s_cmp_ge_u32 s41, {OPT.get('t2lim', 6)}")
        k(f"s_cbranch_scc1 {skip}")
        k("s_cmp_lg_u64 vcc, 0")
        k(f"s_cbranch_scc1 {again}")
        k("s_mov_b64 exec, -1")
        for base, tot in [(WOF, 4096), (WGF, 43*256), (WUF, 43*256), (WDF, 43*256)][OPT.get('t2a', 0):OPT.get('t2b', 3)]:
            per = tot // 32
            k(f"s_mul_i32 s42, s{SIDX}, {per*128}")
            k(f"s_add_u32 s42, s42, {base}")
            touch(k, 42, per)
        k.place(skip)
        k("s_mov_b64 exec, -1")

def res_cfg(mode):
    if mode == 'wo':
        return dict(NKS=32, JL=16, WIN=16, BSRC=OF, ASRC=WOF, RES=XF)
    return dict(NKS=86, JL=39, WIN=OPT.get('win5', 12), BSRC=ACT, ASRC=WDF, RES=HF)

def res_map(k):
    k(f"""
    s_lshl_b32 s27, s{SXCD}, 2
    s_and_b32 s28, s{SIDX}, 3
    s_add_u32 s27, s27, s28
    s_lshr_b32 s28, s{SIDX}, 2
    """)

def res_consumer(k, mode, sb):
    c_ = res_cfg(mode); NKS, JL, WIN, RES = c_['NKS'], c_['JL'], c_['WIN'], c_['RES']
    NH = NKS // 2
    SRB, SCB = 27, 28
    ld, st = OPT['ld'], OPT['st']
    R, ACC, AB, AT = 8, 16, 48, 80
    BW = 80 if mode == 'wo' else 112
    VO = 160
    res_map(k)
    k(f"""
    s_and_b32 s29, s{SW}, 1
    s_lshl_b32 s30, s{SRB}, 1
    s_add_u32 s30, s30, s29
    s_lshr_b32 s31, s{SW}, 1
    s_lshl_b32 s32, s{SCB}, 1
    s_add_u32 s32, s32, s31
    s_mul_i32 s33, s31, 3072
    v_add_u32 v6, s33, v3
    s_lshl_b32 s33, s31, 10
    s_add_u32 s33, s33, 1024
    v_add_u32 v7, s33, v3
    s_lshl_b32 s40, s30, 5
    s_lshl_b32 s41, s32, 1
    s_add_u32 s40, s40, s41
    s_lshl_b32 s40, s40, 10
    s_add_u32 s41, s40, {RES}
    buffer_load_dwordx4 v[{R}:{R+3}], v3, s[20:23], s41 offen {ld}
    buffer_load_dwordx4 v[{R+4}:{R+7}], v3, s[20:23], s41 offen offset:1024 {ld}
    s_mul_i32 s34, s31, {NH}
    s_mul_i32 s35, s30, {NKS}
    s_add_u32 s35, s35, s34
    s_lshl_b32 s35, s35, 10
    s_add_u32 s35, s35, {c_['BSRC']}
    """)
    if NH > JL:
        for q in range(2):
            k(f"s_xor_b32 s36, s32, {q}")
            k(f"s_mul_i32 s36, s36, {NKS}")
            k(f"s_add_u32 s36, s36, s34")
            k(f"s_lshl_b32 s36, s36, 10")
            k(f"s_add_u32 s36, s36, {c_['ASRC'] + JL*1024}")
            for j in range(NH - JL):
                r = AT + 8*j + 4*q
                k(f"buffer_load_dwordx4 v[{r}:{r+3}], v3, s[20:23], s36 offen" + (f" offset:{j*1024}" if j else "") + f" {ld}")
    RED = 65536 if mode == 'wo' else 0
    k(f"s_xor_b32 s36, s{SW}, 2")
    k(f"s_lshl_b32 s36, s36, 12")
    k(f"v_add_u32 v4, s36, v3")
    k(f"s_lshl_b32 s36, s{SW}, 12")
    k(f"v_add_u32 v5, s36, v3")
    if RED:
        k(f"v_add_u32 v4, {RED}, v4")
        k(f"v_add_u32 v5, {RED}, v5")
    if mode == 'down':
        srd(k, 52, 18, 2*MB)
        k(f"""
        v_and_b32 v{VO}, 31, v2
        v_lshlrev_b32 v{VO}, 10, v{VO}
        v_lshrrev_b32 v{VO+1}, 5, v2
        v_lshl_add_u32 v{VO}, v{VO+1}, 4, v{VO}
        s_lshl_b32 s47, s30, 15
        s_lshl_b32 s48, s32, 6
        s_add_u32 s47, s47, s48
        """)
    else:
        k(f"""
        s_lshl_b32 s47, s32, 14
        s_lshl_b32 s48, s30, 8
        s_add_u32 s47, s47, s48
        s_add_u32 s47, s47, {ST}
        v_lshlrev_b32 v{VO}, 3, v2
        s_add_u32 s41, s40, {HF}
        s_mov_b32 s46, {hex(ONES)}
        """)
    k("s_mov_b32 s45, 0xffff0000")
    k("s_barrier")
    stamp(k, sb)
    def bload(j):
        if j % 4 == 0: k(f"s_add_u32 s36, s35, {j*1024}")
        r = BW + 4*(j % WIN)
        k(f"buffer_load_dwordx4 v[{r}:{r+3}], v3, s[20:23], s36 offen" + (f" offset:{(j % 4)*1024}" if j % 4 else "") + f" {ld}")
    def ard(j, q):
        if j < JL:
            if q == 0 and j and j % 16 == 0:
                k("v_add_u32 v6, 0x10000, v6")
                k("v_add_u32 v7, 0x10000, v7")
            r = AB + 8*(j & 3) + 4*q
            k(f"ds_read_b128 v[{r}:{r+3}], v{6+q} offset:{(j % 16)*4096}")
    nb = min(WIN, NH)
    for j in range(nb): bload(j)
    for j in range(3):
        ard(j, 0); ard(j, 1)
    for j in range(NH):
        lg = 2*(min(JL, j + 3) - (j + 1)) if j < JL else None
        k(f"s_waitcnt vmcnt({nb - 1 - j})" + (f" lgkmcnt({lg})" if lg is not None else ""))
        A = AB + 8*(j & 3) if j < JL else AT + 8*(j - JL)
        B = BW + 4*(j % WIN)
        for q in range(2):
            C = "0" if j == 0 else f"v[{ACC+16*q}:{ACC+16*q+15}]"
            k(f"{MFMA} v[{ACC+16*q}:{ACC+16*q+15}], v[{A+4*q}:{A+4*q+3}], v[{B}:{B+3}], {C}")
            ard(j + 3, q)
        if nb < NH:
            bload(nb); nb += 1
    stamp(k, sb + 1)
    U = 48
    for d in range(8):
        k(f"v_lshlrev_b32 v{U+2*d}, 16, v{R+d}")
        k(f"v_and_b32 v{U+2*d+1}, s45, v{R+d}")
    if not RED: k("s_barrier")
    for g in range(4):
        k(f"ds_write_b128 v4, v[{ACC+16+4*g}:{ACC+19+4*g}] offset:{g*1024}")
    for r in range(0, 16, 2):
        k(f"v_pk_add_f32 v[{ACC+r}:{ACC+r+1}], v[{ACC+r}:{ACC+r+1}], v[{U+r}:{U+r+1}]")
    k("s_waitcnt lgkmcnt(0)")
    k("s_barrier")
    for g in range(4):
        k(f"ds_read_b128 v[{U+4*g}:{U+4*g+3}], v5 offset:{g*1024}")
    P = 8
    for g in range(4):
        k(f"s_waitcnt lgkmcnt({3-g})")
        for r in (4*g, 4*g+2):
            k(f"v_pk_add_f32 v[{ACC+r}:{ACC+r+1}], v[{ACC+r}:{ACC+r+1}], v[{U+r}:{U+r+1}]")
        for d in (2*g, 2*g+1):
            k(f"v_cvt_pk_bf16_f32 v{P+d}, v{ACC+2*d}, v{ACC+2*d+1}")
    if mode == 'wo':
        pub_store(k, [f"buffer_store_dwordx4 v[{P}:{P+3}], v3, s[20:23], s41 offen",
                      f"buffer_store_dwordx4 v[{P+4}:{P+7}], v3, s[20:23], s41 offen offset:1024"])
        SX, SQ = 64, 65
        k(f"v_dot2_f32_bf16 v{SX}, v{P}, s46, 0")
        k(f"v_dot2_f32_bf16 v{SQ}, v{P}, v{P}, 0")
        for d in range(1, 8):
            k(f"v_dot2_f32_bf16 v{SX}, v{P+d}, s46, v{SX}")
            k(f"v_dot2_f32_bf16 v{SQ}, v{P+d}, v{P+d}, v{SQ}")
        k.nop(3)
        half_sum(k, SX, 66, 67)
        half_sum(k, SQ, 66, 67)
        k("s_mov_b32 exec_hi, 0")
        pub_store(k, [f"buffer_store_dwordx2 v[{SX}:{SQ}], v{VO}, s[20:23], s47 offen"])
        k("s_mov_b64 exec, -1")
        k("s_waitcnt vmcnt(0)")
        k("s_barrier")
    else:
        k.nop(2)
        k(f"""
        v_permlane32_swap_b32 v{P}, v{P+2}
        v_permlane32_swap_b32 v{P+1}, v{P+3}
        v_permlane32_swap_b32 v{P+4}, v{P+6}
        v_permlane32_swap_b32 v{P+5}, v{P+7}
        """)
        k.nop(1)
        k(f"buffer_store_dwordx4 v[{P}:{P+3}], v{VO}, s[52:55], s47 offen {OPT.get('sto', '')}")
        k(f"buffer_store_dwordx4 v[{P+4}:{P+7}], v{VO}, s[52:55], s47 offen offset:32 {OPT.get('sto', '')}")

def res_wsetup(k, mode):
    c_ = res_cfg(mode); NKS = c_['NKS']
    k(f"""
    s_sub_u32 s45, s{SW}, 4
    s_lshr_b32 s44, s{SIDX}, 2
    s_lshl_b32 s44, s44, 1
    s_and_b32 s46, s45, 1
    s_add_u32 s44, s44, s46
    s_mul_i32 s44, s44, {NKS}
    s_lshr_b32 s46, s45, 1
    s_mul_i32 s46, s46, {NKS//2}
    s_add_u32 s44, s44, s46
    s_lshl_b32 s44, s44, 10
    s_add_u32 s44, s44, {c_['ASRC']}
    s_lshl_b32 s45, s45, 10
    """)

def res_wload(k, j0, j1):
    for j in range(j0, j1):
        k(f"s_add_u32 s46, s44, {j*1024}")
        dma(k, 3, 20, 46, f"s45, {j*4096}", 0, OPT['ld'])

SLOT4, RING4, NCH4 = 20480, 8, 16
def p4_map(k):
    k(f"""
    s_lshl_b32 s27, s{SXCD}, 1
    s_cmp_ge_u32 s{SIDX}, 15
    s_cselect_b32 s28, 1, 0
    s_add_u32 s27, s27, s28
    s_mul_i32 s28, s28, 15
    s_sub_u32 s28, s{SIDX}, s28
    s_min_u32 s28, s28, 15
    """)

def p4_consumer(k):
    ld, st = OPT['ld'], OPT['st']
    skip, fin = k.label("p4skip"), k.label("p4fin")
    XB = [8, 12, 16, 20]; WB = [24, 48]; ACC = 72; T = [0, 1, 2, 4]; RS, NB = 5, 3; STR = 24
    p4_map(k)
    k("s_cmp_eq_u32 s28, 15")
    k(f"s_cbranch_scc1 {skip}")
    k(f"""
    s_lshl_b32 s30, s27, 2
    s_add_u32 s30, s30, s{SW}
    s_lshl_b32 s33, s{SW}, 11
    s_add_u32 s33, s33, 12288
    v_mov_b32 v6, v3
    v_add_u32 v7, s33, v3
    s_mul_i32 s40, s30, 86
    s_mul_i32 s41, s28, 6
    s_add_u32 s40, s40, s41
    s_lshl_b32 s40, s40, 10
    s_add_u32 s40, s40, {ACT}
    s_mov_b32 s47, 0
    s_lshl_b32 s32, s30, 8
    s_add_u32 s32, s32, {ST}
    v_and_b32 v4, 31, v2
    v_lshlrev_b32 v4, 3, v4
    v_lshrrev_b32 v8, 5, v2
    v_lshl_add_u32 v4, v8, 14, v4
    s_mov_b32 s38, 0xffff0000
    """)
    for r in range(96): k(f"v_mov_b32 v{ACC+r}, 0")
    k("s_barrier")
    stamp(k, 9)
    for i in range(8):
        k(f"s_add_u32 s35, s32, {i*32768}")
        k(f"buffer_load_dwordx2 v[{STR+2*i}:{STR+2*i+1}], v4, s[20:23], s35 offen {ld}")
    k("s_waitcnt vmcnt(0)")
    for i in range(1, 8):
        k(f"v_add_f32 v{STR}, v{STR}, v{STR+2*i}")
        k(f"v_add_f32 v{STR+1}, v{STR+1}, v{STR+2*i+1}")
    half_sum(k, STR, 0, 1)
    half_sum(k, STR+1, 0, 1)
    finish_stats(k, STR, STR+1, RS, NB, 0, 1)
    def wrd(u, b, mt):
        return f"ds_read_b128 v[{b+4*mt}:{b+4*mt+3}], v6 offset:{mt*2048 + (u & 1)*1024}"
    def xrd(u, b):
        return f"ds_read_b128 v[{b}:{b+3}], v7 offset:{(u & 1)*1024}"
    k("s_barrier")
    stamp(k, 10)
    k(xrd(0, XB[0])); k(xrd(1, XB[1]))
    for mt in range(6): k(wrd(0, WB[0], mt))
    k(f"s_mov_b32 s48, 0")
    k("s_waitcnt lgkmcnt(7)")
    for o in norm4(XB[0], T, RS, NB, 38): k(o)
    ml = k.label("p4ml")
    k(".p2align 3")
    k.place(ml)
    for u in range(4):
        if not (u & 1):
            k(f"s_add_u32 s48, s48, 1")
            k(f"s_and_b32 s48, s48, {RING4-1}")
            k(f"s_cselect_b32 s49, s50, s51")
            k("s_barrier")
            k("v_add_u32 v7, s49, v7")
        else:
            k("v_add_u32 v6, s49, v6")
            if u == 3:
                k("s_add_u32 s47, s47, 1")
                k(f"s_cmp_lt_u32 s47, {NCH4//2}")
        b, x = WB[u & 1], XB[u]
        nb_ = WB[(u+1) & 1]
        ops = norm4(XB[(u+1) & 3], T, RS, NB, 38)
        cuts = [0, 3, 7, 10, 14, 17, 20]
        for mt in range(6):
            if mt == 0: k("s_waitcnt lgkmcnt(3)")
            if mt == 3: k("s_waitcnt lgkmcnt(4)")
            k(f"{MFMA} v[{ACC+16*mt}:{ACC+16*mt+15}], v[{b+4*mt}:{b+4*mt+3}], v[{x}:{x+3}], v[{ACC+16*mt}:{ACC+16*mt+15}]")
            if mt == 0: k(xrd(u, XB[(u+2) & 3]))
            k(wrd(u+1, nb_, mt))
            for o in ops[cuts[mt]:cuts[mt+1]]: k(o)
    k(f"s_cbranch_scc1 {ml}")
    stamp(k, 11)
    lane_regs(k)
    P = 24
    for tile in range(3):
        G, U = ACC + 16*tile, ACC + 48 + 16*tile
        if tile == 1:
            k(f"s_cmp_eq_u32 s28, 14")
            k(f"s_cbranch_scc1 {fin}")
        for r in range(16): k(f"v_max_f32 v{G+r}, 0, v{G+r}")
        for r in range(0, 16, 2):
            k(f"v_pk_mul_f32 v[{G+r}:{G+r+1}], v[{G+r}:{G+r+1}], v[{U+r}:{U+r+1}]")
        if tile == 0: k("s_waitcnt lgkmcnt(0)")
        for d in range(8):
            k(f"v_cvt_pk_bf16_f32 v{P+8*tile+d}, v{G+2*d}, v{G+2*d+1}")
        k(f"s_add_u32 s41, s40, {tile*2048}")
        pub_store(k, [f"buffer_store_dwordx4 v[{P+8*tile}:{P+8*tile+3}], v3, s[20:23], s41 offen",
                      f"buffer_store_dwordx4 v[{P+8*tile+4}:{P+8*tile+7}], v3, s[20:23], s41 offen offset:1024"])
    k.place(fin)
    k("s_waitcnt vmcnt(0)")
    k.place(skip)
    k("s_barrier")

def p4_loader(k):
    ld = OPT['ld']
    D = OPT['depth4']
    skip, join = k.label("p4lskip"), k.label("p4ljoin")
    res_wsetup(k, 'down')
    p4_map(k)
    k("s_cmp_eq_u32 s28, 15")
    k(f"s_cbranch_scc1 {skip}")
    k(f"""
    s_sub_u32 s29, s{SW}, 4
    s_lshl_b32 s30, s27, 2
    s_add_u32 s30, s30, s29
    s_lshl_b32 s31, s30, 15
    s_add_u32 s31, s31, {HF}
    s_mul_i32 s33, s28, {3*32768}
    s_and_b32 s34, s29, 1
    s_lshl_b32 s34, s34, 10
    s_add_u32 s33, s33, s34
    s_lshr_b32 s35, s29, 1
    s_mul_i32 s37, s35, {WUF - WGF}
    s_add_u32 s33, s33, s37
    s_mul_i32 s35, s35, 6144
    s_add_u32 s34, s34, s35
    s_lshl_b32 s36, s29, 11
    """)
    order = []
    def hpart(c):
        k(f"s_add_u32 s35, s31, {c*2048}")
        dma(k, 3, 20, 35, f"s36, {(c % RING4)*SLOT4 + 12288}", 0, ld)
        k(f"buffer_load_dwordx4 v3, s[20:23], s35 offen offset:1024 {ld} lds")
        order.extend([('h', c)]*2)
    def wpart(c):
        for t in range(3):
            k(f"s_add_u32 s35, s33, {WGF + t*32768 + c*2048}")
            dma(k, 3, 20, 35, f"s34, {(c % RING4)*SLOT4 + t*2048}", 0, ld)
        order.extend([('w', c)]*3)
    for c in range(RING4): wpart(c)
    k("s_barrier")
    nh = 4
    for c in range(nh): hpart(c)
    nw = RING4
    for c in range(NCH4 + 1):
        if c < NCH4:
            last = max(i for i, o in enumerate(order) if o[1] == c)
            k(f"s_waitcnt vmcnt({len(order) - 1 - last})")
        k("s_barrier")
        m = 0
        while nh < NCH4 and nh <= c + D and m < 2:
            assert nh - RING4 <= c - 2
            hpart(nh); nh += 1; m += 1
        if nw < NCH4 and nw - RING4 <= c - 2:
            wpart(nw); nw += 1
        if c >= 10:
            assert nh == NCH4 and nw == NCH4
            res_wload(k, 5*(c-10), 5*(c-10) + 5); order.extend([('d', -1)]*5)
    k("s_barrier")
    k(f"s_branch {join}")
    k.place(skip)
    k("s_barrier")
    res_wload(k, 0, 35)
    k.place(join)
    res_wload(k, 35, 39)
    k("s_waitcnt vmcnt(0)")
    k("s_barrier")

def poller(k):
    sl = OPT.get('slpl', 2)
    stamp(k, 5)
    k("s_barrier")
    stamp(k, 6)
    k(f"s_lshl_b32 s43, s{SXCD}, 5")
    k(f"s_add_u32 s43, s43, {F2}")
    k(f"s_add_u32 s42, s43, s{SIDX}")
    flag_set(k, 42, local=True)
    k(f"s_mov_b32 s42, {CW}")
    poll(k, 42, 32, 8, 0)
    k("s_barrier")
    flag_poll(k, 43, 32, sl)
    stamp(k, 7)
    k("s_barrier")
    k("s_barrier")
    k("s_barrier")
    stamp(k, 8)
    res_map(k)
    k("s_lshr_b32 s43, s27, 1")
    k("s_and_b32 s44, s27, 1")
    k("s_lshl_b32 s45, s28, 1")
    k("s_add_u32 s44, s44, s45")
    k("s_lshl_b32 s42, s43, 4")
    k("s_add_u32 s42, s42, s44")
    k(f"s_add_u32 s42, s42, {F3}")
    flag_set(k, 42, local=True)
    idle = k.label("pidle")
    p4_map(k)
    k("s_cmp_eq_u32 s28, 15")
    k(f"s_cbranch_scc1 {idle}")
    k("s_lshl_b32 s46, s27, 4")
    k(f"s_add_u32 s42, s46, {F3}")
    flag_poll(k, 42, 16, sl)
    stamp(k, 9)
    k("s_barrier")
    for i in range(NCH4 + 1):
        k("s_barrier")
        if i == OPT.get('t3at', 8) and OPT.get('t3', 0):
            k(f"s_mul_i32 s42, s{SIDX}, {368*128}")
            k(f"s_add_u32 s42, s42, {WDF}")
            touch(k, 42, 368)
    k("s_barrier")
    stamp(k, 10)
    k("s_add_u32 s42, s46, s28")
    k(f"s_add_u32 s42, s42, {F4}")
    flag_set(k, 42, local=True)
    j = k.label("pjoin")
    k(f"s_branch {j}")
    k.place(idle)
    k("s_barrier")
    k.place(j)
    k("s_lshl_b32 s42, s43, 4")
    k(f"s_add_u32 s42, s42, {F4}")
    flag_poll(k, 42, 15, sl)
    stamp(k, 11)
    k("s_barrier")
    diag_end(k)

def diag_end(k):
    if not DIAG: return
    k("s_waitcnt vmcnt(0)")
    stamp(k, 14)
    k("s_memrealtime s[94:95]")
    k(f"s_lshl_b32 s40, s2, 4")
    k(f"s_add_u32 s40, s40, s{SW}")
    k(f"s_lshl_b32 s40, s40, 7")
    k(f"s_add_u32 s40, s40, {DIAGB}")
    k("s_waitcnt lgkmcnt(0)")
    for i in range(15):
        k(f"s_sub_u32 s{64+2*i}, s{64+2*i}, s96")
        k(f"v_mov_b32 v{8+i}, s{64+2*i}")
    k("v_mov_b32 v23, s94")
    k("v_mov_b32 v24, s98")
    k("v_mov_b32 v4, 0")
    k("s_mov_b64 exec, 1")
    for i in range(4):
        k(f"buffer_store_dwordx4 v[{8+4*i}:{11+4*i}], v4, s[20:23], s40 offen offset:{16*i}")
    k(f"buffer_store_dword v24, v4, s[20:23], s40 offen offset:64")
    if OPT.get('dbgout') is not None:
        l = k.label("dbo")
        k(f"s_lshl_b32 s41, s{SW}, 8")
        k(f"s_or_b32 s41, s41, s2")
        k(f"s_cmp_lg_u32 s41, {OPT['dbgout']}")
        k(f"s_cbranch_scc1 {l}")
        k("v_sub_u32 v8, v23, v24")
        for i in range(4):
            k(f"global_store_dwordx4 v4, v[{8+4*i}:{11+4*i}], s[60:61] offset:{4+16*i}")
        k.place(l)

def build(path):
    k = Kern(NAME)
    done, roleL, roleH, p2 = k.label("done"), k.label("L"), k.label("H"), k.label("p2")
    tail = []
    k(f"""
    s_cmp_ge_u32 s2, 256
    s_cbranch_scc1 {done}
    s_load_dwordx16 s[4:19], s[0:1], 0
    s_load_dwordx4 s[60:63], s[0:1], 64
    """)
    if DIAG:
        k("s_memtime s[96:97]")
        k("s_memrealtime s[98:99]")
    k(f"""
    v_lshrrev_b32 v1, 6, v0
    v_and_b32 v2, 63, v0
    s_and_b32 s{SXCD}, s2, 7
    s_lshr_b32 s{SIDX}, s2, 3
    v_readfirstlane_b32 s{SW}, v1
    v_lshlrev_b32 v3, 4, v2
    s_mov_b32 s50, {SLOT4}
    s_mov_b32 s51, {-(RING4-1)*SLOT4}
    """)
    p1_map(k)
    k("s_waitcnt lgkmcnt(0)")
    srd(k, 20, 62, WS_SIZE)
    k(f"s_cmp_ge_u32 s{SW}, 8")
    k(f"s_cbranch_scc1 {roleH}")
    k(f"s_cmp_ge_u32 s{SW}, 4")
    k(f"s_cbranch_scc1 {roleL}")
    p1_consumer(k)
    k.place(p2)
    p2_compute(k, tail)
    L3 = k.label("L3")
    k(f"s_cmp_ge_u32 s{SW}, 4")
    k(f"s_cbranch_scc1 {L3}")
    res_consumer(k, 'wo', 7)
    p4_consumer(k)
    res_consumer(k, 'down', 12)
    diag_end(k)
    k.place(done)
    k("s_endpgm")
    k.place(roleL)
    p1_loader(k)
    k(f"s_branch {p2}")
    k.place(L3)
    res_wsetup(k, 'wo')
    res_wload(k, 0, 16)
    k("s_waitcnt vmcnt(0)")
    k("s_barrier")
    k("s_barrier")
    k("s_barrier")
    p4_loader(k)
    diag_end(k)
    k("s_endpgm")
    k.place(roleH)
    p1_helper(k)
    p2_helper(k, done)
    poller(k)
    k("s_endpgm")
    for f in tail: f(k)
    hdr = """; Kernarg: 0 A_x, 8 A_wqkv, 16 A_wo, 24 B_x (unused), 32 W_gate, 40 W_up, 48 W_down, 56 out, 64 debug, 72 ws
; pre-LN transformer block in one persistent launch (256 workgroups, one per CU); generated by gen/gen4.py
; @launch grid=(256,1,1) block=(768,1,1) lds=163840
.amdgcn_target "amdgcn-amd-amdhsa--gfx950"
"""
    open(path, "w").write(hdr + k.text(168, 102 if DIAG else 64))

if __name__ == "__main__":
    for a in sys.argv[2:]:
        if "=" in a:
            kk, vv = a.split("=")
            OPT[kk] = int(vv) if vv.lstrip("-").isdigit() else vv.replace("+", " ")
    DIAG = "--diag" in sys.argv
    build(sys.argv[1])
```

```python
import sys, math
from dsl import Kern
from gen import (MB, QF, KF, VF, OF, XF, HF, ACT, WOF, WGF, WUF, WDF, ST, WS_SIZE, f32, ONES, MFMA, srd, half_sum,
                 finish_stats)
CNT = 25*MB
DIAGB = 28*MB
C1, C2, C3, C4, CW = 0, 8, 16, 32, 48
CSTRIP = 131072
PROG = CSTRIP + 10240
ROLE = 163832
NAME = "sequential_preLN__softmax_full_mha__glu_gated_reglu__prompt_kernel"
OPT = dict(slp=8, kvd=2, d1=4, prio=1, ld="sc1", st="sc1", nb2=4, depth4=5)
SXCD, SIDX, SW = 24, 25, 26
MF16 = "v_mfma_f32_16x16x32_bf16"
DIAG = False

def stamp(k, i):
    if DIAG: k(f"s_memtime s[{64+2*i}:{65+2*i}]")

def norm4(x, t, rs, nb, smask):
    ops = []
    for d in range(4):
        a, b = t[2*(d & 1)], t[2*(d & 1) + 1]
        ops.append([f"v_lshlrev_b32 v{a}, 16, v{x+d}", f"v_and_b32 v{b}, s{smask}, v{x+d}",
                    f"v_fma_f32 v{a}, v{a}, v{rs}, v{nb}", f"v_fma_f32 v{b}, v{b}, v{rs}, v{nb}",
                    f"v_cvt_pk_bf16_f32 v{x+d}, v{a}, v{b}"])
    o = []
    for p in (0, 2):
        for a, b in zip(ops[p], ops[p+1]): o += [a, b]
    return o

def lane_regs(k):
    k("v_mbcnt_lo_u32_b32 v2, -1, 0")
    k("v_mbcnt_hi_u32_b32 v2, -1, v2")
    k("v_lshlrev_b32 v3, 4, v2")

def dma(k, vo, srd_, so, m0expr, off=0, flag=""):
    k(f"s_add_u32 m0, {m0expr}")
    k.nop(1)
    k(f"buffer_load_dwordx4 v{vo}, s[{srd_}:{srd_+3}], s{so} offen" + (f" offset:{off}" if off else "") + f" {flag} lds")

def row8_sum(k, regs):
    for ctl in ("quad_perm:[1,0,3,2]", "quad_perm:[2,3,0,1]", "row_half_mirror"):
        k.nop(2)
        for r in regs:
            k(f"v_add_f32_dpp v{r}, v{r}, v{r} {ctl} row_mask:0xf bank_mask:0xf")

def arrive(k, sidx, va=8, vb=9):
    k(f"s_lshl_b32 s40, s{sidx}, 8")
    k(f"s_add_u32 s40, s40, {CNT}")
    k("s_mov_b64 exec, 1")
    k(f"v_mov_b32 v{va}, 1")
    k(f"v_mov_b32 v{vb}, 0")
    k(f"buffer_atomic_add v{va}, v{vb}, s[20:23], s40 offen sc1")

FLG = CNT + 65536
F1, F2, FX, F3, F4 = 0, 256, 512, 768, 1024
SLOC = 59
def pub_store(k, lines):
    if not OPT.get('loc', 1):
        for l in lines: k(l + " " + OPT['st'])
        return
    a, b = k.label("ps"), k.label("pe")
    k(f"s_cmp_eq_u32 s{SLOC}, 1")
    k(f"s_cbranch_scc1 {a}")
    for l in lines: k(l + " " + OPT['st'])
    k(f"s_branch {b}")
    k.place(a)
    for l in lines: k(l)
    k.place(b)

def flag_set(k, sline, val="1", local=False):
    k(f"s_lshl_b32 s40, s{sline}, 7")
    k(f"s_add_u32 s40, s40, {FLG}")
    k("s_mov_b64 exec, 1")
    k(f"v_mov_b32 v8, {val}")
    k("v_mov_b32 v9, 0")
    if local: pub_store(k, ["buffer_store_dword v8, v9, s[20:23], s40 offen"])
    else: k("buffer_store_dword v8, v9, s[20:23], s40 offen sc1")

def flag_poll(k, sline, n=32, slp=None):
    poll(k, sline, 1, n, slp, sh=7, base=FLG)

def poll(k, sidx, target, nlines=1, slp=None, sh=8, base=None):
    lp, out = k.label("poll"), k.label("pollx")
    k(f"s_lshl_b32 s40, s{sidx}, {sh}")
    k(f"s_add_u32 s40, s40, {CNT if base is None else base}")
    k(f"s_mov_b32 exec_lo, {hex((1 << nlines) - 1)}")
    k("s_mov_b32 exec_hi, 0")
    k(f"v_lshlrev_b32 v9, {sh}, v2")
    k("s_mov_b32 s41, 0")
    k.place(lp)
    slp = OPT.get('slp', 2) if slp is None else slp
    if slp: k(f"s_sleep {slp}")
    k("buffer_load_dword v10, v9, s[20:23], s40 offen sc1")
    k("s_add_u32 s41, s41, 1")
    k("s_cmp_gt_u32 s41, 0x40000")
    k(f"s_cbranch_scc1 {out}")
    k("s_waitcnt vmcnt(0)")
    k(f"v_cmp_gt_u32 vcc, {target}, v10" if target <= 64 else f"v_cmp_gt_u32 vcc, {hex(target)}, v10")
    k(f"s_cmp_lg_u64 vcc, 0")
    k(f"s_cbranch_scc1 {lp}")
    k.place(out)
    k("s_waitcnt vmcnt(0)")
    k("s_mov_b64 exec, -1")

def touch(k, base_s, nlines, reg=40):
    k("v_lshlrev_b32 v12, 7, v2")
    for i in range((nlines + 63)//64):
        rem = nlines - 64*i
        if rem < 64:
            k(f"s_mov_b32 exec_lo, {hex((1 << min(rem, 32)) - 1)}")
            k(f"s_mov_b32 exec_hi, {hex((1 << max(rem - 32, 0)) - 1)}")
        k(f"s_add_u32 s41, s{base_s}, {i*8192}")
        k(f"buffer_load_dword v{reg+i}, v12, s[20:23], s41 offen sc1")
    k("s_mov_b64 exec, -1")

def early_role(k):
    nt, tk, tkd = k.label("nt"), k.label("etk"), k.label("etkd")
    k(f"s_cmp_lg_u32 s{SW}, 8")
    k(f"s_cbranch_scc1 {nt}")
    k("s_getreg_b32 s56, hwreg(HW_REG_XCC_ID, 0, 4)")
    k("s_and_b32 s56, s56, 7")
    k("s_mov_b64 exec, 1")
    k("v_mov_b32 v46, 1")
    k.place(tk)
    k("s_lshl_b32 s57, s56, 5")
    k("s_add_u32 s57, s57, 16")
    k("v_mov_b32 v45, s57")
    k("global_atomic_add v44, v45, v46, s[60:61] sc0 sc1")
    k("s_waitcnt vmcnt(0)")
    k("v_readfirstlane_b32 s57, v44")
    k("s_add_u32 s58, s56, 1")
    k("s_cmp_lt_u32 s57, 32")
    k(f"s_cbranch_scc1 {tkd}")
    k("s_and_b32 s56, s58, 7")
    k(f"s_branch {tk}")
    k.place(tkd)
    k("s_lshl_b32 s57, s57, 3")
    k("s_or_b32 s57, s57, s56")
    k(f"v_mov_b32 v4, {ROLE}")
    k("v_mov_b32 v5, s57")
    k("ds_write_b32 v4, v5")
    k("s_mov_b64 exec, -1")
    k("s_waitcnt lgkmcnt(0)")
    k.place(nt)
    k("s_barrier")
    role_read(k, True)

def role_read(k, force=False):
    if OPT.get('dyn', 1) != 1 and not force: return
    k(f"v_mov_b32 v4, {ROLE}")
    k("ds_read_b32 v4, v4")
    k("s_waitcnt lgkmcnt(0)")
    k(f"v_readfirstlane_b32 s{SIDX}, v4")
    k.nop(1)
    k(f"s_and_b32 s{SXCD}, s{SIDX}, 7")
    k(f"s_lshr_b32 s{SIDX}, s{SIDX}, 3")

def p1_map(k):
    k(f"""
    s_lshr_b32 s27, s{SXCD}, 1
    s_lshl_b32 s27, s27, 3
    s_and_b32 s28, s{SIDX}, 7
    s_add_u32 s27, s27, s28
    s_and_b32 s28, s{SXCD}, 1
    s_lshl_b32 s28, s28, 2
    s_lshr_b32 s29, s{SIDX}, 3
    s_add_u32 s28, s28, s29
    """)
EXC = 65536 + 3*12288
EXS = 65536 + 2*12288

def p1_consumer(k):
    SRB, SCB = 27, 28
    VXA, VWA = 12, 16
    WB = [20, 32, 44, 56]; XB = [68, 72, 76, 80]; ACC = 84; CS = 132; SEL = 144
    k(f"""
    v_and_b32 v8, 31, v2
    v_lshrrev_b32 v4, 5, v2
    v_lshrrev_b32 v5, 1, v8
    v_and_b32 v5, 7, v5
    s_and_b32 s34, s{SW}, 1
    s_lshl_b32 s35, s34, 12
    v_lshlrev_b32 v6, 7, v8
    v_add_u32 v6, s35, v6
    """)
    for u in range(4):
        k(f"v_add_u32 v7, {2*u}, v4")
        k(f"v_xor_b32 v7, v7, v5")
        k(f"v_lshl_add_u32 v{VXA+u}, v7, 4, v6")
    k(f"""
    s_lshr_b32 s36, s{SW}, 1
    v_bfe_u32 v5, v2, 2, 2
    v_lshl_add_u32 v6, v4, 3, v5
    v_lshlrev_b32 v6, 7, v6
    v_bfe_u32 v7, v2, 4, 1
    v_lshlrev_b32 v7, 1, v7
    v_bfe_u32 v11, v2, 1, 1
    v_add_u32 v7, v7, v11
    s_lshl_b32 s37, s36, 2
    v_add_u32 v7, s37, v7
    v_lshrrev_b32 v5, 1, v5
    v_lshlrev_b32 v5, 2, v5
    v_xor_b32 v7, v7, v5
    v_lshl_add_u32 v6, v7, 4, v6
    v_and_b32 v7, 1, v2
    v_lshl_add_u32 v{VWA+1}, v7, 3, v6
    v_add_u32 v{VWA+1}, 0x10000, v{VWA+1}
    v_mov_b32 v{VWA}, v{VWA+1}
    v_and_b32 v5, 15, v2
    v_bfe_u32 v7, v2, 4, 1
    v_cmp_eq_u32 vcc, v5, v7
    v_mov_b32 v6, {hex(ONES)}
    s_mov_b32 s47, 0
    v_cndmask_b32 v{SEL}, 0, v6, vcc
    """)
    for i in range(1, 4): k(f"v_mov_b32 v{SEL+i}, v{SEL}")
    for i in range(60): k(f"v_mov_b32 v{ACC+i}, 0")
    k(f"""
    s_lshl_b32 s40, s{SCB}, 2
    s_lshl_b32 s41, s36, 1
    s_add_u32 s40, s40, s41
    s_lshl_b32 s40, s40, 16
    s_lshl_b32 s41, s{SRB}, 1
    s_add_u32 s41, s41, s34
    s_lshl_b32 s41, s41, 10
    s_add_u32 s40, s40, s41
    v_bfe_u32 v9, v2, 4, 1
    v_lshlrev_b32 v9, 16, v9
    v_lshl_add_u32 v9, v4, 8, v9
    v_lshl_add_u32 v9, v5, 4, v9
    s_add_u32 s43, s40, {QF + 65536}
    s_add_u32 s44, s40, {KF}
    s_add_u32 s45, s40, {KF + 65536}
    s_add_u32 s46, s40, {VF}
    s_mov_b32 s48, 0
    """)
    def xrd(u, b): k(f"ds_read_b128 v[{b}:{b+3}], v{VXA+u}")
    def wrd(u, b, p):
        for r in range(2):
            k(f"ds_read_b64_tr_b16 v[{b+4*p+2*r}:{b+4*p+2*r+1}], v{VWA} offset:{(u >> 1)*12288 + p*4096 + (u & 1)*2048 + r*512}")
    stamp(k, 0)
    k("s_barrier")
    stamp(k, 1)
    for u in range(2):
        xrd(u, XB[u])
        for p in range(3): wrd(u, WB[u], p)
    odd, ep = k.label("p1odd"), k.label("p1ep")
    k("s_cmp_eq_u32 s34, 1")
    k(f"s_cbranch_scc1 {odd}")
    for par in range(2):
        if par == 1: k.place(odd)
        ml = k.label("p1ml")
        k(".p2align 3")
        k.place(ml)
        for u in range(4):
            if u == 2:
                k("s_add_u32 s48, s48, 24576")
                k(f"s_cmp_eq_u32 s48, {8*12288}")
                k("s_cselect_b32 s48, 0, s48")
                k(f"v_add_u32 v{VXA}, 8192, v{VXA}")
                k(f"v_add_u32 v{VXA+1}, 8192, v{VXA+1}")
                k("s_barrier")
                k(f"v_add_u32 v{VWA}, s48, v{VWA+1}")
            b, x = WB[u], XB[u]
            nu = (u+2) & 3
            cs = (u & 1) == par and not OPT.get('z_nocs')
            k("s_waitcnt lgkmcnt(7)")
            k(f"{MFMA} v[{ACC}:{ACC+15}], v[{b}:{b+3}], v[{x}:{x+3}], v[{ACC}:{ACC+15}]")
            xrd(nu, XB[nu])
            wrd(nu, WB[nu], 0)
            if cs: k(f"{MF16} v[{CS}:{CS+3}], v[{SEL}:{SEL+3}], v[{b}:{b+3}], v[{CS}:{CS+3}]")
            k(f"{MFMA} v[{ACC+16}:{ACC+31}], v[{b+4}:{b+7}], v[{x}:{x+3}], v[{ACC+16}:{ACC+31}]")
            wrd(nu, WB[nu], 1)
            if cs: k(f"{MF16} v[{CS+4}:{CS+7}], v[{SEL}:{SEL+3}], v[{b+4}:{b+7}], v[{CS+4}:{CS+7}]")
            k(f"{MFMA} v[{ACC+32}:{ACC+47}], v[{x}:{x+3}], v[{b+8}:{b+11}], v[{ACC+32}:{ACC+47}]")
            wrd(nu, WB[nu], 2)
            if cs: k(f"{MF16} v[{CS+8}:{CS+11}], v[{SEL}:{SEL+3}], v[{b+8}:{b+11}], v[{CS+8}:{CS+11}]")
            if u == 3:
                for q in range(2, 4): k(f"v_add_u32 v{VXA+q}, 8192, v{VXA+q}")
                k("s_add_u32 s47, s47, 1")
                k("s_cmp_lt_u32 s47, 8")
        k(f"s_cbranch_scc1 {ml}")
        if par == 0: k(f"s_branch {ep}")
    k.place(ep)
    stamp(k, 2)
    k(f"""
    s_lshl_b32 s35, s34, 1
    s_add_u32 s35, s35, s36
    s_mul_i32 s35, s35, 384
    s_add_u32 s35, s35, {EXC}
    v_lshl_add_u32 v5, v2, 2, s35
    s_mul_i32 s37, s36, 384
    s_add_u32 s37, s37, {EXC}
    v_lshl_add_u32 v6, v4, 4, s37
    v_lshl_add_u32 v7, v8, 2, s37
    s_lshl_b32 s38, s34, 7
    s_add_u32 s38, s38, {EXS}
    v_lshl_add_u32 v10, v8, 2, s38
    v_lshl_add_u32 v11, v4, 4, s38
    s_mov_b64 exec, 0xffff
    """)
    for p in range(3):
        k(f"ds_write2_b32 v5, v{CS+4*p}, v{CS+4*p+1} offset0:{32*p} offset1:{32*p+16}")
    k("s_mov_b64 exec, -1")
    k("s_waitcnt lgkmcnt(0)")
    k("s_barrier")
    A, B, RSV, NBV = 20, 36, 52, 68
    RS, NB, CV = 132, 134, 136
    k(f"ds_read_b32 v{RS}, v10")
    k(f"ds_read_b32 v{NB}, v10 offset:256")
    def csrd(p):
        for g in range(4):
            k(f"ds_read_b128 v[{A+4*g}:{A+4*g+3}], v6 offset:{p*128 + g*32}")
            k(f"ds_read_b128 v[{B+4*g}:{B+4*g+3}], v6 offset:{768 + p*128 + g*32}")
    csrd(0)
    k(f"ds_read_b32 v{CV}, v7 offset:256")
    k(f"ds_read_b32 v{CV+1}, v7 offset:{768 + 256}")
    k(f"s_mov_b32 s42, {hex(f32(0.25*math.log2(math.e)))}")
    k("s_waitcnt lgkmcnt(10)")
    k(f"v_mul_f32 v138, s42, v{RS}")
    k(f"v_mul_f32 v140, s42, v{NB}")
    st = OPT['st']
    P = 144
    def fold(acc, rs, nb):
        for r in range(0, 16, 2):
            k(f"v_pk_add_f32 v[{A+r}:{A+r+1}], v[{A+r}:{A+r+1}], v[{B+r}:{B+r+1}]")
        for r in range(0, 16, 2):
            k(f"v_pk_mul_f32 v[{A+r}:{A+r+1}], v[{A+r}:{A+r+1}], v[{nb}:{nb+1}] op_sel_hi:[1,0]")
        for r in range(0, 16, 2):
            k(f"v_pk_fma_f32 v[{acc+r}:{acc+r+1}], v[{acc+r}:{acc+r+1}], v[{rs}:{rs+1}], v[{A+r}:{A+r+1}] op_sel_hi:[1,0,1]")
    def pack(acc, p, so0, so1, va, off1=0):
        for d in range(8):
            k(f"v_cvt_pk_bf16_f32 v{p+d}, v{acc+2*d}, v{acc+2*d+1}")
            if d == 3: k(f"buffer_store_dwordx4 v[{p}:{p+3}], v{va}, s[20:23], s{so0} offen {st}")
        k(f"buffer_store_dwordx4 v[{p+4}:{p+7}], v{va}, s[20:23], s{so1} offen" + (f" offset:{off1}" if off1 else "") + f" {st}")
    k("s_waitcnt lgkmcnt(2)")
    fold(ACC, 138, 140)
    csrd(1)
    for g in range(4):
        k(f"ds_read_b128 v[{RSV+4*g}:{RSV+4*g+3}], v11 offset:{g*32}")
    pack(ACC, P, 40, 43, 3)
    k("s_waitcnt lgkmcnt(4)")
    for g in range(4):
        k(f"ds_read_b128 v[{NBV+4*g}:{NBV+4*g+3}], v11 offset:{256 + g*32}")
    fold(ACC+16, RS, NB)
    pack(ACC+16, P+8, 44, 45, 3)
    k(f"v_add_f32 v{CV}, v{CV}, v{CV+1}")
    k("s_waitcnt lgkmcnt(0)")
    for r in range(0, 16, 2):
        k(f"v_pk_mul_f32 v[{NBV+r}:{NBV+r+1}], v[{NBV+r}:{NBV+r+1}], v[{CV}:{CV+1}] op_sel_hi:[1,0]")
    for r in range(0, 16, 2):
        k(f"v_pk_fma_f32 v[{ACC+32+r}:{ACC+33+r}], v[{ACC+32+r}:{ACC+33+r}], v[{RSV+r}:{RSV+r+1}], v[{NBV+r}:{NBV+r+1}]")
    pack(ACC+32, P+16, 46, 46, 9, 512)
    stamp(k, 3)
    k("s_waitcnt vmcnt(0)")
    k("s_barrier")
    role_read(k)
    k("s_barrier")

def relayout(k):
    st = OPT['st']
    PRE = [16, 44]
    k(f"""
    v_and_b32 v6, 31, v2
    v_lshrrev_b32 v7, 5, v2
    v_lshlrev_b32 v12, 10, v6
    v_lshl_add_u32 v12, v7, 3, v12
    v_mul_u32_u24 v13, {4*2752}, v7
    v_lshl_add_u32 v13, v6, 1, v13
    v_lshlrev_b32 v14, 12, v7
    v_lshl_add_u32 v14, v6, 1, v14
    s_lshl_b32 s42, s2, 3
    s_lshl_b32 s43, s29, 1
    s_add_u32 s42, s42, s43
    """)
    def wload(reg, voffreg, soffreg, pitch):
        for j in range(8):
            row = 8*(j >> 2) + (j & 3)
            k(f"s_add_u32 s49, s{soffreg}, {row*pitch}")
            k(f"buffer_load_ushort v{reg+j}, v{voffreg}, s[44:47], s49 offen")
    def item_loads(i):
        P_, D0 = PRE[i], (37, 52)[i]
        k(f"s_add_u32 s{D0+2}, s42, {i}")
        G = D0 + 2
        srd(k, 44, 4, 2*MB)
        k(f"""
        s_lshr_b32 s43, s{G}, 5
        s_lshl_b32 s43, s43, 15
        s_and_b32 s48, s{G}, 31
        s_lshl_b32 s48, s48, 5
        s_add_u32 s43, s43, s48
        buffer_load_dwordx2 v[{P_}:{P_+1}], v12, s[44:47], s43 offen
        buffer_load_dwordx2 v[{P_+2}:{P_+3}], v12, s[44:47], s43 offen offset:16
        s_mov_b32 s50, {(2**32 + 42)//43}
        s_mul_hi_u32 s51, s{G}, s50
        s_mul_i32 s58, s51, 43
        s_sub_u32 s58, s{G}, s58
        s_mul_i32 s59, s51, {16*2752}
        s_lshl_b32 s48, s58, 6
        s_add_u32 s59, s59, s48
        s_lshl_b32 s{D0}, s58, 5
        s_add_u32 s{D0}, s{D0}, s51
        s_lshl_b32 s{D0}, s{D0}, 10
        s_cmp_lt_u32 s{G}, 1376
        s_cselect_b32 s50, {512*2752}, 0
        s_mov_b32 s44, s12
        s_and_b32 s45, s13, 0xffff
        s_mov_b32 s46, s50
        """)
        wload(P_+4, 13, 59, 2752)
        k("s_mov_b32 s44, s14")
        k("s_and_b32 s45, s15, 0xffff")
        wload(P_+12, 13, 59, 2752)
        k(f"""
        s_sub_u32 s48, s{G}, 1376
        s_cmp_lt_u32 s{G}, 1376
        s_cselect_b32 s48, s{G}, s48
        s_cselect_b32 s44, s16, s8
        s_cselect_b32 s45, s17, s9
        s_cselect_b32 s46, {1376*1024}, 0
        s_cselect_b32 s50, 86, 32
        s_cselect_b32 s43, {WDF - WOF}, 0
        s_and_b32 s45, s45, 0xffff
        s_sub_u32 s51, s{G}, 1376
        s_cmp_lt_u32 s51, 512
        s_cselect_b32 s46, {512*1024}, s46
        s_and_b32 s58, s48, 15
        s_lshr_b32 s51, s48, 4
        s_lshl_b32 s59, s51, 14
        s_lshl_b32 s48, s58, 6
        s_add_u32 s59, s59, s48
        s_mul_i32 s{D0+1}, s58, s50
        s_add_u32 s{D0+1}, s{D0+1}, s51
        s_lshl_b32 s{D0+1}, s{D0+1}, 10
        s_add_u32 s{D0+1}, s{D0+1}, s43
        """)
        wload(P_+20, 14, 59, 1024)
    def pack_store(reg, dstreg, base):
        for d in range(4):
            k(f"v_lshl_or_b32 v{reg+d}, v{reg+2*d+1}, 16, v{reg+2*d}")
        k(f"s_add_u32 s49, s{dstreg}, {base}")
        k(f"buffer_store_dwordx4 v[{reg}:{reg+3}], v3, s[20:23], s49 offen {st}")
    def item_stores(i):
        P_, D0 = PRE[i], (37, 52)[i]
        G = D0 + 2
        l1, l2 = k.label("is1"), k.label("is2")
        k(f"s_lshl_b32 s43, s{G}, 10")
        k(f"s_add_u32 s43, s43, {XF}")
        k(f"buffer_store_dwordx4 v[{P_}:{P_+3}], v3, s[20:23], s43 offen {st}")
        k(f"s_cmp_lt_u32 s{G}, 1376")
        k(f"s_cbranch_scc0 {l1}")
        pack_store(P_+4, D0, WGF)
        pack_store(P_+12, D0, WUF)
        k.place(l1)
        k(f"s_cmp_lt_u32 s{G}, 1888")
        k(f"s_cbranch_scc0 {l2}")
        pack_store(P_+20, D0+1, WOF)
        k.place(l2)
    return item_loads, item_stores

def p1_loader(k):
    SRB, SCB = 27, 28
    VXE, VXO, VW = 8, 9, 10
    k(f"""
    s_sub_u32 s29, s{SW}, 4
    v_lshrrev_b32 v11, 3, v2
    v_and_b32 v4, 7, v2
    v_lshrrev_b32 v5, 4, v2
    v_xor_b32 v6, v4, v5
    v_lshlrev_b32 v6, 4, v6
    s_lshl_b32 s35, s29, 4
    v_add_u32 v7, s35, v11
    v_lshlrev_b32 v12, 10, v7
    v_add_u32 v{VXE}, v12, v6
    v_xor_b32 v6, 64, v6
    v_add_u32 v{VXO}, v12, v6
    v_add_u32 v{VXO}, 8192, v{VXO}
    s_lshl_b32 s35, s29, 3
    v_add_u32 v7, s35, v11
    v_and_b32 v5, 1, v5
    v_lshlrev_b32 v5, 2, v5
    v_xor_b32 v5, v4, v5
    v_lshlrev_b32 v5, 4, v5
    v_mul_u32_u24 v7, 3072, v7
    v_add_u32 v{VW}, v7, v5
    s_lshl_b32 s31, s29, 10
    s_lshl_b32 s36, s29, 11
    s_lshl_b32 s30, s{SRB}, 16
    s_lshl_b32 s32, s{SCB}, 7
    """)
    srd(k, 52, 4, 2*MB)
    srd(k, 56, 6, 512*3072)
    n = lambda c: 3 + (0 if c & 1 else 2)
    def issue(c):
        if OPT.get('z_nodma1') and c > 2: return
        if not c & 1:
            k(f"s_add_u32 s33, s30, {(c//2)*128}")
            for o in range(2):
                dma(k, VXE if o == 0 else VXO, 52, 33, f"s36, {(c//2)*8192 + o*1024}")
        for p in range(3):
            k(f"s_add_u32 s33, s32, {32*c*3072 + p*1024}")
            dma(k, VW, 56, 33, f"s31, {65536 + (c % 8)*12288 + p*4096}")
    issued = OPT.get('d1', 4)
    for c in range(issued): issue(c)
    for P in range(9):
        k(f"s_waitcnt vmcnt({sum(n(j) for j in range(2*P+2, issued))})")
        k("s_barrier")
        m = 0
        while issued < 16 and issued - 8 <= 2*P - 3 and m < 4:
            issue(issued); issued += 1; m += 1
    k("s_barrier")
    k("s_barrier")
    role_read(k)
    k("s_barrier")

def p1_helper(k):
    k(f"s_setprio {OPT.get('hprio', 3)}")
    X, SQ, SX, T, RS, NB = 16, 24, 28, 32, 36, 38
    init_done = k.label("initd")
    k(f"""
    s_cmp_lg_u32 s{SW}, 8
    s_cbranch_scc1 {init_done}
    s_lshl_b32 s30, s2, 7
    s_add_u32 s30, s30, {FLG}
    v_lshl_add_u32 v4, v2, 15, s30
    s_and_b32 s30, s2, 7
    s_lshl_b32 s30, s30, 8
    s_add_u32 s30, s30, {CNT + CW*256}
    v_mov_b32 v5, 0
    v_writelane_b32 v4, s30, 5
    s_mov_b64 exec, 63
    buffer_store_dword v5, v4, s[20:23], 0 offen sc1
    s_mov_b64 exec, -1
    """)
    k.place(init_done)
    if OPT.get('dyn', 1) == 1:
        tkx = k.label("tkx")
        def ticket():
            k("s_lshl_b32 s57, s56, 5")
            k("s_add_u32 s57, s57, 16")
            k("s_mov_b64 exec, 1")
            k("v_mov_b32 v45, s57")
            k("v_mov_b32 v46, 1")
            k("global_atomic_add v44, v45, v46, s[60:61] sc0 sc1")
            k("s_mov_b64 exec, -1")
        def first_ticket():
            k(f"s_cmp_lg_u32 s{SW}, 8")
            k(f"s_cbranch_scc1 {tkx}")
            k("s_getreg_b32 s56, hwreg(HW_REG_XCC_ID, 0, 4)")
            k("s_and_b32 s56, s56, 7")
            k("s_waitcnt vmcnt(0)")
            ticket()
            k.place(tkx)
        if OPT.get('tkat', 5) < 0: first_ticket()
    k(f"""
    s_sub_u32 s29, s{SW}, 8
    s_lshl_b32 s30, s29, 10
    v_add_u32 v4, s30, v3
    s_mov_b32 s39, {hex(ONES)}
    """)
    if OPT.get('t1', 0):
        srd(k, 44, 4, 2*MB)
        srd(k, 52, 6, 512*3072)
        k(f"""
        s_lshr_b32 s31, s{SXCD}, 1
        s_lshl_b32 s31, s31, 9
        s_lshl_b32 s32, s{SIDX}, 4
        s_add_u32 s31, s31, s32
        s_lshl_b32 s31, s31, 10
        s_lshl_b32 s32, s29, 7
        s_add_u32 s31, s31, s32
        v_lshlrev_b32 v12, 10, v2
        v_mul_u32_u24 v13, 43, v2
        v_lshrrev_b32 v13, 9, v13
        v_mul_u32_u24 v14, 12, v13
        v_sub_u32 v14, v2, v14
        v_lshrrev_b32 v15, 2, v14
        v_and_b32 v14, 3, v14
        v_lshlrev_b32 v14, 7, v14
        v_lshl_add_u32 v14, v15, 10, v14
        v_mul_u32_u24 v13, 3072, v13
        v_add_u32 v13, v13, v14
        s_lshl_b32 s32, s29, 6
        s_lshl_b32 s33, s{SIDX}, 1
        s_add_u32 s32, s32, s33
        s_mul_i32 s32, s32, 3072
        s_and_b32 s33, s{SXCD}, 1
        s_lshl_b32 s33, s33, 9
        s_add_u32 s32, s32, s33
        s_add_u32 s33, s32, {256*3072}
        s_mov_b32 exec_hi, 0
        s_mov_b32 exec_lo, 0xffff
        buffer_load_dword v40, v12, s[44:47], s31 offen
        s_mov_b32 exec_lo, 0xffffff
        buffer_load_dword v41, v13, s[52:55], s32 offen
        s_mov_b32 exec_lo, 0xffff
        buffer_load_dword v42, v12, s[44:47], s31 offen offset:512
        s_mov_b32 exec_lo, 0xffffff
        buffer_load_dword v43, v13, s[52:55], s33 offen
        s_mov_b64 exec, -1
        """)
    for c in range(9):
        k("s_barrier")
        if OPT.get('dyn', 1) == 1 and c == OPT.get('tkat', 5): first_ticket()
        if c < 8 and not (OPT.get('z_nostat') and c > 0):
            cc = c
            k(f"ds_read_b128 v[{X}:{X+3}], v4 offset:{cc*8192}")
            k(f"ds_read_b128 v[{X+4}:{X+7}], v4 offset:{cc*8192 + 4096}")
            for hf in range(2):
                k(f"s_waitcnt lgkmcnt({1-hf})")
                for d in range(4):
                    r = X + 4*hf + d
                    q, sx = SQ + 2*hf + (d & 1), SX + 2*hf + (d & 1)
                    first = (cc == 0 and d < 2)
                    k(f"v_dot2_f32_bf16 v{q}, v{r}, v{r}, {'0' if first else 'v%d' % q}")
                    k(f"v_dot2_f32_bf16 v{sx}, v{r}, s39, {'0' if first else 'v%d' % sx}")
        if c == 7:
            k.nop(3)
            k(f"v_add_f32 v{SQ}, v{SQ}, v{SQ+1}")
            k(f"v_add_f32 v{SQ+2}, v{SQ+2}, v{SQ+3}")
            k(f"v_add_f32 v{SX}, v{SX}, v{SX+1}")
            k(f"v_add_f32 v{SX+2}, v{SX+2}, v{SX+3}")
            row8_sum(k, [SQ, SQ+2, SX, SX+2])
        if c == 7:
            for hf in range(2):
                finish_stats(k, SX + 2*hf, SQ + 2*hf, RS + hf, NB + hf, T, T+1)
            k(f"""
            v_lshrrev_b32 v5, 3, v2
            s_lshl_b32 s30, s29, 5
            s_add_u32 s30, s30, {EXS}
            v_lshl_add_u32 v5, v5, 2, s30
            ds_write2_b32 v5, v{RS}, v{RS+1} offset0:0 offset1:32
            ds_write2_b32 v5, v{NB}, v{NB+1} offset0:64 offset1:96
            """)
    k("s_waitcnt lgkmcnt(0)")
    k("s_barrier")
    if OPT.get('dyn', 1) == 1:
        nw = k.label("nrw")
        k(f"s_cmp_lg_u32 s{SW}, 8")
        k(f"s_cbranch_scc1 {nw}")
        tk, tkd = k.label("tk"), k.label("tkd")
        k.place(tk)
        k("s_waitcnt vmcnt(0)")
        k("v_readfirstlane_b32 s57, v44")
        k.nop(1)
        k("s_cmp_lt_u32 s57, 32")
        k(f"s_cbranch_scc1 {tkd}")
        k("s_add_u32 s56, s56, 1")
        k("s_and_b32 s56, s56, 7")
        ticket()
        k(f"s_branch {tk}")
        k.place(tkd)
        k("s_lshl_b32 s57, s57, 3")
        k("s_or_b32 s57, s57, s56")
        k(f"v_mov_b32 v4, {ROLE}")
        k("v_mov_b32 v5, s57")
        k("ds_write_b32 v4, v5")
        k("s_waitcnt lgkmcnt(0)")
        k.place(nw)
    k("s_barrier")
    role_read(k)
    stamp(k, 0)
    nop_ = k.label("h1n")
    k(f"s_cmp_lg_u32 s{SW}, 8")
    k(f"s_cbranch_scc1 {nop_}")
    g, gx = k.label("gate"), k.label("gatex")
    k("s_mov_b32 s41, 0")
    k("v_lshlrev_b32 v9, 5, v2")
    k("s_mov_b64 exec, 0xff")
    k.place(g)
    k("global_load_dword v10, v9, s[60:61] offset:16 sc1")
    k("s_add_u32 s41, s41, 1")
    k("s_cmp_gt_u32 s41, 0x40000")
    k(f"s_cbranch_scc1 {gx}")
    k("s_waitcnt vmcnt(0)")
    k("v_cmp_gt_u32 vcc, 32, v10")
    k("s_cmp_eq_u64 vcc, 0")
    k(f"s_cbranch_scc1 {gx}")
    k("s_sleep 8")
    k(f"s_branch {g}")
    k.place(gx)
    stamp(k, 1)
    k(f"s_lshl_b32 s42, s28, 5")
    k(f"s_add_u32 s42, s42, s27")
    flag_set(k, 42)
    k("s_getreg_b32 s58, hwreg(HW_REG_XCC_ID, 0, 4)")
    k("s_add_u32 s58, s58, 1")
    k(f"s_lshl_b32 s42, s{SXCD}, 5")
    k(f"s_add_u32 s42, s42, s{SIDX}")
    k(f"s_add_u32 s42, s42, {FX}")
    flag_set(k, 42, "s58")
    k(f"s_lshr_b32 s42, s{SIDX}, 2")
    k(f"s_lshl_b32 s42, s42, 5")
    flag_poll(k, 42)
    stamp(k, 2)
    k.place(nop_)
    k("s_barrier")

def rowmax(k, S, dst, t1, t2):
    k(f"v_max3_f32 v{dst}, v{S}, v{S+1}, v{S+2}")
    k(f"v_max3_f32 v{t1}, v{S+3}, v{S+4}, v{S+5}")
    k(f"v_max3_f32 v{dst}, v{dst}, v{S+6}, v{S+7}")
    k(f"v_max3_f32 v{t1}, v{t1}, v{S+8}, v{S+9}")
    k(f"v_max3_f32 v{dst}, v{dst}, v{S+10}, v{S+11}")
    k(f"v_max3_f32 v{t1}, v{t1}, v{S+12}, v{S+13}")
    k(f"v_max3_f32 v{dst}, v{dst}, v{S+14}, v{S+15}")
    k(f"v_max_f32 v{t1}, v{dst}, v{t1}")
    k(f"v_mov_b32 v{t2}, v{t1}")
    k.nop(2)
    k(f"v_permlane32_swap_b32 v{t1}, v{t2}")
    k.nop(1)
    k(f"v_max_f32 v{dst}, v{t1}, v{t2}")

def p2_compute(k, tail):
    Q = 8; KB = [12, 16]; V1 = [20, 28]; V2 = [24, 32]; P = 36; SS = [48, 64]; CN = 80; O = 96
    VKA, VVA, VINC = 4, 5, 47
    PRG, VPR = 112, 6
    chk, spin = k.label("chk"), k.label("spin")
    def spinf(k):
        k.place(spin)
        k("s_sleep 1")
        k(f"ds_read_b128 v[{PRG}:{PRG+3}], v{VPR}")
        k("s_waitcnt lgkmcnt(0)")
        k(f"s_branch {chk}")
    tail.append(spinf)
    k(f"""
    s_lshl_b32 s30, s{SXCD}, 3
    s_add_u32 s30, s30, s{SW}
    s_lshl_b32 s31, s30, 10
    s_lshl_b32 s29, s{SIDX}, 16
    s_add_u32 s31, s31, s29
    buffer_load_dwordx4 v[{Q}:{Q+3}], v3, s[20:23], s31 offen {OPT['ld']}
    v_mov_b32 v{VKA}, v3
    v_lshrrev_b32 v6, 5, v2
    v_lshlrev_b32 v6, 8, v6
    v_and_b32 v7, 15, v2
    v_lshl_add_u32 v{VVA}, v7, 4, v6
    v_add_u32 v{VVA}, 0x10000, v{VVA}
    v_and_b32 v6, 31, v2
    v_add_u32 v7, -20, v6
    v_cmp_gt_u32 vcc, 8, v7
    v_mov_b32 v44, {CSTRIP}
    v_mov_b32 v45, {CSTRIP + 64}
    v_cndmask_b32 v44, v44, v45, vcc
    v_and_b32 v7, 27, v2
    v_cmp_eq_u32 vcc, 16, v7
    v_add_u32 v45, 16, v44
    s_nop 0
    v_cndmask_b32 v44, v44, v45, vcc
    v_cmp_gt_u32 vcc, 16, v6
    v_mov_b32 v45, 8192
    s_nop 0
    v_cndmask_b32 v{VVA}, v44, v{VVA}, vcc
    v_cndmask_b32 v{VINC}, 0, v45, vcc
    """)
    k(f"v_mov_b32 v{VPR}, {PROG}")
    for r in range(4): k(f"v_mov_b32 v{V2[1]+r}, 0")
    for r in range(8): k(f"v_mov_b32 v{P+r}, 0")
    for r in range(16): k(f"v_mov_b32 v{O+r}, 0")
    def vread(kk, buf, off):
        kk(f"ds_read_b128 v[{V1[buf]}:{V1[buf]+3}], v{VVA} offset:{off}")
        kk(f"ds_read_b128 v[{V2[buf]}:{V2[buf]+3}], v{VVA} offset:{off+512}")
    stamp(k, 4)
    k("s_barrier")
    stamp(k, 5)
    k(f"ds_read_b128 v[{KB[0]}:{KB[0]+3}], v{VKA}")
    k(f"ds_read_b128 v[{KB[1]}:{KB[1]+3}], v{VKA} offset:1024")
    vread(k, 0, 0)
    k("s_waitcnt vmcnt(0) lgkmcnt(3)")
    k(f"{MFMA} v[{SS[0]}:{SS[0]+15}], v[{KB[0]}:{KB[0]+3}], v[{Q}:{Q+3}], 0")
    k.nop(12)
    rowmax(k, SS[0], 44, 45, 46)
    for r in range(16): k(f"v_sub_f32 v{CN+r}, 0, v44")
    k.nop(2)
    k(f"{MFMA} v[{SS[0]}:{SS[0]+15}], v[{KB[0]}:{KB[0]+3}], v[{Q}:{Q+3}], v[{CN}:{CN+15}]")
    k("s_mov_b32 s38, 0")
    k.nop(10)
    loop = k.label("loop")
    k(".p2align 6")
    k.place(loop)
    pr = OPT['prio']
    for t in range(8):
        cur, nx = SS[t & 1], SS[(t+1) & 1]
        e = lambda i: k(f"v_exp_f32 v{cur+i}, v{cur+i}")
        c = lambda i: k(f"v_cvt_pk_bf16_f32 v{P+i}, v{cur+2*i}, v{cur+2*i+1}")
        k("s_waitcnt lgkmcnt(0)")
        if t == 6:
            k.place(chk)
            k(f"v_min3_u32 v{PRG}, v{PRG}, v{PRG+1}, v{PRG+2}")
            k(f"v_min_u32 v{PRG}, v{PRG}, v{PRG+3}")
            k(f"v_cmp_ge_u32 vcc, s38, v{PRG}")
            k("s_cmp_lg_u64 vcc, 0")
            k(f"s_cbranch_scc1 {spin}")
        k("s_setprio 0" if pr else "s_nop 0")
        kb = KB[(t+1) & 1]
        k(f"{MFMA} v[{nx}:{nx+15}], v[{kb}:{kb+3}], v[{Q}:{Q+3}], v[{CN}:{CN+15}]")
        k(f"ds_read_b128 v[{KB[t&1]}:{KB[t&1]+3}], v{VKA} offset:{(t+2)*1024}")
        e(0); e(1)
        pb = (t+1) & 1
        k(f"{MFMA} v[{O}:{O+15}], v[{V2[pb]}:{V2[pb]+3}], v[{P+4}:{P+7}], v[{O}:{O+15}]")
        vread(k, pb, (t+1)*1024)
        if t == 5: k(f"ds_read_b128 v[{PRG}:{PRG+3}], v{VPR}")
        e(2); e(3); c(0)
        if pr: k("s_setprio 1")
        e(4); e(5); c(1); e(6); e(7); c(2); e(8); e(9); c(3); e(10); e(11)
        k(f"{MFMA} v[{O}:{O+15}], v[{V1[t&1]}:{V1[t&1]+3}], v[{P}:{P+3}], v[{O}:{O+15}]")
        c(4); e(12); e(13); c(5); e(14); e(15); c(6)
        if t == 7:
            k(f"v_add_u32 v{VKA}, 8192, v{VKA}")
            k(f"v_add_u32 v{VVA}, v{VINC}, v{VVA}")
            k("s_add_u32 s38, s38, 1")
            k(f"v_mov_b32 v{PRG}, s38")
            k(f"ds_write_b32 v{VPR}, v{PRG} offset:32")
            k("s_cmp_lt_u32 s38, 8")
        c(7)
    k(f"s_cbranch_scc1 {loop}")
    k("s_setprio 0")
    stamp(k, 6)
    k.nop(1)
    k(f"{MFMA} v[{O}:{O+15}], v[{V2[1]}:{V2[1]+3}], v[{P+4}:{P+7}], v[{O}:{O+15}]")
    k(f"ds_read_b32 v{PRG}, v{VPR} offset:16")
    k("s_waitcnt lgkmcnt(0)")
    k(f"v_readfirstlane_b32 s{SLOC}, v{PRG}")
    k.nop(11)
    fb, fin = k.label("fb"), k.label("fin")
    k(f"""
    v_max3_f32 v44, abs(v{O}), abs(v{O+1}), abs(v{O+2})
    v_max3_f32 v45, abs(v{O+3}), abs(v{O+4}), abs(v{O+5})
    v_max3_f32 v44, v44, abs(v{O+6}), abs(v{O+7})
    v_add_f32 v46, v{O}, v{O+1}
    v_max3_f32 v44, v44, v45, v{O+8}
    s_mov_b32 s39, {hex(f32(2.0**100))}
    """)
    for r in range(2, 9): k(f"v_add_f32 v46, v46, v{O+r}")
    k(f"v_and_b32 v46, 0x7fffffff, v46")
    k(f"v_cmp_ngt_f32 vcc, s39, v44")
    k(f"v_cmp_ngt_f32 s[40:41], s39, v46")
    k.nop(1)
    k("s_or_b64 s[40:41], s[40:41], vcc")
    k("s_cmp_lg_u64 s[40:41], 0")
    k(f"s_cbranch_scc1 {fb}")
    k.place(fin)
    k(f"v_rcp_f32 v44, v{O+8}")
    k(f"s_lshl_b32 s40, s30, 15")
    k(f"s_lshl_b32 s41, s{SIDX}, 10")
    k(f"s_add_u32 s40, s40, s41")
    k(f"s_add_u32 s40, s40, {OF}")
    for r in range(8): k(f"v_mul_f32 v{O+r}, v{O+r}, v44")
    for r in range(4): k(f"v_cvt_pk_bf16_f32 v{P+r}, v{O+2*r}, v{O+2*r+1}")
    pub_store(k, [f"buffer_store_dwordx4 v[{P}:{P+3}], v3, s[20:23], s40 offen"])
    k("s_waitcnt vmcnt(0)")
    k("s_barrier")
    k("s_barrier")
    def fallback(k):
        k.place(fb)
        k(f"v_mov_b32 v{VKA}, v3")
        k(f"v_lshlrev_b32 v44, 3, v{VINC}")
        k(f"v_sub_u32 v{VVA}, v{VVA}, v44")
        k(f"v_lshrrev_b32 v{VINC}, 3, v{VINC}")
        k(f"v_mov_b32 v7, 0xff7fffff")
        for r in range(16): k(f"v_mov_b32 v{O+r}, 0")
        k("s_mov_b32 s38, 0")
        fl = k.label("fl")
        k.place(fl)
        S = SS[0]
        k(f"ds_read_b128 v[{KB[0]}:{KB[0]+3}], v{VKA}")
        vread(k, 0, 0)
        k("s_waitcnt lgkmcnt(0)")
        k(f"{MFMA} v[{S}:{S+15}], v[{KB[0]}:{KB[0]+3}], v[{Q}:{Q+3}], 0")
        k.nop(14)
        rowmax(k, S, 44, 45, 46)
        k("v_max_f32 v44, v44, v7")
        k("v_sub_f32 v45, v7, v44")
        k("v_exp_f32 v45, v45")
        k("v_mov_b32 v7, v44")
        for r in range(16): k(f"v_sub_f32 v{S+r}, v{S+r}, v44")
        for r in range(16): k(f"v_mul_f32 v{O+r}, v{O+r}, v45")
        for r in range(16): k(f"v_exp_f32 v{S+r}, v{S+r}")
        k.nop(1)
        for r in range(8): k(f"v_cvt_pk_bf16_f32 v{P+r}, v{S+2*r}, v{S+2*r+1}")
        k.nop(2)
        k(f"{MFMA} v[{O}:{O+15}], v[{V1[0]}:{V1[0]+3}], v[{P}:{P+3}], v[{O}:{O+15}]")
        k(f"{MFMA} v[{O}:{O+15}], v[{V2[0]}:{V2[0]+3}], v[{P+4}:{P+7}], v[{O}:{O+15}]")
        k(f"v_add_u32 v{VKA}, 1024, v{VKA}")
        k(f"v_add_u32 v{VVA}, v{VINC}, v{VVA}")
        k("s_add_u32 s38, s38, 1")
        k("s_cmp_lt_u32 s38, 64")
        k.nop(14)
        k(f"s_cbranch_scc1 {fl}")
        k(f"s_branch {fin}")
    tail.append(fallback)

def p2_helper(k, done):
    NB2 = OPT['nb2']
    ld, st = OPT['ld'], OPT['st']
    k(f"""
    s_sub_u32 s30, s{SW}, 8
    s_lshl_b32 s32, s30, 11
    s_lshl_b32 s29, s{SIDX}, 16
    s_add_u32 s33, s29, s32
    """)
    def kv(c):
        k(f"s_add_u32 s31, s{SXCD}, {c}" if OPT.get('rot', 1) else f"s_mov_b32 s31, {c}")
        k("s_and_b32 s31, s31, 7")
        k("s_lshl_b32 s31, s31, 13")
        k("s_add_u32 s31, s31, s33")
        for base, l in ((KF, 0), (VF, 65536)):
            k(f"s_add_u32 s34, s31, {base}")
            dma(k, 3, 20, 34, f"s32, {l + c*8192}", 0, ld)
            k(f"buffer_load_dwordx4 v3, s[20:23], s34 offen offset:1024 {ld} lds")
    kv(0); kv(1)
    k(f"""
    v_lshrrev_b32 v4, 2, v2
    s_lshl_b32 s35, s30, 4
    v_add_u32 v4, s35, v4
    v_cmp_gt_u32 vcc, 20, v4
    v_lshlrev_b32 v4, 9, v4
    v_and_b32 v5, 1, v2
    v_lshl_add_u32 v4, v5, 4, v4
    v_bfe_u32 v6, v2, 1, 1
    v_lshl_add_u32 v4, v6, 6, v4
    v_add_u32 v4, {CSTRIP}, v4
    v_mul_u32_u24 v8, 0x3f80, v5
    v_lshl_or_b32 v8, v8, 16, v8
    v_mov_b32 v9, v8
    v_mov_b32 v10, v8
    v_mov_b32 v11, v8
    s_and_saveexec_b64 s[36:37], vcc
    ds_write_b128 v4, v[8:11]
    s_mov_b64 exec, s[36:37]
    s_lshl_b32 s35, s30, 2
    s_add_u32 s35, s35, {PROG}
    v_mov_b32 v4, s35
    v_mov_b32 v5, 0
    ds_write_b32 v4, v5
    ds_write_b32 v4, v5 offset:16
    ds_write_b32 v4, v5 offset:32
    ds_write_b32 v4, v5 offset:48
    s_waitcnt vmcnt(4) lgkmcnt(0)
    s_barrier
    """)
    KD = OPT.get('kvd', 3)
    issued = 2
    def publish(c):
        k(f"v_mov_b32 v5, {c if c < 7 else 64}")
        k("ds_write_b32 v4, v5")
    while issued < KD: kv(issued); issued += 1
    c = 1
    while issued < 8:
        k(f"s_waitcnt vmcnt({4*(issued - 1 - c)})")
        publish(c); c += 1
        kv(issued); issued += 1
    stamp(k, 3)
    k("s_mov_b32 s29, s30")
    loads, stores = relayout(k)
    if OPT.get('z_nopre'):
        loads = stores = (lambda i: None)
    loads(0)
    while c < 8:
        k(f"s_waitcnt vmcnt({(0 if OPT.get('z_nopre') else 26) + 4*(7 - c)})")
        publish(c); c += 1
    stamp(k, 12)
    if 'hprio2' in OPT: k(f"s_setprio {OPT['hprio2']}")
    loads(1)
    k("s_waitcnt vmcnt(26)")
    stores(0)
    k("s_waitcnt vmcnt(0)")
    stamp(k, 13)
    stores(1)
    k("s_waitcnt vmcnt(0)")
    stamp(k, 4)
    na = k.label("noarr")
    k(f"v_mov_b32 v5, {PROG + 48}")
    k("v_mov_b32 v6, 1")
    k("s_mov_b64 exec, 1")
    k("ds_add_rtn_u32 v7, v5, v6")
    k("s_waitcnt lgkmcnt(0)")
    k("v_readfirstlane_b32 s42, v7")
    k("s_cmp_lg_u32 s42, 3")
    k(f"s_cbranch_scc1 {na}")
    k(f"s_add_u32 s42, s{SXCD}, {CW}")
    arrive(k, 42)
    k.place(na)
    k(f"s_cmp_lg_u32 s{SW}, 8")
    k(f"s_cbranch_scc1 {done}")
    k("s_setprio 3")
    k(f"s_lshl_b32 s42, s{SXCD}, 5")
    k(f"s_add_u32 s42, s42, {FX}")
    flag_poll(k, 42)
    k("s_getreg_b32 s58, hwreg(HW_REG_XCC_ID, 0, 4)")
    k("s_add_u32 s58, s58, 1")
    k("s_mov_b32 exec_hi, 0")
    k("v_cmp_ne_u32 vcc, s58, v10")
    k("s_cmp_eq_u64 vcc, 0")
    k(f"s_cselect_b32 s{SLOC}, 1, 0")
    k(f"v_mov_b32 v5, s{SLOC}")
    k("ds_write_b32 v4, v5 offset:16")
    k("s_mov_b64 exec, -1")
    if OPT.get('t2', 1):
        again, skip, ok = k.label("t2a"), k.label("t2s"), k.label("t2o")
        k(f"""
        s_mov_b32 s40, {CNT + CW*256}
        s_mov_b32 exec_lo, 0xff
        s_mov_b32 exec_hi, 0
        v_lshlrev_b32 v9, 8, v2
        s_mov_b32 s41, 0
        """)
        k.place(again)
        k(f"s_sleep {OPT.get('slpw', 32)}")
        k("buffer_load_dword v10, v9, s[20:23], s40 offen sc1")
        k("ds_read_b32 v11, v4 offset:32")
        k("s_waitcnt vmcnt(0) lgkmcnt(0)")
        k("v_readfirstlane_b32 s41, v11")
        k("v_cmp_gt_u32 vcc, 32, v10")
        k(f"s_cmp_ge_u32 s41, {OPT.get('t2lim', 6)}")
        k(f"s_cbranch_scc1 {skip}")
        k("s_cmp_lg_u64 vcc, 0")
        k(f"s_cbranch_scc1 {again}")
        k("s_mov_b64 exec, -1")
        for base, tot in [(WOF, 4096), (WGF, 43*256), (WUF, 43*256), (WDF, 43*256)][OPT.get('t2a', 0):OPT.get('t2b', 3)]:
            per = tot // 32
            k(f"s_mul_i32 s42, s{SIDX}, {per*128}")
            k(f"s_add_u32 s42, s42, {base}")
            touch(k, 42, per)
        k.place(skip)
        k("s_mov_b64 exec, -1")

def res_cfg(mode):
    if mode == 'wo':
        return dict(NKS=32, JL=16, WIN=16, BSRC=OF, ASRC=WOF, RES=XF)
    return dict(NKS=86, JL=39, WIN=OPT.get('win5', 12), BSRC=ACT, ASRC=WDF, RES=HF)

def res_map(k):
    k(f"""
    s_lshl_b32 s27, s{SXCD}, 2
    s_and_b32 s28, s{SIDX}, 3
    s_add_u32 s27, s27, s28
    s_lshr_b32 s28, s{SIDX}, 2
    """)

def res_consumer(k, mode, sb):
    c_ = res_cfg(mode); NKS, JL, WIN, RES = c_['NKS'], c_['JL'], c_['WIN'], c_['RES']
    NH = NKS // 2
    SRB, SCB = 27, 28
    ld, st = OPT['ld'], OPT['st']
    R, ACC, AB, AT = 8, 16, 48, 80
    BW = 80 if mode == 'wo' else 112
    VO = 160
    res_map(k)
    k(f"""
    s_and_b32 s29, s{SW}, 1
    s_lshl_b32 s30, s{SRB}, 1
    s_add_u32 s30, s30, s29
    s_lshr_b32 s31, s{SW}, 1
    s_lshl_b32 s32, s{SCB}, 1
    s_add_u32 s32, s32, s31
    s_mul_i32 s33, s31, 3072
    v_add_u32 v6, s33, v3
    s_lshl_b32 s33, s31, 10
    s_add_u32 s33, s33, 1024
    v_add_u32 v7, s33, v3
    s_lshl_b32 s40, s30, 5
    s_lshl_b32 s41, s32, 1
    s_add_u32 s40, s40, s41
    s_lshl_b32 s40, s40, 10
    s_add_u32 s41, s40, {RES}
    buffer_load_dwordx4 v[{R}:{R+3}], v3, s[20:23], s41 offen {ld}
    buffer_load_dwordx4 v[{R+4}:{R+7}], v3, s[20:23], s41 offen offset:1024 {ld}
    s_mul_i32 s34, s31, {NH}
    s_mul_i32 s35, s30, {NKS}
    s_add_u32 s35, s35, s34
    s_lshl_b32 s35, s35, 10
    s_add_u32 s35, s35, {c_['BSRC']}
    """)
    if NH > JL:
        for q in range(2):
            k(f"s_xor_b32 s36, s32, {q}")
            k(f"s_mul_i32 s36, s36, {NKS}")
            k(f"s_add_u32 s36, s36, s34")
            k(f"s_lshl_b32 s36, s36, 10")
            k(f"s_add_u32 s36, s36, {c_['ASRC'] + JL*1024}")
            for j in range(NH - JL):
                r = AT + 8*j + 4*q
                k(f"buffer_load_dwordx4 v[{r}:{r+3}], v3, s[20:23], s36 offen" + (f" offset:{j*1024}" if j else "") + f" {ld}")
    RED = 65536 if mode == 'wo' else 0
    k(f"s_xor_b32 s36, s{SW}, 2")
    k(f"s_lshl_b32 s36, s36, 12")
    k(f"v_add_u32 v4, s36, v3")
    k(f"s_lshl_b32 s36, s{SW}, 12")
    k(f"v_add_u32 v5, s36, v3")
    if RED:
        k(f"v_add_u32 v4, {RED}, v4")
        k(f"v_add_u32 v5, {RED}, v5")
    if mode == 'down':
        srd(k, 52, 18, 2*MB)
        k(f"""
        v_and_b32 v{VO}, 31, v2
        v_lshlrev_b32 v{VO}, 10, v{VO}
        v_lshrrev_b32 v{VO+1}, 5, v2
        v_lshl_add_u32 v{VO}, v{VO+1}, 4, v{VO}
        s_lshl_b32 s47, s30, 15
        s_lshl_b32 s48, s32, 6
        s_add_u32 s47, s47, s48
        """)
    else:
        k(f"""
        s_lshl_b32 s47, s32, 14
        s_lshl_b32 s48, s30, 8
        s_add_u32 s47, s47, s48
        s_add_u32 s47, s47, {ST}
        v_lshlrev_b32 v{VO}, 3, v2
        s_add_u32 s41, s40, {HF}
        s_mov_b32 s46, {hex(ONES)}
        """)
    k("s_mov_b32 s45, 0xffff0000")
    k("s_barrier")
    stamp(k, sb)
    def bload(j):
        if j % 4 == 0: k(f"s_add_u32 s36, s35, {j*1024}")
        r = BW + 4*(j % WIN)
        k(f"buffer_load_dwordx4 v[{r}:{r+3}], v3, s[20:23], s36 offen" + (f" offset:{(j % 4)*1024}" if j % 4 else "") + f" {ld}")
    def ard(j, q):
        if j < JL:
            if q == 0 and j and j % 16 == 0:
                k("v_add_u32 v6, 0x10000, v6")
                k("v_add_u32 v7, 0x10000, v7")
            r = AB + 8*(j & 3) + 4*q
            k(f"ds_read_b128 v[{r}:{r+3}], v{6+q} offset:{(j % 16)*4096}")
    nb = min(WIN, NH)
    for j in range(nb): bload(j)
    for j in range(3):
        ard(j, 0); ard(j, 1)
    for j in range(NH):
        lg = 2*(min(JL, j + 3) - (j + 1)) if j < JL else None
        k(f"s_waitcnt vmcnt({nb - 1 - j})" + (f" lgkmcnt({lg})" if lg is not None else ""))
        A = AB + 8*(j & 3) if j < JL else AT + 8*(j - JL)
        B = BW + 4*(j % WIN)
        for q in range(2):
            C = "0" if j == 0 else f"v[{ACC+16*q}:{ACC+16*q+15}]"
            k(f"{MFMA} v[{ACC+16*q}:{ACC+16*q+15}], v[{A+4*q}:{A+4*q+3}], v[{B}:{B+3}], {C}")
            ard(j + 3, q)
        if nb < NH:
            bload(nb); nb += 1
    stamp(k, sb + 1)
    U = 48
    for d in range(8):
        k(f"v_lshlrev_b32 v{U+2*d}, 16, v{R+d}")
        k(f"v_and_b32 v{U+2*d+1}, s45, v{R+d}")
    if not RED: k("s_barrier")
    for g in range(4):
        k(f"ds_write_b128 v4, v[{ACC+16+4*g}:{ACC+19+4*g}] offset:{g*1024}")
    for r in range(0, 16, 2):
        k(f"v_pk_add_f32 v[{ACC+r}:{ACC+r+1}], v[{ACC+r}:{ACC+r+1}], v[{U+r}:{U+r+1}]")
    k("s_waitcnt lgkmcnt(0)")
    k("s_barrier")
    for g in range(4):
        k(f"ds_read_b128 v[{U+4*g}:{U+4*g+3}], v5 offset:{g*1024}")
    P = 8
    for g in range(4):
        k(f"s_waitcnt lgkmcnt({3-g})")
        for r in (4*g, 4*g+2):
            k(f"v_pk_add_f32 v[{ACC+r}:{ACC+r+1}], v[{ACC+r}:{ACC+r+1}], v[{U+r}:{U+r+1}]")
        for d in (2*g, 2*g+1):
            k(f"v_cvt_pk_bf16_f32 v{P+d}, v{ACC+2*d}, v{ACC+2*d+1}")
    if mode == 'wo':
        pub_store(k, [f"buffer_store_dwordx4 v[{P}:{P+3}], v3, s[20:23], s41 offen",
                      f"buffer_store_dwordx4 v[{P+4}:{P+7}], v3, s[20:23], s41 offen offset:1024"])
        SX, SQ = 64, 65
        k(f"v_dot2_f32_bf16 v{SX}, v{P}, s46, 0")
        k(f"v_dot2_f32_bf16 v{SQ}, v{P}, v{P}, 0")
        for d in range(1, 8):
            k(f"v_dot2_f32_bf16 v{SX}, v{P+d}, s46, v{SX}")
            k(f"v_dot2_f32_bf16 v{SQ}, v{P+d}, v{P+d}, v{SQ}")
        k.nop(3)
        half_sum(k, SX, 66, 67)
        half_sum(k, SQ, 66, 67)
        k("s_mov_b32 exec_hi, 0")
        pub_store(k, [f"buffer_store_dwordx2 v[{SX}:{SQ}], v{VO}, s[20:23], s47 offen"])
        k("s_mov_b64 exec, -1")
        k("s_waitcnt vmcnt(0)")
        k("s_barrier")
    else:
        k.nop(2)
        k(f"""
        v_permlane32_swap_b32 v{P}, v{P+2}
        v_permlane32_swap_b32 v{P+1}, v{P+3}
        v_permlane32_swap_b32 v{P+4}, v{P+6}
        v_permlane32_swap_b32 v{P+5}, v{P+7}
        """)
        k.nop(1)
        k(f"buffer_store_dwordx4 v[{P}:{P+3}], v{VO}, s[52:55], s47 offen {OPT.get('sto', '')}")
        k(f"buffer_store_dwordx4 v[{P+4}:{P+7}], v{VO}, s[52:55], s47 offen offset:32 {OPT.get('sto', '')}")

def res_wsetup(k, mode):
    c_ = res_cfg(mode); NKS = c_['NKS']
    k(f"""
    s_sub_u32 s45, s{SW}, 4
    s_lshr_b32 s44, s{SIDX}, 2
    s_lshl_b32 s44, s44, 1
    s_and_b32 s46, s45, 1
    s_add_u32 s44, s44, s46
    s_mul_i32 s44, s44, {NKS}
    s_lshr_b32 s46, s45, 1
    s_mul_i32 s46, s46, {NKS//2}
    s_add_u32 s44, s44, s46
    s_lshl_b32 s44, s44, 10
    s_add_u32 s44, s44, {c_['ASRC']}
    s_lshl_b32 s45, s45, 10
    """)

def res_wload(k, j0, j1):
    for j in range(j0, j1):
        k(f"s_add_u32 s46, s44, {j*1024}")
        dma(k, 3, 20, 46, f"s45, {j*4096}", 0, OPT['ld'])

SLOT4, RING4, NCH4 = 20480, 8, 16
def p4_map(k):
    k(f"""
    s_lshl_b32 s27, s{SXCD}, 1
    s_cmp_ge_u32 s{SIDX}, 15
    s_cselect_b32 s28, 1, 0
    s_add_u32 s27, s27, s28
    s_mul_i32 s28, s28, 15
    s_sub_u32 s28, s{SIDX}, s28
    s_min_u32 s28, s28, 15
    """)

def p4_consumer(k):
    ld, st = OPT['ld'], OPT['st']
    skip, fin = k.label("p4skip"), k.label("p4fin")
    XB = [8, 12, 16, 20]; WB = [24, 48]; ACC = 72; T = [0, 1, 2, 4]; RS, NB = 5, 3; STR = 24
    p4_map(k)
    k("s_cmp_eq_u32 s28, 15")
    k(f"s_cbranch_scc1 {skip}")
    k(f"""
    s_lshl_b32 s30, s27, 2
    s_add_u32 s30, s30, s{SW}
    s_lshl_b32 s33, s{SW}, 11
    s_add_u32 s33, s33, 12288
    v_mov_b32 v6, v3
    v_add_u32 v7, s33, v3
    s_mul_i32 s40, s30, 86
    s_mul_i32 s41, s28, 6
    s_add_u32 s40, s40, s41
    s_lshl_b32 s40, s40, 10
    s_add_u32 s40, s40, {ACT}
    s_mov_b32 s47, 0
    s_lshl_b32 s32, s30, 8
    s_add_u32 s32, s32, {ST}
    v_and_b32 v4, 31, v2
    v_lshlrev_b32 v4, 3, v4
    v_lshrrev_b32 v8, 5, v2
    v_lshl_add_u32 v4, v8, 14, v4
    s_mov_b32 s38, 0xffff0000
    """)
    for r in range(96): k(f"v_mov_b32 v{ACC+r}, 0")
    k("s_barrier")
    stamp(k, 9)
    for i in range(8):
        k(f"s_add_u32 s35, s32, {i*32768}")
        k(f"buffer_load_dwordx2 v[{STR+2*i}:{STR+2*i+1}], v4, s[20:23], s35 offen {ld}")
    k("s_waitcnt vmcnt(0)")
    for i in range(1, 8):
        k(f"v_add_f32 v{STR}, v{STR}, v{STR+2*i}")
        k(f"v_add_f32 v{STR+1}, v{STR+1}, v{STR+2*i+1}")
    half_sum(k, STR, 0, 1)
    half_sum(k, STR+1, 0, 1)
    finish_stats(k, STR, STR+1, RS, NB, 0, 1)
    def wrd(u, b, mt):
        return f"ds_read_b128 v[{b+4*mt}:{b+4*mt+3}], v6 offset:{mt*2048 + (u & 1)*1024}"
    def xrd(u, b):
        return f"ds_read_b128 v[{b}:{b+3}], v7 offset:{(u & 1)*1024}"
    k("s_barrier")
    stamp(k, 10)
    k(xrd(0, XB[0])); k(xrd(1, XB[1]))
    for mt in range(6): k(wrd(0, WB[0], mt))
    k(f"s_mov_b32 s48, 0")
    k("s_waitcnt lgkmcnt(7)")
    for o in norm4(XB[0], T, RS, NB, 38): k(o)
    ml = k.label("p4ml")
    k(".p2align 3")
    k.place(ml)
    for u in range(4):
        if not (u & 1):
            k(f"s_add_u32 s48, s48, 1")
            k(f"s_and_b32 s48, s48, {RING4-1}")
            k(f"s_cselect_b32 s49, s50, s51")
            k("s_barrier")
            k("v_add_u32 v7, s49, v7")
        else:
            k("v_add_u32 v6, s49, v6")
            if u == 3:
                k("s_add_u32 s47, s47, 1")
                k(f"s_cmp_lt_u32 s47, {NCH4//2}")
        b, x = WB[u & 1], XB[u]
        nb_ = WB[(u+1) & 1]
        ops = norm4(XB[(u+1) & 3], T, RS, NB, 38)
        cuts = [0, 3, 7, 10, 14, 17, 20]
        for mt in range(6):
            if mt == 0: k("s_waitcnt lgkmcnt(3)")
            if mt == 3: k("s_waitcnt lgkmcnt(4)")
            k(f"{MFMA} v[{ACC+16*mt}:{ACC+16*mt+15}], v[{b+4*mt}:{b+4*mt+3}], v[{x}:{x+3}], v[{ACC+16*mt}:{ACC+16*mt+15}]")
            if mt == 0: k(xrd(u, XB[(u+2) & 3]))
            k(wrd(u+1, nb_, mt))
            for o in ops[cuts[mt]:cuts[mt+1]]: k(o)
    k(f"s_cbranch_scc1 {ml}")
    stamp(k, 11)
    lane_regs(k)
    P = 24
    for tile in range(3):
        G, U = ACC + 16*tile, ACC + 48 + 16*tile
        if tile == 1:
            k(f"s_cmp_eq_u32 s28, 14")
            k(f"s_cbranch_scc1 {fin}")
        for r in range(16): k(f"v_max_f32 v{G+r}, 0, v{G+r}")
        for r in range(0, 16, 2):
            k(f"v_pk_mul_f32 v[{G+r}:{G+r+1}], v[{G+r}:{G+r+1}], v[{U+r}:{U+r+1}]")
        if tile == 0: k("s_waitcnt lgkmcnt(0)")
        for d in range(8):
            k(f"v_cvt_pk_bf16_f32 v{P+8*tile+d}, v{G+2*d}, v{G+2*d+1}")
        k(f"s_add_u32 s41, s40, {tile*2048}")
        pub_store(k, [f"buffer_store_dwordx4 v[{P+8*tile}:{P+8*tile+3}], v3, s[20:23], s41 offen",
                      f"buffer_store_dwordx4 v[{P+8*tile+4}:{P+8*tile+7}], v3, s[20:23], s41 offen offset:1024"])
    k.place(fin)
    k("s_waitcnt vmcnt(0)")
    k.place(skip)
    k("s_barrier")

def p4_loader(k):
    ld = OPT['ld']
    D = OPT['depth4']
    skip, join = k.label("p4lskip"), k.label("p4ljoin")
    res_wsetup(k, 'down')
    p4_map(k)
    k("s_cmp_eq_u32 s28, 15")
    k(f"s_cbranch_scc1 {skip}")
    k(f"""
    s_sub_u32 s29, s{SW}, 4
    s_lshl_b32 s30, s27, 2
    s_add_u32 s30, s30, s29
    s_lshl_b32 s31, s30, 15
    s_add_u32 s31, s31, {HF}
    s_mul_i32 s33, s28, {3*32768}
    s_and_b32 s34, s29, 1
    s_lshl_b32 s34, s34, 10
    s_add_u32 s33, s33, s34
    s_lshr_b32 s35, s29, 1
    s_mul_i32 s37, s35, {WUF - WGF}
    s_add_u32 s33, s33, s37
    s_mul_i32 s35, s35, 6144
    s_add_u32 s34, s34, s35
    s_lshl_b32 s36, s29, 11
    """)
    order = []
    def hpart(c):
        k(f"s_add_u32 s35, s31, {c*2048}")
        dma(k, 3, 20, 35, f"s36, {(c % RING4)*SLOT4 + 12288}", 0, ld)
        k(f"buffer_load_dwordx4 v3, s[20:23], s35 offen offset:1024 {ld} lds")
        order.extend([('h', c)]*2)
    def wpart(c):
        for t in range(3):
            k(f"s_add_u32 s35, s33, {WGF + t*32768 + c*2048}")
            dma(k, 3, 20, 35, f"s34, {(c % RING4)*SLOT4 + t*2048}", 0, ld)
        order.extend([('w', c)]*3)
    for c in range(RING4): wpart(c)
    k("s_barrier")
    nh = 4
    for c in range(nh): hpart(c)
    nw = RING4
    for c in range(NCH4 + 1):
        if c < NCH4:
            last = max(i for i, o in enumerate(order) if o[1] == c)
            k(f"s_waitcnt vmcnt({len(order) - 1 - last})")
        k("s_barrier")
        m = 0
        while nh < NCH4 and nh <= c + D and m < 2:
            assert nh - RING4 <= c - 2
            hpart(nh); nh += 1; m += 1
        if nw < NCH4 and nw - RING4 <= c - 2:
            wpart(nw); nw += 1
        if c >= 10:
            assert nh == NCH4 and nw == NCH4
            res_wload(k, 5*(c-10), 5*(c-10) + 5); order.extend([('d', -1)]*5)
    k("s_barrier")
    k(f"s_branch {join}")
    k.place(skip)
    k("s_barrier")
    res_wload(k, 0, 35)
    k.place(join)
    res_wload(k, 35, 39)
    k("s_waitcnt vmcnt(0)")
    k("s_barrier")

def poller(k):
    sl = OPT.get('slpl', 2)
    stamp(k, 5)
    k("s_barrier")
    stamp(k, 6)
    k(f"s_lshl_b32 s43, s{SXCD}, 5")
    k(f"s_add_u32 s43, s43, {F2}")
    k(f"s_add_u32 s42, s43, s{SIDX}")
    flag_set(k, 42, local=True)
    k(f"s_mov_b32 s42, {CW}")
    poll(k, 42, 32, 8, 0)
    k("s_barrier")
    flag_poll(k, 43, 32, sl)
    stamp(k, 7)
    k("s_barrier")
    k("s_barrier")
    k("s_barrier")
    stamp(k, 8)
    res_map(k)
    k("s_lshr_b32 s43, s27, 1")
    k("s_and_b32 s44, s27, 1")
    k("s_lshl_b32 s45, s28, 1")
    k("s_add_u32 s44, s44, s45")
    k("s_lshl_b32 s42, s43, 4")
    k("s_add_u32 s42, s42, s44")
    k(f"s_add_u32 s42, s42, {F3}")
    flag_set(k, 42, local=True)
    idle = k.label("pidle")
    p4_map(k)
    k("s_cmp_eq_u32 s28, 15")
    k(f"s_cbranch_scc1 {idle}")
    k("s_lshl_b32 s46, s27, 4")
    k(f"s_add_u32 s42, s46, {F3}")
    flag_poll(k, 42, 16, sl)
    stamp(k, 9)
    k("s_barrier")
    for i in range(NCH4 + 1):
        k("s_barrier")
        if i == OPT.get('t3at', 8) and OPT.get('t3', 0):
            k(f"s_mul_i32 s42, s{SIDX}, {368*128}")
            k(f"s_add_u32 s42, s42, {WDF}")
            touch(k, 42, 368)
    k("s_barrier")
    stamp(k, 10)
    k("s_add_u32 s42, s46, s28")
    k(f"s_add_u32 s42, s42, {F4}")
    flag_set(k, 42, local=True)
    j = k.label("pjoin")
    k(f"s_branch {j}")
    k.place(idle)
    k("s_barrier")
    k.place(j)
    k("s_lshl_b32 s42, s43, 4")
    k(f"s_add_u32 s42, s42, {F4}")
    flag_poll(k, 42, 15, sl)
    stamp(k, 11)
    k("s_barrier")
    diag_end(k)

def diag_end(k):
    if not DIAG: return
    k("s_waitcnt vmcnt(0)")
    stamp(k, 14)
    k("s_memrealtime s[94:95]")
    k(f"s_lshl_b32 s40, s2, 4")
    k(f"s_add_u32 s40, s40, s{SW}")
    k(f"s_lshl_b32 s40, s40, 7")
    k(f"s_add_u32 s40, s40, {DIAGB}")
    k("s_waitcnt lgkmcnt(0)")
    for i in range(15):
        k(f"s_sub_u32 s{64+2*i}, s{64+2*i}, s96")
        k(f"v_mov_b32 v{8+i}, s{64+2*i}")
    k("v_mov_b32 v23, s94")
    k("v_mov_b32 v24, s98")
    k("v_mov_b32 v4, 0")
    k("s_mov_b64 exec, 1")
    for i in range(4):
        k(f"buffer_store_dwordx4 v[{8+4*i}:{11+4*i}], v4, s[20:23], s40 offen offset:{16*i}")
    k(f"buffer_store_dword v24, v4, s[20:23], s40 offen offset:64")
    if OPT.get('dbgout') is not None:
        l = k.label("dbo")
        k(f"s_lshl_b32 s41, s{SW}, 8")
        k(f"s_or_b32 s41, s41, s2")
        k(f"s_cmp_lg_u32 s41, {OPT['dbgout']}")
        k(f"s_cbranch_scc1 {l}")
        k("v_sub_u32 v8, v23, v24")
        for i in range(4):
            k(f"global_store_dwordx4 v4, v[{8+4*i}:{11+4*i}], s[60:61] offset:{4+16*i}")
        k.place(l)

def build(path):
    k = Kern(NAME)
    done, roleL, roleH, p2 = k.label("done"), k.label("L"), k.label("H"), k.label("p2")
    tail = []
    k(f"""
    s_cmp_ge_u32 s2, 256
    s_cbranch_scc1 {done}
    s_load_dwordx16 s[4:19], s[0:1], 0
    s_load_dwordx4 s[60:63], s[0:1], 64
    """)
    if DIAG:
        k("s_memtime s[96:97]")
        k("s_memrealtime s[98:99]")
    k(f"""
    v_lshrrev_b32 v1, 6, v0
    v_and_b32 v2, 63, v0
    s_and_b32 s{SXCD}, s2, 7
    s_lshr_b32 s{SIDX}, s2, 3
    v_readfirstlane_b32 s{SW}, v1
    v_lshlrev_b32 v3, 4, v2
    s_mov_b32 s50, {SLOT4}
    s_mov_b32 s51, {-(RING4-1)*SLOT4}
    """)
    if OPT.get('dyn', 1) != 2: p1_map(k)
    k("s_waitcnt lgkmcnt(0)")
    srd(k, 20, 62, WS_SIZE)
    if OPT.get('dyn', 1) == 2:
        early_role(k)
        p1_map(k)
    k(f"s_cmp_ge_u32 s{SW}, 8")
    k(f"s_cbranch_scc1 {roleH}")
    k(f"s_cmp_ge_u32 s{SW}, 4")
    k(f"s_cbranch_scc1 {roleL}")
    p1_consumer(k)
    k.place(p2)
    p2_compute(k, tail)
    L3 = k.label("L3")
    k(f"s_cmp_ge_u32 s{SW}, 4")
    k(f"s_cbranch_scc1 {L3}")
    res_consumer(k, 'wo', 7)
    p4_consumer(k)
    res_consumer(k, 'down', 12)
    diag_end(k)
    k.place(done)
    k("s_endpgm")
    k.place(roleL)
    p1_loader(k)
    k(f"s_branch {p2}")
    k.place(L3)
    res_wsetup(k, 'wo')
    res_wload(k, 0, 16)
    k("s_waitcnt vmcnt(0)")
    k("s_barrier")
    k("s_barrier")
    k("s_barrier")
    p4_loader(k)
    diag_end(k)
    k("s_endpgm")
    k.place(roleH)
    p1_helper(k)
    p2_helper(k, done)
    poller(k)
    k("s_endpgm")
    for f in tail: f(k)
    hdr = """; Kernarg: 0 A_x, 8 A_wqkv, 16 A_wo, 24 B_x (unused), 32 W_gate, 40 W_up, 48 W_down, 56 out, 64 debug, 72 ws
; pre-LN transformer block in one persistent launch (256 workgroups, one per CU); generated by gen/gen4.py
; @launch grid=(256,1,1) block=(768,1,1) lds=163840
.amdgcn_target "amdgcn-amd-amdhsa--gfx950"
"""
    open(path, "w").write(hdr + k.text(168, 102 if DIAG else 64))

if __name__ == "__main__":
    for a in sys.argv[2:]:
        if "=" in a:
            kk, vv = a.split("=")
            OPT[kk] = int(vv) if vv.lstrip("-").isdigit() else vv.replace("+", " ")
    DIAG = "--diag" in sys.argv
    build(sys.argv[1])
```

```python
import sys, math
from dsl import Kern
from gen import (MB, QF, KF, VF, OF, XF, HF, ACT, WOF, WGF, WUF, WDF, ST, WS_SIZE, f32, ONES, MFMA, srd, half_sum,
                 finish_stats)
CNT = 25*MB
DIAGB = 28*MB
C1, C2, C3, C4, CW = 0, 8, 16, 32, 48
CSTRIP = 131072
PROG = CSTRIP + 10240
ROLE = 163832
NAME = "sequential_preLN__softmax_full_mha__glu_gated_reglu__prompt_kernel"
OPT = dict(slp=8, kvd=2, d1=4, prio=1, ld="sc1", st="sc1", nb2=4, depth4=5)
SXCD, SIDX, SW = 24, 25, 26
MF16 = "v_mfma_f32_16x16x32_bf16"
DIAG = False

def stamp(k, i):
    if DIAG: k(f"s_memtime s[{64+2*i}:{65+2*i}]")

def norm4(x, t, rs, nb, smask):
    ops = []
    for d in range(4):
        a, b = t[2*(d & 1)], t[2*(d & 1) + 1]
        ops.append([f"v_lshlrev_b32 v{a}, 16, v{x+d}", f"v_and_b32 v{b}, s{smask}, v{x+d}",
                    f"v_fma_f32 v{a}, v{a}, v{rs}, v{nb}", f"v_fma_f32 v{b}, v{b}, v{rs}, v{nb}",
                    f"v_cvt_pk_bf16_f32 v{x+d}, v{a}, v{b}"])
    o = []
    for p in (0, 2):
        for a, b in zip(ops[p], ops[p+1]): o += [a, b]
    return o

def lane_regs(k):
    k("v_mbcnt_lo_u32_b32 v2, -1, 0")
    k("v_mbcnt_hi_u32_b32 v2, -1, v2")
    k("v_lshlrev_b32 v3, 4, v2")

def dma(k, vo, srd_, so, m0expr, off=0, flag=""):
    k(f"s_add_u32 m0, {m0expr}")
    k.nop(1)
    k(f"buffer_load_dwordx4 v{vo}, s[{srd_}:{srd_+3}], s{so} offen" + (f" offset:{off}" if off else "") + f" {flag} lds")

def row8_sum(k, regs):
    for ctl in ("quad_perm:[1,0,3,2]", "quad_perm:[2,3,0,1]", "row_half_mirror"):
        k.nop(2)
        for r in regs:
            k(f"v_add_f32_dpp v{r}, v{r}, v{r} {ctl} row_mask:0xf bank_mask:0xf")

def arrive(k, sidx, va=8, vb=9):
    k(f"s_lshl_b32 s40, s{sidx}, 8")
    k(f"s_add_u32 s40, s40, {CNT}")
    k("s_mov_b64 exec, 1")
    k(f"v_mov_b32 v{va}, 1")
    k(f"v_mov_b32 v{vb}, 0")
    k(f"buffer_atomic_add v{va}, v{vb}, s[20:23], s40 offen sc1")

FLG = CNT + 65536
F1, F2, FX, F3, F4 = 0, 256, 512, 768, 1024
SLOC = 59
def pub_store(k, lines):
    if not OPT.get('loc', 1):
        for l in lines: k(l + " " + OPT['st'])
        return
    a, b = k.label("ps"), k.label("pe")
    k(f"s_cmp_eq_u32 s{SLOC}, 1")
    k(f"s_cbranch_scc1 {a}")
    for l in lines: k(l + " " + OPT['st'])
    k(f"s_branch {b}")
    k.place(a)
    for l in lines: k(l)
    k.place(b)

def flag_set(k, sline, val="1", local=False):
    k(f"s_lshl_b32 s40, s{sline}, 7")
    k(f"s_add_u32 s40, s40, {FLG}")
    k("s_mov_b64 exec, 1")
    k(f"v_mov_b32 v8, {val}")
    k("v_mov_b32 v9, 0")
    if local: pub_store(k, ["buffer_store_dword v8, v9, s[20:23], s40 offen"])
    else: k("buffer_store_dword v8, v9, s[20:23], s40 offen sc1")

def flag_poll(k, sline, n=32, slp=None):
    poll(k, sline, 1, n, slp, sh=7, base=FLG)

def poll(k, sidx, target, nlines=1, slp=None, sh=8, base=None):
    lp, out = k.label("poll"), k.label("pollx")
    k(f"s_lshl_b32 s40, s{sidx}, {sh}")
    k(f"s_add_u32 s40, s40, {CNT if base is None else base}")
    k(f"s_mov_b32 exec_lo, {hex((1 << nlines) - 1)}")
    k("s_mov_b32 exec_hi, 0")
    k(f"v_lshlrev_b32 v9, {sh}, v2")
    k("s_mov_b32 s41, 0")
    k.place(lp)
    slp = OPT.get('slp', 2) if slp is None else slp
    if slp: k(f"s_sleep {slp}")
    k("buffer_load_dword v10, v9, s[20:23], s40 offen sc1")
    k("s_add_u32 s41, s41, 1")
    k("s_cmp_gt_u32 s41, 0x40000")
    k(f"s_cbranch_scc1 {out}")
    k("s_waitcnt vmcnt(0)")
    k(f"v_cmp_gt_u32 vcc, {target}, v10" if target <= 64 else f"v_cmp_gt_u32 vcc, {hex(target)}, v10")
    k(f"s_cmp_lg_u64 vcc, 0")
    k(f"s_cbranch_scc1 {lp}")
    k.place(out)
    k("s_waitcnt vmcnt(0)")
    k("s_mov_b64 exec, -1")

def touch(k, base_s, nlines, reg=40):
    k("v_lshlrev_b32 v12, 7, v2")
    for i in range((nlines + 63)//64):
        rem = nlines - 64*i
        if rem < 64:
            k(f"s_mov_b32 exec_lo, {hex((1 << min(rem, 32)) - 1)}")
            k(f"s_mov_b32 exec_hi, {hex((1 << max(rem - 32, 0)) - 1)}")
        k(f"s_add_u32 s41, s{base_s}, {i*8192}")
        k(f"buffer_load_dword v{reg+i}, v12, s[20:23], s41 offen sc1")
    k("s_mov_b64 exec, -1")

def role_read(k):
    if not OPT.get('dyn', 1): return
    k(f"v_mov_b32 v4, {ROLE}")
    k("ds_read_b32 v4, v4")
    k("s_waitcnt lgkmcnt(0)")
    k(f"v_readfirstlane_b32 s{SIDX}, v4")
    k.nop(1)
    k(f"s_and_b32 s{SXCD}, s{SIDX}, 7")
    k(f"s_lshr_b32 s{SIDX}, s{SIDX}, 3")

def p1_map(k):
    k(f"""
    s_lshr_b32 s27, s{SXCD}, 1
    s_lshl_b32 s27, s27, 3
    s_and_b32 s28, s{SIDX}, 7
    s_add_u32 s27, s27, s28
    s_and_b32 s28, s{SXCD}, 1
    s_lshl_b32 s28, s28, 2
    s_lshr_b32 s29, s{SIDX}, 3
    s_add_u32 s28, s28, s29
    """)
EXC = 65536 + 3*12288
EXS = 65536 + 2*12288

def p1_consumer(k):
    SRB, SCB = 27, 28
    VXA, VWA = 12, 16
    WB = [20, 32, 44, 56]; XB = [68, 72, 76, 80]; ACC = 84; CS = 132; SEL = 144
    k(f"""
    v_and_b32 v8, 31, v2
    v_lshrrev_b32 v4, 5, v2
    v_lshrrev_b32 v5, 1, v8
    v_and_b32 v5, 7, v5
    s_and_b32 s34, s{SW}, 1
    s_lshl_b32 s35, s34, 12
    v_lshlrev_b32 v6, 7, v8
    v_add_u32 v6, s35, v6
    """)
    for u in range(4):
        k(f"v_add_u32 v7, {2*u}, v4")
        k(f"v_xor_b32 v7, v7, v5")
        k(f"v_lshl_add_u32 v{VXA+u}, v7, 4, v6")
    k(f"""
    s_lshr_b32 s36, s{SW}, 1
    v_bfe_u32 v5, v2, 2, 2
    v_lshl_add_u32 v6, v4, 3, v5
    v_lshlrev_b32 v6, 7, v6
    v_bfe_u32 v7, v2, 4, 1
    v_lshlrev_b32 v7, 1, v7
    v_bfe_u32 v11, v2, 1, 1
    v_add_u32 v7, v7, v11
    s_lshl_b32 s37, s36, 2
    v_add_u32 v7, s37, v7
    v_lshrrev_b32 v5, 1, v5
    v_lshlrev_b32 v5, 2, v5
    v_xor_b32 v7, v7, v5
    v_lshl_add_u32 v6, v7, 4, v6
    v_and_b32 v7, 1, v2
    v_lshl_add_u32 v{VWA+1}, v7, 3, v6
    v_add_u32 v{VWA+1}, 0x10000, v{VWA+1}
    v_mov_b32 v{VWA}, v{VWA+1}
    v_and_b32 v5, 15, v2
    v_bfe_u32 v7, v2, 4, 1
    v_cmp_eq_u32 vcc, v5, v7
    v_mov_b32 v6, {hex(ONES)}
    s_mov_b32 s47, 0
    v_cndmask_b32 v{SEL}, 0, v6, vcc
    """)
    for i in range(1, 4): k(f"v_mov_b32 v{SEL+i}, v{SEL}")
    for i in range(60): k(f"v_mov_b32 v{ACC+i}, 0")
    k(f"""
    s_lshl_b32 s40, s{SCB}, 2
    s_lshl_b32 s41, s36, 1
    s_add_u32 s40, s40, s41
    s_lshl_b32 s40, s40, 16
    s_lshl_b32 s41, s{SRB}, 1
    s_add_u32 s41, s41, s34
    s_lshl_b32 s41, s41, 10
    s_add_u32 s40, s40, s41
    v_bfe_u32 v9, v2, 4, 1
    v_lshlrev_b32 v9, 16, v9
    v_lshl_add_u32 v9, v4, 8, v9
    v_lshl_add_u32 v9, v5, 4, v9
    s_add_u32 s43, s40, {QF + 65536}
    s_add_u32 s44, s40, {KF}
    s_add_u32 s45, s40, {KF + 65536}
    s_add_u32 s46, s40, {VF}
    s_mov_b32 s48, 0
    """)
    def xrd(u, b): k(f"ds_read_b128 v[{b}:{b+3}], v{VXA+u}")
    def wrd(u, b, p):
        for r in range(2):
            k(f"ds_read_b64_tr_b16 v[{b+4*p+2*r}:{b+4*p+2*r+1}], v{VWA} offset:{(u >> 1)*12288 + p*4096 + (u & 1)*2048 + r*512}")
    stamp(k, 0)
    k("s_barrier")
    stamp(k, 1)
    for u in range(2):
        xrd(u, XB[u])
        for p in range(3): wrd(u, WB[u], p)
    odd, ep = k.label("p1odd"), k.label("p1ep")
    k("s_cmp_eq_u32 s34, 1")
    k(f"s_cbranch_scc1 {odd}")
    for par in range(2):
        if par == 1: k.place(odd)
        ml = k.label("p1ml")
        k(".p2align 3")
        k.place(ml)
        for u in range(4):
            if u == 2:
                k("s_add_u32 s48, s48, 24576")
                k(f"s_cmp_eq_u32 s48, {8*12288}")
                k("s_cselect_b32 s48, 0, s48")
                k(f"v_add_u32 v{VXA}, 8192, v{VXA}")
                k(f"v_add_u32 v{VXA+1}, 8192, v{VXA+1}")
                k("s_barrier")
                k(f"v_add_u32 v{VWA}, s48, v{VWA+1}")
            b, x = WB[u], XB[u]
            nu = (u+2) & 3
            cs = (u & 1) == par and not OPT.get('z_nocs')
            k("s_waitcnt lgkmcnt(7)")
            k(f"{MFMA} v[{ACC}:{ACC+15}], v[{b}:{b+3}], v[{x}:{x+3}], v[{ACC}:{ACC+15}]")
            xrd(nu, XB[nu])
            wrd(nu, WB[nu], 0)
            if cs: k(f"{MF16} v[{CS}:{CS+3}], v[{SEL}:{SEL+3}], v[{b}:{b+3}], v[{CS}:{CS+3}]")
            k(f"{MFMA} v[{ACC+16}:{ACC+31}], v[{b+4}:{b+7}], v[{x}:{x+3}], v[{ACC+16}:{ACC+31}]")
            wrd(nu, WB[nu], 1)
            if cs: k(f"{MF16} v[{CS+4}:{CS+7}], v[{SEL}:{SEL+3}], v[{b+4}:{b+7}], v[{CS+4}:{CS+7}]")
            k(f"{MFMA} v[{ACC+32}:{ACC+47}], v[{x}:{x+3}], v[{b+8}:{b+11}], v[{ACC+32}:{ACC+47}]")
            wrd(nu, WB[nu], 2)
            if cs: k(f"{MF16} v[{CS+8}:{CS+11}], v[{SEL}:{SEL+3}], v[{b+8}:{b+11}], v[{CS+8}:{CS+11}]")
            if u == 3:
                for q in range(2, 4): k(f"v_add_u32 v{VXA+q}, 8192, v{VXA+q}")
                k("s_add_u32 s47, s47, 1")
                k("s_cmp_lt_u32 s47, 8")
        k(f"s_cbranch_scc1 {ml}")
        if par == 0: k(f"s_branch {ep}")
    k.place(ep)
    stamp(k, 2)
    k(f"""
    s_lshl_b32 s35, s34, 1
    s_add_u32 s35, s35, s36
    s_mul_i32 s35, s35, 384
    s_add_u32 s35, s35, {EXC}
    v_lshl_add_u32 v5, v2, 2, s35
    s_mul_i32 s37, s36, 384
    s_add_u32 s37, s37, {EXC}
    v_lshl_add_u32 v6, v4, 4, s37
    v_lshl_add_u32 v7, v8, 2, s37
    s_lshl_b32 s38, s34, 7
    s_add_u32 s38, s38, {EXS}
    v_lshl_add_u32 v10, v8, 2, s38
    v_lshl_add_u32 v11, v4, 4, s38
    s_mov_b64 exec, 0xffff
    """)
    for p in range(3):
        k(f"ds_write2_b32 v5, v{CS+4*p}, v{CS+4*p+1} offset0:{32*p} offset1:{32*p+16}")
    k("s_mov_b64 exec, -1")
    k("s_waitcnt lgkmcnt(0)")
    k("s_barrier")
    A, B, RSV, NBV = 20, 36, 52, 68
    RS, NB, CV = 132, 134, 136
    k(f"ds_read_b32 v{RS}, v10")
    k(f"ds_read_b32 v{NB}, v10 offset:256")
    def csrd(p):
        for g in range(4):
            k(f"ds_read_b128 v[{A+4*g}:{A+4*g+3}], v6 offset:{p*128 + g*32}")
            k(f"ds_read_b128 v[{B+4*g}:{B+4*g+3}], v6 offset:{768 + p*128 + g*32}")
    csrd(0)
    k(f"ds_read_b32 v{CV}, v7 offset:256")
    k(f"ds_read_b32 v{CV+1}, v7 offset:{768 + 256}")
    k(f"s_mov_b32 s42, {hex(f32(0.25*math.log2(math.e)))}")
    k("s_waitcnt lgkmcnt(10)")
    k(f"v_mul_f32 v138, s42, v{RS}")
    k(f"v_mul_f32 v140, s42, v{NB}")
    st = OPT['st']
    P = 144
    def fold(acc, rs, nb):
        for r in range(0, 16, 2):
            k(f"v_pk_add_f32 v[{A+r}:{A+r+1}], v[{A+r}:{A+r+1}], v[{B+r}:{B+r+1}]")
        for r in range(0, 16, 2):
            k(f"v_pk_mul_f32 v[{A+r}:{A+r+1}], v[{A+r}:{A+r+1}], v[{nb}:{nb+1}] op_sel_hi:[1,0]")
        for r in range(0, 16, 2):
            k(f"v_pk_fma_f32 v[{acc+r}:{acc+r+1}], v[{acc+r}:{acc+r+1}], v[{rs}:{rs+1}], v[{A+r}:{A+r+1}] op_sel_hi:[1,0,1]")
    def pack(acc, p, so0, so1, va, off1=0):
        for d in range(8):
            k(f"v_cvt_pk_bf16_f32 v{p+d}, v{acc+2*d}, v{acc+2*d+1}")
            if d == 3: k(f"buffer_store_dwordx4 v[{p}:{p+3}], v{va}, s[20:23], s{so0} offen {st}")
        k(f"buffer_store_dwordx4 v[{p+4}:{p+7}], v{va}, s[20:23], s{so1} offen" + (f" offset:{off1}" if off1 else "") + f" {st}")
    k("s_waitcnt lgkmcnt(2)")
    fold(ACC, 138, 140)
    csrd(1)
    for g in range(4):
        k(f"ds_read_b128 v[{RSV+4*g}:{RSV+4*g+3}], v11 offset:{g*32}")
    pack(ACC, P, 40, 43, 3)
    k("s_waitcnt lgkmcnt(4)")
    for g in range(4):
        k(f"ds_read_b128 v[{NBV+4*g}:{NBV+4*g+3}], v11 offset:{256 + g*32}")
    fold(ACC+16, RS, NB)
    pack(ACC+16, P+8, 44, 45, 3)
    k(f"v_add_f32 v{CV}, v{CV}, v{CV+1}")
    k("s_waitcnt lgkmcnt(0)")
    for r in range(0, 16, 2):
        k(f"v_pk_mul_f32 v[{NBV+r}:{NBV+r+1}], v[{NBV+r}:{NBV+r+1}], v[{CV}:{CV+1}] op_sel_hi:[1,0]")
    for r in range(0, 16, 2):
        k(f"v_pk_fma_f32 v[{ACC+32+r}:{ACC+33+r}], v[{ACC+32+r}:{ACC+33+r}], v[{RSV+r}:{RSV+r+1}], v[{NBV+r}:{NBV+r+1}]")
    pack(ACC+32, P+16, 46, 46, 9, 512)
    stamp(k, 3)
    k("s_waitcnt vmcnt(0)")
    k("s_barrier")
    role_read(k)
    k("s_barrier")

def relayout(k):
    st = OPT['st']
    PRE = [16, 44]
    k(f"""
    v_and_b32 v6, 31, v2
    v_lshrrev_b32 v7, 5, v2
    v_lshlrev_b32 v12, 10, v6
    v_lshl_add_u32 v12, v7, 3, v12
    v_mul_u32_u24 v13, {4*2752}, v7
    v_lshl_add_u32 v13, v6, 1, v13
    v_lshlrev_b32 v14, 12, v7
    v_lshl_add_u32 v14, v6, 1, v14
    s_lshl_b32 s42, s2, 3
    s_lshl_b32 s43, s29, 1
    s_add_u32 s42, s42, s43
    """)
    def wload(reg, voffreg, soffreg, pitch):
        for j in range(8):
            row = 8*(j >> 2) + (j & 3)
            k(f"s_add_u32 s49, s{soffreg}, {row*pitch}")
            k(f"buffer_load_ushort v{reg+j}, v{voffreg}, s[44:47], s49 offen")
    def item_loads(i):
        P_, D0 = PRE[i], (37, 52)[i]
        k(f"s_add_u32 s{D0+2}, s42, {i}")
        G = D0 + 2
        srd(k, 44, 4, 2*MB)
        k(f"""
        s_lshr_b32 s43, s{G}, 5
        s_lshl_b32 s43, s43, 15
        s_and_b32 s48, s{G}, 31
        s_lshl_b32 s48, s48, 5
        s_add_u32 s43, s43, s48
        buffer_load_dwordx2 v[{P_}:{P_+1}], v12, s[44:47], s43 offen
        buffer_load_dwordx2 v[{P_+2}:{P_+3}], v12, s[44:47], s43 offen offset:16
        s_mov_b32 s50, {(2**32 + 42)//43}
        s_mul_hi_u32 s51, s{G}, s50
        s_mul_i32 s58, s51, 43
        s_sub_u32 s58, s{G}, s58
        s_mul_i32 s59, s51, {16*2752}
        s_lshl_b32 s48, s58, 6
        s_add_u32 s59, s59, s48
        s_lshl_b32 s{D0}, s58, 5
        s_add_u32 s{D0}, s{D0}, s51
        s_lshl_b32 s{D0}, s{D0}, 10
        s_cmp_lt_u32 s{G}, 1376
        s_cselect_b32 s50, {512*2752}, 0
        s_mov_b32 s44, s12
        s_and_b32 s45, s13, 0xffff
        s_mov_b32 s46, s50
        """)
        wload(P_+4, 13, 59, 2752)
        k("s_mov_b32 s44, s14")
        k("s_and_b32 s45, s15, 0xffff")
        wload(P_+12, 13, 59, 2752)
        k(f"""
        s_sub_u32 s48, s{G}, 1376
        s_cmp_lt_u32 s{G}, 1376
        s_cselect_b32 s48, s{G}, s48
        s_cselect_b32 s44, s16, s8
        s_cselect_b32 s45, s17, s9
        s_cselect_b32 s46, {1376*1024}, 0
        s_cselect_b32 s50, 86, 32
        s_cselect_b32 s43, {WDF - WOF}, 0
        s_and_b32 s45, s45, 0xffff
        s_sub_u32 s51, s{G}, 1376
        s_cmp_lt_u32 s51, 512
        s_cselect_b32 s46, {512*1024}, s46
        s_and_b32 s58, s48, 15
        s_lshr_b32 s51, s48, 4
        s_lshl_b32 s59, s51, 14
        s_lshl_b32 s48, s58, 6
        s_add_u32 s59, s59, s48
        s_mul_i32 s{D0+1}, s58, s50
        s_add_u32 s{D0+1}, s{D0+1}, s51
        s_lshl_b32 s{D0+1}, s{D0+1}, 10
        s_add_u32 s{D0+1}, s{D0+1}, s43
        """)
        wload(P_+20, 14, 59, 1024)
    def pack_store(reg, dstreg, base):
        for d in range(4):
            k(f"v_lshl_or_b32 v{reg+d}, v{reg+2*d+1}, 16, v{reg+2*d}")
        k(f"s_add_u32 s49, s{dstreg}, {base}")
        k(f"buffer_store_dwordx4 v[{reg}:{reg+3}], v3, s[20:23], s49 offen {st}")
    def item_stores(i):
        P_, D0 = PRE[i], (37, 52)[i]
        G = D0 + 2
        l1, l2 = k.label("is1"), k.label("is2")
        k(f"s_lshl_b32 s43, s{G}, 10")
        k(f"s_add_u32 s43, s43, {XF}")
        k(f"buffer_store_dwordx4 v[{P_}:{P_+3}], v3, s[20:23], s43 offen {st}")
        k(f"s_cmp_lt_u32 s{G}, 1376")
        k(f"s_cbranch_scc0 {l1}")
        pack_store(P_+4, D0, WGF)
        pack_store(P_+12, D0, WUF)
        k.place(l1)
        k(f"s_cmp_lt_u32 s{G}, 1888")
        k(f"s_cbranch_scc0 {l2}")
        pack_store(P_+20, D0+1, WOF)
        k.place(l2)
    return item_loads, item_stores

def p1_loader(k):
    SRB, SCB = 27, 28
    VXE, VXO, VW = 8, 9, 10
    k(f"""
    s_sub_u32 s29, s{SW}, 4
    v_lshrrev_b32 v11, 3, v2
    v_and_b32 v4, 7, v2
    v_lshrrev_b32 v5, 4, v2
    v_xor_b32 v6, v4, v5
    v_lshlrev_b32 v6, 4, v6
    s_lshl_b32 s35, s29, 4
    v_add_u32 v7, s35, v11
    v_lshlrev_b32 v12, 10, v7
    v_add_u32 v{VXE}, v12, v6
    v_xor_b32 v6, 64, v6
    v_add_u32 v{VXO}, v12, v6
    v_add_u32 v{VXO}, 8192, v{VXO}
    s_lshl_b32 s35, s29, 3
    v_add_u32 v7, s35, v11
    v_and_b32 v5, 1, v5
    v_lshlrev_b32 v5, 2, v5
    v_xor_b32 v5, v4, v5
    v_lshlrev_b32 v5, 4, v5
    v_mul_u32_u24 v7, 3072, v7
    v_add_u32 v{VW}, v7, v5
    s_lshl_b32 s31, s29, 10
    s_lshl_b32 s36, s29, 11
    s_lshl_b32 s30, s{SRB}, 16
    s_lshl_b32 s32, s{SCB}, 7
    """)
    srd(k, 52, 4, 2*MB)
    srd(k, 56, 6, 512*3072)
    n = lambda c: 3 + (0 if c & 1 else 2)
    def issue(c):
        if OPT.get('z_nodma1') and c > 2: return
        if not c & 1:
            k(f"s_add_u32 s33, s30, {(c//2)*128}")
            for o in range(2):
                dma(k, VXE if o == 0 else VXO, 52, 33, f"s36, {(c//2)*8192 + o*1024}")
        for p in range(3):
            k(f"s_add_u32 s33, s32, {32*c*3072 + p*1024}")
            dma(k, VW, 56, 33, f"s31, {65536 + (c % 8)*12288 + p*4096}")
    issued = OPT.get('d1', 4)
    for c in range(issued): issue(c)
    for P in range(9):
        k(f"s_waitcnt vmcnt({sum(n(j) for j in range(2*P+2, issued))})")
        k("s_barrier")
        m = 0
        while issued < 16 and issued - 8 <= 2*P - 3 and m < 4:
            issue(issued); issued += 1; m += 1
    k("s_barrier")
    k("s_barrier")
    role_read(k)
    k("s_barrier")

def p1_helper(k):
    k(f"s_setprio {OPT.get('hprio', 3)}")
    X, SQ, SX, T, RS, NB = 16, 24, 28, 32, 36, 38
    init_done = k.label("initd")
    k(f"""
    s_or_b32 s29, s2, s{SW}
    s_cmp_lg_u32 s29, 9
    s_cbranch_scc1 {init_done}
    s_cmp_lg_u32 s2, 0
    s_cbranch_scc1 {init_done}
    v_lshlrev_b32 v4, 8, v2
    v_mov_b32 v5, 0
    s_mov_b32 s30, {CNT}
    buffer_store_dword v5, v4, s[20:23], s30 offen sc1
    v_lshlrev_b32 v4, 7, v2
    """)
    for i in range(20):
        k(f"s_mov_b32 s30, {FLG + i*8192}")
        k("buffer_store_dword v5, v4, s[20:23], s30 offen sc1")
    k(f"""
    s_waitcnt vmcnt(0)
    v_mov_b32 v6, 1
    s_mov_b64 exec, 1
    global_store_dword v5, v6, s[60:61] sc1
    s_mov_b64 exec, -1
    """)
    k.place(init_done)
    if OPT.get('dyn', 1):
        tkx = k.label("tkx")
        def ticket():
            k("s_lshl_b32 s57, s56, 5")
            k("s_add_u32 s57, s57, 16")
            k("s_mov_b64 exec, 1")
            k("v_mov_b32 v45, s57")
            k("v_mov_b32 v46, 1")
            k("global_atomic_add v44, v45, v46, s[60:61] sc0 sc1")
            k("s_mov_b64 exec, -1")
        k(f"s_cmp_lg_u32 s{SW}, 8")
        k(f"s_cbranch_scc1 {tkx}")
        k("s_getreg_b32 s56, hwreg(HW_REG_XCC_ID, 0, 4)")
        k("s_and_b32 s56, s56, 7")
        ticket()
        k.place(tkx)
    k(f"""
    s_sub_u32 s29, s{SW}, 8
    s_lshl_b32 s30, s29, 10
    v_add_u32 v4, s30, v3
    s_mov_b32 s39, {hex(ONES)}
    """)
    if OPT.get('t1', 0):
        srd(k, 44, 4, 2*MB)
        srd(k, 52, 6, 512*3072)
        k(f"""
        s_lshr_b32 s31, s{SXCD}, 1
        s_lshl_b32 s31, s31, 9
        s_lshl_b32 s32, s{SIDX}, 4
        s_add_u32 s31, s31, s32
        s_lshl_b32 s31, s31, 10
        s_lshl_b32 s32, s29, 7
        s_add_u32 s31, s31, s32
        v_lshlrev_b32 v12, 10, v2
        v_mul_u32_u24 v13, 43, v2
        v_lshrrev_b32 v13, 9, v13
        v_mul_u32_u24 v14, 12, v13
        v_sub_u32 v14, v2, v14
        v_lshrrev_b32 v15, 2, v14
        v_and_b32 v14, 3, v14
        v_lshlrev_b32 v14, 7, v14
        v_lshl_add_u32 v14, v15, 10, v14
        v_mul_u32_u24 v13, 3072, v13
        v_add_u32 v13, v13, v14
        s_lshl_b32 s32, s29, 6
        s_lshl_b32 s33, s{SIDX}, 1
        s_add_u32 s32, s32, s33
        s_mul_i32 s32, s32, 3072
        s_and_b32 s33, s{SXCD}, 1
        s_lshl_b32 s33, s33, 9
        s_add_u32 s32, s32, s33
        s_add_u32 s33, s32, {256*3072}
        s_mov_b32 exec_hi, 0
        s_mov_b32 exec_lo, 0xffff
        buffer_load_dword v40, v12, s[44:47], s31 offen
        s_mov_b32 exec_lo, 0xffffff
        buffer_load_dword v41, v13, s[52:55], s32 offen
        s_mov_b32 exec_lo, 0xffff
        buffer_load_dword v42, v12, s[44:47], s31 offen offset:512
        s_mov_b32 exec_lo, 0xffffff
        buffer_load_dword v43, v13, s[52:55], s33 offen
        s_mov_b64 exec, -1
        """)
    for c in range(9):
        k("s_barrier")
        if c < 8 and not (OPT.get('z_nostat') and c > 0):
            cc = c
            k(f"ds_read_b128 v[{X}:{X+3}], v4 offset:{cc*8192}")
            k(f"ds_read_b128 v[{X+4}:{X+7}], v4 offset:{cc*8192 + 4096}")
            for hf in range(2):
                k(f"s_waitcnt lgkmcnt({1-hf})")
                for d in range(4):
                    r = X + 4*hf + d
                    q, sx = SQ + 2*hf + (d & 1), SX + 2*hf + (d & 1)
                    first = (cc == 0 and d < 2)
                    k(f"v_dot2_f32_bf16 v{q}, v{r}, v{r}, {'0' if first else 'v%d' % q}")
                    k(f"v_dot2_f32_bf16 v{sx}, v{r}, s39, {'0' if first else 'v%d' % sx}")
        if c == 7:
            k.nop(3)
            k(f"v_add_f32 v{SQ}, v{SQ}, v{SQ+1}")
            k(f"v_add_f32 v{SQ+2}, v{SQ+2}, v{SQ+3}")
            k(f"v_add_f32 v{SX}, v{SX}, v{SX+1}")
            k(f"v_add_f32 v{SX+2}, v{SX+2}, v{SX+3}")
            row8_sum(k, [SQ, SQ+2, SX, SX+2])
        if c == 7:
            for hf in range(2):
                finish_stats(k, SX + 2*hf, SQ + 2*hf, RS + hf, NB + hf, T, T+1)
            k(f"""
            v_lshrrev_b32 v5, 3, v2
            s_lshl_b32 s30, s29, 5
            s_add_u32 s30, s30, {EXS}
            v_lshl_add_u32 v5, v5, 2, s30
            ds_write2_b32 v5, v{RS}, v{RS+1} offset0:0 offset1:32
            ds_write2_b32 v5, v{NB}, v{NB+1} offset0:64 offset1:96
            """)
    k("s_waitcnt lgkmcnt(0)")
    k("s_barrier")
    if OPT.get('dyn', 1):
        nw = k.label("nrw")
        k(f"s_cmp_lg_u32 s{SW}, 8")
        k(f"s_cbranch_scc1 {nw}")
        tk, tkd = k.label("tk"), k.label("tkd")
        k.place(tk)
        k("s_waitcnt vmcnt(0)")
        k("v_readfirstlane_b32 s57, v44")
        k.nop(1)
        k("s_cmp_lt_u32 s57, 32")
        k(f"s_cbranch_scc1 {tkd}")
        k("s_add_u32 s56, s56, 1")
        k("s_and_b32 s56, s56, 7")
        ticket()
        k(f"s_branch {tk}")
        k.place(tkd)
        k("s_lshl_b32 s57, s57, 3")
        k("s_or_b32 s57, s57, s56")
        k(f"v_mov_b32 v4, {ROLE}")
        k("v_mov_b32 v5, s57")
        k("ds_write_b32 v4, v5")
        k("s_waitcnt lgkmcnt(0)")
        k.place(nw)
    k("s_barrier")
    role_read(k)
    stamp(k, 0)
    nop_ = k.label("h1n")
    k(f"s_cmp_lg_u32 s{SW}, 8")
    k(f"s_cbranch_scc1 {nop_}")
    g, gx = k.label("gate"), k.label("gatex")
    k("s_mov_b32 s41, 0")
    k("v_mov_b32 v9, 0")
    k.place(g)
    k("global_load_dword v10, v9, s[60:61] sc1")
    k("s_add_u32 s41, s41, 1")
    k("s_cmp_gt_u32 s41, 0x40000")
    k(f"s_cbranch_scc1 {gx}")
    k("s_waitcnt vmcnt(0)")
    k("v_cmp_eq_u32 vcc, 0, v10")
    k("s_cmp_lg_u64 vcc, 0")
    k(f"s_cbranch_scc1 {g}")
    k.place(gx)
    stamp(k, 1)
    k(f"s_lshl_b32 s42, s28, 5")
    k(f"s_add_u32 s42, s42, s27")
    flag_set(k, 42)
    k("s_getreg_b32 s58, hwreg(HW_REG_XCC_ID, 0, 4)")
    k("s_add_u32 s58, s58, 1")
    k(f"s_lshl_b32 s42, s{SXCD}, 5")
    k(f"s_add_u32 s42, s42, s{SIDX}")
    k(f"s_add_u32 s42, s42, {FX}")
    flag_set(k, 42, "s58")
    k(f"s_lshr_b32 s42, s{SIDX}, 2")
    k(f"s_lshl_b32 s42, s42, 5")
    flag_poll(k, 42)
    stamp(k, 2)
    k.place(nop_)
    k("s_barrier")

def rowmax(k, S, dst, t1, t2):
    k(f"v_max3_f32 v{dst}, v{S}, v{S+1}, v{S+2}")
    k(f"v_max3_f32 v{t1}, v{S+3}, v{S+4}, v{S+5}")
    k(f"v_max3_f32 v{dst}, v{dst}, v{S+6}, v{S+7}")
    k(f"v_max3_f32 v{t1}, v{t1}, v{S+8}, v{S+9}")
    k(f"v_max3_f32 v{dst}, v{dst}, v{S+10}, v{S+11}")
    k(f"v_max3_f32 v{t1}, v{t1}, v{S+12}, v{S+13}")
    k(f"v_max3_f32 v{dst}, v{dst}, v{S+14}, v{S+15}")
    k(f"v_max_f32 v{t1}, v{dst}, v{t1}")
    k(f"v_mov_b32 v{t2}, v{t1}")
    k.nop(2)
    k(f"v_permlane32_swap_b32 v{t1}, v{t2}")
    k.nop(1)
    k(f"v_max_f32 v{dst}, v{t1}, v{t2}")

def p2_compute(k, tail):
    Q = 8; KB = [12, 16]; V1 = [20, 28]; V2 = [24, 32]; P = 36; SS = [48, 64]; CN = 80; O = 96
    VKA, VVA, VINC = 4, 5, 47
    PRG, VPR = 112, 6
    chk, spin = k.label("chk"), k.label("spin")
    def spinf(k):
        k.place(spin)
        k("s_sleep 1")
        k(f"ds_read_b128 v[{PRG}:{PRG+3}], v{VPR}")
        k("s_waitcnt lgkmcnt(0)")
        k(f"s_branch {chk}")
    tail.append(spinf)
    k(f"""
    s_lshl_b32 s30, s{SXCD}, 3
    s_add_u32 s30, s30, s{SW}
    s_lshl_b32 s31, s30, 10
    s_lshl_b32 s29, s{SIDX}, 16
    s_add_u32 s31, s31, s29
    buffer_load_dwordx4 v[{Q}:{Q+3}], v3, s[20:23], s31 offen {OPT['ld']}
    v_mov_b32 v{VKA}, v3
    v_lshrrev_b32 v6, 5, v2
    v_lshlrev_b32 v6, 8, v6
    v_and_b32 v7, 15, v2
    v_lshl_add_u32 v{VVA}, v7, 4, v6
    v_add_u32 v{VVA}, 0x10000, v{VVA}
    v_and_b32 v6, 31, v2
    v_add_u32 v7, -20, v6
    v_cmp_gt_u32 vcc, 8, v7
    v_mov_b32 v44, {CSTRIP}
    v_mov_b32 v45, {CSTRIP + 64}
    v_cndmask_b32 v44, v44, v45, vcc
    v_and_b32 v7, 27, v2
    v_cmp_eq_u32 vcc, 16, v7
    v_add_u32 v45, 16, v44
    s_nop 0
    v_cndmask_b32 v44, v44, v45, vcc
    v_cmp_gt_u32 vcc, 16, v6
    v_mov_b32 v45, 8192
    s_nop 0
    v_cndmask_b32 v{VVA}, v44, v{VVA}, vcc
    v_cndmask_b32 v{VINC}, 0, v45, vcc
    """)
    k(f"v_mov_b32 v{VPR}, {PROG}")
    for r in range(4): k(f"v_mov_b32 v{V2[1]+r}, 0")
    for r in range(8): k(f"v_mov_b32 v{P+r}, 0")
    for r in range(16): k(f"v_mov_b32 v{O+r}, 0")
    def vread(kk, buf, off):
        kk(f"ds_read_b128 v[{V1[buf]}:{V1[buf]+3}], v{VVA} offset:{off}")
        kk(f"ds_read_b128 v[{V2[buf]}:{V2[buf]+3}], v{VVA} offset:{off+512}")
    stamp(k, 4)
    k("s_barrier")
    stamp(k, 5)
    k(f"ds_read_b128 v[{KB[0]}:{KB[0]+3}], v{VKA}")
    k(f"ds_read_b128 v[{KB[1]}:{KB[1]+3}], v{VKA} offset:1024")
    vread(k, 0, 0)
    k("s_waitcnt vmcnt(0) lgkmcnt(3)")
    k(f"{MFMA} v[{SS[0]}:{SS[0]+15}], v[{KB[0]}:{KB[0]+3}], v[{Q}:{Q+3}], 0")
    k.nop(12)
    rowmax(k, SS[0], 44, 45, 46)
    for r in range(16): k(f"v_sub_f32 v{CN+r}, 0, v44")
    k.nop(2)
    k(f"{MFMA} v[{SS[0]}:{SS[0]+15}], v[{KB[0]}:{KB[0]+3}], v[{Q}:{Q+3}], v[{CN}:{CN+15}]")
    k("s_mov_b32 s38, 0")
    k.nop(10)
    loop = k.label("loop")
    k(".p2align 6")
    k.place(loop)
    pr = OPT['prio']
    for t in range(8):
        cur, nx = SS[t & 1], SS[(t+1) & 1]
        e = lambda i: k(f"v_exp_f32 v{cur+i}, v{cur+i}")
        c = lambda i: k(f"v_cvt_pk_bf16_f32 v{P+i}, v{cur+2*i}, v{cur+2*i+1}")
        k("s_waitcnt lgkmcnt(0)")
        if t == 6:
            k.place(chk)
            k(f"v_min3_u32 v{PRG}, v{PRG}, v{PRG+1}, v{PRG+2}")
            k(f"v_min_u32 v{PRG}, v{PRG}, v{PRG+3}")
            k(f"v_cmp_ge_u32 vcc, s38, v{PRG}")
            k("s_cmp_lg_u64 vcc, 0")
            k(f"s_cbranch_scc1 {spin}")
        k("s_setprio 0" if pr else "s_nop 0")
        kb = KB[(t+1) & 1]
        k(f"{MFMA} v[{nx}:{nx+15}], v[{kb}:{kb+3}], v[{Q}:{Q+3}], v[{CN}:{CN+15}]")
        k(f"ds_read_b128 v[{KB[t&1]}:{KB[t&1]+3}], v{VKA} offset:{(t+2)*1024}")
        e(0); e(1)
        pb = (t+1) & 1
        k(f"{MFMA} v[{O}:{O+15}], v[{V2[pb]}:{V2[pb]+3}], v[{P+4}:{P+7}], v[{O}:{O+15}]")
        vread(k, pb, (t+1)*1024)
        if t == 5: k(f"ds_read_b128 v[{PRG}:{PRG+3}], v{VPR}")
        e(2); e(3); c(0)
        if pr: k("s_setprio 1")
        e(4); e(5); c(1); e(6); e(7); c(2); e(8); e(9); c(3); e(10); e(11)
        k(f"{MFMA} v[{O}:{O+15}], v[{V1[t&1]}:{V1[t&1]+3}], v[{P}:{P+3}], v[{O}:{O+15}]")
        c(4); e(12); e(13); c(5); e(14); e(15); c(6)
        if t == 7:
            k(f"v_add_u32 v{VKA}, 8192, v{VKA}")
            k(f"v_add_u32 v{VVA}, v{VINC}, v{VVA}")
            k("s_add_u32 s38, s38, 1")
            k(f"v_mov_b32 v{PRG}, s38")
            k(f"ds_write_b32 v{VPR}, v{PRG} offset:32")
            k("s_cmp_lt_u32 s38, 8")
        c(7)
    k(f"s_cbranch_scc1 {loop}")
    k("s_setprio 0")
    stamp(k, 6)
    k.nop(1)
    k(f"{MFMA} v[{O}:{O+15}], v[{V2[1]}:{V2[1]+3}], v[{P+4}:{P+7}], v[{O}:{O+15}]")
    k(f"ds_read_b32 v{PRG}, v{VPR} offset:16")
    k("s_waitcnt lgkmcnt(0)")
    k(f"v_readfirstlane_b32 s{SLOC}, v{PRG}")
    k.nop(11)
    fb, fin = k.label("fb"), k.label("fin")
    k(f"""
    v_max3_f32 v44, abs(v{O}), abs(v{O+1}), abs(v{O+2})
    v_max3_f32 v45, abs(v{O+3}), abs(v{O+4}), abs(v{O+5})
    v_max3_f32 v44, v44, abs(v{O+6}), abs(v{O+7})
    v_add_f32 v46, v{O}, v{O+1}
    v_max3_f32 v44, v44, v45, v{O+8}
    s_mov_b32 s39, {hex(f32(2.0**100))}
    """)
    for r in range(2, 9): k(f"v_add_f32 v46, v46, v{O+r}")
    k(f"v_and_b32 v46, 0x7fffffff, v46")
    k(f"v_cmp_ngt_f32 vcc, s39, v44")
    k(f"v_cmp_ngt_f32 s[40:41], s39, v46")
    k.nop(1)
    k("s_or_b64 s[40:41], s[40:41], vcc")
    k("s_cmp_lg_u64 s[40:41], 0")
    k(f"s_cbranch_scc1 {fb}")
    k.place(fin)
    k(f"v_rcp_f32 v44, v{O+8}")
    k(f"s_lshl_b32 s40, s30, 15")
    k(f"s_lshl_b32 s41, s{SIDX}, 10")
    k(f"s_add_u32 s40, s40, s41")
    k(f"s_add_u32 s40, s40, {OF}")
    for r in range(8): k(f"v_mul_f32 v{O+r}, v{O+r}, v44")
    for r in range(4): k(f"v_cvt_pk_bf16_f32 v{P+r}, v{O+2*r}, v{O+2*r+1}")
    pub_store(k, [f"buffer_store_dwordx4 v[{P}:{P+3}], v3, s[20:23], s40 offen"])
    k("s_waitcnt vmcnt(0)")
    k("s_barrier")
    k("s_barrier")
    def fallback(k):
        k.place(fb)
        k(f"v_mov_b32 v{VKA}, v3")
        k(f"v_lshlrev_b32 v44, 3, v{VINC}")
        k(f"v_sub_u32 v{VVA}, v{VVA}, v44")
        k(f"v_lshrrev_b32 v{VINC}, 3, v{VINC}")
        k(f"v_mov_b32 v7, 0xff7fffff")
        for r in range(16): k(f"v_mov_b32 v{O+r}, 0")
        k("s_mov_b32 s38, 0")
        fl = k.label("fl")
        k.place(fl)
        S = SS[0]
        k(f"ds_read_b128 v[{KB[0]}:{KB[0]+3}], v{VKA}")
        vread(k, 0, 0)
        k("s_waitcnt lgkmcnt(0)")
        k(f"{MFMA} v[{S}:{S+15}], v[{KB[0]}:{KB[0]+3}], v[{Q}:{Q+3}], 0")
        k.nop(14)
        rowmax(k, S, 44, 45, 46)
        k("v_max_f32 v44, v44, v7")
        k("v_sub_f32 v45, v7, v44")
        k("v_exp_f32 v45, v45")
        k("v_mov_b32 v7, v44")
        for r in range(16): k(f"v_sub_f32 v{S+r}, v{S+r}, v44")
        for r in range(16): k(f"v_mul_f32 v{O+r}, v{O+r}, v45")
        for r in range(16): k(f"v_exp_f32 v{S+r}, v{S+r}")
        k.nop(1)
        for r in range(8): k(f"v_cvt_pk_bf16_f32 v{P+r}, v{S+2*r}, v{S+2*r+1}")
        k.nop(2)
        k(f"{MFMA} v[{O}:{O+15}], v[{V1[0]}:{V1[0]+3}], v[{P}:{P+3}], v[{O}:{O+15}]")
        k(f"{MFMA} v[{O}:{O+15}], v[{V2[0]}:{V2[0]+3}], v[{P+4}:{P+7}], v[{O}:{O+15}]")
        k(f"v_add_u32 v{VKA}, 1024, v{VKA}")
        k(f"v_add_u32 v{VVA}, v{VINC}, v{VVA}")
        k("s_add_u32 s38, s38, 1")
        k("s_cmp_lt_u32 s38, 64")
        k.nop(14)
        k(f"s_cbranch_scc1 {fl}")
        k(f"s_branch {fin}")
    tail.append(fallback)

def p2_helper(k, done):
    NB2 = OPT['nb2']
    ld, st = OPT['ld'], OPT['st']
    k(f"""
    s_sub_u32 s30, s{SW}, 8
    s_lshl_b32 s32, s30, 11
    s_lshl_b32 s29, s{SIDX}, 16
    s_add_u32 s33, s29, s32
    """)
    def kv(c):
        k(f"s_add_u32 s31, s{SXCD}, {c}" if OPT.get('rot', 1) else f"s_mov_b32 s31, {c}")
        k("s_and_b32 s31, s31, 7")
        k("s_lshl_b32 s31, s31, 13")
        k("s_add_u32 s31, s31, s33")
        for base, l in ((KF, 0), (VF, 65536)):
            k(f"s_add_u32 s34, s31, {base}")
            dma(k, 3, 20, 34, f"s32, {l + c*8192}", 0, ld)
            k(f"buffer_load_dwordx4 v3, s[20:23], s34 offen offset:1024 {ld} lds")
    kv(0); kv(1)
    k(f"""
    v_lshrrev_b32 v4, 2, v2
    s_lshl_b32 s35, s30, 4
    v_add_u32 v4, s35, v4
    v_cmp_gt_u32 vcc, 20, v4
    v_lshlrev_b32 v4, 9, v4
    v_and_b32 v5, 1, v2
    v_lshl_add_u32 v4, v5, 4, v4
    v_bfe_u32 v6, v2, 1, 1
    v_lshl_add_u32 v4, v6, 6, v4
    v_add_u32 v4, {CSTRIP}, v4
    v_mul_u32_u24 v8, 0x3f80, v5
    v_lshl_or_b32 v8, v8, 16, v8
    v_mov_b32 v9, v8
    v_mov_b32 v10, v8
    v_mov_b32 v11, v8
    s_and_saveexec_b64 s[36:37], vcc
    ds_write_b128 v4, v[8:11]
    s_mov_b64 exec, s[36:37]
    s_lshl_b32 s35, s30, 2
    s_add_u32 s35, s35, {PROG}
    v_mov_b32 v4, s35
    v_mov_b32 v5, 0
    ds_write_b32 v4, v5
    ds_write_b32 v4, v5 offset:16
    ds_write_b32 v4, v5 offset:32
    ds_write_b32 v4, v5 offset:48
    s_waitcnt vmcnt(4) lgkmcnt(0)
    s_barrier
    """)
    KD = OPT.get('kvd', 3)
    issued = 2
    def publish(c):
        k(f"v_mov_b32 v5, {c if c < 7 else 64}")
        k("ds_write_b32 v4, v5")
    while issued < KD: kv(issued); issued += 1
    c = 1
    while issued < 8:
        k(f"s_waitcnt vmcnt({4*(issued - 1 - c)})")
        publish(c); c += 1
        kv(issued); issued += 1
    stamp(k, 3)
    k("s_mov_b32 s29, s30")
    loads, stores = relayout(k)
    if OPT.get('z_nopre'):
        loads = stores = (lambda i: None)
    loads(0)
    while c < 8:
        k(f"s_waitcnt vmcnt({(0 if OPT.get('z_nopre') else 26) + 4*(7 - c)})")
        publish(c); c += 1
    stamp(k, 12)
    if 'hprio2' in OPT: k(f"s_setprio {OPT['hprio2']}")
    loads(1)
    k("s_waitcnt vmcnt(26)")
    stores(0)
    k("s_waitcnt vmcnt(0)")
    stamp(k, 13)
    stores(1)
    k("s_waitcnt vmcnt(0)")
    stamp(k, 4)
    na = k.label("noarr")
    k(f"v_mov_b32 v5, {PROG + 48}")
    k("v_mov_b32 v6, 1")
    k("s_mov_b64 exec, 1")
    k("ds_add_rtn_u32 v7, v5, v6")
    k("s_waitcnt lgkmcnt(0)")
    k("v_readfirstlane_b32 s42, v7")
    k("s_cmp_lg_u32 s42, 3")
    k(f"s_cbranch_scc1 {na}")
    k(f"s_add_u32 s42, s{SXCD}, {CW}")
    arrive(k, 42)
    k.place(na)
    k(f"s_cmp_lg_u32 s{SW}, 8")
    k(f"s_cbranch_scc1 {done}")
    k("s_setprio 3")
    k(f"s_lshl_b32 s42, s{SXCD}, 5")
    k(f"s_add_u32 s42, s42, {FX}")
    flag_poll(k, 42)
    k("s_getreg_b32 s58, hwreg(HW_REG_XCC_ID, 0, 4)")
    k("s_add_u32 s58, s58, 1")
    k("s_mov_b32 exec_hi, 0")
    k("v_cmp_ne_u32 vcc, s58, v10")
    k("s_cmp_eq_u64 vcc, 0")
    k(f"s_cselect_b32 s{SLOC}, 1, 0")
    k(f"v_mov_b32 v5, s{SLOC}")
    k("ds_write_b32 v4, v5 offset:16")
    k("s_mov_b64 exec, -1")
    if OPT.get('t2', 1):
        again, skip, ok = k.label("t2a"), k.label("t2s"), k.label("t2o")
        k(f"""
        s_mov_b32 s40, {CNT + CW*256}
        s_mov_b32 exec_lo, 0xff
        s_mov_b32 exec_hi, 0
        v_lshlrev_b32 v9, 8, v2
        s_mov_b32 s41, 0
        """)
        k.place(again)
        k(f"s_sleep {OPT.get('slpw', 32)}")
        k("buffer_load_dword v10, v9, s[20:23], s40 offen sc1")
        k("ds_read_b32 v11, v4 offset:32")
        k("s_waitcnt vmcnt(0) lgkmcnt(0)")
        k("v_readfirstlane_b32 s41, v11")
        k("v_cmp_gt_u32 vcc, 32, v10")
        k(f"s_cmp_ge_u32 s41, {OPT.get('t2lim', 6)}")
        k(f"s_cbranch_scc1 {skip}")
        k("s_cmp_lg_u64 vcc, 0")
        k(f"s_cbranch_scc1 {again}")
        k("s_mov_b64 exec, -1")
        for base, tot in [(WOF, 4096), (WGF, 43*256), (WUF, 43*256), (WDF, 43*256)][OPT.get('t2a', 0):OPT.get('t2b', 3)]:
            per = tot // 32
            k(f"s_mul_i32 s42, s{SIDX}, {per*128}")
            k(f"s_add_u32 s42, s42, {base}")
            touch(k, 42, per)
        k.place(skip)
        k("s_mov_b64 exec, -1")

def res_cfg(mode):
    if mode == 'wo':
        return dict(NKS=32, JL=16, WIN=16, BSRC=OF, ASRC=WOF, RES=XF)
    return dict(NKS=86, JL=39, WIN=OPT.get('win5', 12), BSRC=ACT, ASRC=WDF, RES=HF)

def res_map(k):
    k(f"""
    s_lshl_b32 s27, s{SXCD}, 2
    s_and_b32 s28, s{SIDX}, 3
    s_add_u32 s27, s27, s28
    s_lshr_b32 s28, s{SIDX}, 2
    """)

def res_consumer(k, mode, sb):
    c_ = res_cfg(mode); NKS, JL, WIN, RES = c_['NKS'], c_['JL'], c_['WIN'], c_['RES']
    NH = NKS // 2
    SRB, SCB = 27, 28
    ld, st = OPT['ld'], OPT['st']
    R, ACC, AB, AT = 8, 16, 48, 80
    BW = 80 if mode == 'wo' else 112
    VO = 160
    res_map(k)
    k(f"""
    s_and_b32 s29, s{SW}, 1
    s_lshl_b32 s30, s{SRB}, 1
    s_add_u32 s30, s30, s29
    s_lshr_b32 s31, s{SW}, 1
    s_lshl_b32 s32, s{SCB}, 1
    s_add_u32 s32, s32, s31
    s_mul_i32 s33, s31, 3072
    v_add_u32 v6, s33, v3
    s_lshl_b32 s33, s31, 10
    s_add_u32 s33, s33, 1024
    v_add_u32 v7, s33, v3
    s_lshl_b32 s40, s30, 5
    s_lshl_b32 s41, s32, 1
    s_add_u32 s40, s40, s41
    s_lshl_b32 s40, s40, 10
    s_add_u32 s41, s40, {RES}
    buffer_load_dwordx4 v[{R}:{R+3}], v3, s[20:23], s41 offen {ld}
    buffer_load_dwordx4 v[{R+4}:{R+7}], v3, s[20:23], s41 offen offset:1024 {ld}
    s_mul_i32 s34, s31, {NH}
    s_mul_i32 s35, s30, {NKS}
    s_add_u32 s35, s35, s34
    s_lshl_b32 s35, s35, 10
    s_add_u32 s35, s35, {c_['BSRC']}
    """)
    if NH > JL:
        for q in range(2):
            k(f"s_xor_b32 s36, s32, {q}")
            k(f"s_mul_i32 s36, s36, {NKS}")
            k(f"s_add_u32 s36, s36, s34")
            k(f"s_lshl_b32 s36, s36, 10")
            k(f"s_add_u32 s36, s36, {c_['ASRC'] + JL*1024}")
            for j in range(NH - JL):
                r = AT + 8*j + 4*q
                k(f"buffer_load_dwordx4 v[{r}:{r+3}], v3, s[20:23], s36 offen" + (f" offset:{j*1024}" if j else "") + f" {ld}")
    RED = 65536 if mode == 'wo' else 0
    k(f"s_xor_b32 s36, s{SW}, 2")
    k(f"s_lshl_b32 s36, s36, 12")
    k(f"v_add_u32 v4, s36, v3")
    k(f"s_lshl_b32 s36, s{SW}, 12")
    k(f"v_add_u32 v5, s36, v3")
    if RED:
        k(f"v_add_u32 v4, {RED}, v4")
        k(f"v_add_u32 v5, {RED}, v5")
    if mode == 'down':
        srd(k, 52, 18, 2*MB)
        k(f"""
        v_and_b32 v{VO}, 31, v2
        v_lshlrev_b32 v{VO}, 10, v{VO}
        v_lshrrev_b32 v{VO+1}, 5, v2
        v_lshl_add_u32 v{VO}, v{VO+1}, 4, v{VO}
        s_lshl_b32 s47, s30, 15
        s_lshl_b32 s48, s32, 6
        s_add_u32 s47, s47, s48
        """)
    else:
        k(f"""
        s_lshl_b32 s47, s32, 14
        s_lshl_b32 s48, s30, 8
        s_add_u32 s47, s47, s48
        s_add_u32 s47, s47, {ST}
        v_lshlrev_b32 v{VO}, 3, v2
        s_add_u32 s41, s40, {HF}
        s_mov_b32 s46, {hex(ONES)}
        """)
    k("s_mov_b32 s45, 0xffff0000")
    k("s_barrier")
    stamp(k, sb)
    def bload(j):
        if j % 4 == 0: k(f"s_add_u32 s36, s35, {j*1024}")
        r = BW + 4*(j % WIN)
        k(f"buffer_load_dwordx4 v[{r}:{r+3}], v3, s[20:23], s36 offen" + (f" offset:{(j % 4)*1024}" if j % 4 else "") + f" {ld}")
    def ard(j, q):
        if j < JL:
            if q == 0 and j and j % 16 == 0:
                k("v_add_u32 v6, 0x10000, v6")
                k("v_add_u32 v7, 0x10000, v7")
            r = AB + 8*(j & 3) + 4*q
            k(f"ds_read_b128 v[{r}:{r+3}], v{6+q} offset:{(j % 16)*4096}")
    nb = min(WIN, NH)
    for j in range(nb): bload(j)
    for j in range(3):
        ard(j, 0); ard(j, 1)
    for j in range(NH):
        lg = 2*(min(JL, j + 3) - (j + 1)) if j < JL else None
        k(f"s_waitcnt vmcnt({nb - 1 - j})" + (f" lgkmcnt({lg})" if lg is not None else ""))
        A = AB + 8*(j & 3) if j < JL else AT + 8*(j - JL)
        B = BW + 4*(j % WIN)
        for q in range(2):
            C = "0" if j == 0 else f"v[{ACC+16*q}:{ACC+16*q+15}]"
            k(f"{MFMA} v[{ACC+16*q}:{ACC+16*q+15}], v[{A+4*q}:{A+4*q+3}], v[{B}:{B+3}], {C}")
            ard(j + 3, q)
        if nb < NH:
            bload(nb); nb += 1
    stamp(k, sb + 1)
    U = 48
    for d in range(8):
        k(f"v_lshlrev_b32 v{U+2*d}, 16, v{R+d}")
        k(f"v_and_b32 v{U+2*d+1}, s45, v{R+d}")
    if not RED: k("s_barrier")
    for g in range(4):
        k(f"ds_write_b128 v4, v[{ACC+16+4*g}:{ACC+19+4*g}] offset:{g*1024}")
    for r in range(0, 16, 2):
        k(f"v_pk_add_f32 v[{ACC+r}:{ACC+r+1}], v[{ACC+r}:{ACC+r+1}], v[{U+r}:{U+r+1}]")
    k("s_waitcnt lgkmcnt(0)")
    k("s_barrier")
    for g in range(4):
        k(f"ds_read_b128 v[{U+4*g}:{U+4*g+3}], v5 offset:{g*1024}")
    P = 8
    for g in range(4):
        k(f"s_waitcnt lgkmcnt({3-g})")
        for r in (4*g, 4*g+2):
            k(f"v_pk_add_f32 v[{ACC+r}:{ACC+r+1}], v[{ACC+r}:{ACC+r+1}], v[{U+r}:{U+r+1}]")
        for d in (2*g, 2*g+1):
            k(f"v_cvt_pk_bf16_f32 v{P+d}, v{ACC+2*d}, v{ACC+2*d+1}")
    if mode == 'wo':
        pub_store(k, [f"buffer_store_dwordx4 v[{P}:{P+3}], v3, s[20:23], s41 offen",
                      f"buffer_store_dwordx4 v[{P+4}:{P+7}], v3, s[20:23], s41 offen offset:1024"])
        SX, SQ = 64, 65
        k(f"v_dot2_f32_bf16 v{SX}, v{P}, s46, 0")
        k(f"v_dot2_f32_bf16 v{SQ}, v{P}, v{P}, 0")
        for d in range(1, 8):
            k(f"v_dot2_f32_bf16 v{SX}, v{P+d}, s46, v{SX}")
            k(f"v_dot2_f32_bf16 v{SQ}, v{P+d}, v{P+d}, v{SQ}")
        k.nop(3)
        half_sum(k, SX, 66, 67)
        half_sum(k, SQ, 66, 67)
        k("s_mov_b32 exec_hi, 0")
        pub_store(k, [f"buffer_store_dwordx2 v[{SX}:{SQ}], v{VO}, s[20:23], s47 offen"])
        k("s_mov_b64 exec, -1")
        k("s_waitcnt vmcnt(0)")
        k("s_barrier")
    else:
        k.nop(2)
        k(f"""
        v_permlane32_swap_b32 v{P}, v{P+2}
        v_permlane32_swap_b32 v{P+1}, v{P+3}
        v_permlane32_swap_b32 v{P+4}, v{P+6}
        v_permlane32_swap_b32 v{P+5}, v{P+7}
        """)
        k.nop(1)
        k(f"buffer_store_dwordx4 v[{P}:{P+3}], v{VO}, s[52:55], s47 offen {OPT.get('sto', '')}")
        k(f"buffer_store_dwordx4 v[{P+4}:{P+7}], v{VO}, s[52:55], s47 offen offset:32 {OPT.get('sto', '')}")

def res_wsetup(k, mode):
    c_ = res_cfg(mode); NKS = c_['NKS']
    k(f"""
    s_sub_u32 s45, s{SW}, 4
    s_lshr_b32 s44, s{SIDX}, 2
    s_lshl_b32 s44, s44, 1
    s_and_b32 s46, s45, 1
    s_add_u32 s44, s44, s46
    s_mul_i32 s44, s44, {NKS}
    s_lshr_b32 s46, s45, 1
    s_mul_i32 s46, s46, {NKS//2}
    s_add_u32 s44, s44, s46
    s_lshl_b32 s44, s44, 10
    s_add_u32 s44, s44, {c_['ASRC']}
    s_lshl_b32 s45, s45, 10
    """)

def res_wload(k, j0, j1):
    for j in range(j0, j1):
        k(f"s_add_u32 s46, s44, {j*1024}")
        dma(k, 3, 20, 46, f"s45, {j*4096}", 0, OPT['ld'])

SLOT4, RING4, NCH4 = 20480, 8, 16
def p4_map(k):
    k(f"""
    s_lshl_b32 s27, s{SXCD}, 1
    s_cmp_ge_u32 s{SIDX}, 15
    s_cselect_b32 s28, 1, 0
    s_add_u32 s27, s27, s28
    s_mul_i32 s28, s28, 15
    s_sub_u32 s28, s{SIDX}, s28
    s_min_u32 s28, s28, 15
    """)

def p4_consumer(k):
    ld, st = OPT['ld'], OPT['st']
    skip, fin = k.label("p4skip"), k.label("p4fin")
    XB = [8, 12, 16, 20]; WB = [24, 48]; ACC = 72; T = [0, 1, 2, 4]; RS, NB = 5, 3; STR = 24
    p4_map(k)
    k("s_cmp_eq_u32 s28, 15")
    k(f"s_cbranch_scc1 {skip}")
    k(f"""
    s_lshl_b32 s30, s27, 2
    s_add_u32 s30, s30, s{SW}
    s_lshl_b32 s33, s{SW}, 11
    s_add_u32 s33, s33, 12288
    v_mov_b32 v6, v3
    v_add_u32 v7, s33, v3
    s_mul_i32 s40, s30, 86
    s_mul_i32 s41, s28, 6
    s_add_u32 s40, s40, s41
    s_lshl_b32 s40, s40, 10
    s_add_u32 s40, s40, {ACT}
    s_mov_b32 s47, 0
    s_lshl_b32 s32, s30, 8
    s_add_u32 s32, s32, {ST}
    v_and_b32 v4, 31, v2
    v_lshlrev_b32 v4, 3, v4
    v_lshrrev_b32 v8, 5, v2
    v_lshl_add_u32 v4, v8, 14, v4
    s_mov_b32 s38, 0xffff0000
    """)
    for r in range(96): k(f"v_mov_b32 v{ACC+r}, 0")
    k("s_barrier")
    stamp(k, 9)
    for i in range(8):
        k(f"s_add_u32 s35, s32, {i*32768}")
        k(f"buffer_load_dwordx2 v[{STR+2*i}:{STR+2*i+1}], v4, s[20:23], s35 offen {ld}")
    k("s_waitcnt vmcnt(0)")
    for i in range(1, 8):
        k(f"v_add_f32 v{STR}, v{STR}, v{STR+2*i}")
        k(f"v_add_f32 v{STR+1}, v{STR+1}, v{STR+2*i+1}")
    half_sum(k, STR, 0, 1)
    half_sum(k, STR+1, 0, 1)
    finish_stats(k, STR, STR+1, RS, NB, 0, 1)
    def wrd(u, b, mt):
        return f"ds_read_b128 v[{b+4*mt}:{b+4*mt+3}], v6 offset:{mt*2048 + (u & 1)*1024}"
    def xrd(u, b):
        return f"ds_read_b128 v[{b}:{b+3}], v7 offset:{(u & 1)*1024}"
    k("s_barrier")
    stamp(k, 10)
    k(xrd(0, XB[0])); k(xrd(1, XB[1]))
    for mt in range(6): k(wrd(0, WB[0], mt))
    k(f"s_mov_b32 s48, 0")
    k("s_waitcnt lgkmcnt(7)")
    for o in norm4(XB[0], T, RS, NB, 38): k(o)
    ml = k.label("p4ml")
    k(".p2align 3")
    k.place(ml)
    for u in range(4):
        if not (u & 1):
            k(f"s_add_u32 s48, s48, 1")
            k(f"s_and_b32 s48, s48, {RING4-1}")
            k(f"s_cselect_b32 s49, s50, s51")
            k("s_barrier")
            k("v_add_u32 v7, s49, v7")
        else:
            k("v_add_u32 v6, s49, v6")
            if u == 3:
                k("s_add_u32 s47, s47, 1")
                k(f"s_cmp_lt_u32 s47, {NCH4//2}")
        b, x = WB[u & 1], XB[u]
        nb_ = WB[(u+1) & 1]
        ops = norm4(XB[(u+1) & 3], T, RS, NB, 38)
        cuts = [0, 3, 7, 10, 14, 17, 20]
        for mt in range(6):
            if mt == 0: k("s_waitcnt lgkmcnt(3)")
            if mt == 3: k("s_waitcnt lgkmcnt(4)")
            k(f"{MFMA} v[{ACC+16*mt}:{ACC+16*mt+15}], v[{b+4*mt}:{b+4*mt+3}], v[{x}:{x+3}], v[{ACC+16*mt}:{ACC+16*mt+15}]")
            if mt == 0: k(xrd(u, XB[(u+2) & 3]))
            k(wrd(u+1, nb_, mt))
            for o in ops[cuts[mt]:cuts[mt+1]]: k(o)
    k(f"s_cbranch_scc1 {ml}")
    stamp(k, 11)
    lane_regs(k)
    P = 24
    for tile in range(3):
        G, U = ACC + 16*tile, ACC + 48 + 16*tile
        if tile == 1:
            k(f"s_cmp_eq_u32 s28, 14")
            k(f"s_cbranch_scc1 {fin}")
        for r in range(16): k(f"v_max_f32 v{G+r}, 0, v{G+r}")
        for r in range(0, 16, 2):
            k(f"v_pk_mul_f32 v[{G+r}:{G+r+1}], v[{G+r}:{G+r+1}], v[{U+r}:{U+r+1}]")
        if tile == 0: k("s_waitcnt lgkmcnt(0)")
        for d in range(8):
            k(f"v_cvt_pk_bf16_f32 v{P+8*tile+d}, v{G+2*d}, v{G+2*d+1}")
        k(f"s_add_u32 s41, s40, {tile*2048}")
        pub_store(k, [f"buffer_store_dwordx4 v[{P+8*tile}:{P+8*tile+3}], v3, s[20:23], s41 offen",
                      f"buffer_store_dwordx4 v[{P+8*tile+4}:{P+8*tile+7}], v3, s[20:23], s41 offen offset:1024"])
    k.place(fin)
    k("s_waitcnt vmcnt(0)")
    k.place(skip)
    k("s_barrier")

def p4_loader(k):
    ld = OPT['ld']
    D = OPT['depth4']
    skip, join = k.label("p4lskip"), k.label("p4ljoin")
    res_wsetup(k, 'down')
    p4_map(k)
    k("s_cmp_eq_u32 s28, 15")
    k(f"s_cbranch_scc1 {skip}")
    k(f"""
    s_sub_u32 s29, s{SW}, 4
    s_lshl_b32 s30, s27, 2
    s_add_u32 s30, s30, s29
    s_lshl_b32 s31, s30, 15
    s_add_u32 s31, s31, {HF}
    s_mul_i32 s33, s28, {3*32768}
    s_and_b32 s34, s29, 1
    s_lshl_b32 s34, s34, 10
    s_add_u32 s33, s33, s34
    s_lshr_b32 s35, s29, 1
    s_mul_i32 s37, s35, {WUF - WGF}
    s_add_u32 s33, s33, s37
    s_mul_i32 s35, s35, 6144
    s_add_u32 s34, s34, s35
    s_lshl_b32 s36, s29, 11
    """)
    order = []
    def hpart(c):
        k(f"s_add_u32 s35, s31, {c*2048}")
        dma(k, 3, 20, 35, f"s36, {(c % RING4)*SLOT4 + 12288}", 0, ld)
        k(f"buffer_load_dwordx4 v3, s[20:23], s35 offen offset:1024 {ld} lds")
        order.extend([('h', c)]*2)
    def wpart(c):
        for t in range(3):
            k(f"s_add_u32 s35, s33, {WGF + t*32768 + c*2048}")
            dma(k, 3, 20, 35, f"s34, {(c % RING4)*SLOT4 + t*2048}", 0, ld)
        order.extend([('w', c)]*3)
    for c in range(RING4): wpart(c)
    k("s_barrier")
    nh = 4
    for c in range(nh): hpart(c)
    nw = RING4
    for c in range(NCH4 + 1):
        if c < NCH4:
            last = max(i for i, o in enumerate(order) if o[1] == c)
            k(f"s_waitcnt vmcnt({len(order) - 1 - last})")
        k("s_barrier")
        m = 0
        while nh < NCH4 and nh <= c + D and m < 2:
            assert nh - RING4 <= c - 2
            hpart(nh); nh += 1; m += 1
        if nw < NCH4 and nw - RING4 <= c - 2:
            wpart(nw); nw += 1
        if c >= 10:
            assert nh == NCH4 and nw == NCH4
            res_wload(k, 5*(c-10), 5*(c-10) + 5); order.extend([('d', -1)]*5)
    k("s_barrier")
    k(f"s_branch {join}")
    k.place(skip)
    k("s_barrier")
    res_wload(k, 0, 35)
    k.place(join)
    res_wload(k, 35, 39)
    k("s_waitcnt vmcnt(0)")
    k("s_barrier")

def poller(k):
    sl = OPT.get('slpl', 2)
    stamp(k, 5)
    k("s_barrier")
    stamp(k, 6)
    k(f"s_lshl_b32 s43, s{SXCD}, 5")
    k(f"s_add_u32 s43, s43, {F2}")
    k(f"s_add_u32 s42, s43, s{SIDX}")
    flag_set(k, 42, local=True)
    k(f"s_mov_b32 s42, {CW}")
    poll(k, 42, 32, 8, 0)
    k("s_barrier")
    flag_poll(k, 43, 32, sl)
    stamp(k, 7)
    k("s_barrier")
    k("s_barrier")
    k("s_barrier")
    stamp(k, 8)
    res_map(k)
    k("s_lshr_b32 s43, s27, 1")
    k("s_and_b32 s44, s27, 1")
    k("s_lshl_b32 s45, s28, 1")
    k("s_add_u32 s44, s44, s45")
    k("s_lshl_b32 s42, s43, 4")
    k("s_add_u32 s42, s42, s44")
    k(f"s_add_u32 s42, s42, {F3}")
    flag_set(k, 42, local=True)
    idle = k.label("pidle")
    p4_map(k)
    k("s_cmp_eq_u32 s28, 15")
    k(f"s_cbranch_scc1 {idle}")
    k("s_lshl_b32 s46, s27, 4")
    k(f"s_add_u32 s42, s46, {F3}")
    flag_poll(k, 42, 16, sl)
    stamp(k, 9)
    k("s_barrier")
    for i in range(NCH4 + 1):
        k("s_barrier")
        if i == OPT.get('t3at', 8) and OPT.get('t3', 0):
            k(f"s_mul_i32 s42, s{SIDX}, {368*128}")
            k(f"s_add_u32 s42, s42, {WDF}")
            touch(k, 42, 368)
    k("s_barrier")
    stamp(k, 10)
    k("s_add_u32 s42, s46, s28")
    k(f"s_add_u32 s42, s42, {F4}")
    flag_set(k, 42, local=True)
    j = k.label("pjoin")
    k(f"s_branch {j}")
    k.place(idle)
    k("s_barrier")
    k.place(j)
    k("s_lshl_b32 s42, s43, 4")
    k(f"s_add_u32 s42, s42, {F4}")
    flag_poll(k, 42, 15, sl)
    stamp(k, 11)
    k("s_barrier")
    diag_end(k)

def diag_end(k):
    if not DIAG: return
    k("s_waitcnt vmcnt(0)")
    stamp(k, 14)
    k("s_memrealtime s[94:95]")
    k(f"s_lshl_b32 s40, s2, 4")
    k(f"s_add_u32 s40, s40, s{SW}")
    k(f"s_lshl_b32 s40, s40, 7")
    k(f"s_add_u32 s40, s40, {DIAGB}")
    k("s_waitcnt lgkmcnt(0)")
    for i in range(15):
        k(f"s_sub_u32 s{64+2*i}, s{64+2*i}, s96")
        k(f"v_mov_b32 v{8+i}, s{64+2*i}")
    k("v_mov_b32 v23, s94")
    k("v_mov_b32 v24, s98")
    k("v_mov_b32 v4, 0")
    k("s_mov_b64 exec, 1")
    for i in range(4):
        k(f"buffer_store_dwordx4 v[{8+4*i}:{11+4*i}], v4, s[20:23], s40 offen offset:{16*i}")
    k(f"buffer_store_dword v24, v4, s[20:23], s40 offen offset:64")
    if OPT.get('dbgout') is not None:
        l = k.label("dbo")
        k(f"s_lshl_b32 s41, s{SW}, 8")
        k(f"s_or_b32 s41, s41, s2")
        k(f"s_cmp_lg_u32 s41, {OPT['dbgout']}")
        k(f"s_cbranch_scc1 {l}")
        k("v_sub_u32 v8, v23, v24")
        for i in range(4):
            k(f"global_store_dwordx4 v4, v[{8+4*i}:{11+4*i}], s[60:61] offset:{4+16*i}")
        k.place(l)

def build(path):
    k = Kern(NAME)
    done, roleL, roleH, p2 = k.label("done"), k.label("L"), k.label("H"), k.label("p2")
    tail = []
    k(f"""
    s_cmp_ge_u32 s2, 256
    s_cbranch_scc1 {done}
    s_load_dwordx16 s[4:19], s[0:1], 0
    s_load_dwordx4 s[60:63], s[0:1], 64
    """)
    if DIAG:
        k("s_memtime s[96:97]")
        k("s_memrealtime s[98:99]")
    k(f"""
    v_lshrrev_b32 v1, 6, v0
    v_and_b32 v2, 63, v0
    s_and_b32 s{SXCD}, s2, 7
    s_lshr_b32 s{SIDX}, s2, 3
    v_readfirstlane_b32 s{SW}, v1
    v_lshlrev_b32 v3, 4, v2
    s_mov_b32 s50, {SLOT4}
    s_mov_b32 s51, {-(RING4-1)*SLOT4}
    """)
    p1_map(k)
    k("s_waitcnt lgkmcnt(0)")
    srd(k, 20, 62, WS_SIZE)
    k(f"s_cmp_ge_u32 s{SW}, 8")
    k(f"s_cbranch_scc1 {roleH}")
    k(f"s_cmp_ge_u32 s{SW}, 4")
    k(f"s_cbranch_scc1 {roleL}")
    p1_consumer(k)
    k.place(p2)
    p2_compute(k, tail)
    L3 = k.label("L3")
    k(f"s_cmp_ge_u32 s{SW}, 4")
    k(f"s_cbranch_scc1 {L3}")
    res_consumer(k, 'wo', 7)
    p4_consumer(k)
    res_consumer(k, 'down', 12)
    diag_end(k)
    k.place(done)
    k("s_endpgm")
    k.place(roleL)
    p1_loader(k)
    k(f"s_branch {p2}")
    k.place(L3)
    res_wsetup(k, 'wo')
    res_wload(k, 0, 16)
    k("s_waitcnt vmcnt(0)")
    k("s_barrier")
    k("s_barrier")
    k("s_barrier")
    p4_loader(k)
    diag_end(k)
    k("s_endpgm")
    k.place(roleH)
    p1_helper(k)
    p2_helper(k, done)
    poller(k)
    k("s_endpgm")
    for f in tail: f(k)
    hdr = """; Kernarg: 0 A_x, 8 A_wqkv, 16 A_wo, 24 B_x (unused), 32 W_gate, 40 W_up, 48 W_down, 56 out, 64 debug, 72 ws
; pre-LN transformer block in one persistent launch (256 workgroups, one per CU); generated by gen/gen4.py
; @launch grid=(256,1,1) block=(768,1,1) lds=163840
.amdgcn_target "amdgcn-amd-amdhsa--gfx950"
"""
    open(path, "w").write(hdr + k.text(168, 102 if DIAG else 64))

if __name__ == "__main__":
    for a in sys.argv[2:]:
        if "=" in a:
            kk, vv = a.split("=")
            OPT[kk] = int(vv) if vv.lstrip("-").isdigit() else vv.replace("+", " ")
    DIAG = "--diag" in sys.argv
    build(sys.argv[1])
```

```python
import sys, math
from dsl import Kern
from gen import (MB, QF, KF, VF, OF, XF, HF, ACT, WOF, WGF, WUF, WDF, ST, WS_SIZE, f32, ONES, MFMA, srd, half_sum,
                 finish_stats)
CNT = 25*MB
DIAGB = 28*MB
C1, C2, C3, C4, CW = 0, 8, 16, 32, 48
CSTRIP = 131072
PROG = CSTRIP + 10240
ROLE = 163832
NAME = "sequential_preLN__softmax_full_mha__glu_gated_reglu__prompt_kernel"
OPT = dict(slp=8, kvd=2, d1=4, prio=1, ld="sc1", st="sc1", nb2=4, depth4=5)
SXCD, SIDX, SW = 24, 25, 26
SHEAD, SQB = 62, 63
MF16 = "v_mfma_f32_16x16x32_bf16"
DIAG = False

def stamp(k, i):
    if DIAG: k(f"s_memtime s[{64+2*i}:{65+2*i}]")

def norm4(x, t, rs, nb, smask):
    ops = []
    for d in range(4):
        a, b = t[2*(d & 1)], t[2*(d & 1) + 1]
        ops.append([f"v_lshlrev_b32 v{a}, 16, v{x+d}", f"v_and_b32 v{b}, s{smask}, v{x+d}",
                    f"v_fma_f32 v{a}, v{a}, v{rs}, v{nb}", f"v_fma_f32 v{b}, v{b}, v{rs}, v{nb}",
                    f"v_cvt_pk_bf16_f32 v{x+d}, v{a}, v{b}"])
    o = []
    for p in (0, 2):
        for a, b in zip(ops[p], ops[p+1]): o += [a, b]
    return o

def lane_regs(k):
    k("v_mbcnt_lo_u32_b32 v2, -1, 0")
    k("v_mbcnt_hi_u32_b32 v2, -1, v2")
    k("v_lshlrev_b32 v3, 4, v2")

def dma(k, vo, srd_, so, m0expr, off=0, flag=""):
    k(f"s_add_u32 m0, {m0expr}")
    k.nop(1)
    k(f"buffer_load_dwordx4 v{vo}, s[{srd_}:{srd_+3}], s{so} offen" + (f" offset:{off}" if off else "") + f" {flag} lds")

def row8_sum(k, regs):
    for ctl in ("quad_perm:[1,0,3,2]", "quad_perm:[2,3,0,1]", "row_half_mirror"):
        k.nop(2)
        for r in regs:
            k(f"v_add_f32_dpp v{r}, v{r}, v{r} {ctl} row_mask:0xf bank_mask:0xf")

def arrive(k, sidx, va=8, vb=9):
    k(f"s_lshl_b32 s40, s{sidx}, 8")
    k(f"s_add_u32 s40, s40, {CNT}")
    k("s_mov_b64 exec, 1")
    k(f"v_mov_b32 v{va}, 1")
    k(f"v_mov_b32 v{vb}, 0")
    k(f"buffer_atomic_add v{va}, v{vb}, s[20:23], s40 offen sc1")

FLG = CNT + 65536
F1, F2, FX, F3, F4 = 0, 256, 512, 768, 1024
SLOC = 59
def pub_store(k, lines, stage=3):
    if not (OPT.get('loc', 8) >> stage) & 1:
        for l in lines: k(l + " " + OPT['st'])
        return
    a, b = k.label("ps"), k.label("pe")
    k(f"s_cmp_eq_u32 s{SLOC}, 1")
    k(f"s_cbranch_scc1 {a}")
    for l in lines: k(l + " " + OPT['st'])
    k(f"s_branch {b}")
    k.place(a)
    for l in lines: k(l)
    k.place(b)

def flag_set(k, sline, val="1", local=False):
    k(f"s_lshl_b32 s40, s{sline}, 7")
    k(f"s_add_u32 s40, s40, {FLG}")
    k("s_mov_b64 exec, 1")
    k(f"v_mov_b32 v8, {val}")
    k("v_mov_b32 v9, 0")
    if local: pub_store(k, ["buffer_store_dword v8, v9, s[20:23], s40 offen"])
    else: k("buffer_store_dword v8, v9, s[20:23], s40 offen sc1")

def flag_poll(k, sline, n=32, slp=None):
    poll(k, sline, 1, n, slp, sh=7, base=FLG)

def poll(k, sidx, target, nlines=1, slp=None, sh=8, base=None):
    lp, out = k.label("poll"), k.label("pollx")
    k(f"s_lshl_b32 s40, s{sidx}, {sh}")
    k(f"s_add_u32 s40, s40, {CNT if base is None else base}")
    k(f"s_mov_b32 exec_lo, {hex((1 << nlines) - 1)}")
    k("s_mov_b32 exec_hi, 0")
    k(f"v_lshlrev_b32 v9, {sh}, v2")
    k("s_mov_b32 s41, 0")
    k.place(lp)
    slp = OPT.get('slp', 2) if slp is None else slp
    if slp: k(f"s_sleep {slp}")
    k("buffer_load_dword v10, v9, s[20:23], s40 offen sc1")
    k("s_add_u32 s41, s41, 1")
    k("s_cmp_gt_u32 s41, 0x40000")
    k(f"s_cbranch_scc1 {out}")
    k("s_waitcnt vmcnt(0)")
    k(f"v_cmp_gt_u32 vcc, {target}, v10" if target <= 64 else f"v_cmp_gt_u32 vcc, {hex(target)}, v10")
    k(f"s_cmp_lg_u64 vcc, 0")
    k(f"s_cbranch_scc1 {lp}")
    k.place(out)
    k("s_waitcnt vmcnt(0)")
    k("s_mov_b64 exec, -1")

def touch(k, base_s, nlines, reg=40):
    k("v_lshlrev_b32 v12, 7, v2")
    for i in range((nlines + 63)//64):
        rem = nlines - 64*i
        if rem < 64:
            k(f"s_mov_b32 exec_lo, {hex((1 << min(rem, 32)) - 1)}")
            k(f"s_mov_b32 exec_hi, {hex((1 << max(rem - 32, 0)) - 1)}")
        k(f"s_add_u32 s41, s{base_s}, {i*8192}")
        k(f"buffer_load_dword v{reg+i}, v12, s[20:23], s41 offen sc1")
    k("s_mov_b64 exec, -1")

def early_role(k):
    nt, tk, tkd = k.label("nt"), k.label("etk"), k.label("etkd")
    k(f"s_cmp_lg_u32 s{SW}, 8")
    k(f"s_cbranch_scc1 {nt}")
    k("s_getreg_b32 s56, hwreg(HW_REG_XCC_ID, 0, 4)")
    k("s_and_b32 s56, s56, 7")
    k("s_mov_b64 exec, 1")
    k("v_mov_b32 v46, 1")
    k.place(tk)
    k("s_lshl_b32 s57, s56, 5")
    k("s_add_u32 s57, s57, 16")
    k("v_mov_b32 v45, s57")
    k("global_atomic_add v44, v45, v46, s[60:61] sc0 sc1")
    k("s_waitcnt vmcnt(0)")
    k("v_readfirstlane_b32 s57, v44")
    k("s_add_u32 s58, s56, 1")
    k("s_cmp_lt_u32 s57, 32")
    k(f"s_cbranch_scc1 {tkd}")
    k("s_and_b32 s56, s58, 7")
    k(f"s_branch {tk}")
    k.place(tkd)
    k("s_lshl_b32 s57, s57, 3")
    k("s_or_b32 s57, s57, s56")
    k(f"v_mov_b32 v4, {ROLE}")
    k("v_mov_b32 v5, s57")
    k("ds_write_b32 v4, v5")
    k("s_mov_b64 exec, -1")
    k("s_waitcnt lgkmcnt(0)")
    k.place(nt)
    k("s_barrier")
    role_read(k, True)

def role_read(k, force=False):
    if OPT.get('dyn', 1) != 1 and not force: return
    k(f"v_mov_b32 v4, {ROLE}")
    k("ds_read_b32 v4, v4")
    k("s_waitcnt lgkmcnt(0)")
    k(f"v_readfirstlane_b32 s{SIDX}, v4")
    k.nop(1)
    k(f"s_and_b32 s{SXCD}, s{SIDX}, 7")
    k(f"s_lshr_b32 s{SIDX}, s{SIDX}, 3")
    if OPT.get('amap', 1):
        k(f"s_lshl_b32 s{SHEAD}, s{SXCD}, 2")
        k(f"s_and_b32 s{SQB}, s{SIDX}, 3")
        k(f"s_add_u32 s{SHEAD}, s{SHEAD}, s{SQB}")
        k(f"s_lshr_b32 s{SQB}, s{SIDX}, 2")
    else:
        k(f"s_mov_b32 s{SHEAD}, s{SIDX}")
        k(f"s_mov_b32 s{SQB}, s{SXCD}")

def p1_map(k):
    k(f"""
    s_lshr_b32 s27, s{SXCD}, 1
    s_lshl_b32 s27, s27, 3
    s_and_b32 s28, s{SIDX}, 7
    s_add_u32 s27, s27, s28
    s_and_b32 s28, s{SXCD}, 1
    s_lshl_b32 s28, s28, 2
    s_lshr_b32 s29, s{SIDX}, 3
    s_add_u32 s28, s28, s29
    """)
EXC = 65536 + 3*12288
EXS = 65536 + 2*12288

def p1_consumer(k):
    SRB, SCB = 27, 28
    VXA, VWA = 12, 16
    WB = [20, 32, 44, 56]; XB = [68, 72, 76, 80]; ACC = 84; CS = 132; SEL = 144
    k(f"""
    v_and_b32 v8, 31, v2
    v_lshrrev_b32 v4, 5, v2
    v_lshrrev_b32 v5, 1, v8
    v_and_b32 v5, 7, v5
    s_and_b32 s34, s{SW}, 1
    s_lshl_b32 s35, s34, 12
    v_lshlrev_b32 v6, 7, v8
    v_add_u32 v6, s35, v6
    """)
    for u in range(4):
        k(f"v_add_u32 v7, {2*u}, v4")
        k(f"v_xor_b32 v7, v7, v5")
        k(f"v_lshl_add_u32 v{VXA+u}, v7, 4, v6")
    k(f"""
    s_lshr_b32 s36, s{SW}, 1
    v_bfe_u32 v5, v2, 2, 2
    v_lshl_add_u32 v6, v4, 3, v5
    v_lshlrev_b32 v6, 7, v6
    v_bfe_u32 v7, v2, 4, 1
    v_lshlrev_b32 v7, 1, v7
    v_bfe_u32 v11, v2, 1, 1
    v_add_u32 v7, v7, v11
    s_lshl_b32 s37, s36, 2
    v_add_u32 v7, s37, v7
    v_lshrrev_b32 v5, 1, v5
    v_lshlrev_b32 v5, 2, v5
    v_xor_b32 v7, v7, v5
    v_lshl_add_u32 v6, v7, 4, v6
    v_and_b32 v7, 1, v2
    v_lshl_add_u32 v{VWA+1}, v7, 3, v6
    v_add_u32 v{VWA+1}, 0x10000, v{VWA+1}
    v_mov_b32 v{VWA}, v{VWA+1}
    v_and_b32 v5, 15, v2
    v_bfe_u32 v7, v2, 4, 1
    v_cmp_eq_u32 vcc, v5, v7
    v_mov_b32 v6, {hex(ONES)}
    s_mov_b32 s47, 0
    v_cndmask_b32 v{SEL}, 0, v6, vcc
    """)
    for i in range(1, 4): k(f"v_mov_b32 v{SEL+i}, v{SEL}")
    for i in range(60): k(f"v_mov_b32 v{ACC+i}, 0")
    k(f"""
    s_lshl_b32 s40, s{SCB}, 2
    s_lshl_b32 s41, s36, 1
    s_add_u32 s40, s40, s41
    s_lshl_b32 s40, s40, 16
    s_lshl_b32 s41, s{SRB}, 1
    s_add_u32 s41, s41, s34
    s_lshl_b32 s41, s41, 10
    s_add_u32 s40, s40, s41
    v_bfe_u32 v9, v2, 4, 1
    v_lshlrev_b32 v9, 16, v9
    v_lshl_add_u32 v9, v4, 8, v9
    v_lshl_add_u32 v9, v5, 4, v9
    s_add_u32 s43, s40, {QF + 65536}
    s_add_u32 s44, s40, {KF}
    s_add_u32 s45, s40, {KF + 65536}
    s_add_u32 s46, s40, {VF}
    s_mov_b32 s48, 0
    """)
    def xrd(u, b): k(f"ds_read_b128 v[{b}:{b+3}], v{VXA+u}")
    def wrd(u, b, p):
        for r in range(2):
            k(f"ds_read_b64_tr_b16 v[{b+4*p+2*r}:{b+4*p+2*r+1}], v{VWA} offset:{(u >> 1)*12288 + p*4096 + (u & 1)*2048 + r*512}")
    stamp(k, 0)
    k("s_barrier")
    stamp(k, 1)
    for u in range(2):
        xrd(u, XB[u])
        for p in range(3): wrd(u, WB[u], p)
    odd, ep = k.label("p1odd"), k.label("p1ep")
    k("s_cmp_eq_u32 s34, 1")
    k(f"s_cbranch_scc1 {odd}")
    for par in range(2):
        if par == 1: k.place(odd)
        ml = k.label("p1ml")
        k(".p2align 3")
        k.place(ml)
        for u in range(4):
            if u == 2:
                k("s_add_u32 s48, s48, 24576")
                k(f"s_cmp_eq_u32 s48, {8*12288}")
                k("s_cselect_b32 s48, 0, s48")
                k(f"v_add_u32 v{VXA}, 8192, v{VXA}")
                k(f"v_add_u32 v{VXA+1}, 8192, v{VXA+1}")
                k("s_barrier")
                k(f"v_add_u32 v{VWA}, s48, v{VWA+1}")
            b, x = WB[u], XB[u]
            nu = (u+2) & 3
            cs = (u & 1) == par and not OPT.get('z_nocs')
            k("s_waitcnt lgkmcnt(7)")
            k(f"{MFMA} v[{ACC}:{ACC+15}], v[{b}:{b+3}], v[{x}:{x+3}], v[{ACC}:{ACC+15}]")
            xrd(nu, XB[nu])
            wrd(nu, WB[nu], 0)
            if cs: k(f"{MF16} v[{CS}:{CS+3}], v[{SEL}:{SEL+3}], v[{b}:{b+3}], v[{CS}:{CS+3}]")
            k(f"{MFMA} v[{ACC+16}:{ACC+31}], v[{b+4}:{b+7}], v[{x}:{x+3}], v[{ACC+16}:{ACC+31}]")
            wrd(nu, WB[nu], 1)
            if cs: k(f"{MF16} v[{CS+4}:{CS+7}], v[{SEL}:{SEL+3}], v[{b+4}:{b+7}], v[{CS+4}:{CS+7}]")
            k(f"{MFMA} v[{ACC+32}:{ACC+47}], v[{x}:{x+3}], v[{b+8}:{b+11}], v[{ACC+32}:{ACC+47}]")
            wrd(nu, WB[nu], 2)
            if cs: k(f"{MF16} v[{CS+8}:{CS+11}], v[{SEL}:{SEL+3}], v[{b+8}:{b+11}], v[{CS+8}:{CS+11}]")
            if u == 3:
                for q in range(2, 4): k(f"v_add_u32 v{VXA+q}, 8192, v{VXA+q}")
                k("s_add_u32 s47, s47, 1")
                k("s_cmp_lt_u32 s47, 8")
        k(f"s_cbranch_scc1 {ml}")
        if par == 0: k(f"s_branch {ep}")
    k.place(ep)
    stamp(k, 2)
    k(f"""
    s_lshl_b32 s35, s34, 1
    s_add_u32 s35, s35, s36
    s_mul_i32 s35, s35, 384
    s_add_u32 s35, s35, {EXC}
    v_lshl_add_u32 v5, v2, 2, s35
    s_mul_i32 s37, s36, 384
    s_add_u32 s37, s37, {EXC}
    v_lshl_add_u32 v6, v4, 4, s37
    v_lshl_add_u32 v7, v8, 2, s37
    s_lshl_b32 s38, s34, 7
    s_add_u32 s38, s38, {EXS}
    v_lshl_add_u32 v10, v8, 2, s38
    v_lshl_add_u32 v11, v4, 4, s38
    s_mov_b64 exec, 0xffff
    """)
    for p in range(3):
        k(f"ds_write2_b32 v5, v{CS+4*p}, v{CS+4*p+1} offset0:{32*p} offset1:{32*p+16}")
    k("s_mov_b64 exec, -1")
    k("s_waitcnt lgkmcnt(0)")
    k("s_barrier")
    A, B, RSV, NBV = 20, 36, 52, 68
    RS, NB, CV = 132, 134, 136
    k(f"ds_read_b32 v{RS}, v10")
    k(f"ds_read_b32 v{NB}, v10 offset:256")
    def csrd(p):
        for g in range(4):
            k(f"ds_read_b128 v[{A+4*g}:{A+4*g+3}], v6 offset:{p*128 + g*32}")
            k(f"ds_read_b128 v[{B+4*g}:{B+4*g+3}], v6 offset:{768 + p*128 + g*32}")
    csrd(0)
    k(f"ds_read_b32 v{CV}, v7 offset:256")
    k(f"ds_read_b32 v{CV+1}, v7 offset:{768 + 256}")
    k(f"s_mov_b32 s42, {hex(f32(0.25*math.log2(math.e)))}")
    k("s_waitcnt lgkmcnt(10)")
    k(f"v_mul_f32 v138, s42, v{RS}")
    k(f"v_mul_f32 v140, s42, v{NB}")
    st = OPT['st']
    P = 144
    def fold(acc, rs, nb):
        for r in range(0, 16, 2):
            k(f"v_pk_add_f32 v[{A+r}:{A+r+1}], v[{A+r}:{A+r+1}], v[{B+r}:{B+r+1}]")
        for r in range(0, 16, 2):
            k(f"v_pk_mul_f32 v[{A+r}:{A+r+1}], v[{A+r}:{A+r+1}], v[{nb}:{nb+1}] op_sel_hi:[1,0]")
        for r in range(0, 16, 2):
            k(f"v_pk_fma_f32 v[{acc+r}:{acc+r+1}], v[{acc+r}:{acc+r+1}], v[{rs}:{rs+1}], v[{A+r}:{A+r+1}] op_sel_hi:[1,0,1]")
    def pack(acc, p, so0, so1, va, off1=0):
        for d in range(8):
            k(f"v_cvt_pk_bf16_f32 v{p+d}, v{acc+2*d}, v{acc+2*d+1}")
            if d == 3: k(f"buffer_store_dwordx4 v[{p}:{p+3}], v{va}, s[20:23], s{so0} offen {st}")
        k(f"buffer_store_dwordx4 v[{p+4}:{p+7}], v{va}, s[20:23], s{so1} offen" + (f" offset:{off1}" if off1 else "") + f" {st}")
    k("s_waitcnt lgkmcnt(2)")
    fold(ACC, 138, 140)
    csrd(1)
    for g in range(4):
        k(f"ds_read_b128 v[{RSV+4*g}:{RSV+4*g+3}], v11 offset:{g*32}")
    pack(ACC, P, 40, 43, 3)
    k("s_waitcnt lgkmcnt(4)")
    for g in range(4):
        k(f"ds_read_b128 v[{NBV+4*g}:{NBV+4*g+3}], v11 offset:{256 + g*32}")
    fold(ACC+16, RS, NB)
    pack(ACC+16, P+8, 44, 45, 3)
    k(f"v_add_f32 v{CV}, v{CV}, v{CV+1}")
    k("s_waitcnt lgkmcnt(0)")
    for r in range(0, 16, 2):
        k(f"v_pk_mul_f32 v[{NBV+r}:{NBV+r+1}], v[{NBV+r}:{NBV+r+1}], v[{CV}:{CV+1}] op_sel_hi:[1,0]")
    for r in range(0, 16, 2):
        k(f"v_pk_fma_f32 v[{ACC+32+r}:{ACC+33+r}], v[{ACC+32+r}:{ACC+33+r}], v[{RSV+r}:{RSV+r+1}], v[{NBV+r}:{NBV+r+1}]")
    pack(ACC+32, P+16, 46, 46, 9, 512)
    stamp(k, 3)
    k("s_waitcnt vmcnt(0)")
    k("s_barrier")
    role_read(k)
    k("s_barrier")

def relayout(k):
    st = OPT['st']
    PRE = [16, 44]
    k(f"""
    v_and_b32 v6, 31, v2
    v_lshrrev_b32 v7, 5, v2
    v_lshlrev_b32 v12, 10, v6
    v_lshl_add_u32 v12, v7, 3, v12
    v_mul_u32_u24 v13, {4*2752}, v7
    v_lshl_add_u32 v13, v6, 1, v13
    v_lshlrev_b32 v14, 12, v7
    v_lshl_add_u32 v14, v6, 1, v14
    s_lshl_b32 s42, s2, 3
    s_lshl_b32 s43, s29, 1
    s_add_u32 s42, s42, s43
    """)
    def wload(reg, voffreg, soffreg, pitch):
        for j in range(8):
            row = 8*(j >> 2) + (j & 3)
            k(f"s_add_u32 s49, s{soffreg}, {row*pitch}")
            k(f"buffer_load_ushort v{reg+j}, v{voffreg}, s[44:47], s49 offen")
    def item_loads(i):
        P_, D0 = PRE[i], (37, 52)[i]
        k(f"s_add_u32 s{D0+2}, s42, {i}")
        G = D0 + 2
        srd(k, 44, 4, 2*MB)
        k(f"""
        s_lshr_b32 s43, s{G}, 5
        s_lshl_b32 s43, s43, 15
        s_and_b32 s48, s{G}, 31
        s_lshl_b32 s48, s48, 5
        s_add_u32 s43, s43, s48
        buffer_load_dwordx2 v[{P_}:{P_+1}], v12, s[44:47], s43 offen
        buffer_load_dwordx2 v[{P_+2}:{P_+3}], v12, s[44:47], s43 offen offset:16
        s_mov_b32 s50, {(2**32 + 42)//43}
        s_mul_hi_u32 s51, s{G}, s50
        s_mul_i32 s58, s51, 43
        s_sub_u32 s58, s{G}, s58
        s_mul_i32 s59, s51, {16*2752}
        s_lshl_b32 s48, s58, 6
        s_add_u32 s59, s59, s48
        s_lshl_b32 s{D0}, s58, 5
        s_add_u32 s{D0}, s{D0}, s51
        s_lshl_b32 s{D0}, s{D0}, 10
        s_cmp_lt_u32 s{G}, 1376
        s_cselect_b32 s50, {512*2752}, 0
        s_mov_b32 s44, s12
        s_and_b32 s45, s13, 0xffff
        s_mov_b32 s46, s50
        """)
        wload(P_+4, 13, 59, 2752)
        k("s_mov_b32 s44, s14")
        k("s_and_b32 s45, s15, 0xffff")
        wload(P_+12, 13, 59, 2752)
        k(f"""
        s_sub_u32 s48, s{G}, 1376
        s_cmp_lt_u32 s{G}, 1376
        s_cselect_b32 s48, s{G}, s48
        s_cselect_b32 s44, s16, s8
        s_cselect_b32 s45, s17, s9
        s_cselect_b32 s46, {1376*1024}, 0
        s_cselect_b32 s50, 86, 32
        s_cselect_b32 s43, {WDF - WOF}, 0
        s_and_b32 s45, s45, 0xffff
        s_sub_u32 s51, s{G}, 1376
        s_cmp_lt_u32 s51, 512
        s_cselect_b32 s46, {512*1024}, s46
        s_and_b32 s58, s48, 15
        s_lshr_b32 s51, s48, 4
        s_lshl_b32 s59, s51, 14
        s_lshl_b32 s48, s58, 6
        s_add_u32 s59, s59, s48
        s_mul_i32 s{D0+1}, s58, s50
        s_add_u32 s{D0+1}, s{D0+1}, s51
        s_lshl_b32 s{D0+1}, s{D0+1}, 10
        s_add_u32 s{D0+1}, s{D0+1}, s43
        """)
        wload(P_+20, 14, 59, 1024)
    def pack_store(reg, dstreg, base):
        for d in range(4):
            k(f"v_lshl_or_b32 v{reg+d}, v{reg+2*d+1}, 16, v{reg+2*d}")
        k(f"s_add_u32 s49, s{dstreg}, {base}")
        k(f"buffer_store_dwordx4 v[{reg}:{reg+3}], v3, s[20:23], s49 offen {st}")
    def item_stores(i):
        P_, D0 = PRE[i], (37, 52)[i]
        G = D0 + 2
        l1, l2 = k.label("is1"), k.label("is2")
        k(f"s_lshl_b32 s43, s{G}, 10")
        k(f"s_add_u32 s43, s43, {XF}")
        k(f"buffer_store_dwordx4 v[{P_}:{P_+3}], v3, s[20:23], s43 offen {st}")
        k(f"s_cmp_lt_u32 s{G}, 1376")
        k(f"s_cbranch_scc0 {l1}")
        pack_store(P_+4, D0, WGF)
        pack_store(P_+12, D0, WUF)
        k.place(l1)
        k(f"s_cmp_lt_u32 s{G}, 1888")
        k(f"s_cbranch_scc0 {l2}")
        pack_store(P_+20, D0+1, WOF)
        k.place(l2)
    return item_loads, item_stores

def p1_loader(k):
    SRB, SCB = 27, 28
    VXE, VXO, VW = 8, 9, 10
    k(f"""
    s_sub_u32 s29, s{SW}, 4
    v_lshrrev_b32 v11, 3, v2
    v_and_b32 v4, 7, v2
    v_lshrrev_b32 v5, 4, v2
    v_xor_b32 v6, v4, v5
    v_lshlrev_b32 v6, 4, v6
    s_lshl_b32 s35, s29, 4
    v_add_u32 v7, s35, v11
    v_lshlrev_b32 v12, 10, v7
    v_add_u32 v{VXE}, v12, v6
    v_xor_b32 v6, 64, v6
    v_add_u32 v{VXO}, v12, v6
    v_add_u32 v{VXO}, 8192, v{VXO}
    s_lshl_b32 s35, s29, 3
    v_add_u32 v7, s35, v11
    v_and_b32 v5, 1, v5
    v_lshlrev_b32 v5, 2, v5
    v_xor_b32 v5, v4, v5
    v_lshlrev_b32 v5, 4, v5
    v_mul_u32_u24 v7, 3072, v7
    v_add_u32 v{VW}, v7, v5
    s_lshl_b32 s31, s29, 10
    s_lshl_b32 s36, s29, 11
    s_lshl_b32 s30, s{SRB}, 16
    s_lshl_b32 s32, s{SCB}, 7
    """)
    srd(k, 52, 4, 2*MB)
    srd(k, 56, 6, 512*3072)
    n = lambda c: 3 + (0 if c & 1 else 2)
    def issue(c):
        if OPT.get('z_nodma1') and c > 2: return
        if not c & 1:
            k(f"s_add_u32 s33, s30, {(c//2)*128}")
            for o in range(2):
                dma(k, VXE if o == 0 else VXO, 52, 33, f"s36, {(c//2)*8192 + o*1024}")
        for p in range(3):
            k(f"s_add_u32 s33, s32, {32*c*3072 + p*1024}")
            dma(k, VW, 56, 33, f"s31, {65536 + (c % 8)*12288 + p*4096}")
    issued = OPT.get('d1', 4)
    for c in range(issued): issue(c)
    for P in range(9):
        k(f"s_waitcnt vmcnt({sum(n(j) for j in range(2*P+2, issued))})")
        k("s_barrier")
        m = 0
        while issued < 16 and issued - 8 <= 2*P - 3 and m < 4:
            issue(issued); issued += 1; m += 1
    k("s_barrier")
    k("s_barrier")
    role_read(k)
    k("s_barrier")

def p1_helper(k):
    k(f"s_setprio {OPT.get('hprio', 3)}")
    X, SQ, SX, T, RS, NB = 16, 24, 28, 32, 36, 38
    init_done = k.label("initd")
    k(f"""
    s_cmp_lg_u32 s{SW}, 8
    s_cbranch_scc1 {init_done}
    s_lshl_b32 s30, s2, 7
    s_add_u32 s30, s30, {FLG}
    v_lshl_add_u32 v4, v2, 15, s30
    s_and_b32 s30, s2, 7
    s_lshl_b32 s30, s30, 8
    s_add_u32 s30, s30, {CNT + CW*256}
    v_mov_b32 v5, 0
    v_writelane_b32 v4, s30, 5
    s_mov_b64 exec, 63
    buffer_store_dword v5, v4, s[20:23], 0 offen sc1
    s_mov_b64 exec, -1
    """)
    k.place(init_done)
    if OPT.get('dyn', 1) == 1:
        tkx = k.label("tkx")
        def ticket():
            k("s_lshl_b32 s57, s56, 5")
            k("s_add_u32 s57, s57, 16")
            k("s_mov_b64 exec, 1")
            k("v_mov_b32 v45, s57")
            k("v_mov_b32 v46, 1")
            k("global_atomic_add v44, v45, v46, s[60:61] sc0 sc1")
            k("s_mov_b64 exec, -1")
        def first_ticket():
            k(f"s_cmp_lg_u32 s{SW}, 8")
            k(f"s_cbranch_scc1 {tkx}")
            k("s_getreg_b32 s56, hwreg(HW_REG_XCC_ID, 0, 4)")
            k("s_and_b32 s56, s56, 7")
            k("s_waitcnt vmcnt(0)")
            ticket()
            k.place(tkx)
        if OPT.get('tkat', 5) < 0: first_ticket()
    k(f"""
    s_sub_u32 s29, s{SW}, 8
    s_lshl_b32 s30, s29, 10
    v_add_u32 v4, s30, v3
    s_mov_b32 s39, {hex(ONES)}
    """)
    if OPT.get('t1', 1):
        l9, l10, l11 = k.label("t9"), k.label("t10"), k.label("t11")
        k(f"s_cmp_lg_u32 s{SW}, 9")
        k(f"s_cbranch_scc1 {l9}")
        srd(k, 44, 4, 2*MB)
        k("s_lshl_b32 s31, s2, 13")
        k("v_lshlrev_b32 v12, 7, v2")
        msk = sum(1 << i for i in range(32) if (i & 7) >= OPT.get('t1x', 0))
        k(f"s_mov_b32 exec_lo, {hex(msk)}")
        k(f"s_mov_b32 exec_hi, {hex(msk)}")
        k("buffer_load_dword v40, v12, s[44:47], s31 offen")
        k("s_mov_b64 exec, -1")
        k.place(l9)
        k(f"s_cmp_lg_u32 s{SW}, 10")
        k(f"s_cbranch_scc1 {l10}")
        k(f"s_cmp_lt_u32 s2, {32*OPT.get('t1x', 0)}")
        k(f"s_cbranch_scc1 {l10}")
        srd(k, 44, 6, 512*3072)
        k("s_mul_i32 s31, s2, 6144")
        k("v_lshlrev_b32 v12, 7, v2")
        k("s_mov_b32 exec_hi, 0xffff")
        k("buffer_load_dword v40, v12, s[44:47], s31 offen")
        k("s_mov_b64 exec, -1")
        k.place(l10)
    for c in range(9):
        k("s_barrier")
        if OPT.get('dyn', 1) == 1 and c == OPT.get('tkat', 5): first_ticket()
        if c == OPT.get('tcat', 7):
            l11 = k.label("t11b")
            k(f"s_cmp_lg_u32 s{SW}, 11")
            k(f"s_cbranch_scc1 {l11}")
            if True:
                here = k.label("here")
                k("s_getpc_b64 s[44:45]")
                k.place(here)
                k(f"s_sub_u32 s44, s44, {here}-{NAME}")
                k("s_subb_u32 s45, s45, 0")
                k("v_lshlrev_b32 v12, 7, v2")
                for i in range(4):
                    k(f"global_load_dword v{40+i}, v12, s[44:45]")
                    if i < 3: k("v_add_u32 v12, 8192, v12")
            k.place(l11)

        if c < 8 and not (OPT.get('z_nostat') and c > 0):
            cc = c
            k(f"ds_read_b128 v[{X}:{X+3}], v4 offset:{cc*8192}")
            k(f"ds_read_b128 v[{X+4}:{X+7}], v4 offset:{cc*8192 + 4096}")
            for hf in range(2):
                k(f"s_waitcnt lgkmcnt({1-hf})")
                for d in range(4):
                    r = X + 4*hf + d
                    q, sx = SQ + 2*hf + (d & 1), SX + 2*hf + (d & 1)
                    first = (cc == 0 and d < 2)
                    k(f"v_dot2_f32_bf16 v{q}, v{r}, v{r}, {'0' if first else 'v%d' % q}")
                    k(f"v_dot2_f32_bf16 v{sx}, v{r}, s39, {'0' if first else 'v%d' % sx}")
        if c == 7:
            k.nop(3)
            k(f"v_add_f32 v{SQ}, v{SQ}, v{SQ+1}")
            k(f"v_add_f32 v{SQ+2}, v{SQ+2}, v{SQ+3}")
            k(f"v_add_f32 v{SX}, v{SX}, v{SX+1}")
            k(f"v_add_f32 v{SX+2}, v{SX+2}, v{SX+3}")
            row8_sum(k, [SQ, SQ+2, SX, SX+2])
        if c == 7:
            for hf in range(2):
                finish_stats(k, SX + 2*hf, SQ + 2*hf, RS + hf, NB + hf, T, T+1)
            k(f"""
            v_lshrrev_b32 v5, 3, v2
            s_lshl_b32 s30, s29, 5
            s_add_u32 s30, s30, {EXS}
            v_lshl_add_u32 v5, v5, 2, s30
            ds_write2_b32 v5, v{RS}, v{RS+1} offset0:0 offset1:32
            ds_write2_b32 v5, v{NB}, v{NB+1} offset0:64 offset1:96
            """)
    k("s_waitcnt lgkmcnt(0)")
    k("s_barrier")
    if OPT.get('dyn', 1) == 1:
        nw = k.label("nrw")
        k(f"s_cmp_lg_u32 s{SW}, 8")
        k(f"s_cbranch_scc1 {nw}")
        tk, tkd = k.label("tk"), k.label("tkd")
        k.place(tk)
        k("s_waitcnt vmcnt(0)")
        k("v_readfirstlane_b32 s57, v44")
        k.nop(1)
        k("s_cmp_lt_u32 s57, 32")
        k(f"s_cbranch_scc1 {tkd}")
        k("s_add_u32 s56, s56, 1")
        k("s_and_b32 s56, s56, 7")
        ticket()
        k(f"s_branch {tk}")
        k.place(tkd)
        k("s_lshl_b32 s57, s57, 3")
        k("s_or_b32 s57, s57, s56")
        k(f"v_mov_b32 v4, {ROLE}")
        k("v_mov_b32 v5, s57")
        k("ds_write_b32 v4, v5")
        k("s_waitcnt lgkmcnt(0)")
        k.place(nw)
    k("s_barrier")
    role_read(k)
    stamp(k, 0)
    nop_ = k.label("h1n")
    k(f"s_cmp_lg_u32 s{SW}, 8")
    k(f"s_cbranch_scc1 {nop_}")
    g, gx = k.label("gate"), k.label("gatex")
    k("s_mov_b32 s41, 0")
    k("v_lshlrev_b32 v9, 5, v2")
    k("s_mov_b64 exec, 0xff")
    k.place(g)
    k("global_load_dword v10, v9, s[60:61] offset:16 sc1")
    k("s_add_u32 s41, s41, 1")
    k("s_cmp_gt_u32 s41, 0x40000")
    k(f"s_cbranch_scc1 {gx}")
    k("s_waitcnt vmcnt(0)")
    k("v_cmp_gt_u32 vcc, 32, v10")
    k("s_cmp_eq_u64 vcc, 0")
    k(f"s_cbranch_scc1 {gx}")
    k("s_sleep 8")
    k(f"s_branch {g}")
    k.place(gx)
    stamp(k, 1)
    k(f"s_lshl_b32 s42, s28, 5")
    k(f"s_add_u32 s42, s42, s27")
    flag_set(k, 42)
    k("s_getreg_b32 s58, hwreg(HW_REG_XCC_ID, 0, 4)")
    k("s_add_u32 s58, s58, 1")
    k(f"s_lshl_b32 s42, s{SXCD}, 5")
    k(f"s_add_u32 s42, s42, s{SIDX}")
    k(f"s_add_u32 s42, s42, {FX}")
    flag_set(k, 42, "s58")
    k(f"s_lshr_b32 s42, s{SHEAD}, 2")
    k(f"s_lshl_b32 s42, s42, 5")
    flag_poll(k, 42)
    stamp(k, 2)
    k.place(nop_)
    k("s_barrier")

def rowmax(k, S, dst, t1, t2):
    k(f"v_max3_f32 v{dst}, v{S}, v{S+1}, v{S+2}")
    k(f"v_max3_f32 v{t1}, v{S+3}, v{S+4}, v{S+5}")
    k(f"v_max3_f32 v{dst}, v{dst}, v{S+6}, v{S+7}")
    k(f"v_max3_f32 v{t1}, v{t1}, v{S+8}, v{S+9}")
    k(f"v_max3_f32 v{dst}, v{dst}, v{S+10}, v{S+11}")
    k(f"v_max3_f32 v{t1}, v{t1}, v{S+12}, v{S+13}")
    k(f"v_max3_f32 v{dst}, v{dst}, v{S+14}, v{S+15}")
    k(f"v_max_f32 v{t1}, v{dst}, v{t1}")
    k(f"v_mov_b32 v{t2}, v{t1}")
    k.nop(2)
    k(f"v_permlane32_swap_b32 v{t1}, v{t2}")
    k.nop(1)
    k(f"v_max_f32 v{dst}, v{t1}, v{t2}")

def p2_compute(k, tail):
    Q = 8; KB = [12, 16]; V1 = [20, 28]; V2 = [24, 32]; P = 36; SS = [48, 64]; CN = 80; O = 96
    VKA, VVA, VINC = 4, 5, 47
    PRG, VPR = 112, 6
    chk, spin = k.label("chk"), k.label("spin")
    def spinf(k):
        k.place(spin)
        k("s_sleep 1")
        k(f"ds_read_b128 v[{PRG}:{PRG+3}], v{VPR}")
        k("s_waitcnt lgkmcnt(0)")
        k(f"s_branch {chk}")
    tail.append(spinf)
    k(f"""
    s_lshl_b32 s30, s{SQB}, 3
    s_add_u32 s30, s30, s{SW}
    s_lshl_b32 s31, s30, 10
    s_lshl_b32 s29, s{SHEAD}, 16
    s_add_u32 s31, s31, s29
    buffer_load_dwordx4 v[{Q}:{Q+3}], v3, s[20:23], s31 offen {OPT['ld']}
    v_mov_b32 v{VKA}, v3
    v_lshrrev_b32 v6, 5, v2
    v_lshlrev_b32 v6, 8, v6
    v_and_b32 v7, 15, v2
    v_lshl_add_u32 v{VVA}, v7, 4, v6
    v_add_u32 v{VVA}, 0x10000, v{VVA}
    v_and_b32 v6, 31, v2
    v_add_u32 v7, -20, v6
    v_cmp_gt_u32 vcc, 8, v7
    v_mov_b32 v44, {CSTRIP}
    v_mov_b32 v45, {CSTRIP + 64}
    v_cndmask_b32 v44, v44, v45, vcc
    v_and_b32 v7, 27, v2
    v_cmp_eq_u32 vcc, 16, v7
    v_add_u32 v45, 16, v44
    s_nop 0
    v_cndmask_b32 v44, v44, v45, vcc
    v_cmp_gt_u32 vcc, 16, v6
    v_mov_b32 v45, 8192
    s_nop 0
    v_cndmask_b32 v{VVA}, v44, v{VVA}, vcc
    v_cndmask_b32 v{VINC}, 0, v45, vcc
    """)
    k(f"v_mov_b32 v{VPR}, {PROG}")
    for r in range(4): k(f"v_mov_b32 v{V2[1]+r}, 0")
    for r in range(8): k(f"v_mov_b32 v{P+r}, 0")
    for r in range(16): k(f"v_mov_b32 v{O+r}, 0")
    def vread(kk, buf, off):
        kk(f"ds_read_b128 v[{V1[buf]}:{V1[buf]+3}], v{VVA} offset:{off}")
        kk(f"ds_read_b128 v[{V2[buf]}:{V2[buf]+3}], v{VVA} offset:{off+512}")
    stamp(k, 4)
    k("s_barrier")
    stamp(k, 5)
    k(f"ds_read_b128 v[{KB[0]}:{KB[0]+3}], v{VKA}")
    k(f"ds_read_b128 v[{KB[1]}:{KB[1]+3}], v{VKA} offset:1024")
    vread(k, 0, 0)
    k("s_waitcnt vmcnt(0) lgkmcnt(3)")
    k(f"{MFMA} v[{SS[0]}:{SS[0]+15}], v[{KB[0]}:{KB[0]+3}], v[{Q}:{Q+3}], 0")
    k.nop(12)
    rowmax(k, SS[0], 44, 45, 46)
    for r in range(16): k(f"v_sub_f32 v{CN+r}, 0, v44")
    k.nop(2)
    k(f"{MFMA} v[{SS[0]}:{SS[0]+15}], v[{KB[0]}:{KB[0]+3}], v[{Q}:{Q+3}], v[{CN}:{CN+15}]")
    k("s_mov_b32 s38, 0")
    k.nop(10)
    loop = k.label("loop")
    k(".p2align 6")
    k.place(loop)
    pr = OPT['prio']
    for t in range(8):
        cur, nx = SS[t & 1], SS[(t+1) & 1]
        e = lambda i: k(f"v_exp_f32 v{cur+i}, v{cur+i}")
        c = lambda i: k(f"v_cvt_pk_bf16_f32 v{P+i}, v{cur+2*i}, v{cur+2*i+1}")
        k("s_waitcnt lgkmcnt(0)")
        if t == 6:
            k.place(chk)
            k(f"v_min3_u32 v{PRG}, v{PRG}, v{PRG+1}, v{PRG+2}")
            k(f"v_min_u32 v{PRG}, v{PRG}, v{PRG+3}")
            k(f"v_cmp_ge_u32 vcc, s38, v{PRG}")
            k("s_cmp_lg_u64 vcc, 0")
            k(f"s_cbranch_scc1 {spin}")
        k("s_setprio 0" if pr else "s_nop 0")
        kb = KB[(t+1) & 1]
        k(f"{MFMA} v[{nx}:{nx+15}], v[{kb}:{kb+3}], v[{Q}:{Q+3}], v[{CN}:{CN+15}]")
        k(f"ds_read_b128 v[{KB[t&1]}:{KB[t&1]+3}], v{VKA} offset:{(t+2)*1024}")
        e(0); e(1)
        pb = (t+1) & 1
        k(f"{MFMA} v[{O}:{O+15}], v[{V2[pb]}:{V2[pb]+3}], v[{P+4}:{P+7}], v[{O}:{O+15}]")
        vread(k, pb, (t+1)*1024)
        if t == 5: k(f"ds_read_b128 v[{PRG}:{PRG+3}], v{VPR}")
        e(2); e(3); c(0)
        if pr: k("s_setprio 1")
        e(4); e(5); c(1); e(6); e(7); c(2); e(8); e(9); c(3); e(10); e(11)
        k(f"{MFMA} v[{O}:{O+15}], v[{V1[t&1]}:{V1[t&1]+3}], v[{P}:{P+3}], v[{O}:{O+15}]")
        c(4); e(12); e(13); c(5); e(14); e(15); c(6)
        if t == 7:
            k(f"v_add_u32 v{VKA}, 8192, v{VKA}")
            k(f"v_add_u32 v{VVA}, v{VINC}, v{VVA}")
            k("s_add_u32 s38, s38, 1")
            k(f"v_mov_b32 v{PRG}, s38")
            k(f"ds_write_b32 v{VPR}, v{PRG} offset:32")
            k("s_cmp_lt_u32 s38, 8")
        c(7)
    k(f"s_cbranch_scc1 {loop}")
    k("s_setprio 0")
    stamp(k, 6)
    k.nop(1)
    k(f"{MFMA} v[{O}:{O+15}], v[{V2[1]}:{V2[1]+3}], v[{P+4}:{P+7}], v[{O}:{O+15}]")
    k(f"ds_read_b32 v{PRG}, v{VPR} offset:16")
    k("s_waitcnt lgkmcnt(0)")
    k(f"v_readfirstlane_b32 s{SLOC}, v{PRG}")
    k.nop(11)
    fb, fin = k.label("fb"), k.label("fin")
    k(f"""
    v_max3_f32 v44, abs(v{O}), abs(v{O+1}), abs(v{O+2})
    v_max3_f32 v45, abs(v{O+3}), abs(v{O+4}), abs(v{O+5})
    v_max3_f32 v44, v44, abs(v{O+6}), abs(v{O+7})
    v_add_f32 v46, v{O}, v{O+1}
    v_max3_f32 v44, v44, v45, v{O+8}
    s_mov_b32 s39, {hex(f32(2.0**100))}
    """)
    for r in range(2, 9): k(f"v_add_f32 v46, v46, v{O+r}")
    k(f"v_and_b32 v46, 0x7fffffff, v46")
    k(f"v_cmp_ngt_f32 vcc, s39, v44")
    k(f"v_cmp_ngt_f32 s[40:41], s39, v46")
    k.nop(1)
    k("s_or_b64 s[40:41], s[40:41], vcc")
    k("s_cmp_lg_u64 s[40:41], 0")
    k(f"s_cbranch_scc1 {fb}")
    k.place(fin)
    k(f"v_rcp_f32 v44, v{O+8}")
    k(f"s_lshl_b32 s40, s30, 15")
    k(f"s_lshl_b32 s41, s{SHEAD}, 10")
    k(f"s_add_u32 s40, s40, s41")
    k(f"s_add_u32 s40, s40, {OF}")
    for r in range(8): k(f"v_mul_f32 v{O+r}, v{O+r}, v44")
    for r in range(4): k(f"v_cvt_pk_bf16_f32 v{P+r}, v{O+2*r}, v{O+2*r+1}")
    pub_store(k, [f"buffer_store_dwordx4 v[{P}:{P+3}], v3, s[20:23], s40 offen"], 0)
    k("s_waitcnt vmcnt(0)")
    k("s_barrier")
    k("s_barrier")
    def fallback(k):
        k.place(fb)
        k(f"v_mov_b32 v{VKA}, v3")
        k(f"v_lshlrev_b32 v44, 3, v{VINC}")
        k(f"v_sub_u32 v{VVA}, v{VVA}, v44")
        k(f"v_lshrrev_b32 v{VINC}, 3, v{VINC}")
        k(f"v_mov_b32 v7, 0xff7fffff")
        for r in range(16): k(f"v_mov_b32 v{O+r}, 0")
        k("s_mov_b32 s38, 0")
        fl = k.label("fl")
        k.place(fl)
        S = SS[0]
        k(f"ds_read_b128 v[{KB[0]}:{KB[0]+3}], v{VKA}")
        vread(k, 0, 0)
        k("s_waitcnt lgkmcnt(0)")
        k(f"{MFMA} v[{S}:{S+15}], v[{KB[0]}:{KB[0]+3}], v[{Q}:{Q+3}], 0")
        k.nop(14)
        rowmax(k, S, 44, 45, 46)
        k("v_max_f32 v44, v44, v7")
        k("v_sub_f32 v45, v7, v44")
        k("v_exp_f32 v45, v45")
        k("v_mov_b32 v7, v44")
        for r in range(16): k(f"v_sub_f32 v{S+r}, v{S+r}, v44")
        for r in range(16): k(f"v_mul_f32 v{O+r}, v{O+r}, v45")
        for r in range(16): k(f"v_exp_f32 v{S+r}, v{S+r}")
        k.nop(1)
        for r in range(8): k(f"v_cvt_pk_bf16_f32 v{P+r}, v{S+2*r}, v{S+2*r+1}")
        k.nop(2)
        k(f"{MFMA} v[{O}:{O+15}], v[{V1[0]}:{V1[0]+3}], v[{P}:{P+3}], v[{O}:{O+15}]")
        k(f"{MFMA} v[{O}:{O+15}], v[{V2[0]}:{V2[0]+3}], v[{P+4}:{P+7}], v[{O}:{O+15}]")
        k(f"v_add_u32 v{VKA}, 1024, v{VKA}")
        k(f"v_add_u32 v{VVA}, v{VINC}, v{VVA}")
        k("s_add_u32 s38, s38, 1")
        k("s_cmp_lt_u32 s38, 64")
        k.nop(14)
        k(f"s_cbranch_scc1 {fl}")
        k(f"s_branch {fin}")
    tail.append(fallback)

def p2_helper(k, done):
    NB2 = OPT['nb2']
    ld, st = OPT['ld'], OPT['st']
    k(f"""
    s_sub_u32 s30, s{SW}, 8
    s_lshl_b32 s32, s30, 11
    s_lshl_b32 s29, s{SHEAD}, 16
    s_add_u32 s33, s29, s32
    """)
    def kv(c):
        k(f"s_add_u32 s31, s{SQB}, {c}" if OPT.get('rot', 0) else f"s_mov_b32 s31, {c}")
        k("s_and_b32 s31, s31, 7")
        k("s_lshl_b32 s31, s31, 13")
        k("s_add_u32 s31, s31, s33")
        for base, l in ((KF, 0), (VF, 65536)):
            k(f"s_add_u32 s34, s31, {base}")
            dma(k, 3, 20, 34, f"s32, {l + c*8192}", 0, ld)
            k(f"buffer_load_dwordx4 v3, s[20:23], s34 offen offset:1024 {ld} lds")
    kv(0); kv(1)
    k(f"""
    v_lshrrev_b32 v4, 2, v2
    s_lshl_b32 s35, s30, 4
    v_add_u32 v4, s35, v4
    v_cmp_gt_u32 vcc, 20, v4
    v_lshlrev_b32 v4, 9, v4
    v_and_b32 v5, 1, v2
    v_lshl_add_u32 v4, v5, 4, v4
    v_bfe_u32 v6, v2, 1, 1
    v_lshl_add_u32 v4, v6, 6, v4
    v_add_u32 v4, {CSTRIP}, v4
    v_mul_u32_u24 v8, 0x3f80, v5
    v_lshl_or_b32 v8, v8, 16, v8
    v_mov_b32 v9, v8
    v_mov_b32 v10, v8
    v_mov_b32 v11, v8
    s_and_saveexec_b64 s[36:37], vcc
    ds_write_b128 v4, v[8:11]
    s_mov_b64 exec, s[36:37]
    s_lshl_b32 s35, s30, 2
    s_add_u32 s35, s35, {PROG}
    v_mov_b32 v4, s35
    v_mov_b32 v5, 0
    ds_write_b32 v4, v5
    ds_write_b32 v4, v5 offset:16
    ds_write_b32 v4, v5 offset:32
    ds_write_b32 v4, v5 offset:48
    s_waitcnt vmcnt(4) lgkmcnt(0)
    s_barrier
    """)
    KD = OPT.get('kvd', 3)
    issued = 2
    def publish(c):
        k(f"v_mov_b32 v5, {c if c < 7 else 64}")
        k("ds_write_b32 v4, v5")
    while issued < KD: kv(issued); issued += 1
    c = 1
    while issued < 8:
        k(f"s_waitcnt vmcnt({4*(issued - 1 - c)})")
        publish(c); c += 1
        kv(issued); issued += 1
    stamp(k, 3)
    k("s_mov_b32 s29, s30")
    loads, stores = relayout(k)
    if OPT.get('z_nopre'):
        loads = stores = (lambda i: None)
    loads(0)
    while c < 8:
        k(f"s_waitcnt vmcnt({(0 if OPT.get('z_nopre') else 26) + 4*(7 - c)})")
        publish(c); c += 1
    stamp(k, 12)
    if 'hprio2' in OPT: k(f"s_setprio {OPT['hprio2']}")
    loads(1)
    k("s_waitcnt vmcnt(26)")
    stores(0)
    k("s_waitcnt vmcnt(0)")
    stamp(k, 13)
    stores(1)
    k("s_waitcnt vmcnt(0)")
    stamp(k, 4)
    na = k.label("noarr")
    k(f"v_mov_b32 v5, {PROG + 48}")
    k("v_mov_b32 v6, 1")
    k("s_mov_b64 exec, 1")
    k("ds_add_rtn_u32 v7, v5, v6")
    k("s_waitcnt lgkmcnt(0)")
    k("v_readfirstlane_b32 s42, v7")
    k("s_cmp_lg_u32 s42, 3")
    k(f"s_cbranch_scc1 {na}")
    k(f"s_add_u32 s42, s{SXCD}, {CW}")
    arrive(k, 42)
    k.place(na)
    k(f"s_cmp_lg_u32 s{SW}, 8")
    k(f"s_cbranch_scc1 {done}")
    k("s_setprio 3")
    k(f"s_lshl_b32 s42, s{SXCD}, 5")
    k(f"s_add_u32 s42, s42, {FX}")
    flag_poll(k, 42)
    k("s_getreg_b32 s58, hwreg(HW_REG_XCC_ID, 0, 4)")
    k("s_add_u32 s58, s58, 1")
    k("s_mov_b32 exec_hi, 0")
    k("v_cmp_ne_u32 vcc, s58, v10")
    k("s_cmp_eq_u64 vcc, 0")
    k(f"s_cselect_b32 s{SLOC}, 1, 0")
    k(f"v_mov_b32 v5, s{SLOC}")
    k("ds_write_b32 v4, v5 offset:16")
    k("s_mov_b64 exec, -1")
    if OPT.get('t2', 1):
        again, skip, ok = k.label("t2a"), k.label("t2s"), k.label("t2o")
        k(f"""
        s_mov_b32 s40, {CNT + CW*256}
        s_mov_b32 exec_lo, 0xff
        s_mov_b32 exec_hi, 0
        v_lshlrev_b32 v9, 8, v2
        s_mov_b32 s41, 0
        """)
        k.place(again)
        k(f"s_sleep {OPT.get('slpw', 32)}")
        k("buffer_load_dword v10, v9, s[20:23], s40 offen sc1")
        k("ds_read_b32 v11, v4 offset:32")
        k("s_waitcnt vmcnt(0) lgkmcnt(0)")
        k("v_readfirstlane_b32 s41, v11")
        k("v_cmp_gt_u32 vcc, 32, v10")
        k(f"s_cmp_ge_u32 s41, {OPT.get('t2lim', 6)}")
        k(f"s_cbranch_scc1 {skip}")
        k("s_cmp_lg_u64 vcc, 0")
        k(f"s_cbranch_scc1 {again}")
        k("s_mov_b64 exec, -1")
        for base, tot in [(WOF, 4096), (WGF, 43*256), (WUF, 43*256), (WDF, 43*256)][OPT.get('t2a', 0):OPT.get('t2b', 3)]:
            per = tot // 32
            k(f"s_mul_i32 s42, s{SIDX}, {per*128}")
            k(f"s_add_u32 s42, s42, {base}")
            touch(k, 42, per)
        k.place(skip)
        k("s_mov_b64 exec, -1")

def res_cfg(mode):
    if mode == 'wo':
        return dict(NKS=32, JL=16, WIN=16, BSRC=OF, ASRC=WOF, RES=XF)
    return dict(NKS=86, JL=39, WIN=OPT.get('win5', 12), BSRC=ACT, ASRC=WDF, RES=HF)

def res_map(k):
    k(f"""
    s_lshl_b32 s27, s{SXCD}, 2
    s_and_b32 s28, s{SIDX}, 3
    s_add_u32 s27, s27, s28
    s_lshr_b32 s28, s{SIDX}, 2
    """)

def res_consumer(k, mode, sb):
    c_ = res_cfg(mode); NKS, JL, WIN, RES = c_['NKS'], c_['JL'], c_['WIN'], c_['RES']
    NH = NKS // 2
    SRB, SCB = 27, 28
    ld, st = OPT['ld'], OPT['st']
    R, ACC, AB, AT = 8, 16, 48, 80
    BW = 80 if mode == 'wo' else 112
    VO = 160
    res_map(k)
    k(f"""
    s_and_b32 s29, s{SW}, 1
    s_lshl_b32 s30, s{SRB}, 1
    s_add_u32 s30, s30, s29
    s_lshr_b32 s31, s{SW}, 1
    s_lshl_b32 s32, s{SCB}, 1
    s_add_u32 s32, s32, s31
    s_mul_i32 s33, s31, 3072
    v_add_u32 v6, s33, v3
    s_lshl_b32 s33, s31, 10
    s_add_u32 s33, s33, 1024
    v_add_u32 v7, s33, v3
    s_lshl_b32 s40, s30, 5
    s_lshl_b32 s41, s32, 1
    s_add_u32 s40, s40, s41
    s_lshl_b32 s40, s40, 10
    s_add_u32 s41, s40, {RES}
    buffer_load_dwordx4 v[{R}:{R+3}], v3, s[20:23], s41 offen {ld}
    buffer_load_dwordx4 v[{R+4}:{R+7}], v3, s[20:23], s41 offen offset:1024 {ld}
    s_mul_i32 s34, s31, {NH}
    s_mul_i32 s35, s30, {NKS}
    s_add_u32 s35, s35, s34
    s_lshl_b32 s35, s35, 10
    s_add_u32 s35, s35, {c_['BSRC']}
    """)
    if NH > JL:
        for q in range(2):
            k(f"s_xor_b32 s36, s32, {q}")
            k(f"s_mul_i32 s36, s36, {NKS}")
            k(f"s_add_u32 s36, s36, s34")
            k(f"s_lshl_b32 s36, s36, 10")
            k(f"s_add_u32 s36, s36, {c_['ASRC'] + JL*1024}")
            for j in range(NH - JL):
                r = AT + 8*j + 4*q
                k(f"buffer_load_dwordx4 v[{r}:{r+3}], v3, s[20:23], s36 offen" + (f" offset:{j*1024}" if j else "") + f" {ld}")
    RED = 65536 if mode == 'wo' else 0
    k(f"s_xor_b32 s36, s{SW}, 2")
    k(f"s_lshl_b32 s36, s36, 12")
    k(f"v_add_u32 v4, s36, v3")
    k(f"s_lshl_b32 s36, s{SW}, 12")
    k(f"v_add_u32 v5, s36, v3")
    if RED:
        k(f"v_add_u32 v4, {RED}, v4")
        k(f"v_add_u32 v5, {RED}, v5")
    if mode == 'down':
        srd(k, 52, 18, 2*MB)
        k(f"""
        v_and_b32 v{VO}, 31, v2
        v_lshlrev_b32 v{VO}, 10, v{VO}
        v_lshrrev_b32 v{VO+1}, 5, v2
        v_lshl_add_u32 v{VO}, v{VO+1}, 4, v{VO}
        s_lshl_b32 s47, s30, 15
        s_lshl_b32 s48, s32, 6
        s_add_u32 s47, s47, s48
        """)
    else:
        k(f"""
        s_lshl_b32 s47, s32, 14
        s_lshl_b32 s48, s30, 8
        s_add_u32 s47, s47, s48
        s_add_u32 s47, s47, {ST}
        v_lshlrev_b32 v{VO}, 3, v2
        s_add_u32 s41, s40, {HF}
        s_mov_b32 s46, {hex(ONES)}
        """)
    k("s_mov_b32 s45, 0xffff0000")
    k("s_barrier")
    stamp(k, sb)
    def bload(j):
        if j % 4 == 0: k(f"s_add_u32 s36, s35, {j*1024}")
        r = BW + 4*(j % WIN)
        k(f"buffer_load_dwordx4 v[{r}:{r+3}], v3, s[20:23], s36 offen" + (f" offset:{(j % 4)*1024}" if j % 4 else "") + f" {ld}")
    def ard(j, q):
        if j < JL:
            if q == 0 and j and j % 16 == 0:
                k("v_add_u32 v6, 0x10000, v6")
                k("v_add_u32 v7, 0x10000, v7")
            r = AB + 8*(j & 3) + 4*q
            k(f"ds_read_b128 v[{r}:{r+3}], v{6+q} offset:{(j % 16)*4096}")
    nb = min(WIN, NH)
    for j in range(nb): bload(j)
    for j in range(3):
        ard(j, 0); ard(j, 1)
    for j in range(NH):
        lg = 2*(min(JL, j + 3) - (j + 1)) if j < JL else None
        k(f"s_waitcnt vmcnt({nb - 1 - j})" + (f" lgkmcnt({lg})" if lg is not None else ""))
        A = AB + 8*(j & 3) if j < JL else AT + 8*(j - JL)
        B = BW + 4*(j % WIN)
        for q in range(2):
            C = "0" if j == 0 else f"v[{ACC+16*q}:{ACC+16*q+15}]"
            k(f"{MFMA} v[{ACC+16*q}:{ACC+16*q+15}], v[{A+4*q}:{A+4*q+3}], v[{B}:{B+3}], {C}")
            ard(j + 3, q)
        if nb < NH:
            bload(nb); nb += 1
    stamp(k, sb + 1)
    U = 48
    for d in range(8):
        k(f"v_lshlrev_b32 v{U+2*d}, 16, v{R+d}")
        k(f"v_and_b32 v{U+2*d+1}, s45, v{R+d}")
    if not RED: k("s_barrier")
    for g in range(4):
        k(f"ds_write_b128 v4, v[{ACC+16+4*g}:{ACC+19+4*g}] offset:{g*1024}")
    for r in range(0, 16, 2):
        k(f"v_pk_add_f32 v[{ACC+r}:{ACC+r+1}], v[{ACC+r}:{ACC+r+1}], v[{U+r}:{U+r+1}]")
    k("s_waitcnt lgkmcnt(0)")
    k("s_barrier")
    for g in range(4):
        k(f"ds_read_b128 v[{U+4*g}:{U+4*g+3}], v5 offset:{g*1024}")
    P = 8
    for g in range(4):
        k(f"s_waitcnt lgkmcnt({3-g})")
        for r in (4*g, 4*g+2):
            k(f"v_pk_add_f32 v[{ACC+r}:{ACC+r+1}], v[{ACC+r}:{ACC+r+1}], v[{U+r}:{U+r+1}]")
        for d in (2*g, 2*g+1):
            k(f"v_cvt_pk_bf16_f32 v{P+d}, v{ACC+2*d}, v{ACC+2*d+1}")
    if mode == 'wo':
        pub_store(k, [f"buffer_store_dwordx4 v[{P}:{P+3}], v3, s[20:23], s41 offen",
                      f"buffer_store_dwordx4 v[{P+4}:{P+7}], v3, s[20:23], s41 offen offset:1024"], 1)
        SX, SQ = 64, 65
        k(f"v_dot2_f32_bf16 v{SX}, v{P}, s46, 0")
        k(f"v_dot2_f32_bf16 v{SQ}, v{P}, v{P}, 0")
        for d in range(1, 8):
            k(f"v_dot2_f32_bf16 v{SX}, v{P+d}, s46, v{SX}")
            k(f"v_dot2_f32_bf16 v{SQ}, v{P+d}, v{P+d}, v{SQ}")
        k.nop(3)
        half_sum(k, SX, 66, 67)
        half_sum(k, SQ, 66, 67)
        k("s_mov_b32 exec_hi, 0")
        pub_store(k, [f"buffer_store_dwordx2 v[{SX}:{SQ}], v{VO}, s[20:23], s47 offen"], 1)
        k("s_mov_b64 exec, -1")
        k("s_waitcnt vmcnt(0)")
        k("s_barrier")
    else:
        k.nop(2)
        k(f"""
        v_permlane32_swap_b32 v{P}, v{P+2}
        v_permlane32_swap_b32 v{P+1}, v{P+3}
        v_permlane32_swap_b32 v{P+4}, v{P+6}
        v_permlane32_swap_b32 v{P+5}, v{P+7}
        """)
        k.nop(1)
        k(f"buffer_store_dwordx4 v[{P}:{P+3}], v{VO}, s[52:55], s47 offen {OPT.get('sto', '')}")
        k(f"buffer_store_dwordx4 v[{P+4}:{P+7}], v{VO}, s[52:55], s47 offen offset:32 {OPT.get('sto', '')}")

def res_wsetup(k, mode):
    c_ = res_cfg(mode); NKS = c_['NKS']
    k(f"""
    s_sub_u32 s45, s{SW}, 4
    s_lshr_b32 s44, s{SIDX}, 2
    s_lshl_b32 s44, s44, 1
    s_and_b32 s46, s45, 1
    s_add_u32 s44, s44, s46
    s_mul_i32 s44, s44, {NKS}
    s_lshr_b32 s46, s45, 1
    s_mul_i32 s46, s46, {NKS//2}
    s_add_u32 s44, s44, s46
    s_lshl_b32 s44, s44, 10
    s_add_u32 s44, s44, {c_['ASRC']}
    s_lshl_b32 s45, s45, 10
    """)

def res_wload(k, j0, j1):
    for j in range(j0, j1):
        k(f"s_add_u32 s46, s44, {j*1024}")
        dma(k, 3, 20, 46, f"s45, {j*4096}", 0, OPT['ld'])

SLOT4, RING4, NCH4 = 20480, 8, 16
def p4_map(k):
    k(f"""
    s_lshl_b32 s27, s{SXCD}, 1
    s_cmp_ge_u32 s{SIDX}, 15
    s_cselect_b32 s28, 1, 0
    s_add_u32 s27, s27, s28
    s_mul_i32 s28, s28, 15
    s_sub_u32 s28, s{SIDX}, s28
    s_min_u32 s28, s28, 15
    """)

def p4_consumer(k):
    ld, st = OPT['ld'], OPT['st']
    skip, fin = k.label("p4skip"), k.label("p4fin")
    XB = [8, 12, 16, 20]; WB = [24, 48]; ACC = 72; T = [0, 1, 2, 4]; RS, NB = 5, 3; STR = 24
    p4_map(k)
    k("s_cmp_eq_u32 s28, 15")
    k(f"s_cbranch_scc1 {skip}")
    k(f"""
    s_lshl_b32 s30, s27, 2
    s_add_u32 s30, s30, s{SW}
    s_lshl_b32 s33, s{SW}, 11
    s_add_u32 s33, s33, 12288
    v_mov_b32 v6, v3
    v_add_u32 v7, s33, v3
    s_mul_i32 s40, s30, 86
    s_mul_i32 s41, s28, 6
    s_add_u32 s40, s40, s41
    s_lshl_b32 s40, s40, 10
    s_add_u32 s40, s40, {ACT}
    s_mov_b32 s47, 0
    s_lshl_b32 s32, s30, 8
    s_add_u32 s32, s32, {ST}
    v_and_b32 v4, 31, v2
    v_lshlrev_b32 v4, 3, v4
    v_lshrrev_b32 v8, 5, v2
    v_lshl_add_u32 v4, v8, 14, v4
    s_mov_b32 s38, 0xffff0000
    """)
    for r in range(96): k(f"v_mov_b32 v{ACC+r}, 0")
    k("s_barrier")
    stamp(k, 9)
    for i in range(8):
        k(f"s_add_u32 s35, s32, {i*32768}")
        k(f"buffer_load_dwordx2 v[{STR+2*i}:{STR+2*i+1}], v4, s[20:23], s35 offen {ld}")
    k("s_waitcnt vmcnt(0)")
    for i in range(1, 8):
        k(f"v_add_f32 v{STR}, v{STR}, v{STR+2*i}")
        k(f"v_add_f32 v{STR+1}, v{STR+1}, v{STR+2*i+1}")
    half_sum(k, STR, 0, 1)
    half_sum(k, STR+1, 0, 1)
    finish_stats(k, STR, STR+1, RS, NB, 0, 1)
    def wrd(u, b, mt):
        return f"ds_read_b128 v[{b+4*mt}:{b+4*mt+3}], v6 offset:{mt*2048 + (u & 1)*1024}"
    def xrd(u, b):
        return f"ds_read_b128 v[{b}:{b+3}], v7 offset:{(u & 1)*1024}"
    k("s_barrier")
    stamp(k, 10)
    k(xrd(0, XB[0])); k(xrd(1, XB[1]))
    for mt in range(6): k(wrd(0, WB[0], mt))
    k(f"s_mov_b32 s48, 0")
    k("s_waitcnt lgkmcnt(7)")
    for o in norm4(XB[0], T, RS, NB, 38): k(o)
    ml = k.label("p4ml")
    k(".p2align 3")
    k.place(ml)
    for u in range(4):
        if not (u & 1):
            k(f"s_add_u32 s48, s48, 1")
            k(f"s_and_b32 s48, s48, {RING4-1}")
            k(f"s_cselect_b32 s49, s50, s51")
            k("s_barrier")
            k("v_add_u32 v7, s49, v7")
        else:
            k("v_add_u32 v6, s49, v6")
            if u == 3:
                k("s_add_u32 s47, s47, 1")
                k(f"s_cmp_lt_u32 s47, {NCH4//2}")
        b, x = WB[u & 1], XB[u]
        nb_ = WB[(u+1) & 1]
        ops = norm4(XB[(u+1) & 3], T, RS, NB, 38)
        cuts = [0, 3, 7, 10, 14, 17, 20]
        for mt in range(6):
            if mt == 0: k("s_waitcnt lgkmcnt(3)")
            if mt == 3: k("s_waitcnt lgkmcnt(4)")
            k(f"{MFMA} v[{ACC+16*mt}:{ACC+16*mt+15}], v[{b+4*mt}:{b+4*mt+3}], v[{x}:{x+3}], v[{ACC+16*mt}:{ACC+16*mt+15}]")
            if mt == 0: k(xrd(u, XB[(u+2) & 3]))
            k(wrd(u+1, nb_, mt))
            for o in ops[cuts[mt]:cuts[mt+1]]: k(o)
    k(f"s_cbranch_scc1 {ml}")
    stamp(k, 11)
    lane_regs(k)
    P = 24
    for tile in range(3):
        G, U = ACC + 16*tile, ACC + 48 + 16*tile
        if tile == 1:
            k(f"s_cmp_eq_u32 s28, 14")
            k(f"s_cbranch_scc1 {fin}")
        for r in range(16): k(f"v_max_f32 v{G+r}, 0, v{G+r}")
        for r in range(0, 16, 2):
            k(f"v_pk_mul_f32 v[{G+r}:{G+r+1}], v[{G+r}:{G+r+1}], v[{U+r}:{U+r+1}]")
        if tile == 0: k("s_waitcnt lgkmcnt(0)")
        for d in range(8):
            k(f"v_cvt_pk_bf16_f32 v{P+8*tile+d}, v{G+2*d}, v{G+2*d+1}")
        k(f"s_add_u32 s41, s40, {tile*2048}")
        pub_store(k, [f"buffer_store_dwordx4 v[{P+8*tile}:{P+8*tile+3}], v3, s[20:23], s41 offen",
                      f"buffer_store_dwordx4 v[{P+8*tile+4}:{P+8*tile+7}], v3, s[20:23], s41 offen offset:1024"], 2)
    k.place(fin)
    k("s_waitcnt vmcnt(0)")
    k.place(skip)
    k("s_barrier")

def p4_loader(k):
    ld = OPT['ld']
    D = OPT['depth4']
    skip, join = k.label("p4lskip"), k.label("p4ljoin")
    res_wsetup(k, 'down')
    p4_map(k)
    k("s_cmp_eq_u32 s28, 15")
    k(f"s_cbranch_scc1 {skip}")
    k(f"""
    s_sub_u32 s29, s{SW}, 4
    s_lshl_b32 s30, s27, 2
    s_add_u32 s30, s30, s29
    s_lshl_b32 s31, s30, 15
    s_add_u32 s31, s31, {HF}
    s_mul_i32 s33, s28, {3*32768}
    s_and_b32 s34, s29, 1
    s_lshl_b32 s34, s34, 10
    s_add_u32 s33, s33, s34
    s_lshr_b32 s35, s29, 1
    s_mul_i32 s37, s35, {WUF - WGF}
    s_add_u32 s33, s33, s37
    s_mul_i32 s35, s35, 6144
    s_add_u32 s34, s34, s35
    s_lshl_b32 s36, s29, 11
    """)
    order = []
    def hpart(c):
        k(f"s_add_u32 s35, s31, {c*2048}")
        dma(k, 3, 20, 35, f"s36, {(c % RING4)*SLOT4 + 12288}", 0, ld)
        k(f"buffer_load_dwordx4 v3, s[20:23], s35 offen offset:1024 {ld} lds")
        order.extend([('h', c)]*2)
    def wpart(c):
        for t in range(3):
            k(f"s_add_u32 s35, s33, {WGF + t*32768 + c*2048}")
            dma(k, 3, 20, 35, f"s34, {(c % RING4)*SLOT4 + t*2048}", 0, ld)
        order.extend([('w', c)]*3)
    for c in range(RING4): wpart(c)
    k("s_barrier")
    nh = 4
    for c in range(nh): hpart(c)
    nw = RING4
    for c in range(NCH4 + 1):
        if c < NCH4:
            last = max(i for i, o in enumerate(order) if o[1] == c)
            k(f"s_waitcnt vmcnt({len(order) - 1 - last})")
        k("s_barrier")
        m = 0
        while nh < NCH4 and nh <= c + D and m < 2:
            assert nh - RING4 <= c - 2
            hpart(nh); nh += 1; m += 1
        if nw < NCH4 and nw - RING4 <= c - 2:
            wpart(nw); nw += 1
        if c >= 10:
            assert nh == NCH4 and nw == NCH4
            res_wload(k, 5*(c-10), 5*(c-10) + 5); order.extend([('d', -1)]*5)
    k("s_barrier")
    k(f"s_branch {join}")
    k.place(skip)
    k("s_barrier")
    res_wload(k, 0, 35)
    k.place(join)
    res_wload(k, 35, 39)
    k("s_waitcnt vmcnt(0)")
    k("s_barrier")

def clean(k, n):
    m = OPT.get('wb', 0)
    if not (m >> n) & 1: return
    l = k.label("ncl")
    k(f"s_and_b32 s47, s{SIDX}, {OPT.get('wbm', 31)}")
    k(f"s_cmp_lg_u32 s47, 0")
    k(f"s_cbranch_scc1 {l}")
    k("buffer_wbl2 sc1")
    k.place(l)

def poller(k):
    sl = OPT.get('slpl', 2)
    stamp(k, 5)
    k("s_barrier")
    stamp(k, 6)
    k(f"s_lshl_b32 s43, s{SXCD}, 5")
    k(f"s_add_u32 s43, s43, {F2}")
    k(f"s_lshl_b32 s42, s{SQB}, 5")
    k(f"s_add_u32 s42, s42, s{SHEAD}")
    k(f"s_add_u32 s42, s42, {F2}")
    flag_set(k, 42, local=not OPT.get('amap', 1))
    k(f"s_mov_b32 s42, {CW}")
    poll(k, 42, 32, 8, 0)
    k("s_barrier")
    flag_poll(k, 43, 32, sl)
    stamp(k, 7)
    k("s_barrier")
    k("s_barrier")
    k("s_barrier")
    stamp(k, 8)
    res_map(k)
    k("s_lshr_b32 s43, s27, 1")
    k("s_and_b32 s44, s27, 1")
    k("s_lshl_b32 s45, s28, 1")
    k("s_add_u32 s44, s44, s45")
    k("s_lshl_b32 s42, s43, 4")
    k("s_add_u32 s42, s42, s44")
    k(f"s_add_u32 s42, s42, {F3}")
    flag_set(k, 42, local=True)
    idle = k.label("pidle")
    p4_map(k)
    k("s_cmp_eq_u32 s28, 15")
    k(f"s_cbranch_scc1 {idle}")
    k("s_lshl_b32 s46, s27, 4")
    k(f"s_add_u32 s42, s46, {F3}")
    flag_poll(k, 42, 16, sl)
    stamp(k, 9)
    k("s_barrier")
    clean(k, 0)
    for i in range(NCH4 + 1):
        k("s_barrier")
        if i == OPT.get('t3at', 8) and OPT.get('t3', 0):
            k(f"s_mul_i32 s42, s{SIDX}, {368*128}")
            k(f"s_add_u32 s42, s42, {WDF}")
            touch(k, 42, 368)
    k("s_barrier")
    stamp(k, 10)
    k("s_add_u32 s42, s46, s28")
    k(f"s_add_u32 s42, s42, {F4}")
    flag_set(k, 42, local=True)
    j = k.label("pjoin")
    k(f"s_branch {j}")
    k.place(idle)
    k("s_barrier")
    k.place(j)
    k("s_lshl_b32 s42, s43, 4")
    k(f"s_add_u32 s42, s42, {F4}")
    flag_poll(k, 42, 15, sl)
    stamp(k, 11)
    k("s_barrier")
    clean(k, 1)
    diag_end(k)

def diag_end(k):
    if not DIAG: return
    k("s_waitcnt vmcnt(0)")
    stamp(k, 14)
    k("s_memrealtime s[94:95]")
    k(f"s_lshl_b32 s40, s2, 4")
    k(f"s_add_u32 s40, s40, s{SW}")
    k(f"s_lshl_b32 s40, s40, 7")
    k(f"s_add_u32 s40, s40, {DIAGB}")
    k("s_waitcnt lgkmcnt(0)")
    for i in range(15):
        k(f"s_sub_u32 s{64+2*i}, s{64+2*i}, s96")
        k(f"v_mov_b32 v{8+i}, s{64+2*i}")
    k("v_mov_b32 v23, s94")
    k("v_mov_b32 v24, s98")
    k("v_mov_b32 v4, 0")
    k("s_mov_b64 exec, 1")
    for i in range(4):
        k(f"buffer_store_dwordx4 v[{8+4*i}:{11+4*i}], v4, s[20:23], s40 offen offset:{16*i}")
    k(f"buffer_store_dword v24, v4, s[20:23], s40 offen offset:64")
    if OPT.get('dbgout') is not None:
        l = k.label("dbo")
        k(f"s_lshl_b32 s41, s{SW}, 8")
        k(f"s_or_b32 s41, s41, s2")
        k(f"s_cmp_lg_u32 s41, {OPT['dbgout']}")
        k(f"s_cbranch_scc1 {l}")
        k("v_sub_u32 v8, v23, v24")
        for i in range(4):
            k(f"global_store_dwordx4 v4, v[{8+4*i}:{11+4*i}], s[60:61] offset:{4+16*i}")
        k.place(l)

def build(path):
    k = Kern(NAME)
    done, roleL, roleH, p2 = k.label("done"), k.label("L"), k.label("H"), k.label("p2")
    tail = []
    k(f"""
    s_cmp_ge_u32 s2, 256
    s_cbranch_scc1 {done}
    s_load_dwordx16 s[4:19], s[0:1], 0
    s_load_dwordx4 s[60:63], s[0:1], 64
    """)
    if DIAG:
        k("s_memtime s[96:97]")
        k("s_memrealtime s[98:99]")
    k(f"""
    v_lshrrev_b32 v1, 6, v0
    v_and_b32 v2, 63, v0
    s_and_b32 s{SXCD}, s2, 7
    s_lshr_b32 s{SIDX}, s2, 3
    v_readfirstlane_b32 s{SW}, v1
    v_lshlrev_b32 v3, 4, v2
    s_mov_b32 s50, {SLOT4}
    s_mov_b32 s51, {-(RING4-1)*SLOT4}
    """)
    if OPT.get('dyn', 1) != 2: p1_map(k)
    k("s_waitcnt lgkmcnt(0)")
    srd(k, 20, 62, WS_SIZE)
    if OPT.get('dyn', 1) == 2:
        early_role(k)
        p1_map(k)
    roleC = k.label("C")
    k(f"s_cmp_ge_u32 s{SW}, 8")
    k(f"s_cbranch_scc1 {roleH}")
    k(f"s_cmp_lt_u32 s{SW}, 4")
    k(f"s_cbranch_scc1 {roleC}")
    p1_loader(k)
    k(f"s_branch {p2}")
    k.place(roleH)
    p1_helper(k)
    H2 = k.label("H2")
    k(f"s_branch {H2}")
    k.place(roleC)
    p1_consumer(k)
    k.place(p2)
    p2_compute(k, tail)
    L3 = k.label("L3")
    k(f"s_cmp_ge_u32 s{SW}, 4")
    k(f"s_cbranch_scc1 {L3}")
    res_consumer(k, 'wo', 7)
    p4_consumer(k)
    res_consumer(k, 'down', 12)
    diag_end(k)
    k.place(done)
    k("s_endpgm")
    k.place(L3)
    res_wsetup(k, 'wo')
    res_wload(k, 0, 16)
    k("s_waitcnt vmcnt(0)")
    k("s_barrier")
    k("s_barrier")
    k("s_barrier")
    p4_loader(k)
    diag_end(k)
    k("s_endpgm")
    k.place(H2)
    p2_helper(k, done)
    poller(k)
    k("s_endpgm")
    for f in tail: f(k)
    k(f".fill (32768 - (. - {NAME}))/4, 4, 0xbf810000")
    hdr = """; Kernarg: 0 A_x, 8 A_wqkv, 16 A_wo, 24 B_x (unused), 32 W_gate, 40 W_up, 48 W_down, 56 out, 64 debug, 72 ws
; pre-LN transformer block in one persistent launch (256 workgroups, one per CU); generated by gen/gen4.py
; @launch grid=(256,1,1) block=(768,1,1) lds=163840
.amdgcn_target "amdgcn-amd-amdhsa--gfx950"
"""
    open(path, "w").write(hdr + k.text(168, 102 if DIAG else 64))

if __name__ == "__main__":
    for a in sys.argv[2:]:
        if "=" in a:
            kk, vv = a.split("=")
            OPT[kk] = int(vv) if vv.lstrip("-").isdigit() else vv.replace("+", " ")
    DIAG = "--diag" in sys.argv
    build(sys.argv[1])
```

```python
import sys, math
from dsl import Kern
from gen import (MB, QF, KF, VF, OF, XF, HF, ACT, WOF, WGF, WUF, WDF, ST, WS_SIZE, f32, ONES, MFMA, srd, half_sum,
                 finish_stats)
CNT = 25*MB
MX = 24*MB + 512*1024
WBT = MX + 65536
DIAGB = 28*MB
C1, C2, C3, C4, CW = 0, 8, 16, 32, 48
CSTRIP = 131072
PROG = CSTRIP + 10240
ROLE = 163832
WBL = 98304
KEEP = 160
NAME = "sequential_preLN__softmax_full_mha__glu_gated_reglu__prompt_kernel"
OPT = dict(slp=8, kvd=2, d1=4, prio=1, ld="sc1", st="sc1", nb2=4, depth4=5)
SXCD, SIDX, SW = 24, 25, 26
SHEAD, SQB = 62, 63
MF16 = "v_mfma_f32_16x16x32_bf16"
DIAG = False

def stamp(k, i):
    if DIAG: k(f"s_memtime s[{64+2*i}:{65+2*i}]")

def norm4(x, t, rs, nb, smask):
    ops = []
    for d in range(4):
        a, b = t[2*(d & 1)], t[2*(d & 1) + 1]
        ops.append([f"v_lshlrev_b32 v{a}, 16, v{x+d}", f"v_and_b32 v{b}, s{smask}, v{x+d}",
                    f"v_fma_f32 v{a}, v{a}, v{rs}, v{nb}", f"v_fma_f32 v{b}, v{b}, v{rs}, v{nb}",
                    f"v_cvt_pk_bf16_f32 v{x+d}, v{a}, v{b}"])
    o = []
    for p in (0, 2):
        for a, b in zip(ops[p], ops[p+1]): o += [a, b]
    return o

def lane_regs(k):
    k("v_mbcnt_lo_u32_b32 v2, -1, 0")
    k("v_mbcnt_hi_u32_b32 v2, -1, v2")
    k("v_lshlrev_b32 v3, 4, v2")

def dma(k, vo, srd_, so, m0expr, off=0, flag=""):
    k(f"s_add_u32 m0, {m0expr}")
    k.nop(1)
    k(f"buffer_load_dwordx4 v{vo}, s[{srd_}:{srd_+3}], s{so} offen" + (f" offset:{off}" if off else "") + f" {flag} lds")

def row8_sum(k, regs):
    for ctl in ("quad_perm:[1,0,3,2]", "quad_perm:[2,3,0,1]", "row_half_mirror"):
        k.nop(2)
        for r in regs:
            k(f"v_add_f32_dpp v{r}, v{r}, v{r} {ctl} row_mask:0xf bank_mask:0xf")

def arrive(k, sidx, va=8, vb=9):
    k(f"s_lshl_b32 s40, s{sidx}, 8")
    k(f"s_add_u32 s40, s40, {CNT}")
    k("s_mov_b64 exec, 1")
    k(f"v_mov_b32 v{va}, 1")
    k(f"v_mov_b32 v{vb}, 0")
    k(f"buffer_atomic_add v{va}, v{vb}, s[20:23], s40 offen sc1")

FLG = CNT + 65536
F1, F2, FX, F3, F4 = 0, 256, 512, 768, 1024
SLOC = 59
def pub_store(k, lines, stage=3):
    if not (OPT.get('loc', 8) >> stage) & 1:
        for l in lines: k(l + " " + OPT['st'])
        return
    a, b = k.label("ps"), k.label("pe")
    k(f"s_cmp_eq_u32 s{SLOC}, 1")
    k(f"s_cbranch_scc1 {a}")
    for l in lines: k(l + " " + OPT['st'])
    k(f"s_branch {b}")
    k.place(a)
    for l in lines: k(l)
    k.place(b)

def flag_set(k, sline, val="1", local=False):
    k(f"s_lshl_b32 s40, s{sline}, 7")
    k(f"s_add_u32 s40, s40, {FLG}")
    k("s_mov_b64 exec, 1")
    k(f"v_mov_b32 v8, {val}")
    k("v_mov_b32 v9, 0")
    if local: pub_store(k, ["buffer_store_dword v8, v9, s[20:23], s40 offen"])
    else: k("buffer_store_dword v8, v9, s[20:23], s40 offen sc1")

def flag_poll(k, sline, n=32, slp=None):
    poll(k, sline, 1, n, slp, sh=7, base=FLG)

def poll(k, sidx, target, nlines=1, slp=None, sh=8, base=None):
    lp, out = k.label("poll"), k.label("pollx")
    k(f"s_lshl_b32 s40, s{sidx}, {sh}")
    k(f"s_add_u32 s40, s40, {CNT if base is None else base}")
    k(f"s_mov_b32 exec_lo, {hex((1 << nlines) - 1)}")
    k("s_mov_b32 exec_hi, 0")
    k(f"v_lshlrev_b32 v9, {sh}, v2")
    k("s_mov_b32 s41, 0")
    k.place(lp)
    slp = OPT.get('slp', 2) if slp is None else slp
    if slp: k(f"s_sleep {slp}")
    k("buffer_load_dword v10, v9, s[20:23], s40 offen sc1")
    k("s_add_u32 s41, s41, 1")
    k("s_cmp_gt_u32 s41, 0x40000")
    k(f"s_cbranch_scc1 {out}")
    k("s_waitcnt vmcnt(0)")
    k(f"v_cmp_gt_u32 vcc, {target}, v10" if target <= 64 else f"v_cmp_gt_u32 vcc, {hex(target)}, v10")
    k(f"s_cmp_lg_u64 vcc, 0")
    k(f"s_cbranch_scc1 {lp}")
    k.place(out)
    k("s_waitcnt vmcnt(0)")
    k("s_mov_b64 exec, -1")

def touch(k, base_s, nlines, reg=40):
    k("v_lshlrev_b32 v12, 7, v2")
    for i in range((nlines + 63)//64):
        rem = nlines - 64*i
        if rem < 64:
            k(f"s_mov_b32 exec_lo, {hex((1 << min(rem, 32)) - 1)}")
            k(f"s_mov_b32 exec_hi, {hex((1 << max(rem - 32, 0)) - 1)}")
        k(f"s_add_u32 s41, s{base_s}, {i*8192}")
        k(f"buffer_load_dword v{reg+i}, v12, s[20:23], s41 offen sc1")
    k("s_mov_b64 exec, -1")

def cold_touch(k):
    if OPT.get('t1', 1):
        l9, l10, l11 = k.label("t9"), k.label("t10"), k.label("t11")
        if OPT.get('t1d', 0): k(f"s_sleep {OPT['t1d']}")
        k(f"s_cmp_lg_u32 s{SW}, 9")
        k(f"s_cbranch_scc1 {l9}")
        srd(k, 44, 4, 2*MB)
        k("s_lshl_b32 s31, s2, 13")
        k("v_lshlrev_b32 v12, 7, v2")
        msk = sum(1 << i for i in range(32) if (i & 7) >= OPT.get('t1x', 0))
        k(f"s_mov_b32 exec_lo, {hex(msk)}")
        k(f"s_mov_b32 exec_hi, {hex(msk)}")
        k("buffer_load_dword v40, v12, s[44:47], s31 offen")
        k("s_mov_b64 exec, -1")
        k.place(l9)
        k(f"s_cmp_lg_u32 s{SW}, 10")
        k(f"s_cbranch_scc1 {l10}")
        k(f"s_cmp_lt_u32 s2, {32*OPT.get('t1x', 0)}")
        k(f"s_cbranch_scc1 {l10}")
        srd(k, 44, 6, 512*3072)
        k("s_mul_i32 s31, s2, 6144")
        k("v_lshlrev_b32 v12, 7, v2")
        k("s_mov_b32 exec_hi, 0xffff")
        k("buffer_load_dword v40, v12, s[44:47], s31 offen")
        k("s_mov_b64 exec, -1")
        k.place(l10)

def early_role(k):
    nt, tk, tkd = k.label("nt"), k.label("etk"), k.label("etkd")
    k(f"s_cmp_lg_u32 s{SW}, 8")
    k(f"s_cbranch_scc1 {nt}")
    k("s_getreg_b32 s56, hwreg(HW_REG_XCC_ID, 0, 4)")
    k("s_and_b32 s56, s56, 7")
    k("s_mov_b64 exec, 1")
    k("v_mov_b32 v46, 1")
    k.place(tk)
    k("s_lshl_b32 s57, s56, 5")
    k("s_add_u32 s57, s57, 16")
    k("v_mov_b32 v45, s57")
    k("global_atomic_add v44, v45, v46, s[60:61] sc0 sc1")
    k("s_waitcnt vmcnt(0)")
    k("v_readfirstlane_b32 s57, v44")
    k("s_add_u32 s58, s56, 1")
    k("s_cmp_lt_u32 s57, 32")
    k(f"s_cbranch_scc1 {tkd}")
    k("s_and_b32 s56, s58, 7")
    k(f"s_branch {tk}")
    k.place(tkd)
    k("s_lshl_b32 s57, s57, 3")
    k("s_or_b32 s57, s57, s56")
    k(f"v_mov_b32 v4, {ROLE}")
    k("v_mov_b32 v5, s57")
    k("ds_write_b32 v4, v5")
    k("s_mov_b64 exec, -1")
    k("s_waitcnt lgkmcnt(0)")
    k.place(nt)
    cold_touch(k)
    k("s_barrier")
    role_read(k, True)

def role_read(k, force=False):
    if OPT.get('dyn', 1) != 1 and not force: return
    k(f"v_mov_b32 v4, {ROLE}")
    k("ds_read_b32 v4, v4")
    k("s_waitcnt lgkmcnt(0)")
    k(f"v_readfirstlane_b32 s{SIDX}, v4")
    k.nop(1)
    k(f"s_and_b32 s{SXCD}, s{SIDX}, 7")
    k(f"s_lshr_b32 s{SIDX}, s{SIDX}, 3")
    if OPT.get('amap', 1):
        k(f"s_lshl_b32 s{SHEAD}, s{SXCD}, 2")
        k(f"s_and_b32 s{SQB}, s{SIDX}, 3")
        k(f"s_add_u32 s{SHEAD}, s{SHEAD}, s{SQB}")
        k(f"s_lshr_b32 s{SQB}, s{SIDX}, 2")
    else:
        k(f"s_mov_b32 s{SHEAD}, s{SIDX}")
        k(f"s_mov_b32 s{SQB}, s{SXCD}")

def p1_map(k):
    k(f"""
    s_lshr_b32 s27, s{SXCD}, 1
    s_lshl_b32 s27, s27, 3
    s_and_b32 s28, s{SIDX}, 7
    s_add_u32 s27, s27, s28
    s_and_b32 s28, s{SXCD}, 1
    s_lshl_b32 s28, s28, 2
    s_lshr_b32 s29, s{SIDX}, 3
    s_add_u32 s28, s28, s29
    """)
EXC = 65536 + 3*12288
EXS = 65536 + 2*12288

def p1_consumer(k):
    SRB, SCB = 27, 28
    VXA, VWA = 12, 16
    WB = [20, 32, 44, 56]; XB = [68, 72, 76, 80]; ACC = 84; CS = 132; SEL = 144
    k(f"""
    v_and_b32 v8, 31, v2
    v_lshrrev_b32 v4, 5, v2
    v_lshrrev_b32 v5, 1, v8
    v_and_b32 v5, 7, v5
    s_and_b32 s34, s{SW}, 1
    s_lshl_b32 s35, s34, 12
    v_lshlrev_b32 v6, 7, v8
    v_add_u32 v6, s35, v6
    """)
    for u in range(4):
        k(f"v_add_u32 v7, {2*u}, v4")
        k(f"v_xor_b32 v7, v7, v5")
        k(f"v_lshl_add_u32 v{VXA+u}, v7, 4, v6")
    k(f"""
    s_lshr_b32 s36, s{SW}, 1
    v_bfe_u32 v5, v2, 2, 2
    v_lshl_add_u32 v6, v4, 3, v5
    v_lshlrev_b32 v6, 7, v6
    v_bfe_u32 v7, v2, 4, 1
    v_lshlrev_b32 v7, 1, v7
    v_bfe_u32 v11, v2, 1, 1
    v_add_u32 v7, v7, v11
    s_lshl_b32 s37, s36, 2
    v_add_u32 v7, s37, v7
    v_lshrrev_b32 v5, 1, v5
    v_lshlrev_b32 v5, 2, v5
    v_xor_b32 v7, v7, v5
    v_lshl_add_u32 v6, v7, 4, v6
    v_and_b32 v7, 1, v2
    v_lshl_add_u32 v{VWA+1}, v7, 3, v6
    v_add_u32 v{VWA+1}, 0x10000, v{VWA+1}
    v_mov_b32 v{VWA}, v{VWA+1}
    v_and_b32 v5, 15, v2
    v_bfe_u32 v7, v2, 4, 1
    v_cmp_eq_u32 vcc, v5, v7
    v_mov_b32 v6, {hex(ONES)}
    s_mov_b32 s47, 0
    v_cndmask_b32 v{SEL}, 0, v6, vcc
    """)
    for i in range(1, 4): k(f"v_mov_b32 v{SEL+i}, v{SEL}")
    for i in range(60): k(f"v_mov_b32 v{ACC+i}, 0")
    k(f"""
    s_lshl_b32 s40, s{SCB}, 2
    s_lshl_b32 s41, s36, 1
    s_add_u32 s40, s40, s41
    s_lshl_b32 s40, s40, 16
    s_lshl_b32 s41, s{SRB}, 1
    s_add_u32 s41, s41, s34
    s_lshl_b32 s41, s41, 10
    s_add_u32 s40, s40, s41
    v_bfe_u32 v9, v2, 4, 1
    v_lshlrev_b32 v9, 16, v9
    v_lshl_add_u32 v9, v4, 8, v9
    v_lshl_add_u32 v9, v5, 4, v9
    s_add_u32 s43, s40, {QF + 65536}
    s_add_u32 s44, s40, {KF}
    s_add_u32 s45, s40, {KF + 65536}
    s_add_u32 s46, s40, {VF}
    s_mov_b32 s48, 0
    """)
    def xrd(u, b): k(f"ds_read_b128 v[{b}:{b+3}], v{VXA+u}")
    def wrd(u, b, p):
        for r in range(2):
            k(f"ds_read_b64_tr_b16 v[{b+4*p+2*r}:{b+4*p+2*r+1}], v{VWA} offset:{(u >> 1)*12288 + p*4096 + (u & 1)*2048 + r*512}")
    stamp(k, 0)
    k("s_barrier")
    stamp(k, 1)
    for u in range(2):
        xrd(u, XB[u])
        for p in range(3): wrd(u, WB[u], p)
    odd, ep = k.label("p1odd"), k.label("p1ep")
    k("s_cmp_eq_u32 s34, 1")
    k(f"s_cbranch_scc1 {odd}")
    for par in range(2):
        if par == 1: k.place(odd)
        ml = k.label("p1ml")
        k(".p2align 3")
        k.place(ml)
        for u in range(4):
            if u == 2:
                k("s_add_u32 s48, s48, 24576")
                k(f"s_cmp_eq_u32 s48, {8*12288}")
                k("s_cselect_b32 s48, 0, s48")
                k(f"v_add_u32 v{VXA}, 8192, v{VXA}")
                k(f"v_add_u32 v{VXA+1}, 8192, v{VXA+1}")
                k("s_barrier")
                k(f"v_add_u32 v{VWA}, s48, v{VWA+1}")
            b, x = WB[u], XB[u]
            nu = (u+2) & 3
            cs = (u & 1) == par and not OPT.get('z_nocs')
            k("s_waitcnt lgkmcnt(7)")
            k(f"{MFMA} v[{ACC}:{ACC+15}], v[{b}:{b+3}], v[{x}:{x+3}], v[{ACC}:{ACC+15}]")
            xrd(nu, XB[nu])
            wrd(nu, WB[nu], 0)
            if cs: k(f"{MF16} v[{CS}:{CS+3}], v[{SEL}:{SEL+3}], v[{b}:{b+3}], v[{CS}:{CS+3}]")
            k(f"{MFMA} v[{ACC+16}:{ACC+31}], v[{b+4}:{b+7}], v[{x}:{x+3}], v[{ACC+16}:{ACC+31}]")
            wrd(nu, WB[nu], 1)
            if cs: k(f"{MF16} v[{CS+4}:{CS+7}], v[{SEL}:{SEL+3}], v[{b+4}:{b+7}], v[{CS+4}:{CS+7}]")
            k(f"{MFMA} v[{ACC+32}:{ACC+47}], v[{x}:{x+3}], v[{b+8}:{b+11}], v[{ACC+32}:{ACC+47}]")
            wrd(nu, WB[nu], 2)
            if cs: k(f"{MF16} v[{CS+8}:{CS+11}], v[{SEL}:{SEL+3}], v[{b+8}:{b+11}], v[{CS+8}:{CS+11}]")
            if u == 3:
                for q in range(2, 4): k(f"v_add_u32 v{VXA+q}, 8192, v{VXA+q}")
                k("s_add_u32 s47, s47, 1")
                k("s_cmp_lt_u32 s47, 8")
        k(f"s_cbranch_scc1 {ml}")
        if par == 0: k(f"s_branch {ep}")
    k.place(ep)
    stamp(k, 2)
    k(f"""
    s_lshl_b32 s35, s34, 1
    s_add_u32 s35, s35, s36
    s_mul_i32 s35, s35, 384
    s_add_u32 s35, s35, {EXC}
    v_lshl_add_u32 v5, v2, 2, s35
    s_mul_i32 s37, s36, 384
    s_add_u32 s37, s37, {EXC}
    v_lshl_add_u32 v6, v4, 4, s37
    v_lshl_add_u32 v7, v8, 2, s37
    s_lshl_b32 s38, s34, 7
    s_add_u32 s38, s38, {EXS}
    v_lshl_add_u32 v10, v8, 2, s38
    v_lshl_add_u32 v11, v4, 4, s38
    s_mov_b64 exec, 0xffff
    """)
    for p in range(3):
        k(f"ds_write2_b32 v5, v{CS+4*p}, v{CS+4*p+1} offset0:{32*p} offset1:{32*p+16}")
    k("s_mov_b64 exec, -1")
    k("s_waitcnt lgkmcnt(0)")
    k("s_barrier")
    A, B, RSV, NBV = 20, 36, 52, 68
    RS, NB, CV = 132, 134, 136
    k(f"ds_read_b32 v{RS}, v10")
    k(f"ds_read_b32 v{NB}, v10 offset:256")
    def csrd(p):
        for g in range(4):
            k(f"ds_read_b128 v[{A+4*g}:{A+4*g+3}], v6 offset:{p*128 + g*32}")
            k(f"ds_read_b128 v[{B+4*g}:{B+4*g+3}], v6 offset:{768 + p*128 + g*32}")
    csrd(0)
    k(f"ds_read_b32 v{CV}, v7 offset:256")
    k(f"ds_read_b32 v{CV+1}, v7 offset:{768 + 256}")
    k(f"s_mov_b32 s42, {hex(f32(0.25*math.log2(math.e)))}")
    k("s_waitcnt lgkmcnt(10)")
    k(f"v_mul_f32 v138, s42, v{RS}")
    k(f"v_mul_f32 v140, s42, v{NB}")
    st = OPT['st']
    P = 144
    def fold(acc, rs, nb):
        for r in range(0, 16, 2):
            k(f"v_pk_add_f32 v[{A+r}:{A+r+1}], v[{A+r}:{A+r+1}], v[{B+r}:{B+r+1}]")
        for r in range(0, 16, 2):
            k(f"v_pk_mul_f32 v[{A+r}:{A+r+1}], v[{A+r}:{A+r+1}], v[{nb}:{nb+1}] op_sel_hi:[1,0]")
        for r in range(0, 16, 2):
            k(f"v_pk_fma_f32 v[{acc+r}:{acc+r+1}], v[{acc+r}:{acc+r+1}], v[{rs}:{rs+1}], v[{A+r}:{A+r+1}] op_sel_hi:[1,0,1]")
    def pack(acc, p, so0, so1, va, off1=0):
        for d in range(8):
            k(f"v_cvt_pk_bf16_f32 v{p+d}, v{acc+2*d}, v{acc+2*d+1}")
            if d == 3: k(f"buffer_store_dwordx4 v[{p}:{p+3}], v{va}, s[20:23], s{so0} offen {st}")
        k(f"buffer_store_dwordx4 v[{p+4}:{p+7}], v{va}, s[20:23], s{so1} offen" + (f" offset:{off1}" if off1 else "") + f" {st}")
    k("s_waitcnt lgkmcnt(2)")
    fold(ACC, 138, 140)
    csrd(1)
    for g in range(4):
        k(f"ds_read_b128 v[{RSV+4*g}:{RSV+4*g+3}], v11 offset:{g*32}")
    pack(ACC, P, 40, 43, 3)
    k("s_waitcnt lgkmcnt(4)")
    for g in range(4):
        k(f"ds_read_b128 v[{NBV+4*g}:{NBV+4*g+3}], v11 offset:{256 + g*32}")
    fold(ACC+16, RS, NB)
    pack(ACC+16, P+8, 44, 45, 3)
    k(f"v_add_f32 v{CV}, v{CV}, v{CV+1}")
    k("s_waitcnt lgkmcnt(0)")
    for r in range(0, 16, 2):
        k(f"v_pk_mul_f32 v[{NBV+r}:{NBV+r+1}], v[{NBV+r}:{NBV+r+1}], v[{CV}:{CV+1}] op_sel_hi:[1,0]")
    for r in range(0, 16, 2):
        k(f"v_pk_fma_f32 v[{ACC+32+r}:{ACC+33+r}], v[{ACC+32+r}:{ACC+33+r}], v[{RSV+r}:{RSV+r+1}], v[{NBV+r}:{NBV+r+1}]")
    pack(ACC+32, P+16, 46, 46, 9, 512)
    stamp(k, 3)
    k("s_waitcnt vmcnt(0)")
    k("s_barrier")
    role_read(k)
    k("s_barrier")

def relayout(k):
    st = OPT['st']
    PRE = [16, 44, 80]
    k(f"""
    v_and_b32 v6, 31, v2
    v_lshrrev_b32 v7, 5, v2
    v_lshlrev_b32 v12, 10, v6
    v_lshl_add_u32 v12, v7, 3, v12
    v_mul_u32_u24 v13, {4*2752}, v7
    v_lshl_add_u32 v13, v6, 1, v13
    v_lshlrev_b32 v14, 12, v7
    v_lshl_add_u32 v14, v6, 1, v14
    s_lshl_b32 s42, s2, 3
    s_mul_i32 s43, s29, 3
    s_add_u32 s42, s42, s43
    """)
    def wload(reg, voffreg, soffreg, pitch):
        for j in range(8):
            row = 8*(j >> 2) + (j & 3)
            k(f"s_add_u32 s49, s{soffreg}, {row*pitch}")
            k(f"buffer_load_ushort v{reg+j}, v{voffreg}, s[44:47], s49 offen")
    def item_loads(i):
        P_, D0 = PRE[i], (37, 52, 32)[i]
        k(f"s_add_u32 s{D0+2}, s42, {i}")
        if i == 2:
            k("s_cmp_eq_u32 s29, 2")
            k(f"s_cselect_b32 s{D0+2}, 0xfff, s{D0+2}")
        G = D0 + 2
        srd(k, 44, 4, 2*MB)
        k(f"""
        s_lshr_b32 s43, s{G}, 5
        s_lshl_b32 s43, s43, 15
        s_and_b32 s48, s{G}, 31
        s_lshl_b32 s48, s48, 5
        s_add_u32 s43, s43, s48
        buffer_load_dwordx2 v[{P_}:{P_+1}], v12, s[44:47], s43 offen
        buffer_load_dwordx2 v[{P_+2}:{P_+3}], v12, s[44:47], s43 offen offset:16
        s_mov_b32 s50, {(2**32 + 42)//43}
        s_mul_hi_u32 s51, s{G}, s50
        s_mul_i32 s58, s51, 43
        s_sub_u32 s58, s{G}, s58
        s_mul_i32 s59, s51, {16*2752}
        s_lshl_b32 s48, s58, 6
        s_add_u32 s59, s59, s48
        s_lshl_b32 s{D0}, s58, 5
        s_add_u32 s{D0}, s{D0}, s51
        s_lshl_b32 s{D0}, s{D0}, 10
        s_cmp_lt_u32 s{G}, 1376
        s_cselect_b32 s50, {512*2752}, 0
        s_mov_b32 s44, s12
        s_and_b32 s45, s13, 0xffff
        s_mov_b32 s46, s50
        """)
        wload(P_+4, 13, 59, 2752)
        k("s_mov_b32 s44, s14")
        k("s_and_b32 s45, s15, 0xffff")
        wload(P_+12, 13, 59, 2752)
        k(f"""
        s_sub_u32 s48, s{G}, 1376
        s_cmp_lt_u32 s{G}, 1376
        s_cselect_b32 s48, s{G}, s48
        s_cselect_b32 s44, s16, s8
        s_cselect_b32 s45, s17, s9
        s_cselect_b32 s46, {1376*1024}, 0
        s_cselect_b32 s50, 86, 32
        s_cselect_b32 s43, {WDF - WOF}, 0
        s_and_b32 s45, s45, 0xffff
        s_sub_u32 s51, s{G}, 1376
        s_cmp_lt_u32 s51, 512
        s_cselect_b32 s46, {512*1024}, s46
        s_and_b32 s58, s48, 15
        s_lshr_b32 s51, s48, 4
        s_lshl_b32 s59, s51, 14
        s_lshl_b32 s48, s58, 6
        s_add_u32 s59, s59, s48
        s_mul_i32 s{D0+1}, s58, s50
        s_add_u32 s{D0+1}, s{D0+1}, s51
        s_lshl_b32 s{D0+1}, s{D0+1}, 10
        s_add_u32 s{D0+1}, s{D0+1}, s43
        """)
        wload(P_+20, 14, 59, 1024)
    def pack_store(reg, dstreg, base):
        for d in range(4):
            k(f"v_lshl_or_b32 v{reg+d}, v{reg+2*d+1}, 16, v{reg+2*d}")
        k(f"s_add_u32 s49, s{dstreg}, {base}")
        k(f"buffer_store_dwordx4 v[{reg}:{reg+3}], v3, s[20:23], s49 offen {st}")
    def item_stores(i):
        P_, D0 = PRE[i], (37, 52, 32)[i]
        G = D0 + 2
        l1, l2 = k.label("is1"), k.label("is2")
        if i == 2:
            k("s_cmp_eq_u32 s29, 2")
            k(f"s_cbranch_scc1 {l2}")
        k(f"s_lshl_b32 s43, s{G}, 10")
        k(f"s_add_u32 s43, s43, {XF}")
        k(f"buffer_store_dwordx4 v[{P_}:{P_+3}], v3, s[20:23], s43 offen {st}")
        k(f"s_cmp_lt_u32 s{G}, 1376")
        k(f"s_cbranch_scc0 {l1}")
        pack_store(P_+4, D0, WGF)
        pack_store(P_+12, D0, WUF)
        k.place(l1)
        k(f"s_cmp_lt_u32 s{G}, 1888")
        k(f"s_cbranch_scc0 {l2}")
        pack_store(P_+20, D0+1, WOF)
        k.place(l2)
    return item_loads, item_stores

def p1_loader(k):
    SRB, SCB = 27, 28
    VXE, VXO, VW = 8, 9, 10
    k(f"""
    s_sub_u32 s29, s{SW}, 4
    v_lshrrev_b32 v11, 3, v2
    v_and_b32 v4, 7, v2
    v_lshrrev_b32 v5, 4, v2
    v_xor_b32 v6, v4, v5
    v_lshlrev_b32 v6, 4, v6
    s_lshl_b32 s35, s29, 4
    v_add_u32 v7, s35, v11
    v_lshlrev_b32 v12, 10, v7
    v_add_u32 v{VXE}, v12, v6
    v_xor_b32 v6, 64, v6
    v_add_u32 v{VXO}, v12, v6
    v_add_u32 v{VXO}, 8192, v{VXO}
    s_lshl_b32 s35, s29, 3
    v_add_u32 v7, s35, v11
    v_and_b32 v5, 1, v5
    v_lshlrev_b32 v5, 2, v5
    v_xor_b32 v5, v4, v5
    v_lshlrev_b32 v5, 4, v5
    v_mul_u32_u24 v7, 3072, v7
    v_add_u32 v{VW}, v7, v5
    s_lshl_b32 s31, s29, 10
    s_lshl_b32 s36, s29, 11
    s_lshl_b32 s30, s{SRB}, 16
    s_lshl_b32 s32, s{SCB}, 7
    """)
    srd(k, 52, 4, 2*MB)
    srd(k, 56, 6, 512*3072)
    n = lambda c: 3 + (0 if c & 1 else 2)
    def issue(c):
        if OPT.get('z_nodma1') and c > 2: return
        if not c & 1:
            k(f"s_add_u32 s33, s30, {(c//2)*128}")
            for o in range(2):
                dma(k, VXE if o == 0 else VXO, 52, 33, f"s36, {(c//2)*8192 + o*1024}")
        for p in range(3):
            k(f"s_add_u32 s33, s32, {32*c*3072 + p*1024}")
            dma(k, VW, 56, 33, f"s31, {65536 + (c % 8)*12288 + p*4096}")
    issued = OPT.get('d1', 4)
    for c in range(issued): issue(c)
    for P in range(9):
        k(f"s_waitcnt vmcnt({sum(n(j) for j in range(2*P+2, issued))})")
        k("s_barrier")
        m = 0
        while issued < 16 and issued - 8 <= 2*P - 3 and m < 4:
            issue(issued); issued += 1; m += 1
    k("s_barrier")
    k("s_barrier")
    role_read(k)
    k("s_barrier")

RLAB = [None]
def p1_helper(k):
    RLAB[0] = k.label('RL')
    k(f"s_setprio {OPT.get('hprio', 3)}")
    X, SQ, SX, T, RS, NB = 16, 24, 28, 32, 36, 38
    init_done = k.label("initd")
    k(f"""
    s_cmp_lg_u32 s{SW}, 8
    s_cbranch_scc1 {init_done}
    s_lshl_b32 s30, s2, 7
    s_add_u32 s30, s30, {FLG}
    v_lshl_add_u32 v4, v2, 15, s30
    s_and_b32 s30, s2, 7
    s_lshl_b32 s30, s30, 8
    s_add_u32 s30, s30, {CNT + CW*256}
    v_mov_b32 v5, 0
    v_writelane_b32 v4, s30, 5
    s_mov_b64 exec, 63
    buffer_store_dword v5, v4, s[20:23], 0 offen sc1
    s_mov_b64 exec, -1
    """)
    k.place(init_done)
    if OPT.get('dyn', 1) == 1:
        tkx = k.label("tkx")
        def ticket():
            k("s_lshl_b32 s57, s56, 5")
            k("s_add_u32 s57, s57, 16")
            k("s_mov_b64 exec, 1")
            k("v_mov_b32 v45, s57")
            k("v_mov_b32 v46, 1")
            k("global_atomic_add v44, v45, v46, s[60:61] sc0 sc1")
            k("s_mov_b64 exec, -1")
        def first_ticket():
            k(f"s_cmp_lg_u32 s{SW}, 8")
            k(f"s_cbranch_scc1 {tkx}")
            k("s_getreg_b32 s56, hwreg(HW_REG_XCC_ID, 0, 4)")
            k("s_and_b32 s56, s56, 7")
            k("s_waitcnt vmcnt(0)")
            ticket()
            k.place(tkx)
        if OPT.get('tkat', 5) < 0: first_ticket()
    k(f"""
    s_sub_u32 s29, s{SW}, 8
    s_lshl_b32 s30, s29, 10
    v_add_u32 v4, s30, v3
    s_mov_b32 s39, {hex(ONES)}
    """)
    if OPT.get('dyn', 1) != 2: cold_touch(k)
    for c in range(9):
        k("s_barrier")
        if OPT.get('dyn', 1) == 1 and c == OPT.get('tkat', 5): first_ticket()
        if OPT.get('dyn', 1) == 2 and c == OPT.get('tkat', 5):
            l2 = k.label("cl2")
            k(f"s_cmp_lg_u32 s{SW}, 8")
            k(f"s_cbranch_scc1 {l2}")
            k(f"s_lshl_b32 s57, s{SXCD}, 5")
            k("s_mov_b64 exec, 1")
            k("v_mov_b32 v45, s57")
            k("v_mov_b32 v46, 1")
            k("s_waitcnt vmcnt(0)")
            k("global_atomic_add v45, v46, s[60:61] offset:20 sc1")
            k("s_mov_b64 exec, -1")
            k.place(l2)
        if c == OPT.get('tcat', 7):
            l11 = k.label("t11b")
            k(f"s_cmp_lg_u32 s{SW}, 11")
            k(f"s_cbranch_scc1 {l11}")
            if True:
                here = k.label("here")
                k("s_getpc_b64 s[44:45]")
                k.place(here)
                k(f"s_sub_u32 s44, s44, {here}-{NAME}")
                k("s_subb_u32 s45, s45, 0")
                k("v_lshlrev_b32 v12, 7, v2")
                for i in range(4):
                    k(f"global_load_dword v{40+i}, v12, s[44:45]")
                    if i < 3: k("v_add_u32 v12, 8192, v12")
            k.place(l11)

        if c < 8 and not (OPT.get('z_nostat') and c > 0):
            cc = c
            k(f"ds_read_b128 v[{X}:{X+3}], v4 offset:{cc*8192}")
            k(f"ds_read_b128 v[{X+4}:{X+7}], v4 offset:{cc*8192 + 4096}")
            for hf in range(2):
                k(f"s_waitcnt lgkmcnt({1-hf})")
                for d in range(4):
                    r = X + 4*hf + d
                    q, sx = SQ + 2*hf + (d & 1), SX + 2*hf + (d & 1)
                    first = (cc == 0 and d < 2)
                    k(f"v_dot2_f32_bf16 v{q}, v{r}, v{r}, {'0' if first else 'v%d' % q}")
                    k(f"v_dot2_f32_bf16 v{sx}, v{r}, s39, {'0' if first else 'v%d' % sx}")
        if c == 7:
            k.nop(3)
            k(f"v_add_f32 v{SQ}, v{SQ}, v{SQ+1}")
            k(f"v_add_f32 v{SQ+2}, v{SQ+2}, v{SQ+3}")
            k(f"v_add_f32 v{SX}, v{SX}, v{SX+1}")
            k(f"v_add_f32 v{SX+2}, v{SX+2}, v{SX+3}")
            row8_sum(k, [SQ, SQ+2, SX, SX+2])
        if c == 7:
            for hf in range(2):
                finish_stats(k, SX + 2*hf, SQ + 2*hf, RS + hf, NB + hf, T, T+1)
            k(f"""
            v_lshrrev_b32 v5, 3, v2
            s_lshl_b32 s30, s29, 5
            s_add_u32 s30, s30, {EXS}
            v_lshl_add_u32 v5, v5, 2, s30
            ds_write2_b32 v5, v{RS}, v{RS+1} offset0:0 offset1:32
            ds_write2_b32 v5, v{NB}, v{NB+1} offset0:64 offset1:96
            """)
            nm = k.label("nomx")
            k(f"""
            s_cmp_lg_u32 s28, 0
            s_cbranch_scc1 {nm}
            s_lshl_b32 s30, s27, 8
            s_lshl_b32 s31, s29, 5
            s_add_u32 s30, s30, s31
            s_add_u32 s30, s30, {MX}
            v_lshrrev_b32 v5, 3, v2
            v_lshlrev_b32 v5, 2, v5
            s_mov_b32 exec_lo, 0x01010101
            s_mov_b32 exec_hi, 0x01010101
            buffer_store_dword v{SX}, v5, s[20:23], s30 offen sc1
            buffer_store_dword v{SX+2}, v5, s[20:23], s30 offen offset:128 sc1
            s_mov_b64 exec, -1
            """)
            k.place(nm)
    k("s_waitcnt lgkmcnt(0)")
    k("s_barrier")
    if OPT.get('dyn', 1) == 1:
        nw = k.label("nrw")
        k(f"s_cmp_lg_u32 s{SW}, 8")
        k(f"s_cbranch_scc1 {nw}")
        tk, tkd = k.label("tk"), k.label("tkd")
        k.place(tk)
        k("s_waitcnt vmcnt(0)")
        k("v_readfirstlane_b32 s57, v44")
        k.nop(1)
        k("s_cmp_lt_u32 s57, 32")
        k(f"s_cbranch_scc1 {tkd}")
        k("s_add_u32 s56, s56, 1")
        k("s_and_b32 s56, s56, 7")
        ticket()
        k(f"s_branch {tk}")
        k.place(tkd)
        k("s_lshl_b32 s57, s57, 3")
        k("s_or_b32 s57, s57, s56")
        k(f"v_mov_b32 v4, {ROLE}")
        k("v_mov_b32 v5, s57")
        k("ds_write_b32 v4, v5")
        k("s_waitcnt lgkmcnt(0)")
        k.place(nw)
    k("s_waitcnt vmcnt(0)")
    k("s_barrier")
    role_read(k)
    stamp(k, 0)
    k(f"s_cmp_lg_u32 s{SW}, 8")
    k(f"s_cbranch_scc1 {RLAB[0]}")
    k(f"v_mov_b32 v4, {PROG}")
    k("v_mov_b32 v5, 0")
    for o in (0, 16, 32, 48): k(f"ds_write_b32 v4, v5 offset:{o}")
    g, gx = k.label("gate"), k.label("gatex")
    k("s_mov_b32 s41, 0")
    k("v_lshlrev_b32 v9, 5, v2")
    k("s_mov_b64 exec, 0xff")
    k.place(g)
    k(f"global_load_dword v10, v9, s[60:61] offset:{16 if OPT.get('dyn', 1) == 1 else 20} sc1")
    k("s_add_u32 s41, s41, 1")
    k("s_cmp_gt_u32 s41, 0x40000")
    k(f"s_cbranch_scc1 {gx}")
    k("s_waitcnt vmcnt(0)")
    k("v_cmp_gt_u32 vcc, 32, v10")
    k("s_cmp_eq_u64 vcc, 0")
    k(f"s_cbranch_scc1 {gx}")
    k("s_sleep 8")
    k(f"s_branch {g}")
    k.place(gx)
    stamp(k, 1)
    k(f"s_lshl_b32 s42, s28, 5")
    k(f"s_add_u32 s42, s42, s27")
    flag_set(k, 42)
    k("s_getreg_b32 s58, hwreg(HW_REG_XCC_ID, 0, 4)")
    k("s_add_u32 s58, s58, 1")
    k(f"s_lshl_b32 s42, s{SXCD}, 5")
    k(f"s_add_u32 s42, s42, s{SIDX}")
    k(f"s_add_u32 s42, s42, {FX}")
    flag_set(k, 42, "s58")
    k(f"s_lshr_b32 s42, s{SHEAD}, 2")
    k(f"s_lshl_b32 s42, s42, 5")
    flag_poll(k, 42)
    stamp(k, 2)
    k("s_waitcnt lgkmcnt(0)")
    k("s_barrier")

def rowmax(k, S, dst, t1, t2):
    k(f"v_max3_f32 v{dst}, v{S}, v{S+1}, v{S+2}")
    k(f"v_max3_f32 v{t1}, v{S+3}, v{S+4}, v{S+5}")
    k(f"v_max3_f32 v{dst}, v{dst}, v{S+6}, v{S+7}")
    k(f"v_max3_f32 v{t1}, v{t1}, v{S+8}, v{S+9}")
    k(f"v_max3_f32 v{dst}, v{dst}, v{S+10}, v{S+11}")
    k(f"v_max3_f32 v{t1}, v{t1}, v{S+12}, v{S+13}")
    k(f"v_max3_f32 v{dst}, v{dst}, v{S+14}, v{S+15}")
    k(f"v_max_f32 v{t1}, v{dst}, v{t1}")
    k(f"v_mov_b32 v{t2}, v{t1}")
    k.nop(2)
    k(f"v_permlane32_swap_b32 v{t1}, v{t2}")
    k.nop(1)
    k(f"v_max_f32 v{dst}, v{t1}, v{t2}")

def p2_compute(k, tail):
    Q = 8; KB = [12, 16]; V1 = [20, 28]; V2 = [24, 32]; P = 36; SS = [48, 64]; CN = 80; O = 96
    VKA, VVA, VINC = 4, 5, 47
    PRG, VPR = 112, 6
    chk, spin = k.label("chk"), k.label("spin")
    def spinf(k):
        k.place(spin)
        k("s_sleep 1")
        k(f"ds_read_b32 v{PRG}, v{VPR}")
        k("s_waitcnt lgkmcnt(0)")
        k(f"s_branch {chk}")
    tail.append(spinf)
    k(f"""
    s_lshl_b32 s30, s{SQB}, 3
    s_add_u32 s30, s30, s{SW}
    s_lshl_b32 s31, s30, 10
    s_lshl_b32 s29, s{SHEAD}, 16
    s_add_u32 s31, s31, s29
    buffer_load_dwordx4 v[{Q}:{Q+3}], v3, s[20:23], s31 offen {OPT['ld']}
    v_mov_b32 v{VKA}, v3
    v_lshrrev_b32 v6, 5, v2
    v_lshlrev_b32 v6, 8, v6
    v_and_b32 v7, 15, v2
    v_lshl_add_u32 v{VVA}, v7, 4, v6
    v_add_u32 v{VVA}, 0x10000, v{VVA}
    v_and_b32 v6, 31, v2
    v_add_u32 v7, -20, v6
    v_cmp_gt_u32 vcc, 8, v7
    v_mov_b32 v44, {CSTRIP}
    v_mov_b32 v45, {CSTRIP + 64}
    v_cndmask_b32 v44, v44, v45, vcc
    v_and_b32 v7, 27, v2
    v_cmp_eq_u32 vcc, 16, v7
    v_add_u32 v45, 16, v44
    s_nop 0
    v_cndmask_b32 v44, v44, v45, vcc
    v_cmp_gt_u32 vcc, 16, v6
    v_mov_b32 v45, 8192
    s_nop 0
    v_cndmask_b32 v{VVA}, v44, v{VVA}, vcc
    v_cndmask_b32 v{VINC}, 0, v45, vcc
    """)
    k(f"v_mov_b32 v{VPR}, {PROG}")
    for r in range(4): k(f"v_mov_b32 v{V2[1]+r}, 0")
    for r in range(8): k(f"v_mov_b32 v{P+r}, 0")
    for r in range(16): k(f"v_mov_b32 v{O+r}, 0")
    def vread(kk, buf, off):
        kk(f"ds_read_b128 v[{V1[buf]}:{V1[buf]+3}], v{VVA} offset:{off}")
        kk(f"ds_read_b128 v[{V2[buf]}:{V2[buf]+3}], v{VVA} offset:{off+512}")
    stamp(k, 4)
    k("s_barrier")
    stamp(k, 5)
    k(f"ds_read_b128 v[{KB[0]}:{KB[0]+3}], v{VKA}")
    k(f"ds_read_b128 v[{KB[1]}:{KB[1]+3}], v{VKA} offset:1024")
    vread(k, 0, 0)
    k("s_waitcnt vmcnt(0) lgkmcnt(3)")
    k(f"{MFMA} v[{SS[0]}:{SS[0]+15}], v[{KB[0]}:{KB[0]+3}], v[{Q}:{Q+3}], 0")
    k.nop(12)
    rowmax(k, SS[0], 44, 45, 46)
    for r in range(16): k(f"v_sub_f32 v{CN+r}, 0, v44")
    k.nop(2)
    k(f"{MFMA} v[{SS[0]}:{SS[0]+15}], v[{KB[0]}:{KB[0]+3}], v[{Q}:{Q+3}], v[{CN}:{CN+15}]")
    k("s_mov_b32 s38, 0")
    k.nop(10)
    loop = k.label("loop")
    k(".p2align 6")
    k.place(loop)
    pr = OPT['prio']
    for t in range(8):
        cur, nx = SS[t & 1], SS[(t+1) & 1]
        e = lambda i: k(f"v_exp_f32 v{cur+i}, v{cur+i}")
        c = lambda i: k(f"v_cvt_pk_bf16_f32 v{P+i}, v{cur+2*i}, v{cur+2*i+1}")
        k("s_waitcnt lgkmcnt(0)")
        if t == 6:
            k.place(chk)
            k(f"v_cmp_ge_u32 vcc, s38, v{PRG}")
            k("s_cmp_lg_u64 vcc, 0")
            k(f"s_cbranch_scc1 {spin}")
        kb = KB[(t+1) & 1]
        pb = (t+1) & 1
        sp = (lambda n: k(f"s_setprio {n}")) if pr else (lambda n: None)
        k(f"{MFMA} v[{nx}:{nx+15}], v[{kb}:{kb+3}], v[{Q}:{Q+3}], v[{CN}:{CN+15}]")
        sp(0)
        k(f"ds_read_b128 v[{KB[t&1]}:{KB[t&1]+3}], v{VKA} offset:{(t+2)*1024}")
        e(0); e(1)
        k(f"{MFMA} v[{O}:{O+15}], v[{V2[pb]}:{V2[pb]+3}], v[{P+4}:{P+7}], v[{O}:{O+15}]")
        vread(k, pb, (t+1)*1024)
        if t == 5: k(f"ds_read_b32 v{PRG}, v{VPR}")
        e(2); e(3); sp(1); c(0); e(4); e(5); c(1); e(6); e(7); sp(2); c(2); e(8); e(9); c(3); e(10); e(11)
        k(f"{MFMA} v[{O}:{O+15}], v[{V1[t&1]}:{V1[t&1]+3}], v[{P}:{P+3}], v[{O}:{O+15}]")
        c(4); e(12); e(13); sp(3); c(5); e(14); e(15); c(6)
        if t == 7:
            k(f"v_add_u32 v{VKA}, 8192, v{VKA}")
            k(f"v_add_u32 v{VVA}, v{VINC}, v{VVA}")
            k("s_add_u32 s38, s38, 1")
            k(f"v_mov_b32 v{PRG}, s38")
            k(f"ds_write_b32 v{VPR}, v{PRG} offset:32")
            k("s_cmp_lt_u32 s38, 8")
        c(7)
    k(f"s_cbranch_scc1 {loop}")
    k("s_setprio 0")
    stamp(k, 6)
    k.nop(1)
    k(f"{MFMA} v[{O}:{O+15}], v[{V2[1]}:{V2[1]+3}], v[{P+4}:{P+7}], v[{O}:{O+15}]")
    k(f"ds_read_b32 v{PRG}, v{VPR} offset:16")
    k("s_waitcnt lgkmcnt(0)")
    k(f"v_readfirstlane_b32 s{SLOC}, v{PRG}")
    k.nop(11)
    fb, fin = k.label("fb"), k.label("fin")
    k(f"""
    v_max3_f32 v44, abs(v{O}), abs(v{O+1}), abs(v{O+2})
    v_max3_f32 v45, abs(v{O+3}), abs(v{O+4}), abs(v{O+5})
    v_max3_f32 v44, v44, abs(v{O+6}), abs(v{O+7})
    v_add_f32 v46, v{O}, v{O+1}
    v_max3_f32 v44, v44, v45, v{O+8}
    s_mov_b32 s39, {hex(f32(2.0**100))}
    """)
    for r in range(2, 9): k(f"v_add_f32 v46, v46, v{O+r}")
    k(f"v_and_b32 v46, 0x7fffffff, v46")
    k(f"v_cmp_ngt_f32 vcc, s39, v44")
    k(f"v_cmp_ngt_f32 s[40:41], s39, v46")
    k.nop(1)
    k("s_or_b64 s[40:41], s[40:41], vcc")
    k("s_cmp_lg_u64 s[40:41], 0")
    k(f"s_cbranch_scc1 {fb}")
    k.place(fin)
    k(f"v_rcp_f32 v44, v{O+8}")
    k(f"s_lshl_b32 s40, s30, 15")
    k(f"s_lshl_b32 s41, s{SHEAD}, 10")
    k(f"s_add_u32 s40, s40, s41")
    k(f"s_add_u32 s40, s40, {OF}")
    for r in range(8): k(f"v_mul_f32 v{O+r}, v{O+r}, v44")
    for r in range(4): k(f"v_cvt_pk_bf16_f32 v{P+r}, v{O+2*r}, v{O+2*r+1}")
    pub_store(k, [f"buffer_store_dwordx4 v[{P}:{P+3}], v3, s[20:23], s40 offen"], 0)
    k("s_waitcnt vmcnt(0)")
    k("s_barrier")
    k("s_barrier")
    def fallback(k):
        k.place(fb)
        k(f"v_mov_b32 v{VKA}, v3")
        k(f"v_lshlrev_b32 v44, 3, v{VINC}")
        k(f"v_sub_u32 v{VVA}, v{VVA}, v44")
        k(f"v_lshrrev_b32 v{VINC}, 3, v{VINC}")
        k(f"v_mov_b32 v7, 0xff7fffff")
        for r in range(16): k(f"v_mov_b32 v{O+r}, 0")
        k("s_mov_b32 s38, 0")
        fl = k.label("fl")
        k.place(fl)
        S = SS[0]
        k(f"ds_read_b128 v[{KB[0]}:{KB[0]+3}], v{VKA}")
        vread(k, 0, 0)
        k("s_waitcnt lgkmcnt(0)")
        k(f"{MFMA} v[{S}:{S+15}], v[{KB[0]}:{KB[0]+3}], v[{Q}:{Q+3}], 0")
        k.nop(14)
        rowmax(k, S, 44, 45, 46)
        k("v_max_f32 v44, v44, v7")
        k("v_sub_f32 v45, v7, v44")
        k("v_exp_f32 v45, v45")
        k("v_mov_b32 v7, v44")
        for r in range(16): k(f"v_sub_f32 v{S+r}, v{S+r}, v44")
        for r in range(16): k(f"v_mul_f32 v{O+r}, v{O+r}, v45")
        for r in range(16): k(f"v_exp_f32 v{S+r}, v{S+r}")
        k.nop(1)
        for r in range(8): k(f"v_cvt_pk_bf16_f32 v{P+r}, v{S+2*r}, v{S+2*r+1}")
        k.nop(2)
        k(f"{MFMA} v[{O}:{O+15}], v[{V1[0]}:{V1[0]+3}], v[{P}:{P+3}], v[{O}:{O+15}]")
        k(f"{MFMA} v[{O}:{O+15}], v[{V2[0]}:{V2[0]+3}], v[{P+4}:{P+7}], v[{O}:{O+15}]")
        k(f"v_add_u32 v{VKA}, 1024, v{VKA}")
        k(f"v_add_u32 v{VVA}, v{VINC}, v{VVA}")
        k("s_add_u32 s38, s38, 1")
        k("s_cmp_lt_u32 s38, 64")
        k.nop(14)
        k(f"s_cbranch_scc1 {fl}")
        k(f"s_branch {fin}")
    tail.append(fallback)

def p2_relayout(k):
    k(f"""
    s_sub_u32 s29, s{SW}, 9
    v_lshrrev_b32 v4, 2, v2
    s_lshl_b32 s35, s29, 4
    v_add_u32 v4, s35, v4
    v_cmp_gt_u32 vcc, 20, v4
    v_lshlrev_b32 v4, 9, v4
    v_and_b32 v5, 1, v2
    v_lshl_add_u32 v4, v5, 4, v4
    v_bfe_u32 v6, v2, 1, 1
    v_lshl_add_u32 v4, v6, 6, v4
    v_add_u32 v4, {CSTRIP}, v4
    v_mul_u32_u24 v8, 0x3f80, v5
    v_lshl_or_b32 v8, v8, 16, v8
    v_mov_b32 v9, v8
    v_mov_b32 v10, v8
    v_mov_b32 v11, v8
    s_and_saveexec_b64 s[36:37], vcc
    ds_write_b128 v4, v[8:11]
    s_mov_b64 exec, s[36:37]
    """)
    early = OPT.get('rl_early', 0)
    if early < 2:
        k("s_waitcnt lgkmcnt(0)")
        k("s_barrier")
    if early < 1:
        k("s_barrier")
    loads, stores = relayout(k)
    loads(0); loads(1)
    srd(k, 44, 8, 512*1024)
    k("s_and_b32 s35, s29, 1")
    k("s_lshl_b32 s36, s2, 1")
    k("s_add_u32 s35, s35, s36")
    k("s_lshl_b32 s36, s35, 10")
    k("buffer_load_dwordx4 v[72:75], v3, s[44:47], s36 offen")
    if early >= 2:
        k("s_waitcnt lgkmcnt(0)")
        k("s_barrier")
    if early >= 1:
        k("s_barrier")
    k("s_waitcnt vmcnt(27)")
    stores(0)
    loads(2)
    k("s_waitcnt vmcnt(26)")
    stores(1)
    k(f"s_mov_b32 s36, {hex(ONES)}")
    k("v_dot2_f32_bf16 v76, v72, s36, 0")
    for d in range(1, 4): k(f"v_dot2_f32_bf16 v76, v{72+d}, s36, v76")
    k.nop(1)
    for ctl in ("quad_perm:[1,0,3,2]", "quad_perm:[2,3,0,1]", "row_half_mirror", "row_mirror"):
        k.nop(2)
        k(f"v_add_f32_dpp v76, v76, v76 {ctl} row_mask:0xf bank_mask:0xf")
    k.nop(1)
    for i in range(4): k(f"v_readlane_b32 s{48+i}, v76, {16*i}")
    k(f"""
    s_lshr_b32 s36, s35, 4
    s_lshl_b32 s36, s36, 6
    s_bfe_u32 s43, s35, 0x10002
    s_lshl_b32 s43, s43, 4
    s_add_u32 s36, s36, s43
    v_mov_b32 v76, s48
    v_add_f32 v76, s49, v76
    v_add_f32 v76, s50, v76
    v_add_f32 v76, s51, v76
    v_mul_f32 v76, {hex(f32(1/512))}, v76
    s_bfe_u32 s43, s35, 0x10003
    s_lshl_b32 s43, s43, 3
    s_add_u32 s36, s36, s43
    v_cvt_pk_bf16_f32 v77, v76, v76
    s_and_b32 s43, s35, 3
    s_lshl_b32 s43, s43, 1
    s_add_u32 s36, s36, s43
    v_and_b32 v78, 0xffff0000, v77
    v_sub_f32 v78, v76, v78
    s_add_u32 s36, s36, {WBT}
    v_cvt_pk_bf16_f32 v78, v78, v78
    v_mov_b32 v79, 0
    s_mov_b64 exec, 1
    buffer_store_short v77, v79, s[20:23], s36 offen sc1
    buffer_store_short v78, v79, s[20:23], s36 offen offset:32 sc1
    s_mov_b64 exec, -1
    """)
    k("s_waitcnt vmcnt(0)")
    stores(2)
    k("s_waitcnt vmcnt(0)")
    na = k.label("noarr")
    k(f"v_mov_b32 v5, {PROG + 48}")
    k("v_mov_b32 v6, 1")
    k("s_mov_b64 exec, 1")
    k("ds_add_rtn_u32 v7, v5, v6")
    k("s_waitcnt lgkmcnt(0)")
    k("v_readfirstlane_b32 s42, v7")
    k("s_cmp_lg_u32 s42, 2")
    k(f"s_cbranch_scc1 {na}")
    k(f"s_add_u32 s42, s{SXCD}, {CW}")
    arrive(k, 42)
    k.place(na)
    k("s_endpgm")

def p2_helper(k, done):
    ld = OPT['ld']
    k(f"s_lshl_b32 s33, s{SHEAD}, 16")
    def kv(c):
        for base, l in ((KF, 0), (VF, 65536)):
            for g in range(2):
                k(f"s_add_u32 s34, s33, {base + c*8192 + g*4096}")
                k(f"s_mov_b32 m0, {l + c*8192 + g*4096}")
                k.nop(1)
                for q in range(4):
                    k(f"buffer_load_dwordx4 v3, s[20:23], s34 offen" + (f" offset:{q*1024}" if q else "") + f" {ld} lds")
    kv(0); kv(1)
    k("s_waitcnt vmcnt(16)")
    k("s_barrier")
    issued = 2
    def publish(c):
        k(f"v_mov_b32 v5, {c if c < 7 else 64}")
        k("ds_write_b32 v4, v5")
    while issued < OPT.get('kvd', 3): kv(issued); issued += 1
    for c in range(1, 8):
        k(f"s_waitcnt vmcnt({16*(issued - 1 - c)})")
        publish(c)
        if issued < 8: kv(issued); issued += 1
    stamp(k, 12)
    k("s_setprio 3")
    k(f"s_lshl_b32 s42, s{SXCD}, 5")
    k(f"s_add_u32 s42, s42, {FX}")
    flag_poll(k, 42)
    k("s_getreg_b32 s58, hwreg(HW_REG_XCC_ID, 0, 4)")
    k("s_add_u32 s58, s58, 1")
    k("s_mov_b32 exec_hi, 0")
    k("v_cmp_ne_u32 vcc, s58, v10")
    k("s_cmp_eq_u64 vcc, 0")
    k(f"s_cselect_b32 s{SLOC}, 1, 0")
    k(f"v_mov_b32 v5, s{SLOC}")
    k("ds_write_b32 v4, v5 offset:16")
    k("s_mov_b64 exec, -1")
    k("s_mov_b32 s55, 0")
    if OPT.get('t2', 1):
        again, skip, ok = k.label("t2a"), k.label("t2s"), k.label("t2o")
        k(f"""
        s_mov_b32 s40, {CNT + CW*256}
        s_mov_b32 exec_lo, 0xff
        s_mov_b32 exec_hi, 0
        v_lshlrev_b32 v9, 8, v2
        s_mov_b32 s41, 0
        """)
        k.place(again)
        k(f"s_sleep {OPT.get('slpw', 32)}")
        k("buffer_load_dword v10, v9, s[20:23], s40 offen sc1")
        k("ds_read_b32 v11, v4 offset:32")
        k("s_waitcnt vmcnt(0) lgkmcnt(0)")
        k("v_readfirstlane_b32 s41, v11")
        k("v_cmp_gt_u32 vcc, 32, v10")
        k(f"s_cmp_ge_u32 s41, {OPT.get('t2lim', 6)}")
        k(f"s_cbranch_scc1 {skip}")
        k("s_cmp_lg_u64 vcc, 0")
        k(f"s_cbranch_scc1 {again}")
        k("s_mov_b32 s55, 1")
        k("s_mov_b64 exec, -1")
        for base, tot in [(WOF, 4096), (WGF, 43*256), (WUF, 43*256), (WDF, 43*256)][OPT.get('t2a', 0):OPT.get('t2b', 3)]:
            per = tot // 32
            k(f"s_mul_i32 s42, s{SIDX}, {per*128}")
            k(f"s_add_u32 s42, s42, {base}")
            touch(k, 42, per)
        k.place(skip)
        k("s_mov_b64 exec, -1")

def res_cfg(mode):
    if mode == 'wo':
        return dict(NKS=32, JL=16, WIN=16, BSRC=OF, ASRC=WOF, RES=XF)
    return dict(NKS=86, JL=39, WIN=OPT.get('win5', 12), BSRC=ACT, ASRC=WDF, RES=HF)

def res_map(k):
    k(f"""
    s_lshl_b32 s27, s{SXCD}, 2
    s_and_b32 s28, s{SIDX}, 3
    s_add_u32 s27, s27, s28
    s_lshr_b32 s28, s{SIDX}, 2
    """)

def res_consumer(k, mode, sb):
    c_ = res_cfg(mode); NKS, JL, WIN = c_['NKS'], c_['JL'], c_['WIN']
    NH = NKS // 2
    wo = mode == 'wo'
    SRB, SCB = 27, 28
    ld = OPT['ld']
    R, ACC, AB, AT, AM, WM = 8, 16, 48, 80, 144, 160
    BW = 80 if wo else 112
    res_map(k)
    k(f"""
    s_and_b32 s29, s{SW}, 1
    s_lshl_b32 s30, s{SRB}, 1
    s_add_u32 s30, s30, s29
    s_lshr_b32 s31, s{SW}, 1
    s_lshl_b32 s32, s{SCB}, 1
    s_add_u32 s32, s32, s31
    s_mul_i32 s33, s31, 3072
    v_add_u32 v6, s33, v3
    s_lshl_b32 s33, s31, 10
    s_add_u32 s33, s33, 1024
    v_add_u32 v7, s33, v3
    s_mul_i32 s34, s31, {NH}
    s_mul_i32 s35, s30, {NKS}
    s_add_u32 s35, s35, s34
    s_lshl_b32 s35, s35, 10
    s_add_u32 s35, s35, {c_['BSRC']}
    """)
    if wo:
        k(f"""
        s_lshl_b32 s40, s30, 5
        s_lshl_b32 s41, s32, 1
        s_add_u32 s40, s40, s41
        s_lshl_b32 s40, s40, 10
        s_add_u32 s41, s40, {XF}
        buffer_load_dwordx4 v[{R}:{R+3}], v3, s[20:23], s41 offen {ld}
        buffer_load_dwordx4 v[{R+4}:{R+7}], v3, s[20:23], s41 offen offset:1024 {ld}
        s_add_u32 s41, s40, {HF}
        s_lshl_b32 s47, s32, 13
        s_lshl_b32 s48, s30, 7
        s_add_u32 s47, s47, s48
        s_add_u32 s47, s47, {ST}
        s_add_u32 s48, s48, {MX}
        v_and_b32 v0, 1, v2
        v_lshlrev_b32 v0, 5, v0
        v_lshrrev_b32 v1, 5, v2
        v_lshl_add_u32 v0, v1, 4, v0
        s_lshl_b32 s33, s31, 10
        s_add_u32 s33, s33, {WBL}
        v_add_u32 v0, s33, v0
        """)
    else:
        for q in range(2):
            k(f"s_xor_b32 s36, s32, {q}")
            k(f"s_mul_i32 s36, s36, {NKS}")
            k(f"s_add_u32 s36, s36, s34")
            k(f"s_lshl_b32 s36, s36, 10")
            k(f"s_add_u32 s36, s36, {c_['ASRC'] + JL*1024}")
            for j in range(NH - JL):
                r = AT + 8*j + 4*q
                k(f"buffer_load_dwordx4 v[{r}:{r+3}], v3, s[20:23], s36 offen" + (f" offset:{j*1024}" if j else "") + f" {ld}")
        srd(k, 52, 18, 2*MB)
        k(f"""
        v_and_b32 v8, 31, v2
        v_lshlrev_b32 v8, 10, v8
        v_lshrrev_b32 v9, 5, v2
        v_lshl_add_u32 v8, v9, 4, v8
        s_lshl_b32 s47, s30, 15
        s_lshl_b32 s48, s32, 6
        s_add_u32 s47, s47, s48
        """)
    RED = 65536 if wo else 0
    k(f"s_xor_b32 s36, s{SW}, 2")
    k(f"s_mul_i32 s36, s36, 5120")
    k(f"s_add_u32 s36, s36, {RED}")
    k(f"v_add_u32 v4, s36, v3")
    k(f"s_mul_i32 s36, s{SW}, 5120")
    k(f"s_add_u32 s36, s36, {RED}")
    k(f"v_add_u32 v5, s36, v3")
    k("s_mov_b32 s45, 0xffff0000")
    k("s_barrier")
    stamp(k, sb)
    if wo:
        k("v_and_b32 v1, 31, v2")
        k("v_lshlrev_b32 v1, 2, v1")
        k(f"buffer_load_dword v1, v1, s[20:23], s48 offen {ld}")
    def bload(j):
        if j % 4 == 0: k(f"s_add_u32 s36, s35, {j*1024}")
        r = BW + 4*(j % WIN)
        k(f"buffer_load_dwordx4 v[{r}:{r+3}], v3, s[20:23], s36 offen" + (f" offset:{(j % 4)*1024}" if j % 4 else "") + f" {ld}")
    ds = []
    def ard(j, q):
        if j < JL:
            if q == 0 and j and j % 16 == 0:
                k("v_add_u32 v6, 0x10000, v6")
                k("v_add_u32 v7, 0x10000, v7")
            r = AB + 8*(j & 3) + 4*q
            k(f"ds_read_b128 v[{r}:{r+3}], v{6+q} offset:{(j % 16)*4096}"); ds.append(j)
    def mrd(j):
        if wo and j < NH:
            k(f"ds_read_b128 v[{WM+4*(j&1)}:{WM+4*(j&1)+3}], v0 offset:{j*64}"); ds.append(j)
    nb = min(WIN, NH)
    for j in range(nb): bload(j)
    for j in range(3):
        ard(j, 0); ard(j, 1)
        if j < 2: mrd(j)
    for j in range(NH):
        lg = (len(ds) - 1 - max(i for i, x in enumerate(ds) if x == j)) if j in ds else None
        k(f"s_waitcnt vmcnt({nb - 1 - j})" + (f" lgkmcnt({lg})" if lg is not None else ""))
        A = AB + 8*(j & 3) if j < JL else AT + 8*(j - JL)
        B = BW + 4*(j % WIN)
        for q in range(2):
            C = "0" if j == 0 else f"v[{ACC+16*q}:{ACC+16*q+15}]"
            k(f"{MFMA} v[{ACC+16*q}:{ACC+16*q+15}], v[{A+4*q}:{A+4*q+3}], v[{B}:{B+3}], {C}")
            ard(j + 3, q)
        if wo:
            C = "0" if j == 0 else f"v[{AM}:{AM+15}]"
            k(f"{MFMA} v[{AM}:{AM+15}], v[{WM+4*(j&1)}:{WM+4*(j&1)+3}], v[{B}:{B+3}], {C}")
            mrd(j + 2)
        if nb < NH:
            bload(nb); nb += 1
    stamp(k, sb + 1)
    U = 48
    RS_ = R if wo else KEEP
    for d in range(8):
        k(f"v_lshlrev_b32 v{U+2*d}, 16, v{RS_+d}")
        k(f"v_and_b32 v{U+2*d+1}, s45, v{RS_+d}")
    if not RED: k("s_barrier")
    for g in range(4):
        k(f"ds_write_b128 v4, v[{ACC+16+4*g}:{ACC+19+4*g}] offset:{g*1024}")
    if wo:
        k(f"v_add_f32 v{AM}, v{AM}, v{AM+1}")
        k(f"ds_write_b32 v4, v{AM} offset:4096")
        k(f"v_add_f32 v0, v{AM}, v1")
    for r in range(0, 16, 2):
        k(f"v_pk_add_f32 v[{ACC+r}:{ACC+r+1}], v[{ACC+r}:{ACC+r+1}], v[{U+r}:{U+r+1}]")
    k("s_waitcnt lgkmcnt(0)")
    k("s_barrier")
    if wo: k(f"ds_read_b32 v1, v5 offset:4096")
    for g in range(4):
        k(f"ds_read_b128 v[{U+4*g}:{U+4*g+3}], v5 offset:{g*1024}")
    P = 64
    for g in range(4):
        k(f"s_waitcnt lgkmcnt({3-g})")
        if wo and g == 0: k("v_add_f32 v0, v0, v1")
        for r in (4*g, 4*g+2):
            k(f"v_pk_add_f32 v[{ACC+r}:{ACC+r+1}], v[{ACC+r}:{ACC+r+1}], v[{U+r}:{U+r+1}]")
        if wo:
            for r in (4*g, 4*g+2):
                k(f"v_pk_add_f32 v[{U+r}:{U+r+1}], v[{ACC+r}:{ACC+r+1}], v[0:1] op_sel_hi:[1,0] neg_lo:[0,1] neg_hi:[0,1]")
            for d in (2*g, 2*g+1):
                k(f"v_cvt_pk_bf16_f32 v{P+d}, v{U+2*d}, v{U+2*d+1}")
            if g & 1:
                pub_store(k, [f"buffer_store_dwordx4 v[{P+2*g-2}:{P+2*g+1}], v3, s[20:23], s41 offen" + (" offset:1024" if g == 3 else "")], 1)
        else:
            for d in (2*g, 2*g+1):
                k(f"v_cvt_pk_bf16_f32 v{P+d}, v{ACC+2*d}, v{ACC+2*d+1}")
    if wo:
        SQ = 72
        k(f"v_dot2_f32_bf16 v{SQ}, v{P}, v{P}, 0")
        k(f"v_dot2_f32_bf16 v{SQ+1}, v{P+1}, v{P+1}, 0")
        for d in range(2, 8):
            k(f"v_dot2_f32_bf16 v{SQ+(d&1)}, v{P+d}, v{P+d}, v{SQ+(d&1)}")
        k("v_lshlrev_b32 v0, 2, v2")
        k.nop(2)
        k(f"v_add_f32 v{SQ}, v{SQ}, v{SQ+1}")
        half_sum(k, SQ, 74, 75)
        k("s_mov_b32 exec_hi, 0")
        pub_store(k, [f"buffer_store_dword v{SQ}, v0, s[20:23], s47 offen"], 1)
        k("s_mov_b64 exec, -1")
        for d in range(8):
            k(f"v_cvt_pk_bf16_f32 v{KEEP+d}, v{ACC+2*d}, v{ACC+2*d+1}")
        k("s_waitcnt vmcnt(0)")
        k("s_barrier")
    else:
        k.nop(2)
        k(f"""
        v_permlane32_swap_b32 v{P}, v{P+2}
        v_permlane32_swap_b32 v{P+1}, v{P+3}
        v_permlane32_swap_b32 v{P+4}, v{P+6}
        v_permlane32_swap_b32 v{P+5}, v{P+7}
        """)
        k.nop(1)
        k(f"buffer_store_dwordx4 v[{P}:{P+3}], v8, s[52:55], s47 offen {OPT.get('sto', '')}")
        k(f"buffer_store_dwordx4 v[{P+4}:{P+7}], v8, s[52:55], s47 offen offset:32 {OPT.get('sto', '')}")

def res_wsetup(k, mode):
    c_ = res_cfg(mode); NKS = c_['NKS']
    k(f"""
    s_sub_u32 s45, s{SW}, 4
    s_lshr_b32 s44, s{SIDX}, 2
    s_lshl_b32 s44, s44, 1
    s_and_b32 s46, s45, 1
    s_add_u32 s44, s44, s46
    s_mul_i32 s44, s44, {NKS}
    s_lshr_b32 s46, s45, 1
    s_mul_i32 s46, s46, {NKS//2}
    s_add_u32 s44, s44, s46
    s_lshl_b32 s44, s44, 10
    s_add_u32 s44, s44, {c_['ASRC']}
    s_lshl_b32 s45, s45, 10
    """)

def res_wload(k, j0, j1):
    for j in range(j0, j1):
        k(f"s_add_u32 s46, s44, {j*1024}")
        dma(k, 3, 20, 46, f"s45, {j*4096}", 0, OPT['ld'])

SLOT4, RING4, NCH4 = 20480, 8, 16
def p4_map(k):
    k(f"""
    s_lshl_b32 s27, s{SXCD}, 1
    s_cmp_ge_u32 s{SIDX}, 15
    s_cselect_b32 s28, 1, 0
    s_add_u32 s27, s27, s28
    s_mul_i32 s28, s28, 15
    s_sub_u32 s28, s{SIDX}, s28
    s_min_u32 s28, s28, 15
    """)

def p4_consumer(k):
    ld = OPT['ld']
    skip, fin = k.label("p4skip"), k.label("p4fin")
    XB = [8, 12]; WB = [16, 40]; ACC = 64; R2 = 0; STR = 40
    p4_map(k)
    k("s_cmp_eq_u32 s28, 15")
    k(f"s_cbranch_scc1 {skip}")
    k(f"""
    s_lshl_b32 s30, s27, 2
    s_add_u32 s30, s30, s{SW}
    s_lshl_b32 s33, s{SW}, 11
    s_add_u32 s33, s33, 12288
    v_mov_b32 v6, v3
    v_add_u32 v7, s33, v3
    s_mul_i32 s40, s30, 86
    s_mul_i32 s41, s28, 6
    s_add_u32 s40, s40, s41
    s_lshl_b32 s40, s40, 10
    s_add_u32 s40, s40, {ACT}
    s_mov_b32 s47, 0
    s_lshl_b32 s32, s30, 7
    s_add_u32 s32, s32, {ST}
    v_and_b32 v4, 31, v2
    v_lshlrev_b32 v4, 2, v4
    v_lshrrev_b32 v8, 5, v2
    v_lshl_add_u32 v4, v8, 13, v4
    s_mov_b32 s48, 0
    """)
    for r in range(96): k(f"v_mov_b32 v{ACC+r}, 0")
    k("s_barrier")
    stamp(k, 9)
    for i in range(8):
        k(f"s_add_u32 s35, s32, {i*16384}")
        k(f"buffer_load_dword v{STR+i}, v4, s[20:23], s35 offen {ld}")
    def wrd(u, b, mt):
        return f"ds_read_b128 v[{b+4*mt}:{b+4*mt+3}], v6 offset:{mt*2048 + (u & 1)*1024}"
    def xrd(u, b):
        return f"ds_read_b128 v[{b}:{b+3}], v7 offset:{(u & 1)*1024}"
    k("s_barrier")
    stamp(k, 10)
    k(xrd(0, XB[0]))
    for mt in range(6): k(wrd(0, WB[0], mt))
    k("s_waitcnt vmcnt(0)")
    for i in (0, 2, 4, 6): k(f"v_add_f32 v{STR+i}, v{STR+i}, v{STR+i+1}")
    k(f"v_add_f32 v{STR}, v{STR}, v{STR+2}")
    k(f"v_add_f32 v{STR+4}, v{STR+4}, v{STR+6}")
    k(f"v_add_f32 v{STR}, v{STR}, v{STR+4}")
    half_sum(k, STR, 4, 5)
    k(f"v_mov_b32 v4, {hex(f32(1e-5))}")
    k(f"v_fmac_f32 v4, {hex(f32(1/512))}, v{STR}")
    k(f"v_rcp_f32 v{R2}, v4")
    ml = k.label("p4ml")
    k(".p2align 3")
    k.place(ml)
    for u in range(2):
        if u == 1:
            k(f"s_add_u32 s48, s48, 1")
            k(f"s_and_b32 s48, s48, {RING4-1}")
            k(f"s_cselect_b32 s49, s50, s51")
            k("s_add_u32 s47, s47, 1")
            k("s_barrier")
            k("v_add_u32 v7, s49, v7")
            k("v_add_u32 v6, s49, v6")
            k(f"s_cmp_lt_u32 s47, {NCH4}")
        b, x = WB[u], XB[u]
        for mt in range(6):
            if mt == 0: k("s_waitcnt lgkmcnt(3)")
            if mt == 3: k("s_waitcnt lgkmcnt(4)")
            k(f"{MFMA} v[{ACC+16*mt}:{ACC+16*mt+15}], v[{b+4*mt}:{b+4*mt+3}], v[{x}:{x+3}], v[{ACC+16*mt}:{ACC+16*mt+15}]")
            if mt == 0: k(xrd(u+1, XB[u ^ 1]))
            k(wrd(u+1, WB[u ^ 1], mt))
    k(f"s_cbranch_scc1 {ml}")
    stamp(k, 11)
    k.nop(2)
    P = 16
    for tile in range(3):
        G, U = ACC + 16*tile, ACC + 48 + 16*tile
        if tile == 1:
            k(f"s_cmp_eq_u32 s28, 14")
            k(f"s_cbranch_scc1 {fin}")
        for r in range(16): k(f"v_max_f32 v{G+r}, 0, v{G+r}")
        for r in range(0, 16, 2):
            k(f"v_pk_mul_f32 v[{U+r}:{U+r+1}], v[{U+r}:{U+r+1}], v[{R2}:{R2+1}] op_sel_hi:[1,0]")
        for r in range(0, 16, 2):
            k(f"v_pk_mul_f32 v[{G+r}:{G+r+1}], v[{G+r}:{G+r+1}], v[{U+r}:{U+r+1}]")
        if tile == 0: k("s_waitcnt lgkmcnt(0)")
        for d in range(8):
            k(f"v_cvt_pk_bf16_f32 v{P+8*tile+d}, v{G+2*d}, v{G+2*d+1}")
        k(f"s_add_u32 s41, s40, {tile*2048}")
        pub_store(k, [f"buffer_store_dwordx4 v[{P+8*tile}:{P+8*tile+3}], v3, s[20:23], s41 offen",
                      f"buffer_store_dwordx4 v[{P+8*tile+4}:{P+8*tile+7}], v3, s[20:23], s41 offen offset:1024"], 2)
    k.place(fin)
    k("s_waitcnt vmcnt(0)")
    k.place(skip)
    k("s_barrier")

def p4_loader(k):
    ld = OPT['ld']
    D = OPT['depth4']
    skip, join = k.label("p4lskip"), k.label("p4ljoin")
    res_wsetup(k, 'down')
    p4_map(k)
    k("s_cmp_eq_u32 s28, 15")
    k(f"s_cbranch_scc1 {skip}")
    k(f"""
    s_sub_u32 s29, s{SW}, 4
    s_lshl_b32 s30, s27, 2
    s_add_u32 s30, s30, s29
    s_lshl_b32 s31, s30, 15
    s_add_u32 s31, s31, {HF}
    s_mul_i32 s33, s28, {3*32768}
    s_and_b32 s34, s29, 1
    s_lshl_b32 s34, s34, 10
    s_add_u32 s33, s33, s34
    s_lshr_b32 s35, s29, 1
    s_mul_i32 s37, s35, {WUF - WGF}
    s_add_u32 s33, s33, s37
    s_mul_i32 s35, s35, 6144
    s_add_u32 s34, s34, s35
    s_lshl_b32 s36, s29, 11
    """)
    order = []
    def hpart(c):
        k(f"s_add_u32 s35, s31, {c*2048}")
        dma(k, 3, 20, 35, f"s36, {(c % RING4)*SLOT4 + 12288}", 0, ld)
        k(f"buffer_load_dwordx4 v3, s[20:23], s35 offen offset:1024 {ld} lds")
        order.extend([('h', c)]*2)
    def wpart(c):
        for t in range(3):
            k(f"s_add_u32 s35, s33, {WGF + t*32768 + c*2048}")
            dma(k, 3, 20, 35, f"s34, {(c % RING4)*SLOT4 + t*2048}", 0, ld)
        order.extend([('w', c)]*3)
    nw = OPT.get('p4pre', 4)
    for c in range(nw): wpart(c)
    k("s_barrier")
    nh = 4
    for c in range(nh): hpart(c)
    for c in range(NCH4 + 1):
        if c < NCH4:
            last = max(i for i, o in enumerate(order) if o[1] == c)
            k(f"s_waitcnt vmcnt({len(order) - 1 - last})")
        k("s_barrier")
        m = 0
        while nh < NCH4 and nh <= c + D and m < 2:
            assert nh - RING4 <= c - 2
            hpart(nh); nh += 1; m += 1
        m = 0
        while nw < NCH4 and nw - RING4 <= c - 2 and m < 2:
            wpart(nw); nw += 1; m += 1
        if c >= 10:
            assert nh == NCH4 and nw == NCH4
            res_wload(k, 5*(c-10), 5*(c-10) + 5); order.extend([('d', -1)]*5)
    k("s_barrier")
    k(f"s_branch {join}")
    k.place(skip)
    k("s_barrier")
    res_wload(k, 0, 35)
    k.place(join)
    res_wload(k, 35, 39)
    k("s_waitcnt vmcnt(0)")
    k("s_barrier")

def clean(k, n):
    m = OPT.get('wb', 0)
    if not (m >> n) & 1: return
    l = k.label("ncl")
    k(f"s_and_b32 s47, s{SIDX}, {OPT.get('wbm', 31)}")
    k(f"s_cmp_lg_u32 s47, 0")
    k(f"s_cbranch_scc1 {l}")
    k("buffer_wbl2 sc1")
    k.place(l)

def poller(k):
    sl = OPT.get('slpl', 2)
    stamp(k, 5)
    k("s_barrier")
    stamp(k, 6)
    k(f"s_lshl_b32 s43, s{SXCD}, 5")
    k(f"s_add_u32 s43, s43, {F2}")
    k(f"s_lshl_b32 s42, s{SQB}, 5")
    k(f"s_add_u32 s42, s42, s{SHEAD}")
    k(f"s_add_u32 s42, s42, {F2}")
    flag_set(k, 42, local=not OPT.get('amap', 1))
    seen = k.label("cwseen")
    k("s_cmp_eq_u32 s55, 1")
    k(f"s_cbranch_scc1 {seen}")
    k(f"s_mov_b32 s42, {CW}")
    poll(k, 42, 32, 8, 0)
    k.place(seen)
    k("s_barrier")
    flag_poll(k, 43, 32, sl)
    stamp(k, 7)
    k("s_barrier")
    k("s_barrier")
    k("s_barrier")
    stamp(k, 8)
    res_map(k)
    k("s_lshr_b32 s43, s27, 1")
    k("s_and_b32 s44, s27, 1")
    k("s_lshl_b32 s45, s28, 1")
    k("s_add_u32 s44, s44, s45")
    k("s_lshl_b32 s42, s43, 4")
    k("s_add_u32 s42, s42, s44")
    k(f"s_add_u32 s42, s42, {F3}")
    flag_set(k, 42, local=True)
    idle = k.label("pidle")
    p4_map(k)
    k("s_cmp_eq_u32 s28, 15")
    k(f"s_cbranch_scc1 {idle}")
    k("s_lshl_b32 s46, s27, 4")
    k(f"s_add_u32 s42, s46, {F3}")
    flag_poll(k, 42, 16, sl)
    stamp(k, 9)
    k("s_barrier")
    clean(k, 0)
    for i in range(NCH4 + 1):
        k("s_barrier")
        if i == OPT.get('t3at', 8) and OPT.get('t3', 0):
            k(f"s_mul_i32 s42, s{SIDX}, {368*128}")
            k(f"s_add_u32 s42, s42, {WDF}")
            touch(k, 42, 368)
    k("s_barrier")
    stamp(k, 10)
    k("s_add_u32 s42, s46, s28")
    k(f"s_add_u32 s42, s42, {F4}")
    flag_set(k, 42, local=True)
    j = k.label("pjoin")
    k(f"s_branch {j}")
    k.place(idle)
    k("s_barrier")
    k.place(j)
    k("s_lshl_b32 s42, s43, 4")
    k(f"s_add_u32 s42, s42, {F4}")
    flag_poll(k, 42, 15, sl)
    stamp(k, 11)
    k("s_barrier")
    clean(k, 1)
    diag_end(k)

def diag_end(k):
    if not DIAG: return
    k("s_waitcnt vmcnt(0)")
    stamp(k, 14)
    k("s_memrealtime s[94:95]")
    k(f"s_lshl_b32 s40, s2, 4")
    k(f"s_add_u32 s40, s40, s{SW}")
    k(f"s_lshl_b32 s40, s40, 7")
    k(f"s_add_u32 s40, s40, {DIAGB}")
    k("s_waitcnt lgkmcnt(0)")
    for i in range(15):
        k(f"s_sub_u32 s{64+2*i}, s{64+2*i}, s96")
        k(f"v_mov_b32 v{8+i}, s{64+2*i}")
    k("v_mov_b32 v23, s94")
    k("v_mov_b32 v24, s98")
    k("v_mov_b32 v4, 0")
    k("s_mov_b64 exec, 1")
    for i in range(4):
        k(f"buffer_store_dwordx4 v[{8+4*i}:{11+4*i}], v4, s[20:23], s40 offen offset:{16*i}")
    k(f"buffer_store_dword v24, v4, s[20:23], s40 offen offset:64")
    if OPT.get('dbgout') is not None:
        l = k.label("dbo")
        k(f"s_lshl_b32 s41, s{SW}, 8")
        k(f"s_or_b32 s41, s41, s2")
        k(f"s_cmp_lg_u32 s41, {OPT['dbgout']}")
        k(f"s_cbranch_scc1 {l}")
        k("v_sub_u32 v8, v23, v24")
        for i in range(4):
            k(f"global_store_dwordx4 v4, v[{8+4*i}:{11+4*i}], s[60:61] offset:{4+16*i}")
        k.place(l)

def build(path):
    k = Kern(NAME)
    done, roleL, roleH, p2 = k.label("done"), k.label("L"), k.label("H"), k.label("p2")
    tail = []
    k(f"""
    s_cmp_ge_u32 s2, 256
    s_cbranch_scc1 {done}
    s_load_dwordx16 s[4:19], s[0:1], 0
    s_load_dwordx4 s[60:63], s[0:1], 64
    """)
    if DIAG:
        k("s_memtime s[96:97]")
        k("s_memrealtime s[98:99]")
    k(f"""
    v_lshrrev_b32 v1, 6, v0
    v_and_b32 v2, 63, v0
    s_and_b32 s{SXCD}, s2, 7
    s_lshr_b32 s{SIDX}, s2, 3
    v_readfirstlane_b32 s{SW}, v1
    v_lshlrev_b32 v3, 4, v2
    s_mov_b32 s50, {SLOT4}
    s_mov_b32 s51, {-(RING4-1)*SLOT4}
    """)
    if OPT.get('dyn', 1) != 2: p1_map(k)
    k("s_waitcnt lgkmcnt(0)")
    srd(k, 20, 62, WS_SIZE)
    if OPT.get('dyn', 1) == 2:
        early_role(k)
        p1_map(k)
    roleC = k.label("C")
    k(f"s_cmp_ge_u32 s{SW}, 8")
    k(f"s_cbranch_scc1 {roleH}")
    k(f"s_cmp_lt_u32 s{SW}, 4")
    k(f"s_cbranch_scc1 {roleC}")
    p1_loader(k)
    k(f"s_branch {p2}")
    k.place(roleH)
    p1_helper(k)
    H2 = k.label("H2")
    k(f"s_branch {H2}")
    k.place(roleC)
    p1_consumer(k)
    k.place(p2)
    p2_compute(k, tail)
    L3 = k.label("L3")
    k(f"s_cmp_ge_u32 s{SW}, 4")
    k(f"s_cbranch_scc1 {L3}")
    res_consumer(k, 'wo', 7)
    p4_consumer(k)
    res_consumer(k, 'down', 12)
    diag_end(k)
    k.place(done)
    k("s_endpgm")
    k.place(L3)
    res_wsetup(k, 'wo')
    res_wload(k, 0, 16)
    k(f"s_and_b32 s45, s45, 1024")
    k(f"s_add_u32 s46, s45, {WBT}")
    dma(k, 3, 20, 46, f"s45, {WBL}", 0, OPT['ld'])
    k("s_waitcnt vmcnt(0)")
    k("s_barrier")
    k("s_barrier")
    k("s_barrier")
    p4_loader(k)
    diag_end(k)
    k("s_endpgm")
    k.place(H2)
    p2_helper(k, done)
    poller(k)
    k("s_endpgm")
    k.place(RLAB[0])
    p2_relayout(k)
    for f in tail: f(k)
    k(f".fill (32768 - (. - {NAME}))/4, 4, 0xbf810000")
    hdr = """; Kernarg: 0 A_x, 8 A_wqkv, 16 A_wo, 24 B_x (unused), 32 W_gate, 40 W_up, 48 W_down, 56 out, 64 debug, 72 ws
; pre-LN transformer block in one persistent launch (256 workgroups, one per CU); generated by gen/gen4.py
; @launch grid=(256,1,1) block=(768,1,1) lds=163840
.amdgcn_target "amdgcn-amd-amdhsa--gfx950"
"""
    open(path, "w").write(hdr + k.text(168, 102 if DIAG else 64))

if __name__ == "__main__":
    for a in sys.argv[2:]:
        if "=" in a:
            kk, vv = a.split("=")
            OPT[kk] = int(vv) if vv.lstrip("-").isdigit() else vv.replace("+", " ")
    DIAG = "--diag" in sys.argv
    build(sys.argv[1])
```

```python
import sys, math
from dsl import Kern
from gen import (MB, QF, KF, VF, OF, XF, HF, ACT, WOF, WGF, WUF, WDF, ST, WS_SIZE, f32, ONES, MFMA, srd, half_sum,
                 finish_stats)
CNT = 25*MB
MX = 24*MB + 512*1024
WBT = MX + 65536
DIAGB = 28*MB
C1, C2, C3, C4, CW = 0, 8, 16, 32, 48
CSTRIP = 131072
PROG = CSTRIP + 10240
ROLE = 163832
WBL = 7*20480 + 8192
KEEP = 160
NAME = "sequential_preLN__softmax_full_mha__glu_gated_reglu__prompt_kernel"
OPT = dict(slp=8, kvd=2, d1=4, prio=1, ld="sc1", st="sc1", nb2=4, depth4=5)
SXCD, SIDX, SW = 24, 25, 26
SHEAD, SQB = 62, 63
MF16 = "v_mfma_f32_16x16x32_bf16"
DIAG = False

def stamp(k, i):
    if DIAG: k(f"s_memtime s[{64+2*i}:{65+2*i}]")

def norm4(x, t, rs, nb, smask):
    ops = []
    for d in range(4):
        a, b = t[2*(d & 1)], t[2*(d & 1) + 1]
        ops.append([f"v_lshlrev_b32 v{a}, 16, v{x+d}", f"v_and_b32 v{b}, s{smask}, v{x+d}",
                    f"v_fma_f32 v{a}, v{a}, v{rs}, v{nb}", f"v_fma_f32 v{b}, v{b}, v{rs}, v{nb}",
                    f"v_cvt_pk_bf16_f32 v{x+d}, v{a}, v{b}"])
    o = []
    for p in (0, 2):
        for a, b in zip(ops[p], ops[p+1]): o += [a, b]
    return o

def lane_regs(k):
    k("v_mbcnt_lo_u32_b32 v2, -1, 0")
    k("v_mbcnt_hi_u32_b32 v2, -1, v2")
    k("v_lshlrev_b32 v3, 4, v2")

def dma(k, vo, srd_, so, m0expr, off=0, flag=""):
    k(f"s_add_u32 m0, {m0expr}")
    k.nop(1)
    k(f"buffer_load_dwordx4 v{vo}, s[{srd_}:{srd_+3}], s{so} offen" + (f" offset:{off}" if off else "") + f" {flag} lds")

def row8_sum(k, regs):
    for ctl in ("quad_perm:[1,0,3,2]", "quad_perm:[2,3,0,1]", "row_half_mirror"):
        k.nop(2)
        for r in regs:
            k(f"v_add_f32_dpp v{r}, v{r}, v{r} {ctl} row_mask:0xf bank_mask:0xf")

def arrive(k, sidx, va=8, vb=9):
    k(f"s_lshl_b32 s40, s{sidx}, 8")
    k(f"s_add_u32 s40, s40, {CNT}")
    k("s_mov_b64 exec, 1")
    k(f"v_mov_b32 v{va}, 1")
    k(f"v_mov_b32 v{vb}, 0")
    k(f"buffer_atomic_add v{va}, v{vb}, s[20:23], s40 offen sc1")

FLG = CNT + 65536
F1, F2, FX, F3, F4 = 0, 256, 512, 768, 1024
SLOC = 59
def pub_store(k, lines, stage=3):
    if not (OPT.get('loc', 8) >> stage) & 1:
        for l in lines: k(l + " " + OPT['st'])
        return
    a, b = k.label("ps"), k.label("pe")
    k(f"s_cmp_eq_u32 s{SLOC}, 1")
    k(f"s_cbranch_scc1 {a}")
    for l in lines: k(l + " " + OPT['st'])
    k(f"s_branch {b}")
    k.place(a)
    for l in lines: k(l)
    k.place(b)

def flag_set(k, sline, val="1", local=False):
    k(f"s_lshl_b32 s40, s{sline}, 7")
    k(f"s_add_u32 s40, s40, {FLG}")
    k("s_mov_b64 exec, 1")
    k(f"v_mov_b32 v8, {val}")
    k("v_mov_b32 v9, 0")
    if local: pub_store(k, ["buffer_store_dword v8, v9, s[20:23], s40 offen"])
    else: k("buffer_store_dword v8, v9, s[20:23], s40 offen sc1")

def flag_poll(k, sline, n=32, slp=None):
    poll(k, sline, 1, n, slp, sh=7, base=FLG)

def poll(k, sidx, target, nlines=1, slp=None, sh=8, base=None):
    lp, out = k.label("poll"), k.label("pollx")
    k(f"s_lshl_b32 s40, s{sidx}, {sh}")
    k(f"s_add_u32 s40, s40, {CNT if base is None else base}")
    k(f"s_mov_b32 exec_lo, {hex((1 << nlines) - 1)}")
    k("s_mov_b32 exec_hi, 0")
    k(f"v_lshlrev_b32 v9, {sh}, v2")
    k("s_mov_b32 s41, 0")
    k.place(lp)
    slp = OPT.get('slp', 2) if slp is None else slp
    if slp: k(f"s_sleep {slp}")
    k("buffer_load_dword v10, v9, s[20:23], s40 offen sc1")
    k("s_add_u32 s41, s41, 1")
    k("s_cmp_gt_u32 s41, 0x40000")
    k(f"s_cbranch_scc1 {out}")
    k("s_waitcnt vmcnt(0)")
    k(f"v_cmp_gt_u32 vcc, {target}, v10" if target <= 64 else f"v_cmp_gt_u32 vcc, {hex(target)}, v10")
    k(f"s_cmp_lg_u64 vcc, 0")
    k(f"s_cbranch_scc1 {lp}")
    k.place(out)
    k("s_waitcnt vmcnt(0)")
    k("s_mov_b64 exec, -1")

def touch(k, base_s, nlines, reg=40):
    k("v_lshlrev_b32 v12, 7, v2")
    for i in range((nlines + 63)//64):
        rem = nlines - 64*i
        if rem < 64:
            k(f"s_mov_b32 exec_lo, {hex((1 << min(rem, 32)) - 1)}")
            k(f"s_mov_b32 exec_hi, {hex((1 << max(rem - 32, 0)) - 1)}")
        k(f"s_add_u32 s41, s{base_s}, {i*8192}")
        k(f"buffer_load_dword v{reg+i}, v12, s[20:23], s41 offen sc1")
    k("s_mov_b64 exec, -1")

def cold_touch(k):
    if OPT.get('t1', 1):
        l9, l10, l11 = k.label("t9"), k.label("t10"), k.label("t11")
        if OPT.get('t1d', 0): k(f"s_sleep {OPT['t1d']}")
        k(f"s_cmp_lg_u32 s{SW}, 9")
        k(f"s_cbranch_scc1 {l9}")
        srd(k, 44, 4, 2*MB)
        k("s_lshl_b32 s31, s2, 13")
        k("v_lshlrev_b32 v12, 7, v2")
        msk = sum(1 << i for i in range(32) if (i & 7) >= OPT.get('t1x', 1))
        k(f"s_mov_b32 exec_lo, {hex(msk)}")
        k(f"s_mov_b32 exec_hi, {hex(msk)}")
        k("buffer_load_dword v40, v12, s[44:47], s31 offen")
        k("s_mov_b64 exec, -1")
        k.place(l9)
        k(f"s_cmp_lg_u32 s{SW}, 10")
        k(f"s_cbranch_scc1 {l10}")
        k(f"s_cmp_lt_u32 s2, {32*OPT.get('t1x', 1)}")
        k(f"s_cbranch_scc1 {l10}")
        srd(k, 44, 6, 512*3072)
        k("s_mul_i32 s31, s2, 6144")
        k("v_lshlrev_b32 v12, 7, v2")
        k("s_mov_b32 exec_hi, 0xffff")
        k("buffer_load_dword v40, v12, s[44:47], s31 offen")
        k("s_mov_b64 exec, -1")
        k.place(l10)

def early_role(k):
    nt, tk, tkd = k.label("nt"), k.label("etk"), k.label("etkd")
    k(f"s_cmp_lg_u32 s{SW}, 8")
    k(f"s_cbranch_scc1 {nt}")
    k("s_getreg_b32 s56, hwreg(HW_REG_XCC_ID, 0, 4)")
    k("s_and_b32 s56, s56, 7")
    k("s_mov_b64 exec, 1")
    k("v_mov_b32 v46, 1")
    k.place(tk)
    k("s_lshl_b32 s57, s56, 5")
    k("s_add_u32 s57, s57, 16")
    k("v_mov_b32 v45, s57")
    k("global_atomic_add v44, v45, v46, s[60:61] sc0 sc1")
    k("s_waitcnt vmcnt(0)")
    k("v_readfirstlane_b32 s57, v44")
    k("s_add_u32 s58, s56, 1")
    k("s_cmp_lt_u32 s57, 32")
    k(f"s_cbranch_scc1 {tkd}")
    k("s_and_b32 s56, s58, 7")
    k(f"s_branch {tk}")
    k.place(tkd)
    k("s_lshl_b32 s57, s57, 3")
    k("s_or_b32 s57, s57, s56")
    k(f"v_mov_b32 v4, {ROLE}")
    k("v_mov_b32 v5, s57")
    k("ds_write_b32 v4, v5")
    k("s_mov_b64 exec, -1")
    k("s_waitcnt lgkmcnt(0)")
    k.place(nt)
    cold_touch(k)
    k("s_barrier")
    role_read(k, True)

def role_read(k, force=False):
    if OPT.get('dyn', 1) != 1 and not force: return
    k(f"v_mov_b32 v4, {ROLE}")
    k("ds_read_b32 v4, v4")
    k("s_waitcnt lgkmcnt(0)")
    k(f"v_readfirstlane_b32 s{SIDX}, v4")
    k.nop(1)
    k(f"s_and_b32 s{SXCD}, s{SIDX}, 7")
    k(f"s_lshr_b32 s{SIDX}, s{SIDX}, 3")
    if OPT.get('amap', 1):
        k(f"s_lshl_b32 s{SHEAD}, s{SXCD}, 2")
        k(f"s_and_b32 s{SQB}, s{SIDX}, 3")
        k(f"s_add_u32 s{SHEAD}, s{SHEAD}, s{SQB}")
        k(f"s_lshr_b32 s{SQB}, s{SIDX}, 2")
    else:
        k(f"s_mov_b32 s{SHEAD}, s{SIDX}")
        k(f"s_mov_b32 s{SQB}, s{SXCD}")

def p1_map(k):
    k(f"""
    s_lshr_b32 s27, s{SXCD}, 1
    s_lshl_b32 s27, s27, 3
    s_and_b32 s28, s{SIDX}, 7
    s_add_u32 s27, s27, s28
    s_and_b32 s28, s{SXCD}, 1
    s_lshl_b32 s28, s28, 2
    s_lshr_b32 s29, s{SIDX}, 3
    s_add_u32 s28, s28, s29
    """)
EXC = 65536 + 3*12288
EXS = 65536 + 2*12288

def p1_consumer(k):
    SRB, SCB = 27, 28
    VXA, VWA = 12, 16
    WB = [20, 32, 44, 56]; XB = [68, 72, 76, 80]; ACC = 84; CS = 132; SEL = 144
    k(f"""
    v_and_b32 v8, 31, v2
    v_lshrrev_b32 v4, 5, v2
    v_lshrrev_b32 v5, 1, v8
    v_and_b32 v5, 7, v5
    s_and_b32 s34, s{SW}, 1
    s_lshl_b32 s35, s34, 12
    v_lshlrev_b32 v6, 7, v8
    v_add_u32 v6, s35, v6
    """)
    for u in range(4):
        k(f"v_add_u32 v7, {2*u}, v4")
        k(f"v_xor_b32 v7, v7, v5")
        k(f"v_lshl_add_u32 v{VXA+u}, v7, 4, v6")
    k(f"""
    s_lshr_b32 s36, s{SW}, 1
    v_bfe_u32 v5, v2, 2, 2
    v_lshl_add_u32 v6, v4, 3, v5
    v_lshlrev_b32 v6, 7, v6
    v_bfe_u32 v7, v2, 4, 1
    v_lshlrev_b32 v7, 1, v7
    v_bfe_u32 v11, v2, 1, 1
    v_add_u32 v7, v7, v11
    s_lshl_b32 s37, s36, 2
    v_add_u32 v7, s37, v7
    v_lshrrev_b32 v5, 1, v5
    v_lshlrev_b32 v5, 2, v5
    v_xor_b32 v7, v7, v5
    v_lshl_add_u32 v6, v7, 4, v6
    v_and_b32 v7, 1, v2
    v_lshl_add_u32 v{VWA+1}, v7, 3, v6
    v_add_u32 v{VWA+1}, 0x10000, v{VWA+1}
    v_mov_b32 v{VWA}, v{VWA+1}
    v_and_b32 v5, 15, v2
    v_bfe_u32 v7, v2, 4, 1
    v_cmp_eq_u32 vcc, v5, v7
    v_mov_b32 v6, {hex(ONES)}
    s_mov_b32 s47, 0
    v_cndmask_b32 v{SEL}, 0, v6, vcc
    """)
    for i in range(1, 4): k(f"v_mov_b32 v{SEL+i}, v{SEL}")
    for i in range(60): k(f"v_mov_b32 v{ACC+i}, 0")
    k(f"""
    s_lshl_b32 s40, s{SCB}, 2
    s_lshl_b32 s41, s36, 1
    s_add_u32 s40, s40, s41
    s_lshl_b32 s40, s40, 16
    s_lshl_b32 s41, s{SRB}, 1
    s_add_u32 s41, s41, s34
    s_lshl_b32 s41, s41, 10
    s_add_u32 s40, s40, s41
    v_bfe_u32 v9, v2, 4, 1
    v_lshlrev_b32 v9, 16, v9
    v_lshl_add_u32 v9, v4, 8, v9
    v_lshl_add_u32 v9, v5, 4, v9
    s_add_u32 s43, s40, {QF + 65536}
    s_add_u32 s44, s40, {KF}
    s_add_u32 s45, s40, {KF + 65536}
    s_add_u32 s46, s40, {VF}
    s_mov_b32 s48, 0
    """)
    def xrd(u, b): k(f"ds_read_b128 v[{b}:{b+3}], v{VXA+u}")
    def wrd(u, b, p):
        for r in range(2):
            k(f"ds_read_b64_tr_b16 v[{b+4*p+2*r}:{b+4*p+2*r+1}], v{VWA} offset:{(u >> 1)*12288 + p*4096 + (u & 1)*2048 + r*512}")
    stamp(k, 0)
    k("s_barrier")
    stamp(k, 1)
    for u in range(2):
        xrd(u, XB[u])
        for p in range(3): wrd(u, WB[u], p)
    odd, ep = k.label("p1odd"), k.label("p1ep")
    k("s_cmp_eq_u32 s34, 1")
    k(f"s_cbranch_scc1 {odd}")
    for par in range(2):
        if par == 1: k.place(odd)
        ml = k.label("p1ml")
        k(".p2align 3")
        k.place(ml)
        for u in range(4):
            if u == 2:
                k("s_add_u32 s48, s48, 24576")
                k(f"s_cmp_eq_u32 s48, {8*12288}")
                k("s_cselect_b32 s48, 0, s48")
                k(f"v_add_u32 v{VXA}, 8192, v{VXA}")
                k(f"v_add_u32 v{VXA+1}, 8192, v{VXA+1}")
                k("s_barrier")
                k(f"v_add_u32 v{VWA}, s48, v{VWA+1}")
            b, x = WB[u], XB[u]
            nu = (u+2) & 3
            cs = (u & 1) == par and not OPT.get('z_nocs')
            k("s_waitcnt lgkmcnt(7)")
            k(f"{MFMA} v[{ACC}:{ACC+15}], v[{b}:{b+3}], v[{x}:{x+3}], v[{ACC}:{ACC+15}]")
            xrd(nu, XB[nu])
            wrd(nu, WB[nu], 0)
            if cs: k(f"{MF16} v[{CS}:{CS+3}], v[{SEL}:{SEL+3}], v[{b}:{b+3}], v[{CS}:{CS+3}]")
            k(f"{MFMA} v[{ACC+16}:{ACC+31}], v[{b+4}:{b+7}], v[{x}:{x+3}], v[{ACC+16}:{ACC+31}]")
            wrd(nu, WB[nu], 1)
            if cs: k(f"{MF16} v[{CS+4}:{CS+7}], v[{SEL}:{SEL+3}], v[{b+4}:{b+7}], v[{CS+4}:{CS+7}]")
            k(f"{MFMA} v[{ACC+32}:{ACC+47}], v[{x}:{x+3}], v[{b+8}:{b+11}], v[{ACC+32}:{ACC+47}]")
            wrd(nu, WB[nu], 2)
            if cs: k(f"{MF16} v[{CS+8}:{CS+11}], v[{SEL}:{SEL+3}], v[{b+8}:{b+11}], v[{CS+8}:{CS+11}]")
            if u == 3:
                for q in range(2, 4): k(f"v_add_u32 v{VXA+q}, 8192, v{VXA+q}")
                k("s_add_u32 s47, s47, 1")
                k("s_cmp_lt_u32 s47, 8")
        k(f"s_cbranch_scc1 {ml}")
        if par == 0: k(f"s_branch {ep}")
    k.place(ep)
    stamp(k, 2)
    k(f"""
    s_lshl_b32 s35, s34, 1
    s_add_u32 s35, s35, s36
    s_mul_i32 s35, s35, 384
    s_add_u32 s35, s35, {EXC}
    v_lshl_add_u32 v5, v2, 2, s35
    s_mul_i32 s37, s36, 384
    s_add_u32 s37, s37, {EXC}
    v_lshl_add_u32 v6, v4, 4, s37
    v_lshl_add_u32 v7, v8, 2, s37
    s_lshl_b32 s38, s34, 7
    s_add_u32 s38, s38, {EXS}
    v_lshl_add_u32 v10, v8, 2, s38
    v_lshl_add_u32 v11, v4, 4, s38
    s_mov_b64 exec, 0xffff
    """)
    for p in range(3):
        k(f"ds_write2_b32 v5, v{CS+4*p}, v{CS+4*p+1} offset0:{32*p} offset1:{32*p+16}")
    k("s_mov_b64 exec, -1")
    k("s_waitcnt lgkmcnt(0)")
    k("s_barrier")
    A, B, RSV, NBV = 20, 36, 52, 68
    RS, NB, CV = 132, 134, 136
    k(f"ds_read_b32 v{RS}, v10")
    k(f"ds_read_b32 v{NB}, v10 offset:256")
    def csrd(p):
        for g in range(4):
            k(f"ds_read_b128 v[{A+4*g}:{A+4*g+3}], v6 offset:{p*128 + g*32}")
            k(f"ds_read_b128 v[{B+4*g}:{B+4*g+3}], v6 offset:{768 + p*128 + g*32}")
    csrd(0)
    k(f"ds_read_b32 v{CV}, v7 offset:256")
    k(f"ds_read_b32 v{CV+1}, v7 offset:{768 + 256}")
    k(f"s_mov_b32 s42, {hex(f32(0.25*math.log2(math.e)))}")
    k("s_waitcnt lgkmcnt(10)")
    k(f"v_mul_f32 v138, s42, v{RS}")
    k(f"v_mul_f32 v140, s42, v{NB}")
    st = OPT['st']
    P = 144
    def fold(acc, rs, nb):
        for r in range(0, 16, 2):
            k(f"v_pk_add_f32 v[{A+r}:{A+r+1}], v[{A+r}:{A+r+1}], v[{B+r}:{B+r+1}]")
        for r in range(0, 16, 2):
            k(f"v_pk_mul_f32 v[{A+r}:{A+r+1}], v[{A+r}:{A+r+1}], v[{nb}:{nb+1}] op_sel_hi:[1,0]")
        for r in range(0, 16, 2):
            k(f"v_pk_fma_f32 v[{acc+r}:{acc+r+1}], v[{acc+r}:{acc+r+1}], v[{rs}:{rs+1}], v[{A+r}:{A+r+1}] op_sel_hi:[1,0,1]")
    def pack(acc, p, so0, so1, va, off1=0):
        for d in range(8):
            k(f"v_cvt_pk_bf16_f32 v{p+d}, v{acc+2*d}, v{acc+2*d+1}")
            if d == 3: k(f"buffer_store_dwordx4 v[{p}:{p+3}], v{va}, s[20:23], s{so0} offen {st}")
        k(f"buffer_store_dwordx4 v[{p+4}:{p+7}], v{va}, s[20:23], s{so1} offen" + (f" offset:{off1}" if off1 else "") + f" {st}")
    k("s_waitcnt lgkmcnt(2)")
    fold(ACC, 138, 140)
    csrd(1)
    for g in range(4):
        k(f"ds_read_b128 v[{RSV+4*g}:{RSV+4*g+3}], v11 offset:{g*32}")
    pack(ACC, P, 40, 43, 3)
    k("s_waitcnt lgkmcnt(4)")
    for g in range(4):
        k(f"ds_read_b128 v[{NBV+4*g}:{NBV+4*g+3}], v11 offset:{256 + g*32}")
    fold(ACC+16, RS, NB)
    pack(ACC+16, P+8, 44, 45, 3)
    k(f"v_add_f32 v{CV}, v{CV}, v{CV+1}")
    k("s_waitcnt lgkmcnt(0)")
    for r in range(0, 16, 2):
        k(f"v_pk_mul_f32 v[{NBV+r}:{NBV+r+1}], v[{NBV+r}:{NBV+r+1}], v[{CV}:{CV+1}] op_sel_hi:[1,0]")
    for r in range(0, 16, 2):
        k(f"v_pk_fma_f32 v[{ACC+32+r}:{ACC+33+r}], v[{ACC+32+r}:{ACC+33+r}], v[{RSV+r}:{RSV+r+1}], v[{NBV+r}:{NBV+r+1}]")
    pack(ACC+32, P+16, 46, 46, 9, 512)
    stamp(k, 3)
    k("s_waitcnt vmcnt(0)")
    k("s_barrier")
    role_read(k)
    k("s_barrier")

def relayout(k):
    st = OPT['st']
    PRE = [16, 44, 80]
    k(f"""
    v_and_b32 v6, 31, v2
    v_lshrrev_b32 v7, 5, v2
    v_lshlrev_b32 v12, 10, v6
    v_lshl_add_u32 v12, v7, 3, v12
    v_mul_u32_u24 v13, {4*2752}, v7
    v_lshl_add_u32 v13, v6, 1, v13
    v_lshlrev_b32 v14, 12, v7
    v_lshl_add_u32 v14, v6, 1, v14
    s_lshl_b32 s42, s2, 3
    s_mul_i32 s43, s29, 3
    s_add_u32 s42, s42, s43
    """)
    def wload(reg, voffreg, soffreg, pitch):
        for j in range(8):
            row = 8*(j >> 2) + (j & 3)
            k(f"s_add_u32 s49, s{soffreg}, {row*pitch}")
            k(f"buffer_load_ushort v{reg+j}, v{voffreg}, s[44:47], s49 offen")
    def item_loads(i):
        P_, D0 = PRE[i], (37, 52, 32)[i]
        k(f"s_add_u32 s{D0+2}, s42, {i}")
        if i == 2:
            k("s_cmp_eq_u32 s29, 2")
            k(f"s_cselect_b32 s{D0+2}, 0xfff, s{D0+2}")
        G = D0 + 2
        srd(k, 44, 4, 2*MB)
        k(f"""
        s_lshr_b32 s43, s{G}, 5
        s_lshl_b32 s43, s43, 15
        s_and_b32 s48, s{G}, 31
        s_lshl_b32 s48, s48, 5
        s_add_u32 s43, s43, s48
        buffer_load_dwordx2 v[{P_}:{P_+1}], v12, s[44:47], s43 offen
        buffer_load_dwordx2 v[{P_+2}:{P_+3}], v12, s[44:47], s43 offen offset:16
        s_mov_b32 s50, {(2**32 + 42)//43}
        s_mul_hi_u32 s51, s{G}, s50
        s_mul_i32 s58, s51, 43
        s_sub_u32 s58, s{G}, s58
        s_mul_i32 s59, s51, {16*2752}
        s_lshl_b32 s48, s58, 6
        s_add_u32 s59, s59, s48
        s_lshl_b32 s{D0}, s58, 6
        s_add_u32 s{D0}, s{D0}, s51
        s_lshl_b32 s{D0}, s{D0}, 10
        s_cmp_lt_u32 s{G}, 1376
        s_cselect_b32 s50, {512*2752}, 0
        s_mov_b32 s44, s12
        s_and_b32 s45, s13, 0xffff
        s_mov_b32 s46, s50
        """)
        wload(P_+4, 13, 59, 2752)
        k("s_mov_b32 s44, s14")
        k("s_and_b32 s45, s15, 0xffff")
        wload(P_+12, 13, 59, 2752)
        k(f"""
        s_sub_u32 s48, s{G}, 1376
        s_cmp_lt_u32 s{G}, 1376
        s_cselect_b32 s48, s{G}, s48
        s_cselect_b32 s44, s16, s8
        s_cselect_b32 s45, s17, s9
        s_cselect_b32 s46, {1376*1024}, 0
        s_cselect_b32 s50, 86, 32
        s_cselect_b32 s43, {WDF - WOF}, 0
        s_and_b32 s45, s45, 0xffff
        s_sub_u32 s51, s{G}, 1376
        s_cmp_lt_u32 s51, 512
        s_cselect_b32 s46, {512*1024}, s46
        s_and_b32 s58, s48, 15
        s_lshr_b32 s51, s48, 4
        s_lshl_b32 s59, s51, 14
        s_lshl_b32 s48, s58, 6
        s_add_u32 s59, s59, s48
        s_mul_i32 s{D0+1}, s58, s50
        s_add_u32 s{D0+1}, s{D0+1}, s51
        s_lshl_b32 s{D0+1}, s{D0+1}, 10
        s_add_u32 s{D0+1}, s{D0+1}, s43
        """)
        wload(P_+20, 14, 59, 1024)
    def pack_store(reg, dstreg, base):
        for d in range(4):
            k(f"v_lshl_or_b32 v{reg+d}, v{reg+2*d+1}, 16, v{reg+2*d}")
        k(f"s_add_u32 s49, s{dstreg}, {base}")
        k(f"buffer_store_dwordx4 v[{reg}:{reg+3}], v3, s[20:23], s49 offen {st}")
    def item_stores(i):
        P_, D0 = PRE[i], (37, 52, 32)[i]
        G = D0 + 2
        l1, l2 = k.label("is1"), k.label("is2")
        if i == 2:
            k("s_cmp_eq_u32 s29, 2")
            k(f"s_cbranch_scc1 {l2}")
        k(f"s_lshl_b32 s43, s{G}, 10")
        k(f"s_add_u32 s43, s43, {XF}")
        k(f"buffer_store_dwordx4 v[{P_}:{P_+3}], v3, s[20:23], s43 offen {st}")
        k(f"s_cmp_lt_u32 s{G}, 1376")
        k(f"s_cbranch_scc0 {l1}")
        for reg in (P_+4, P_+12):
            for d in range(4):
                k(f"v_lshl_or_b32 v{reg+d}, v{reg+2*d+1}, 16, v{reg+2*d}")
        k.nop(2)
        for d in range(4):
            k(f"v_permlane16_swap_b32 v{P_+4+d}, v{P_+12+d}")
        k(f"s_add_u32 s49, s{D0}, {WGF}")
        k(f"buffer_store_dwordx4 v[{P_+4}:{P_+7}], v3, s[20:23], s49 offen {st}")
        k(f"s_add_u32 s49, s{D0}, {WGF + 32768}")
        k(f"buffer_store_dwordx4 v[{P_+12}:{P_+15}], v3, s[20:23], s49 offen {st}")
        k.place(l1)
        k(f"s_cmp_lt_u32 s{G}, 1888")
        k(f"s_cbranch_scc0 {l2}")
        pack_store(P_+20, D0+1, WOF)
        k.place(l2)
    return item_loads, item_stores

def p1_loader(k):
    SRB, SCB = 27, 28
    VXE, VXO, VW = 8, 9, 10
    k(f"""
    s_sub_u32 s29, s{SW}, 4
    v_lshrrev_b32 v11, 3, v2
    v_and_b32 v4, 7, v2
    v_lshrrev_b32 v5, 4, v2
    v_xor_b32 v6, v4, v5
    v_lshlrev_b32 v6, 4, v6
    s_lshl_b32 s35, s29, 4
    v_add_u32 v7, s35, v11
    v_lshlrev_b32 v12, 10, v7
    v_add_u32 v{VXE}, v12, v6
    v_xor_b32 v6, 64, v6
    v_add_u32 v{VXO}, v12, v6
    v_add_u32 v{VXO}, 8192, v{VXO}
    s_lshl_b32 s35, s29, 3
    v_add_u32 v7, s35, v11
    v_and_b32 v5, 1, v5
    v_lshlrev_b32 v5, 2, v5
    v_xor_b32 v5, v4, v5
    v_lshlrev_b32 v5, 4, v5
    v_mul_u32_u24 v7, 3072, v7
    v_add_u32 v{VW}, v7, v5
    s_lshl_b32 s31, s29, 10
    s_lshl_b32 s36, s29, 11
    s_lshl_b32 s30, s{SRB}, 16
    s_lshl_b32 s32, s{SCB}, 7
    """)
    srd(k, 52, 4, 2*MB)
    srd(k, 56, 6, 512*3072)
    n = lambda c: 3 + (0 if c & 1 else 2)
    def issue(c):
        if OPT.get('z_nodma1') and c > 2: return
        if not c & 1:
            k(f"s_add_u32 s33, s30, {(c//2)*128}")
            for o in range(2):
                dma(k, VXE if o == 0 else VXO, 52, 33, f"s36, {(c//2)*8192 + o*1024}")
        for p in range(3):
            k(f"s_add_u32 s33, s32, {32*c*3072 + p*1024}")
            dma(k, VW, 56, 33, f"s31, {65536 + (c % 8)*12288 + p*4096}")
    issued = OPT.get('d1', 4)
    for c in range(issued): issue(c)
    for P in range(9):
        k(f"s_waitcnt vmcnt({sum(n(j) for j in range(2*P+2, issued))})")
        k("s_barrier")
        m = 0
        while issued < 16 and issued - 8 <= 2*P - 3 and m < 4:
            issue(issued); issued += 1; m += 1
    k("s_barrier")
    k("s_barrier")
    role_read(k)
    k("s_barrier")

RLAB = [None]
def p1_helper(k):
    RLAB[0] = k.label('RL')
    k(f"s_setprio {OPT.get('hprio', 3)}")
    X, SQ, SX, T, RS, NB = 16, 24, 28, 32, 36, 38
    init_done = k.label("initd")
    k(f"""
    s_cmp_lg_u32 s{SW}, 8
    s_cbranch_scc1 {init_done}
    s_lshl_b32 s30, s2, 7
    s_add_u32 s30, s30, {FLG}
    v_lshl_add_u32 v4, v2, 15, s30
    s_and_b32 s30, s2, 7
    s_lshl_b32 s30, s30, 8
    s_add_u32 s30, s30, {CNT + CW*256}
    v_mov_b32 v5, 0
    v_writelane_b32 v4, s30, 5
    s_mov_b64 exec, 63
    buffer_store_dword v5, v4, s[20:23], 0 offen sc1
    s_mov_b64 exec, -1
    """)
    k.place(init_done)
    if OPT.get('dyn', 1) == 1:
        tkx = k.label("tkx")
        def ticket():
            k("s_lshl_b32 s57, s56, 5")
            k("s_add_u32 s57, s57, 16")
            k("s_mov_b64 exec, 1")
            k("v_mov_b32 v45, s57")
            k("v_mov_b32 v46, 1")
            k("global_atomic_add v44, v45, v46, s[60:61] sc0 sc1")
            k("s_mov_b64 exec, -1")
        def first_ticket():
            k(f"s_cmp_lg_u32 s{SW}, 8")
            k(f"s_cbranch_scc1 {tkx}")
            k("s_getreg_b32 s56, hwreg(HW_REG_XCC_ID, 0, 4)")
            k("s_and_b32 s56, s56, 7")
            k("s_waitcnt vmcnt(0)")
            ticket()
            k.place(tkx)
        if OPT.get('tkat', 5) < 0: first_ticket()
    k(f"""
    s_sub_u32 s29, s{SW}, 8
    s_lshl_b32 s30, s29, 10
    v_add_u32 v4, s30, v3
    s_mov_b32 s39, {hex(ONES)}
    """)
    if OPT.get('dyn', 1) != 2 and OPT.get('t1at', 0) < 0: cold_touch(k)
    for c in range(9):
        k("s_barrier")
        if OPT.get('dyn', 1) == 1 and c == OPT.get('tkat', 5): first_ticket()
        if OPT.get('dyn', 1) == 2 and c == OPT.get('tkat', 5):
            l2 = k.label("cl2")
            k(f"s_cmp_lg_u32 s{SW}, 8")
            k(f"s_cbranch_scc1 {l2}")
            k(f"s_lshl_b32 s57, s{SXCD}, 5")
            k("s_mov_b64 exec, 1")
            k("v_mov_b32 v45, s57")
            k("v_mov_b32 v46, 1")
            k("s_waitcnt vmcnt(0)")
            k("global_atomic_add v45, v46, s[60:61] offset:20 sc1")
            k("s_mov_b64 exec, -1")
            k.place(l2)
        if c == OPT.get('t1at', 0): cold_touch(k)
        if c == OPT.get('t6at', 99):
            l6 = k.label("t6")
            k(f"s_cmp_eq_u32 s{SW}, 8")
            k(f"s_cbranch_scc1 {l6}")
            k(f"s_sub_u32 s42, s{SW}, 9")
            k(f"s_lshl_b32 s42, s42, 21")
            k("s_lshl_b32 s43, s2, 13")
            k("s_add_u32 s42, s42, s43")
            touch(k, 42, 64, 47)
            k.place(l6)
        if c == OPT.get('tcat', 7):
            l11 = k.label("t11b")
            k(f"s_cmp_lg_u32 s{SW}, 11")
            k(f"s_cbranch_scc1 {l11}")
            if True:
                here = k.label("here")
                k("s_getpc_b64 s[44:45]")
                k.place(here)
                k(f"s_sub_u32 s44, s44, {here}-{NAME}")
                k("s_subb_u32 s45, s45, 0")
                k("v_lshlrev_b32 v12, 7, v2")
                for i in range(4):
                    k(f"global_load_dword v{40+i}, v12, s[44:45]")
                    if i < 3: k("v_add_u32 v12, 8192, v12")
            k.place(l11)

        if c < 8 and not (OPT.get('z_nostat') and c > 0):
            cc = c
            k(f"ds_read_b128 v[{X}:{X+3}], v4 offset:{cc*8192}")
            k(f"ds_read_b128 v[{X+4}:{X+7}], v4 offset:{cc*8192 + 4096}")
            for hf in range(2):
                k(f"s_waitcnt lgkmcnt({1-hf})")
                for d in range(4):
                    r = X + 4*hf + d
                    q, sx = SQ + 2*hf + (d & 1), SX + 2*hf + (d & 1)
                    first = (cc == 0 and d < 2)
                    k(f"v_dot2_f32_bf16 v{q}, v{r}, v{r}, {'0' if first else 'v%d' % q}")
                    k(f"v_dot2_f32_bf16 v{sx}, v{r}, s39, {'0' if first else 'v%d' % sx}")
        if c == 7:
            k.nop(3)
            k(f"v_add_f32 v{SQ}, v{SQ}, v{SQ+1}")
            k(f"v_add_f32 v{SQ+2}, v{SQ+2}, v{SQ+3}")
            k(f"v_add_f32 v{SX}, v{SX}, v{SX+1}")
            k(f"v_add_f32 v{SX+2}, v{SX+2}, v{SX+3}")
            row8_sum(k, [SQ, SQ+2, SX, SX+2])
        if c == 7:
            for hf in range(2):
                finish_stats(k, SX + 2*hf, SQ + 2*hf, RS + hf, NB + hf, T, T+1)
            k(f"""
            v_lshrrev_b32 v5, 3, v2
            s_lshl_b32 s30, s29, 5
            s_add_u32 s30, s30, {EXS}
            v_lshl_add_u32 v5, v5, 2, s30
            ds_write2_b32 v5, v{RS}, v{RS+1} offset0:0 offset1:32
            ds_write2_b32 v5, v{NB}, v{NB+1} offset0:64 offset1:96
            """)
            nm = k.label("nomx")
            k(f"""
            s_cmp_lg_u32 s28, 0
            s_cbranch_scc1 {nm}
            s_lshl_b32 s30, s27, 8
            s_lshl_b32 s31, s29, 5
            s_add_u32 s30, s30, s31
            s_add_u32 s30, s30, {MX}
            v_lshrrev_b32 v5, 3, v2
            v_lshlrev_b32 v5, 2, v5
            s_mov_b32 exec_lo, 0x01010101
            s_mov_b32 exec_hi, 0x01010101
            buffer_store_dword v{SX}, v5, s[20:23], s30 offen sc1
            buffer_store_dword v{SX+2}, v5, s[20:23], s30 offen offset:128 sc1
            s_mov_b64 exec, -1
            """)
            k.place(nm)
    k("s_waitcnt lgkmcnt(0)")
    k("s_barrier")
    if OPT.get('dyn', 1) == 1:
        nw = k.label("nrw")
        k(f"s_cmp_lg_u32 s{SW}, 8")
        k(f"s_cbranch_scc1 {nw}")
        tk, tkd = k.label("tk"), k.label("tkd")
        k.place(tk)
        k("s_waitcnt vmcnt(0)")
        k("v_readfirstlane_b32 s57, v44")
        k.nop(1)
        k("s_cmp_lt_u32 s57, 32")
        k(f"s_cbranch_scc1 {tkd}")
        k("s_add_u32 s56, s56, 1")
        k("s_and_b32 s56, s56, 7")
        ticket()
        k(f"s_branch {tk}")
        k.place(tkd)
        k("s_lshl_b32 s57, s57, 3")
        k("s_or_b32 s57, s57, s56")
        k(f"v_mov_b32 v4, {ROLE}")
        k("v_mov_b32 v5, s57")
        k("ds_write_b32 v4, v5")
        k("s_waitcnt lgkmcnt(0)")
        k.place(nw)
    k("s_waitcnt vmcnt(0)")
    k("s_barrier")
    role_read(k)
    stamp(k, 0)
    k(f"s_cmp_lg_u32 s{SW}, 8")
    k(f"s_cbranch_scc1 {RLAB[0]}")
    k(f"v_mov_b32 v4, {PROG}")
    k("v_mov_b32 v5, 0")
    for o in (0, 16, 32, 48): k(f"ds_write_b32 v4, v5 offset:{o}")
    g, gx = k.label("gate"), k.label("gatex")
    k("s_mov_b32 s41, 0")
    k("v_lshlrev_b32 v9, 5, v2")
    k("s_mov_b64 exec, 0xff")
    k.place(g)
    k(f"global_load_dword v10, v9, s[60:61] offset:{16 if OPT.get('dyn', 1) == 1 else 20} sc1")
    k("s_add_u32 s41, s41, 1")
    k("s_cmp_gt_u32 s41, 0x40000")
    k(f"s_cbranch_scc1 {gx}")
    k("s_waitcnt vmcnt(0)")
    k("v_cmp_gt_u32 vcc, 32, v10")
    k("s_cmp_eq_u64 vcc, 0")
    k(f"s_cbranch_scc1 {gx}")
    k("s_sleep 8")
    k(f"s_branch {g}")
    k.place(gx)
    stamp(k, 1)
    k(f"s_lshl_b32 s42, s28, 5")
    k(f"s_add_u32 s42, s42, s27")
    flag_set(k, 42)
    k("s_getreg_b32 s58, hwreg(HW_REG_XCC_ID, 0, 4)")
    k("s_add_u32 s58, s58, 1")
    k(f"s_lshl_b32 s42, s{SXCD}, 5")
    k(f"s_add_u32 s42, s42, s{SIDX}")
    k(f"s_add_u32 s42, s42, {FX}")
    flag_set(k, 42, "s58")
    k(f"s_lshr_b32 s42, s{SHEAD}, 2")
    k(f"s_lshl_b32 s42, s42, 5")
    flag_poll(k, 42)
    stamp(k, 2)
    k("s_waitcnt lgkmcnt(0)")
    k("s_barrier")

def rowmax(k, S, dst, t1, t2):
    k(f"v_max3_f32 v{dst}, v{S}, v{S+1}, v{S+2}")
    k(f"v_max3_f32 v{t1}, v{S+3}, v{S+4}, v{S+5}")
    k(f"v_max3_f32 v{dst}, v{dst}, v{S+6}, v{S+7}")
    k(f"v_max3_f32 v{t1}, v{t1}, v{S+8}, v{S+9}")
    k(f"v_max3_f32 v{dst}, v{dst}, v{S+10}, v{S+11}")
    k(f"v_max3_f32 v{t1}, v{t1}, v{S+12}, v{S+13}")
    k(f"v_max3_f32 v{dst}, v{dst}, v{S+14}, v{S+15}")
    k(f"v_max_f32 v{t1}, v{dst}, v{t1}")
    k(f"v_mov_b32 v{t2}, v{t1}")
    k.nop(2)
    k(f"v_permlane32_swap_b32 v{t1}, v{t2}")
    k.nop(1)
    k(f"v_max_f32 v{dst}, v{t1}, v{t2}")

def p2_compute(k, tail):
    Q = 8; KB = [12, 16]; V1 = [20, 28]; V2 = [24, 32]; P = 36; SS = [48, 64]; CN = 80; O = 96
    VKA, VVA, VINC = 4, 5, 47
    PRG, VPR = 112, 6
    chk, spin = k.label("chk"), k.label("spin")
    def spinf(k):
        k.place(spin)
        k("s_sleep 1")
        k(f"ds_read_b32 v{PRG}, v{VPR}")
        k("s_waitcnt lgkmcnt(0)")
        k(f"s_branch {chk}")
    tail.append(spinf)
    k(f"""
    s_lshl_b32 s30, s{SQB}, 3
    s_add_u32 s30, s30, s{SW}
    s_lshl_b32 s31, s30, 10
    s_lshl_b32 s29, s{SHEAD}, 16
    s_add_u32 s31, s31, s29
    buffer_load_dwordx4 v[{Q}:{Q+3}], v3, s[20:23], s31 offen {OPT['ld']}
    v_mov_b32 v{VKA}, v3
    v_lshrrev_b32 v6, 5, v2
    v_lshlrev_b32 v6, 8, v6
    v_and_b32 v7, 15, v2
    v_lshl_add_u32 v{VVA}, v7, 4, v6
    v_add_u32 v{VVA}, 0x10000, v{VVA}
    v_and_b32 v6, 31, v2
    v_add_u32 v7, -20, v6
    v_cmp_gt_u32 vcc, 8, v7
    v_mov_b32 v44, {CSTRIP}
    v_mov_b32 v45, {CSTRIP + 64}
    v_cndmask_b32 v44, v44, v45, vcc
    v_and_b32 v7, 27, v2
    v_cmp_eq_u32 vcc, 16, v7
    v_add_u32 v45, 16, v44
    s_nop 0
    v_cndmask_b32 v44, v44, v45, vcc
    v_cmp_gt_u32 vcc, 16, v6
    v_mov_b32 v45, 8192
    s_nop 0
    v_cndmask_b32 v{VVA}, v44, v{VVA}, vcc
    v_cndmask_b32 v{VINC}, 0, v45, vcc
    """)
    k(f"v_mov_b32 v{VPR}, {PROG}")
    for r in range(4): k(f"v_mov_b32 v{V2[1]+r}, 0")
    for r in range(8): k(f"v_mov_b32 v{P+r}, 0")
    for r in range(16): k(f"v_mov_b32 v{O+r}, 0")
    def vread(kk, buf, off):
        kk(f"ds_read_b128 v[{V1[buf]}:{V1[buf]+3}], v{VVA} offset:{off}")
        kk(f"ds_read_b128 v[{V2[buf]}:{V2[buf]+3}], v{VVA} offset:{off+512}")
    stamp(k, 4)
    k("s_barrier")
    stamp(k, 5)
    k(f"ds_read_b128 v[{KB[0]}:{KB[0]+3}], v{VKA}")
    k(f"ds_read_b128 v[{KB[1]}:{KB[1]+3}], v{VKA} offset:1024")
    vread(k, 0, 0)
    k("s_waitcnt vmcnt(0) lgkmcnt(3)")
    k(f"{MFMA} v[{SS[0]}:{SS[0]+15}], v[{KB[0]}:{KB[0]+3}], v[{Q}:{Q+3}], 0")
    k.nop(12)
    rowmax(k, SS[0], 44, 45, 46)
    for r in range(16): k(f"v_sub_f32 v{CN+r}, 0, v44")
    k.nop(2)
    k(f"{MFMA} v[{SS[0]}:{SS[0]+15}], v[{KB[0]}:{KB[0]+3}], v[{Q}:{Q+3}], v[{CN}:{CN+15}]")
    k("s_mov_b32 s38, 0")
    k.nop(10)
    loop = k.label("loop")
    k(".p2align 6")
    k.place(loop)
    pr = OPT['prio']
    for t in range(8):
        cur, nx = SS[t & 1], SS[(t+1) & 1]
        e = lambda i: k(f"v_exp_f32 v{cur+i}, v{cur+i}")
        c = lambda i: k(f"v_cvt_pk_bf16_f32 v{P+i}, v{cur+2*i}, v{cur+2*i+1}")
        k("s_waitcnt lgkmcnt(0)")
        if t == 6:
            k.place(chk)
            k(f"v_cmp_ge_u32 vcc, s38, v{PRG}")
            k("s_cmp_lg_u64 vcc, 0")
            k(f"s_cbranch_scc1 {spin}")
        kb = KB[(t+1) & 1]
        pb = (t+1) & 1
        sp = (lambda n: k(f"s_setprio {n}")) if pr else (lambda n: None)
        k(f"{MFMA} v[{nx}:{nx+15}], v[{kb}:{kb+3}], v[{Q}:{Q+3}], v[{CN}:{CN+15}]")
        sp(0)
        k(f"ds_read_b128 v[{KB[t&1]}:{KB[t&1]+3}], v{VKA} offset:{(t+2)*1024}")
        e(0); e(1)
        k(f"{MFMA} v[{O}:{O+15}], v[{V2[pb]}:{V2[pb]+3}], v[{P+4}:{P+7}], v[{O}:{O+15}]")
        vread(k, pb, (t+1)*1024)
        if t == 5: k(f"ds_read_b32 v{PRG}, v{VPR}")
        e(2); e(3); sp(1); c(0); e(4); e(5); c(1); e(6); e(7); sp(2); c(2); e(8); e(9); c(3); e(10); e(11)
        k(f"{MFMA} v[{O}:{O+15}], v[{V1[t&1]}:{V1[t&1]+3}], v[{P}:{P+3}], v[{O}:{O+15}]")
        c(4); e(12); e(13); sp(3); c(5); e(14); e(15); c(6)
        if t == 7:
            k(f"v_add_u32 v{VKA}, 8192, v{VKA}")
            k(f"v_add_u32 v{VVA}, v{VINC}, v{VVA}")
            k("s_add_u32 s38, s38, 1")
            k(f"v_mov_b32 v{PRG}, s38")
            k(f"ds_write_b32 v{VPR}, v{PRG} offset:32")
            k("s_cmp_lt_u32 s38, 8")
        c(7)
    k(f"s_cbranch_scc1 {loop}")
    k("s_setprio 0")
    stamp(k, 6)
    k.nop(1)
    k(f"{MFMA} v[{O}:{O+15}], v[{V2[1]}:{V2[1]+3}], v[{P+4}:{P+7}], v[{O}:{O+15}]")
    k(f"ds_read_b32 v{PRG}, v{VPR} offset:16")
    k("s_waitcnt lgkmcnt(0)")
    k(f"v_readfirstlane_b32 s{SLOC}, v{PRG}")
    k.nop(11)
    fb, fin = k.label("fb"), k.label("fin")
    k(f"""
    v_max3_f32 v44, abs(v{O}), abs(v{O+1}), abs(v{O+2})
    v_max3_f32 v45, abs(v{O+3}), abs(v{O+4}), abs(v{O+5})
    v_max3_f32 v44, v44, abs(v{O+6}), abs(v{O+7})
    v_add_f32 v46, v{O}, v{O+1}
    v_max3_f32 v44, v44, v45, v{O+8}
    s_mov_b32 s39, {hex(f32(2.0**100))}
    """)
    for r in range(2, 9): k(f"v_add_f32 v46, v46, v{O+r}")
    k(f"v_and_b32 v46, 0x7fffffff, v46")
    k(f"v_cmp_ngt_f32 vcc, s39, v44")
    k(f"v_cmp_ngt_f32 s[40:41], s39, v46")
    k.nop(1)
    k("s_or_b64 s[40:41], s[40:41], vcc")
    k("s_cmp_lg_u64 s[40:41], 0")
    k(f"s_cbranch_scc1 {fb}")
    k.place(fin)
    k(f"v_rcp_f32 v44, v{O+8}")
    k(f"s_lshl_b32 s40, s30, 15")
    k(f"s_lshl_b32 s41, s{SHEAD}, 10")
    k(f"s_add_u32 s40, s40, s41")
    k(f"s_add_u32 s40, s40, {OF}")
    for r in range(8): k(f"v_mul_f32 v{O+r}, v{O+r}, v44")
    for r in range(4): k(f"v_cvt_pk_bf16_f32 v{P+r}, v{O+2*r}, v{O+2*r+1}")
    pub_store(k, [f"buffer_store_dwordx4 v[{P}:{P+3}], v3, s[20:23], s40 offen"], 0)
    k("s_waitcnt vmcnt(0)")
    k("s_barrier")
    k("s_barrier")
    def fallback(k):
        k.place(fb)
        k(f"v_mov_b32 v{VKA}, v3")
        k(f"v_lshlrev_b32 v44, 3, v{VINC}")
        k(f"v_sub_u32 v{VVA}, v{VVA}, v44")
        k(f"v_lshrrev_b32 v{VINC}, 3, v{VINC}")
        k(f"v_mov_b32 v7, 0xff7fffff")
        for r in range(16): k(f"v_mov_b32 v{O+r}, 0")
        k("s_mov_b32 s38, 0")
        fl = k.label("fl")
        k.place(fl)
        S = SS[0]
        k(f"ds_read_b128 v[{KB[0]}:{KB[0]+3}], v{VKA}")
        vread(k, 0, 0)
        k("s_waitcnt lgkmcnt(0)")
        k(f"{MFMA} v[{S}:{S+15}], v[{KB[0]}:{KB[0]+3}], v[{Q}:{Q+3}], 0")
        k.nop(14)
        rowmax(k, S, 44, 45, 46)
        k("v_max_f32 v44, v44, v7")
        k("v_sub_f32 v45, v7, v44")
        k("v_exp_f32 v45, v45")
        k("v_mov_b32 v7, v44")
        for r in range(16): k(f"v_sub_f32 v{S+r}, v{S+r}, v44")
        for r in range(16): k(f"v_mul_f32 v{O+r}, v{O+r}, v45")
        for r in range(16): k(f"v_exp_f32 v{S+r}, v{S+r}")
        k.nop(1)
        for r in range(8): k(f"v_cvt_pk_bf16_f32 v{P+r}, v{S+2*r}, v{S+2*r+1}")
        k.nop(2)
        k(f"{MFMA} v[{O}:{O+15}], v[{V1[0]}:{V1[0]+3}], v[{P}:{P+3}], v[{O}:{O+15}]")
        k(f"{MFMA} v[{O}:{O+15}], v[{V2[0]}:{V2[0]+3}], v[{P+4}:{P+7}], v[{O}:{O+15}]")
        k(f"v_add_u32 v{VKA}, 1024, v{VKA}")
        k(f"v_add_u32 v{VVA}, v{VINC}, v{VVA}")
        k("s_add_u32 s38, s38, 1")
        k("s_cmp_lt_u32 s38, 64")
        k.nop(14)
        k(f"s_cbranch_scc1 {fl}")
        k(f"s_branch {fin}")
    tail.append(fallback)

def p2_relayout(k):
    k(f"""
    s_sub_u32 s29, s{SW}, 9
    v_lshrrev_b32 v4, 2, v2
    s_lshl_b32 s35, s29, 4
    v_add_u32 v4, s35, v4
    v_cmp_gt_u32 vcc, 20, v4
    v_lshlrev_b32 v4, 9, v4
    v_and_b32 v5, 1, v2
    v_lshl_add_u32 v4, v5, 4, v4
    v_bfe_u32 v6, v2, 1, 1
    v_lshl_add_u32 v4, v6, 6, v4
    v_add_u32 v4, {CSTRIP}, v4
    v_mul_u32_u24 v8, 0x3f80, v5
    v_lshl_or_b32 v8, v8, 16, v8
    v_mov_b32 v9, v8
    v_mov_b32 v10, v8
    v_mov_b32 v11, v8
    s_and_saveexec_b64 s[36:37], vcc
    ds_write_b128 v4, v[8:11]
    s_mov_b64 exec, s[36:37]
    """)
    early = OPT.get('rl_early', 0)
    if early < 2:
        k("s_waitcnt lgkmcnt(0)")
        k("s_barrier")
    if early < 1:
        k("s_barrier")
    loads, stores = relayout(k)
    loads(0); loads(1)
    srd(k, 44, 8, 512*1024)
    k("s_and_b32 s35, s29, 1")
    k("s_lshl_b32 s36, s2, 1")
    k("s_add_u32 s35, s35, s36")
    k("s_lshl_b32 s36, s35, 10")
    k("buffer_load_dwordx4 v[72:75], v3, s[44:47], s36 offen")
    if early >= 2:
        k("s_waitcnt lgkmcnt(0)")
        k("s_barrier")
    if early >= 1:
        k("s_barrier")
    k("s_waitcnt vmcnt(27)")
    stores(0)
    loads(2)
    k("s_waitcnt vmcnt(26)")
    stores(1)
    k(f"s_mov_b32 s36, {hex(ONES)}")
    k("v_dot2_f32_bf16 v76, v72, s36, 0")
    for d in range(1, 4): k(f"v_dot2_f32_bf16 v76, v{72+d}, s36, v76")
    k.nop(1)
    for ctl in ("quad_perm:[1,0,3,2]", "quad_perm:[2,3,0,1]", "row_half_mirror", "row_mirror"):
        k.nop(2)
        k(f"v_add_f32_dpp v76, v76, v76 {ctl} row_mask:0xf bank_mask:0xf")
    k.nop(1)
    for i in range(4): k(f"v_readlane_b32 s{48+i}, v76, {16*i}")
    k(f"""
    s_lshr_b32 s36, s35, 4
    s_lshl_b32 s36, s36, 6
    s_bfe_u32 s43, s35, 0x10002
    s_lshl_b32 s43, s43, 4
    s_add_u32 s36, s36, s43
    v_mov_b32 v76, s48
    v_add_f32 v76, s49, v76
    v_add_f32 v76, s50, v76
    v_add_f32 v76, s51, v76
    v_mul_f32 v76, {hex(f32(1/512))}, v76
    s_bfe_u32 s43, s35, 0x10003
    s_lshl_b32 s43, s43, 3
    s_add_u32 s36, s36, s43
    v_cvt_pk_bf16_f32 v77, v76, v76
    s_and_b32 s43, s35, 3
    s_lshl_b32 s43, s43, 1
    s_add_u32 s36, s36, s43
    v_and_b32 v78, 0xffff0000, v77
    v_sub_f32 v78, v76, v78
    s_add_u32 s36, s36, {WBT}
    v_cvt_pk_bf16_f32 v78, v78, v78
    v_mov_b32 v79, 0
    s_mov_b64 exec, 1
    buffer_store_short v77, v79, s[20:23], s36 offen sc1
    buffer_store_short v78, v79, s[20:23], s36 offen offset:32 sc1
    s_mov_b64 exec, -1
    """)
    k("s_waitcnt vmcnt(0)")
    stores(2)
    k("s_waitcnt vmcnt(0)")
    na = k.label("noarr")
    k(f"v_mov_b32 v5, {PROG + 48}")
    k("v_mov_b32 v6, 1")
    k("s_mov_b64 exec, 1")
    k("ds_add_rtn_u32 v7, v5, v6")
    k("s_waitcnt lgkmcnt(0)")
    k("v_readfirstlane_b32 s42, v7")
    k("s_cmp_lg_u32 s42, 2")
    k(f"s_cbranch_scc1 {na}")
    k(f"s_add_u32 s42, s{SXCD}, {CW}")
    arrive(k, 42)
    k.place(na)
    k("s_endpgm")

def p2_helper(k, done):
    ld = OPT['ld']
    k(f"s_lshl_b32 s33, s{SHEAD}, 16")
    def kv(c):
        for base, l in ((KF, 0), (VF, 65536)):
            for g in range(2):
                k(f"s_add_u32 s34, s33, {base + c*8192 + g*4096}")
                k(f"s_mov_b32 m0, {l + c*8192 + g*4096}")
                k.nop(1)
                for q in range(4):
                    k(f"buffer_load_dwordx4 v3, s[20:23], s34 offen" + (f" offset:{q*1024}" if q else "") + f" {ld} lds")
    kv(0); kv(1)
    k("s_waitcnt vmcnt(16)")
    k("s_barrier")
    issued = 2
    def publish(c):
        k(f"v_mov_b32 v5, {c if c < 7 else 64}")
        k("ds_write_b32 v4, v5")
    while issued < OPT.get('kvd', 3): kv(issued); issued += 1
    for c in range(1, 8):
        k(f"s_waitcnt vmcnt({16*(issued - 1 - c)})")
        publish(c)
        if issued < 8: kv(issued); issued += 1
    stamp(k, 12)
    k("s_setprio 3")
    k(f"s_lshl_b32 s42, s{SXCD}, 5")
    k(f"s_add_u32 s42, s42, {FX}")
    flag_poll(k, 42)
    k("s_getreg_b32 s58, hwreg(HW_REG_XCC_ID, 0, 4)")
    k("s_add_u32 s58, s58, 1")
    k("s_mov_b32 exec_hi, 0")
    k("v_cmp_ne_u32 vcc, s58, v10")
    k("s_cmp_eq_u64 vcc, 0")
    k(f"s_cselect_b32 s{SLOC}, 1, 0")
    k(f"v_mov_b32 v5, s{SLOC}")
    k("ds_write_b32 v4, v5 offset:16")
    k("s_mov_b64 exec, -1")
    m5 = OPT.get('t5', 0)
    if m5:
        k(f"s_lshl_b32 s43, s{SXCD}, 5")
        k(f"s_add_u32 s43, s43, s{SIDX}")
        if m5 & 1:
            k(f"s_mul_i32 s42, s43, {172*128}")
            k(f"s_add_u32 s42, s42, {ACT}")
            touch(k, 42, 172)
        for bit, base in ((2, HF), (4, OF)):
            if m5 & bit:
                k(f"s_lshl_b32 s42, s43, 13")
                k(f"s_add_u32 s42, s42, {base}")
                touch(k, 42, 64)
        if m5 & 8:
            srd(k, 44, 18, 2*MB)
            k("s_lshl_b32 s42, s43, 13")
            k("buffer_load_dword v40, v12, s[44:47], s42 offen")
    k("s_mov_b32 s55, 0")
    if OPT.get('t2', 1):
        again, skip, ok = k.label("t2a"), k.label("t2s"), k.label("t2o")
        k(f"""
        s_mov_b32 s40, {CNT + CW*256}
        s_mov_b32 exec_lo, 0xff
        s_mov_b32 exec_hi, 0
        v_lshlrev_b32 v9, 8, v2
        s_mov_b32 s41, 0
        """)
        k.place(again)
        k(f"s_sleep {OPT.get('slpw', 32)}")
        k("buffer_load_dword v10, v9, s[20:23], s40 offen sc1")
        k("ds_read_b32 v11, v4 offset:32")
        k("s_waitcnt vmcnt(0) lgkmcnt(0)")
        k("v_readfirstlane_b32 s41, v11")
        k("v_cmp_gt_u32 vcc, 32, v10")
        k(f"s_cmp_ge_u32 s41, {OPT.get('t2lim', 6)}")
        k(f"s_cbranch_scc1 {skip}")
        k("s_cmp_lg_u64 vcc, 0")
        k(f"s_cbranch_scc1 {again}")
        k("s_mov_b32 s55, 1")
        k("s_mov_b64 exec, -1")
        for base, tot in [(WOF, 4096), (WGF, 43*256), (WGF + 43*32768, 43*256), (WDF, 43*256)][OPT.get('t2a', 0):OPT.get('t2b', 3)]:
            per = tot // 32
            k(f"s_mul_i32 s42, s{SIDX}, {per*128}")
            k(f"s_add_u32 s42, s42, {base}")
            touch(k, 42, per)
        k.place(skip)
        k("s_mov_b64 exec, -1")

def res_cfg(mode):
    if mode == 'wo':
        return dict(NKS=32, JL=16, WIN=16, BSRC=OF, ASRC=WOF, RES=XF)
    return dict(NKS=86, JL=39, WIN=OPT.get('win5', 12), BSRC=ACT, ASRC=WDF, RES=HF)

def res_map(k):
    k(f"""
    s_lshl_b32 s27, s{SXCD}, 2
    s_and_b32 s28, s{SIDX}, 3
    s_add_u32 s27, s27, s28
    s_lshr_b32 s28, s{SIDX}, 2
    """)

def res_consumer(k, mode, sb):
    c_ = res_cfg(mode); NKS, JL, WIN = c_['NKS'], c_['JL'], c_['WIN']
    NH = NKS // 2
    wo = mode == 'wo'
    SRB, SCB = 27, 28
    ld = OPT['ld']
    R, ACC, AB, AT, AM, WM = 8, 16, 48, 80, 144, 160
    BW = 80 if wo else 112
    res_map(k)
    k(f"""
    s_and_b32 s29, s{SW}, 1
    s_lshl_b32 s30, s{SRB}, 1
    s_add_u32 s30, s30, s29
    s_lshr_b32 s31, s{SW}, 1
    s_lshl_b32 s32, s{SCB}, 1
    s_add_u32 s32, s32, s31
    s_mul_i32 s33, s31, 3072
    v_add_u32 v6, s33, v3
    s_lshl_b32 s33, s31, 10
    s_add_u32 s33, s33, 1024
    v_add_u32 v7, s33, v3
    s_mul_i32 s34, s31, {NH}
    s_mul_i32 s35, s30, {NKS}
    s_add_u32 s35, s35, s34
    s_lshl_b32 s35, s35, 10
    s_add_u32 s35, s35, {c_['BSRC']}
    """)
    if wo:
        k(f"""
        s_lshl_b32 s40, s30, 5
        s_lshl_b32 s41, s32, 1
        s_add_u32 s40, s40, s41
        s_lshl_b32 s40, s40, 10
        s_add_u32 s41, s40, {XF}
        buffer_load_dwordx4 v[{R}:{R+3}], v3, s[20:23], s41 offen {ld}
        buffer_load_dwordx4 v[{R+4}:{R+7}], v3, s[20:23], s41 offen offset:1024 {ld}
        s_add_u32 s41, s40, {HF}
        s_lshl_b32 s47, s32, 13
        s_lshl_b32 s48, s30, 7
        s_add_u32 s47, s47, s48
        s_add_u32 s47, s47, {ST}
        s_add_u32 s48, s48, {MX}
        v_and_b32 v0, 1, v2
        v_lshlrev_b32 v0, 5, v0
        v_lshrrev_b32 v1, 5, v2
        v_lshl_add_u32 v0, v1, 4, v0
        s_lshl_b32 s33, s31, 10
        s_add_u32 s33, s33, {WBL}
        v_add_u32 v0, s33, v0
        """)
    else:
        for q in range(2):
            k(f"s_xor_b32 s36, s32, {q}")
            k(f"s_mul_i32 s36, s36, {NKS}")
            k(f"s_add_u32 s36, s36, s34")
            k(f"s_lshl_b32 s36, s36, 10")
            k(f"s_add_u32 s36, s36, {c_['ASRC'] + JL*1024}")
            for j in range(NH - JL):
                r = AT + 8*j + 4*q
                k(f"buffer_load_dwordx4 v[{r}:{r+3}], v3, s[20:23], s36 offen" + (f" offset:{j*1024}" if j else "") + f" {ld}")
        srd(k, 52, 18, 2*MB)
        k(f"""
        v_and_b32 v8, 31, v2
        v_lshlrev_b32 v8, 10, v8
        v_lshrrev_b32 v9, 5, v2
        v_lshl_add_u32 v8, v9, 4, v8
        s_lshl_b32 s47, s30, 15
        s_lshl_b32 s48, s32, 6
        s_add_u32 s47, s47, s48
        """)
        if OPT.get('fl', 1):
            k(f"""
            s_lshl_b32 s36, s31, 2
            v_add_u32 v10, s36, v9
            v_and_b32 v12, 7, v2
            v_xor_b32 v10, v10, v12
            v_xor_b32 v11, 2, v10
            v_and_b32 v13, 31, v2
            s_lshl_b32 s36, s29, 12
            s_add_u32 s36, s36, 32768
            v_lshl_add_u32 v13, v13, 7, s36
            v_lshl_add_u32 v10, v10, 4, v13
            v_lshl_add_u32 v11, v11, 4, v13
            v_lshrrev_b32 v13, 3, v2
            v_xor_b32 v14, v12, v13
            v_lshlrev_b32 v14, 4, v14
            v_lshl_add_u32 v13, v13, 10, v14
            s_lshl_b32 s36, s{SW}, 11
            s_add_u32 s36, s36, 32768
            v_add_u32 v12, s36, v3
            s_lshl_b32 s47, s{SRB}, 16
            s_lshl_b32 s48, s{SW}, 14
            s_add_u32 s47, s47, s48
            s_lshl_b32 s48, s{SCB}, 7
            s_add_u32 s47, s47, s48
            """)
    RED = 6*20480 if wo else 0
    if wo:
        for v, x in ((4, 2), (5, 0)):
            k(f"s_xor_b32 s36, s{SW}, {x}")
            k(f"s_lshl_b32 s37, s36, 12")
            k(f"s_cmp_eq_u32 s36, 3")
            k(f"s_cselect_b32 s37, 20480, s37")
            k(f"s_add_u32 s37, s37, {RED}")
            k(f"v_add_u32 v{v}, s37, v3")
            k(f"s_lshl_b32 s36, s36, 8")
            k(f"s_add_u32 s{38 + (x >> 1)}, s36, {RED + 20480 + 4096}")
    else:
        k(f"s_xor_b32 s36, s{SW}, 2")
        k(f"s_lshl_b32 s36, s36, 12")
        k(f"v_add_u32 v4, s36, v3")
        k(f"s_lshl_b32 s36, s{SW}, 12")
        k(f"v_add_u32 v5, s36, v3")
    k("s_mov_b32 s45, 0xffff0000")
    if wo: k("s_setprio 3")
    k("s_barrier")
    stamp(k, sb)
    if wo:
        k("v_and_b32 v1, 31, v2")
        k("v_lshlrev_b32 v1, 2, v1")
        k(f"buffer_load_dword v1, v1, s[20:23], s48 offen {ld}")
    def bload(j):
        if j % 4 == 0: k(f"s_add_u32 s36, s35, {j*1024}")
        r = BW + 4*(j % WIN)
        k(f"buffer_load_dwordx4 v[{r}:{r+3}], v3, s[20:23], s36 offen" + (f" offset:{(j % 4)*1024}" if j % 4 else "") + f" {ld}")
    ds = []; seg = [0]
    def ard(j, q):
        if j < JL:
            ad = wo_addr(j) if wo else j*4096
            if q == 0 and ad - seg[0] > 61440:
                k(f"v_add_u32 v6, {ad - seg[0]}, v6")
                k(f"v_add_u32 v7, {ad - seg[0]}, v7")
                seg[0] = ad
            r = AB + 8*(j & 3) + 4*q
            k(f"ds_read_b128 v[{r}:{r+3}], v{6+q} offset:{ad - seg[0]}"); ds.append(j)
    def mrd(j):
        if wo and j < NH:
            k(f"ds_read_b128 v[{WM+4*(j&1)}:{WM+4*(j&1)+3}], v0 offset:{j*64}"); ds.append(j)
    nb = min(WIN, NH)
    for j in range(nb): bload(j)
    if wo: k("s_setprio 0")
    for j in range(3):
        ard(j, 0); ard(j, 1)
        if j < 2: mrd(j)
    for j in range(NH):
        lg = (len(ds) - 1 - max(i for i, x in enumerate(ds) if x == j)) if j in ds else None
        k(f"s_waitcnt vmcnt({nb - 1 - j})" + (f" lgkmcnt({lg})" if lg is not None else ""))
        A = AB + 8*(j & 3) if j < JL else AT + 8*(j - JL)
        B = BW + 4*(j % WIN)
        for q in range(2):
            C = "0" if j == 0 else f"v[{ACC+16*q}:{ACC+16*q+15}]"
            k(f"{MFMA} v[{ACC+16*q}:{ACC+16*q+15}], v[{A+4*q}:{A+4*q+3}], v[{B}:{B+3}], {C}")
            ard(j + 3, q)
        if wo:
            C = "0" if j == 0 else f"v[{AM}:{AM+15}]"
            k(f"{MFMA} v[{AM}:{AM+15}], v[{WM+4*(j&1)}:{WM+4*(j&1)+3}], v[{B}:{B+3}], {C}")
            mrd(j + 2)
        if nb < NH:
            bload(nb); nb += 1
    stamp(k, sb + 1)
    U = 48
    RS_ = R if wo else KEEP
    for d in range(8):
        k(f"v_lshlrev_b32 v{U+2*d}, 16, v{RS_+d}")
        k(f"v_and_b32 v{U+2*d+1}, s45, v{RS_+d}")
    if not RED: k("s_barrier")
    for g in range(4):
        k(f"ds_write_b128 v4, v[{ACC+16+4*g}:{ACC+19+4*g}] offset:{g*1024}")
    if wo:
        k(f"v_add_f32 v{AM}, v{AM}, v{AM+1}")
        k(f"v_lshl_add_u32 v{AM+2}, v2, 2, s39")
        k(f"v_lshl_add_u32 v{AM+3}, v2, 2, s38")
        k(f"ds_write_b32 v{AM+2}, v{AM}")
        k(f"v_add_f32 v0, v{AM}, v1")
    for r in range(0, 16, 2):
        k(f"v_pk_add_f32 v[{ACC+r}:{ACC+r+1}], v[{ACC+r}:{ACC+r+1}], v[{U+r}:{U+r+1}]")
    k("s_waitcnt lgkmcnt(0)")
    k("s_barrier")
    if wo: k(f"ds_read_b32 v1, v{AM+3}")
    for g in range(4):
        k(f"ds_read_b128 v[{U+4*g}:{U+4*g+3}], v5 offset:{g*1024}")
    P = 64
    for g in range(4):
        k(f"s_waitcnt lgkmcnt({3-g})")
        if wo and g == 0: k("v_add_f32 v0, v0, v1")
        for r in (4*g, 4*g+2):
            k(f"v_pk_add_f32 v[{ACC+r}:{ACC+r+1}], v[{ACC+r}:{ACC+r+1}], v[{U+r}:{U+r+1}]")
        if wo:
            for r in (4*g, 4*g+2):
                k(f"v_pk_add_f32 v[{U+r}:{U+r+1}], v[{ACC+r}:{ACC+r+1}], v[0:1] op_sel_hi:[1,0] neg_lo:[0,1] neg_hi:[0,1]")
            for d in (2*g, 2*g+1):
                k(f"v_cvt_pk_bf16_f32 v{P+d}, v{U+2*d}, v{U+2*d+1}")
            if g & 1:
                pub_store(k, [f"buffer_store_dwordx4 v[{P+2*g-2}:{P+2*g+1}], v3, s[20:23], s41 offen" + (" offset:1024" if g == 3 else "")], 1)
        else:
            for d in (2*g, 2*g+1):
                k(f"v_cvt_pk_bf16_f32 v{P+d}, v{ACC+2*d}, v{ACC+2*d+1}")
    if wo:
        SQ = 72
        k(f"v_dot2_f32_bf16 v{SQ}, v{P}, v{P}, 0")
        k(f"v_dot2_f32_bf16 v{SQ+1}, v{P+1}, v{P+1}, 0")
        for d in range(2, 8):
            k(f"v_dot2_f32_bf16 v{SQ+(d&1)}, v{P+d}, v{P+d}, v{SQ+(d&1)}")
        k("v_lshlrev_b32 v0, 2, v2")
        k.nop(2)
        k(f"v_add_f32 v{SQ}, v{SQ}, v{SQ+1}")
        half_sum(k, SQ, 74, 75)
        k("s_mov_b32 exec_hi, 0")
        pub_store(k, [f"buffer_store_dword v{SQ}, v0, s[20:23], s47 offen"], 1)
        k("s_mov_b64 exec, -1")
        for d in range(8):
            k(f"v_cvt_pk_bf16_f32 v{KEEP+d}, v{ACC+2*d}, v{ACC+2*d+1}")
        k("s_waitcnt vmcnt(0)")
        k("s_barrier")
    else:
        k.nop(2)
        k(f"""
        v_permlane32_swap_b32 v{P}, v{P+2}
        v_permlane32_swap_b32 v{P+1}, v{P+3}
        v_permlane32_swap_b32 v{P+4}, v{P+6}
        v_permlane32_swap_b32 v{P+5}, v{P+7}
        """)
        sto = OPT.get('sto', '')
        if OPT.get('fl', 1):
            k(f"ds_write_b128 v10, v[{P}:{P+3}]")
            k(f"ds_write_b128 v11, v[{P+4}:{P+7}]")
            k("s_waitcnt lgkmcnt(0)")
            k("s_barrier")
            k(f"ds_read_b128 v[{P}:{P+3}], v12")
            k(f"ds_read_b128 v[{P+4}:{P+7}], v12 offset:1024")
            k("s_waitcnt lgkmcnt(1)")
            k(f"buffer_store_dwordx4 v[{P}:{P+3}], v13, s[52:55], s47 offen {sto}")
            k("s_add_u32 s47, s47, 8192")
            k("s_waitcnt lgkmcnt(0)")
            k(f"buffer_store_dwordx4 v[{P+4}:{P+7}], v13, s[52:55], s47 offen {sto}")
        else:
            k.nop(1)
            k(f"buffer_store_dwordx4 v[{P}:{P+3}], v8, s[52:55], s47 offen {sto}")
            k(f"buffer_store_dwordx4 v[{P+4}:{P+7}], v8, s[52:55], s47 offen offset:32 {sto}")

def res_wsetup(k, mode):
    c_ = res_cfg(mode); NKS = c_['NKS']
    k(f"""
    s_sub_u32 s45, s{SW}, 4
    s_lshr_b32 s44, s{SIDX}, 2
    s_lshl_b32 s44, s44, 1
    s_and_b32 s46, s45, 1
    s_add_u32 s44, s44, s46
    s_mul_i32 s44, s44, {NKS}
    s_lshr_b32 s46, s45, 1
    s_mul_i32 s46, s46, {NKS//2}
    s_add_u32 s44, s44, s46
    s_lshl_b32 s44, s44, 10
    s_add_u32 s44, s44, {c_['ASRC']}
    s_lshl_b32 s45, s45, 10
    """)

def wo_addr(j):
    return (j >> 1)*20480 + 12288 + (j & 1)*4096

def res_wload(k, j0, j1, wo=False):
    for j in range(j0, j1):
        k(f"s_add_u32 s46, s44, {j*1024}")
        dma(k, 3, 20, 46, f"s45, {wo_addr(j) if wo else j*4096}", 0, OPT['ld'])

SLOT4, RING4, NCH4 = 20480, 8, 16
def p4_map(k):
    k(f"""
    s_lshl_b32 s27, s{SXCD}, 1
    s_cmp_ge_u32 s{SIDX}, 15
    s_cselect_b32 s28, 1, 0
    s_add_u32 s27, s27, s28
    s_mul_i32 s28, s28, 15
    s_sub_u32 s28, s{SIDX}, s28
    s_min_u32 s28, s28, 15
    """)

def p4_consumer(k):
    ld = OPT['ld']
    skip, fin = k.label("p4skip"), k.label("p4fin")
    XB = [8, 16]; WB = [24, 36]; ACC = 64; R2 = [0, 4]; STR = 48
    p4_map(k)
    k("s_cmp_eq_u32 s28, 15")
    k(f"s_cbranch_scc1 {skip}")
    k(f"""
    s_and_b32 s29, s{SW}, 1
    s_lshr_b32 s31, s{SW}, 1
    s_lshl_b32 s30, s27, 2
    s_lshl_b32 s33, s29, 1
    s_add_u32 s30, s30, s33
    s_lshl_b32 s33, s29, 12
    s_add_u32 s33, s33, 12288
    v_add_u32 v7, s33, v3
    s_mul_i32 s33, s31, 6144
    v_add_u32 v6, s33, v3
    s_mul_i32 s40, s30, 86
    s_mul_i32 s41, s28, 6
    s_mul_i32 s33, s31, 3
    s_add_u32 s41, s41, s33
    s_add_u32 s40, s40, s41
    s_lshl_b32 s40, s40, 10
    s_add_u32 s40, s40, {ACT}
    s_mov_b32 s47, 0
    s_lshl_b32 s32, s30, 7
    s_add_u32 s32, s32, {ST}
    v_and_b32 v4, 31, v2
    v_lshlrev_b32 v4, 2, v4
    v_lshrrev_b32 v8, 5, v2
    v_lshl_add_u32 v4, v8, 13, v4
    s_mov_b32 s48, 0
    """)
    for r in range(96): k(f"v_mov_b32 v{ACC+r}, 0")
    k("s_barrier")
    stamp(k, 9)
    for i in range(8):
        k(f"s_add_u32 s35, s32, {i*16384}")
        k(f"buffer_load_dword v{STR+i}, v4, s[20:23], s35 offen {ld}")
        k(f"buffer_load_dword v{STR+8+i}, v4, s[20:23], s35 offen offset:128 {ld}")
    def wrd(u, b, m):
        return f"ds_read_b128 v[{b+4*m}:{b+4*m+3}], v6 offset:{m*2048 + (u & 1)*1024}"
    def xrd(u, b, t):
        return f"ds_read_b128 v[{b+4*t}:{b+4*t+3}], v7 offset:{t*2048 + (u & 1)*1024}"
    def reads(u):
        return [wrd(u, WB[u & 1], 0), xrd(u, XB[u & 1], 0), xrd(u, XB[u & 1], 1), wrd(u, WB[u & 1], 1), wrd(u, WB[u & 1], 2)]
    k("s_barrier")
    stamp(k, 10)
    for l in reads(0): k(l)
    ml = k.label("p4ml")
    k(".p2align 3")
    k.place(ml)
    for u in range(2):
        if u == 1:
            k(f"s_add_u32 s48, s48, 1")
            k(f"s_and_b32 s48, s48, {RING4-1}")
            k(f"s_cselect_b32 s49, s50, s51")
            k("s_add_u32 s47, s47, 1")
            k("s_barrier")
            k("v_add_u32 v7, s49, v7")
            k("v_add_u32 v6, s49, v6")
            k(f"s_cmp_lt_u32 s47, {NCH4}")
        b, x = WB[u], XB[u]
        nx = reads(u + 1)
        for i in range(6):
            m, t = i >> 1, i & 1
            if i == 0: k("s_waitcnt lgkmcnt(2)")
            if i == 2: k("s_waitcnt lgkmcnt(2)")
            k(f"{MFMA} v[{ACC+16*i}:{ACC+16*i+15}], v[{b+4*m}:{b+4*m+3}], v[{x+4*t}:{x+4*t+3}], v[{ACC+16*i}:{ACC+16*i+15}]")
            if i < 5: k(nx[i])
    k(f"s_cbranch_scc1 {ml}")
    stamp(k, 11)
    k("s_waitcnt vmcnt(0)")
    for t in range(2):
        S = STR + 8*t
        for i in (0, 2, 4, 6): k(f"v_add_f32 v{S+i}, v{S+i}, v{S+i+1}")
        k(f"v_add_f32 v{S}, v{S}, v{S+2}")
        k(f"v_add_f32 v{S+4}, v{S+4}, v{S+6}")
        k(f"v_add_f32 v{S}, v{S}, v{S+4}")
        k(f"v_mov_b32 v{S+1}, v{S}")
    k.nop(1)
    for t in range(2):
        k(f"v_permlane32_swap_b32 v{STR+8*t}, v{STR+8*t+1}")
    for t in range(2):
        S = STR + 8*t
        k(f"v_add_f32 v{S}, v{S}, v{S+1}")
        k(f"v_mov_b32 v{S+1}, {hex(f32(1e-5))}")
        k(f"v_fmac_f32 v{S+1}, {hex(f32(1/512))}, v{S}")
        k(f"v_rcp_f32 v{R2[t]}, v{S+1}")
    k("s_waitcnt lgkmcnt(0)")
    P = 8
    for i in range(6):
        m, t = i >> 1, i & 1
        G = ACC + 16*i
        if t == 0:
            k(f"s_add_u32 s33, s41, {m}")
            k("s_cmp_ge_u32 s33, 86")
            k(f"s_cbranch_scc1 {fin}")
        for r in range(8): k(f"v_max_f32 v{G+r}, 0, v{G+r}")
        for r in range(8, 16, 2):
            k(f"v_pk_mul_f32 v[{G+r}:{G+r+1}], v[{G+r}:{G+r+1}], v[{R2[t]}:{R2[t]+1}] op_sel_hi:[1,0]")
        for r in range(0, 8, 2):
            k(f"v_pk_mul_f32 v[{G+r}:{G+r+1}], v[{G+r}:{G+r+1}], v[{G+8+r}:{G+9+r}]")
        for d in range(4):
            k(f"v_cvt_pk_bf16_f32 v{P+4*i+d}, v{G+2*d}, v{G+2*d+1}")
        k(f"s_add_u32 s35, s40, {t*86*1024 + m*1024}")
        pub_store(k, [f"buffer_store_dwordx4 v[{P+4*i}:{P+4*i+3}], v3, s[20:23], s35 offen"], 2)
    k.place(fin)
    k("s_waitcnt vmcnt(0)")
    k.place(skip)
    k("s_barrier")

def p4_loader(k):
    ld = OPT['ld']
    D = OPT['depth4']
    skip, join = k.label("p4lskip"), k.label("p4ljoin")
    k("s_barrier")
    res_wsetup(k, 'down')
    p4_map(k)
    k("s_cmp_eq_u32 s28, 15")
    k(f"s_cbranch_scc1 {skip}")
    k(f"""
    s_sub_u32 s29, s{SW}, 4
    s_lshl_b32 s30, s27, 2
    s_add_u32 s30, s30, s29
    s_lshl_b32 s31, s30, 15
    s_add_u32 s31, s31, {HF}
    s_mul_i32 s33, s28, {6*32768}
    s_and_b32 s34, s29, 1
    s_lshl_b32 s34, s34, 10
    s_add_u32 s33, s33, s34
    s_lshr_b32 s35, s29, 1
    s_mul_i32 s37, s35, {3*32768}
    s_add_u32 s33, s33, s37
    s_mul_i32 s35, s35, 6144
    s_add_u32 s34, s34, s35
    s_lshl_b32 s36, s29, 11
    """)
    order = []
    def hpart(c):
        if OPT.get('z4b') and c > 0:
            order.append(('h', c)); order.pop(); return
        k(f"s_add_u32 s35, s31, {c*2048}")
        dma(k, 3, 20, 35, f"s36, {(c % RING4)*SLOT4 + 12288}", 0, ld)
        k(f"buffer_load_dwordx4 v3, s[20:23], s35 offen offset:1024 {ld} lds")
        order.extend([('h', c)]*2)
    def wpart(c):
        if OPT.get('z4b') and c > 0: return
        for t in range(3):
            k(f"s_add_u32 s35, s33, {WGF + t*32768 + c*2048}")
            dma(k, 3, 20, 35, f"s34, {(c % RING4)*SLOT4 + t*2048}", 0, ld)
        order.extend([('w', c)]*3)
    nw = OPT.get('p4pre', 4)
    for c in range(nw): wpart(c)
    k("s_barrier")
    k("s_barrier")
    while nw < OPT.get('p4pre2', 8): wpart(nw); nw += 1
    k("s_barrier")
    nh = 4
    for c in range(nh): hpart(c)
    for c in range(NCH4 + 1):
        if c < NCH4:
            last = max([i for i, o in enumerate(order) if o[1] == c] or [len(order) - 1])
            k(f"s_waitcnt vmcnt({len(order) - 1 - last})")
        k("s_barrier")
        m = 0
        while nh < NCH4 and nh <= c + D and m < 2:
            assert nh - RING4 <= c - 2
            hpart(nh); nh += 1; m += 1
        m = 0
        while nw < NCH4 and nw - RING4 <= c - 2 and m < 2:
            wpart(nw); nw += 1; m += 1
        if c >= 10:
            assert nh == NCH4 and nw == NCH4
            if not OPT.get('z4a'):
                res_wload(k, 5*(c-10), 5*(c-10) + 5); order.extend([('d', -1)]*5)
    k("s_barrier")
    k(f"s_branch {join}")
    k.place(skip)
    k("s_barrier")
    k("s_barrier")
    k("s_barrier")
    res_wload(k, 0, 35)
    k.place(join)
    res_wload(k, 35, 39)
    k("s_waitcnt vmcnt(0)")
    k("s_barrier")

def clean(k, n):
    m = OPT.get('wb', 0)
    if not (m >> n) & 1: return
    l = k.label("ncl")
    k(f"s_and_b32 s47, s{SIDX}, {OPT.get('wbm', 31)}")
    k(f"s_cmp_lg_u32 s47, 0")
    k(f"s_cbranch_scc1 {l}")
    k("buffer_wbl2 sc1")
    k.place(l)

def poller(k):
    sl = OPT.get('slpl', 2)
    stamp(k, 5)
    k("s_barrier")
    stamp(k, 6)
    k(f"s_lshl_b32 s43, s{SXCD}, 5")
    k(f"s_add_u32 s43, s43, {F2}")
    k(f"s_lshl_b32 s42, s{SQB}, 5")
    k(f"s_add_u32 s42, s42, s{SHEAD}")
    k(f"s_add_u32 s42, s42, {F2}")
    flag_set(k, 42, local=not OPT.get('amap', 1))
    seen = k.label("cwseen")
    k("s_cmp_eq_u32 s55, 1")
    k(f"s_cbranch_scc1 {seen}")
    k(f"s_mov_b32 s42, {CW}")
    poll(k, 42, 32, 8, 0)
    k.place(seen)
    k("s_barrier")
    flag_poll(k, 43, 32, OPT.get('slp2', 2))
    stamp(k, 7)
    k("s_barrier")
    k("s_barrier")
    k("s_barrier")
    stamp(k, 8)
    res_map(k)
    k("s_lshr_b32 s43, s27, 1")
    k("s_and_b32 s44, s27, 1")
    k("s_lshl_b32 s45, s28, 1")
    k("s_add_u32 s44, s44, s45")
    k("s_lshl_b32 s42, s43, 4")
    k("s_add_u32 s42, s42, s44")
    k(f"s_add_u32 s42, s42, {F3}")
    flag_set(k, 42, local=True)
    idle = k.label("pidle")
    p4_map(k)
    k("s_cmp_eq_u32 s28, 15")
    k(f"s_cbranch_scc1 {idle}")
    k("s_lshl_b32 s46, s27, 4")
    k(f"s_add_u32 s42, s46, {F3}")
    flag_poll(k, 42, 16, sl)
    stamp(k, 9)
    k("s_barrier")
    clean(k, 0)
    for i in range(NCH4 + 1):
        k("s_barrier")
        if i == OPT.get('t3at', 8) and OPT.get('t3', 0):
            k(f"s_mul_i32 s42, s{SIDX}, {368*128}")
            k(f"s_add_u32 s42, s42, {WDF}")
            touch(k, 42, 368)
    k("s_barrier")
    stamp(k, 10)
    k("s_add_u32 s42, s46, s28")
    k(f"s_add_u32 s42, s42, {F4}")
    flag_set(k, 42, local=True)
    j = k.label("pjoin")
    k(f"s_branch {j}")
    k.place(idle)
    k("s_barrier")
    k.place(j)
    k("s_lshl_b32 s42, s43, 4")
    k(f"s_add_u32 s42, s42, {F4}")
    flag_poll(k, 42, 15, sl)
    stamp(k, 11)
    k("s_barrier")
    clean(k, 1)
    diag_end(k)

def diag_end(k):
    if not DIAG: return
    k("s_waitcnt vmcnt(0)")
    stamp(k, 14)
    k("s_memrealtime s[94:95]")
    k(f"s_lshl_b32 s40, s2, 4")
    k(f"s_add_u32 s40, s40, s{SW}")
    k(f"s_lshl_b32 s40, s40, 7")
    k(f"s_add_u32 s40, s40, {DIAGB}")
    k("s_waitcnt lgkmcnt(0)")
    for i in range(15):
        k(f"s_sub_u32 s{64+2*i}, s{64+2*i}, s96")
        k(f"v_mov_b32 v{8+i}, s{64+2*i}")
    k("v_mov_b32 v23, s94")
    k("v_mov_b32 v24, s98")
    k("v_mov_b32 v4, 0")
    k("s_mov_b64 exec, 1")
    for i in range(4):
        k(f"buffer_store_dwordx4 v[{8+4*i}:{11+4*i}], v4, s[20:23], s40 offen offset:{16*i}")
    k(f"buffer_store_dword v24, v4, s[20:23], s40 offen offset:64")
    k(f"v_mov_b32 v25, s{SXCD}")
    k(f"buffer_store_dword v25, v4, s[20:23], s40 offen offset:68")
    if OPT.get('dbgout') is not None:
        l = k.label("dbo")
        k(f"s_lshl_b32 s41, s{SW}, 8")
        k(f"s_or_b32 s41, s41, s2")
        k(f"s_cmp_lg_u32 s41, {OPT['dbgout']}")
        k(f"s_cbranch_scc1 {l}")
        k("v_sub_u32 v8, v23, v24")
        for i in range(4):
            k(f"global_store_dwordx4 v4, v[{8+4*i}:{11+4*i}], s[60:61] offset:{4+16*i}")
        k.place(l)

def build(path):
    k = Kern(NAME)
    done, roleL, roleH, p2 = k.label("done"), k.label("L"), k.label("H"), k.label("p2")
    tail = []
    k(f"""
    s_cmp_ge_u32 s2, 256
    s_cbranch_scc1 {done}
    s_load_dwordx16 s[4:19], s[0:1], 0
    s_load_dwordx4 s[60:63], s[0:1], 64
    """)
    if DIAG:
        k("s_memtime s[96:97]")
        k("s_memrealtime s[98:99]")
    k(f"""
    v_lshrrev_b32 v1, 6, v0
    v_and_b32 v2, 63, v0
    s_and_b32 s{SXCD}, s2, 7
    s_lshr_b32 s{SIDX}, s2, 3
    v_readfirstlane_b32 s{SW}, v1
    v_lshlrev_b32 v3, 4, v2
    s_mov_b32 s50, {SLOT4}
    s_mov_b32 s51, {-(RING4-1)*SLOT4}
    """)
    if OPT.get('dyn', 1) != 2: p1_map(k)
    k("s_waitcnt lgkmcnt(0)")
    srd(k, 20, 62, WS_SIZE)
    if OPT.get('dyn', 1) == 2:
        early_role(k)
        p1_map(k)
    roleC = k.label("C")
    k(f"s_cmp_ge_u32 s{SW}, 8")
    k(f"s_cbranch_scc1 {roleH}")
    k(f"s_cmp_lt_u32 s{SW}, 4")
    k(f"s_cbranch_scc1 {roleC}")
    p1_loader(k)
    k(f"s_branch {p2}")
    k.place(roleH)
    p1_helper(k)
    H2 = k.label("H2")
    k(f"s_branch {H2}")
    k.place(roleC)
    p1_consumer(k)
    k.place(p2)
    p2_compute(k, tail)
    L3 = k.label("L3")
    k(f"s_cmp_ge_u32 s{SW}, 4")
    k(f"s_cbranch_scc1 {L3}")
    res_consumer(k, 'wo', 7)
    p4_consumer(k)
    res_consumer(k, 'down', 12)
    diag_end(k)
    k.place(done)
    k("s_endpgm")
    k.place(L3)
    res_wsetup(k, 'wo')
    res_wload(k, 0, 16, True)
    k(f"s_and_b32 s45, s45, 1024")
    k(f"s_add_u32 s46, s45, {WBT}")
    dma(k, 3, 20, 46, f"s45, {WBL}", 0, OPT['ld'])
    k("s_waitcnt vmcnt(0)")
    p4_loader(k)
    diag_end(k)
    k("s_endpgm")
    k.place(H2)
    p2_helper(k, done)
    poller(k)
    k("s_endpgm")
    k.place(RLAB[0])
    p2_relayout(k)
    for f in tail: f(k)
    k(f".fill (32768 - (. - {NAME}))/4, 4, 0xbf810000")
    hdr = """; Kernarg: 0 A_x, 8 A_wqkv, 16 A_wo, 24 B_x (unused), 32 W_gate, 40 W_up, 48 W_down, 56 out, 64 debug, 72 ws
; pre-LN transformer block in one persistent launch (256 workgroups, one per CU); generated by gen/gen4.py
; @launch grid=(256,1,1) block=(768,1,1) lds=163840
.amdgcn_target "amdgcn-amd-amdhsa--gfx950"
"""
    open(path, "w").write(hdr + k.text(168, 102 if DIAG else 64))

if __name__ == "__main__":
    for a in sys.argv[2:]:
        if "=" in a:
            kk, vv = a.split("=")
            OPT[kk] = int(vv) if vv.lstrip("-").isdigit() else vv.replace("+", " ")
    DIAG = "--diag" in sys.argv
    build(sys.argv[1])
```

```python
import sys, math
from dsl import Kern
from gen import (MB, QF, KF, VF, OF, XF, HF, ACT, WOF, WGF, WUF, WDF, ST, WS_SIZE, f32, ONES, MFMA, srd, half_sum,
                 finish_stats)
CNT = 25*MB
MX = 24*MB + 512*1024
WBT = MX + 65536
DIAGB = 28*MB
C1, C2, C3, C4, CW = 0, 8, 16, 32, 48
CSTRIP = 131072
PROG = CSTRIP + 10240
ROLE = 163832
WBL = 7*20480 + 8192
KEEP = 160
NAME = "sequential_preLN__softmax_full_mha__glu_gated_reglu__prompt_kernel"
OPT = dict(slp=8, kvd=2, d1=4, prio=1, ld="sc1", st="sc1", nb2=4, depth4=5)
SXCD, SIDX, SW = 24, 25, 26
SHEAD, SQB = 62, 63
MF16 = "v_mfma_f32_16x16x32_bf16"
DIAG = False

def rstamp(k, i):
    if DIAG:
        k(f"s_memrealtime s[{64+2*i}:{65+2*i}]")
        k("s_waitcnt lgkmcnt(0)")
        k(f"s_add_u32 s{64+2*i}, s{64+2*i}, s96")

def stamp(k, i):
    if DIAG: k(f"s_memtime s[{64+2*i}:{65+2*i}]")

def norm4(x, t, rs, nb, smask):
    ops = []
    for d in range(4):
        a, b = t[2*(d & 1)], t[2*(d & 1) + 1]
        ops.append([f"v_lshlrev_b32 v{a}, 16, v{x+d}", f"v_and_b32 v{b}, s{smask}, v{x+d}",
                    f"v_fma_f32 v{a}, v{a}, v{rs}, v{nb}", f"v_fma_f32 v{b}, v{b}, v{rs}, v{nb}",
                    f"v_cvt_pk_bf16_f32 v{x+d}, v{a}, v{b}"])
    o = []
    for p in (0, 2):
        for a, b in zip(ops[p], ops[p+1]): o += [a, b]
    return o

def lane_regs(k):
    k("v_mbcnt_lo_u32_b32 v2, -1, 0")
    k("v_mbcnt_hi_u32_b32 v2, -1, v2")
    k("v_lshlrev_b32 v3, 4, v2")

def dma(k, vo, srd_, so, m0expr, off=0, flag=""):
    k(f"s_add_u32 m0, {m0expr}")
    k.nop(1)
    k(f"buffer_load_dwordx4 v{vo}, s[{srd_}:{srd_+3}], s{so} offen" + (f" offset:{off}" if off else "") + f" {flag} lds")

def row8_sum(k, regs):
    for ctl in ("quad_perm:[1,0,3,2]", "quad_perm:[2,3,0,1]", "row_half_mirror"):
        k.nop(2)
        for r in regs:
            k(f"v_add_f32_dpp v{r}, v{r}, v{r} {ctl} row_mask:0xf bank_mask:0xf")

def arrive(k, sidx, va=8, vb=9):
    k(f"s_lshl_b32 s40, s{sidx}, 8")
    k(f"s_add_u32 s40, s40, {CNT}")
    k("s_mov_b64 exec, 1")
    k(f"v_mov_b32 v{va}, 1")
    k(f"v_mov_b32 v{vb}, 0")
    k(f"buffer_atomic_add v{va}, v{vb}, s[20:23], s40 offen sc1")

FLG = CNT + 65536
F1, F2, FX, F3, F4 = 0, 256, 512, 768, 1024
SLOC = 59
def pub_store(k, lines, stage=3):
    if not (OPT.get('loc', 8) >> stage) & 1:
        for l in lines: k(l + " " + OPT['st'])
        return
    a, b = k.label("ps"), k.label("pe")
    k(f"s_cmp_eq_u32 s{SLOC}, 1")
    k(f"s_cbranch_scc1 {a}")
    for l in lines: k(l + " " + OPT['st'])
    k(f"s_branch {b}")
    k.place(a)
    for l in lines: k(l + (" " + OPT.get('locf', '') if stage < 3 else ""))
    k.place(b)

def flag_set(k, sline, val="1", local=False):
    k(f"s_lshl_b32 s40, s{sline}, 7")
    k(f"s_add_u32 s40, s40, {FLG}")
    k("s_mov_b64 exec, 1")
    k(f"v_mov_b32 v8, {val}")
    k("v_mov_b32 v9, 0")
    if local: pub_store(k, ["buffer_store_dword v8, v9, s[20:23], s40 offen"])
    else: k("buffer_store_dword v8, v9, s[20:23], s40 offen sc1")

def flag_prep(k, sline):
    k(f"s_lshl_b32 s39, s{sline}, 7")
    k(f"s_add_u32 s39, s39, {FLG}")
    k("s_mov_b64 exec, 1")
    k("v_mov_b32 v14, 1")
    k("v_mov_b32 v15, 0")

def flag_fire(k, local):
    if local: pub_store(k, ["buffer_store_dword v14, v15, s[20:23], s39 offen"])
    else: k("buffer_store_dword v14, v15, s[20:23], s39 offen sc1")

def flag_poll(k, sline, n=32, slp=None):
    poll(k, sline, 1, n, slp, sh=7, base=FLG)

def poll(k, sidx, target, nlines=1, slp=None, sh=8, base=None):
    lp, out = k.label("poll"), k.label("pollx")
    k(f"s_lshl_b32 s40, s{sidx}, {sh}")
    k(f"s_add_u32 s40, s40, {CNT if base is None else base}")
    k(f"s_mov_b32 exec_lo, {hex((1 << nlines) - 1)}")
    k("s_mov_b32 exec_hi, 0")
    k(f"v_lshlrev_b32 v9, {sh}, v2")
    k("s_mov_b32 s41, 0")
    slp = OPT.get('slp', 2) if slp is None else slp
    k.place(lp)
    k("buffer_load_dword v10, v9, s[20:23], s40 offen sc1")
    k("s_add_u32 s41, s41, 1")
    k("s_cmp_gt_u32 s41, 0x40000")
    k(f"s_cbranch_scc1 {out}")
    k("s_waitcnt vmcnt(0)")
    k(f"v_cmp_gt_u32 vcc, {target}, v10" if target <= 64 else f"v_cmp_gt_u32 vcc, {hex(target)}, v10")
    k(f"s_cmp_eq_u64 vcc, 0")
    k(f"s_cbranch_scc1 {out}")
    if slp: k(f"s_sleep {slp}")
    k(f"s_branch {lp}")
    k.place(out)
    k("s_waitcnt vmcnt(0)")
    k("s_mov_b64 exec, -1")

def touch(k, base_s, nlines, reg=40):
    k("v_lshlrev_b32 v12, 7, v2")
    for i in range((nlines + 63)//64):
        rem = nlines - 64*i
        if rem < 64:
            k(f"s_mov_b32 exec_lo, {hex((1 << min(rem, 32)) - 1)}")
            k(f"s_mov_b32 exec_hi, {hex((1 << max(rem - 32, 0)) - 1)}")
        k(f"s_add_u32 s41, s{base_s}, {i*8192}")
        k(f"buffer_load_dword v{reg+i}, v12, s[20:23], s41 offen sc1")
    k("s_mov_b64 exec, -1")

def cold_touch(k):
    if OPT.get('t1', 0):
        l9, l10, l11 = k.label("t9"), k.label("t10"), k.label("t11")
        if OPT.get('t1d', 0): k(f"s_sleep {OPT['t1d']}")
        k(f"s_cmp_lg_u32 s{SW}, 9")
        k(f"s_cbranch_scc1 {l9}")
        srd(k, 44, 4, 2*MB)
        k("s_lshl_b32 s31, s2, 13")
        k("v_lshlrev_b32 v12, 7, v2")
        msk = sum(1 << i for i in range(32) if (i & 7) >= OPT.get('t1x', 1))
        k(f"s_mov_b32 exec_lo, {hex(msk)}")
        k(f"s_mov_b32 exec_hi, {hex(msk)}")
        k("buffer_load_dword v40, v12, s[44:47], s31 offen")
        k("s_mov_b64 exec, -1")
        k.place(l9)
        k(f"s_cmp_lg_u32 s{SW}, 10")
        k(f"s_cbranch_scc1 {l10}")
        k(f"s_cmp_lt_u32 s2, {32*OPT.get('t1x', 1) if OPT.get('t1w', 1) else 256}")
        k(f"s_cbranch_scc1 {l10}")
        srd(k, 44, 6, 512*3072)
        k("s_mul_i32 s31, s2, 6144")
        k("v_lshlrev_b32 v12, 7, v2")
        k("s_mov_b32 exec_hi, 0xffff")
        k("buffer_load_dword v40, v12, s[44:47], s31 offen")
        k("s_mov_b64 exec, -1")
        k.place(l10)

def early_role(k):
    nt, tk, tkd = k.label("nt"), k.label("etk"), k.label("etkd")
    k(f"s_cmp_lg_u32 s{SW}, 8")
    k(f"s_cbranch_scc1 {nt}")
    k("s_getreg_b32 s56, hwreg(HW_REG_XCC_ID, 0, 4)")
    k("s_and_b32 s56, s56, 7")
    k("s_mov_b64 exec, 1")
    k("v_mov_b32 v46, 1")
    k.place(tk)
    k("s_lshl_b32 s57, s56, 5")
    k("s_add_u32 s57, s57, 16")
    k("v_mov_b32 v45, s57")
    k("global_atomic_add v44, v45, v46, s[60:61] sc0 sc1")
    k("s_waitcnt vmcnt(0)")
    k("v_readfirstlane_b32 s57, v44")
    k("s_add_u32 s58, s56, 1")
    k("s_cmp_lt_u32 s57, 32")
    k(f"s_cbranch_scc1 {tkd}")
    k("s_and_b32 s56, s58, 7")
    k(f"s_branch {tk}")
    k.place(tkd)
    k("s_lshl_b32 s57, s57, 3")
    k("s_or_b32 s57, s57, s56")
    k(f"v_mov_b32 v4, {ROLE}")
    k("v_mov_b32 v5, s57")
    k("ds_write_b32 v4, v5")
    k("s_mov_b64 exec, -1")
    k("s_waitcnt lgkmcnt(0)")
    k.place(nt)
    cold_touch(k)
    k("s_barrier")
    role_read(k, True)

def role_read(k, force=False):
    if OPT.get('dyn', 1) != 1 and not force: return
    k(f"v_mov_b32 v4, {ROLE}")
    k("ds_read_b32 v4, v4")
    k("s_waitcnt lgkmcnt(0)")
    k(f"v_readfirstlane_b32 s{SIDX}, v4")
    k.nop(1)
    k(f"s_and_b32 s{SXCD}, s{SIDX}, 7")
    k(f"s_lshr_b32 s{SIDX}, s{SIDX}, 3")
    if OPT.get('amap', 1):
        k(f"s_lshl_b32 s{SHEAD}, s{SXCD}, 2")
        k(f"s_and_b32 s{SQB}, s{SIDX}, 3")
        k(f"s_add_u32 s{SHEAD}, s{SHEAD}, s{SQB}")
        k(f"s_lshr_b32 s{SQB}, s{SIDX}, 2")
    else:
        k(f"s_mov_b32 s{SHEAD}, s{SIDX}")
        k(f"s_mov_b32 s{SQB}, s{SXCD}")

def p1_map(k):
    k(f"""
    s_lshr_b32 s27, s{SXCD}, 1
    s_lshl_b32 s27, s27, 3
    s_and_b32 s28, s{SIDX}, 7
    s_add_u32 s27, s27, s28
    s_and_b32 s28, s{SXCD}, 1
    s_lshl_b32 s28, s28, 2
    s_lshr_b32 s29, s{SIDX}, 3
    s_add_u32 s28, s28, s29
    """)
EXC = 65536 + 3*12288
EXS = 65536 + 2*12288

def p1_consumer(k):
    SRB, SCB = 27, 28
    VXA, VWA = 12, 16
    WB = [20, 32, 44, 56]; XB = [68, 72, 76, 80]; ACC = 84; CS = 132; SEL = 144
    k(f"""
    v_and_b32 v8, 31, v2
    v_lshrrev_b32 v4, 5, v2
    v_lshrrev_b32 v5, 1, v8
    v_and_b32 v5, 7, v5
    s_and_b32 s34, s{SW}, 1
    s_lshl_b32 s35, s34, 12
    v_lshlrev_b32 v6, 7, v8
    v_add_u32 v6, s35, v6
    """)
    for u in range(4):
        k(f"v_add_u32 v7, {2*u}, v4")
        k(f"v_xor_b32 v7, v7, v5")
        k(f"v_lshl_add_u32 v{VXA+u}, v7, 4, v6")
    k(f"""
    s_lshr_b32 s36, s{SW}, 1
    v_bfe_u32 v5, v2, 2, 2
    v_lshl_add_u32 v6, v4, 3, v5
    v_lshlrev_b32 v6, 7, v6
    v_bfe_u32 v7, v2, 4, 1
    v_lshlrev_b32 v7, 1, v7
    v_bfe_u32 v11, v2, 1, 1
    v_add_u32 v7, v7, v11
    s_lshl_b32 s37, s36, 2
    v_add_u32 v7, s37, v7
    v_lshrrev_b32 v5, 1, v5
    v_lshlrev_b32 v5, 2, v5
    v_xor_b32 v7, v7, v5
    v_lshl_add_u32 v6, v7, 4, v6
    v_and_b32 v7, 1, v2
    v_lshl_add_u32 v{VWA+1}, v7, 3, v6
    v_add_u32 v{VWA+1}, 0x10000, v{VWA+1}
    v_mov_b32 v{VWA}, v{VWA+1}
    v_and_b32 v5, 15, v2
    v_bfe_u32 v7, v2, 4, 1
    v_cmp_eq_u32 vcc, v5, v7
    v_mov_b32 v6, {hex(ONES)}
    s_mov_b32 s47, 0
    v_cndmask_b32 v{SEL}, 0, v6, vcc
    """)
    for i in range(1, 4): k(f"v_mov_b32 v{SEL+i}, v{SEL}")
    for i in range(60): k(f"v_mov_b32 v{ACC+i}, 0")
    k(f"""
    s_lshl_b32 s40, s{SCB}, 2
    s_lshl_b32 s41, s36, 1
    s_add_u32 s40, s40, s41
    s_lshl_b32 s40, s40, 16
    s_lshl_b32 s41, s{SRB}, 1
    s_add_u32 s41, s41, s34
    s_lshl_b32 s41, s41, 10
    s_add_u32 s40, s40, s41
    v_bfe_u32 v9, v2, 4, 1
    v_lshlrev_b32 v9, 16, v9
    v_lshl_add_u32 v9, v4, 8, v9
    v_lshl_add_u32 v9, v5, 4, v9
    s_add_u32 s43, s40, {QF + 65536}
    s_add_u32 s44, s40, {KF}
    s_add_u32 s45, s40, {KF + 65536}
    s_add_u32 s46, s40, {VF}
    s_mov_b32 s48, 0
    """)
    k("s_waitcnt lgkmcnt(0)")
    srd(k, 20, 62, WS_SIZE)
    def xrd(u, b): k(f"ds_read_b128 v[{b}:{b+3}], v{VXA+u}")
    def wrd(u, b, p):
        for r in range(2):
            k(f"ds_read_b64_tr_b16 v[{b+4*p+2*r}:{b+4*p+2*r+1}], v{VWA} offset:{(u >> 1)*12288 + p*4096 + (u & 1)*2048 + r*512}")
    stamp(k, 0)
    k("s_barrier")
    stamp(k, 1)
    for u in range(2):
        xrd(u, XB[u])
        for p in range(3): wrd(u, WB[u], p)
    odd, ep = k.label("p1odd"), k.label("p1ep")
    k("s_cmp_eq_u32 s34, 1")
    k(f"s_cbranch_scc1 {odd}")
    for par in range(2):
        if par == 1: k.place(odd)
        ml = k.label("p1ml")
        k(".p2align 3")
        k.place(ml)
        for u in range(4):
            if u == 2:
                k("s_add_u32 s48, s48, 24576")
                k(f"s_cmp_eq_u32 s48, {8*12288}")
                k("s_cselect_b32 s48, 0, s48")
                k(f"v_add_u32 v{VXA}, 8192, v{VXA}")
                k(f"v_add_u32 v{VXA+1}, 8192, v{VXA+1}")
                k("s_barrier")
                k(f"v_add_u32 v{VWA}, s48, v{VWA+1}")
            b, x = WB[u], XB[u]
            nu = (u+2) & 3
            cs = (u & 1) == par and not OPT.get('z_nocs')
            k("s_waitcnt lgkmcnt(7)")
            k(f"{MFMA} v[{ACC}:{ACC+15}], v[{b}:{b+3}], v[{x}:{x+3}], v[{ACC}:{ACC+15}]")
            xrd(nu, XB[nu])
            wrd(nu, WB[nu], 0)
            if cs: k(f"{MF16} v[{CS}:{CS+3}], v[{SEL}:{SEL+3}], v[{b}:{b+3}], v[{CS}:{CS+3}]")
            k(f"{MFMA} v[{ACC+16}:{ACC+31}], v[{b+4}:{b+7}], v[{x}:{x+3}], v[{ACC+16}:{ACC+31}]")
            wrd(nu, WB[nu], 1)
            if cs: k(f"{MF16} v[{CS+4}:{CS+7}], v[{SEL}:{SEL+3}], v[{b+4}:{b+7}], v[{CS+4}:{CS+7}]")
            k(f"{MFMA} v[{ACC+32}:{ACC+47}], v[{x}:{x+3}], v[{b+8}:{b+11}], v[{ACC+32}:{ACC+47}]")
            wrd(nu, WB[nu], 2)
            if cs: k(f"{MF16} v[{CS+8}:{CS+11}], v[{SEL}:{SEL+3}], v[{b+8}:{b+11}], v[{CS+8}:{CS+11}]")
            if u == 3:
                for q in range(2, 4): k(f"v_add_u32 v{VXA+q}, 8192, v{VXA+q}")
                k("s_add_u32 s47, s47, 1")
                k("s_cmp_lt_u32 s47, 8")
        k(f"s_cbranch_scc1 {ml}")
        if par == 0: k(f"s_branch {ep}")
    k.place(ep)
    stamp(k, 2)
    k(f"""
    s_lshl_b32 s35, s34, 1
    s_add_u32 s35, s35, s36
    s_mul_i32 s35, s35, 384
    s_add_u32 s35, s35, {EXC}
    v_lshl_add_u32 v5, v2, 2, s35
    s_mul_i32 s37, s36, 384
    s_add_u32 s37, s37, {EXC}
    v_lshl_add_u32 v6, v4, 4, s37
    v_lshl_add_u32 v7, v8, 2, s37
    s_lshl_b32 s38, s34, 7
    s_add_u32 s38, s38, {EXS}
    v_lshl_add_u32 v10, v8, 2, s38
    v_lshl_add_u32 v11, v4, 4, s38
    s_mov_b64 exec, 0xffff
    """)
    for p in range(3):
        k(f"ds_write2_b32 v5, v{CS+4*p}, v{CS+4*p+1} offset0:{32*p} offset1:{32*p+16}")
    k("s_mov_b64 exec, -1")
    k("s_waitcnt lgkmcnt(0)")
    k("s_barrier")
    A, B, RSV, NBV = 20, 36, 52, 68
    RS, NB, CV = 132, 134, 136
    k(f"ds_read_b32 v{RS}, v10")
    k(f"ds_read_b32 v{NB}, v10 offset:256")
    def csrd(p):
        for g in range(4):
            k(f"ds_read_b128 v[{A+4*g}:{A+4*g+3}], v6 offset:{p*128 + g*32}")
            k(f"ds_read_b128 v[{B+4*g}:{B+4*g+3}], v6 offset:{768 + p*128 + g*32}")
    csrd(0)
    k(f"ds_read_b32 v{CV}, v7 offset:256")
    k(f"ds_read_b32 v{CV+1}, v7 offset:{768 + 256}")
    k(f"s_mov_b32 s42, {hex(f32(0.25*math.log2(math.e)))}")
    k("s_waitcnt lgkmcnt(10)")
    k(f"v_mul_f32 v138, s42, v{RS}")
    k(f"v_mul_f32 v140, s42, v{NB}")
    st = OPT['st']
    P = 144
    def fold(acc, rs, nb):
        for r in range(0, 16, 2):
            k(f"v_pk_add_f32 v[{A+r}:{A+r+1}], v[{A+r}:{A+r+1}], v[{B+r}:{B+r+1}]")
        for r in range(0, 16, 2):
            k(f"v_pk_mul_f32 v[{A+r}:{A+r+1}], v[{A+r}:{A+r+1}], v[{nb}:{nb+1}] op_sel_hi:[1,0]")
        for r in range(0, 16, 2):
            k(f"v_pk_fma_f32 v[{acc+r}:{acc+r+1}], v[{acc+r}:{acc+r+1}], v[{rs}:{rs+1}], v[{A+r}:{A+r+1}] op_sel_hi:[1,0,1]")
    def pack(acc, p, so0, so1, va, off1=0):
        for d in range(8):
            k(f"v_cvt_pk_bf16_f32 v{p+d}, v{acc+2*d}, v{acc+2*d+1}")
            if d == 3: k(f"buffer_store_dwordx4 v[{p}:{p+3}], v{va}, s[20:23], s{so0} offen {st}")
        k(f"buffer_store_dwordx4 v[{p+4}:{p+7}], v{va}, s[20:23], s{so1} offen" + (f" offset:{off1}" if off1 else "") + f" {st}")
    k("s_waitcnt lgkmcnt(2)")
    fold(ACC, 138, 140)
    csrd(1)
    for g in range(4):
        k(f"ds_read_b128 v[{RSV+4*g}:{RSV+4*g+3}], v11 offset:{g*32}")
    pack(ACC, P, 40, 43, 3)
    k("s_waitcnt lgkmcnt(4)")
    for g in range(4):
        k(f"ds_read_b128 v[{NBV+4*g}:{NBV+4*g+3}], v11 offset:{256 + g*32}")
    fold(ACC+16, RS, NB)
    pack(ACC+16, P+8, 44, 45, 3)
    k(f"v_add_f32 v{CV}, v{CV}, v{CV+1}")
    k("s_waitcnt lgkmcnt(0)")
    for r in range(0, 16, 2):
        k(f"v_pk_mul_f32 v[{NBV+r}:{NBV+r+1}], v[{NBV+r}:{NBV+r+1}], v[{CV}:{CV+1}] op_sel_hi:[1,0]")
    for r in range(0, 16, 2):
        k(f"v_pk_fma_f32 v[{ACC+32+r}:{ACC+33+r}], v[{ACC+32+r}:{ACC+33+r}], v[{RSV+r}:{RSV+r+1}], v[{NBV+r}:{NBV+r+1}]")
    pack(ACC+32, P+16, 46, 46, 9, 512)
    stamp(k, 3)
    k("s_waitcnt vmcnt(0)")
    k("s_barrier")
    role_read(k)
    k("s_barrier")

def relayout(k):
    st = OPT['st']
    PRE = [16, 44, 80]
    k(f"""
    v_and_b32 v6, 31, v2
    v_lshrrev_b32 v7, 5, v2
    v_lshlrev_b32 v12, 10, v6
    v_lshl_add_u32 v12, v7, 3, v12
    v_mul_u32_u24 v13, {4*2752}, v7
    v_lshl_add_u32 v13, v6, 1, v13
    v_lshlrev_b32 v14, 12, v7
    v_lshl_add_u32 v14, v6, 1, v14
    s_lshl_b32 s42, s2, 3
    s_mul_i32 s43, s29, 3
    s_add_u32 s42, s42, s43
    """)
    def wload(reg, voffreg, soffreg, pitch):
        for j in range(8):
            row = 8*(j >> 2) + (j & 3)
            k(f"s_add_u32 s49, s{soffreg}, {row*pitch}")
            k(f"buffer_load_ushort v{reg+j}, v{voffreg}, s[44:47], s49 offen")
    def item_loads(i):
        P_, D0 = PRE[i], (37, 52, 32)[i]
        k(f"s_add_u32 s{D0+2}, s42, {i}")
        if i == 2:
            k("s_cmp_eq_u32 s29, 2")
            k(f"s_cselect_b32 s{D0+2}, 0xfff, s{D0+2}")
        G = D0 + 2
        srd(k, 44, 4, 2*MB)
        k(f"""
        s_lshr_b32 s43, s{G}, 5
        s_lshl_b32 s43, s43, 15
        s_and_b32 s48, s{G}, 31
        s_lshl_b32 s48, s48, 5
        s_add_u32 s43, s43, s48
        buffer_load_dwordx2 v[{P_}:{P_+1}], v12, s[44:47], s43 offen
        buffer_load_dwordx2 v[{P_+2}:{P_+3}], v12, s[44:47], s43 offen offset:16
        s_mov_b32 s50, {(2**32 + 42)//43}
        s_mul_hi_u32 s51, s{G}, s50
        s_mul_i32 s58, s51, 43
        s_sub_u32 s58, s{G}, s58
        s_mul_i32 s59, s51, {16*2752}
        s_lshl_b32 s48, s58, 6
        s_add_u32 s59, s59, s48
        s_lshl_b32 s{D0}, s58, 6
        s_add_u32 s{D0}, s{D0}, s51
        s_lshl_b32 s{D0}, s{D0}, 10
        s_cmp_lt_u32 s{G}, 1376
        s_cselect_b32 s50, {512*2752}, 0
        s_mov_b32 s44, s12
        s_and_b32 s45, s13, 0xffff
        s_mov_b32 s46, s50
        """)
        wload(P_+4, 13, 59, 2752)
        k("s_mov_b32 s44, s14")
        k("s_and_b32 s45, s15, 0xffff")
        wload(P_+12, 13, 59, 2752)
        k(f"""
        s_sub_u32 s48, s{G}, 1376
        s_cmp_lt_u32 s{G}, 1376
        s_cselect_b32 s48, s{G}, s48
        s_cselect_b32 s44, s16, s8
        s_cselect_b32 s45, s17, s9
        s_cselect_b32 s46, {1376*1024}, 0
        s_cselect_b32 s50, 86, 32
        s_cselect_b32 s43, {WDF - WOF}, 0
        s_and_b32 s45, s45, 0xffff
        s_sub_u32 s51, s{G}, 1376
        s_cmp_lt_u32 s51, 512
        s_cselect_b32 s46, {512*1024}, s46
        s_and_b32 s58, s48, 15
        s_lshr_b32 s51, s48, 4
        s_lshl_b32 s59, s51, 14
        s_lshl_b32 s48, s58, 6
        s_add_u32 s59, s59, s48
        s_mul_i32 s{D0+1}, s58, s50
        s_add_u32 s{D0+1}, s{D0+1}, s51
        s_lshl_b32 s{D0+1}, s{D0+1}, 10
        s_add_u32 s{D0+1}, s{D0+1}, s43
        """)
        wload(P_+20, 14, 59, 1024)
    def pack_store(reg, dstreg, base):
        for d in range(4):
            k(f"v_lshl_or_b32 v{reg+d}, v{reg+2*d+1}, 16, v{reg+2*d}")
        k(f"s_add_u32 s49, s{dstreg}, {base}")
        k(f"buffer_store_dwordx4 v[{reg}:{reg+3}], v3, s[20:23], s49 offen {st}")
    def item_stores(i):
        P_, D0 = PRE[i], (37, 52, 32)[i]
        G = D0 + 2
        l1, l2 = k.label("is1"), k.label("is2")
        if i == 2:
            k("s_cmp_eq_u32 s29, 2")
            k(f"s_cbranch_scc1 {l2}")
        k(f"s_lshl_b32 s43, s{G}, 10")
        k(f"s_add_u32 s43, s43, {XF}")
        k(f"buffer_store_dwordx4 v[{P_}:{P_+3}], v3, s[20:23], s43 offen {st}")
        k(f"s_cmp_lt_u32 s{G}, 1376")
        k(f"s_cbranch_scc0 {l1}")
        for reg in (P_+4, P_+12):
            for d in range(4):
                k(f"v_lshl_or_b32 v{reg+d}, v{reg+2*d+1}, 16, v{reg+2*d}")
        k.nop(2)
        for d in range(4):
            k(f"v_permlane16_swap_b32 v{P_+4+d}, v{P_+12+d}")
        k(f"s_add_u32 s49, s{D0}, {WGF}")
        k(f"buffer_store_dwordx4 v[{P_+4}:{P_+7}], v3, s[20:23], s49 offen {st}")
        k(f"s_add_u32 s49, s{D0}, {WGF + 32768}")
        k(f"buffer_store_dwordx4 v[{P_+12}:{P_+15}], v3, s[20:23], s49 offen {st}")
        k.place(l1)
        k(f"s_cmp_lt_u32 s{G}, 1888")
        k(f"s_cbranch_scc0 {l2}")
        pack_store(P_+20, D0+1, WOF)
        k.place(l2)
    return item_loads, item_stores

def p1_loader(k):
    SRB, SCB = 27, 28
    VXE, VXO, VW = 8, 9, 10
    k(f"""
    s_sub_u32 s29, s{SW}, 4
    v_lshrrev_b32 v11, 3, v2
    v_and_b32 v4, 7, v2
    v_lshrrev_b32 v5, 4, v2
    v_xor_b32 v6, v4, v5
    v_lshlrev_b32 v6, 4, v6
    s_lshl_b32 s35, s29, 4
    v_add_u32 v7, s35, v11
    v_lshlrev_b32 v12, 10, v7
    v_add_u32 v{VXE}, v12, v6
    v_xor_b32 v6, 64, v6
    v_add_u32 v{VXO}, v12, v6
    v_add_u32 v{VXO}, 8192, v{VXO}
    s_lshl_b32 s35, s29, 3
    v_add_u32 v7, s35, v11
    v_and_b32 v5, 1, v5
    v_lshlrev_b32 v5, 2, v5
    v_xor_b32 v5, v4, v5
    v_lshlrev_b32 v5, 4, v5
    v_mul_u32_u24 v7, 3072, v7
    v_add_u32 v{VW}, v7, v5
    s_lshl_b32 s31, s29, 10
    s_lshl_b32 s36, s29, 11
    s_lshl_b32 s30, s{SRB}, 16
    s_lshl_b32 s32, s{SCB}, 7
    """)
    k("s_mov_b32 s54, 0x200000")
    k("s_mov_b32 s55, 0x20000")
    k(f"s_mov_b32 s58, {512*3072}")
    k("s_mov_b32 s59, 0x20000")
    k("s_waitcnt lgkmcnt(0)")
    k("s_mov_b32 s52, s4")
    k("s_and_b32 s53, s5, 0xffff")
    k("s_mov_b32 s56, s6")
    k("s_and_b32 s57, s7, 0xffff")
    n = lambda c: 3 + (0 if c & 1 else 2)
    def issue(c):
        if OPT.get('z_nodma1') and c > 2: return
        rot = OPT.get('krot', 1)
        if not c & 1:
            if rot:
                k(f"s_add_u32 s37, s{(0, SRB, SCB, SRB)[rot]}, {c//2}")
                if rot == 3: k(f"s_add_u32 s37, s37, s{SCB}")
                k("s_and_b32 s37, s37, 7")
                k("s_lshl_b32 s33, s37, 7")
                k("s_add_u32 s33, s33, s30")
                k(f"s_mul_i32 s37, s37, {64*3072}")
                k("s_add_u32 s37, s37, s32")
            else:
                k(f"s_add_u32 s33, s30, {(c//2)*128}")
                k(f"s_add_u32 s37, s32, {(c//2)*64*3072}")
            for o in range(2):
                dma(k, VXE if o == 0 else VXO, 52, 33, f"s36, {(c//2)*8192 + o*1024}")
        for p in range(3):
            k(f"s_add_u32 s33, s37, {(c & 1)*32*3072 + p*1024}")
            dma(k, VW, 56, 33, f"s31, {65536 + (c % 8)*12288 + p*4096}")
    issued = OPT.get('d1', 4)
    for c in range(issued): issue(c)
    srd(k, 20, 62, WS_SIZE)
    for P in range(9):
        k(f"s_waitcnt vmcnt({sum(n(j) for j in range(2*P+2, issued))})")
        k("s_barrier")
        m = 0
        while issued < 16 and issued - 8 <= 2*P - 3 and m < 4:
            issue(issued); issued += 1; m += 1
    k("s_barrier")
    k("s_barrier")
    role_read(k)
    k("s_barrier")

RLAB = [None]
def p1_helper(k):
    RLAB[0] = k.label('RL')
    k(f"s_setprio {OPT.get('hprio', 3)}")
    k("s_waitcnt lgkmcnt(0)")
    srd(k, 20, 62, WS_SIZE)
    X, SQ, SX, T, RS, NB = 16, 24, 28, 32, 36, 38
    init_done = k.label("initd")
    k(f"""
    s_cmp_lg_u32 s{SW}, 8
    s_cbranch_scc1 {init_done}
    s_lshl_b32 s30, s2, 7
    s_add_u32 s30, s30, {FLG}
    v_lshl_add_u32 v4, v2, 15, s30
    s_and_b32 s30, s2, 7
    s_lshl_b32 s30, s30, 8
    s_add_u32 s30, s30, {CNT + CW*256}
    v_mov_b32 v5, 0
    v_writelane_b32 v4, s30, 5
    s_mov_b64 exec, 63
    buffer_store_dword v5, v4, s[20:23], 0 offen sc1
    s_mov_b64 exec, -1
    """)
    k.place(init_done)
    if OPT.get('dyn', 1) == 1:
        tkx = k.label("tkx")
        def ticket():
            k("s_lshl_b32 s57, s56, 5")
            k("s_add_u32 s57, s57, 16")
            k("s_mov_b64 exec, 1")
            k("v_mov_b32 v45, s57")
            k("v_mov_b32 v46, 1")
            k("global_atomic_add v44, v45, v46, s[60:61] sc0 sc1")
            k("s_mov_b64 exec, -1")
        def first_ticket():
            k(f"s_cmp_lg_u32 s{SW}, 8")
            k(f"s_cbranch_scc1 {tkx}")
            k("s_getreg_b32 s56, hwreg(HW_REG_XCC_ID, 0, 4)")
            k("s_and_b32 s56, s56, 7")
            k("s_waitcnt vmcnt(0)")
            ticket()
            k.place(tkx)
        if OPT.get('tkat', 2) < 0: first_ticket()
    k(f"""
    s_sub_u32 s29, s{SW}, 8
    s_lshl_b32 s30, s29, 10
    v_add_u32 v4, s30, v3
    s_mov_b32 s39, {hex(ONES)}
    """)
    if OPT.get('dyn', 1) != 2 and OPT.get('t1at', 0) < 0: cold_touch(k)
    for c in range(9):
        k("s_barrier")
        if OPT.get('dyn', 1) == 1 and c == OPT.get('tkat', 2): first_ticket()
        if OPT.get('dyn', 1) == 2 and c == OPT.get('tkat', 2):
            l2 = k.label("cl2")
            k(f"s_cmp_lg_u32 s{SW}, 8")
            k(f"s_cbranch_scc1 {l2}")
            k(f"s_lshl_b32 s57, s{SXCD}, 5")
            k("s_mov_b64 exec, 1")
            k("v_mov_b32 v45, s57")
            k("v_mov_b32 v46, 1")
            k("s_waitcnt vmcnt(0)")
            k("global_atomic_add v45, v46, s[60:61] offset:20 sc1")
            k("s_mov_b64 exec, -1")
            k.place(l2)
        if c == OPT.get('t1at', 0): cold_touch(k)
        if c == OPT.get('t6at', 99):
            l6 = k.label("t6")
            k(f"s_cmp_eq_u32 s{SW}, 8")
            k(f"s_cbranch_scc1 {l6}")
            k(f"s_sub_u32 s42, s{SW}, 9")
            k(f"s_lshl_b32 s42, s42, 21")
            k("s_lshl_b32 s43, s2, 13")
            k("s_add_u32 s42, s42, s43")
            touch(k, 42, 64, 47)
            k.place(l6)
        if c == OPT.get('tcat', 7):
            l11 = k.label("t11b")
            k(f"s_cmp_lg_u32 s{SW}, 11")
            k(f"s_cbranch_scc1 {l11}")
            if True:
                here = k.label("here")
                k("s_getpc_b64 s[44:45]")
                k.place(here)
                k(f"s_sub_u32 s44, s44, {here}-{NAME}")
                k("s_subb_u32 s45, s45, 0")
                k("v_lshlrev_b32 v12, 7, v2")
                for i in range(4):
                    k(f"global_load_dword v{40+i}, v12, s[44:45]")
                    if i < 3: k("v_add_u32 v12, 8192, v12")
            k.place(l11)

        if c < 8 and not (OPT.get('z_nostat') and c > 0):
            cc = c
            k(f"ds_read_b128 v[{X}:{X+3}], v4 offset:{cc*8192}")
            k(f"ds_read_b128 v[{X+4}:{X+7}], v4 offset:{cc*8192 + 4096}")
            for hf in range(2):
                k(f"s_waitcnt lgkmcnt({1-hf})")
                for d in range(4):
                    r = X + 4*hf + d
                    q, sx = SQ + 2*hf + (d & 1), SX + 2*hf + (d & 1)
                    first = (cc == 0 and d < 2)
                    k(f"v_dot2_f32_bf16 v{q}, v{r}, v{r}, {'0' if first else 'v%d' % q}")
                    k(f"v_dot2_f32_bf16 v{sx}, v{r}, s39, {'0' if first else 'v%d' % sx}")
        if c == 7:
            k.nop(3)
            k(f"v_add_f32 v{SQ}, v{SQ}, v{SQ+1}")
            k(f"v_add_f32 v{SQ+2}, v{SQ+2}, v{SQ+3}")
            k(f"v_add_f32 v{SX}, v{SX}, v{SX+1}")
            k(f"v_add_f32 v{SX+2}, v{SX+2}, v{SX+3}")
            row8_sum(k, [SQ, SQ+2, SX, SX+2])
        if c == 7:
            for hf in range(2):
                finish_stats(k, SX + 2*hf, SQ + 2*hf, RS + hf, NB + hf, T, T+1)
            k(f"""
            v_lshrrev_b32 v5, 3, v2
            s_lshl_b32 s30, s29, 5
            s_add_u32 s30, s30, {EXS}
            v_lshl_add_u32 v5, v5, 2, s30
            ds_write2_b32 v5, v{RS}, v{RS+1} offset0:0 offset1:32
            ds_write2_b32 v5, v{NB}, v{NB+1} offset0:64 offset1:96
            """)
            nm = k.label("nomx")
            k(f"""
            s_cmp_lg_u32 s28, 0
            s_cbranch_scc1 {nm}
            s_lshl_b32 s30, s27, 8
            s_lshl_b32 s31, s29, 5
            s_add_u32 s30, s30, s31
            s_add_u32 s30, s30, {MX}
            v_lshrrev_b32 v5, 3, v2
            v_lshlrev_b32 v5, 2, v5
            s_mov_b32 exec_lo, 0x01010101
            s_mov_b32 exec_hi, 0x01010101
            buffer_store_dword v{SX}, v5, s[20:23], s30 offen sc1
            buffer_store_dword v{SX+2}, v5, s[20:23], s30 offen offset:128 sc1
            s_mov_b64 exec, -1
            """)
            k.place(nm)
    k("s_waitcnt lgkmcnt(0)")
    k("s_barrier")
    if OPT.get('dyn', 1) == 1:
        nw = k.label("nrw")
        k(f"s_cmp_lg_u32 s{SW}, 8")
        k(f"s_cbranch_scc1 {nw}")
        tk, tkd = k.label("tk"), k.label("tkd")
        k.place(tk)
        k("s_waitcnt vmcnt(0)")
        k("v_readfirstlane_b32 s57, v44")
        k.nop(1)
        k("s_cmp_lt_u32 s57, 32")
        k(f"s_cbranch_scc1 {tkd}")
        k("s_add_u32 s56, s56, 1")
        k("s_and_b32 s56, s56, 7")
        ticket()
        k(f"s_branch {tk}")
        k.place(tkd)
        k("s_lshl_b32 s57, s57, 3")
        k("s_or_b32 s57, s57, s56")
        k(f"v_mov_b32 v4, {ROLE}")
        k("v_mov_b32 v5, s57")
        k("ds_write_b32 v4, v5")
        g, gx = k.label("gate"), k.label("gatex")
        k("s_mov_b32 s41, 0")
        k("v_lshlrev_b32 v9, 5, v2")
        k("s_mov_b64 exec, 0xff")
        k.place(g)
        k(f"global_load_dword v10, v9, s[60:61] offset:{16 if OPT.get('dyn', 1) == 1 else 20} sc1")
        k("s_add_u32 s41, s41, 1")
        k("s_cmp_gt_u32 s41, 0x40000")
        k(f"s_cbranch_scc1 {gx}")
        k("s_waitcnt vmcnt(0)")
        k("v_cmp_gt_u32 vcc, 32, v10")
        k("s_cmp_eq_u64 vcc, 0")
        k(f"s_cbranch_scc1 {gx}")
        k("s_sleep 8")
        k(f"s_branch {g}")
        k.place(gx)
        k("s_mov_b64 exec, -1")
        k("s_waitcnt lgkmcnt(0)")
        k.place(nw)
    k(f"s_lshl_b32 s40, s28, 5")
    k(f"s_add_u32 s40, s40, s27")
    k(f"s_lshl_b32 s40, s40, 7")
    k(f"s_add_u32 s40, s40, {FLG}")
    k("v_mov_b32 v8, 1")
    k("v_mov_b32 v9, 0")
    k("s_waitcnt vmcnt(0)")
    stamp(k, 1)
    k("s_barrier")
    k(f"s_cmp_lg_u32 s{SW}, 8")
    k(f"s_cbranch_scc1 {RLAB[0]}")
    k("s_mov_b64 exec, 1")
    k("buffer_store_dword v8, v9, s[20:23], s40 offen sc1")
    k("s_mov_b64 exec, -1")
    stamp(k, 0)
    role_read(k)
    k(f"v_mov_b32 v4, {PROG}")
    k("v_mov_b32 v5, 0")
    for o in (0, 16, 32, 48): k(f"ds_write_b32 v4, v5 offset:{o}")
    k("s_getreg_b32 s58, hwreg(HW_REG_XCC_ID, 0, 4)")
    k("s_add_u32 s58, s58, 1")
    k(f"s_lshl_b32 s42, s{SXCD}, 5")
    k(f"s_add_u32 s42, s42, s{SIDX}")
    k(f"s_add_u32 s42, s42, {FX}")
    flag_set(k, 42, "s58")
    k(f"s_lshr_b32 s42, s{SHEAD}, 2")
    k(f"s_lshl_b32 s42, s42, 5")
    flag_poll(k, 42)
    stamp(k, 2); rstamp(k, 3)
    k("s_waitcnt lgkmcnt(0)")
    k("s_barrier")

def rowmax(k, S, dst, t1, t2):
    k(f"v_max3_f32 v{dst}, v{S}, v{S+1}, v{S+2}")
    k(f"v_max3_f32 v{t1}, v{S+3}, v{S+4}, v{S+5}")
    k(f"v_max3_f32 v{dst}, v{dst}, v{S+6}, v{S+7}")
    k(f"v_max3_f32 v{t1}, v{t1}, v{S+8}, v{S+9}")
    k(f"v_max3_f32 v{dst}, v{dst}, v{S+10}, v{S+11}")
    k(f"v_max3_f32 v{t1}, v{t1}, v{S+12}, v{S+13}")
    k(f"v_max3_f32 v{dst}, v{dst}, v{S+14}, v{S+15}")
    k(f"v_max_f32 v{t1}, v{dst}, v{t1}")
    k(f"v_mov_b32 v{t2}, v{t1}")
    k.nop(2)
    k(f"v_permlane32_swap_b32 v{t1}, v{t2}")
    k.nop(1)
    k(f"v_max_f32 v{dst}, v{t1}, v{t2}")

def p2_compute(k, tail):
    Q = 8; KB = [12, 16]; V1 = [20, 28]; V2 = [24, 32]; P = 36; SS = [48, 64]; CN = 80; O = 96
    VKA, VVA, VINC = 4, 5, 47
    PRG, VPR = 112, 6
    chk, spin = k.label("chk"), k.label("spin")
    def spinf(k):
        k.place(spin)
        k("s_sleep 1")
        k(f"ds_read_b32 v{PRG}, v{VPR}")
        k("s_waitcnt lgkmcnt(0)")
        k(f"s_branch {chk}")
    tail.append(spinf)
    k(f"""
    s_lshl_b32 s30, s{SQB}, 3
    s_add_u32 s30, s30, s{SW}
    s_lshl_b32 s31, s30, 10
    s_lshl_b32 s29, s{SHEAD}, 16
    s_add_u32 s31, s31, s29
    buffer_load_dwordx4 v[{Q}:{Q+3}], v3, s[20:23], s31 offen {OPT['ld']}
    v_mov_b32 v{VKA}, v3
    v_lshrrev_b32 v6, 5, v2
    v_lshlrev_b32 v6, 8, v6
    v_and_b32 v7, 15, v2
    v_lshl_add_u32 v{VVA}, v7, 4, v6
    v_add_u32 v{VVA}, 0x10000, v{VVA}
    v_and_b32 v6, 27, v2
    v_mov_b32 v7, {hex(ONES)}
    v_cmp_eq_u32 vcc, 16, v6
    s_mov_b32 s36, 0xffff
    s_mov_b32 s37, 0xffff
    v_cndmask_b32 v7, 0, v7, vcc
    """)
    for r in range(16): k(f"v_mov_b32 v{V1[0]+r}, v7")
    k(f"v_mov_b32 v{VPR}, {PROG}")
    for r in range(8): k(f"v_mov_b32 v{P+r}, 0")
    for r in range(16): k(f"v_mov_b32 v{O+r}, 0")
    def vread(kk, buf, off):
        kk("s_mov_b64 exec, s[36:37]")
        kk(f"ds_read_b128 v[{V1[buf]}:{V1[buf]+3}], v{VVA} offset:{off}")
        kk(f"ds_read_b128 v[{V2[buf]}:{V2[buf]+3}], v{VVA} offset:{off+512}")
        kk("s_mov_b64 exec, -1")
    stamp(k, 4)
    k("s_barrier")
    stamp(k, 5)
    k(f"ds_read_b128 v[{KB[0]}:{KB[0]+3}], v{VKA}")
    k(f"ds_read_b128 v[{KB[1]}:{KB[1]+3}], v{VKA} offset:1024")
    vread(k, 0, 0)
    k("s_waitcnt vmcnt(0) lgkmcnt(3)")
    k(f"{MFMA} v[{SS[0]}:{SS[0]+15}], v[{KB[0]}:{KB[0]+3}], v[{Q}:{Q+3}], 0")
    k.nop(12)
    rowmax(k, SS[0], 44, 45, 46)
    for r in range(16): k(f"v_sub_f32 v{CN+r}, 0, v44")
    k.nop(2)
    k(f"{MFMA} v[{SS[0]}:{SS[0]+15}], v[{KB[0]}:{KB[0]+3}], v[{Q}:{Q+3}], v[{CN}:{CN+15}]")
    k("s_mov_b32 s38, 0")
    k.nop(10)
    loop = k.label("loop")
    k(".p2align 6")
    k.place(loop)
    pr = OPT['prio']
    for t in range(8):
        cur, nx = SS[t & 1], SS[(t+1) & 1]
        e = lambda i: k(f"v_exp_f32 v{cur+i}, v{cur+i}")
        c = lambda i: k(f"v_cvt_pk_bf16_f32 v{P+i}, v{cur+2*i}, v{cur+2*i+1}")
        k("s_waitcnt lgkmcnt(0)")
        if t == 6:
            k.place(chk)
            k(f"v_cmp_ge_u32 vcc, s38, v{PRG}")
            k("s_cmp_lg_u64 vcc, 0")
            k(f"s_cbranch_scc1 {spin}")
        kb = KB[(t+1) & 1]
        pb = (t+1) & 1
        sp = (lambda n: k(f"s_setprio {n}")) if pr else (lambda n: None)
        k(f"{MFMA} v[{nx}:{nx+15}], v[{kb}:{kb+3}], v[{Q}:{Q+3}], v[{CN}:{CN+15}]")
        sp(0)
        k(f"ds_read_b128 v[{KB[t&1]}:{KB[t&1]+3}], v{VKA} offset:{(t+2)*1024}")
        e(0); e(1)
        k(f"{MFMA} v[{O}:{O+15}], v[{V2[pb]}:{V2[pb]+3}], v[{P+4}:{P+7}], v[{O}:{O+15}]")
        vread(k, pb, (t+1)*1024)
        if t == 5: k(f"ds_read_b32 v{PRG}, v{VPR}")
        e(2); e(3); sp(1); c(0); e(4); e(5); c(1); e(6); e(7); sp(2); c(2); e(8); e(9); c(3); e(10); e(11)
        k(f"{MFMA} v[{O}:{O+15}], v[{V1[t&1]}:{V1[t&1]+3}], v[{P}:{P+3}], v[{O}:{O+15}]")
        c(4); e(12); e(13); sp(3); c(5); e(14); e(15); c(6)
        if t == 7:
            k(f"v_add_u32 v{VKA}, 8192, v{VKA}")
            k(f"v_add_u32 v{VVA}, 8192, v{VVA}")
            k("s_add_u32 s38, s38, 1")
            k(f"v_mov_b32 v{PRG}, s38")
            k(f"ds_write_b32 v{VPR}, v{PRG} offset:32")
            k("s_cmp_lt_u32 s38, 8")
        c(7)
    k(f"s_cbranch_scc1 {loop}")
    k("s_setprio 0")
    stamp(k, 6)
    k.nop(1)
    k(f"{MFMA} v[{O}:{O+15}], v[{V2[1]}:{V2[1]+3}], v[{P+4}:{P+7}], v[{O}:{O+15}]")
    k(f"ds_read_b32 v{PRG}, v{VPR} offset:16")
    k("s_waitcnt lgkmcnt(0)")
    k(f"v_readfirstlane_b32 s{SLOC}, v{PRG}")
    k.nop(11)
    fb, fin = k.label("fb"), k.label("fin")
    k(f"""
    v_max3_f32 v44, abs(v{O}), abs(v{O+1}), abs(v{O+2})
    v_max3_f32 v45, abs(v{O+3}), abs(v{O+4}), abs(v{O+5})
    v_max3_f32 v44, v44, abs(v{O+6}), abs(v{O+7})
    v_add_f32 v46, v{O}, v{O+1}
    v_max3_f32 v44, v44, v45, v{O+8}
    s_mov_b32 s39, {hex(f32(2.0**100))}
    """)
    for r in range(2, 9): k(f"v_add_f32 v46, v46, v{O+r}")
    k(f"v_and_b32 v46, 0x7fffffff, v46")
    k(f"v_cmp_ngt_f32 vcc, s39, v44")
    k(f"v_cmp_ngt_f32 s[40:41], s39, v46")
    k.nop(1)
    k("s_or_b64 s[40:41], s[40:41], vcc")
    k("s_cmp_lg_u64 s[40:41], 0")
    k(f"s_cbranch_scc1 {fb}")
    k.place(fin)
    k(f"v_rcp_f32 v44, v{O+8}")
    k(f"s_lshl_b32 s40, s30, 15")
    k(f"s_lshl_b32 s41, s{SHEAD}, 10")
    k(f"s_add_u32 s40, s40, s41")
    k(f"s_add_u32 s40, s40, {OF}")
    for r in range(8): k(f"v_mul_f32 v{O+r}, v{O+r}, v44")
    for r in range(4): k(f"v_cvt_pk_bf16_f32 v{P+r}, v{O+2*r}, v{O+2*r+1}")
    pub_store(k, [f"buffer_store_dwordx4 v[{P}:{P+3}], v3, s[20:23], s40 offen"], 0)
    k("s_waitcnt vmcnt(0)")
    k("s_barrier")
    k("s_barrier")
    def fallback(k):
        k.place(fb)
        k(f"v_mov_b32 v{VKA}, v3")
        k(f"v_subrev_u32 v{VVA}, 0x10000, v{VVA}")
        k(f"v_mov_b32 v7, 0xff7fffff")
        for r in range(16): k(f"v_mov_b32 v{O+r}, 0")
        k("s_mov_b32 s38, 0")
        fl = k.label("fl")
        k.place(fl)
        S = SS[0]
        k(f"ds_read_b128 v[{KB[0]}:{KB[0]+3}], v{VKA}")
        vread(k, 0, 0)
        k("s_waitcnt lgkmcnt(0)")
        k(f"{MFMA} v[{S}:{S+15}], v[{KB[0]}:{KB[0]+3}], v[{Q}:{Q+3}], 0")
        k.nop(14)
        rowmax(k, S, 44, 45, 46)
        k("v_max_f32 v44, v44, v7")
        k("v_sub_f32 v45, v7, v44")
        k("v_exp_f32 v45, v45")
        k("v_mov_b32 v7, v44")
        for r in range(16): k(f"v_sub_f32 v{S+r}, v{S+r}, v44")
        for r in range(16): k(f"v_mul_f32 v{O+r}, v{O+r}, v45")
        for r in range(16): k(f"v_exp_f32 v{S+r}, v{S+r}")
        k.nop(1)
        for r in range(8): k(f"v_cvt_pk_bf16_f32 v{P+r}, v{S+2*r}, v{S+2*r+1}")
        k.nop(2)
        k(f"{MFMA} v[{O}:{O+15}], v[{V1[0]}:{V1[0]+3}], v[{P}:{P+3}], v[{O}:{O+15}]")
        k(f"{MFMA} v[{O}:{O+15}], v[{V2[0]}:{V2[0]+3}], v[{P+4}:{P+7}], v[{O}:{O+15}]")
        k(f"v_add_u32 v{VKA}, 1024, v{VKA}")
        k(f"v_add_u32 v{VVA}, 1024, v{VVA}")
        k("s_add_u32 s38, s38, 1")
        k("s_cmp_lt_u32 s38, 64")
        k.nop(14)
        k(f"s_cbranch_scc1 {fl}")
        k(f"s_branch {fin}")
    tail.append(fallback)

def p2_relayout(k):
    k(f"""
    s_sub_u32 s29, s{SW}, 9
    """)
    early = OPT.get('rl_early', 0)
    if early < 2:
        k("s_waitcnt lgkmcnt(0)")
        k("s_barrier")
    if early < 1:
        k("s_barrier")
    loads, stores = relayout(k)
    loads(0); loads(1)
    srd(k, 44, 8, 512*1024)
    k("s_and_b32 s35, s29, 1")
    k("s_lshl_b32 s36, s2, 1")
    k("s_add_u32 s35, s35, s36")
    k("s_lshl_b32 s36, s35, 10")
    k("buffer_load_dwordx4 v[72:75], v3, s[44:47], s36 offen")
    if early >= 2:
        k("s_waitcnt lgkmcnt(0)")
        k("s_barrier")
    if early >= 1:
        k("s_barrier")
    k("s_waitcnt vmcnt(27)")
    stores(0)
    loads(2)
    k("s_waitcnt vmcnt(26)")
    stores(1)
    k(f"s_mov_b32 s36, {hex(ONES)}")
    k("v_dot2_f32_bf16 v76, v72, s36, 0")
    for d in range(1, 4): k(f"v_dot2_f32_bf16 v76, v{72+d}, s36, v76")
    k.nop(1)
    for ctl in ("quad_perm:[1,0,3,2]", "quad_perm:[2,3,0,1]", "row_half_mirror", "row_mirror"):
        k.nop(2)
        k(f"v_add_f32_dpp v76, v76, v76 {ctl} row_mask:0xf bank_mask:0xf")
    k.nop(1)
    for i in range(4): k(f"v_readlane_b32 s{48+i}, v76, {16*i}")
    k(f"""
    s_lshr_b32 s36, s35, 4
    s_lshl_b32 s36, s36, 6
    s_bfe_u32 s43, s35, 0x10002
    s_lshl_b32 s43, s43, 4
    s_add_u32 s36, s36, s43
    v_mov_b32 v76, s48
    v_add_f32 v76, s49, v76
    v_add_f32 v76, s50, v76
    v_add_f32 v76, s51, v76
    v_mul_f32 v76, {hex(f32(1/512))}, v76
    s_bfe_u32 s43, s35, 0x10003
    s_lshl_b32 s43, s43, 3
    s_add_u32 s36, s36, s43
    v_cvt_pk_bf16_f32 v77, v76, v76
    s_and_b32 s43, s35, 3
    s_lshl_b32 s43, s43, 1
    s_add_u32 s36, s36, s43
    v_and_b32 v78, 0xffff0000, v77
    v_sub_f32 v78, v76, v78
    s_add_u32 s36, s36, {WBT}
    v_cvt_pk_bf16_f32 v78, v78, v78
    v_mov_b32 v79, 0
    s_mov_b64 exec, 1
    buffer_store_short v77, v79, s[20:23], s36 offen sc1
    buffer_store_short v78, v79, s[20:23], s36 offen offset:32 sc1
    s_mov_b64 exec, -1
    """)
    k("s_waitcnt vmcnt(0)")
    stores(2)
    k("s_waitcnt vmcnt(0)")
    na = k.label("noarr")
    k(f"v_mov_b32 v5, {PROG + 48}")
    k("v_mov_b32 v6, 1")
    k("s_mov_b64 exec, 1")
    k("ds_add_rtn_u32 v7, v5, v6")
    k("s_waitcnt lgkmcnt(0)")
    k("v_readfirstlane_b32 s42, v7")
    k("s_cmp_lg_u32 s42, 2")
    k(f"s_cbranch_scc1 {na}")
    k(f"s_add_u32 s42, s{SXCD}, {CW}")
    arrive(k, 42)
    k.place(na)
    k("s_endpgm")

def p2_helper(k, done):
    ld = OPT['ld']
    k(f"s_lshl_b32 s33, s{SHEAD}, 16")
    def kv(c):
        k(f"s_add_u32 s31, s{SHEAD}, {c}" if OPT.get('kvrot', 0) else f"s_mov_b32 s31, {c}")
        k("s_and_b32 s31, s31, 7")
        k("s_lshl_b32 s31, s31, 13")
        k("s_add_u32 s31, s31, s33")
        for base, l in ((KF, 0), (VF, 65536)):
            for g in range(2):
                k(f"s_add_u32 s34, s31, {base + g*4096}")
                k(f"s_mov_b32 m0, {l + c*8192 + g*4096}")
                k.nop(1)
                for q in range(4):
                    k(f"buffer_load_dwordx4 v3, s[20:23], s34 offen" + (f" offset:{q*1024}" if q else "") + f" {ld} lds")
    kv(0); kv(1)
    k("s_waitcnt vmcnt(16)")
    k("s_barrier")
    issued = 2
    def publish(c):
        k(f"v_mov_b32 v5, {c if c < 7 else 64}")
        k("ds_write_b32 v4, v5")
    while issued < OPT.get('kvd', 3): kv(issued); issued += 1
    for c in range(1, 8):
        k(f"s_waitcnt vmcnt({16*(issued - 1 - c)})")
        publish(c)
        if issued < 8: kv(issued); issued += 1
    stamp(k, 12)
    k("s_setprio 3")
    k(f"s_lshl_b32 s42, s{SXCD}, 5")
    k(f"s_add_u32 s42, s42, {FX}")
    flag_poll(k, 42)
    k("s_getreg_b32 s58, hwreg(HW_REG_XCC_ID, 0, 4)")
    k("s_add_u32 s58, s58, 1")
    k("s_mov_b32 exec_hi, 0")
    k("v_cmp_ne_u32 vcc, s58, v10")
    k("s_cmp_eq_u64 vcc, 0")
    k(f"s_cselect_b32 s{SLOC}, 1, 0")
    k(f"v_mov_b32 v5, s{SLOC}")
    k("ds_write_b32 v4, v5 offset:16")
    k("s_mov_b64 exec, -1")
    m5 = OPT.get('t5', 0)
    if m5:
        k(f"s_lshl_b32 s43, s{SXCD}, 5")
        k(f"s_add_u32 s43, s43, s{SIDX}")
        if m5 & 1:
            k(f"s_mul_i32 s42, s43, {172*128}")
            k(f"s_add_u32 s42, s42, {ACT}")
            touch(k, 42, 172)
        for bit, base in ((2, HF), (4, OF)):
            if m5 & bit:
                k(f"s_lshl_b32 s42, s43, 13")
                k(f"s_add_u32 s42, s42, {base}")
                touch(k, 42, 64)
        if m5 & 8:
            srd(k, 44, 18, 2*MB)
            k("s_lshl_b32 s42, s43, 13")
            k("buffer_load_dword v40, v12, s[44:47], s42 offen")
    k("s_mov_b32 s55, 0")
    if OPT.get('t2', 1):
        again, skip, ok = k.label("t2a"), k.label("t2s"), k.label("t2o")
        k(f"""
        s_mov_b32 s40, {CNT + CW*256}
        s_mov_b32 exec_lo, 0xff
        s_mov_b32 exec_hi, 0
        v_lshlrev_b32 v9, 8, v2
        s_mov_b32 s41, 0
        """)
        k.place(again)
        k(f"s_sleep {OPT.get('slpw', 32)}")
        k("buffer_load_dword v10, v9, s[20:23], s40 offen sc1")
        k("ds_read_b32 v11, v4 offset:32")
        k("s_waitcnt vmcnt(0) lgkmcnt(0)")
        k("v_readfirstlane_b32 s41, v11")
        k("v_cmp_gt_u32 vcc, 32, v10")
        k(f"s_cmp_ge_u32 s41, {OPT.get('t2lim', 6)}")
        k(f"s_cbranch_scc1 {skip}")
        k("s_cmp_lg_u64 vcc, 0")
        k(f"s_cbranch_scc1 {again}")
        k("s_mov_b32 s55, 1")
        k("s_mov_b64 exec, -1")
        for base, tot in [(WOF, 4096), (WGF, 43*256), (WGF + 43*32768, 43*256), (WDF, 43*256)][OPT.get('t2a', 0):OPT.get('t2b', 3)]:
            per = tot // 32
            k(f"s_mul_i32 s42, s{SIDX}, {per*128}")
            k(f"s_add_u32 s42, s42, {base}")
            touch(k, 42, per)
        k.place(skip)
        k("s_mov_b64 exec, -1")

def res_cfg(mode):
    if mode == 'wo':
        return dict(NKS=32, JL=16, WIN=16, BSRC=OF, ASRC=WOF, RES=XF)
    return dict(NKS=86, JL=39, WIN=OPT.get('win5', 12), BSRC=ACT, ASRC=WDF, RES=HF)

def res_map(k):
    k(f"""
    s_lshl_b32 s27, s{SXCD}, 2
    s_and_b32 s28, s{SIDX}, 3
    s_add_u32 s27, s27, s28
    s_lshr_b32 s28, s{SIDX}, 2
    """)

def res_consumer(k, mode, sb):
    c_ = res_cfg(mode); NKS, JL, WIN = c_['NKS'], c_['JL'], c_['WIN']
    NH = NKS // 2
    wo = mode == 'wo'
    SRB, SCB = 27, 28
    ld = OPT['ld']
    R, ACC, AB, AT, AM, WM = 8, 16, 48, 80, 144, 160
    BW = 80 if wo else 112
    res_map(k)
    k(f"""
    s_and_b32 s29, s{SW}, 1
    s_lshl_b32 s30, s{SRB}, 1
    s_add_u32 s30, s30, s29
    s_lshr_b32 s31, s{SW}, 1
    s_lshl_b32 s32, s{SCB}, 1
    s_add_u32 s32, s32, s31
    s_mul_i32 s33, s31, 3072
    v_add_u32 v6, s33, v3
    s_lshl_b32 s33, s31, 10
    s_add_u32 s33, s33, 1024
    v_add_u32 v7, s33, v3
    s_mul_i32 s34, s31, {NH}
    s_mul_i32 s35, s30, {NKS}
    s_add_u32 s35, s35, s34
    s_lshl_b32 s35, s35, 10
    s_add_u32 s35, s35, {c_['BSRC']}
    """)
    if wo:
        k(f"""
        s_lshl_b32 s40, s30, 5
        s_lshl_b32 s41, s32, 1
        s_add_u32 s40, s40, s41
        s_lshl_b32 s40, s40, 10
        s_add_u32 s41, s40, {XF}
        buffer_load_dwordx4 v[{R}:{R+3}], v3, s[20:23], s41 offen {ld}
        buffer_load_dwordx4 v[{R+4}:{R+7}], v3, s[20:23], s41 offen offset:1024 {ld}
        s_add_u32 s41, s40, {HF}
        s_lshl_b32 s47, s32, 13
        s_lshl_b32 s48, s30, 7
        s_add_u32 s47, s47, s48
        s_add_u32 s47, s47, {ST}
        s_add_u32 s48, s48, {MX}
        v_and_b32 v0, 1, v2
        v_lshlrev_b32 v0, 5, v0
        v_lshrrev_b32 v1, 5, v2
        v_lshl_add_u32 v0, v1, 4, v0
        s_lshl_b32 s33, s31, 10
        s_add_u32 s33, s33, {WBL}
        v_add_u32 v0, s33, v0
        """)
    else:
        for q in range(2):
            k(f"s_xor_b32 s36, s32, {q}")
            k(f"s_mul_i32 s36, s36, {NKS}")
            k(f"s_add_u32 s36, s36, s34")
            k(f"s_lshl_b32 s36, s36, 10")
            k(f"s_add_u32 s36, s36, {c_['ASRC'] + JL*1024}")
            for j in range(NH - JL):
                r = AT + 8*j + 4*q
                k(f"buffer_load_dwordx4 v[{r}:{r+3}], v3, s[20:23], s36 offen" + (f" offset:{j*1024}" if j else "") + f" {ld}")
        srd(k, 52, 18, 2*MB)
        k(f"""
        v_and_b32 v8, 31, v2
        v_lshlrev_b32 v8, 10, v8
        v_lshrrev_b32 v9, 5, v2
        v_lshl_add_u32 v8, v9, 4, v8
        s_lshl_b32 s47, s30, 15
        s_lshl_b32 s48, s32, 6
        s_add_u32 s47, s47, s48
        """)
        if OPT.get('fl', 1):
            k(f"""
            s_lshl_b32 s36, s31, 2
            v_add_u32 v10, s36, v9
            v_and_b32 v12, 7, v2
            v_xor_b32 v10, v10, v12
            v_xor_b32 v11, 2, v10
            v_and_b32 v13, 31, v2
            s_lshl_b32 s36, s29, 12
            s_add_u32 s36, s36, 32768
            v_lshl_add_u32 v13, v13, 7, s36
            v_lshl_add_u32 v10, v10, 4, v13
            v_lshl_add_u32 v11, v11, 4, v13
            v_lshrrev_b32 v13, 3, v2
            v_xor_b32 v14, v12, v13
            v_lshlrev_b32 v14, 4, v14
            v_lshl_add_u32 v13, v13, 10, v14
            s_lshl_b32 s36, s{SW}, 11
            s_add_u32 s36, s36, 32768
            v_add_u32 v12, s36, v3
            s_lshl_b32 s47, s{SRB}, 16
            s_lshl_b32 s48, s{SW}, 14
            s_add_u32 s47, s47, s48
            s_lshl_b32 s48, s{SCB}, 7
            s_add_u32 s47, s47, s48
            """)
    RED = 6*20480 if wo else 0
    if wo:
        for v, x in ((4, 2), (5, 0)):
            k(f"s_xor_b32 s36, s{SW}, {x}")
            k(f"s_lshl_b32 s37, s36, 12")
            k(f"s_cmp_eq_u32 s36, 3")
            k(f"s_cselect_b32 s37, 20480, s37")
            k(f"s_add_u32 s37, s37, {RED}")
            k(f"v_add_u32 v{v}, s37, v3")
            k(f"s_lshl_b32 s36, s36, 8")
            k(f"s_add_u32 s{38 + (x >> 1)}, s36, {RED + 20480 + 4096}")
    else:
        k(f"s_xor_b32 s36, s{SW}, 2")
        k(f"s_lshl_b32 s36, s36, 12")
        k(f"v_add_u32 v4, s36, v3")
        k(f"s_lshl_b32 s36, s{SW}, 12")
        k(f"v_add_u32 v5, s36, v3")
    k("s_mov_b32 s45, 0xffff0000")
    RS_ = R if wo else KEEP
    if wo: k("s_waitcnt vmcnt(0)")
    for d in range(8):
        k(f"v_lshlrev_b32 v{ACC+2*d}, 16, v{RS_+d}")
        k(f"v_and_b32 v{ACC+2*d+1}, s45, v{RS_+d}")
    if wo: k("s_setprio 3")
    k("s_barrier")
    stamp(k, sb)
    if wo:
        k("v_and_b32 v1, 31, v2")
        k("v_lshlrev_b32 v1, 2, v1")
        k(f"buffer_load_dword v1, v1, s[20:23], s48 offen {ld}")
    def bload(j):
        if j % 4 == 0: k(f"s_add_u32 s36, s35, {j*1024}")
        r = BW + 4*(j % WIN)
        k(f"buffer_load_dwordx4 v[{r}:{r+3}], v3, s[20:23], s36 offen" + (f" offset:{(j % 4)*1024}" if j % 4 else "") + f" {ld}")
    ds = []; seg = [0]
    def ard(j, q):
        if j < JL:
            ad = wo_addr(j) if wo else j*4096
            if q == 0 and ad - seg[0] > 61440:
                k(f"v_add_u32 v6, {ad - seg[0]}, v6")
                k(f"v_add_u32 v7, {ad - seg[0]}, v7")
                seg[0] = ad
            r = AB + 8*(j & 3) + 4*q
            k(f"ds_read_b128 v[{r}:{r+3}], v{6+q} offset:{ad - seg[0]}"); ds.append(j)
    def mrd(j):
        if wo and j < NH:
            k(f"ds_read_b128 v[{WM+4*(j&1)}:{WM+4*(j&1)+3}], v0 offset:{j*64}"); ds.append(j)
    nb = min(WIN, NH)
    for j in range(nb): bload(j)
    if wo: k("s_setprio 0")
    for j in range(3):
        ard(j, 0); ard(j, 1)
        if j < 2: mrd(j)
    for j in range(NH):
        lg = (len(ds) - 1 - max(i for i, x in enumerate(ds) if x == j)) if j in ds else None
        k(f"s_waitcnt vmcnt({nb - 1 - j})" + (f" lgkmcnt({lg})" if lg is not None else ""))
        A = AB + 8*(j & 3) if j < JL else AT + 8*(j - JL)
        B = BW + 4*(j % WIN)
        for q in range(2):
            C = "0" if (j == 0 and q == 1) else f"v[{ACC+16*q}:{ACC+16*q+15}]"
            k(f"{MFMA} v[{ACC+16*q}:{ACC+16*q+15}], v[{A+4*q}:{A+4*q+3}], v[{B}:{B+3}], {C}")
            ard(j + 3, q)
        if wo:
            C = "0" if j == 0 else f"v[{AM}:{AM+15}]"
            k(f"{MFMA} v[{AM}:{AM+15}], v[{WM+4*(j&1)}:{WM+4*(j&1)+3}], v[{B}:{B+3}], {C}")
            mrd(j + 2)
        if nb < NH:
            bload(nb); nb += 1
    stamp(k, sb + 1)
    U = 48
    if wo:
        k(f"v_lshl_add_u32 v{R}, v2, 2, s39")
        k(f"v_lshl_add_u32 v{R+1}, v2, 2, s38")
        k.nop(9)
    else:
        k.nop(11)
        k("s_barrier")
    for g in range(4):
        k(f"ds_write_b128 v4, v[{ACC+16+4*g}:{ACC+19+4*g}] offset:{g*1024}")
    if wo:
        k(f"v_add_f32 v{AM}, v{AM}, v{AM+1}")
        k(f"ds_write_b32 v{R}, v{AM}")
        k(f"v_add_f32 v0, v{AM}, v1")
    k("s_waitcnt lgkmcnt(0)")
    k("s_barrier")
    if wo: k(f"ds_read_b32 v1, v{R+1}")
    for g in range(4):
        k(f"ds_read_b128 v[{U+4*g}:{U+4*g+3}], v5 offset:{g*1024}")
    P = 64
    for g in range(4):
        k(f"s_waitcnt lgkmcnt({3-g})")
        if wo and g == 0: k("v_add_f32 v0, v0, v1")
        for r in (4*g, 4*g+2):
            k(f"v_pk_add_f32 v[{ACC+r}:{ACC+r+1}], v[{ACC+r}:{ACC+r+1}], v[{U+r}:{U+r+1}]")
        if wo:
            for r in (4*g, 4*g+2):
                k(f"v_pk_add_f32 v[{U+r}:{U+r+1}], v[{ACC+r}:{ACC+r+1}], v[0:1] op_sel_hi:[1,0] neg_lo:[0,1] neg_hi:[0,1]")
            for d in (2*g, 2*g+1):
                k(f"v_cvt_pk_bf16_f32 v{P+d}, v{U+2*d}, v{U+2*d+1}")
            if g & 1:
                pub_store(k, [f"buffer_store_dwordx4 v[{P+2*g-2}:{P+2*g+1}], v3, s[20:23], s41 offen" + (" offset:1024" if g == 3 else "")], 1)
        else:
            for d in (2*g, 2*g+1):
                k(f"v_cvt_pk_bf16_f32 v{P+d}, v{ACC+2*d}, v{ACC+2*d+1}")
    if wo:
        SQ = 72
        k(f"v_dot2_f32_bf16 v{SQ}, v{P}, v{P}, 0")
        k(f"v_dot2_f32_bf16 v{SQ+1}, v{P+1}, v{P+1}, 0")
        for d in range(2, 8):
            k(f"v_dot2_f32_bf16 v{SQ+(d&1)}, v{P+d}, v{P+d}, v{SQ+(d&1)}")
        k("v_lshlrev_b32 v0, 2, v2")
        k.nop(2)
        k(f"v_add_f32 v{SQ}, v{SQ}, v{SQ+1}")
        half_sum(k, SQ, 74, 75)
        k("s_mov_b32 exec_hi, 0")
        pub_store(k, [f"buffer_store_dword v{SQ}, v0, s[20:23], s47 offen"], 1)
        k("s_mov_b64 exec, -1")
        for d in range(8):
            k(f"v_cvt_pk_bf16_f32 v{KEEP+d}, v{ACC+2*d}, v{ACC+2*d+1}")
        k("s_waitcnt vmcnt(0)")
        k("s_barrier")
    else:
        k.nop(2)
        k(f"""
        v_permlane32_swap_b32 v{P}, v{P+2}
        v_permlane32_swap_b32 v{P+1}, v{P+3}
        v_permlane32_swap_b32 v{P+4}, v{P+6}
        v_permlane32_swap_b32 v{P+5}, v{P+7}
        """)
        sto = OPT.get('sto', '')
        if OPT.get('fl', 1):
            k(f"ds_write_b128 v10, v[{P}:{P+3}]")
            k(f"ds_write_b128 v11, v[{P+4}:{P+7}]")
            k("s_waitcnt lgkmcnt(0)")
            k("s_barrier")
            k(f"ds_read_b128 v[{P}:{P+3}], v12")
            k(f"ds_read_b128 v[{P+4}:{P+7}], v12 offset:1024")
            k("s_waitcnt lgkmcnt(1)")
            k(f"buffer_store_dwordx4 v[{P}:{P+3}], v13, s[52:55], s47 offen {sto}")
            k("s_add_u32 s47, s47, 8192")
            k("s_waitcnt lgkmcnt(0)")
            k(f"buffer_store_dwordx4 v[{P+4}:{P+7}], v13, s[52:55], s47 offen {sto}")
        else:
            k.nop(1)
            k(f"buffer_store_dwordx4 v[{P}:{P+3}], v8, s[52:55], s47 offen {sto}")
            k(f"buffer_store_dwordx4 v[{P+4}:{P+7}], v8, s[52:55], s47 offen offset:32 {sto}")

def res_wsetup(k, mode):
    c_ = res_cfg(mode); NKS = c_['NKS']
    k(f"""
    s_sub_u32 s45, s{SW}, 4
    s_lshr_b32 s44, s{SIDX}, 2
    s_lshl_b32 s44, s44, 1
    s_and_b32 s46, s45, 1
    s_add_u32 s44, s44, s46
    s_mul_i32 s44, s44, {NKS}
    s_lshr_b32 s46, s45, 1
    s_mul_i32 s46, s46, {NKS//2}
    s_add_u32 s44, s44, s46
    s_lshl_b32 s44, s44, 10
    s_add_u32 s44, s44, {c_['ASRC']}
    s_lshl_b32 s45, s45, 10
    """)

def wo_addr(j):
    return (j >> 1)*20480 + 12288 + (j & 1)*4096

def res_wload(k, j0, j1, wo=False):
    for j in range(j0, j1):
        k(f"s_add_u32 s46, s44, {j*1024}")
        dma(k, 3, 20, 46, f"s45, {wo_addr(j) if wo else j*4096}", 0, OPT['ld'])

SLOT4, RING4, NCH4 = 20480, 8, 16
def p4_map(k):
    k(f"""
    s_lshl_b32 s27, s{SXCD}, 1
    s_cmp_ge_u32 s{SIDX}, 15
    s_cselect_b32 s28, 1, 0
    s_add_u32 s27, s27, s28
    s_mul_i32 s28, s28, 15
    s_sub_u32 s28, s{SIDX}, s28
    s_min_u32 s28, s28, 15
    """)

def p4_consumer(k):
    ld = OPT['ld']
    skip, fin = k.label("p4skip"), k.label("p4fin")
    XB = [8, 16]; WB = [24, 36]; ACC = 64; R2 = [0, 4]; STR = 48
    p4_map(k)
    k("s_cmp_eq_u32 s28, 15")
    k(f"s_cbranch_scc1 {skip}")
    k(f"""
    s_and_b32 s29, s{SW}, 1
    s_lshr_b32 s31, s{SW}, 1
    s_lshl_b32 s30, s27, 2
    s_lshl_b32 s33, s29, 1
    s_add_u32 s30, s30, s33
    s_lshl_b32 s33, s29, 12
    s_add_u32 s33, s33, 12288
    v_add_u32 v7, s33, v3
    s_mul_i32 s33, s31, 6144
    v_add_u32 v6, s33, v3
    s_mul_i32 s40, s30, 86
    s_mul_i32 s41, s28, 6
    s_mul_i32 s33, s31, 3
    s_add_u32 s41, s41, s33
    s_add_u32 s40, s40, s41
    s_lshl_b32 s40, s40, 10
    s_add_u32 s40, s40, {ACT}
    s_mov_b32 s47, 0
    s_lshl_b32 s32, s30, 7
    s_add_u32 s32, s32, {ST}
    v_and_b32 v4, 31, v2
    v_lshlrev_b32 v4, 2, v4
    v_lshrrev_b32 v8, 5, v2
    v_lshl_add_u32 v4, v8, 13, v4
    s_mov_b32 s48, 0
    """)
    for r in range(96): k(f"v_mov_b32 v{ACC+r}, 0")
    k("s_barrier")
    stamp(k, 9)
    for i in range(8):
        k(f"s_add_u32 s35, s32, {i*16384}")
        k(f"buffer_load_dword v{STR+i}, v4, s[20:23], s35 offen {ld}")
        k(f"buffer_load_dword v{STR+8+i}, v4, s[20:23], s35 offen offset:128 {ld}")
    def wrd(u, b, m):
        return f"ds_read_b128 v[{b+4*m}:{b+4*m+3}], v6 offset:{m*2048 + (u & 1)*1024}"
    def xrd(u, b, t):
        return f"ds_read_b128 v[{b+4*t}:{b+4*t+3}], v7 offset:{t*2048 + (u & 1)*1024}"
    def reads(u):
        return [wrd(u, WB[u & 1], 0), xrd(u, XB[u & 1], 0), xrd(u, XB[u & 1], 1), wrd(u, WB[u & 1], 1), wrd(u, WB[u & 1], 2)]
    k("s_barrier")
    stamp(k, 10)
    for l in reads(0): k(l)
    ml = k.label("p4ml")
    k(".p2align 3")
    k.place(ml)
    for u in range(2):
        if u == 1:
            k(f"s_add_u32 s48, s48, 1")
            k(f"s_and_b32 s48, s48, {RING4-1}")
            k(f"s_cselect_b32 s49, s50, s51")
            k("s_add_u32 s47, s47, 1")
            k("s_barrier")
            k("v_add_u32 v7, s49, v7")
            k("v_add_u32 v6, s49, v6")
            k(f"s_cmp_lt_u32 s47, {NCH4}")
        b, x = WB[u], XB[u]
        nx = reads(u + 1)
        for i in range(6):
            m, t = i >> 1, i & 1
            if i == 0: k("s_waitcnt lgkmcnt(2)")
            if i == 2: k("s_waitcnt lgkmcnt(2)")
            k(f"{MFMA} v[{ACC+16*i}:{ACC+16*i+15}], v[{b+4*m}:{b+4*m+3}], v[{x+4*t}:{x+4*t+3}], v[{ACC+16*i}:{ACC+16*i+15}]")
            if i < 5: k(nx[i])
    k(f"s_cbranch_scc1 {ml}")
    stamp(k, 11)
    k("s_waitcnt vmcnt(0)")
    for t in range(2):
        S = STR + 8*t
        for i in (0, 2, 4, 6): k(f"v_add_f32 v{S+i}, v{S+i}, v{S+i+1}")
        k(f"v_add_f32 v{S}, v{S}, v{S+2}")
        k(f"v_add_f32 v{S+4}, v{S+4}, v{S+6}")
        k(f"v_add_f32 v{S}, v{S}, v{S+4}")
        k(f"v_mov_b32 v{S+1}, v{S}")
    k.nop(1)
    for t in range(2):
        k(f"v_permlane32_swap_b32 v{STR+8*t}, v{STR+8*t+1}")
    for t in range(2):
        S = STR + 8*t
        k(f"v_add_f32 v{S}, v{S}, v{S+1}")
        k(f"v_mov_b32 v{S+1}, {hex(f32(1e-5))}")
        k(f"v_fmac_f32 v{S+1}, {hex(f32(1/512))}, v{S}")
        k(f"v_rcp_f32 v{R2[t]}, v{S+1}")
    k("s_waitcnt lgkmcnt(0)")
    P = 8
    for i in range(6):
        m, t = i >> 1, i & 1
        G = ACC + 16*i
        if t == 0:
            k(f"s_add_u32 s33, s41, {m}")
            k("s_cmp_ge_u32 s33, 86")
            k(f"s_cbranch_scc1 {fin}")
        for r in range(8): k(f"v_max_f32 v{G+r}, 0, v{G+r}")
        for r in range(8, 16, 2):
            k(f"v_pk_mul_f32 v[{G+r}:{G+r+1}], v[{G+r}:{G+r+1}], v[{R2[t]}:{R2[t]+1}] op_sel_hi:[1,0]")
        for r in range(0, 8, 2):
            k(f"v_pk_mul_f32 v[{G+r}:{G+r+1}], v[{G+r}:{G+r+1}], v[{G+8+r}:{G+9+r}]")
        for d in range(4):
            k(f"v_cvt_pk_bf16_f32 v{P+4*i+d}, v{G+2*d}, v{G+2*d+1}")
        k(f"s_add_u32 s35, s40, {t*86*1024 + m*1024}")
        pub_store(k, [f"buffer_store_dwordx4 v[{P+4*i}:{P+4*i+3}], v3, s[20:23], s35 offen"], 2)
    k.place(fin)
    k("s_waitcnt vmcnt(0)")
    k.place(skip)
    k("s_barrier")

def p4_loader(k):
    ld = OPT['ld']
    D = OPT['depth4']
    skip, join = k.label("p4lskip"), k.label("p4ljoin")
    k("s_barrier")
    res_wsetup(k, 'down')
    p4_map(k)
    k("s_cmp_eq_u32 s28, 15")
    k(f"s_cbranch_scc1 {skip}")
    k(f"""
    s_sub_u32 s29, s{SW}, 4
    s_lshl_b32 s30, s27, 2
    s_add_u32 s30, s30, s29
    s_lshl_b32 s31, s30, 15
    s_add_u32 s31, s31, {HF}
    s_mul_i32 s33, s28, {6*32768}
    s_and_b32 s34, s29, 1
    s_lshl_b32 s34, s34, 10
    s_add_u32 s33, s33, s34
    s_lshr_b32 s35, s29, 1
    s_mul_i32 s37, s35, {3*32768}
    s_add_u32 s33, s33, s37
    s_mul_i32 s35, s35, 6144
    s_add_u32 s34, s34, s35
    s_lshl_b32 s36, s29, 11
    s_cmp_eq_u32 s28, 14
    s_cselect_b32 s39, 0x40000000, 0
    s_lshr_b32 s38, s29, 1
    s_mul_i32 s38, s38, s39
    s_add_u32 s33, s33, s38
    s_sub_u32 s39, s39, s38
    s_add_u32 s39, s39, s33
    """)
    order = []
    def crot(c):
        r = OPT.get('p4rot', 0)
        k(f"s_add_u32 s40, s{(0, 28, SIDX)[r]}, {c}" if r else f"s_mov_b32 s40, {c}")
        k("s_and_b32 s40, s40, 15")
        k("s_lshl_b32 s40, s40, 11")
    def hpart(c):
        if OPT.get('z4b') and c > 0:
            order.append(('h', c)); order.pop(); return
        crot(c)
        k(f"s_add_u32 s35, s31, s40")
        dma(k, 3, 20, 35, f"s36, {(c % RING4)*SLOT4 + 12288}", 0, ld)
        k(f"buffer_load_dwordx4 v3, s[20:23], s35 offen offset:1024 {ld} lds")
        order.extend([('h', c)]*2)
    def wpart(c):
        if OPT.get('z4b') and c > 0: return
        crot(c)
        for t in range(3):
            k(f"s_add_u32 s35, s{33 if t < 2 else 39}, s40")
            k(f"s_add_u32 s35, s35, {WGF + t*32768}")
            dma(k, 3, 20, 35, f"s34, {(c % RING4)*SLOT4 + t*2048}", 0, ld)
        order.extend([('w', c)]*3)
    nw = OPT.get('p4pre', 4)
    for c in range(nw): wpart(c)
    k("s_barrier")
    k("s_barrier")
    while nw < OPT.get('p4pre2', 8): wpart(nw); nw += 1
    k("s_barrier")
    nh = 4
    for c in range(nh): hpart(c)
    for c in range(NCH4 + 1):
        if c < NCH4:
            last = max([i for i, o in enumerate(order) if o[1] == c] or [len(order) - 1])
            k(f"s_waitcnt vmcnt({len(order) - 1 - last})")
        k("s_barrier")
        m = 0
        while nh < NCH4 and nh <= c + D and m < 2:
            assert nh - RING4 <= c - 2
            hpart(nh); nh += 1; m += 1
        m = 0
        while nw < NCH4 and nw - RING4 <= c - 2 and m < 2:
            wpart(nw); nw += 1; m += 1
        if c >= 10:
            assert nh == NCH4 and nw == NCH4
            if not OPT.get('z4a'):
                res_wload(k, 5*(c-10), 5*(c-10) + 5); order.extend([('d', -1)]*5)
    k("s_barrier")
    k(f"s_branch {join}")
    k.place(skip)
    k("s_barrier")
    k("s_barrier")
    k("s_barrier")
    res_wload(k, 0, 35)
    k.place(join)
    res_wload(k, 35, 39)
    k("s_waitcnt vmcnt(0)")
    k("s_barrier")

def clean(k, n):
    m = OPT.get('wb', 0)
    if not (m >> n) & 1: return
    l = k.label("ncl")
    k(f"s_and_b32 s47, s{SIDX}, {OPT.get('wbm', 31)}")
    k(f"s_cmp_lg_u32 s47, 0")
    k(f"s_cbranch_scc1 {l}")
    k("buffer_wbl2 sc1")
    k.place(l)

def poller(k):
    sl = OPT.get('slpl', 2)
    k(f"s_lshl_b32 s43, s{SXCD}, 5")
    k(f"s_add_u32 s43, s43, {F2}")
    k(f"s_lshl_b32 s42, s{SQB}, 5")
    k(f"s_add_u32 s42, s42, s{SHEAD}")
    k(f"s_add_u32 s42, s42, {F2}")
    flag_prep(k, 42)
    k("s_barrier")
    flag_fire(k, not OPT.get('amap', 1))
    stamp(k, 6); rstamp(k, 4)
    seen = k.label("cwseen")
    k("s_cmp_eq_u32 s55, 1")
    k(f"s_cbranch_scc1 {seen}")
    k(f"s_mov_b32 s42, {CW}")
    poll(k, 42, 32, 8, 0)
    k.place(seen)
    k("s_barrier")
    flag_poll(k, 43, 32, OPT.get('slp2', 2))
    stamp(k, 7)
    k("s_barrier")
    res_map(k)
    k("s_lshr_b32 s43, s27, 1")
    k("s_and_b32 s44, s27, 1")
    k("s_lshl_b32 s45, s28, 1")
    k("s_add_u32 s44, s44, s45")
    k("s_lshl_b32 s42, s43, 4")
    k("s_add_u32 s42, s42, s44")
    k(f"s_add_u32 s42, s42, {F3}")
    flag_prep(k, 42)
    p4_map(k)
    k("s_lshl_b32 s46, s27, 4")
    k(f"s_add_u32 s42, s46, {F3}")
    k("s_barrier")
    k("s_barrier")
    flag_fire(k, True)
    stamp(k, 8)
    idle = k.label("pidle")
    k("s_cmp_eq_u32 s28, 15")
    k(f"s_cbranch_scc1 {idle}")
    flag_poll(k, 42, 16, sl)
    stamp(k, 9); rstamp(k, 5)
    k("s_barrier")
    k("s_add_u32 s42, s46, s28")
    k(f"s_add_u32 s42, s42, {F4}")
    flag_prep(k, 42)
    for i in range(NCH4 + 1): k("s_barrier")
    k("s_barrier")
    flag_fire(k, True)
    stamp(k, 10); rstamp(k, 13)
    j = k.label("pjoin")
    k(f"s_branch {j}")
    k.place(idle)
    k("s_barrier")
    k.place(j)
    k("s_lshl_b32 s42, s43, 4")
    k(f"s_add_u32 s42, s42, {F4}")
    flag_poll(k, 42, 15, sl)
    stamp(k, 11)
    k("s_barrier")
    diag_end(k)

def diag_end(k):
    if not DIAG: return
    k("s_waitcnt vmcnt(0)")
    stamp(k, 14)
    k("s_memrealtime s[94:95]")
    k(f"s_lshl_b32 s40, s2, 4")
    k(f"s_add_u32 s40, s40, s{SW}")
    k(f"s_lshl_b32 s40, s40, 7")
    k(f"s_add_u32 s40, s40, {DIAGB}")
    k("s_waitcnt lgkmcnt(0)")
    for i in range(15):
        k(f"s_sub_u32 s{64+2*i}, s{64+2*i}, s96")
        k(f"v_mov_b32 v{8+i}, s{64+2*i}")
    k("v_mov_b32 v23, s94")
    k("v_mov_b32 v24, s98")
    k("v_mov_b32 v4, 0")
    k("s_mov_b64 exec, 1")
    for i in range(4):
        k(f"buffer_store_dwordx4 v[{8+4*i}:{11+4*i}], v4, s[20:23], s40 offen offset:{16*i}")
    k(f"buffer_store_dword v24, v4, s[20:23], s40 offen offset:64")
    k(f"v_mov_b32 v25, s{SXCD}")
    k(f"buffer_store_dword v25, v4, s[20:23], s40 offen offset:68")
    if OPT.get('dbgout') is not None:
        l = k.label("dbo")
        k(f"s_lshl_b32 s41, s{SW}, 8")
        k(f"s_or_b32 s41, s41, s2")
        k(f"s_cmp_lg_u32 s41, {OPT['dbgout']}")
        k(f"s_cbranch_scc1 {l}")
        k("v_sub_u32 v8, v23, v24")
        for i in range(4):
            k(f"global_store_dwordx4 v4, v[{8+4*i}:{11+4*i}], s[60:61] offset:{4+16*i}")
        k.place(l)

def build(path):
    k = Kern(NAME)
    done, roleL, roleH, p2 = k.label("done"), k.label("L"), k.label("H"), k.label("p2")
    tail = []
    k(f"""
    s_load_dwordx4 s[4:7], s[0:1], 0
    s_load_dwordx4 s[60:63], s[0:1], 64
    s_load_dwordx8 s[8:15], s[0:1], 16
    s_load_dwordx4 s[16:19], s[0:1], 48
    s_cmp_ge_u32 s2, 256
    s_cbranch_scc1 {done}
    """)
    if DIAG:
        k("s_memtime s[96:97]")
        k("s_memrealtime s[98:99]")
    k(f"""
    v_lshrrev_b32 v1, 6, v0
    v_and_b32 v2, 63, v0
    s_and_b32 s{SXCD}, s2, 7
    s_lshr_b32 s{SIDX}, s2, 3
    v_readfirstlane_b32 s{SW}, v1
    v_lshlrev_b32 v3, 4, v2
    s_mov_b32 s50, {SLOT4}
    s_mov_b32 s51, {-(RING4-1)*SLOT4}
    """)
    p1_map(k)
    roleC = k.label("C")
    k(f"s_cmp_ge_u32 s{SW}, 8")
    k(f"s_cbranch_scc1 {roleH}")
    k(f"s_cmp_lt_u32 s{SW}, 4")
    k(f"s_cbranch_scc1 {roleC}")
    p1_loader(k)
    k(f"s_branch {p2}")
    k.place(roleH)
    p1_helper(k)
    H2 = k.label("H2")
    k(f"s_branch {H2}")
    k.place(roleC)
    p1_consumer(k)
    k.place(p2)
    p2_compute(k, tail)
    L3 = k.label("L3")
    k(f"s_cmp_ge_u32 s{SW}, 4")
    k(f"s_cbranch_scc1 {L3}")
    res_consumer(k, 'wo', 7)
    p4_consumer(k)
    res_consumer(k, 'down', 12)
    diag_end(k)
    k.place(done)
    k("s_endpgm")
    k.place(L3)
    res_wsetup(k, 'wo')
    res_wload(k, 0, 16, True)
    k(f"s_and_b32 s45, s45, 1024")
    k(f"s_add_u32 s46, s45, {WBT}")
    dma(k, 3, 20, 46, f"s45, {WBL}", 0, OPT['ld'])
    k("s_waitcnt vmcnt(0)")
    p4_loader(k)
    diag_end(k)
    k("s_endpgm")
    k.place(H2)
    p2_helper(k, done)
    poller(k)
    k("s_endpgm")
    k.place(RLAB[0])
    role_read(k)
    p2_relayout(k)
    for f in tail: f(k)
    k(f".fill (32768 - (. - {NAME}))/4, 4, 0xbf810000")
    hdr = """; Kernarg: 0 A_x, 8 A_wqkv, 16 A_wo, 24 B_x (unused), 32 W_gate, 40 W_up, 48 W_down, 56 out, 64 debug, 72 ws
; pre-LN transformer block in one persistent launch (256 workgroups, one per CU); generated by gen/gen4.py
; @launch grid=(256,1,1) block=(768,1,1) lds=163840
.amdgcn_target "amdgcn-amd-amdhsa--gfx950"
"""
    open(path, "w").write(hdr + k.text(168, 102 if DIAG else 64))

if __name__ == "__main__":
    for a in sys.argv[2:]:
        if "=" in a:
            kk, vv = a.split("=")
            OPT[kk] = int(vv) if vv.lstrip("-").isdigit() else vv.replace("+", " ")
    DIAG = "--diag" in sys.argv
    build(sys.argv[1])
```

```python
import sys, math
from dsl import Kern
from gen import (MB, QF, KF, VF, OF, XF, HF, ACT, WOF, WGF, WUF, WDF, ST, WS_SIZE, f32, ONES, MFMA, srd, half_sum,
                 finish_stats)
CNT = 25*MB
MX = 24*MB + 512*1024
WBT = MX + 65536
DIAGB = 28*MB
C1, C2, C3, C4, CW = 0, 8, 16, 32, 48
CSTRIP = 131072
PROG = CSTRIP + 10240
ROLE = 163832
WBL = 7*20480 + 8192
KEEP = 160
NAME = "sequential_preLN__softmax_full_mha__glu_gated_reglu__prompt_kernel"
OPT = dict(slp=8, kvd=2, d1=4, prio=1, ld="sc1", st="sc1", nb2=4, depth4=5)
SXCD, SIDX, SW = 24, 25, 26
SHEAD, SQB = 62, 63
MF16 = "v_mfma_f32_16x16x32_bf16"
DIAG = False

def rstamp(k, i):
    if DIAG:
        k(f"s_memrealtime s[{64+2*i}:{65+2*i}]")
        k("s_waitcnt lgkmcnt(0)")
        k(f"s_add_u32 s{64+2*i}, s{64+2*i}, s96")

def stamp(k, i):
    if DIAG: k(f"s_memtime s[{64+2*i}:{65+2*i}]")

def norm4(x, t, rs, nb, smask):
    ops = []
    for d in range(4):
        a, b = t[2*(d & 1)], t[2*(d & 1) + 1]
        ops.append([f"v_lshlrev_b32 v{a}, 16, v{x+d}", f"v_and_b32 v{b}, s{smask}, v{x+d}",
                    f"v_fma_f32 v{a}, v{a}, v{rs}, v{nb}", f"v_fma_f32 v{b}, v{b}, v{rs}, v{nb}",
                    f"v_cvt_pk_bf16_f32 v{x+d}, v{a}, v{b}"])
    o = []
    for p in (0, 2):
        for a, b in zip(ops[p], ops[p+1]): o += [a, b]
    return o

def lane_regs(k):
    k("v_mbcnt_lo_u32_b32 v2, -1, 0")
    k("v_mbcnt_hi_u32_b32 v2, -1, v2")
    k("v_lshlrev_b32 v3, 4, v2")

def dma(k, vo, srd_, so, m0expr, off=0, flag=""):
    k(f"s_add_u32 m0, {m0expr}")
    k.nop(1)
    k(f"buffer_load_dwordx4 v{vo}, s[{srd_}:{srd_+3}], s{so} offen" + (f" offset:{off}" if off else "") + f" {flag} lds")

def row8_sum(k, regs):
    for ctl in ("quad_perm:[1,0,3,2]", "quad_perm:[2,3,0,1]", "row_half_mirror"):
        k.nop(2)
        for r in regs:
            k(f"v_add_f32_dpp v{r}, v{r}, v{r} {ctl} row_mask:0xf bank_mask:0xf")

def arrive(k, sidx, va=8, vb=9):
    k(f"s_lshl_b32 s40, s{sidx}, 8")
    k(f"s_add_u32 s40, s40, {CNT}")
    k("s_mov_b64 exec, 1")
    k(f"v_mov_b32 v{va}, 1")
    k(f"v_mov_b32 v{vb}, 0")
    k(f"buffer_atomic_add v{va}, v{vb}, s[20:23], s40 offen sc1")

FLG = CNT + 65536
F1, F2, FX, F3, F4 = 0, 256, 512, 768, 1024
SLOC = 59
def pub_store(k, lines, stage=3):
    if not (OPT.get('loc', 8) >> stage) & 1:
        for l in lines: k(l + " " + OPT['st'])
        return
    a, b = k.label("ps"), k.label("pe")
    k(f"s_cmp_eq_u32 s{SLOC}, 1")
    k(f"s_cbranch_scc1 {a}")
    for l in lines: k(l + " " + OPT['st'])
    k(f"s_branch {b}")
    k.place(a)
    for l in lines: k(l + (" " + OPT.get('locf', '') if stage < 3 else ""))
    k.place(b)

def flag_set(k, sline, val="1", local=False):
    k(f"s_lshl_b32 s40, s{sline}, 7")
    k(f"s_add_u32 s40, s40, {FLG}")
    k("s_mov_b64 exec, 1")
    k(f"v_mov_b32 v8, {val}")
    k("v_mov_b32 v9, 0")
    if local: pub_store(k, ["buffer_store_dword v8, v9, s[20:23], s40 offen"])
    else: k("buffer_store_dword v8, v9, s[20:23], s40 offen sc1")

def flag_prep(k, sline):
    k(f"s_lshl_b32 s39, s{sline}, 7")
    k(f"s_add_u32 s39, s39, {FLG}")
    k("s_mov_b64 exec, 1")
    k("v_mov_b32 v14, 1")
    k("v_mov_b32 v15, 0")

def flag_fire(k, local):
    if local: pub_store(k, ["buffer_store_dword v14, v15, s[20:23], s39 offen"])
    else: k("buffer_store_dword v14, v15, s[20:23], s39 offen sc1")

def flag_poll(k, sline, n=32, slp=None):
    poll(k, sline, 1, n, slp, sh=7, base=FLG)

def poll(k, sidx, target, nlines=1, slp=None, sh=8, base=None):
    lp, out = k.label("poll"), k.label("pollx")
    k(f"s_lshl_b32 s40, s{sidx}, {sh}")
    k(f"s_add_u32 s40, s40, {CNT if base is None else base}")
    k(f"s_mov_b32 exec_lo, {hex((1 << nlines) - 1)}")
    k("s_mov_b32 exec_hi, 0")
    k(f"v_lshlrev_b32 v9, {sh}, v2")
    k("s_mov_b32 s41, 0")
    slp = OPT.get('slp', 2) if slp is None else slp
    k.place(lp)
    k("buffer_load_dword v10, v9, s[20:23], s40 offen sc1")
    k("s_add_u32 s41, s41, 1")
    k("s_cmp_gt_u32 s41, 0x40000")
    k(f"s_cbranch_scc1 {out}")
    k("s_waitcnt vmcnt(0)")
    k(f"v_cmp_gt_u32 vcc, {target}, v10" if target <= 64 else f"v_cmp_gt_u32 vcc, {hex(target)}, v10")
    k(f"s_cmp_eq_u64 vcc, 0")
    k(f"s_cbranch_scc1 {out}")
    if slp: k(f"s_sleep {slp}")
    k(f"s_branch {lp}")
    k.place(out)
    k("s_waitcnt vmcnt(0)")
    k("s_mov_b64 exec, -1")

def touch(k, base_s, nlines, reg=40):
    k("v_lshlrev_b32 v12, 7, v2")
    for i in range((nlines + 63)//64):
        rem = nlines - 64*i
        if rem < 64:
            k(f"s_mov_b32 exec_lo, {hex((1 << min(rem, 32)) - 1)}")
            k(f"s_mov_b32 exec_hi, {hex((1 << max(rem - 32, 0)) - 1)}")
        k(f"s_add_u32 s41, s{base_s}, {i*8192}")
        k(f"buffer_load_dword v{reg+i}, v12, s[20:23], s41 offen sc1")
    k("s_mov_b64 exec, -1")

def cold_touch(k):
    if OPT.get('t1', 1):
        l9, l10, l11 = k.label("t9"), k.label("t10"), k.label("t11")
        if OPT.get('t1d', 0): k(f"s_sleep {OPT['t1d']}")
        k(f"s_cmp_lg_u32 s{SW}, 9")
        k(f"s_cbranch_scc1 {l9}")
        srd(k, 44, 4, 2*MB)
        k("s_lshl_b32 s31, s2, 13")
        k("v_lshlrev_b32 v12, 7, v2")
        msk = sum(1 << i for i in range(32) if (i & 7) >= OPT.get('t1x', 1))
        k(f"s_mov_b32 exec_lo, {hex(msk)}")
        k(f"s_mov_b32 exec_hi, {hex(msk)}")
        k("buffer_load_dword v40, v12, s[44:47], s31 offen")
        k("s_mov_b64 exec, -1")
        k.place(l9)
        k(f"s_cmp_lg_u32 s{SW}, 10")
        k(f"s_cbranch_scc1 {l10}")
        k(f"s_cmp_lt_u32 s2, {32*OPT.get('t1x', 1)}")
        k(f"s_cbranch_scc1 {l10}")
        srd(k, 44, 6, 512*3072)
        k("s_mul_i32 s31, s2, 6144")
        k("v_lshlrev_b32 v12, 7, v2")
        k("s_mov_b32 exec_hi, 0xffff")
        k("buffer_load_dword v40, v12, s[44:47], s31 offen")
        k("s_mov_b64 exec, -1")
        k.place(l10)

def early_role(k):
    nt, tk, tkd = k.label("nt"), k.label("etk"), k.label("etkd")
    k(f"s_cmp_lg_u32 s{SW}, 8")
    k(f"s_cbranch_scc1 {nt}")
    k("s_getreg_b32 s56, hwreg(HW_REG_XCC_ID, 0, 4)")
    k("s_and_b32 s56, s56, 7")
    k("s_mov_b64 exec, 1")
    k("v_mov_b32 v46, 1")
    k.place(tk)
    k("s_lshl_b32 s57, s56, 5")
    k("s_add_u32 s57, s57, 16")
    k("v_mov_b32 v45, s57")
    k("global_atomic_add v44, v45, v46, s[60:61] sc0 sc1")
    k("s_waitcnt vmcnt(0)")
    k("v_readfirstlane_b32 s57, v44")
    k("s_add_u32 s58, s56, 1")
    k("s_cmp_lt_u32 s57, 32")
    k(f"s_cbranch_scc1 {tkd}")
    k("s_and_b32 s56, s58, 7")
    k(f"s_branch {tk}")
    k.place(tkd)
    k("s_lshl_b32 s57, s57, 3")
    k("s_or_b32 s57, s57, s56")
    k(f"v_mov_b32 v4, {ROLE}")
    k("v_mov_b32 v5, s57")
    k("ds_write_b32 v4, v5")
    k("s_mov_b64 exec, -1")
    k("s_waitcnt lgkmcnt(0)")
    k.place(nt)
    cold_touch(k)
    k("s_barrier")
    role_read(k, True)

def role_read(k, force=False):
    if OPT.get('dyn', 1) != 1 and not force: return
    k(f"v_mov_b32 v4, {ROLE}")
    k("ds_read_b32 v4, v4")
    k("s_waitcnt lgkmcnt(0)")
    k(f"v_readfirstlane_b32 s{SIDX}, v4")
    k.nop(1)
    k(f"s_and_b32 s{SXCD}, s{SIDX}, 7")
    k(f"s_lshr_b32 s{SIDX}, s{SIDX}, 3")
    if OPT.get('amap', 1):
        k(f"s_lshl_b32 s{SHEAD}, s{SXCD}, 2")
        k(f"s_and_b32 s{SQB}, s{SIDX}, 3")
        k(f"s_add_u32 s{SHEAD}, s{SHEAD}, s{SQB}")
        k(f"s_lshr_b32 s{SQB}, s{SIDX}, 2")
    else:
        k(f"s_mov_b32 s{SHEAD}, s{SIDX}")
        k(f"s_mov_b32 s{SQB}, s{SXCD}")

def p1_map(k):
    k(f"""
    s_lshr_b32 s27, s{SXCD}, 1
    s_lshl_b32 s27, s27, 3
    s_and_b32 s28, s{SIDX}, 7
    s_add_u32 s27, s27, s28
    s_and_b32 s28, s{SXCD}, 1
    s_lshl_b32 s28, s28, 2
    s_lshr_b32 s29, s{SIDX}, 3
    s_add_u32 s28, s28, s29
    """)
EXC = 65536 + 3*12288
EXS = 65536 + 2*12288

def p1_consumer(k):
    SRB, SCB = 27, 28
    VXA, VWA = 12, 16
    WB = [20, 32, 44, 56]; XB = [68, 72, 76, 80]; ACC = 84; CS = 132; SEL = 144
    k(f"""
    v_and_b32 v8, 31, v2
    v_lshrrev_b32 v4, 5, v2
    v_lshrrev_b32 v5, 1, v8
    v_and_b32 v5, 7, v5
    s_and_b32 s34, s{SW}, 1
    s_lshl_b32 s35, s34, 12
    v_lshlrev_b32 v6, 7, v8
    v_add_u32 v6, s35, v6
    """)
    for u in range(4):
        k(f"v_add_u32 v7, {2*u}, v4")
        k(f"v_xor_b32 v7, v7, v5")
        k(f"v_lshl_add_u32 v{VXA+u}, v7, 4, v6")
    k(f"""
    s_lshr_b32 s36, s{SW}, 1
    v_bfe_u32 v5, v2, 2, 2
    v_lshl_add_u32 v6, v4, 3, v5
    v_lshlrev_b32 v6, 7, v6
    v_bfe_u32 v7, v2, 4, 1
    v_lshlrev_b32 v7, 1, v7
    v_bfe_u32 v11, v2, 1, 1
    v_add_u32 v7, v7, v11
    s_lshl_b32 s37, s36, 2
    v_add_u32 v7, s37, v7
    v_lshrrev_b32 v5, 1, v5
    v_lshlrev_b32 v5, 2, v5
    v_xor_b32 v7, v7, v5
    v_lshl_add_u32 v6, v7, 4, v6
    v_and_b32 v7, 1, v2
    v_lshl_add_u32 v{VWA+1}, v7, 3, v6
    v_add_u32 v{VWA+1}, 0x10000, v{VWA+1}
    v_mov_b32 v{VWA}, v{VWA+1}
    v_and_b32 v5, 15, v2
    v_bfe_u32 v7, v2, 4, 1
    v_cmp_eq_u32 vcc, v5, v7
    v_mov_b32 v6, {hex(ONES)}
    s_mov_b32 s47, 0
    v_cndmask_b32 v{SEL}, 0, v6, vcc
    """)
    for i in range(1, 4): k(f"v_mov_b32 v{SEL+i}, v{SEL}")
    for i in range(60): k(f"v_mov_b32 v{ACC+i}, 0")
    k(f"""
    s_lshl_b32 s40, s{SCB}, 2
    s_lshl_b32 s41, s36, 1
    s_add_u32 s40, s40, s41
    s_lshl_b32 s40, s40, 16
    s_lshl_b32 s41, s{SRB}, 1
    s_add_u32 s41, s41, s34
    s_lshl_b32 s41, s41, 10
    s_add_u32 s40, s40, s41
    v_bfe_u32 v9, v2, 4, 1
    v_lshlrev_b32 v9, 16, v9
    v_lshl_add_u32 v9, v4, 8, v9
    v_lshl_add_u32 v9, v5, 4, v9
    s_add_u32 s43, s40, {QF + 65536}
    s_add_u32 s44, s40, {KF}
    s_add_u32 s45, s40, {KF + 65536}
    s_add_u32 s46, s40, {VF}
    s_mov_b32 s48, 0
    """)
    k("s_waitcnt lgkmcnt(0)")
    srd(k, 20, 62, WS_SIZE)
    def xrd(u, b): k(f"ds_read_b128 v[{b}:{b+3}], v{VXA+u}")
    def wrd(u, b, p):
        for r in range(2):
            k(f"ds_read_b64_tr_b16 v[{b+4*p+2*r}:{b+4*p+2*r+1}], v{VWA} offset:{(u >> 1)*12288 + p*4096 + (u & 1)*2048 + r*512}")
    stamp(k, 0)
    k("s_barrier")
    stamp(k, 1)
    for u in range(2):
        xrd(u, XB[u])
        for p in range(3): wrd(u, WB[u], p)
    odd, ep = k.label("p1odd"), k.label("p1ep")
    k("s_cmp_eq_u32 s34, 1")
    k(f"s_cbranch_scc1 {odd}")
    for par in range(2):
        if par == 1: k.place(odd)
        ml = k.label("p1ml")
        k(".p2align 3")
        k.place(ml)
        for u in range(4):
            if u == 2:
                k("s_add_u32 s48, s48, 24576")
                k(f"s_cmp_eq_u32 s48, {8*12288}")
                k("s_cselect_b32 s48, 0, s48")
                k(f"v_add_u32 v{VXA}, 8192, v{VXA}")
                k(f"v_add_u32 v{VXA+1}, 8192, v{VXA+1}")
                k("s_barrier")
                k(f"v_add_u32 v{VWA}, s48, v{VWA+1}")
            b, x = WB[u], XB[u]
            nu = (u+2) & 3
            cs = (u & 1) == par and not OPT.get('z_nocs')
            k("s_waitcnt lgkmcnt(7)")
            k(f"{MFMA} v[{ACC}:{ACC+15}], v[{b}:{b+3}], v[{x}:{x+3}], v[{ACC}:{ACC+15}]")
            xrd(nu, XB[nu])
            wrd(nu, WB[nu], 0)
            if cs: k(f"{MF16} v[{CS}:{CS+3}], v[{SEL}:{SEL+3}], v[{b}:{b+3}], v[{CS}:{CS+3}]")
            k(f"{MFMA} v[{ACC+16}:{ACC+31}], v[{b+4}:{b+7}], v[{x}:{x+3}], v[{ACC+16}:{ACC+31}]")
            wrd(nu, WB[nu], 1)
            if cs: k(f"{MF16} v[{CS+4}:{CS+7}], v[{SEL}:{SEL+3}], v[{b+4}:{b+7}], v[{CS+4}:{CS+7}]")
            k(f"{MFMA} v[{ACC+32}:{ACC+47}], v[{x}:{x+3}], v[{b+8}:{b+11}], v[{ACC+32}:{ACC+47}]")
            wrd(nu, WB[nu], 2)
            if cs: k(f"{MF16} v[{CS+8}:{CS+11}], v[{SEL}:{SEL+3}], v[{b+8}:{b+11}], v[{CS+8}:{CS+11}]")
            if u == 3:
                for q in range(2, 4): k(f"v_add_u32 v{VXA+q}, 8192, v{VXA+q}")
                k("s_add_u32 s47, s47, 1")
                k("s_cmp_lt_u32 s47, 8")
        k(f"s_cbranch_scc1 {ml}")
        if par == 0: k(f"s_branch {ep}")
    k.place(ep)
    stamp(k, 2)
    k(f"""
    s_lshl_b32 s35, s34, 1
    s_add_u32 s35, s35, s36
    s_mul_i32 s35, s35, 384
    s_add_u32 s35, s35, {EXC}
    v_lshl_add_u32 v5, v2, 2, s35
    s_mul_i32 s37, s36, 384
    s_add_u32 s37, s37, {EXC}
    v_lshl_add_u32 v6, v4, 4, s37
    v_lshl_add_u32 v7, v8, 2, s37
    s_lshl_b32 s38, s34, 7
    s_add_u32 s38, s38, {EXS}
    v_lshl_add_u32 v10, v8, 2, s38
    v_lshl_add_u32 v11, v4, 4, s38
    s_mov_b64 exec, 0xffff
    """)
    for p in range(3):
        k(f"ds_write2_b32 v5, v{CS+4*p}, v{CS+4*p+1} offset0:{32*p} offset1:{32*p+16}")
    k("s_mov_b64 exec, -1")
    k("s_waitcnt lgkmcnt(0)")
    k("s_barrier")
    A, B, RSV, NBV = 20, 36, 52, 68
    RS, NB, CV = 132, 134, 136
    k(f"ds_read_b32 v{RS}, v10")
    k(f"ds_read_b32 v{NB}, v10 offset:256")
    def csrd(p):
        for g in range(4):
            k(f"ds_read_b128 v[{A+4*g}:{A+4*g+3}], v6 offset:{p*128 + g*32}")
            k(f"ds_read_b128 v[{B+4*g}:{B+4*g+3}], v6 offset:{768 + p*128 + g*32}")
    csrd(0)
    k(f"ds_read_b32 v{CV}, v7 offset:256")
    k(f"ds_read_b32 v{CV+1}, v7 offset:{768 + 256}")
    k(f"s_mov_b32 s42, {hex(f32(0.25*math.log2(math.e)))}")
    k("s_waitcnt lgkmcnt(10)")
    k(f"v_mul_f32 v138, s42, v{RS}")
    k(f"v_mul_f32 v140, s42, v{NB}")
    st = OPT['st']
    P = 144
    def fold(acc, rs, nb):
        for r in range(0, 16, 2):
            k(f"v_pk_add_f32 v[{A+r}:{A+r+1}], v[{A+r}:{A+r+1}], v[{B+r}:{B+r+1}]")
        for r in range(0, 16, 2):
            k(f"v_pk_mul_f32 v[{A+r}:{A+r+1}], v[{A+r}:{A+r+1}], v[{nb}:{nb+1}] op_sel_hi:[1,0]")
        for r in range(0, 16, 2):
            k(f"v_pk_fma_f32 v[{acc+r}:{acc+r+1}], v[{acc+r}:{acc+r+1}], v[{rs}:{rs+1}], v[{A+r}:{A+r+1}] op_sel_hi:[1,0,1]")
    def pack(acc, p, so0, so1, va, off1=0):
        for d in range(8):
            k(f"v_cvt_pk_bf16_f32 v{p+d}, v{acc+2*d}, v{acc+2*d+1}")
            if d == 3: k(f"buffer_store_dwordx4 v[{p}:{p+3}], v{va}, s[20:23], s{so0} offen {st}")
        k(f"buffer_store_dwordx4 v[{p+4}:{p+7}], v{va}, s[20:23], s{so1} offen" + (f" offset:{off1}" if off1 else "") + f" {st}")
    k("s_waitcnt lgkmcnt(2)")
    fold(ACC, 138, 140)
    csrd(1)
    for g in range(4):
        k(f"ds_read_b128 v[{RSV+4*g}:{RSV+4*g+3}], v11 offset:{g*32}")
    pack(ACC, P, 40, 43, 3)
    k("s_waitcnt lgkmcnt(4)")
    for g in range(4):
        k(f"ds_read_b128 v[{NBV+4*g}:{NBV+4*g+3}], v11 offset:{256 + g*32}")
    fold(ACC+16, RS, NB)
    pack(ACC+16, P+8, 44, 45, 3)
    k(f"v_add_f32 v{CV}, v{CV}, v{CV+1}")
    k("s_waitcnt lgkmcnt(0)")
    for r in range(0, 16, 2):
        k(f"v_pk_mul_f32 v[{NBV+r}:{NBV+r+1}], v[{NBV+r}:{NBV+r+1}], v[{CV}:{CV+1}] op_sel_hi:[1,0]")
    for r in range(0, 16, 2):
        k(f"v_pk_fma_f32 v[{ACC+32+r}:{ACC+33+r}], v[{ACC+32+r}:{ACC+33+r}], v[{RSV+r}:{RSV+r+1}], v[{NBV+r}:{NBV+r+1}]")
    pack(ACC+32, P+16, 46, 46, 9, 512)
    stamp(k, 3)
    k("s_waitcnt vmcnt(0)")
    k("s_barrier")
    role_read(k)
    k("s_barrier")

def relayout(k):
    st = OPT['st']
    PRE = [16, 44, 80]
    k(f"""
    v_and_b32 v6, 31, v2
    v_lshrrev_b32 v7, 5, v2
    v_lshlrev_b32 v12, 10, v6
    v_lshl_add_u32 v12, v7, 3, v12
    v_mul_u32_u24 v13, {4*2752}, v7
    v_lshl_add_u32 v13, v6, 1, v13
    v_lshlrev_b32 v14, 12, v7
    v_lshl_add_u32 v14, v6, 1, v14
    s_lshl_b32 s42, s2, 3
    s_mul_i32 s43, s29, 3
    s_add_u32 s42, s42, s43
    """)
    def wload(reg, voffreg, soffreg, pitch):
        for j in range(8):
            row = 8*(j >> 2) + (j & 3)
            k(f"s_add_u32 s49, s{soffreg}, {row*pitch}")
            k(f"buffer_load_ushort v{reg+j}, v{voffreg}, s[44:47], s49 offen")
    def item_loads(i):
        P_, D0 = PRE[i], (37, 52, 32)[i]
        k(f"s_add_u32 s{D0+2}, s42, {i}")
        if i == 2:
            k("s_cmp_eq_u32 s29, 2")
            k(f"s_cselect_b32 s{D0+2}, 0xfff, s{D0+2}")
        G = D0 + 2
        srd(k, 44, 4, 2*MB)
        k(f"""
        s_lshr_b32 s43, s{G}, 5
        s_lshl_b32 s43, s43, 15
        s_and_b32 s48, s{G}, 31
        s_lshl_b32 s48, s48, 5
        s_add_u32 s43, s43, s48
        buffer_load_dwordx2 v[{P_}:{P_+1}], v12, s[44:47], s43 offen
        buffer_load_dwordx2 v[{P_+2}:{P_+3}], v12, s[44:47], s43 offen offset:16
        s_mov_b32 s50, {(2**32 + 42)//43}
        s_mul_hi_u32 s51, s{G}, s50
        s_mul_i32 s58, s51, 43
        s_sub_u32 s58, s{G}, s58
        s_mul_i32 s59, s51, {16*2752}
        s_lshl_b32 s48, s58, 6
        s_add_u32 s59, s59, s48
        s_lshl_b32 s{D0}, s58, 6
        s_add_u32 s{D0}, s{D0}, s51
        s_lshl_b32 s{D0}, s{D0}, 10
        s_cmp_lt_u32 s{G}, 1376
        s_cselect_b32 s50, {512*2752}, 0
        s_mov_b32 s44, s12
        s_and_b32 s45, s13, 0xffff
        s_mov_b32 s46, s50
        """)
        wload(P_+4, 13, 59, 2752)
        k("s_mov_b32 s44, s14")
        k("s_and_b32 s45, s15, 0xffff")
        wload(P_+12, 13, 59, 2752)
        k(f"""
        s_sub_u32 s48, s{G}, 1376
        s_cmp_lt_u32 s{G}, 1376
        s_cselect_b32 s48, s{G}, s48
        s_cselect_b32 s44, s16, s8
        s_cselect_b32 s45, s17, s9
        s_cselect_b32 s46, {1376*1024}, 0
        s_cselect_b32 s50, 86, 32
        s_cselect_b32 s43, {WDF - WOF}, 0
        s_and_b32 s45, s45, 0xffff
        s_sub_u32 s51, s{G}, 1376
        s_cmp_lt_u32 s51, 512
        s_cselect_b32 s46, {512*1024}, s46
        s_and_b32 s58, s48, 15
        s_lshr_b32 s51, s48, 4
        s_lshl_b32 s59, s51, 14
        s_lshl_b32 s48, s58, 6
        s_add_u32 s59, s59, s48
        s_mul_i32 s{D0+1}, s58, s50
        s_add_u32 s{D0+1}, s{D0+1}, s51
        s_lshl_b32 s{D0+1}, s{D0+1}, 10
        s_add_u32 s{D0+1}, s{D0+1}, s43
        """)
        wload(P_+20, 14, 59, 1024)
    def pack_store(reg, dstreg, base):
        for d in range(4):
            k(f"v_lshl_or_b32 v{reg+d}, v{reg+2*d+1}, 16, v{reg+2*d}")
        k(f"s_add_u32 s49, s{dstreg}, {base}")
        k(f"buffer_store_dwordx4 v[{reg}:{reg+3}], v3, s[20:23], s49 offen {st}")
    def item_stores(i):
        P_, D0 = PRE[i], (37, 52, 32)[i]
        G = D0 + 2
        l1, l2 = k.label("is1"), k.label("is2")
        if i == 2:
            k("s_cmp_eq_u32 s29, 2")
            k(f"s_cbranch_scc1 {l2}")
        k(f"s_lshl_b32 s43, s{G}, 10")
        k(f"s_add_u32 s43, s43, {XF}")
        k(f"buffer_store_dwordx4 v[{P_}:{P_+3}], v3, s[20:23], s43 offen {st}")
        k(f"s_cmp_lt_u32 s{G}, 1376")
        k(f"s_cbranch_scc0 {l1}")
        for reg in (P_+4, P_+12):
            for d in range(4):
                k(f"v_lshl_or_b32 v{reg+d}, v{reg+2*d+1}, 16, v{reg+2*d}")
        k.nop(2)
        for d in range(4):
            k(f"v_permlane16_swap_b32 v{P_+4+d}, v{P_+12+d}")
        k(f"s_add_u32 s49, s{D0}, {WGF}")
        k(f"buffer_store_dwordx4 v[{P_+4}:{P_+7}], v3, s[20:23], s49 offen {st}")
        k(f"s_add_u32 s49, s{D0}, {WGF + 32768}")
        k(f"buffer_store_dwordx4 v[{P_+12}:{P_+15}], v3, s[20:23], s49 offen {st}")
        k.place(l1)
        k(f"s_cmp_lt_u32 s{G}, 1888")
        k(f"s_cbranch_scc0 {l2}")
        pack_store(P_+20, D0+1, WOF)
        k.place(l2)
    return item_loads, item_stores

def p1_loader(k):
    SRB, SCB = 27, 28
    VXE, VXO, VW = 8, 9, 10
    k(f"""
    s_sub_u32 s29, s{SW}, 4
    v_lshrrev_b32 v11, 3, v2
    v_and_b32 v4, 7, v2
    v_lshrrev_b32 v5, 4, v2
    v_xor_b32 v6, v4, v5
    v_lshlrev_b32 v6, 4, v6
    s_lshl_b32 s35, s29, 4
    v_add_u32 v7, s35, v11
    v_lshlrev_b32 v12, 10, v7
    v_add_u32 v{VXE}, v12, v6
    v_xor_b32 v6, 64, v6
    v_add_u32 v{VXO}, v12, v6
    v_add_u32 v{VXO}, 8192, v{VXO}
    s_lshl_b32 s35, s29, 3
    v_add_u32 v7, s35, v11
    v_and_b32 v5, 1, v5
    v_lshlrev_b32 v5, 2, v5
    v_xor_b32 v5, v4, v5
    v_lshlrev_b32 v5, 4, v5
    v_mul_u32_u24 v7, 3072, v7
    v_add_u32 v{VW}, v7, v5
    s_lshl_b32 s31, s29, 10
    s_lshl_b32 s36, s29, 11
    s_lshl_b32 s30, s{SRB}, 16
    s_lshl_b32 s32, s{SCB}, 7
    """)
    k("s_mov_b32 s54, 0x200000")
    k("s_mov_b32 s55, 0x20000")
    k(f"s_mov_b32 s58, {512*3072}")
    k("s_mov_b32 s59, 0x20000")
    k("s_waitcnt lgkmcnt(0)")
    k("s_mov_b32 s52, s4")
    k("s_and_b32 s53, s5, 0xffff")
    k("s_mov_b32 s56, s6")
    k("s_and_b32 s57, s7, 0xffff")
    n = lambda c: 3 + (0 if c & 1 else 2)
    def issue(c):
        if OPT.get('z_nodma1') and c > 2: return
        if not c & 1:
            k(f"s_add_u32 s33, s30, {(c//2)*128}")
            for o in range(2):
                dma(k, VXE if o == 0 else VXO, 52, 33, f"s36, {(c//2)*8192 + o*1024}")
        for p in range(3):
            k(f"s_add_u32 s33, s32, {32*c*3072 + p*1024}")
            dma(k, VW, 56, 33, f"s31, {65536 + (c % 8)*12288 + p*4096}")
    issued = OPT.get('d1', 4)
    for c in range(issued): issue(c)
    srd(k, 20, 62, WS_SIZE)
    for P in range(9):
        k(f"s_waitcnt vmcnt({sum(n(j) for j in range(2*P+2, issued))})")
        k("s_barrier")
        m = 0
        while issued < 16 and issued - 8 <= 2*P - 3 and m < 4:
            issue(issued); issued += 1; m += 1
    k("s_barrier")
    k("s_barrier")
    role_read(k)
    k("s_barrier")

RLAB = [None]
def p1_helper(k):
    RLAB[0] = k.label('RL')
    k(f"s_setprio {OPT.get('hprio', 3)}")
    k("s_waitcnt lgkmcnt(0)")
    srd(k, 20, 62, WS_SIZE)
    X, SQ, SX, T, RS, NB = 16, 24, 28, 32, 36, 38
    init_done = k.label("initd")
    k(f"""
    s_cmp_lg_u32 s{SW}, 8
    s_cbranch_scc1 {init_done}
    s_lshl_b32 s30, s2, 7
    s_add_u32 s30, s30, {FLG}
    v_lshl_add_u32 v4, v2, 15, s30
    s_and_b32 s30, s2, 7
    s_lshl_b32 s30, s30, 8
    s_add_u32 s30, s30, {CNT + CW*256}
    v_mov_b32 v5, 0
    v_writelane_b32 v4, s30, 5
    s_mov_b64 exec, 63
    buffer_store_dword v5, v4, s[20:23], 0 offen sc1
    s_mov_b64 exec, -1
    """)
    k.place(init_done)
    if OPT.get('dyn', 1) == 1:
        tkx = k.label("tkx")
        def ticket():
            k("s_lshl_b32 s57, s56, 5")
            k("s_add_u32 s57, s57, 16")
            k("s_mov_b64 exec, 1")
            k("v_mov_b32 v45, s57")
            k("v_mov_b32 v46, 1")
            k("global_atomic_add v44, v45, v46, s[60:61] sc0 sc1")
            k("s_mov_b64 exec, -1")
        def first_ticket():
            k(f"s_cmp_lg_u32 s{SW}, 8")
            k(f"s_cbranch_scc1 {tkx}")
            k("s_getreg_b32 s56, hwreg(HW_REG_XCC_ID, 0, 4)")
            k("s_and_b32 s56, s56, 7")
            k("s_waitcnt vmcnt(0)")
            ticket()
            k.place(tkx)
        if OPT.get('tkat', 2) < 0: first_ticket()
    k(f"""
    s_sub_u32 s29, s{SW}, 8
    s_lshl_b32 s30, s29, 10
    v_add_u32 v4, s30, v3
    s_mov_b32 s39, {hex(ONES)}
    """)
    if OPT.get('dyn', 1) != 2 and OPT.get('t1at', 0) < 0: cold_touch(k)
    for c in range(9):
        k("s_barrier")
        if OPT.get('dyn', 1) == 1 and c == OPT.get('tkat', 2): first_ticket()
        if OPT.get('dyn', 1) == 2 and c == OPT.get('tkat', 2):
            l2 = k.label("cl2")
            k(f"s_cmp_lg_u32 s{SW}, 8")
            k(f"s_cbranch_scc1 {l2}")
            k(f"s_lshl_b32 s57, s{SXCD}, 5")
            k("s_mov_b64 exec, 1")
            k("v_mov_b32 v45, s57")
            k("v_mov_b32 v46, 1")
            k("s_waitcnt vmcnt(0)")
            k("global_atomic_add v45, v46, s[60:61] offset:20 sc1")
            k("s_mov_b64 exec, -1")
            k.place(l2)
        if c == OPT.get('t1at', 0): cold_touch(k)
        if c == OPT.get('t6at', 99):
            l6 = k.label("t6")
            k(f"s_cmp_eq_u32 s{SW}, 8")
            k(f"s_cbranch_scc1 {l6}")
            k(f"s_sub_u32 s42, s{SW}, 9")
            k(f"s_lshl_b32 s42, s42, 21")
            k("s_lshl_b32 s43, s2, 13")
            k("s_add_u32 s42, s42, s43")
            touch(k, 42, 64, 47)
            k.place(l6)
        if c == OPT.get('tcat', 7):
            l11 = k.label("t11b")
            k(f"s_cmp_lg_u32 s{SW}, 11")
            k(f"s_cbranch_scc1 {l11}")
            if True:
                here = k.label("here")
                k("s_getpc_b64 s[44:45]")
                k.place(here)
                k(f"s_sub_u32 s44, s44, {here}-{NAME}")
                k("s_subb_u32 s45, s45, 0")
                k("v_lshlrev_b32 v12, 7, v2")
                for i in range(4):
                    k(f"global_load_dword v{40+i}, v12, s[44:45]")
                    if i < 3: k("v_add_u32 v12, 8192, v12")
            k.place(l11)

        if c < 8 and not (OPT.get('z_nostat') and c > 0):
            cc = c
            k(f"ds_read_b128 v[{X}:{X+3}], v4 offset:{cc*8192}")
            k(f"ds_read_b128 v[{X+4}:{X+7}], v4 offset:{cc*8192 + 4096}")
            for hf in range(2):
                k(f"s_waitcnt lgkmcnt({1-hf})")
                for d in range(4):
                    r = X + 4*hf + d
                    q, sx = SQ + 2*hf + (d & 1), SX + 2*hf + (d & 1)
                    first = (cc == 0 and d < 2)
                    k(f"v_dot2_f32_bf16 v{q}, v{r}, v{r}, {'0' if first else 'v%d' % q}")
                    k(f"v_dot2_f32_bf16 v{sx}, v{r}, s39, {'0' if first else 'v%d' % sx}")
        if c == 7:
            k.nop(3)
            k(f"v_add_f32 v{SQ}, v{SQ}, v{SQ+1}")
            k(f"v_add_f32 v{SQ+2}, v{SQ+2}, v{SQ+3}")
            k(f"v_add_f32 v{SX}, v{SX}, v{SX+1}")
            k(f"v_add_f32 v{SX+2}, v{SX+2}, v{SX+3}")
            row8_sum(k, [SQ, SQ+2, SX, SX+2])
        if c == 7:
            for hf in range(2):
                finish_stats(k, SX + 2*hf, SQ + 2*hf, RS + hf, NB + hf, T, T+1)
            k(f"""
            v_lshrrev_b32 v5, 3, v2
            s_lshl_b32 s30, s29, 5
            s_add_u32 s30, s30, {EXS}
            v_lshl_add_u32 v5, v5, 2, s30
            ds_write2_b32 v5, v{RS}, v{RS+1} offset0:0 offset1:32
            ds_write2_b32 v5, v{NB}, v{NB+1} offset0:64 offset1:96
            """)
            nm = k.label("nomx")
            k(f"""
            s_cmp_lg_u32 s28, 0
            s_cbranch_scc1 {nm}
            s_lshl_b32 s30, s27, 8
            s_lshl_b32 s31, s29, 5
            s_add_u32 s30, s30, s31
            s_add_u32 s30, s30, {MX}
            v_lshrrev_b32 v5, 3, v2
            v_lshlrev_b32 v5, 2, v5
            s_mov_b32 exec_lo, 0x01010101
            s_mov_b32 exec_hi, 0x01010101
            buffer_store_dword v{SX}, v5, s[20:23], s30 offen sc1
            buffer_store_dword v{SX+2}, v5, s[20:23], s30 offen offset:128 sc1
            s_mov_b64 exec, -1
            """)
            k.place(nm)
    k("s_waitcnt lgkmcnt(0)")
    k("s_barrier")
    if OPT.get('dyn', 1) == 1:
        nw = k.label("nrw")
        k(f"s_cmp_lg_u32 s{SW}, 8")
        k(f"s_cbranch_scc1 {nw}")
        tk, tkd = k.label("tk"), k.label("tkd")
        k.place(tk)
        k("s_waitcnt vmcnt(0)")
        k("v_readfirstlane_b32 s57, v44")
        k.nop(1)
        k("s_cmp_lt_u32 s57, 32")
        k(f"s_cbranch_scc1 {tkd}")
        k("s_add_u32 s56, s56, 1")
        k("s_and_b32 s56, s56, 7")
        ticket()
        k(f"s_branch {tk}")
        k.place(tkd)
        k("s_lshl_b32 s57, s57, 3")
        k("s_or_b32 s57, s57, s56")
        k(f"v_mov_b32 v4, {ROLE}")
        k("v_mov_b32 v5, s57")
        k("ds_write_b32 v4, v5")
        g, gx = k.label("gate"), k.label("gatex")
        k("s_mov_b32 s41, 0")
        k("v_lshlrev_b32 v9, 5, v2")
        k("s_mov_b64 exec, 0xff")
        k.place(g)
        k(f"global_load_dword v10, v9, s[60:61] offset:{16 if OPT.get('dyn', 1) == 1 else 20} sc1")
        k("s_add_u32 s41, s41, 1")
        k("s_cmp_gt_u32 s41, 0x40000")
        k(f"s_cbranch_scc1 {gx}")
        k("s_waitcnt vmcnt(0)")
        k("v_cmp_gt_u32 vcc, 32, v10")
        k("s_cmp_eq_u64 vcc, 0")
        k(f"s_cbranch_scc1 {gx}")
        k("s_sleep 8")
        k(f"s_branch {g}")
        k.place(gx)
        k("s_mov_b64 exec, -1")
        k("s_waitcnt lgkmcnt(0)")
        k.place(nw)
    k(f"s_lshl_b32 s40, s28, 5")
    k(f"s_add_u32 s40, s40, s27")
    k(f"s_lshl_b32 s40, s40, 7")
    k(f"s_add_u32 s40, s40, {FLG}")
    k("v_mov_b32 v8, 1")
    k("v_mov_b32 v9, 0")
    k("s_waitcnt vmcnt(0)")
    stamp(k, 1)
    k("s_barrier")
    k(f"s_cmp_lg_u32 s{SW}, 8")
    k(f"s_cbranch_scc1 {RLAB[0]}")
    k("s_mov_b64 exec, 1")
    k("buffer_store_dword v8, v9, s[20:23], s40 offen sc1")
    k("s_mov_b64 exec, -1")
    stamp(k, 0)
    role_read(k)
    k(f"v_mov_b32 v4, {PROG}")
    k("v_mov_b32 v5, 0")
    for o in (0, 16, 32, 48): k(f"ds_write_b32 v4, v5 offset:{o}")
    k("s_getreg_b32 s58, hwreg(HW_REG_XCC_ID, 0, 4)")
    k("s_add_u32 s58, s58, 1")
    k(f"s_lshl_b32 s42, s{SXCD}, 5")
    k(f"s_add_u32 s42, s42, s{SIDX}")
    k(f"s_add_u32 s42, s42, {FX}")
    flag_set(k, 42, "s58")
    k(f"s_lshr_b32 s42, s{SHEAD}, 2")
    k(f"s_lshl_b32 s42, s42, 5")
    flag_poll(k, 42)
    stamp(k, 2); rstamp(k, 3)
    k("s_waitcnt lgkmcnt(0)")
    k("s_barrier")

def rowmax(k, S, dst, t1, t2):
    k(f"v_max3_f32 v{dst}, v{S}, v{S+1}, v{S+2}")
    k(f"v_max3_f32 v{t1}, v{S+3}, v{S+4}, v{S+5}")
    k(f"v_max3_f32 v{dst}, v{dst}, v{S+6}, v{S+7}")
    k(f"v_max3_f32 v{t1}, v{t1}, v{S+8}, v{S+9}")
    k(f"v_max3_f32 v{dst}, v{dst}, v{S+10}, v{S+11}")
    k(f"v_max3_f32 v{t1}, v{t1}, v{S+12}, v{S+13}")
    k(f"v_max3_f32 v{dst}, v{dst}, v{S+14}, v{S+15}")
    k(f"v_max_f32 v{t1}, v{dst}, v{t1}")
    k(f"v_mov_b32 v{t2}, v{t1}")
    k.nop(2)
    k(f"v_permlane32_swap_b32 v{t1}, v{t2}")
    k.nop(1)
    k(f"v_max_f32 v{dst}, v{t1}, v{t2}")

def p2_compute(k, tail):
    Q = 8; KB = [12, 16]; V1 = [20, 28]; V2 = [24, 32]; P = 36; SS = [48, 64]; CN = 80; O = 96
    VKA, VVA, VINC = 4, 5, 47
    PRG, VPR = 112, 6
    chk, spin = k.label("chk"), k.label("spin")
    def spinf(k):
        k.place(spin)
        k("s_sleep 1")
        k(f"ds_read_b32 v{PRG}, v{VPR}")
        k("s_waitcnt lgkmcnt(0)")
        k(f"s_branch {chk}")
    tail.append(spinf)
    k(f"""
    s_lshl_b32 s30, s{SQB}, 3
    s_add_u32 s30, s30, s{SW}
    s_lshl_b32 s31, s30, 10
    s_lshl_b32 s29, s{SHEAD}, 16
    s_add_u32 s31, s31, s29
    buffer_load_dwordx4 v[{Q}:{Q+3}], v3, s[20:23], s31 offen {OPT['ld']}
    v_mov_b32 v{VKA}, v3
    v_lshrrev_b32 v6, 5, v2
    v_lshlrev_b32 v6, 8, v6
    v_and_b32 v7, 15, v2
    v_lshl_add_u32 v{VVA}, v7, 4, v6
    v_add_u32 v{VVA}, 0x10000, v{VVA}
    v_and_b32 v6, 27, v2
    v_mov_b32 v7, {hex(ONES)}
    v_cmp_eq_u32 vcc, 16, v6
    s_mov_b32 s36, 0xffff
    s_mov_b32 s37, 0xffff
    v_cndmask_b32 v7, 0, v7, vcc
    """)
    for r in range(16): k(f"v_mov_b32 v{V1[0]+r}, v7")
    k(f"v_mov_b32 v{VPR}, {PROG}")
    for r in range(8): k(f"v_mov_b32 v{P+r}, 0")
    for r in range(16): k(f"v_mov_b32 v{O+r}, 0")
    def vread(kk, buf, off):
        kk("s_mov_b64 exec, s[36:37]")
        kk(f"ds_read_b128 v[{V1[buf]}:{V1[buf]+3}], v{VVA} offset:{off}")
        kk(f"ds_read_b128 v[{V2[buf]}:{V2[buf]+3}], v{VVA} offset:{off+512}")
        kk("s_mov_b64 exec, -1")
    stamp(k, 4)
    k("s_barrier")
    stamp(k, 5)
    k(f"ds_read_b128 v[{KB[0]}:{KB[0]+3}], v{VKA}")
    k(f"ds_read_b128 v[{KB[1]}:{KB[1]+3}], v{VKA} offset:1024")
    vread(k, 0, 0)
    k("s_waitcnt vmcnt(0) lgkmcnt(3)")
    k(f"{MFMA} v[{SS[0]}:{SS[0]+15}], v[{KB[0]}:{KB[0]+3}], v[{Q}:{Q+3}], 0")
    k.nop(12)
    rowmax(k, SS[0], 44, 45, 46)
    for r in range(16): k(f"v_sub_f32 v{CN+r}, 0, v44")
    k.nop(2)
    k(f"{MFMA} v[{SS[0]}:{SS[0]+15}], v[{KB[0]}:{KB[0]+3}], v[{Q}:{Q+3}], v[{CN}:{CN+15}]")
    k("s_mov_b32 s38, 0")
    k.nop(10)
    loop = k.label("loop")
    k(".p2align 6")
    k.place(loop)
    pr = OPT['prio']
    for t in range(8):
        cur, nx = SS[t & 1], SS[(t+1) & 1]
        e = lambda i: k(f"v_exp_f32 v{cur+i}, v{cur+i}")
        c = lambda i: k(f"v_cvt_pk_bf16_f32 v{P+i}, v{cur+2*i}, v{cur+2*i+1}")
        k("s_waitcnt lgkmcnt(0)")
        if t == 6:
            k.place(chk)
            k(f"v_cmp_ge_u32 vcc, s38, v{PRG}")
            k("s_cmp_lg_u64 vcc, 0")
            k(f"s_cbranch_scc1 {spin}")
        kb = KB[(t+1) & 1]
        pb = (t+1) & 1
        sp = (lambda n: k(f"s_setprio {n}")) if pr else (lambda n: None)
        k(f"{MFMA} v[{nx}:{nx+15}], v[{kb}:{kb+3}], v[{Q}:{Q+3}], v[{CN}:{CN+15}]")
        sp(0)
        k(f"ds_read_b128 v[{KB[t&1]}:{KB[t&1]+3}], v{VKA} offset:{(t+2)*1024}")
        e(0); e(1)
        k(f"{MFMA} v[{O}:{O+15}], v[{V2[pb]}:{V2[pb]+3}], v[{P+4}:{P+7}], v[{O}:{O+15}]")
        vread(k, pb, (t+1)*1024)
        if t == 5: k(f"ds_read_b32 v{PRG}, v{VPR}")
        e(2); e(3); sp(1); c(0); e(4); e(5); c(1); e(6); e(7); sp(2); c(2); e(8); e(9); c(3); e(10); e(11)
        k(f"{MFMA} v[{O}:{O+15}], v[{V1[t&1]}:{V1[t&1]+3}], v[{P}:{P+3}], v[{O}:{O+15}]")
        c(4); e(12); e(13); sp(3); c(5); e(14); e(15); c(6)
        if t == 7:
            k(f"v_add_u32 v{VKA}, 8192, v{VKA}")
            k(f"v_add_u32 v{VVA}, 8192, v{VVA}")
            k("s_add_u32 s38, s38, 1")
            k(f"v_mov_b32 v{PRG}, s38")
            k(f"ds_write_b32 v{VPR}, v{PRG} offset:32")
            k("s_cmp_lt_u32 s38, 8")
        c(7)
    k(f"s_cbranch_scc1 {loop}")
    k("s_setprio 0")
    stamp(k, 6)
    k.nop(1)
    k(f"{MFMA} v[{O}:{O+15}], v[{V2[1]}:{V2[1]+3}], v[{P+4}:{P+7}], v[{O}:{O+15}]")
    k(f"ds_read_b32 v{PRG}, v{VPR} offset:16")
    k("s_waitcnt lgkmcnt(0)")
    k(f"v_readfirstlane_b32 s{SLOC}, v{PRG}")
    k.nop(11)
    fb, fin = k.label("fb"), k.label("fin")
    k(f"""
    v_max3_f32 v44, abs(v{O}), abs(v{O+1}), abs(v{O+2})
    v_max3_f32 v45, abs(v{O+3}), abs(v{O+4}), abs(v{O+5})
    v_max3_f32 v44, v44, abs(v{O+6}), abs(v{O+7})
    v_add_f32 v46, v{O}, v{O+1}
    v_max3_f32 v44, v44, v45, v{O+8}
    s_mov_b32 s39, {hex(f32(2.0**100))}
    """)
    for r in range(2, 9): k(f"v_add_f32 v46, v46, v{O+r}")
    k(f"v_and_b32 v46, 0x7fffffff, v46")
    k(f"v_cmp_ngt_f32 vcc, s39, v44")
    k(f"v_cmp_ngt_f32 s[40:41], s39, v46")
    k.nop(1)
    k("s_or_b64 s[40:41], s[40:41], vcc")
    k("s_cmp_lg_u64 s[40:41], 0")
    k(f"s_cbranch_scc1 {fb}")
    k.place(fin)
    k(f"v_rcp_f32 v44, v{O+8}")
    k(f"s_lshl_b32 s40, s30, 15")
    k(f"s_lshl_b32 s41, s{SHEAD}, 10")
    k(f"s_add_u32 s40, s40, s41")
    k(f"s_add_u32 s40, s40, {OF}")
    for r in range(8): k(f"v_mul_f32 v{O+r}, v{O+r}, v44")
    for r in range(4): k(f"v_cvt_pk_bf16_f32 v{P+r}, v{O+2*r}, v{O+2*r+1}")
    pub_store(k, [f"buffer_store_dwordx4 v[{P}:{P+3}], v3, s[20:23], s40 offen"], 0)
    k("s_waitcnt vmcnt(0)")
    k("s_barrier")
    k("s_barrier")
    def fallback(k):
        k.place(fb)
        k(f"v_mov_b32 v{VKA}, v3")
        k(f"v_subrev_u32 v{VVA}, 0x10000, v{VVA}")
        k(f"v_mov_b32 v7, 0xff7fffff")
        for r in range(16): k(f"v_mov_b32 v{O+r}, 0")
        k("s_mov_b32 s38, 0")
        fl = k.label("fl")
        k.place(fl)
        S = SS[0]
        k(f"ds_read_b128 v[{KB[0]}:{KB[0]+3}], v{VKA}")
        vread(k, 0, 0)
        k("s_waitcnt lgkmcnt(0)")
        k(f"{MFMA} v[{S}:{S+15}], v[{KB[0]}:{KB[0]+3}], v[{Q}:{Q+3}], 0")
        k.nop(14)
        rowmax(k, S, 44, 45, 46)
        k("v_max_f32 v44, v44, v7")
        k("v_sub_f32 v45, v7, v44")
        k("v_exp_f32 v45, v45")
        k("v_mov_b32 v7, v44")
        for r in range(16): k(f"v_sub_f32 v{S+r}, v{S+r}, v44")
        for r in range(16): k(f"v_mul_f32 v{O+r}, v{O+r}, v45")
        for r in range(16): k(f"v_exp_f32 v{S+r}, v{S+r}")
        k.nop(1)
        for r in range(8): k(f"v_cvt_pk_bf16_f32 v{P+r}, v{S+2*r}, v{S+2*r+1}")
        k.nop(2)
        k(f"{MFMA} v[{O}:{O+15}], v[{V1[0]}:{V1[0]+3}], v[{P}:{P+3}], v[{O}:{O+15}]")
        k(f"{MFMA} v[{O}:{O+15}], v[{V2[0]}:{V2[0]+3}], v[{P+4}:{P+7}], v[{O}:{O+15}]")
        k(f"v_add_u32 v{VKA}, 1024, v{VKA}")
        k(f"v_add_u32 v{VVA}, 1024, v{VVA}")
        k("s_add_u32 s38, s38, 1")
        k("s_cmp_lt_u32 s38, 64")
        k.nop(14)
        k(f"s_cbranch_scc1 {fl}")
        k(f"s_branch {fin}")
    tail.append(fallback)

def p2_relayout(k):
    k(f"""
    s_sub_u32 s29, s{SW}, 9
    """)
    early = OPT.get('rl_early', 0)
    if early < 2:
        k("s_waitcnt lgkmcnt(0)")
        k("s_barrier")
    if early < 1:
        k("s_barrier")
    loads, stores = relayout(k)
    loads(0); loads(1)
    srd(k, 44, 8, 512*1024)
    k("s_and_b32 s35, s29, 1")
    k("s_lshl_b32 s36, s2, 1")
    k("s_add_u32 s35, s35, s36")
    k("s_lshl_b32 s36, s35, 10")
    k("buffer_load_dwordx4 v[72:75], v3, s[44:47], s36 offen")
    if early >= 2:
        k("s_waitcnt lgkmcnt(0)")
        k("s_barrier")
    if early >= 1:
        k("s_barrier")
    k("s_waitcnt vmcnt(27)")
    stores(0)
    loads(2)
    k("s_waitcnt vmcnt(26)")
    stores(1)
    k(f"s_mov_b32 s36, {hex(ONES)}")
    k("v_dot2_f32_bf16 v76, v72, s36, 0")
    for d in range(1, 4): k(f"v_dot2_f32_bf16 v76, v{72+d}, s36, v76")
    k.nop(1)
    for ctl in ("quad_perm:[1,0,3,2]", "quad_perm:[2,3,0,1]", "row_half_mirror", "row_mirror"):
        k.nop(2)
        k(f"v_add_f32_dpp v76, v76, v76 {ctl} row_mask:0xf bank_mask:0xf")
    k.nop(1)
    for i in range(4): k(f"v_readlane_b32 s{48+i}, v76, {16*i}")
    k(f"""
    s_lshr_b32 s36, s35, 4
    s_lshl_b32 s36, s36, 6
    s_bfe_u32 s43, s35, 0x10002
    s_lshl_b32 s43, s43, 4
    s_add_u32 s36, s36, s43
    v_mov_b32 v76, s48
    v_add_f32 v76, s49, v76
    v_add_f32 v76, s50, v76
    v_add_f32 v76, s51, v76
    v_mul_f32 v76, {hex(f32(1/512))}, v76
    s_bfe_u32 s43, s35, 0x10003
    s_lshl_b32 s43, s43, 3
    s_add_u32 s36, s36, s43
    v_cvt_pk_bf16_f32 v77, v76, v76
    s_and_b32 s43, s35, 3
    s_lshl_b32 s43, s43, 1
    s_add_u32 s36, s36, s43
    v_and_b32 v78, 0xffff0000, v77
    v_sub_f32 v78, v76, v78
    s_add_u32 s36, s36, {WBT}
    v_cvt_pk_bf16_f32 v78, v78, v78
    v_mov_b32 v79, 0
    s_mov_b64 exec, 1
    buffer_store_short v77, v79, s[20:23], s36 offen sc1
    buffer_store_short v78, v79, s[20:23], s36 offen offset:32 sc1
    s_mov_b64 exec, -1
    """)
    k("s_waitcnt vmcnt(0)")
    stores(2)
    k("s_waitcnt vmcnt(0)")
    na = k.label("noarr")
    k(f"v_mov_b32 v5, {PROG + 48}")
    k("v_mov_b32 v6, 1")
    k("s_mov_b64 exec, 1")
    k("ds_add_rtn_u32 v7, v5, v6")
    k("s_waitcnt lgkmcnt(0)")
    k("v_readfirstlane_b32 s42, v7")
    k("s_cmp_lg_u32 s42, 2")
    k(f"s_cbranch_scc1 {na}")
    k(f"s_add_u32 s42, s{SXCD}, {CW}")
    arrive(k, 42)
    k.place(na)
    k("s_endpgm")

def p2_helper(k, done):
    ld = OPT['ld']
    k(f"s_lshl_b32 s33, s{SHEAD}, 16")
    def kv(c):
        for base, l in ((KF, 0), (VF, 65536)):
            for g in range(2):
                k(f"s_add_u32 s34, s33, {base + c*8192 + g*4096}")
                k(f"s_mov_b32 m0, {l + c*8192 + g*4096}")
                k.nop(1)
                for q in range(4):
                    k(f"buffer_load_dwordx4 v3, s[20:23], s34 offen" + (f" offset:{q*1024}" if q else "") + f" {ld} lds")
    kv(0); kv(1)
    k("s_waitcnt vmcnt(16)")
    k("s_barrier")
    issued = 2
    def publish(c):
        k(f"v_mov_b32 v5, {c if c < 7 else 64}")
        k("ds_write_b32 v4, v5")
    while issued < OPT.get('kvd', 3): kv(issued); issued += 1
    for c in range(1, 8):
        k(f"s_waitcnt vmcnt({16*(issued - 1 - c)})")
        publish(c)
        if issued < 8: kv(issued); issued += 1
    stamp(k, 12)
    k("s_setprio 3")
    k(f"s_lshl_b32 s42, s{SXCD}, 5")
    k(f"s_add_u32 s42, s42, {FX}")
    flag_poll(k, 42)
    k("s_getreg_b32 s58, hwreg(HW_REG_XCC_ID, 0, 4)")
    k("s_add_u32 s58, s58, 1")
    k("s_mov_b32 exec_hi, 0")
    k("v_cmp_ne_u32 vcc, s58, v10")
    k("s_cmp_eq_u64 vcc, 0")
    k(f"s_cselect_b32 s{SLOC}, 1, 0")
    k(f"v_mov_b32 v5, s{SLOC}")
    k("ds_write_b32 v4, v5 offset:16")
    k("s_mov_b64 exec, -1")
    m5 = OPT.get('t5', 0)
    if m5:
        k(f"s_lshl_b32 s43, s{SXCD}, 5")
        k(f"s_add_u32 s43, s43, s{SIDX}")
        if m5 & 1:
            k(f"s_mul_i32 s42, s43, {172*128}")
            k(f"s_add_u32 s42, s42, {ACT}")
            touch(k, 42, 172)
        for bit, base in ((2, HF), (4, OF)):
            if m5 & bit:
                k(f"s_lshl_b32 s42, s43, 13")
                k(f"s_add_u32 s42, s42, {base}")
                touch(k, 42, 64)
        if m5 & 8:
            srd(k, 44, 18, 2*MB)
            k("s_lshl_b32 s42, s43, 13")
            k("buffer_load_dword v40, v12, s[44:47], s42 offen")
    k("s_mov_b32 s55, 0")
    if OPT.get('t2', 1):
        again, skip, ok = k.label("t2a"), k.label("t2s"), k.label("t2o")
        k(f"""
        s_mov_b32 s40, {CNT + CW*256}
        s_mov_b32 exec_lo, 0xff
        s_mov_b32 exec_hi, 0
        v_lshlrev_b32 v9, 8, v2
        s_mov_b32 s41, 0
        """)
        k.place(again)
        k(f"s_sleep {OPT.get('slpw', 32)}")
        k("buffer_load_dword v10, v9, s[20:23], s40 offen sc1")
        k("ds_read_b32 v11, v4 offset:32")
        k("s_waitcnt vmcnt(0) lgkmcnt(0)")
        k("v_readfirstlane_b32 s41, v11")
        k("v_cmp_gt_u32 vcc, 32, v10")
        k(f"s_cmp_ge_u32 s41, {OPT.get('t2lim', 6)}")
        k(f"s_cbranch_scc1 {skip}")
        k("s_cmp_lg_u64 vcc, 0")
        k(f"s_cbranch_scc1 {again}")
        k("s_mov_b32 s55, 1")
        k("s_mov_b64 exec, -1")
        for base, tot in [(WOF, 4096), (WGF, 43*256), (WGF + 43*32768, 43*256), (WDF, 43*256)][OPT.get('t2a', 0):OPT.get('t2b', 3)]:
            per = tot // 32
            k(f"s_mul_i32 s42, s{SIDX}, {per*128}")
            k(f"s_add_u32 s42, s42, {base}")
            touch(k, 42, per)
        k.place(skip)
        k("s_mov_b64 exec, -1")

def res_cfg(mode):
    if mode == 'wo':
        return dict(NKS=32, JL=16, WIN=16, BSRC=OF, ASRC=WOF, RES=XF)
    return dict(NKS=86, JL=39, WIN=OPT.get('win5', 12), BSRC=ACT, ASRC=WDF, RES=HF)

def res_map(k):
    k(f"""
    s_lshl_b32 s27, s{SXCD}, 2
    s_and_b32 s28, s{SIDX}, 3
    s_add_u32 s27, s27, s28
    s_lshr_b32 s28, s{SIDX}, 2
    """)

def res_consumer(k, mode, sb):
    c_ = res_cfg(mode); NKS, JL, WIN = c_['NKS'], c_['JL'], c_['WIN']
    NH = NKS // 2
    wo = mode == 'wo'
    SRB, SCB = 27, 28
    ld = OPT['ld']
    R, ACC, AB, AT, AM, WM = 8, 16, 48, 80, 144, 160
    BW = 80 if wo else 112
    res_map(k)
    k(f"""
    s_and_b32 s29, s{SW}, 1
    s_lshl_b32 s30, s{SRB}, 1
    s_add_u32 s30, s30, s29
    s_lshr_b32 s31, s{SW}, 1
    s_lshl_b32 s32, s{SCB}, 1
    s_add_u32 s32, s32, s31
    s_mul_i32 s33, s31, 3072
    v_add_u32 v6, s33, v3
    s_lshl_b32 s33, s31, 10
    s_add_u32 s33, s33, 1024
    v_add_u32 v7, s33, v3
    s_mul_i32 s34, s31, {NH}
    s_mul_i32 s35, s30, {NKS}
    s_add_u32 s35, s35, s34
    s_lshl_b32 s35, s35, 10
    s_add_u32 s35, s35, {c_['BSRC']}
    """)
    if wo:
        k(f"""
        s_lshl_b32 s40, s30, 5
        s_lshl_b32 s41, s32, 1
        s_add_u32 s40, s40, s41
        s_lshl_b32 s40, s40, 10
        s_add_u32 s41, s40, {XF}
        buffer_load_dwordx4 v[{R}:{R+3}], v3, s[20:23], s41 offen {ld}
        buffer_load_dwordx4 v[{R+4}:{R+7}], v3, s[20:23], s41 offen offset:1024 {ld}
        s_add_u32 s41, s40, {HF}
        s_lshl_b32 s47, s32, 13
        s_lshl_b32 s48, s30, 7
        s_add_u32 s47, s47, s48
        s_add_u32 s47, s47, {ST}
        s_add_u32 s48, s48, {MX}
        v_and_b32 v0, 1, v2
        v_lshlrev_b32 v0, 5, v0
        v_lshrrev_b32 v1, 5, v2
        v_lshl_add_u32 v0, v1, 4, v0
        s_lshl_b32 s33, s31, 10
        s_add_u32 s33, s33, {WBL}
        v_add_u32 v0, s33, v0
        """)
    else:
        for q in range(2):
            k(f"s_xor_b32 s36, s32, {q}")
            k(f"s_mul_i32 s36, s36, {NKS}")
            k(f"s_add_u32 s36, s36, s34")
            k(f"s_lshl_b32 s36, s36, 10")
            k(f"s_add_u32 s36, s36, {c_['ASRC'] + JL*1024}")
            for j in range(NH - JL):
                r = AT + 8*j + 4*q
                k(f"buffer_load_dwordx4 v[{r}:{r+3}], v3, s[20:23], s36 offen" + (f" offset:{j*1024}" if j else "") + f" {ld}")
        srd(k, 52, 18, 2*MB)
        k(f"""
        v_and_b32 v8, 31, v2
        v_lshlrev_b32 v8, 10, v8
        v_lshrrev_b32 v9, 5, v2
        v_lshl_add_u32 v8, v9, 4, v8
        s_lshl_b32 s47, s30, 15
        s_lshl_b32 s48, s32, 6
        s_add_u32 s47, s47, s48
        """)
        if OPT.get('fl', 1):
            k(f"""
            s_lshl_b32 s36, s31, 2
            v_add_u32 v10, s36, v9
            v_and_b32 v12, 7, v2
            v_xor_b32 v10, v10, v12
            v_xor_b32 v11, 2, v10
            v_and_b32 v13, 31, v2
            s_lshl_b32 s36, s29, 12
            s_add_u32 s36, s36, 32768
            v_lshl_add_u32 v13, v13, 7, s36
            v_lshl_add_u32 v10, v10, 4, v13
            v_lshl_add_u32 v11, v11, 4, v13
            v_lshrrev_b32 v13, 3, v2
            v_xor_b32 v14, v12, v13
            v_lshlrev_b32 v14, 4, v14
            v_lshl_add_u32 v13, v13, 10, v14
            s_lshl_b32 s36, s{SW}, 11
            s_add_u32 s36, s36, 32768
            v_add_u32 v12, s36, v3
            s_lshl_b32 s47, s{SRB}, 16
            s_lshl_b32 s48, s{SW}, 14
            s_add_u32 s47, s47, s48
            s_lshl_b32 s48, s{SCB}, 7
            s_add_u32 s47, s47, s48
            """)
    RED = 6*20480 if wo else 0
    if wo:
        for v, x in ((4, 2), (5, 0)):
            k(f"s_xor_b32 s36, s{SW}, {x}")
            k(f"s_lshl_b32 s37, s36, 12")
            k(f"s_cmp_eq_u32 s36, 3")
            k(f"s_cselect_b32 s37, 20480, s37")
            k(f"s_add_u32 s37, s37, {RED}")
            k(f"v_add_u32 v{v}, s37, v3")
            k(f"s_lshl_b32 s36, s36, 8")
            k(f"s_add_u32 s{38 + (x >> 1)}, s36, {RED + 20480 + 4096}")
    else:
        k(f"s_xor_b32 s36, s{SW}, 2")
        k(f"s_lshl_b32 s36, s36, 12")
        k(f"v_add_u32 v4, s36, v3")
        k(f"s_lshl_b32 s36, s{SW}, 12")
        k(f"v_add_u32 v5, s36, v3")
    k("s_mov_b32 s45, 0xffff0000")
    RS_ = R if wo else KEEP
    if wo: k("s_waitcnt vmcnt(0)")
    for d in range(8):
        k(f"v_lshlrev_b32 v{ACC+2*d}, 16, v{RS_+d}")
        k(f"v_and_b32 v{ACC+2*d+1}, s45, v{RS_+d}")
    if wo: k("s_setprio 3")
    k("s_barrier")
    stamp(k, sb)
    if wo:
        k("v_and_b32 v1, 31, v2")
        k("v_lshlrev_b32 v1, 2, v1")
        k(f"buffer_load_dword v1, v1, s[20:23], s48 offen {ld}")
    def bload(j):
        if j % 4 == 0: k(f"s_add_u32 s36, s35, {j*1024}")
        r = BW + 4*(j % WIN)
        k(f"buffer_load_dwordx4 v[{r}:{r+3}], v3, s[20:23], s36 offen" + (f" offset:{(j % 4)*1024}" if j % 4 else "") + f" {ld}")
    ds = []; seg = [0]
    def ard(j, q):
        if j < JL:
            ad = wo_addr(j) if wo else j*4096
            if q == 0 and ad - seg[0] > 61440:
                k(f"v_add_u32 v6, {ad - seg[0]}, v6")
                k(f"v_add_u32 v7, {ad - seg[0]}, v7")
                seg[0] = ad
            r = AB + 8*(j & 3) + 4*q
            k(f"ds_read_b128 v[{r}:{r+3}], v{6+q} offset:{ad - seg[0]}"); ds.append(j)
    def mrd(j):
        if wo and j < NH:
            k(f"ds_read_b128 v[{WM+4*(j&1)}:{WM+4*(j&1)+3}], v0 offset:{j*64}"); ds.append(j)
    nb = min(WIN, NH)
    for j in range(nb): bload(j)
    if wo: k("s_setprio 0")
    for j in range(3):
        ard(j, 0); ard(j, 1)
        if j < 2: mrd(j)
    for j in range(NH):
        lg = (len(ds) - 1 - max(i for i, x in enumerate(ds) if x == j)) if j in ds else None
        k(f"s_waitcnt vmcnt({nb - 1 - j})" + (f" lgkmcnt({lg})" if lg is not None else ""))
        A = AB + 8*(j & 3) if j < JL else AT + 8*(j - JL)
        B = BW + 4*(j % WIN)
        for q in range(2):
            C = "0" if (j == 0 and q == 1) else f"v[{ACC+16*q}:{ACC+16*q+15}]"
            k(f"{MFMA} v[{ACC+16*q}:{ACC+16*q+15}], v[{A+4*q}:{A+4*q+3}], v[{B}:{B+3}], {C}")
            ard(j + 3, q)
        if wo:
            C = "0" if j == 0 else f"v[{AM}:{AM+15}]"
            k(f"{MFMA} v[{AM}:{AM+15}], v[{WM+4*(j&1)}:{WM+4*(j&1)+3}], v[{B}:{B+3}], {C}")
            mrd(j + 2)
        if nb < NH:
            bload(nb); nb += 1
    stamp(k, sb + 1)
    U = 48
    if wo:
        k(f"v_lshl_add_u32 v{R}, v2, 2, s39")
        k(f"v_lshl_add_u32 v{R+1}, v2, 2, s38")
        k.nop(9)
    else:
        k.nop(11)
        k("s_barrier")
    for g in range(4):
        k(f"ds_write_b128 v4, v[{ACC+16+4*g}:{ACC+19+4*g}] offset:{g*1024}")
    if wo:
        k(f"v_add_f32 v{AM}, v{AM}, v{AM+1}")
        k(f"ds_write_b32 v{R}, v{AM}")
        k(f"v_add_f32 v0, v{AM}, v1")
    k("s_waitcnt lgkmcnt(0)")
    k("s_barrier")
    if wo: k(f"ds_read_b32 v1, v{R+1}")
    for g in range(4):
        k(f"ds_read_b128 v[{U+4*g}:{U+4*g+3}], v5 offset:{g*1024}")
    P = 64
    for g in range(4):
        k(f"s_waitcnt lgkmcnt({3-g})")
        if wo and g == 0: k("v_add_f32 v0, v0, v1")
        for r in (4*g, 4*g+2):
            k(f"v_pk_add_f32 v[{ACC+r}:{ACC+r+1}], v[{ACC+r}:{ACC+r+1}], v[{U+r}:{U+r+1}]")
        if wo:
            for r in (4*g, 4*g+2):
                k(f"v_pk_add_f32 v[{U+r}:{U+r+1}], v[{ACC+r}:{ACC+r+1}], v[0:1] op_sel_hi:[1,0] neg_lo:[0,1] neg_hi:[0,1]")
            for d in (2*g, 2*g+1):
                k(f"v_cvt_pk_bf16_f32 v{P+d}, v{U+2*d}, v{U+2*d+1}")
            if g & 1:
                pub_store(k, [f"buffer_store_dwordx4 v[{P+2*g-2}:{P+2*g+1}], v3, s[20:23], s41 offen" + (" offset:1024" if g == 3 else "")], 1)
        else:
            for d in (2*g, 2*g+1):
                k(f"v_cvt_pk_bf16_f32 v{P+d}, v{ACC+2*d}, v{ACC+2*d+1}")
    if wo:
        SQ = 72
        k(f"v_dot2_f32_bf16 v{SQ}, v{P}, v{P}, 0")
        k(f"v_dot2_f32_bf16 v{SQ+1}, v{P+1}, v{P+1}, 0")
        for d in range(2, 8):
            k(f"v_dot2_f32_bf16 v{SQ+(d&1)}, v{P+d}, v{P+d}, v{SQ+(d&1)}")
        k("v_lshlrev_b32 v0, 2, v2")
        k.nop(2)
        k(f"v_add_f32 v{SQ}, v{SQ}, v{SQ+1}")
        half_sum(k, SQ, 74, 75)
        k("s_mov_b32 exec_hi, 0")
        pub_store(k, [f"buffer_store_dword v{SQ}, v0, s[20:23], s47 offen"], 1)
        k("s_mov_b64 exec, -1")
        for d in range(8):
            k(f"v_cvt_pk_bf16_f32 v{KEEP+d}, v{ACC+2*d}, v{ACC+2*d+1}")
        k("s_waitcnt vmcnt(0)")
        k("s_barrier")
    else:
        k.nop(2)
        k(f"""
        v_permlane32_swap_b32 v{P}, v{P+2}
        v_permlane32_swap_b32 v{P+1}, v{P+3}
        v_permlane32_swap_b32 v{P+4}, v{P+6}
        v_permlane32_swap_b32 v{P+5}, v{P+7}
        """)
        sto = OPT.get('sto', '')
        if OPT.get('fl', 1):
            k(f"ds_write_b128 v10, v[{P}:{P+3}]")
            k(f"ds_write_b128 v11, v[{P+4}:{P+7}]")
            k("s_waitcnt lgkmcnt(0)")
            k("s_barrier")
            k(f"ds_read_b128 v[{P}:{P+3}], v12")
            k(f"ds_read_b128 v[{P+4}:{P+7}], v12 offset:1024")
            k("s_waitcnt lgkmcnt(1)")
            k(f"buffer_store_dwordx4 v[{P}:{P+3}], v13, s[52:55], s47 offen {sto}")
            k("s_add_u32 s47, s47, 8192")
            k("s_waitcnt lgkmcnt(0)")
            k(f"buffer_store_dwordx4 v[{P+4}:{P+7}], v13, s[52:55], s47 offen {sto}")
        else:
            k.nop(1)
            k(f"buffer_store_dwordx4 v[{P}:{P+3}], v8, s[52:55], s47 offen {sto}")
            k(f"buffer_store_dwordx4 v[{P+4}:{P+7}], v8, s[52:55], s47 offen offset:32 {sto}")

def res_wsetup(k, mode):
    c_ = res_cfg(mode); NKS = c_['NKS']
    k(f"""
    s_sub_u32 s45, s{SW}, 4
    s_lshr_b32 s44, s{SIDX}, 2
    s_lshl_b32 s44, s44, 1
    s_and_b32 s46, s45, 1
    s_add_u32 s44, s44, s46
    s_mul_i32 s44, s44, {NKS}
    s_lshr_b32 s46, s45, 1
    s_mul_i32 s46, s46, {NKS//2}
    s_add_u32 s44, s44, s46
    s_lshl_b32 s44, s44, 10
    s_add_u32 s44, s44, {c_['ASRC']}
    s_lshl_b32 s45, s45, 10
    """)

def wo_addr(j):
    return (j >> 1)*20480 + 12288 + (j & 1)*4096

def res_wload(k, j0, j1, wo=False):
    for j in range(j0, j1):
        k(f"s_add_u32 s46, s44, {j*1024}")
        dma(k, 3, 20, 46, f"s45, {wo_addr(j) if wo else j*4096}", 0, OPT['ld'])

SLOT4, RING4, NCH4 = 20480, 8, 16
def p4_map(k):
    k(f"""
    s_lshl_b32 s27, s{SXCD}, 1
    s_cmp_ge_u32 s{SIDX}, 15
    s_cselect_b32 s28, 1, 0
    s_add_u32 s27, s27, s28
    s_mul_i32 s28, s28, 15
    s_sub_u32 s28, s{SIDX}, s28
    s_min_u32 s28, s28, 15
    """)

def p4_consumer(k):
    ld = OPT['ld']
    skip, fin = k.label("p4skip"), k.label("p4fin")
    XB = [8, 16]; WB = [24, 36]; ACC = 64; R2 = [0, 4]; STR = 48
    p4_map(k)
    k("s_cmp_eq_u32 s28, 15")
    k(f"s_cbranch_scc1 {skip}")
    k(f"""
    s_and_b32 s29, s{SW}, 1
    s_lshr_b32 s31, s{SW}, 1
    s_lshl_b32 s30, s27, 2
    s_lshl_b32 s33, s29, 1
    s_add_u32 s30, s30, s33
    s_lshl_b32 s33, s29, 12
    s_add_u32 s33, s33, 12288
    v_add_u32 v7, s33, v3
    s_mul_i32 s33, s31, 6144
    v_add_u32 v6, s33, v3
    s_mul_i32 s40, s30, 86
    s_mul_i32 s41, s28, 6
    s_mul_i32 s33, s31, 3
    s_add_u32 s41, s41, s33
    s_add_u32 s40, s40, s41
    s_lshl_b32 s40, s40, 10
    s_add_u32 s40, s40, {ACT}
    s_mov_b32 s47, 0
    s_lshl_b32 s32, s30, 7
    s_add_u32 s32, s32, {ST}
    v_and_b32 v4, 31, v2
    v_lshlrev_b32 v4, 2, v4
    v_lshrrev_b32 v8, 5, v2
    v_lshl_add_u32 v4, v8, 13, v4
    s_mov_b32 s48, 0
    """)
    for r in range(96): k(f"v_mov_b32 v{ACC+r}, 0")
    k("s_barrier")
    stamp(k, 9)
    for i in range(8):
        k(f"s_add_u32 s35, s32, {i*16384}")
        k(f"buffer_load_dword v{STR+i}, v4, s[20:23], s35 offen {ld}")
        k(f"buffer_load_dword v{STR+8+i}, v4, s[20:23], s35 offen offset:128 {ld}")
    def wrd(u, b, m):
        return f"ds_read_b128 v[{b+4*m}:{b+4*m+3}], v6 offset:{m*2048 + (u & 1)*1024}"
    def xrd(u, b, t):
        return f"ds_read_b128 v[{b+4*t}:{b+4*t+3}], v7 offset:{t*2048 + (u & 1)*1024}"
    def reads(u):
        return [wrd(u, WB[u & 1], 0), xrd(u, XB[u & 1], 0), xrd(u, XB[u & 1], 1), wrd(u, WB[u & 1], 1), wrd(u, WB[u & 1], 2)]
    k("s_barrier")
    stamp(k, 10)
    for l in reads(0): k(l)
    ml = k.label("p4ml")
    k(".p2align 3")
    k.place(ml)
    for u in range(2):
        if u == 1:
            k(f"s_add_u32 s48, s48, 1")
            k(f"s_and_b32 s48, s48, {RING4-1}")
            k(f"s_cselect_b32 s49, s50, s51")
            k("s_add_u32 s47, s47, 1")
            k("s_barrier")
            k("v_add_u32 v7, s49, v7")
            k("v_add_u32 v6, s49, v6")
            k(f"s_cmp_lt_u32 s47, {NCH4}")
        b, x = WB[u], XB[u]
        nx = reads(u + 1)
        for i in range(6):
            m, t = i >> 1, i & 1
            if i == 0: k("s_waitcnt lgkmcnt(2)")
            if i == 2: k("s_waitcnt lgkmcnt(2)")
            k(f"{MFMA} v[{ACC+16*i}:{ACC+16*i+15}], v[{b+4*m}:{b+4*m+3}], v[{x+4*t}:{x+4*t+3}], v[{ACC+16*i}:{ACC+16*i+15}]")
            if i < 5: k(nx[i])
    k(f"s_cbranch_scc1 {ml}")
    stamp(k, 11)
    k("s_waitcnt vmcnt(0)")
    for t in range(2):
        S = STR + 8*t
        for i in (0, 2, 4, 6): k(f"v_add_f32 v{S+i}, v{S+i}, v{S+i+1}")
        k(f"v_add_f32 v{S}, v{S}, v{S+2}")
        k(f"v_add_f32 v{S+4}, v{S+4}, v{S+6}")
        k(f"v_add_f32 v{S}, v{S}, v{S+4}")
        k(f"v_mov_b32 v{S+1}, v{S}")
    k.nop(1)
    for t in range(2):
        k(f"v_permlane32_swap_b32 v{STR+8*t}, v{STR+8*t+1}")
    for t in range(2):
        S = STR + 8*t
        k(f"v_add_f32 v{S}, v{S}, v{S+1}")
        k(f"v_mov_b32 v{S+1}, {hex(f32(1e-5))}")
        k(f"v_fmac_f32 v{S+1}, {hex(f32(1/512))}, v{S}")
        k(f"v_rcp_f32 v{R2[t]}, v{S+1}")
    k("s_waitcnt lgkmcnt(0)")
    P = 8
    for i in range(6):
        m, t = i >> 1, i & 1
        G = ACC + 16*i
        if t == 0:
            k(f"s_add_u32 s33, s41, {m}")
            k("s_cmp_ge_u32 s33, 86")
            k(f"s_cbranch_scc1 {fin}")
        for r in range(8): k(f"v_max_f32 v{G+r}, 0, v{G+r}")
        for r in range(8, 16, 2):
            k(f"v_pk_mul_f32 v[{G+r}:{G+r+1}], v[{G+r}:{G+r+1}], v[{R2[t]}:{R2[t]+1}] op_sel_hi:[1,0]")
        for r in range(0, 8, 2):
            k(f"v_pk_mul_f32 v[{G+r}:{G+r+1}], v[{G+r}:{G+r+1}], v[{G+8+r}:{G+9+r}]")
        for d in range(4):
            k(f"v_cvt_pk_bf16_f32 v{P+4*i+d}, v{G+2*d}, v{G+2*d+1}")
        k(f"s_add_u32 s35, s40, {t*86*1024 + m*1024}")
        pub_store(k, [f"buffer_store_dwordx4 v[{P+4*i}:{P+4*i+3}], v3, s[20:23], s35 offen"], 2)
    k.place(fin)
    k("s_waitcnt vmcnt(0)")
    k.place(skip)
    k("s_barrier")

def p4_loader(k):
    ld = OPT['ld']
    D = OPT['depth4']
    skip, join = k.label("p4lskip"), k.label("p4ljoin")
    k("s_barrier")
    res_wsetup(k, 'down')
    p4_map(k)
    k("s_cmp_eq_u32 s28, 15")
    k(f"s_cbranch_scc1 {skip}")
    k(f"""
    s_sub_u32 s29, s{SW}, 4
    s_lshl_b32 s30, s27, 2
    s_add_u32 s30, s30, s29
    s_lshl_b32 s31, s30, 15
    s_add_u32 s31, s31, {HF}
    s_mul_i32 s33, s28, {6*32768}
    s_and_b32 s34, s29, 1
    s_lshl_b32 s34, s34, 10
    s_add_u32 s33, s33, s34
    s_lshr_b32 s35, s29, 1
    s_mul_i32 s37, s35, {3*32768}
    s_add_u32 s33, s33, s37
    s_mul_i32 s35, s35, 6144
    s_add_u32 s34, s34, s35
    s_lshl_b32 s36, s29, 11
    """)
    order = []
    def hpart(c):
        if OPT.get('z4b') and c > 0:
            order.append(('h', c)); order.pop(); return
        k(f"s_add_u32 s35, s31, {c*2048}")
        dma(k, 3, 20, 35, f"s36, {(c % RING4)*SLOT4 + 12288}", 0, ld)
        k(f"buffer_load_dwordx4 v3, s[20:23], s35 offen offset:1024 {ld} lds")
        order.extend([('h', c)]*2)
    def wpart(c):
        if OPT.get('z4b') and c > 0: return
        for t in range(3):
            k(f"s_add_u32 s35, s33, {WGF + t*32768 + c*2048}")
            dma(k, 3, 20, 35, f"s34, {(c % RING4)*SLOT4 + t*2048}", 0, ld)
        order.extend([('w', c)]*3)
    nw = OPT.get('p4pre', 4)
    for c in range(nw): wpart(c)
    k("s_barrier")
    k("s_barrier")
    while nw < OPT.get('p4pre2', 8): wpart(nw); nw += 1
    k("s_barrier")
    nh = 4
    for c in range(nh): hpart(c)
    for c in range(NCH4 + 1):
        if c < NCH4:
            last = max([i for i, o in enumerate(order) if o[1] == c] or [len(order) - 1])
            k(f"s_waitcnt vmcnt({len(order) - 1 - last})")
        k("s_barrier")
        m = 0
        while nh < NCH4 and nh <= c + D and m < 2:
            assert nh - RING4 <= c - 2
            hpart(nh); nh += 1; m += 1
        m = 0
        while nw < NCH4 and nw - RING4 <= c - 2 and m < 2:
            wpart(nw); nw += 1; m += 1
        if c >= 10:
            assert nh == NCH4 and nw == NCH4
            if not OPT.get('z4a'):
                res_wload(k, 5*(c-10), 5*(c-10) + 5); order.extend([('d', -1)]*5)
    k("s_barrier")
    k(f"s_branch {join}")
    k.place(skip)
    k("s_barrier")
    k("s_barrier")
    k("s_barrier")
    res_wload(k, 0, 35)
    k.place(join)
    res_wload(k, 35, 39)
    k("s_waitcnt vmcnt(0)")
    k("s_barrier")

def clean(k, n):
    m = OPT.get('wb', 0)
    if not (m >> n) & 1: return
    l = k.label("ncl")
    k(f"s_and_b32 s47, s{SIDX}, {OPT.get('wbm', 31)}")
    k(f"s_cmp_lg_u32 s47, 0")
    k(f"s_cbranch_scc1 {l}")
    k("buffer_wbl2 sc1")
    k.place(l)

def poller(k):
    sl = OPT.get('slpl', 2)
    k(f"s_lshl_b32 s43, s{SXCD}, 5")
    k(f"s_add_u32 s43, s43, {F2}")
    k(f"s_lshl_b32 s42, s{SQB}, 5")
    k(f"s_add_u32 s42, s42, s{SHEAD}")
    k(f"s_add_u32 s42, s42, {F2}")
    flag_prep(k, 42)
    k("s_barrier")
    flag_fire(k, not OPT.get('amap', 1))
    stamp(k, 6); rstamp(k, 4)
    seen = k.label("cwseen")
    k("s_cmp_eq_u32 s55, 1")
    k(f"s_cbranch_scc1 {seen}")
    k(f"s_mov_b32 s42, {CW}")
    poll(k, 42, 32, 8, 0)
    k.place(seen)
    k("s_barrier")
    flag_poll(k, 43, 32, OPT.get('slp2', 2))
    stamp(k, 7)
    k("s_barrier")
    res_map(k)
    k("s_lshr_b32 s43, s27, 1")
    k("s_and_b32 s44, s27, 1")
    k("s_lshl_b32 s45, s28, 1")
    k("s_add_u32 s44, s44, s45")
    k("s_lshl_b32 s42, s43, 4")
    k("s_add_u32 s42, s42, s44")
    k(f"s_add_u32 s42, s42, {F3}")
    flag_prep(k, 42)
    p4_map(k)
    k("s_lshl_b32 s46, s27, 4")
    k(f"s_add_u32 s42, s46, {F3}")
    k("s_barrier")
    k("s_barrier")
    flag_fire(k, True)
    stamp(k, 8)
    idle = k.label("pidle")
    k("s_cmp_eq_u32 s28, 15")
    k(f"s_cbranch_scc1 {idle}")
    flag_poll(k, 42, 16, sl)
    stamp(k, 9); rstamp(k, 5)
    k("s_barrier")
    k("s_add_u32 s42, s46, s28")
    k(f"s_add_u32 s42, s42, {F4}")
    flag_prep(k, 42)
    for i in range(NCH4 + 1): k("s_barrier")
    k("s_barrier")
    flag_fire(k, True)
    stamp(k, 10); rstamp(k, 13)
    j = k.label("pjoin")
    k(f"s_branch {j}")
    k.place(idle)
    k("s_barrier")
    k.place(j)
    k("s_lshl_b32 s42, s43, 4")
    k(f"s_add_u32 s42, s42, {F4}")
    flag_poll(k, 42, 15, sl)
    stamp(k, 11)
    k("s_barrier")
    diag_end(k)

def diag_end(k):
    if not DIAG: return
    k("s_waitcnt vmcnt(0)")
    stamp(k, 14)
    k("s_memrealtime s[94:95]")
    k(f"s_lshl_b32 s40, s2, 4")
    k(f"s_add_u32 s40, s40, s{SW}")
    k(f"s_lshl_b32 s40, s40, 7")
    k(f"s_add_u32 s40, s40, {DIAGB}")
    k("s_waitcnt lgkmcnt(0)")
    for i in range(15):
        k(f"s_sub_u32 s{64+2*i}, s{64+2*i}, s96")
        k(f"v_mov_b32 v{8+i}, s{64+2*i}")
    k("v_mov_b32 v23, s94")
    k("v_mov_b32 v24, s98")
    k("v_mov_b32 v4, 0")
    k("s_mov_b64 exec, 1")
    for i in range(4):
        k(f"buffer_store_dwordx4 v[{8+4*i}:{11+4*i}], v4, s[20:23], s40 offen offset:{16*i}")
    k(f"buffer_store_dword v24, v4, s[20:23], s40 offen offset:64")
    k(f"v_mov_b32 v25, s{SXCD}")
    k(f"buffer_store_dword v25, v4, s[20:23], s40 offen offset:68")
    if OPT.get('dbgout') is not None:
        l = k.label("dbo")
        k(f"s_lshl_b32 s41, s{SW}, 8")
        k(f"s_or_b32 s41, s41, s2")
        k(f"s_cmp_lg_u32 s41, {OPT['dbgout']}")
        k(f"s_cbranch_scc1 {l}")
        k("v_sub_u32 v8, v23, v24")
        for i in range(4):
            k(f"global_store_dwordx4 v4, v[{8+4*i}:{11+4*i}], s[60:61] offset:{4+16*i}")
        k.place(l)

def build(path):
    k = Kern(NAME)
    done, roleL, roleH, p2 = k.label("done"), k.label("L"), k.label("H"), k.label("p2")
    tail = []
    k(f"""
    s_load_dwordx4 s[4:7], s[0:1], 0
    s_load_dwordx4 s[60:63], s[0:1], 64
    s_load_dwordx8 s[8:15], s[0:1], 16
    s_load_dwordx4 s[16:19], s[0:1], 48
    s_cmp_ge_u32 s2, 256
    s_cbranch_scc1 {done}
    """)
    if DIAG:
        k("s_memtime s[96:97]")
        k("s_memrealtime s[98:99]")
    k(f"""
    v_lshrrev_b32 v1, 6, v0
    v_and_b32 v2, 63, v0
    s_and_b32 s{SXCD}, s2, 7
    s_lshr_b32 s{SIDX}, s2, 3
    v_readfirstlane_b32 s{SW}, v1
    v_lshlrev_b32 v3, 4, v2
    s_mov_b32 s50, {SLOT4}
    s_mov_b32 s51, {-(RING4-1)*SLOT4}
    """)
    p1_map(k)
    roleC = k.label("C")
    k(f"s_cmp_ge_u32 s{SW}, 8")
    k(f"s_cbranch_scc1 {roleH}")
    k(f"s_cmp_lt_u32 s{SW}, 4")
    k(f"s_cbranch_scc1 {roleC}")
    p1_loader(k)
    k(f"s_branch {p2}")
    k.place(roleH)
    p1_helper(k)
    H2 = k.label("H2")
    k(f"s_branch {H2}")
    k.place(roleC)
    p1_consumer(k)
    k.place(p2)
    p2_compute(k, tail)
    L3 = k.label("L3")
    k(f"s_cmp_ge_u32 s{SW}, 4")
    k(f"s_cbranch_scc1 {L3}")
    res_consumer(k, 'wo', 7)
    p4_consumer(k)
    res_consumer(k, 'down', 12)
    diag_end(k)
    k.place(done)
    k("s_endpgm")
    k.place(L3)
    res_wsetup(k, 'wo')
    res_wload(k, 0, 16, True)
    k(f"s_and_b32 s45, s45, 1024")
    k(f"s_add_u32 s46, s45, {WBT}")
    dma(k, 3, 20, 46, f"s45, {WBL}", 0, OPT['ld'])
    k("s_waitcnt vmcnt(0)")
    p4_loader(k)
    diag_end(k)
    k("s_endpgm")
    k.place(H2)
    p2_helper(k, done)
    poller(k)
    k("s_endpgm")
    k.place(RLAB[0])
    role_read(k)
    p2_relayout(k)
    for f in tail: f(k)
    k(f".fill (32768 - (. - {NAME}))/4, 4, 0xbf810000")
    hdr = """; Kernarg: 0 A_x, 8 A_wqkv, 16 A_wo, 24 B_x (unused), 32 W_gate, 40 W_up, 48 W_down, 56 out, 64 debug, 72 ws
; pre-LN transformer block in one persistent launch (256 workgroups, one per CU); generated by gen/gen4.py
; @launch grid=(256,1,1) block=(768,1,1) lds=163840
.amdgcn_target "amdgcn-amd-amdhsa--gfx950"
"""
    open(path, "w").write(hdr + k.text(168, 102 if DIAG else 64))

if __name__ == "__main__":
    for a in sys.argv[2:]:
        if "=" in a:
            kk, vv = a.split("=")
            OPT[kk] = int(vv) if vv.lstrip("-").isdigit() else vv.replace("+", " ")
    DIAG = "--diag" in sys.argv
    build(sys.argv[1])
```

```python
import sys, math
from dsl import Kern
from gen import (MB, QF, KF, VF, OF, XF, HF, ACT, WOF, WGF, WUF, WDF, ST, WS_SIZE, f32, ONES, MFMA, srd, half_sum,
                 finish_stats)
CNT = 25*MB
MX = 24*MB + 512*1024
WBT = MX + 65536
DIAGB = 28*MB
C1, C2, C3, C4, CW = 0, 8, 16, 32, 48
CSTRIP = 131072
PROG = CSTRIP
ROLE = 163832
WBL = 160768
KEEP = 160
NAME = "sequential_preLN__softmax_full_mha__glu_gated_reglu__prompt_kernel"
OPT = dict(slp=8, kvd=2, d1=4, prio=1, ld="sc1", st="sc1", nb2=4, depth4=5)
SXCD, SIDX, SW = 24, 25, 26
SHEAD, SQB = 62, 63
MF16 = "v_mfma_f32_16x16x32_bf16"
DIAG = False

def rstamp(k, i):
    if DIAG:
        k(f"s_memrealtime s[{64+2*i}:{65+2*i}]")
        k("s_waitcnt lgkmcnt(0)")
        k(f"s_add_u32 s{64+2*i}, s{64+2*i}, s96")

def stamp(k, i):
    if DIAG: k(f"s_memtime s[{64+2*i}:{65+2*i}]")

def norm4(x, t, rs, nb, smask):
    ops = []
    for d in range(4):
        a, b = t[2*(d & 1)], t[2*(d & 1) + 1]
        ops.append([f"v_lshlrev_b32 v{a}, 16, v{x+d}", f"v_and_b32 v{b}, s{smask}, v{x+d}",
                    f"v_fma_f32 v{a}, v{a}, v{rs}, v{nb}", f"v_fma_f32 v{b}, v{b}, v{rs}, v{nb}",
                    f"v_cvt_pk_bf16_f32 v{x+d}, v{a}, v{b}"])
    o = []
    for p in (0, 2):
        for a, b in zip(ops[p], ops[p+1]): o += [a, b]
    return o

def lane_regs(k):
    k("v_mbcnt_lo_u32_b32 v2, -1, 0")
    k("v_mbcnt_hi_u32_b32 v2, -1, v2")
    k("v_lshlrev_b32 v3, 4, v2")

def dma(k, vo, srd_, so, m0expr, off=0, flag=""):
    k(f"s_add_u32 m0, {m0expr}")
    k.nop(1)
    k(f"buffer_load_dwordx4 v{vo}, s[{srd_}:{srd_+3}], s{so} offen" + (f" offset:{off}" if off else "") + f" {flag} lds")

def row8_sum(k, regs):
    for ctl in ("quad_perm:[1,0,3,2]", "quad_perm:[2,3,0,1]", "row_half_mirror"):
        k.nop(2)
        for r in regs:
            k(f"v_add_f32_dpp v{r}, v{r}, v{r} {ctl} row_mask:0xf bank_mask:0xf")

def arrive(k, sidx, va=8, vb=9):
    k(f"s_lshl_b32 s40, s{sidx}, 8")
    k(f"s_add_u32 s40, s40, {CNT}")
    k("s_mov_b64 exec, 1")
    k(f"v_mov_b32 v{va}, 1")
    k(f"v_mov_b32 v{vb}, 0")
    k(f"buffer_atomic_add v{va}, v{vb}, s[20:23], s40 offen sc1")

FLG = CNT + 65536
F1, F2, FX, F3, F4 = 0, 256, 512, 768, 1024
SLOC = 59
def pub_store(k, lines, stage=3):
    if not (OPT.get('loc', 8) >> stage) & 1:
        for l in lines: k(l + " " + OPT['st'])
        return
    a, b = k.label("ps"), k.label("pe")
    k(f"s_cmp_eq_u32 s{SLOC}, 1")
    k(f"s_cbranch_scc1 {a}")
    for l in lines: k(l + " " + OPT['st'])
    k(f"s_branch {b}")
    k.place(a)
    for l in lines: k(l + (" " + OPT.get('locf', '') if stage < 3 else ""))
    k.place(b)

def flag_set(k, sline, val="1", local=False):
    k(f"s_lshl_b32 s40, s{sline}, 7")
    k(f"s_add_u32 s40, s40, {FLG}")
    k("s_mov_b64 exec, 1")
    k(f"v_mov_b32 v8, {val}")
    k("v_mov_b32 v9, 0")
    if local: pub_store(k, ["buffer_store_dword v8, v9, s[20:23], s40 offen"])
    else: k("buffer_store_dword v8, v9, s[20:23], s40 offen sc1")

def flag_prep(k, sline):
    k(f"s_lshl_b32 s39, s{sline}, 7")
    k(f"s_add_u32 s39, s39, {FLG}")
    k("s_mov_b64 exec, 1")
    k("v_mov_b32 v14, 1")
    k("v_mov_b32 v15, 0")

def flag_fire(k, local):
    if local: pub_store(k, ["buffer_store_dword v14, v15, s[20:23], s39 offen"])
    else: k("buffer_store_dword v14, v15, s[20:23], s39 offen sc1")

def flag_poll(k, sline, n=32, slp=None):
    poll(k, sline, 1, n, slp, sh=7, base=FLG)

def poll(k, sidx, target, nlines=1, slp=None, sh=8, base=None):
    lp, out = k.label("poll"), k.label("pollx")
    k(f"s_lshl_b32 s40, s{sidx}, {sh}")
    k(f"s_add_u32 s40, s40, {CNT if base is None else base}")
    k(f"s_mov_b32 exec_lo, {hex((1 << nlines) - 1)}")
    k("s_mov_b32 exec_hi, 0")
    k(f"v_lshlrev_b32 v9, {sh}, v2")
    k("s_mov_b32 s41, 0")
    slp = OPT.get('slp', 2) if slp is None else slp
    k.place(lp)
    k("buffer_load_dword v10, v9, s[20:23], s40 offen sc1")
    k("s_add_u32 s41, s41, 1")
    k("s_cmp_gt_u32 s41, 0x40000")
    k(f"s_cbranch_scc1 {out}")
    k("s_waitcnt vmcnt(0)")
    k(f"v_cmp_gt_u32 vcc, {target}, v10" if target <= 64 else f"v_cmp_gt_u32 vcc, {hex(target)}, v10")
    k(f"s_cmp_eq_u64 vcc, 0")
    k(f"s_cbranch_scc1 {out}")
    if slp: k(f"s_sleep {slp}")
    k(f"s_branch {lp}")
    k.place(out)
    k("s_waitcnt vmcnt(0)")
    k("s_mov_b64 exec, -1")

def touch(k, base_s, nlines, reg=40):
    k("v_lshlrev_b32 v12, 7, v2")
    for i in range((nlines + 63)//64):
        rem = nlines - 64*i
        if rem < 64:
            k(f"s_mov_b32 exec_lo, {hex((1 << min(rem, 32)) - 1)}")
            k(f"s_mov_b32 exec_hi, {hex((1 << max(rem - 32, 0)) - 1)}")
        k(f"s_add_u32 s41, s{base_s}, {i*8192}")
        k(f"buffer_load_dword v{reg+i}, v12, s[20:23], s41 offen sc1")
    k("s_mov_b64 exec, -1")

def cold_touch(k):
    if OPT.get('t1', 0):
        l9, l10, l11 = k.label("t9"), k.label("t10"), k.label("t11")
        if OPT.get('t1d', 0): k(f"s_sleep {OPT['t1d']}")
        k(f"s_cmp_lg_u32 s{SW}, 9")
        k(f"s_cbranch_scc1 {l9}")
        srd(k, 44, 4, 2*MB)
        k("s_lshl_b32 s31, s2, 13")
        k("v_lshlrev_b32 v12, 7, v2")
        msk = sum(1 << i for i in range(32) if (i & 7) >= OPT.get('t1x', 1))
        k(f"s_mov_b32 exec_lo, {hex(msk)}")
        k(f"s_mov_b32 exec_hi, {hex(msk)}")
        k("buffer_load_dword v40, v12, s[44:47], s31 offen")
        k("s_mov_b64 exec, -1")
        k.place(l9)
        k(f"s_cmp_lg_u32 s{SW}, 10")
        k(f"s_cbranch_scc1 {l10}")
        k(f"s_cmp_lt_u32 s2, {32*OPT.get('t1x', 1) if OPT.get('t1w', 1) else 256}")
        k(f"s_cbranch_scc1 {l10}")
        srd(k, 44, 6, 512*3072)
        k("s_mul_i32 s31, s2, 6144")
        k("v_lshlrev_b32 v12, 7, v2")
        k("s_mov_b32 exec_hi, 0xffff")
        k("buffer_load_dword v40, v12, s[44:47], s31 offen")
        k("s_mov_b64 exec, -1")
        k.place(l10)

def early_role(k):
    nt, tk, tkd = k.label("nt"), k.label("etk"), k.label("etkd")
    k(f"s_cmp_lg_u32 s{SW}, 8")
    k(f"s_cbranch_scc1 {nt}")
    k("s_waitcnt lgkmcnt(0)")
    k("s_getreg_b32 s56, hwreg(HW_REG_XCC_ID, 0, 4)")
    k("s_and_b32 s56, s56, 7")
    k("s_mov_b64 exec, 1")
    k("v_mov_b32 v46, 1")
    k.place(tk)
    k("s_lshl_b32 s57, s56, 5")
    k("s_add_u32 s57, s57, 16")
    k("v_mov_b32 v45, s57")
    k("global_atomic_add v44, v45, v46, s[60:61] sc0 sc1")
    k("s_waitcnt vmcnt(0)")
    k("v_readfirstlane_b32 s57, v44")
    k("s_add_u32 s58, s56, 1")
    k("s_cmp_lt_u32 s57, 32")
    k(f"s_cbranch_scc1 {tkd}")
    k("s_and_b32 s56, s58, 7")
    k(f"s_branch {tk}")
    k.place(tkd)
    k("s_lshl_b32 s57, s57, 3")
    k("s_or_b32 s57, s57, s56")
    k(f"v_mov_b32 v4, {ROLE}")
    k("v_mov_b32 v5, s57")
    k("ds_write_b32 v4, v5")
    k("s_mov_b64 exec, -1")
    k("s_waitcnt lgkmcnt(0)")
    k.place(nt)
    k("s_waitcnt lgkmcnt(0)")
    srd(k, 20, 62, WS_SIZE)
    cold_touch(k)
    k("s_barrier")
    role_read(k, True)

def role_read(k, force=False):
    if OPT.get('dyn', 1) != 1 and not force: return
    k(f"v_mov_b32 v4, {ROLE}")
    k("ds_read_b32 v4, v4")
    k("s_waitcnt lgkmcnt(0)")
    k(f"v_readfirstlane_b32 s{SIDX}, v4")
    k.nop(1)
    k(f"s_and_b32 s{SXCD}, s{SIDX}, 7")
    k(f"s_lshr_b32 s{SIDX}, s{SIDX}, 3")
    if OPT.get('amap', 1):
        k(f"s_lshl_b32 s{SHEAD}, s{SXCD}, 2")
        k(f"s_and_b32 s{SQB}, s{SIDX}, 3")
        k(f"s_add_u32 s{SHEAD}, s{SHEAD}, s{SQB}")
        k(f"s_lshr_b32 s{SQB}, s{SIDX}, 2")
    else:
        k(f"s_mov_b32 s{SHEAD}, s{SIDX}")
        k(f"s_mov_b32 s{SQB}, s{SXCD}")

def p1_map(k):
    k(f"""
    s_lshr_b32 s27, s{SXCD}, 1
    s_lshl_b32 s27, s27, 3
    s_and_b32 s28, s{SIDX}, 7
    s_add_u32 s27, s27, s28
    s_and_b32 s28, s{SXCD}, 1
    s_lshl_b32 s28, s28, 2
    s_lshr_b32 s29, s{SIDX}, 3
    s_add_u32 s28, s28, s29
    """)
EXC = 65536 + 3*12288
EXS = 65536 + 2*12288

def p1_consumer(k):
    if OPT.get('cprio', 1): k(f"s_setprio {OPT.get('cprio', 1)}")
    SRB, SCB = 27, 28
    VXA, VWA = 12, 16
    WB = [20, 32, 44, 56]; XB = [68, 72, 76, 80]; ACC = 84; CS = 132; SEL = 144
    k(f"""
    v_and_b32 v8, 31, v2
    v_lshrrev_b32 v4, 5, v2
    v_lshrrev_b32 v5, 1, v8
    v_and_b32 v5, 7, v5
    s_and_b32 s34, s{SW}, 1
    s_lshl_b32 s35, s34, 12
    v_lshlrev_b32 v6, 7, v8
    v_add_u32 v6, s35, v6
    """)
    for u in range(4):
        k(f"v_add_u32 v7, {2*u}, v4")
        k(f"v_xor_b32 v7, v7, v5")
        k(f"v_lshl_add_u32 v{VXA+u}, v7, 4, v6")
    k(f"""
    s_lshr_b32 s36, s{SW}, 1
    v_bfe_u32 v5, v2, 2, 2
    v_lshl_add_u32 v6, v4, 3, v5
    v_lshlrev_b32 v6, 7, v6
    v_bfe_u32 v7, v2, 4, 1
    v_lshlrev_b32 v7, 1, v7
    v_bfe_u32 v11, v2, 1, 1
    v_add_u32 v7, v7, v11
    s_lshl_b32 s37, s36, 2
    v_add_u32 v7, s37, v7
    v_lshrrev_b32 v5, 1, v5
    v_lshlrev_b32 v5, 2, v5
    v_xor_b32 v7, v7, v5
    v_lshl_add_u32 v6, v7, 4, v6
    v_and_b32 v7, 1, v2
    v_lshl_add_u32 v{VWA+1}, v7, 3, v6
    v_add_u32 v{VWA+1}, 0x10000, v{VWA+1}
    v_mov_b32 v{VWA}, v{VWA+1}
    v_and_b32 v5, 15, v2
    v_bfe_u32 v7, v2, 4, 1
    v_cmp_eq_u32 vcc, v5, v7
    v_mov_b32 v6, {hex(ONES)}
    s_mov_b32 s47, 0
    v_cndmask_b32 v{SEL}, 0, v6, vcc
    """)
    for i in range(1, 4): k(f"v_mov_b32 v{SEL+i}, v{SEL}")
    for i in range(60): k(f"v_mov_b32 v{ACC+i}, 0")
    k(f"""
    s_lshl_b32 s40, s{SCB}, 2
    s_lshl_b32 s41, s36, 1
    s_add_u32 s40, s40, s41
    s_lshl_b32 s40, s40, 16
    s_lshl_b32 s41, s{SRB}, 1
    s_add_u32 s41, s41, s34
    s_lshl_b32 s41, s41, 10
    s_add_u32 s40, s40, s41
    v_bfe_u32 v9, v2, 4, 1
    v_lshlrev_b32 v9, 16, v9
    v_lshl_add_u32 v9, v4, 8, v9
    v_lshl_add_u32 v9, v5, 4, v9
    s_add_u32 s43, s40, {QF + 65536}
    s_add_u32 s44, s40, {KF}
    s_add_u32 s45, s40, {KF + 65536}
    s_add_u32 s46, s40, {VF}
    s_mov_b32 s48, 0
    """)
    k("s_waitcnt lgkmcnt(0)")
    if OPT.get('dyn', 1) != 2: srd(k, 20, 62, WS_SIZE)
    def xrd(u, b): k(f"ds_read_b128 v[{b}:{b+3}], v{VXA+u}")
    def wrd(u, b, p):
        for r in range(2):
            k(f"ds_read_b64_tr_b16 v[{b+4*p+2*r}:{b+4*p+2*r+1}], v{VWA} offset:{(u >> 1)*12288 + p*4096 + (u & 1)*2048 + r*512}")
    stamp(k, 0)
    k("s_barrier")
    stamp(k, 1)
    for u in range(2):
        xrd(u, XB[u])
        for p in range(3): wrd(u, WB[u], p)
    odd, ep = k.label("p1odd"), k.label("p1ep")
    k("s_cmp_eq_u32 s34, 1")
    k(f"s_cbranch_scc1 {odd}")
    for par in range(2):
        if par == 1: k.place(odd)
        ml = k.label("p1ml")
        k(".p2align 3")
        k.place(ml)
        for u in range(4):
            if u == 2:
                k("s_add_u32 s48, s48, 24576")
                k(f"s_cmp_eq_u32 s48, {8*12288}")
                k("s_cselect_b32 s48, 0, s48")
                k(f"v_add_u32 v{VXA}, 8192, v{VXA}")
                k(f"v_add_u32 v{VXA+1}, 8192, v{VXA+1}")
                k("s_barrier")
                k(f"v_add_u32 v{VWA}, s48, v{VWA+1}")
            b, x = WB[u], XB[u]
            nu = (u+2) & 3
            cs = (u & 1) == par and not OPT.get('z_nocs')
            k("s_waitcnt lgkmcnt(7)")
            k(f"{MFMA} v[{ACC}:{ACC+15}], v[{b}:{b+3}], v[{x}:{x+3}], v[{ACC}:{ACC+15}]")
            xrd(nu, XB[nu])
            wrd(nu, WB[nu], 0)
            if cs: k(f"{MF16} v[{CS}:{CS+3}], v[{SEL}:{SEL+3}], v[{b}:{b+3}], v[{CS}:{CS+3}]")
            k(f"{MFMA} v[{ACC+16}:{ACC+31}], v[{b+4}:{b+7}], v[{x}:{x+3}], v[{ACC+16}:{ACC+31}]")
            wrd(nu, WB[nu], 1)
            if cs: k(f"{MF16} v[{CS+4}:{CS+7}], v[{SEL}:{SEL+3}], v[{b+4}:{b+7}], v[{CS+4}:{CS+7}]")
            k(f"{MFMA} v[{ACC+32}:{ACC+47}], v[{x}:{x+3}], v[{b+8}:{b+11}], v[{ACC+32}:{ACC+47}]")
            wrd(nu, WB[nu], 2)
            if cs: k(f"{MF16} v[{CS+8}:{CS+11}], v[{SEL}:{SEL+3}], v[{b+8}:{b+11}], v[{CS+8}:{CS+11}]")
            if u == 3:
                for q in range(2, 4): k(f"v_add_u32 v{VXA+q}, 8192, v{VXA+q}")
                k("s_add_u32 s47, s47, 1")
                k("s_cmp_lt_u32 s47, 8")
        k(f"s_cbranch_scc1 {ml}")
        if par == 0: k(f"s_branch {ep}")
    k.place(ep)
    stamp(k, 2)
    k(f"""
    s_lshl_b32 s35, s34, 1
    s_add_u32 s35, s35, s36
    s_mul_i32 s35, s35, 384
    s_add_u32 s35, s35, {EXC}
    v_lshl_add_u32 v5, v2, 2, s35
    s_mul_i32 s37, s36, 384
    s_add_u32 s37, s37, {EXC}
    v_lshl_add_u32 v6, v4, 4, s37
    v_lshl_add_u32 v7, v8, 2, s37
    s_lshl_b32 s38, s34, 7
    s_add_u32 s38, s38, {EXS}
    v_lshl_add_u32 v10, v8, 2, s38
    v_lshl_add_u32 v11, v4, 4, s38
    s_mov_b64 exec, 0xffff
    """)
    for p in range(3):
        k(f"ds_write2_b32 v5, v{CS+4*p}, v{CS+4*p+1} offset0:{32*p} offset1:{32*p+16}")
    k("s_mov_b64 exec, -1")
    k("s_waitcnt lgkmcnt(0)")
    k("s_barrier")
    A, B, RSV, NBV = 20, 36, 52, 68
    RS, NB, CV = 132, 134, 136
    k(f"ds_read_b32 v{RS}, v10")
    k(f"ds_read_b32 v{NB}, v10 offset:256")
    def csrd(p):
        for g in range(4):
            k(f"ds_read_b128 v[{A+4*g}:{A+4*g+3}], v6 offset:{p*128 + g*32}")
            k(f"ds_read_b128 v[{B+4*g}:{B+4*g+3}], v6 offset:{768 + p*128 + g*32}")
    csrd(0)
    k(f"ds_read_b32 v{CV}, v7 offset:256")
    k(f"ds_read_b32 v{CV+1}, v7 offset:{768 + 256}")
    k(f"s_mov_b32 s42, {hex(f32(0.25*math.log2(math.e)))}")
    k("s_waitcnt lgkmcnt(10)")
    k(f"v_mul_f32 v138, s42, v{RS}")
    k(f"v_mul_f32 v140, s42, v{NB}")
    st = OPT['st']
    P = 144
    def fold(acc, rs, nb):
        for r in range(0, 16, 2):
            k(f"v_pk_add_f32 v[{A+r}:{A+r+1}], v[{A+r}:{A+r+1}], v[{B+r}:{B+r+1}]")
        for r in range(0, 16, 2):
            k(f"v_pk_mul_f32 v[{A+r}:{A+r+1}], v[{A+r}:{A+r+1}], v[{nb}:{nb+1}] op_sel_hi:[1,0]")
        for r in range(0, 16, 2):
            k(f"v_pk_fma_f32 v[{acc+r}:{acc+r+1}], v[{acc+r}:{acc+r+1}], v[{rs}:{rs+1}], v[{A+r}:{A+r+1}] op_sel_hi:[1,0,1]")
    def pack(acc, p, so0, so1, va, off1=0):
        for d in range(8):
            k(f"v_cvt_pk_bf16_f32 v{p+d}, v{acc+2*d}, v{acc+2*d+1}")
            if d == 3: k(f"buffer_store_dwordx4 v[{p}:{p+3}], v{va}, s[20:23], s{so0} offen {st}")
        k(f"buffer_store_dwordx4 v[{p+4}:{p+7}], v{va}, s[20:23], s{so1} offen" + (f" offset:{off1}" if off1 else "") + f" {st}")
    k("s_waitcnt lgkmcnt(2)")
    fold(ACC, 138, 140)
    csrd(1)
    for g in range(4):
        k(f"ds_read_b128 v[{RSV+4*g}:{RSV+4*g+3}], v11 offset:{g*32}")
    pack(ACC, P, 40, 43, 3)
    k("s_waitcnt lgkmcnt(4)")
    for g in range(4):
        k(f"ds_read_b128 v[{NBV+4*g}:{NBV+4*g+3}], v11 offset:{256 + g*32}")
    fold(ACC+16, RS, NB)
    pack(ACC+16, P+8, 44, 45, 3)
    k(f"v_add_f32 v{CV}, v{CV}, v{CV+1}")
    k("s_waitcnt lgkmcnt(0)")
    for r in range(0, 16, 2):
        k(f"v_pk_mul_f32 v[{NBV+r}:{NBV+r+1}], v[{NBV+r}:{NBV+r+1}], v[{CV}:{CV+1}] op_sel_hi:[1,0]")
    for r in range(0, 16, 2):
        k(f"v_pk_fma_f32 v[{ACC+32+r}:{ACC+33+r}], v[{ACC+32+r}:{ACC+33+r}], v[{RSV+r}:{RSV+r+1}], v[{NBV+r}:{NBV+r+1}]")
    pack(ACC+32, P+16, 46, 46, 9, 512)
    stamp(k, 3)
    k("s_waitcnt vmcnt(0)")
    k("s_barrier")
    role_read(k)
    k("s_barrier")

def relayout(k):
    st = OPT['st']
    PRE = [16, 44, 80]
    k(f"""
    v_and_b32 v6, 31, v2
    v_lshrrev_b32 v7, 5, v2
    v_lshlrev_b32 v12, 10, v6
    v_lshl_add_u32 v12, v7, 3, v12
    v_mul_u32_u24 v13, {4*2752}, v7
    v_lshl_add_u32 v13, v6, 1, v13
    v_lshlrev_b32 v14, 12, v7
    v_lshl_add_u32 v14, v6, 1, v14
    s_lshl_b32 s42, s2, 3
    s_mul_i32 s43, s29, 3
    s_add_u32 s42, s42, s43
    """)
    def wload(reg, voffreg, soffreg, pitch):
        for j in range(8):
            row = 8*(j >> 2) + (j & 3)
            k(f"s_add_u32 s49, s{soffreg}, {row*pitch}")
            k(f"buffer_load_ushort v{reg+j}, v{voffreg}, s[44:47], s49 offen")
    def item_loads(i):
        P_, D0 = PRE[i], (37, 52, 32)[i]
        k(f"s_add_u32 s{D0+2}, s42, {i}")
        if i == 2:
            k("s_cmp_eq_u32 s29, 2")
            k(f"s_cselect_b32 s{D0+2}, 0xfff, s{D0+2}")
        G = D0 + 2
        srd(k, 44, 4, 2*MB)
        k(f"""
        s_lshr_b32 s43, s{G}, 5
        s_lshl_b32 s43, s43, 15
        s_and_b32 s48, s{G}, 31
        s_lshl_b32 s48, s48, 5
        s_add_u32 s43, s43, s48
        buffer_load_dwordx2 v[{P_}:{P_+1}], v12, s[44:47], s43 offen
        buffer_load_dwordx2 v[{P_+2}:{P_+3}], v12, s[44:47], s43 offen offset:16
        s_mov_b32 s50, {(2**32 + 42)//43}
        s_mul_hi_u32 s51, s{G}, s50
        s_mul_i32 s58, s51, 43
        s_sub_u32 s58, s{G}, s58
        s_mul_i32 s59, s51, {16*2752}
        s_lshl_b32 s48, s58, 6
        s_add_u32 s59, s59, s48
        s_lshl_b32 s{D0}, s58, 6
        s_add_u32 s{D0}, s{D0}, s51
        s_lshl_b32 s{D0}, s{D0}, 10
        s_cmp_lt_u32 s{G}, 1376
        s_cselect_b32 s50, {512*2752}, 0
        s_mov_b32 s44, s12
        s_and_b32 s45, s13, 0xffff
        s_mov_b32 s46, s50
        """)
        wload(P_+4, 13, 59, 2752)
        k("s_mov_b32 s44, s14")
        k("s_and_b32 s45, s15, 0xffff")
        wload(P_+12, 13, 59, 2752)
        k(f"""
        s_sub_u32 s48, s{G}, 1376
        s_cmp_lt_u32 s{G}, 1376
        s_cselect_b32 s48, s{G}, s48
        s_cselect_b32 s44, s16, s8
        s_cselect_b32 s45, s17, s9
        s_cselect_b32 s46, {1376*1024}, 0
        s_cselect_b32 s50, 86, 32
        s_cselect_b32 s43, {WDF - WOF}, 0
        s_and_b32 s45, s45, 0xffff
        s_sub_u32 s51, s{G}, 1376
        s_cmp_lt_u32 s51, 512
        s_cselect_b32 s46, {512*1024}, s46
        s_and_b32 s58, s48, 15
        s_lshr_b32 s51, s48, 4
        s_lshl_b32 s59, s51, 14
        s_lshl_b32 s48, s58, 6
        s_add_u32 s59, s59, s48
        s_mul_i32 s{D0+1}, s58, s50
        s_add_u32 s{D0+1}, s{D0+1}, s51
        s_lshl_b32 s{D0+1}, s{D0+1}, 10
        s_add_u32 s{D0+1}, s{D0+1}, s43
        """)
        wload(P_+20, 14, 59, 1024)
    def pack_store(reg, dstreg, base):
        for d in range(4):
            k(f"v_lshl_or_b32 v{reg+d}, v{reg+2*d+1}, 16, v{reg+2*d}")
        k(f"s_add_u32 s49, s{dstreg}, {base}")
        k(f"buffer_store_dwordx4 v[{reg}:{reg+3}], v3, s[20:23], s49 offen {st}")
    def item_stores(i):
        P_, D0 = PRE[i], (37, 52, 32)[i]
        G = D0 + 2
        l1, l2 = k.label("is1"), k.label("is2")
        if i == 2:
            k("s_cmp_eq_u32 s29, 2")
            k(f"s_cbranch_scc1 {l2}")
        k(f"s_lshl_b32 s43, s{G}, 10")
        k(f"s_add_u32 s43, s43, {XF}")
        k(f"buffer_store_dwordx4 v[{P_}:{P_+3}], v3, s[20:23], s43 offen {st}")
        k(f"s_cmp_lt_u32 s{G}, 1376")
        k(f"s_cbranch_scc0 {l1}")
        for reg in (P_+4, P_+12):
            for d in range(4):
                k(f"v_lshl_or_b32 v{reg+d}, v{reg+2*d+1}, 16, v{reg+2*d}")
        k.nop(2)
        for d in range(4):
            k(f"v_permlane16_swap_b32 v{P_+4+d}, v{P_+12+d}")
        k(f"s_add_u32 s49, s{D0}, {WGF}")
        k(f"buffer_store_dwordx4 v[{P_+4}:{P_+7}], v3, s[20:23], s49 offen {st}")
        k(f"s_add_u32 s49, s{D0}, {WGF + 32768}")
        k(f"buffer_store_dwordx4 v[{P_+12}:{P_+15}], v3, s[20:23], s49 offen {st}")
        k.place(l1)
        k(f"s_cmp_lt_u32 s{G}, 1888")
        k(f"s_cbranch_scc0 {l2}")
        pack_store(P_+20, D0+1, WOF)
        k.place(l2)
    return item_loads, item_stores

def p1_loader(k):
    SRB, SCB = 27, 28
    VXE, VXO, VW = 8, 9, 10
    k(f"""
    s_sub_u32 s29, s{SW}, 4
    v_lshrrev_b32 v11, 3, v2
    v_and_b32 v4, 7, v2
    v_lshrrev_b32 v5, 4, v2
    v_xor_b32 v6, v4, v5
    v_lshlrev_b32 v6, 4, v6
    s_lshl_b32 s35, s29, 4
    v_add_u32 v7, s35, v11
    v_lshlrev_b32 v12, 10, v7
    v_add_u32 v{VXE}, v12, v6
    v_xor_b32 v6, 64, v6
    v_add_u32 v{VXO}, v12, v6
    v_add_u32 v{VXO}, 8192, v{VXO}
    s_lshl_b32 s35, s29, 3
    v_add_u32 v7, s35, v11
    v_and_b32 v5, 1, v5
    v_lshlrev_b32 v5, 2, v5
    v_xor_b32 v5, v4, v5
    v_lshlrev_b32 v5, 4, v5
    v_mul_u32_u24 v7, 3072, v7
    v_add_u32 v{VW}, v7, v5
    s_lshl_b32 s31, s29, 10
    s_lshl_b32 s36, s29, 11
    s_lshl_b32 s30, s{SRB}, 16
    s_lshl_b32 s32, s{SCB}, 7
    """)
    if OPT.get('z_mix'):
        for p, d in ((1, 3), (2, 5)):
            k(f"s_add_u32 s{37+p}, s{SCB}, {d}")
            k(f"s_and_b32 s{37+p}, s{37+p}, 7")
            k(f"s_sub_u32 s{37+p}, s{37+p}, s{SCB}")
            k(f"s_lshl_b32 s{37+p}, s{37+p}, 7")
    k("s_mov_b32 s54, 0x200000")
    k("s_mov_b32 s55, 0x20000")
    k(f"s_mov_b32 s58, {512*3072}")
    k("s_mov_b32 s59, 0x20000")
    k("s_waitcnt lgkmcnt(0)")
    k("s_mov_b32 s52, s4")
    k("s_and_b32 s53, s5, 0xffff")
    k("s_mov_b32 s56, s6")
    k("s_and_b32 s57, s7, 0xffff")
    n = lambda c: 3 + (0 if c & 1 else 2)
    def issue(c):
        if OPT.get('z_nodma1') and c > 2: return
        rot = OPT.get('krot', 1)
        if not c & 1:
            if rot:
                k(f"s_add_u32 s37, s{(0, SRB, SCB, SRB)[rot]}, {c//2}")
                if rot == 3: k(f"s_add_u32 s37, s37, s{SCB}")
                k("s_and_b32 s37, s37, 7")
                k("s_lshl_b32 s33, s37, 7")
                k("s_add_u32 s33, s33, s30")
                k(f"s_mul_i32 s37, s37, {64*3072}")
                k("s_add_u32 s37, s37, s32")
            else:
                k(f"s_add_u32 s33, s30, {(c//2)*128}")
                k(f"s_add_u32 s37, s32, {(c//2)*64*3072}")
            for o in range(2):
                dma(k, VXE if o == 0 else VXO, 52, 33, f"s36, {(c//2)*8192 + o*1024}", 0, OPT.get('xf', ''))
        for p in range(3):
            k(f"s_add_u32 s33, s37, {(c & 1)*32*3072 + p*1024}")
            if OPT.get('z_mix') and p: k(f"s_add_u32 s33, s33, s{37+p}")
            dma(k, VW, 56, 33, f"s31, {65536 + (c % 8)*12288 + p*4096}", 0, OPT.get('wf', ''))
    issued = OPT.get('d1', 4)
    for c in range(issued): issue(c)
    if OPT.get('dyn', 1) != 2: srd(k, 20, 62, WS_SIZE)
    for P in range(9):
        k(f"s_waitcnt vmcnt({sum(n(j) for j in range(2*P+2, issued))})")
        k("s_barrier")
        m = 0
        while issued < 16 and issued - 8 <= 2*P - 3 and m < 4:
            issue(issued); issued += 1; m += 1
    k("s_barrier")
    k("s_barrier")
    role_read(k)
    k("s_barrier")

RLAB = [None]
def p1_helper(k):
    RLAB[0] = k.label('RL')
    k(f"s_setprio {OPT.get('hprio', 3)}")
    k("s_waitcnt lgkmcnt(0)")
    if OPT.get('dyn', 1) != 2: srd(k, 20, 62, WS_SIZE)
    X, SQ, SX, T, RS, NB = 16, 24, 28, 32, 36, 38
    init_done = k.label("initd")
    k(f"""
    s_cmp_lg_u32 s{SW}, 8
    s_cbranch_scc1 {init_done}
    s_lshl_b32 s30, s2, 7
    s_add_u32 s30, s30, {FLG}
    v_lshl_add_u32 v4, v2, 15, s30
    s_and_b32 s30, s2, 7
    s_lshl_b32 s30, s30, 8
    s_add_u32 s30, s30, {CNT + CW*256}
    v_mov_b32 v5, 0
    v_writelane_b32 v4, s30, 5
    s_mov_b64 exec, 63
    buffer_store_dword v5, v4, s[20:23], 0 offen sc1
    s_mov_b64 exec, -1
    """)
    k.place(init_done)
    if OPT.get('dyn', 1) == 1:
        tkx = k.label("tkx")
        def ticket():
            k("s_lshl_b32 s57, s56, 5")
            k("s_add_u32 s57, s57, 16")
            k("s_mov_b64 exec, 1")
            k("v_mov_b32 v45, s57")
            k("v_mov_b32 v46, 1")
            k("global_atomic_add v44, v45, v46, s[60:61] sc0 sc1")
            k("s_mov_b64 exec, -1")
        def first_ticket():
            k(f"s_cmp_lg_u32 s{SW}, 8")
            k(f"s_cbranch_scc1 {tkx}")
            k("s_getreg_b32 s56, hwreg(HW_REG_XCC_ID, 0, 4)")
            k("s_and_b32 s56, s56, 7")
            if OPT.get('fakexcc'):
                k("s_and_b32 s56, s2, 15")
                k("s_min_u32 s56, s56, 7")
            k("s_waitcnt vmcnt(0)")
            ticket()
            k.place(tkx)
        if OPT.get('tkat', 2) < 0: first_ticket()
    k(f"""
    s_sub_u32 s29, s{SW}, 8
    s_lshl_b32 s30, s29, 10
    v_add_u32 v4, s30, v3
    s_mov_b32 s39, {hex(ONES)}
    """)
    if OPT.get('dyn', 1) != 2 and OPT.get('t1at', 0) < 0: cold_touch(k)
    if OPT.get('t7'):
        l7 = k.label("t7")
        k(f"s_cmp_lg_u32 s{SW}, 10")
        k(f"s_cbranch_scc1 {l7}")
        srd(k, 44, 6, 512*3072)
        k("s_lshr_b32 s31, s2, 3")
        k(f"s_mul_i32 s31, s31, {48*1024}")
        k("v_lshlrev_b32 v12, 10, v2")
        k("s_mov_b32 exec_hi, 0xffff")
        k("buffer_load_dword v40, v12, s[44:47], s31 offen offset:384")
        if OPT['t7'] > 1: k("buffer_load_dword v41, v12, s[44:47], s31 offen offset:896")
        k("s_mov_b64 exec, -1")
        k.place(l7)
    for c in range(9):
        k("s_barrier")
        if OPT.get('dyn', 1) == 1 and c == OPT.get('tkat', 2): first_ticket()
        if OPT.get('dyn', 1) == 2 and c == OPT.get('tkat', 2):
            l2 = k.label("cl2")
            k(f"s_cmp_lg_u32 s{SW}, 8")
            k(f"s_cbranch_scc1 {l2}")
            k(f"s_lshl_b32 s57, s{SXCD}, 5")
            k("s_mov_b64 exec, 1")
            k("v_mov_b32 v45, s57")
            k("v_mov_b32 v46, 1")
            k("s_waitcnt vmcnt(0)")
            k("global_atomic_add v45, v46, s[60:61] offset:20 sc1")
            k("s_mov_b64 exec, -1")
            k.place(l2)
        if c == OPT.get('t1at', 0) and (OPT.get('dyn', 1) != 2): cold_touch(k)
        if c == OPT.get('t6at', 99):
            l6 = k.label("t6")
            k(f"s_cmp_eq_u32 s{SW}, 8")
            k(f"s_cbranch_scc1 {l6}")
            k(f"s_sub_u32 s42, s{SW}, 9")
            k(f"s_lshl_b32 s42, s42, 21")
            k("s_lshl_b32 s43, s2, 13")
            k("s_add_u32 s42, s42, s43")
            touch(k, 42, 64, 47)
            k.place(l6)
        if c == OPT.get('tcat', 7):
            l11 = k.label("t11b")
            k(f"s_cmp_lg_u32 s{SW}, 11")
            k(f"s_cbranch_scc1 {l11}")
            if True:
                here = k.label("here")
                k("s_getpc_b64 s[44:45]")
                k.place(here)
                k(f"s_sub_u32 s44, s44, {here}-{NAME}")
                k("s_subb_u32 s45, s45, 0")
                k("v_lshlrev_b32 v12, 7, v2")
                for i in range(4):
                    k(f"global_load_dword v{40+i}, v12, s[44:45]")
                    if i < 3: k("v_add_u32 v12, 8192, v12")
            k.place(l11)

        if c < 8 and not (OPT.get('z_nostat') and c > 0):
            cc = c
            k(f"ds_read_b128 v[{X}:{X+3}], v4 offset:{cc*8192}")
            k(f"ds_read_b128 v[{X+4}:{X+7}], v4 offset:{cc*8192 + 4096}")
            for hf in range(2):
                k(f"s_waitcnt lgkmcnt({1-hf})")
                for d in range(4):
                    r = X + 4*hf + d
                    q, sx = SQ + 2*hf + (d & 1), SX + 2*hf + (d & 1)
                    first = (cc == 0 and d < 2)
                    k(f"v_dot2_f32_bf16 v{q}, v{r}, v{r}, {'0' if first else 'v%d' % q}")
                    k(f"v_dot2_f32_bf16 v{sx}, v{r}, s39, {'0' if first else 'v%d' % sx}")
        if c == 7:
            k.nop(3)
            k(f"v_add_f32 v{SQ}, v{SQ}, v{SQ+1}")
            k(f"v_add_f32 v{SQ+2}, v{SQ+2}, v{SQ+3}")
            k(f"v_add_f32 v{SX}, v{SX}, v{SX+1}")
            k(f"v_add_f32 v{SX+2}, v{SX+2}, v{SX+3}")
            row8_sum(k, [SQ, SQ+2, SX, SX+2])
        if c == 7:
            for hf in range(2):
                finish_stats(k, SX + 2*hf, SQ + 2*hf, RS + hf, NB + hf, T, T+1)
            k(f"""
            v_lshrrev_b32 v5, 3, v2
            s_lshl_b32 s30, s29, 5
            s_add_u32 s30, s30, {EXS}
            v_lshl_add_u32 v5, v5, 2, s30
            ds_write2_b32 v5, v{RS}, v{RS+1} offset0:0 offset1:32
            ds_write2_b32 v5, v{NB}, v{NB+1} offset0:64 offset1:96
            """)
            nm = k.label("nomx")
            k(f"""
            s_cmp_lg_u32 s28, 0
            s_cbranch_scc1 {nm}
            s_lshl_b32 s30, s27, 8
            s_lshl_b32 s31, s29, 5
            s_add_u32 s30, s30, s31
            s_add_u32 s30, s30, {MX}
            v_lshrrev_b32 v5, 3, v2
            v_lshlrev_b32 v5, 2, v5
            s_mov_b32 exec_lo, 0x01010101
            s_mov_b32 exec_hi, 0x01010101
            buffer_store_dword v{SX}, v5, s[20:23], s30 offen sc1
            buffer_store_dword v{SX+2}, v5, s[20:23], s30 offen offset:128 sc1
            s_mov_b64 exec, -1
            """)
            k.place(nm)
    k("s_waitcnt lgkmcnt(0)")
    k("s_barrier")
    if True:
        nw = k.label("nrw")
        k(f"s_cmp_lg_u32 s{SW}, 8")
        k(f"s_cbranch_scc1 {nw}")
        if OPT.get('dyn', 1) == 1:
            tk, tkd = k.label("tk"), k.label("tkd")
            k.place(tk)
            k("s_waitcnt vmcnt(0)")
            k("v_readfirstlane_b32 s57, v44")
            k.nop(1)
            k("s_cmp_lt_u32 s57, 32")
            k(f"s_cbranch_scc1 {tkd}")
            k("s_add_u32 s56, s56, 1")
            k("s_and_b32 s56, s56, 7")
            ticket()
            k(f"s_branch {tk}")
            k.place(tkd)
            k("s_lshl_b32 s57, s57, 3")
            k("s_or_b32 s57, s57, s56")
            k(f"v_mov_b32 v4, {ROLE}")
            k("v_mov_b32 v5, s57")
            k("ds_write_b32 v4, v5")
        g, gx = k.label("gate"), k.label("gatex")
        k("s_mov_b32 s41, 0")
        k("v_lshlrev_b32 v9, 5, v2")
        k("s_mov_b64 exec, 0xff")
        k.place(g)
        k(f"global_load_dword v10, v9, s[60:61] offset:{16 if OPT.get('dyn', 1) == 1 else 20} sc1")
        k("s_add_u32 s41, s41, 1")
        k("s_cmp_gt_u32 s41, 0x40000")
        k(f"s_cbranch_scc1 {gx}")
        k("s_waitcnt vmcnt(0)")
        k("v_cmp_gt_u32 vcc, 32, v10")
        k("s_cmp_eq_u64 vcc, 0")
        k(f"s_cbranch_scc1 {gx}")
        k("s_sleep 8")
        k(f"s_branch {g}")
        k.place(gx)
        k("s_mov_b64 exec, -1")
        k("s_waitcnt lgkmcnt(0)")
        k.place(nw)
    k(f"s_lshl_b32 s40, s28, 5")
    k(f"s_add_u32 s40, s40, s27")
    k(f"s_lshl_b32 s40, s40, 7")
    k(f"s_add_u32 s40, s40, {FLG}")
    k("v_mov_b32 v8, 1")
    k("v_mov_b32 v9, 0")
    k("s_waitcnt vmcnt(0)")
    stamp(k, 1)
    k("s_barrier")
    k(f"s_cmp_lg_u32 s{SW}, 8")
    k(f"s_cbranch_scc1 {RLAB[0]}")
    k("s_mov_b64 exec, 1")
    k("buffer_store_dword v8, v9, s[20:23], s40 offen sc1")
    k("s_mov_b64 exec, -1")
    stamp(k, 0)
    role_read(k)
    k(f"v_mov_b32 v4, {PROG}")
    k("v_mov_b32 v5, 0")
    for o in (0, 16, 20, 32, 48): k(f"ds_write_b32 v4, v5 offset:{o}")
    k("s_getreg_b32 s58, hwreg(HW_REG_XCC_ID, 0, 4)")
    k("s_add_u32 s58, s58, 1")
    k(f"s_lshl_b32 s42, s{SXCD}, 5")
    k(f"s_add_u32 s42, s42, s{SIDX}")
    k(f"s_add_u32 s42, s42, {FX}")
    flag_set(k, 42, "s58")
    k(f"s_lshr_b32 s42, s{SHEAD}, 2")
    k(f"s_lshl_b32 s42, s42, 5")
    flag_poll(k, 42)
    stamp(k, 2); rstamp(k, 3)
    k("s_waitcnt lgkmcnt(0)")
    k("s_barrier")

def rowmax(k, S, dst, t1, t2):
    k(f"v_max3_f32 v{dst}, v{S}, v{S+1}, v{S+2}")
    k(f"v_max3_f32 v{t1}, v{S+3}, v{S+4}, v{S+5}")
    k(f"v_max3_f32 v{dst}, v{dst}, v{S+6}, v{S+7}")
    k(f"v_max3_f32 v{t1}, v{t1}, v{S+8}, v{S+9}")
    k(f"v_max3_f32 v{dst}, v{dst}, v{S+10}, v{S+11}")
    k(f"v_max3_f32 v{t1}, v{t1}, v{S+12}, v{S+13}")
    k(f"v_max3_f32 v{dst}, v{dst}, v{S+14}, v{S+15}")
    k(f"v_max_f32 v{t1}, v{dst}, v{t1}")
    k(f"v_mov_b32 v{t2}, v{t1}")
    k.nop(2)
    k(f"v_permlane32_swap_b32 v{t1}, v{t2}")
    k.nop(1)
    k(f"v_max_f32 v{dst}, v{t1}, v{t2}")

def p2_compute(k, tail):
    Q = 8; KB = [12, 16]; V1 = [20, 28]; V2 = [24, 32]; P = 36; SS = [48, 64]; CN = 80; O = 96
    VKA, VVA, VINC = 4, 5, 47
    PRG, VPR = 112, 6
    chk, spin = k.label("chk"), k.label("spin")
    def spinf(k):
        k.place(spin)
        k("s_sleep 1")
        k(f"ds_read_b32 v{PRG}, v{VPR}")
        k("s_waitcnt lgkmcnt(0)")
        k(f"s_branch {chk}")
    tail.append(spinf)
    k(f"""
    s_lshl_b32 s30, s{SQB}, 3
    s_add_u32 s30, s30, s{SW}
    s_lshl_b32 s31, s30, 10
    s_lshl_b32 s29, s{SHEAD}, 16
    s_add_u32 s31, s31, s29
    buffer_load_dwordx4 v[{Q}:{Q+3}], v3, s[20:23], s31 offen {OPT['ld']}
    v_mov_b32 v{VKA}, v3
    v_lshrrev_b32 v6, 5, v2
    v_lshlrev_b32 v6, 8, v6
    v_and_b32 v7, 15, v2
    v_lshl_add_u32 v{VVA}, v7, 4, v6
    v_add_u32 v{VVA}, 0x10000, v{VVA}
    v_and_b32 v6, 27, v2
    v_mov_b32 v7, {hex(ONES)}
    v_cmp_eq_u32 vcc, 16, v6
    s_mov_b32 s36, 0xffff
    s_mov_b32 s37, 0xffff
    v_cndmask_b32 v7, 0, v7, vcc
    """)
    for r in range(16): k(f"v_mov_b32 v{V1[0]+r}, v7")
    k(f"v_mov_b32 v{VPR}, {PROG}")
    for r in range(8): k(f"v_mov_b32 v{P+r}, 0")
    for r in range(16): k(f"v_mov_b32 v{O+r}, 0")
    def vread(kk, buf, off):
        kk("s_mov_b64 exec, s[36:37]")
        kk(f"ds_read_b128 v[{V1[buf]}:{V1[buf]+3}], v{VVA} offset:{off}")
        kk(f"ds_read_b128 v[{V2[buf]}:{V2[buf]+3}], v{VVA} offset:{off+512}")
        kk("s_mov_b64 exec, -1")
    stamp(k, 4)
    k("s_barrier")
    stamp(k, 5)
    k(f"ds_read_b128 v[{KB[0]}:{KB[0]+3}], v{VKA}")
    k(f"ds_read_b128 v[{KB[1]}:{KB[1]+3}], v{VKA} offset:1024")
    vread(k, 0, 0)
    k("s_waitcnt vmcnt(0) lgkmcnt(3)")
    k(f"{MFMA} v[{SS[0]}:{SS[0]+15}], v[{KB[0]}:{KB[0]+3}], v[{Q}:{Q+3}], 0")
    k.nop(12)
    rowmax(k, SS[0], 44, 45, 46)
    for r in range(16): k(f"v_sub_f32 v{CN+r}, 0, v44")
    k.nop(2)
    k(f"{MFMA} v[{SS[0]}:{SS[0]+15}], v[{KB[0]}:{KB[0]+3}], v[{Q}:{Q+3}], v[{CN}:{CN+15}]")
    k("s_mov_b32 s38, 0")
    k.nop(10)
    loop = k.label("loop")
    k(".p2align 6")
    k.place(loop)
    pr = OPT['prio']
    for t in range(8):
        cur, nx = SS[t & 1], SS[(t+1) & 1]
        e = lambda i: k(f"v_exp_f32 v{cur+i}, v{cur+i}")
        c = lambda i: k(f"v_cvt_pk_bf16_f32 v{P+i}, v{cur+2*i}, v{cur+2*i+1}")
        k("s_waitcnt lgkmcnt(0)")
        if t == 6:
            k.place(chk)
            k(f"v_cmp_ge_u32 vcc, s38, v{PRG}")
            k("s_cmp_lg_u64 vcc, 0")
            k(f"s_cbranch_scc1 {spin}")
        kb = KB[(t+1) & 1]
        pb = (t+1) & 1
        sp = (lambda n: k(f"s_setprio {n}")) if pr else (lambda n: None)
        k(f"{MFMA} v[{nx}:{nx+15}], v[{kb}:{kb+3}], v[{Q}:{Q+3}], v[{CN}:{CN+15}]")
        sp(0)
        k(f"ds_read_b128 v[{KB[t&1]}:{KB[t&1]+3}], v{VKA} offset:{(t+2)*1024}")
        e(0); e(1)
        k(f"{MFMA} v[{O}:{O+15}], v[{V2[pb]}:{V2[pb]+3}], v[{P+4}:{P+7}], v[{O}:{O+15}]")
        vread(k, pb, (t+1)*1024)
        if t == 5: k(f"ds_read_b32 v{PRG}, v{VPR}")
        e(2); e(3); sp(1); c(0); e(4); e(5); c(1); e(6); e(7); sp(2); c(2); e(8); e(9); c(3); e(10); e(11)
        k(f"{MFMA} v[{O}:{O+15}], v[{V1[t&1]}:{V1[t&1]+3}], v[{P}:{P+3}], v[{O}:{O+15}]")
        c(4); e(12); e(13); sp(3); c(5); e(14); e(15); c(6)
        if t == 7:
            k(f"v_add_u32 v{VKA}, 8192, v{VKA}")
            k(f"v_add_u32 v{VVA}, 8192, v{VVA}")
            k("s_add_u32 s38, s38, 1")
            k(f"v_mov_b32 v{PRG}, s38")
            k(f"ds_write_b32 v{VPR}, v{PRG} offset:32")
            k("s_cmp_lt_u32 s38, 8")
        c(7)
    k(f"s_cbranch_scc1 {loop}")
    k("s_setprio 0")
    stamp(k, 6)
    k.nop(1)
    k(f"{MFMA} v[{O}:{O+15}], v[{V2[1]}:{V2[1]+3}], v[{P+4}:{P+7}], v[{O}:{O+15}]")
    if OPT.get('loc', 8) & 7:
        k(f"ds_read_b32 v{PRG}, v{VPR} offset:16")
        k("s_waitcnt lgkmcnt(0)")
        k(f"v_readfirstlane_b32 s{SLOC}, v{PRG}")
        k.nop(11)
    else:
        k("s_waitcnt lgkmcnt(0)")
        k.nop(11)
    fb, fin = k.label("fb"), k.label("fin")
    k(f"""
    v_max3_f32 v44, abs(v{O}), abs(v{O+1}), abs(v{O+2})
    v_max3_f32 v45, abs(v{O+3}), abs(v{O+4}), abs(v{O+5})
    v_max3_f32 v44, v44, abs(v{O+6}), abs(v{O+7})
    v_add_f32 v46, v{O}, v{O+1}
    v_max3_f32 v44, v44, v45, v{O+8}
    s_mov_b32 s39, {hex(f32(2.0**100))}
    """)
    for r in range(2, 9): k(f"v_add_f32 v46, v46, v{O+r}")
    k(f"v_and_b32 v46, 0x7fffffff, v46")
    k(f"v_cmp_ngt_f32 vcc, s39, v44")
    k(f"v_cmp_ngt_f32 s[40:41], s39, v46")
    k.nop(1)
    k("s_or_b64 s[40:41], s[40:41], vcc")
    k("s_cmp_lg_u64 s[40:41], 0")
    k(f"s_cbranch_scc1 {fb}")
    if OPT.get('forcefb'):
        k(f"s_bitcmp1_b32 s{SW}, 0")
        k(f"s_cbranch_scc1 {fb}")
    k.place(fin)
    k(f"v_rcp_f32 v44, v{O+8}")
    k(f"s_lshl_b32 s40, s30, 15")
    k(f"s_lshl_b32 s41, s{SHEAD}, 10")
    k(f"s_add_u32 s40, s40, s41")
    k(f"s_add_u32 s40, s40, {OF}")
    for r in range(8): k(f"v_mul_f32 v{O+r}, v{O+r}, v44")
    for r in range(4): k(f"v_cvt_pk_bf16_f32 v{P+r}, v{O+2*r}, v{O+2*r+1}")
    pub_store(k, [f"buffer_store_dwordx4 v[{P}:{P+3}], v3, s[20:23], s40 offen"], 0)
    k("s_waitcnt vmcnt(0)")
    k("s_barrier")
    k("s_barrier")
    def fallback(k):
        k.place(fb)
        k(f"v_mov_b32 v{VKA}, v3")
        k(f"v_subrev_u32 v{VVA}, 0x10000, v{VVA}")
        k(f"v_mov_b32 v7, 0xff7fffff")
        for r in range(16): k(f"v_mov_b32 v{O+r}, 0")
        k("s_mov_b32 s38, 0")
        fl = k.label("fl")
        k.place(fl)
        S = SS[0]
        k(f"ds_read_b128 v[{KB[0]}:{KB[0]+3}], v{VKA}")
        vread(k, 0, 0)
        k("s_waitcnt lgkmcnt(0)")
        k(f"{MFMA} v[{S}:{S+15}], v[{KB[0]}:{KB[0]+3}], v[{Q}:{Q+3}], 0")
        k.nop(14)
        rowmax(k, S, 44, 45, 46)
        k("v_max_f32 v44, v44, v7")
        k("v_sub_f32 v45, v7, v44")
        k("v_exp_f32 v45, v45")
        k("v_mov_b32 v7, v44")
        for r in range(16): k(f"v_sub_f32 v{S+r}, v{S+r}, v44")
        for r in range(16): k(f"v_mul_f32 v{O+r}, v{O+r}, v45")
        for r in range(16): k(f"v_exp_f32 v{S+r}, v{S+r}")
        k.nop(1)
        for r in range(8): k(f"v_cvt_pk_bf16_f32 v{P+r}, v{S+2*r}, v{S+2*r+1}")
        k.nop(2)
        k(f"{MFMA} v[{O}:{O+15}], v[{V1[0]}:{V1[0]+3}], v[{P}:{P+3}], v[{O}:{O+15}]")
        k(f"{MFMA} v[{O}:{O+15}], v[{V2[0]}:{V2[0]+3}], v[{P+4}:{P+7}], v[{O}:{O+15}]")
        k(f"v_add_u32 v{VKA}, 1024, v{VKA}")
        k(f"v_add_u32 v{VVA}, 1024, v{VVA}")
        k("s_add_u32 s38, s38, 1")
        k("s_cmp_lt_u32 s38, 64")
        k.nop(14)
        k(f"s_cbranch_scc1 {fl}")
        k(f"s_branch {fin}")
    tail.append(fallback)

def p2_relayout(k):
    k(f"""
    s_sub_u32 s29, s{SW}, 9
    """)
    early = OPT.get('rl_early', 0)
    if early < 2:
        k("s_waitcnt lgkmcnt(0)")
        k("s_barrier")
    if early < 1:
        k("s_barrier")
    loads, stores = relayout(k)
    loads(0); loads(1)
    srd(k, 44, 8, 512*1024)
    k("s_and_b32 s35, s29, 1")
    k("s_lshl_b32 s36, s2, 1")
    k("s_add_u32 s35, s35, s36")
    k("s_lshl_b32 s36, s35, 10")
    k("buffer_load_dwordx4 v[72:75], v3, s[44:47], s36 offen")
    if early >= 2:
        k("s_waitcnt lgkmcnt(0)")
        k("s_barrier")
    if early >= 1:
        k("s_barrier")
    k("s_waitcnt vmcnt(27)")
    stores(0)
    loads(2)
    k("s_waitcnt vmcnt(26)")
    stores(1)
    k(f"s_mov_b32 s36, {hex(ONES)}")
    k("v_dot2_f32_bf16 v76, v72, s36, 0")
    for d in range(1, 4): k(f"v_dot2_f32_bf16 v76, v{72+d}, s36, v76")
    k.nop(1)
    for ctl in ("quad_perm:[1,0,3,2]", "quad_perm:[2,3,0,1]", "row_half_mirror", "row_mirror"):
        k.nop(2)
        k(f"v_add_f32_dpp v76, v76, v76 {ctl} row_mask:0xf bank_mask:0xf")
    k.nop(1)
    for i in range(4): k(f"v_readlane_b32 s{48+i}, v76, {16*i}")
    k(f"""
    s_lshr_b32 s36, s35, 4
    s_lshl_b32 s36, s36, 6
    s_bfe_u32 s43, s35, 0x10002
    s_lshl_b32 s43, s43, 4
    s_add_u32 s36, s36, s43
    v_mov_b32 v76, s48
    v_add_f32 v76, s49, v76
    v_add_f32 v76, s50, v76
    v_add_f32 v76, s51, v76
    v_mul_f32 v76, {hex(f32(1/512))}, v76
    s_bfe_u32 s43, s35, 0x10003
    s_lshl_b32 s43, s43, 3
    s_add_u32 s36, s36, s43
    v_cvt_pk_bf16_f32 v77, v76, v76
    s_and_b32 s43, s35, 3
    s_lshl_b32 s43, s43, 1
    s_add_u32 s36, s36, s43
    v_and_b32 v78, 0xffff0000, v77
    v_sub_f32 v78, v76, v78
    s_add_u32 s36, s36, {WBT}
    v_cvt_pk_bf16_f32 v78, v78, v78
    v_mov_b32 v79, 0
    s_mov_b64 exec, 1
    buffer_store_short v77, v79, s[20:23], s36 offen sc1
    buffer_store_short v78, v79, s[20:23], s36 offen offset:32 sc1
    s_mov_b64 exec, -1
    """)
    k("s_waitcnt vmcnt(0)")
    stores(2)
    k("s_waitcnt vmcnt(0)")
    na = k.label("noarr")
    k(f"v_mov_b32 v5, {PROG + 48}")
    k("v_mov_b32 v6, 1")
    k("s_mov_b64 exec, 1")
    k("ds_add_rtn_u32 v7, v5, v6")
    k("s_waitcnt lgkmcnt(0)")
    k("v_readfirstlane_b32 s42, v7")
    k("s_cmp_lg_u32 s42, 2")
    k(f"s_cbranch_scc1 {na}")
    k(f"s_add_u32 s42, s{SXCD}, {CW}")
    arrive(k, 42)
    k.place(na)
    k("s_endpgm")

def p2_helper(k, done):
    ld = OPT['ld']
    k(f"s_lshl_b32 s33, s{SHEAD}, 16")
    def kv(c):
        k(f"s_add_u32 s31, s{SHEAD}, {c}" if OPT.get('kvrot', 0) else f"s_mov_b32 s31, {c}")
        k("s_and_b32 s31, s31, 7")
        k("s_lshl_b32 s31, s31, 13")
        k("s_add_u32 s31, s31, s33")
        for base, l in ((KF, 0), (VF, 65536)):
            for g in range(2):
                k(f"s_add_u32 s34, s31, {base + g*4096}")
                k(f"s_mov_b32 m0, {l + c*8192 + g*4096}")
                k.nop(1)
                for q in range(4):
                    k(f"buffer_load_dwordx4 v3, s[20:23], s34 offen" + (f" offset:{q*1024}" if q else "") + f" {ld} lds")
    kv(0); kv(1)
    k("s_waitcnt vmcnt(16)")
    k("s_barrier")
    issued = 2
    def publish(c):
        k(f"v_mov_b32 v5, {c if c < 7 else 64}")
        k("ds_write_b32 v4, v5")
    while issued < OPT.get('kvd', 3): kv(issued); issued += 1
    for c in range(1, 8):
        k(f"s_waitcnt vmcnt({16*(issued - 1 - c)})")
        publish(c)
        if issued < 8: kv(issued); issued += 1
    stamp(k, 12)
    k("s_setprio 3")
    k(f"s_lshl_b32 s42, s{SXCD}, 5")
    k(f"s_add_u32 s42, s42, {FX}")
    flag_poll(k, 42)
    k("s_getreg_b32 s58, hwreg(HW_REG_XCC_ID, 0, 4)")
    k("s_add_u32 s58, s58, 1")
    k("s_mov_b32 exec_hi, 0")
    k("v_cmp_ne_u32 vcc, s58, v10")
    k("s_cmp_eq_u64 vcc, 0")
    k(f"s_cselect_b32 s{SLOC}, 1, 0")
    k(f"v_mov_b32 v5, s{SLOC}")
    k("ds_write_b32 v4, v5 offset:16")
    k("s_mov_b64 exec, -1")
    m5 = OPT.get('t5', 0)
    if m5:
        k(f"s_lshl_b32 s43, s{SXCD}, 5")
        k(f"s_add_u32 s43, s43, s{SIDX}")
        if m5 & 1:
            k(f"s_mul_i32 s42, s43, {172*128}")
            k(f"s_add_u32 s42, s42, {ACT}")
            touch(k, 42, 172)
        for bit, base in ((2, HF), (4, OF)):
            if m5 & bit:
                k(f"s_lshl_b32 s42, s43, 13")
                k(f"s_add_u32 s42, s42, {base}")
                touch(k, 42, 64)
        if m5 & 8:
            srd(k, 44, 18, 2*MB)
            k("s_lshl_b32 s42, s43, 13")
            k("buffer_load_dword v40, v12, s[44:47], s42 offen")
    k("s_mov_b32 s55, 0")
    if OPT.get('t2', 1):
        again, skip, ok = k.label("t2a"), k.label("t2s"), k.label("t2o")
        k(f"""
        s_mov_b32 s40, {CNT + CW*256}
        s_mov_b32 exec_lo, 0xff
        s_mov_b32 exec_hi, 0
        v_lshlrev_b32 v9, 8, v2
        s_mov_b32 s41, 0
        """)
        k.place(again)
        k(f"s_sleep {OPT.get('slpw', 32)}")
        k("buffer_load_dword v10, v9, s[20:23], s40 offen sc1")
        k("ds_read_b32 v11, v4 offset:32")
        k("s_waitcnt vmcnt(0) lgkmcnt(0)")
        k("v_readfirstlane_b32 s41, v11")
        k("v_cmp_gt_u32 vcc, 32, v10")
        k(f"s_cmp_ge_u32 s41, {OPT.get('t2lim', 6)}")
        k(f"s_cbranch_scc1 {skip}")
        k("s_cmp_lg_u64 vcc, 0")
        k(f"s_cbranch_scc1 {again}")
        k("s_mov_b32 s55, 1")
        k("s_mov_b64 exec, -1")
        if OPT.get('woe', 1):
            k(f"s_lshr_b32 s44, s{SIDX}, 2")
            k(f"s_lshl_b32 s44, s44, 16")
            k(f"s_add_u32 s44, s44, {WOF}")
            for lw in range(4):
                for j in range(NWE):
                    k(f"s_add_u32 s46, s44, {(lw & 1)*32768 + (lw >> 1)*16384 + j*1024}")
                    k(f"s_mov_b32 m0, {wo_addr(j) + lw*1024}")
                    k.nop(1)
                    k(f"buffer_load_dwordx4 v3, s[20:23], s46 offen {ld} lds")
            k(f"s_mov_b32 s46, {WBT}")
            k(f"s_mov_b32 m0, {WBL}")
            k.nop(1)
            k(f"buffer_load_dwordx4 v3, s[20:23], s46 offen {ld} lds")
            k(f"buffer_load_dwordx4 v3, s[20:23], s46 offen offset:1024 {ld} lds")
            k(f"v_mov_b32 v5, 1")
            k("s_waitcnt vmcnt(0)")
            k("ds_write_b32 v4, v5 offset:20")
        for base, tot in [(WOF, 4096), (WGF, 43*256), (WGF + 43*32768, 43*256), (WDF, 43*256)][OPT.get('t2a', 0):OPT.get('t2b', 3)]:
            per = tot // 32
            k(f"s_mul_i32 s42, s{SIDX}, {per*128}")
            k(f"s_add_u32 s42, s42, {base}")
            touch(k, 42, per)
        k.place(skip)
        k("s_mov_b64 exec, -1")

def res_cfg(mode):
    if mode == 'wo':
        return dict(NKS=32, JL=16, WIN=16, BSRC=OF, ASRC=WOF, RES=XF)
    return dict(NKS=86, JL=39, WIN=OPT.get('win5', 12), BSRC=ACT, ASRC=WDF, RES=HF)

def res_map(k):
    k(f"""
    s_lshl_b32 s27, s{SXCD}, 2
    s_and_b32 s28, s{SIDX}, 3
    s_add_u32 s27, s27, s28
    s_lshr_b32 s28, s{SIDX}, 2
    """)

def res_consumer(k, mode, sb):
    c_ = res_cfg(mode); NKS, JL, WIN = c_['NKS'], c_['JL'], c_['WIN']
    NH = NKS // 2
    wo = mode == 'wo'
    SRB, SCB = 27, 28
    ld = OPT['ld']
    R, ACC, AB, AT, AM, WM = 8, 16, 48, 80, 144, 160
    BW = 80 if wo else 112
    res_map(k)
    k(f"""
    s_and_b32 s29, s{SW}, 1
    s_lshl_b32 s30, s{SRB}, 1
    s_add_u32 s30, s30, s29
    s_lshr_b32 s31, s{SW}, 1
    s_lshl_b32 s32, s{SCB}, 1
    s_add_u32 s32, s32, s31
    s_mul_i32 s33, s31, 3072
    v_add_u32 v6, s33, v3
    s_lshl_b32 s33, s31, 10
    s_add_u32 s33, s33, 1024
    v_add_u32 v7, s33, v3
    s_mul_i32 s34, s31, {NH}
    s_mul_i32 s35, s30, {NKS}
    s_add_u32 s35, s35, s34
    s_lshl_b32 s35, s35, 10
    s_add_u32 s35, s35, {c_['BSRC']}
    """)
    if wo:
        k(f"""
        s_lshl_b32 s40, s30, 5
        s_lshl_b32 s41, s32, 1
        s_add_u32 s40, s40, s41
        s_lshl_b32 s40, s40, 10
        s_add_u32 s41, s40, {XF}
        buffer_load_dwordx4 v[{R}:{R+3}], v3, s[20:23], s41 offen {ld}
        buffer_load_dwordx4 v[{R+4}:{R+7}], v3, s[20:23], s41 offen offset:1024 {ld}
        s_add_u32 s41, s40, {HF}
        s_lshl_b32 s47, s32, 13
        s_lshl_b32 s48, s30, 7
        s_add_u32 s47, s47, s48
        s_add_u32 s47, s47, {ST}
        s_add_u32 s48, s48, {MX}
        v_and_b32 v0, 1, v2
        v_lshlrev_b32 v0, 5, v0
        v_lshrrev_b32 v1, 5, v2
        v_lshl_add_u32 v0, v1, 4, v0
        s_lshl_b32 s33, s31, 10
        s_add_u32 s33, s33, {WBL}
        v_add_u32 v0, s33, v0
        """)
    else:
        for q in range(2):
            k(f"s_xor_b32 s36, s32, {q}")
            k(f"s_mul_i32 s36, s36, {NKS}")
            k(f"s_add_u32 s36, s36, s34")
            k(f"s_lshl_b32 s36, s36, 10")
            k(f"s_add_u32 s36, s36, {c_['ASRC'] + JL*1024}")
            for j in range(NH - JL):
                r = AT + 8*j + 4*q
                k(f"buffer_load_dwordx4 v[{r}:{r+3}], v3, s[20:23], s36 offen" + (f" offset:{j*1024}" if j else "") + f" {ld}")
        srd(k, 52, 18, 2*MB)
        k(f"""
        v_and_b32 v8, 31, v2
        v_lshlrev_b32 v8, 10, v8
        v_lshrrev_b32 v9, 5, v2
        v_lshl_add_u32 v8, v9, 4, v8
        s_lshl_b32 s47, s30, 15
        s_lshl_b32 s48, s32, 6
        s_add_u32 s47, s47, s48
        """)
        if OPT.get('fl', 1):
            k(f"""
            s_lshl_b32 s36, s31, 2
            v_add_u32 v10, s36, v9
            v_and_b32 v12, 7, v2
            v_xor_b32 v10, v10, v12
            v_xor_b32 v11, 2, v10
            v_and_b32 v13, 31, v2
            s_lshl_b32 s36, s29, 12
            s_add_u32 s36, s36, 32768
            v_lshl_add_u32 v13, v13, 7, s36
            v_lshl_add_u32 v10, v10, 4, v13
            v_lshl_add_u32 v11, v11, 4, v13
            v_lshrrev_b32 v13, 3, v2
            v_xor_b32 v14, v12, v13
            v_lshlrev_b32 v14, 4, v14
            v_lshl_add_u32 v13, v13, 10, v14
            s_lshl_b32 s36, s{SW}, 11
            s_add_u32 s36, s36, 32768
            v_add_u32 v12, s36, v3
            s_lshl_b32 s47, s{SRB}, 16
            s_lshl_b32 s48, s{SW}, 14
            s_add_u32 s47, s47, s48
            s_lshl_b32 s48, s{SCB}, 7
            s_add_u32 s47, s47, s48
            """)
    RED = 5*20480 if wo else 0
    if wo:
        for v, x in ((4, 2), (5, 0)):
            k(f"s_xor_b32 s36, s{SW}, {x}")
            k(f"s_lshl_b32 s37, s36, 12")
            k(f"s_add_u32 s37, s37, {RED}")
            k(f"v_add_u32 v{v}, s37, v3")
            k(f"s_lshl_b32 s36, s36, 8")
            k(f"s_add_u32 s{38 + (x >> 1)}, s36, {RED + 16384}")
    else:
        k(f"s_xor_b32 s36, s{SW}, 2")
        k(f"s_lshl_b32 s36, s36, 12")
        k(f"v_add_u32 v4, s36, v3")
        k(f"s_lshl_b32 s36, s{SW}, 12")
        k(f"v_add_u32 v5, s36, v3")
    k("s_mov_b32 s45, 0xffff0000")
    RS_ = R if wo else KEEP
    if wo: k("s_waitcnt vmcnt(0)")
    for d in range(8):
        k(f"v_lshlrev_b32 v{ACC+2*d}, 16, v{RS_+d}")
        k(f"v_and_b32 v{ACC+2*d+1}, s45, v{RS_+d}")
    if wo: k("s_setprio 3")
    k("s_barrier")
    stamp(k, sb)
    if wo:
        k("v_and_b32 v1, 31, v2")
        k("v_lshlrev_b32 v1, 2, v1")
        k(f"buffer_load_dword v1, v1, s[20:23], s48 offen {ld}")
    def bload(j):
        if j % 4 == 0: k(f"s_add_u32 s36, s35, {j*1024}")
        r = BW + 4*(j % WIN)
        k(f"buffer_load_dwordx4 v[{r}:{r+3}], v3, s[20:23], s36 offen" + (f" offset:{(j % 4)*1024}" if j % 4 else "") + f" {ld}")
    ds = []; seg = [0]
    def ard(j, q):
        if j < JL:
            if not wo and j == JM and q == 0: k("s_barrier")
            ad = wo_addr(j) if wo else j*4096
            if q == 0 and not (0 <= ad - seg[0] <= 61440):
                k(f"v_add_u32 v6, {ad - seg[0]}, v6")
                k(f"v_add_u32 v7, {ad - seg[0]}, v7")
                seg[0] = ad
            r = AB + 8*(j & 3) + 4*q
            k(f"ds_read_b128 v[{r}:{r+3}], v{6+q} offset:{ad - seg[0]}"); ds.append(j)
    def mrd(j):
        if wo and j < NH:
            k(f"ds_read_b128 v[{WM+4*(j&1)}:{WM+4*(j&1)+3}], v0 offset:{j*64}"); ds.append(j)
    nb = min(WIN, NH)
    for j in range(nb): bload(j)
    if wo: k("s_setprio 0")
    for j in range(3):
        ard(j, 0); ard(j, 1)
        if j < 2: mrd(j)
    for j in range(NH):
        lg = (len(ds) - 1 - max(i for i, x in enumerate(ds) if x == j)) if j in ds else None
        k(f"s_waitcnt vmcnt({nb - 1 - j})" + (f" lgkmcnt({lg})" if lg is not None else ""))
        A = AB + 8*(j & 3) if j < JL else AT + 8*(j - JL)
        B = BW + 4*(j % WIN)
        for q in range(2):
            C = "0" if (j == 0 and q == 1) else f"v[{ACC+16*q}:{ACC+16*q+15}]"
            k(f"{MFMA} v[{ACC+16*q}:{ACC+16*q+15}], v[{A+4*q}:{A+4*q+3}], v[{B}:{B+3}], {C}")
            ard(j + 3, q)
        if wo:
            C = "0" if j == 0 else f"v[{AM}:{AM+15}]"
            k(f"{MFMA} v[{AM}:{AM+15}], v[{WM+4*(j&1)}:{WM+4*(j&1)+3}], v[{B}:{B+3}], {C}")
            mrd(j + 2)
        if nb < NH:
            bload(nb); nb += 1
    stamp(k, sb + 1)
    U = 48
    if wo:
        k(f"v_lshl_add_u32 v{R}, v2, 2, s39")
        k(f"v_lshl_add_u32 v{R+1}, v2, 2, s38")
        k.nop(9)
    else:
        k.nop(11)
        k("s_barrier")
    for g in range(4):
        k(f"ds_write_b128 v4, v[{ACC+16+4*g}:{ACC+19+4*g}] offset:{g*1024}")
    if wo:
        k(f"v_add_f32 v{AM}, v{AM}, v{AM+1}")
        k(f"ds_write_b32 v{R}, v{AM}")
        k(f"v_add_f32 v0, v{AM}, v1")
    k("s_waitcnt lgkmcnt(0)")
    k("s_barrier")
    if wo and OPT.get('z_st'): stamp(k, 0)
    if wo: k(f"ds_read_b32 v1, v{R+1}")
    for g in range(4):
        k(f"ds_read_b128 v[{U+4*g}:{U+4*g+3}], v5 offset:{g*1024}")
    P = 64
    for g in range(4):
        k(f"s_waitcnt lgkmcnt({3-g})")
        if wo and g == 0: k("v_add_f32 v0, v0, v1")
        for r in (4*g, 4*g+2):
            k(f"v_pk_add_f32 v[{ACC+r}:{ACC+r+1}], v[{ACC+r}:{ACC+r+1}], v[{U+r}:{U+r+1}]")
        if wo:
            for r in (4*g, 4*g+2):
                k(f"v_pk_add_f32 v[{U+r}:{U+r+1}], v[{ACC+r}:{ACC+r+1}], v[0:1] op_sel_hi:[1,0] neg_lo:[0,1] neg_hi:[0,1]")
            for d in (2*g, 2*g+1):
                k(f"v_cvt_pk_bf16_f32 v{P+d}, v{U+2*d}, v{U+2*d+1}")
            if g & 1:
                pub_store(k, [f"buffer_store_dwordx4 v[{P+2*g-2}:{P+2*g+1}], v3, s[20:23], s41 offen" + (" offset:1024" if g == 3 else "")], 1)
        else:
            for d in (2*g, 2*g+1):
                k(f"v_cvt_pk_bf16_f32 v{P+d}, v{ACC+2*d}, v{ACC+2*d+1}")
    if wo:
        SQ = 72
        k(f"v_dot2_f32_bf16 v{SQ}, v{P}, v{P}, 0")
        k(f"v_dot2_f32_bf16 v{SQ+1}, v{P+1}, v{P+1}, 0")
        for d in range(2, 8):
            k(f"v_dot2_f32_bf16 v{SQ+(d&1)}, v{P+d}, v{P+d}, v{SQ+(d&1)}")
        k("v_lshlrev_b32 v0, 2, v2")
        k.nop(2)
        k(f"v_add_f32 v{SQ}, v{SQ}, v{SQ+1}")
        half_sum(k, SQ, 74, 75)
        k("s_mov_b32 exec_hi, 0")
        pub_store(k, [f"buffer_store_dword v{SQ}, v0, s[20:23], s47 offen"], 1)
        k("s_mov_b64 exec, -1")
        if OPT.get('z_st'): stamp(k, 1)
        for d in range(8):
            k(f"v_cvt_pk_bf16_f32 v{KEEP+d}, v{ACC+2*d}, v{ACC+2*d+1}")
        k("v_lshlrev_b32 v0, 7, v2")
        k("s_waitcnt vmcnt(0)")
        k("s_barrier")
        if OPT.get('rf', 0) & 1:
            k("s_mov_b64 exec, 0xffff")
            k(f"buffer_load_dword v1, v0, s[20:23], s41 offen {ld}")
            k("s_mov_b64 exec, -1")
    else:
        k.nop(2)
        k(f"""
        v_permlane32_swap_b32 v{P}, v{P+2}
        v_permlane32_swap_b32 v{P+1}, v{P+3}
        v_permlane32_swap_b32 v{P+4}, v{P+6}
        v_permlane32_swap_b32 v{P+5}, v{P+7}
        """)
        sto = OPT.get('sto', '')
        if OPT.get('fl', 1):
            k(f"ds_write_b128 v10, v[{P}:{P+3}]")
            k(f"ds_write_b128 v11, v[{P+4}:{P+7}]")
            k("s_waitcnt lgkmcnt(0)")
            k("s_barrier")
            k(f"ds_read_b128 v[{P}:{P+3}], v12")
            k(f"ds_read_b128 v[{P+4}:{P+7}], v12 offset:1024")
            k("s_waitcnt lgkmcnt(1)")
            k(f"buffer_store_dwordx4 v[{P}:{P+3}], v13, s[52:55], s47 offen {sto}")
            k("s_add_u32 s47, s47, 8192")
            k("s_waitcnt lgkmcnt(0)")
            k(f"buffer_store_dwordx4 v[{P+4}:{P+7}], v13, s[52:55], s47 offen {sto}")
        else:
            k.nop(1)
            k(f"buffer_store_dwordx4 v[{P}:{P+3}], v8, s[52:55], s47 offen {sto}")
            k(f"buffer_store_dwordx4 v[{P+4}:{P+7}], v8, s[52:55], s47 offen offset:32 {sto}")

def res_wsetup(k, mode):
    c_ = res_cfg(mode); NKS = c_['NKS']
    k(f"""
    s_sub_u32 s45, s{SW}, 4
    s_lshr_b32 s44, s{SIDX}, 2
    s_lshl_b32 s44, s44, 1
    s_and_b32 s46, s45, 1
    s_add_u32 s44, s44, s46
    s_mul_i32 s44, s44, {NKS}
    s_lshr_b32 s46, s45, 1
    s_mul_i32 s46, s46, {NKS//2}
    s_add_u32 s44, s44, s46
    s_lshl_b32 s44, s44, 10
    s_add_u32 s44, s44, {c_['ASRC']}
    s_lshl_b32 s45, s45, 10
    """)

NWE = 7
JM = 25
def wo_addr(j):
    if j < NWE: return 132096 + j*4096
    j -= NWE
    return (j >> 1)*20480 + 12288 + (j & 1)*4096

def res_wload(k, j0, j1, wo=False):
    for j in range(j0, j1):
        k(f"s_add_u32 s46, s44, {j*1024}")
        dma(k, 3, 20, 46, f"s45, {wo_addr(j) if wo else j*4096}", 0, OPT['ld'])

SLOT4, RING4, NCH4 = 20480, 8, 16
def p4_map(k):
    k(f"""
    s_lshl_b32 s27, s{SXCD}, 1
    s_cmp_ge_u32 s{SIDX}, 15
    s_cselect_b32 s28, 1, 0
    s_add_u32 s27, s27, s28
    s_mul_i32 s28, s28, 15
    s_sub_u32 s28, s{SIDX}, s28
    s_min_u32 s28, s28, 15
    """)

def p4_consumer(k):
    ld = OPT['ld']
    skip, fin = k.label("p4skip"), k.label("p4fin")
    XB = [8, 16]; WB = [24, 36]; ACC = 64; R2 = [0, 4]; STR = 48
    p4_map(k)
    k("s_cmp_eq_u32 s28, 15")
    k(f"s_cbranch_scc1 {skip}")
    k(f"""
    s_and_b32 s29, s{SW}, 1
    s_lshr_b32 s31, s{SW}, 1
    s_lshl_b32 s30, s27, 2
    s_lshl_b32 s33, s29, 1
    s_add_u32 s30, s30, s33
    s_lshl_b32 s33, s29, 12
    s_add_u32 s33, s33, 12288
    v_add_u32 v7, s33, v3
    s_mul_i32 s33, s31, 6144
    v_add_u32 v6, s33, v3
    s_mul_i32 s40, s30, 86
    s_mul_i32 s41, s28, 6
    s_mul_i32 s33, s31, 3
    s_add_u32 s41, s41, s33
    s_add_u32 s40, s40, s41
    s_lshl_b32 s40, s40, 10
    s_add_u32 s40, s40, {ACT}
    s_mov_b32 s47, 0
    s_lshl_b32 s32, s30, 7
    s_add_u32 s32, s32, {ST}
    v_and_b32 v4, 31, v2
    v_lshlrev_b32 v4, 2, v4
    v_lshrrev_b32 v8, 5, v2
    v_lshl_add_u32 v4, v8, 13, v4
    s_mov_b32 s48, 0
    """)
    for r in range(96): k(f"v_mov_b32 v{ACC+r}, 0")
    k("s_barrier")
    stamp(k, 9)
    for i in range(8):
        k(f"s_add_u32 s35, s32, {i*16384}")
        k(f"buffer_load_dword v{STR+i}, v4, s[20:23], s35 offen {ld}")
        k(f"buffer_load_dword v{STR+8+i}, v4, s[20:23], s35 offen offset:128 {ld}")
    def wrd(u, b, m):
        return f"ds_read_b128 v[{b+4*m}:{b+4*m+3}], v6 offset:{m*2048 + (u & 1)*1024}"
    def xrd(u, b, t):
        return f"ds_read_b128 v[{b+4*t}:{b+4*t+3}], v7 offset:{t*2048 + (u & 1)*1024}"
    def reads(u):
        return [wrd(u, WB[u & 1], 0), xrd(u, XB[u & 1], 0), xrd(u, XB[u & 1], 1), wrd(u, WB[u & 1], 1), wrd(u, WB[u & 1], 2)]
    k("s_barrier")
    stamp(k, 10)
    for l in reads(0): k(l)
    ml = k.label("p4ml")
    k(".p2align 3")
    k.place(ml)
    for u in range(2):
        if u == 1:
            k(f"s_add_u32 s48, s48, 1")
            k(f"s_and_b32 s48, s48, {RING4-1}")
            k(f"s_cselect_b32 s49, s50, s51")
            k("s_add_u32 s47, s47, 1")
            k("s_barrier")
            k("v_add_u32 v7, s49, v7")
            k("v_add_u32 v6, s49, v6")
            k(f"s_cmp_lt_u32 s47, {NCH4}")
        b, x = WB[u], XB[u]
        nx = reads(u + 1)
        for i in range(6):
            m, t = i >> 1, i & 1
            if i == 0: k("s_waitcnt lgkmcnt(2)")
            if i == 2: k("s_waitcnt lgkmcnt(2)")
            k(f"{MFMA} v[{ACC+16*i}:{ACC+16*i+15}], v[{b+4*m}:{b+4*m+3}], v[{x+4*t}:{x+4*t+3}], v[{ACC+16*i}:{ACC+16*i+15}]")
            if i < 5: k(nx[i])
    k(f"s_cbranch_scc1 {ml}")
    stamp(k, 11)
    k("s_waitcnt vmcnt(0)")
    for t in range(2):
        S = STR + 8*t
        for i in (0, 2, 4, 6): k(f"v_add_f32 v{S+i}, v{S+i}, v{S+i+1}")
        k(f"v_add_f32 v{S}, v{S}, v{S+2}")
        k(f"v_add_f32 v{S+4}, v{S+4}, v{S+6}")
        k(f"v_add_f32 v{S}, v{S}, v{S+4}")
        k(f"v_mov_b32 v{S+1}, v{S}")
    k.nop(1)
    for t in range(2):
        k(f"v_permlane32_swap_b32 v{STR+8*t}, v{STR+8*t+1}")
    for t in range(2):
        S = STR + 8*t
        k(f"v_add_f32 v{S}, v{S}, v{S+1}")
        k(f"v_mov_b32 v{S+1}, {hex(f32(1e-5))}")
        k(f"v_fmac_f32 v{S+1}, {hex(f32(1/512))}, v{S}")
        k(f"v_rcp_f32 v{R2[t]}, v{S+1}")
    k("s_waitcnt lgkmcnt(0)")
    P = 8
    for i in range(6):
        m, t = i >> 1, i & 1
        G = ACC + 16*i
        if t == 0:
            k(f"s_add_u32 s33, s41, {m}")
            k("s_cmp_ge_u32 s33, 86")
            k(f"s_cbranch_scc1 {fin}")
        for r in range(8): k(f"v_max_f32 v{G+r}, 0, v{G+r}")
        for r in range(8, 16, 2):
            k(f"v_pk_mul_f32 v[{G+r}:{G+r+1}], v[{G+r}:{G+r+1}], v[{R2[t]}:{R2[t]+1}] op_sel_hi:[1,0]")
        for r in range(0, 8, 2):
            k(f"v_pk_mul_f32 v[{G+r}:{G+r+1}], v[{G+r}:{G+r+1}], v[{G+8+r}:{G+9+r}]")
        for d in range(4):
            k(f"v_cvt_pk_bf16_f32 v{P+4*i+d}, v{G+2*d}, v{G+2*d+1}")
        k(f"s_add_u32 s35, s40, {t*86*1024 + m*1024}")
        pub_store(k, [f"buffer_store_dwordx4 v[{P+4*i}:{P+4*i+3}], v3, s[20:23], s35 offen"], 2)
    k.place(fin)
    if OPT.get('z_st'): stamp(k, 2)
    if OPT.get('rf', 0) & 2:
        k("v_and_b32 v4, 31, v2")
        k("v_lshlrev_b32 v4, 7, v4")
        k("v_lshrrev_b32 v5, 5, v2")
        k(f"v_mul_u32_u24 v5, {86*1024}, v5")
        k("v_add_u32 v4, v4, v5")
        k("s_waitcnt vmcnt(0)")
        k("s_barrier")
        k("s_mov_b32 exec_lo, 0xffffff")
        k("s_mov_b32 exec_hi, 0xffffff")
        k(f"buffer_load_dword v1, v4, s[20:23], s40 offen {ld}")
        k("s_mov_b64 exec, -1")
        j4 = k.label("p4j")
        k(f"s_branch {j4}")
        k.place(skip)
        k("s_barrier")
        k.place(j4)
    else:
        k("s_waitcnt vmcnt(0)")
        k.place(skip)
        k("s_barrier")

def p4_loader(k):
    ld = OPT['ld']
    D = OPT['depth4']
    skip, join = k.label("p4lskip"), k.label("p4ljoin")
    k("s_barrier")
    res_wsetup(k, 'down')
    p4_map(k)
    k("s_cmp_eq_u32 s28, 15")
    k(f"s_cbranch_scc1 {skip}")
    k(f"""
    s_sub_u32 s29, s{SW}, 4
    s_lshl_b32 s30, s27, 2
    s_add_u32 s30, s30, s29
    s_lshl_b32 s31, s30, 15
    s_add_u32 s31, s31, {HF}
    s_mul_i32 s33, s28, {6*32768}
    s_and_b32 s34, s29, 1
    s_lshl_b32 s34, s34, 10
    s_add_u32 s33, s33, s34
    s_lshr_b32 s35, s29, 1
    s_mul_i32 s37, s35, {3*32768}
    s_add_u32 s33, s33, s37
    s_mul_i32 s35, s35, 6144
    s_add_u32 s34, s34, s35
    s_lshl_b32 s36, s29, 11
    s_cmp_eq_u32 s28, 14
    s_cselect_b32 s39, 0x40000000, 0
    s_lshr_b32 s38, s29, 1
    s_mul_i32 s38, s38, s39
    s_add_u32 s33, s33, s38
    s_sub_u32 s39, s39, s38
    s_add_u32 s39, s39, s33
    """)
    order = []
    def crot(c):
        r = OPT.get('p4rot', 0)
        k(f"s_add_u32 s40, s{(0, 28, SIDX)[r]}, {c}" if r else f"s_mov_b32 s40, {c}")
        k("s_and_b32 s40, s40, 15")
        k("s_lshl_b32 s40, s40, 11")
    def hpart(c):
        if OPT.get('z4b') and c > 0:
            order.append(('h', c)); order.pop(); return
        crot(c)
        k(f"s_add_u32 s35, s31, s40")
        dma(k, 3, 20, 35, f"s36, {(c % RING4)*SLOT4 + 12288}", 0, ld)
        k(f"buffer_load_dwordx4 v3, s[20:23], s35 offen offset:1024 {ld} lds")
        order.extend([('h', c)]*2)
    def wpart(c):
        if OPT.get('z4b') and c > 0: return
        crot(c)
        for t in range(3):
            k(f"s_add_u32 s35, s{33 if t < 2 else 39}, s40")
            k(f"s_add_u32 s35, s35, {WGF + t*32768}")
            dma(k, 3, 20, 35, f"s34, {(c % RING4)*SLOT4 + t*2048}", 0, ld)
        order.extend([('w', c)]*3)
    nw = OPT.get('p4pre', 5)
    for c in range(nw): wpart(c)
    k("s_barrier")
    k("s_barrier")
    while nw < OPT.get('p4pre2', 7): wpart(nw); nw += 1
    k("s_barrier")
    nh = 4
    for c in range(nh): hpart(c)
    for c in range(NCH4 + 1):
        if c < NCH4:
            last = max([i for i, o in enumerate(order) if o[1] == c] or [len(order) - 1])
            k(f"s_waitcnt vmcnt({len(order) - 1 - last})")
        k("s_barrier")
        m = 0
        while nh < NCH4 and nh <= c + D and m < 2:
            assert nh - RING4 <= c - 2
            hpart(nh); nh += 1; m += 1
        m = 0
        while nw < NCH4 and nw - RING4 <= c - 2 and m < 2:
            wpart(nw); nw += 1; m += 1
        if c >= 10:
            assert nh == NCH4 and nw == NCH4
            if not OPT.get('z4a'):
                res_wload(k, 5*(c-10), 5*(c-10) + 5); order.extend([('d', -1)]*5)
    k("s_barrier")
    k(f"s_branch {join}")
    k.place(skip)
    k("s_barrier")
    k("s_barrier")
    k("s_barrier")
    res_wload(k, 0, 35)
    k.place(join)
    res_wload(k, 35, 39)
    k(f"s_waitcnt vmcnt({39 - JM})")
    k("s_barrier")
    k("s_waitcnt vmcnt(0)")
    k("s_barrier")

def clean(k, n):
    m = OPT.get('wb', 0)
    if not (m >> n) & 1: return
    l = k.label("ncl")
    k(f"s_and_b32 s47, s{SIDX}, {OPT.get('wbm', 31)}")
    k(f"s_cmp_lg_u32 s47, 0")
    k(f"s_cbranch_scc1 {l}")
    k("buffer_wbl2 sc1")
    k.place(l)

def poller(k):
    sl = OPT.get('slpl', 2)
    k(f"s_lshl_b32 s43, s{SXCD}, 5")
    k(f"s_add_u32 s43, s43, {F2}")
    k(f"s_lshl_b32 s42, s{SQB}, 5")
    k(f"s_add_u32 s42, s42, s{SHEAD}")
    k(f"s_add_u32 s42, s42, {F2}")
    flag_prep(k, 42)
    k("s_waitcnt lgkmcnt(0)")
    k("s_barrier")
    flag_fire(k, not OPT.get('amap', 1))
    stamp(k, 6); rstamp(k, 4)
    seen = k.label("cwseen")
    k("s_cmp_eq_u32 s55, 1")
    k(f"s_cbranch_scc1 {seen}")
    k(f"s_mov_b32 s42, {CW}")
    poll(k, 42, 32, 8, 0)
    k.place(seen)
    k("s_barrier")
    flag_poll(k, 43, 32, OPT.get('slp2', 2))
    stamp(k, 7)
    k("s_barrier")
    res_map(k)
    k("s_lshr_b32 s43, s27, 1")
    k("s_and_b32 s44, s27, 1")
    k("s_lshl_b32 s45, s28, 1")
    k("s_add_u32 s44, s44, s45")
    k("s_lshl_b32 s42, s43, 4")
    k("s_add_u32 s42, s42, s44")
    k(f"s_add_u32 s42, s42, {F3}")
    flag_prep(k, 42)
    p4_map(k)
    k("s_lshl_b32 s46, s27, 4")
    k(f"s_add_u32 s42, s46, {F3}")
    k("s_barrier")
    k("s_barrier")
    flag_fire(k, True)
    stamp(k, 8)
    idle = k.label("pidle")
    k("s_cmp_eq_u32 s28, 15")
    k(f"s_cbranch_scc1 {idle}")
    flag_poll(k, 42, 16, sl)
    stamp(k, 9); rstamp(k, 5)
    k("s_barrier")
    k("s_add_u32 s42, s46, s28")
    k(f"s_add_u32 s42, s42, {F4}")
    flag_prep(k, 42)
    for i in range(NCH4 + 1): k("s_barrier")
    k("s_barrier")
    flag_fire(k, True)
    stamp(k, 10); rstamp(k, 13)
    j = k.label("pjoin")
    k(f"s_branch {j}")
    k.place(idle)
    k("s_barrier")
    k.place(j)
    k("s_lshl_b32 s42, s43, 4")
    k(f"s_add_u32 s42, s42, {F4}")
    flag_poll(k, 42, 15, sl)
    stamp(k, 11)
    k("s_barrier")
    diag_end(k)

def diag_end(k):
    if not DIAG: return
    k("s_waitcnt vmcnt(0)")
    stamp(k, 14)
    k("s_memrealtime s[94:95]")
    k(f"s_lshl_b32 s40, s2, 4")
    k(f"s_add_u32 s40, s40, s{SW}")
    k(f"s_lshl_b32 s40, s40, 7")
    k(f"s_add_u32 s40, s40, {DIAGB}")
    k("s_waitcnt lgkmcnt(0)")
    for i in range(15):
        k(f"s_sub_u32 s{64+2*i}, s{64+2*i}, s96")
        k(f"v_mov_b32 v{8+i}, s{64+2*i}")
    k("v_mov_b32 v23, s94")
    k("v_mov_b32 v24, s98")
    k("v_mov_b32 v4, 0")
    k("s_mov_b64 exec, 1")
    for i in range(4):
        k(f"buffer_store_dwordx4 v[{8+4*i}:{11+4*i}], v4, s[20:23], s40 offen offset:{16*i}")
    k(f"buffer_store_dword v24, v4, s[20:23], s40 offen offset:64")
    k(f"v_mov_b32 v25, s{SXCD}")
    k(f"buffer_store_dword v25, v4, s[20:23], s40 offen offset:68")
    if OPT.get('dbgout') is not None:
        l = k.label("dbo")
        k(f"s_lshl_b32 s41, s{SW}, 8")
        k(f"s_or_b32 s41, s41, s2")
        k(f"s_cmp_lg_u32 s41, {OPT['dbgout']}")
        k(f"s_cbranch_scc1 {l}")
        k("v_sub_u32 v8, v23, v24")
        for i in range(4):
            k(f"global_store_dwordx4 v4, v[{8+4*i}:{11+4*i}], s[60:61] offset:{4+16*i}")
        k.place(l)

def build(path):
    k = Kern(NAME)
    done, roleL, roleH, p2 = k.label("done"), k.label("L"), k.label("H"), k.label("p2")
    tail = []
    k(f"""
    s_load_dwordx4 s[4:7], s[0:1], 0
    s_load_dwordx4 s[60:63], s[0:1], 64
    s_load_dwordx8 s[8:15], s[0:1], 16
    s_load_dwordx4 s[16:19], s[0:1], 48
    s_cmp_ge_u32 s2, 256
    s_cbranch_scc1 {done}
    """)
    if DIAG:
        k("s_memtime s[96:97]")
        k("s_memrealtime s[98:99]")
    k(f"""
    v_lshrrev_b32 v1, 6, v0
    v_and_b32 v2, 63, v0
    s_and_b32 s{SXCD}, s2, 7
    s_lshr_b32 s{SIDX}, s2, 3
    v_readfirstlane_b32 s{SW}, v1
    v_lshlrev_b32 v3, 4, v2
    s_mov_b32 s50, {SLOT4}
    s_mov_b32 s51, {-(RING4-1)*SLOT4}
    """)
    if OPT.get('dyn', 1) == 2:
        early_role(k)
    p1_map(k)
    sw = OPT.get('swap', 1)
    if sw == 1:
        k(f"s_lshr_b32 s29, s{SW}, 1")
        k(f"s_andn2_b32 s29, 4, s29")
        k(f"s_xor_b32 s{SW}, s{SW}, s29")
    roleC = k.label("C")
    k(f"s_cmp_ge_u32 s{SW}, 8")
    k(f"s_cbranch_scc1 {roleH}")
    k(f"s_cmp_lt_u32 s{SW}, 4")
    k(f"s_cbranch_scc1 {roleC}")
    p1_loader(k)
    k(f"s_branch {p2}")
    k.place(roleH)
    p1_helper(k)
    H2 = k.label("H2")
    k(f"s_branch {H2}")
    k.place(roleC)
    p1_consumer(k)
    k.place(p2)
    p2_compute(k, tail)
    L3 = k.label("L3")
    k(f"s_cmp_ge_u32 s{SW}, 4")
    k(f"s_cbranch_scc1 {L3}")
    res_consumer(k, 'wo', 7)
    if OPT.get('cprio', 1): k(f"s_setprio {OPT.get('cprio', 1)}")
    p4_consumer(k)
    res_consumer(k, 'down', 12)
    diag_end(k)
    k.place(done)
    k("s_endpgm")
    k.place(L3)
    res_wsetup(k, 'wo')
    if OPT.get('woe', 1):
        got = k.label("woe")
        k(f"v_mov_b32 v4, {PROG + 20}")
        k("ds_read_b32 v4, v4")
        res_wload(k, NWE, 16, True)
        k("s_waitcnt lgkmcnt(0)")
        k("v_readfirstlane_b32 s47, v4")
        k.nop(1)
        k("s_cmp_eq_u32 s47, 1")
        k(f"s_cbranch_scc1 {got}")
        res_wload(k, 0, NWE, True)
    else:
        res_wload(k, 0, 16, True)
    k(f"s_and_b32 s45, s45, 1024")
    k(f"s_add_u32 s46, s45, {WBT}")
    dma(k, 3, 20, 46, f"s45, {WBL}", 0, OPT['ld'])
    if OPT.get('woe', 1): k.place(got)
    k("s_waitcnt vmcnt(0)")
    p4_loader(k)
    diag_end(k)
    k("s_endpgm")
    k.place(H2)
    p2_helper(k, done)
    poller(k)
    k("s_endpgm")
    k.place(RLAB[0])
    role_read(k)
    p2_relayout(k)
    for f in tail: f(k)
    k(f".fill (32768 - (. - {NAME}))/4, 4, 0xbf810000")
    hdr = """; Kernarg: 0 A_x, 8 A_wqkv, 16 A_wo, 24 B_x (unused), 32 W_gate, 40 W_up, 48 W_down, 56 out, 64 debug, 72 ws
; pre-LN transformer block in one persistent launch (256 workgroups, one per CU); generated by gen/gen4.py
; @launch grid=(256,1,1) block=(768,1,1) lds=163840
.amdgcn_target "amdgcn-amd-amdhsa--gfx950"
"""
    open(path, "w").write(hdr + k.text(168, 102 if DIAG else 64))

if __name__ == "__main__":
    for a in sys.argv[2:]:
        if "=" in a:
            kk, vv = a.split("=")
            OPT[kk] = int(vv) if vv.lstrip("-").isdigit() else vv.replace("+", " ")
    DIAG = "--diag" in sys.argv
    build(sys.argv[1])
```

```python
import sys, math
from dsl import Kern
from gen import (MB, QF, KF, VF, OF, XF, HF, ACT, WOF, WGF, WUF, WDF, ST, WS_SIZE, f32, ONES, MFMA, srd, half_sum,
                 finish_stats)
CNT = 25*MB
MX = 24*MB + 512*1024
WBT = MX + 65536
DIAGB = 28*MB
C1, C2, C3, C4, CW = 0, 8, 16, 32, 48
CSTRIP = 131072
PROG = CSTRIP
ROLE = 163832
WBL = 160768
KEEP = 160
NAME = "sequential_preLN__softmax_full_mha__glu_gated_reglu__prompt_kernel"
OPT = dict(slp=8, kvd=2, d1=4, prio=1, ld="sc1", st="sc1", nb2=4, depth4=5)
SXCD, SIDX, SW = 24, 25, 26
SHEAD, SQB = 62, 63
MF16 = "v_mfma_f32_16x16x32_bf16"
DIAG = False

def rstamp(k, i):
    if DIAG:
        k(f"s_memrealtime s[{64+2*i}:{65+2*i}]")
        k("s_waitcnt lgkmcnt(0)")
        k(f"s_add_u32 s{64+2*i}, s{64+2*i}, s96")

def stamp(k, i):
    if DIAG: k(f"s_memtime s[{64+2*i}:{65+2*i}]")

def norm4(x, t, rs, nb, smask):
    ops = []
    for d in range(4):
        a, b = t[2*(d & 1)], t[2*(d & 1) + 1]
        ops.append([f"v_lshlrev_b32 v{a}, 16, v{x+d}", f"v_and_b32 v{b}, s{smask}, v{x+d}",
                    f"v_fma_f32 v{a}, v{a}, v{rs}, v{nb}", f"v_fma_f32 v{b}, v{b}, v{rs}, v{nb}",
                    f"v_cvt_pk_bf16_f32 v{x+d}, v{a}, v{b}"])
    o = []
    for p in (0, 2):
        for a, b in zip(ops[p], ops[p+1]): o += [a, b]
    return o

def lane_regs(k):
    k("v_mbcnt_lo_u32_b32 v2, -1, 0")
    k("v_mbcnt_hi_u32_b32 v2, -1, v2")
    k("v_lshlrev_b32 v3, 4, v2")

def dma(k, vo, srd_, so, m0expr, off=0, flag=""):
    k(f"s_add_u32 m0, {m0expr}")
    k.nop(1)
    k(f"buffer_load_dwordx4 v{vo}, s[{srd_}:{srd_+3}], s{so} offen" + (f" offset:{off}" if off else "") + f" {flag} lds")

def row8_sum(k, regs):
    for ctl in ("quad_perm:[1,0,3,2]", "quad_perm:[2,3,0,1]", "row_half_mirror"):
        k.nop(2)
        for r in regs:
            k(f"v_add_f32_dpp v{r}, v{r}, v{r} {ctl} row_mask:0xf bank_mask:0xf")

def arrive(k, sidx, va=8, vb=9):
    k(f"s_lshl_b32 s40, s{sidx}, 8")
    k(f"s_add_u32 s40, s40, {CNT}")
    k("s_mov_b64 exec, 1")
    k(f"v_mov_b32 v{va}, 1")
    k(f"v_mov_b32 v{vb}, 0")
    k(f"buffer_atomic_add v{va}, v{vb}, s[20:23], s40 offen sc1")

FLG = CNT + 65536
F1, F2, F3, F4 = 0, 256, 512, 768
SLOC = 59
def pub_store(k, lines, stage=3):
    if not (OPT.get('loc', 8) >> stage) & 1:
        for l in lines: k(l + " " + OPT['st'])
        return
    a, b = k.label("ps"), k.label("pe")
    k(f"s_cmp_eq_u32 s{SLOC}, 1")
    k(f"s_cbranch_scc1 {a}")
    for l in lines: k(l + " " + OPT['st'])
    k(f"s_branch {b}")
    k.place(a)
    for l in lines: k(l + (" " + OPT.get('locf', '') if stage < 3 else ""))
    k.place(b)

def flag_set(k, sline, val="1", local=False):
    k(f"s_lshl_b32 s40, s{sline}, 7")
    k(f"s_add_u32 s40, s40, {FLG}")
    k("s_mov_b64 exec, 1")
    k(f"v_mov_b32 v8, {val}")
    k("v_mov_b32 v9, 0")
    if local: pub_store(k, ["buffer_store_dword v8, v9, s[20:23], s40 offen"])
    else: k("buffer_store_dword v8, v9, s[20:23], s40 offen sc1")

def flag_prep(k, sline):
    k(f"s_lshl_b32 s39, s{sline}, 7")
    k(f"s_add_u32 s39, s39, {FLG}")
    k("s_mov_b64 exec, 1")
    k("v_mov_b32 v14, 1")
    k("v_mov_b32 v15, 0")

def flag_fire(k, local):
    if local: pub_store(k, ["buffer_store_dword v14, v15, s[20:23], s39 offen"])
    else: k("buffer_store_dword v14, v15, s[20:23], s39 offen sc1")

def flag_poll(k, sline, n=32, slp=None):
    poll(k, sline, 1, n, slp, sh=7, base=FLG)

def poll(k, sidx, target, nlines=1, slp=None, sh=8, base=None):
    lp, out = k.label("poll"), k.label("pollx")
    k(f"s_lshl_b32 s40, s{sidx}, {sh}")
    k(f"s_add_u32 s40, s40, {CNT if base is None else base}")
    k(f"s_mov_b32 exec_lo, {hex((1 << nlines) - 1)}")
    k("s_mov_b32 exec_hi, 0")
    k(f"v_lshlrev_b32 v9, {sh}, v2")
    k("s_mov_b32 s41, 0")
    slp = OPT.get('slp', 2) if slp is None else slp
    k.place(lp)
    k("buffer_load_dword v10, v9, s[20:23], s40 offen sc1")
    k("s_add_u32 s41, s41, 1")
    k("s_cmp_gt_u32 s41, 0x40000")
    k(f"s_cbranch_scc1 {out}")
    k("s_waitcnt vmcnt(0)")
    k(f"v_cmp_gt_u32 vcc, {target}, v10" if target <= 64 else f"v_cmp_gt_u32 vcc, {hex(target)}, v10")
    k(f"s_cmp_eq_u64 vcc, 0")
    k(f"s_cbranch_scc1 {out}")
    if slp: k(f"s_sleep {slp}")
    k(f"s_branch {lp}")
    k.place(out)
    k("s_waitcnt vmcnt(0)")
    k("s_mov_b64 exec, -1")

def touch(k, base_s, nlines, reg=40):
    k("v_lshlrev_b32 v12, 7, v2")
    for i in range((nlines + 63)//64):
        rem = nlines - 64*i
        if rem < 64:
            k(f"s_mov_b32 exec_lo, {hex((1 << min(rem, 32)) - 1)}")
            k(f"s_mov_b32 exec_hi, {hex((1 << max(rem - 32, 0)) - 1)}")
        k(f"s_add_u32 s41, s{base_s}, {i*8192}")
        k(f"buffer_load_dword v{reg+i}, v12, s[20:23], s41 offen sc1")
    k("s_mov_b64 exec, -1")

def cold_touch(k):
    if OPT.get('t1', 1) == 2:
        l8 = k.label("t8")
        srd(k, 44, 4, 2*MB)
        srd(k, 52, 6, 512*3072)
        k(f"""
        s_lshr_b32 s31, s{SXCD}, 1
        s_lshl_b32 s31, s31, 9
        s_lshl_b32 s32, s{SIDX}, 4
        s_add_u32 s31, s31, s32
        s_lshl_b32 s31, s31, 10
        s_lshl_b32 s32, s29, 7
        s_add_u32 s31, s31, s32
        v_lshlrev_b32 v12, 10, v2
        v_mul_u32_u24 v13, 43, v2
        v_lshrrev_b32 v13, 9, v13
        v_mul_u32_u24 v14, 12, v13
        v_sub_u32 v14, v2, v14
        v_lshrrev_b32 v15, 2, v14
        v_and_b32 v14, 3, v14
        v_lshlrev_b32 v14, 7, v14
        v_lshl_add_u32 v14, v15, 10, v14
        v_mul_u32_u24 v13, 3072, v13
        v_add_u32 v13, v13, v14
        s_lshl_b32 s32, s29, 6
        s_lshl_b32 s33, s{SIDX}, 1
        s_add_u32 s32, s32, s33
        s_mul_i32 s32, s32, 3072
        s_and_b32 s33, s{SXCD}, 1
        s_lshl_b32 s33, s33, 9
        s_add_u32 s32, s32, s33
        s_add_u32 s33, s32, {256*3072}
        s_mov_b32 exec_hi, 0
        s_mov_b32 exec_lo, 0xffff
        buffer_load_dword v40, v12, s[44:47], s31 offen
        buffer_load_dword v42, v12, s[44:47], s31 offen offset:512
        """)
        if OPT.get('t1w', 0):
            k("""
            s_mov_b32 exec_lo, 0xffffff
            buffer_load_dword v41, v13, s[52:55], s32 offen
            buffer_load_dword v43, v13, s[52:55], s33 offen
            """)
        k("s_mov_b64 exec, -1")
        return
    if OPT.get('t1', 1):
        l9, l10, l11 = k.label("t9"), k.label("t10"), k.label("t11")
        if OPT.get('t1d', 0): k(f"s_sleep {OPT['t1d']}")
        k(f"s_cmp_lg_u32 s{SW}, 9")
        k(f"s_cbranch_scc1 {l9}")
        srd(k, 44, 4, 2*MB)
        k("s_lshl_b32 s31, s2, 13")
        k("v_lshlrev_b32 v12, 7, v2")
        msk = sum(1 << i for i in range(32) if (i & 7) >= OPT.get('t1x', 0))
        k(f"s_mov_b32 exec_lo, {hex(msk)}")
        k(f"s_mov_b32 exec_hi, {hex(msk)}")
        k("buffer_load_dword v40, v12, s[44:47], s31 offen")
        k("s_mov_b64 exec, -1")
        k.place(l9)
        k(f"s_cmp_lg_u32 s{SW}, 10")
        k(f"s_cbranch_scc1 {l10}")
        k(f"s_cmp_lt_u32 s2, {32*OPT.get('t1x', 0) if OPT.get('t1w', 0) else 256}")
        k(f"s_cbranch_scc1 {l10}")
        srd(k, 44, 6, 512*3072)
        k("s_mul_i32 s31, s2, 6144")
        k("v_lshlrev_b32 v12, 7, v2")
        k("s_mov_b32 exec_hi, 0xffff")
        k("buffer_load_dword v40, v12, s[44:47], s31 offen")
        k("s_mov_b64 exec, -1")
        k.place(l10)

RESTART = NAME + "_restart"
def role_read(k):
    ok = k.label("rok")
    k(f"v_mov_b32 v4, {ROLE}")
    k("ds_read_b32 v4, v4")
    k("s_waitcnt lgkmcnt(0)")
    k(f"v_readfirstlane_b32 s29, v4")
    k.nop(1)
    k("s_cmp_eq_u32 s29, 0")
    k(f"s_cbranch_scc1 {ok}")
    k(f"s_and_b32 s{SXCD}, s2, 7")
    k(f"s_lshr_b32 s{SIDX}, s2, 3")
    k("s_mov_b32 s3, 1")
    k("s_barrier")
    k(f"s_branch {RESTART}")
    k.place(ok)
    if OPT.get('amap', 1):
        k(f"s_lshl_b32 s{SHEAD}, s{SXCD}, 2")
        k(f"s_and_b32 s{SQB}, s{SIDX}, 3")
        k(f"s_add_u32 s{SHEAD}, s{SHEAD}, s{SQB}")
        k(f"s_lshr_b32 s{SQB}, s{SIDX}, 2")
    else:
        k(f"s_mov_b32 s{SHEAD}, s{SIDX}")
        k(f"s_mov_b32 s{SQB}, s{SXCD}")

def p1_map(k):
    if OPT.get('p1m', 0) == 1:
        k(f"s_mov_b32 s27, s{SIDX}")
        k(f"s_mov_b32 s28, s{SXCD}")
        return
    k(f"""
    s_lshr_b32 s27, s{SXCD}, 1
    s_lshl_b32 s27, s27, 3
    s_and_b32 s28, s{SIDX}, 7
    s_add_u32 s27, s27, s28
    s_and_b32 s28, s{SXCD}, 1
    s_lshl_b32 s28, s28, 2
    s_lshr_b32 s29, s{SIDX}, 3
    """)
    if OPT.get('cbrev', 0): k("s_xor_b32 s29, s29, 3")
    k("s_add_u32 s28, s28, s29")
EXC = 65536 + 3*12288
EXS = 65536 + 2*12288

def p1_consumer(k):
    if OPT.get('cprio', 1): k(f"s_setprio {OPT.get('cprio', 1)}")
    SRB, SCB = 27, 28
    VXA, VWA = 12, 16
    WB = [20, 32, 44, 56]; XB = [68, 72, 76, 80]; ACC = 84; CS = 132; SEL = 144
    k(f"""
    v_and_b32 v8, 31, v2
    v_lshrrev_b32 v4, 5, v2
    v_lshrrev_b32 v5, 1, v8
    v_and_b32 v5, 7, v5
    s_and_b32 s34, s{SW}, 1
    s_lshl_b32 s35, s34, 12
    v_lshlrev_b32 v6, 7, v8
    v_add_u32 v6, s35, v6
    """)
    for u in range(4):
        k(f"v_add_u32 v7, {2*u}, v4")
        k(f"v_xor_b32 v7, v7, v5")
        k(f"v_lshl_add_u32 v{VXA+u}, v7, 4, v6")
    k(f"""
    s_lshr_b32 s36, s{SW}, 1
    v_bfe_u32 v5, v2, 2, 2
    v_lshl_add_u32 v6, v4, 3, v5
    v_lshlrev_b32 v6, 7, v6
    v_bfe_u32 v7, v2, 4, 1
    v_lshlrev_b32 v7, 1, v7
    v_bfe_u32 v11, v2, 1, 1
    v_add_u32 v7, v7, v11
    s_lshl_b32 s37, s36, 2
    v_add_u32 v7, s37, v7
    v_lshrrev_b32 v5, 1, v5
    v_lshlrev_b32 v5, 2, v5
    v_xor_b32 v7, v7, v5
    v_lshl_add_u32 v6, v7, 4, v6
    v_and_b32 v7, 1, v2
    v_lshl_add_u32 v{VWA+1}, v7, 3, v6
    v_add_u32 v{VWA+1}, 0x10000, v{VWA+1}
    v_mov_b32 v{VWA}, v{VWA+1}
    v_and_b32 v5, 15, v2
    v_bfe_u32 v7, v2, 4, 1
    v_cmp_eq_u32 vcc, v5, v7
    v_mov_b32 v6, {hex(ONES)}
    s_mov_b32 s47, 0
    v_cndmask_b32 v{SEL}, 0, v6, vcc
    """)
    for i in range(1, 4): k(f"v_mov_b32 v{SEL+i}, v{SEL}")
    for i in range(60): k(f"v_mov_b32 v{ACC+i}, 0")
    k(f"""
    s_lshl_b32 s40, s{SCB}, 2
    s_lshl_b32 s41, s36, 1
    s_add_u32 s40, s40, s41
    s_lshl_b32 s40, s40, 16
    s_lshl_b32 s41, s{SRB}, 1
    s_add_u32 s41, s41, s34
    s_lshl_b32 s41, s41, 10
    s_add_u32 s40, s40, s41
    v_bfe_u32 v9, v2, 4, 1
    v_lshlrev_b32 v9, 16, v9
    v_lshl_add_u32 v9, v4, 8, v9
    v_lshl_add_u32 v9, v5, 4, v9
    s_add_u32 s43, s40, {QF + 65536}
    s_add_u32 s44, s40, {KF}
    s_add_u32 s45, s40, {KF + 65536}
    s_add_u32 s46, s40, {VF}
    s_mov_b32 s48, 0
    """)
    k(f"""
    s_lshl_b32 s35, s34, 1
    s_add_u32 s35, s35, s36
    s_mul_i32 s35, s35, 384
    s_add_u32 s35, s35, {EXC}
    v_lshl_add_u32 v5, v2, 2, s35
    s_mul_i32 s37, s36, 384
    s_add_u32 s37, s37, {EXC}
    v_lshl_add_u32 v6, v4, 4, s37
    v_lshl_add_u32 v7, v8, 2, s37
    s_lshl_b32 s38, s34, 7
    s_add_u32 s38, s38, {EXS}
    v_lshl_add_u32 v10, v8, 2, s38
    v_lshl_add_u32 v11, v4, 4, s38
    """)
    k("s_waitcnt lgkmcnt(0)")
    srd(k, 20, 62, WS_SIZE)
    def xrd(u, b): k(f"ds_read_b128 v[{b}:{b+3}], v{VXA+u}")
    def wrd(u, b, p):
        for r in range(2):
            k(f"ds_read_b64_tr_b16 v[{b+4*p+2*r}:{b+4*p+2*r+1}], v{VWA} offset:{(u >> 1)*12288 + p*4096 + (u & 1)*2048 + r*512}")
    stamp(k, 0)
    k("s_barrier")
    stamp(k, 1)
    for u in range(2):
        xrd(u, XB[u])
        for p in range(3): wrd(u, WB[u], p)
    odd, ep = k.label("p1odd"), k.label("p1ep")
    def M(p, u):
        b, x = WB[u], XB[u]
        if p < 2: k(f"{MFMA} v[{ACC+16*p}:{ACC+16*p+15}], v[{b+4*p}:{b+4*p+3}], v[{x}:{x+3}], v[{ACC+16*p}:{ACC+16*p+15}]")
        else: k(f"{MFMA} v[{ACC+32}:{ACC+47}], v[{x}:{x+3}], v[{b+8}:{b+11}], v[{ACC+32}:{ACC+47}]")
    def CSM(p, u):
        k(f"{MF16} v[{CS+4*p}:{CS+4*p+3}], v[{SEL}:{SEL+3}], v[{WB[u]+4*p}:{WB[u]+4*p+3}], v[{CS+4*p}:{CS+4*p+3}]")
    def step(u, par):
        nu = (u+2) & 3
        k("s_waitcnt lgkmcnt(7)")
        for p in range(3):
            M(p, u)
            if p == 0: xrd(nu, XB[nu])
            wrd(nu, WB[nu], p)
            if (u & 1) == par: CSM(p, u)
    k("s_cmp_eq_u32 s34, 1")
    k(f"s_cbranch_scc1 {odd}")
    for par in range(2):
        if par == 1: k.place(odd)
        ml = k.label("p1ml")
        k(".p2align 3")
        k.place(ml)
        for u in range(4):
            if u == 2:
                k("s_add_u32 s48, s48, 24576")
                k(f"s_cmp_eq_u32 s48, {8*12288}")
                k("s_cselect_b32 s48, 0, s48")
                k(f"v_add_u32 v{VXA}, 8192, v{VXA}")
                k(f"v_add_u32 v{VXA+1}, 8192, v{VXA+1}")
                k("s_barrier")
                k(f"v_add_u32 v{VWA}, s48, v{VWA+1}")
            step(u, par)
            if u == 3:
                for q in range(2, 4): k(f"v_add_u32 v{VXA+q}, 8192, v{VXA+q}")
                k("s_add_u32 s47, s47, 1")
                k("s_cmp_lt_u32 s47, 7")
        k(f"s_cbranch_scc1 {ml}")
        step(0, par); step(1, par)
        k(f"s_waitcnt lgkmcnt({7 if par == 0 else 0})")
        for p in range(3): CSM(p, 2 + par)
        if par == 0: k(f"s_branch {ep}")
    k.place(ep)
    A, RSV, NBV = 20, 44, 60
    BQ = [36, 40, 68, 72]
    RS, NB, CV = 132, 134, 136
    k("s_waitcnt lgkmcnt(0)")
    M(0, 2); M(0, 3)
    k(f"s_mov_b32 s42, {hex(f32(0.25*math.log2(math.e)))}")
    k.nop(3)
    k("s_mov_b64 exec, 0xffff")
    for p in range(3):
        k(f"ds_write2_b32 v5, v{CS+4*p}, v{CS+4*p+1} offset0:{32*p} offset1:{32*p+16}")
    k("s_mov_b64 exec, -1")
    M(1, 2)
    k("s_waitcnt lgkmcnt(0)")
    k("s_barrier")
    k(f"ds_read_b32 v{RS}, v10")
    k(f"ds_read_b32 v{NB}, v10 offset:256")
    M(1, 3)
    def csrd(p):
        for g in range(4):
            k(f"ds_read_b128 v[{A+4*g}:{A+4*g+3}], v6 offset:{p*128 + g*32}")
            k(f"ds_read_b128 v[{BQ[g]}:{BQ[g]+3}], v6 offset:{768 + p*128 + g*32}")
    csrd(0)
    M(2, 2)
    k(f"ds_read_b32 v{CV}, v7 offset:256")
    k(f"ds_read_b32 v{CV+1}, v7 offset:{768 + 256}")
    k("s_waitcnt lgkmcnt(10)")
    k(f"v_mul_f32 v138, s42, v{RS}")
    k(f"v_mul_f32 v140, s42, v{NB}")
    M(2, 3)
    stamp(k, 2)
    st = OPT['st']
    P = 144
    def fold(acc, rs, nb):
        for r in range(0, 16, 2):
            bq = BQ[r >> 2] + (r & 3)
            k(f"v_pk_add_f32 v[{A+r}:{A+r+1}], v[{A+r}:{A+r+1}], v[{bq}:{bq+1}]")
        for r in range(0, 16, 2):
            k(f"v_pk_mul_f32 v[{A+r}:{A+r+1}], v[{A+r}:{A+r+1}], v[{nb}:{nb+1}] op_sel_hi:[1,0]")
        for r in range(0, 16, 2):
            k(f"v_pk_fma_f32 v[{acc+r}:{acc+r+1}], v[{acc+r}:{acc+r+1}], v[{rs}:{rs+1}], v[{A+r}:{A+r+1}] op_sel_hi:[1,0,1]")
    def pack(acc, p, so0, so1, va, off1=0):
        for d in range(8):
            k(f"v_cvt_pk_bf16_f32 v{p+d}, v{acc+2*d}, v{acc+2*d+1}")
            if d == 3: k(f"buffer_store_dwordx4 v[{p}:{p+3}], v{va}, s[20:23], s{so0} offen {st}")
        k(f"buffer_store_dwordx4 v[{p+4}:{p+7}], v{va}, s[20:23], s{so1} offen" + (f" offset:{off1}" if off1 else "") + f" {st}")
    k("s_waitcnt lgkmcnt(2)")
    fold(ACC, 138, 140)
    csrd(1)
    for g in range(4):
        k(f"ds_read_b128 v[{RSV+4*g}:{RSV+4*g+3}], v11 offset:{g*32}")
    pack(ACC, P, 40, 43, 3)
    k("s_waitcnt lgkmcnt(4)")
    fold(ACC+16, RS, NB)
    for g in range(4):
        k(f"ds_read_b128 v[{NBV+4*g}:{NBV+4*g+3}], v11 offset:{256 + g*32}")
    pack(ACC+16, P+8, 44, 45, 3)
    k(f"v_add_f32 v{CV}, v{CV}, v{CV+1}")
    k("s_waitcnt lgkmcnt(0)")
    for r in range(0, 16, 2):
        k(f"v_pk_mul_f32 v[{NBV+r}:{NBV+r+1}], v[{NBV+r}:{NBV+r+1}], v[{CV}:{CV+1}] op_sel_hi:[1,0]")
    for r in range(0, 16, 2):
        k(f"v_pk_fma_f32 v[{ACC+32+r}:{ACC+33+r}], v[{ACC+32+r}:{ACC+33+r}], v[{RSV+r}:{RSV+r+1}], v[{NBV+r}:{NBV+r+1}]")
    pack(ACC+32, P+16, 46, 46, 9, 512)
    stamp(k, 3)
    k("s_waitcnt vmcnt(0)")
    k("s_barrier")
    role_read(k)
    k("s_barrier")

def relayout(k):
    st = OPT['st']
    PRE = [16, 44, 80]
    k(f"""
    v_and_b32 v6, 31, v2
    v_lshrrev_b32 v7, 5, v2
    v_lshlrev_b32 v12, 10, v6
    v_lshl_add_u32 v12, v7, 3, v12
    v_mul_u32_u24 v13, {4*2752}, v7
    v_lshl_add_u32 v13, v6, 1, v13
    v_lshlrev_b32 v14, 12, v7
    v_lshl_add_u32 v14, v6, 1, v14
    s_lshl_b32 s42, s2, 3
    s_mul_i32 s43, s29, 3
    s_add_u32 s42, s42, s43
    """)
    def wload(reg, voffreg, soffreg, pitch):
        for j in range(8):
            row = 8*(j >> 2) + (j & 3)
            k(f"s_add_u32 s49, s{soffreg}, {row*pitch}")
            k(f"buffer_load_ushort v{reg+j}, v{voffreg}, s[44:47], s49 offen")
    def item_loads(i):
        P_, D0 = PRE[i], (37, 52, 32)[i]
        k(f"s_add_u32 s{D0+2}, s42, {i}")
        if i == 2:
            k("s_cmp_eq_u32 s29, 2")
            k(f"s_cselect_b32 s{D0+2}, 0xfff, s{D0+2}")
        G = D0 + 2
        srd(k, 44, 4, 2*MB)
        k(f"""
        s_lshr_b32 s43, s{G}, 5
        s_lshl_b32 s43, s43, 15
        s_and_b32 s48, s{G}, 31
        s_lshl_b32 s48, s48, 5
        s_add_u32 s43, s43, s48
        buffer_load_dwordx2 v[{P_}:{P_+1}], v12, s[44:47], s43 offen
        buffer_load_dwordx2 v[{P_+2}:{P_+3}], v12, s[44:47], s43 offen offset:16
        s_mov_b32 s50, {(2**32 + 42)//43}
        s_mul_hi_u32 s51, s{G}, s50
        s_mul_i32 s58, s51, 43
        s_sub_u32 s58, s{G}, s58
        s_mul_i32 s59, s51, {16*2752}
        s_lshl_b32 s48, s58, 6
        s_add_u32 s59, s59, s48
        s_lshl_b32 s{D0}, s58, 6
        s_add_u32 s{D0}, s{D0}, s51
        s_lshl_b32 s{D0}, s{D0}, 10
        s_cmp_lt_u32 s{G}, 1376
        s_cselect_b32 s50, {512*2752}, 0
        s_mov_b32 s44, s12
        s_and_b32 s45, s13, 0xffff
        s_mov_b32 s46, s50
        """)
        wload(P_+4, 13, 59, 2752)
        k("s_mov_b32 s44, s14")
        k("s_and_b32 s45, s15, 0xffff")
        wload(P_+12, 13, 59, 2752)
        k(f"""
        s_sub_u32 s48, s{G}, 1376
        s_cmp_lt_u32 s{G}, 1376
        s_cselect_b32 s48, s{G}, s48
        s_cselect_b32 s44, s16, s8
        s_cselect_b32 s45, s17, s9
        s_cselect_b32 s46, {1376*1024}, 0
        s_cselect_b32 s50, 86, 32
        s_cselect_b32 s43, {WDF - WOF}, 0
        s_and_b32 s45, s45, 0xffff
        s_sub_u32 s51, s{G}, 1376
        s_cmp_lt_u32 s51, 512
        s_cselect_b32 s46, {512*1024}, s46
        s_and_b32 s58, s48, 15
        s_lshr_b32 s51, s48, 4
        s_lshl_b32 s59, s51, 14
        s_lshl_b32 s48, s58, 6
        s_add_u32 s59, s59, s48
        s_mul_i32 s{D0+1}, s58, s50
        s_add_u32 s{D0+1}, s{D0+1}, s51
        s_lshl_b32 s{D0+1}, s{D0+1}, 10
        s_add_u32 s{D0+1}, s{D0+1}, s43
        """)
        wload(P_+20, 14, 59, 1024)
    def pack_store(reg, dstreg, base):
        for d in range(4):
            k(f"v_lshl_or_b32 v{reg+d}, v{reg+2*d+1}, 16, v{reg+2*d}")
        k(f"s_add_u32 s49, s{dstreg}, {base}")
        k(f"buffer_store_dwordx4 v[{reg}:{reg+3}], v3, s[20:23], s49 offen {st}")
    def item_stores(i):
        P_, D0 = PRE[i], (37, 52, 32)[i]
        G = D0 + 2
        l1, l2 = k.label("is1"), k.label("is2")
        if i == 2:
            k("s_cmp_eq_u32 s29, 2")
            k(f"s_cbranch_scc1 {l2}")
        k(f"s_lshl_b32 s43, s{G}, 10")
        k(f"s_add_u32 s43, s43, {XF}")
        k(f"buffer_store_dwordx4 v[{P_}:{P_+3}], v3, s[20:23], s43 offen {st}")
        k(f"s_cmp_lt_u32 s{G}, 1376")
        k(f"s_cbranch_scc0 {l1}")
        for reg in (P_+4, P_+12):
            for d in range(4):
                k(f"v_lshl_or_b32 v{reg+d}, v{reg+2*d+1}, 16, v{reg+2*d}")
        k.nop(2)
        for d in range(4):
            k(f"v_permlane16_swap_b32 v{P_+4+d}, v{P_+12+d}")
        k(f"s_add_u32 s49, s{D0}, {WGF}")
        k(f"buffer_store_dwordx4 v[{P_+4}:{P_+7}], v3, s[20:23], s49 offen {st}")
        k(f"s_add_u32 s49, s{D0}, {WGF + 32768}")
        k(f"buffer_store_dwordx4 v[{P_+12}:{P_+15}], v3, s[20:23], s49 offen {st}")
        k.place(l1)
        k(f"s_cmp_lt_u32 s{G}, 1888")
        k(f"s_cbranch_scc0 {l2}")
        pack_store(P_+20, D0+1, WOF)
        k.place(l2)
    return item_loads, item_stores

def p1_loader(k):
    SRB, SCB = 27, 28
    VXE, VXO, VW = 8, 9, 10
    k(f"""
    s_sub_u32 s29, s{SW}, 4
    v_lshrrev_b32 v11, 3, v2
    v_and_b32 v4, 7, v2
    v_lshrrev_b32 v5, 4, v2
    v_xor_b32 v6, v4, v5
    v_lshlrev_b32 v6, 4, v6
    s_lshl_b32 s35, s29, 4
    v_add_u32 v7, s35, v11
    v_lshlrev_b32 v12, 10, v7
    v_add_u32 v{VXE}, v12, v6
    v_xor_b32 v6, 64, v6
    v_add_u32 v{VXO}, v12, v6
    v_add_u32 v{VXO}, 8192, v{VXO}
    s_lshl_b32 s35, s29, 3
    v_add_u32 v7, s35, v11
    v_and_b32 v5, 1, v5
    v_lshlrev_b32 v5, 2, v5
    v_xor_b32 v5, v4, v5
    v_lshlrev_b32 v5, 4, v5
    v_mul_u32_u24 v7, 3072, v7
    v_add_u32 v{VW}, v7, v5
    s_lshl_b32 s31, s29, 10
    s_lshl_b32 s36, s29, 11
    s_lshl_b32 s30, s{SRB}, 16
    s_lshl_b32 s32, s{SCB}, 7
    """)
    if OPT.get('z_mix'):
        for p, d in ((1, 3), (2, 5)):
            k(f"s_add_u32 s{37+p}, s{SCB}, {d}")
            k(f"s_and_b32 s{37+p}, s{37+p}, 7")
            k(f"s_sub_u32 s{37+p}, s{37+p}, s{SCB}")
            k(f"s_lshl_b32 s{37+p}, s{37+p}, 7")
    k("s_mov_b32 s54, 0x200000")
    k("s_mov_b32 s55, 0x20000")
    k(f"s_mov_b32 s58, {512*3072}")
    k("s_mov_b32 s59, 0x20000")
    k("s_waitcnt lgkmcnt(0)")
    k("s_mov_b32 s52, s4")
    k("s_and_b32 s53, s5, 0xffff")
    k("s_mov_b32 s56, s6")
    k("s_and_b32 s57, s7, 0xffff")
    n = lambda c: 3 + (0 if c & 1 else 2)
    def issue(c):
        if OPT.get('z_nodma1') and c > 2: return
        rot = OPT.get('krot', 1)
        if not c & 1:
            if rot:
                k(f"s_add_u32 s37, s{(0, SRB, SCB, SRB)[rot]}, {c//2}")
                if rot == 3: k(f"s_add_u32 s37, s37, s{SCB}")
                k("s_and_b32 s37, s37, 7")
                k("s_lshl_b32 s33, s37, 7")
                k("s_add_u32 s33, s33, s30")
                k(f"s_mul_i32 s37, s37, {64*3072}")
                k("s_add_u32 s37, s37, s32")
            else:
                k(f"s_add_u32 s33, s30, {(c//2)*128}")
                k(f"s_add_u32 s37, s32, {(c//2)*64*3072}")
            for o in range(2):
                dma(k, VXE if o == 0 else VXO, 52, 33, f"s36, {(c//2)*8192 + o*1024}", 0, OPT.get('xf', ''))
        for p in range(3):
            k(f"s_add_u32 s33, s37, {(c & 1)*32*3072 + p*1024}")
            if OPT.get('z_mix') and p: k(f"s_add_u32 s33, s33, s{37+p}")
            dma(k, VW, 56, 33, f"s31, {65536 + (c % 8)*12288 + p*4096}", 0, OPT.get('wf', ''))
    issued = OPT.get('d1', 4)
    for c in range(issued): issue(c)
    srd(k, 20, 62, WS_SIZE)
    for P in range(8):
        k(f"s_waitcnt vmcnt({sum(n(j) for j in range(2*P+2, issued))})")
        k("s_barrier")
        m = 0
        while issued < 16 and issued - 8 <= 2*P - 3 and m < 4:
            issue(issued); issued += 1; m += 1
    k("s_barrier")
    k("s_barrier")
    role_read(k)
    k("s_barrier")

RLAB = [None]
def p1_helper(k):
    RLAB[0] = k.label('RL')
    k(f"s_setprio {OPT.get('hprio', 3)}")
    k("s_waitcnt lgkmcnt(0)")
    srd(k, 20, 62, WS_SIZE)
    X, SQ, SX, T, RS, NB = 16, 24, 28, 32, 36, 38
    init_done = k.label("initd")
    k(f"""
    s_lshl_b32 s57, s3, 8
    s_or_b32 s57, s57, s{SW}
    s_cmp_lg_u32 s57, 8
    s_cbranch_scc1 {init_done}
    s_lshl_b32 s30, s2, 7
    s_add_u32 s30, s30, {FLG}
    v_lshl_add_u32 v4, v2, 15, s30
    s_and_b32 s30, s2, 7
    s_lshl_b32 s30, s30, 8
    s_add_u32 s30, s30, {CNT + CW*256}
    v_mov_b32 v5, 0
    v_writelane_b32 v4, s30, 4
    s_mov_b64 exec, 31
    buffer_store_dword v5, v4, s[20:23], 0 offen sc1
    s_mov_b64 exec, -1
    """)
    k.place(init_done)
    def mark(second):
        l = k.label("mk")
        k("s_cmp_lg_u32 s57, 8")
        k(f"s_cbranch_scc1 {l}")
        if second:
            k("s_and_b32 s30, s2, 7")
            k("s_lshl_b32 s30, s30, 5")
            k("s_mov_b32 s31, 1")
        else:
            k(f"s_lshl_b32 s30, s{SXCD}, 5")
            k(f"s_lshl_b32 s31, 1, s{SIDX}")
        k("s_mov_b64 exec, 1")
        k("v_mov_b32 v45, s30")
        k("v_mov_b32 v46, s31")
        k("s_waitcnt vmcnt(0)")
        k("global_atomic_add v45, v46, s[60:61] offset:20 sc1" if second else "global_atomic_or v45, v46, s[60:61] offset:16 sc1")
        k("s_mov_b64 exec, -1")
        k.place(l)
    k(f"""
    s_sub_u32 s29, s{SW}, 8
    s_lshl_b32 s30, s29, 10
    v_add_u32 v4, s30, v3
    s_mov_b32 s39, {hex(ONES)}
    """)
    if OPT.get('t1at', 0) < 0: cold_touch(k)
    if OPT.get('t7'):
        l7 = k.label("t7")
        k(f"s_cmp_lg_u32 s{SW}, 10")
        k(f"s_cbranch_scc1 {l7}")
        srd(k, 44, 6, 512*3072)
        k("s_lshr_b32 s31, s2, 3")
        k(f"s_mul_i32 s31, s31, {48*1024}")
        k("v_lshlrev_b32 v12, 10, v2")
        k("s_mov_b32 exec_hi, 0xffff")
        k("buffer_load_dword v40, v12, s[44:47], s31 offen offset:384")
        if OPT['t7'] > 1: k("buffer_load_dword v41, v12, s[44:47], s31 offen offset:896")
        k("s_mov_b64 exec, -1")
        k.place(l7)
    for c in range(8):
        k("s_barrier")
        if c == OPT.get('tkat', 2): mark(False)
        if c == OPT.get('t1at', 0): cold_touch(k)
        if c == OPT.get('t6at', 99):
            l6 = k.label("t6")
            k(f"s_cmp_eq_u32 s{SW}, 8")
            k(f"s_cbranch_scc1 {l6}")
            k(f"s_sub_u32 s42, s{SW}, 9")
            k(f"s_lshl_b32 s42, s42, 21")
            k("s_lshl_b32 s43, s2, 13")
            k("s_add_u32 s42, s42, s43")
            touch(k, 42, 64, 47)
            k.place(l6)
        if c == OPT.get('tcat', 7):
            l11 = k.label("t11b")
            k(f"s_cmp_lg_u32 s{SW}, 11")
            k(f"s_cbranch_scc1 {l11}")
            if True:
                here = k.label("here")
                k("s_getpc_b64 s[44:45]")
                k.place(here)
                k(f"s_sub_u32 s44, s44, {here}-{NAME}")
                k("s_subb_u32 s45, s45, 0")
                k("v_lshlrev_b32 v12, 7, v2")
                for i in range(4):
                    k(f"global_load_dword v{40+i}, v12, s[44:45]")
                    if i < 3: k("v_add_u32 v12, 8192, v12")
            k.place(l11)

        if c < 8 and not (OPT.get('z_nostat') and c > 0):
            cc = c
            k(f"ds_read_b128 v[{X}:{X+3}], v4 offset:{cc*8192}")
            k(f"ds_read_b128 v[{X+4}:{X+7}], v4 offset:{cc*8192 + 4096}")
            for hf in range(2):
                k(f"s_waitcnt lgkmcnt({1-hf})")
                for d in range(4):
                    r = X + 4*hf + d
                    q, sx = SQ + 2*hf + (d & 1), SX + 2*hf + (d & 1)
                    first = (cc == 0 and d < 2)
                    k(f"v_dot2_f32_bf16 v{q}, v{r}, v{r}, {'0' if first else 'v%d' % q}")
                    k(f"v_dot2_f32_bf16 v{sx}, v{r}, s39, {'0' if first else 'v%d' % sx}")
        if c == 7:
            k.nop(3)
            k(f"v_add_f32 v{SQ}, v{SQ}, v{SQ+1}")
            k(f"v_add_f32 v{SQ+2}, v{SQ+2}, v{SQ+3}")
            k(f"v_add_f32 v{SX}, v{SX}, v{SX+1}")
            k(f"v_add_f32 v{SX+2}, v{SX+2}, v{SX+3}")
            row8_sum(k, [SQ, SQ+2, SX, SX+2])
        if c == 7:
            for hf in range(2):
                finish_stats(k, SX + 2*hf, SQ + 2*hf, RS + hf, NB + hf, T, T+1)
            k(f"""
            v_lshrrev_b32 v5, 3, v2
            s_lshl_b32 s30, s29, 5
            s_add_u32 s30, s30, {EXS}
            v_lshl_add_u32 v5, v5, 2, s30
            ds_write2_b32 v5, v{RS}, v{RS+1} offset0:0 offset1:32
            ds_write2_b32 v5, v{NB}, v{NB+1} offset0:64 offset1:96
            """)
    k("s_waitcnt lgkmcnt(0)")
    k("s_barrier")
    nm = k.label("nomx")
    k(f"""
    s_cmp_lg_u32 s28, 0
    s_cbranch_scc1 {nm}
    s_lshl_b32 s30, s27, 8
    s_lshl_b32 s31, s29, 5
    s_add_u32 s30, s30, s31
    s_add_u32 s30, s30, {MX}
    v_lshrrev_b32 v5, 3, v2
    v_lshlrev_b32 v5, 2, v5
    s_mov_b32 exec_lo, 0x01010101
    s_mov_b32 exec_hi, 0x01010101
    buffer_store_dword v{SX}, v5, s[20:23], s30 offen sc1
    buffer_store_dword v{SX+2}, v5, s[20:23], s30 offen offset:128 sc1
    s_mov_b64 exec, -1
    """)
    k.place(nm)
    nw, g, gx, g2 = k.label("nrw"), k.label("gate"), k.label("gatex"), k.label("gate2")
    k("s_mov_b32 s56, 0")
    k(f"s_cmp_lg_u32 s{SW}, 8")
    k(f"s_cbranch_scc1 {nw}")
    k("s_cmp_eq_u32 s3, 1")
    k(f"s_cbranch_scc1 {gx}")
    k("s_mov_b32 s41, 0")
    k("v_lshlrev_b32 v9, 5, v2")
    k("s_mov_b64 exec, 0xff")
    k.place(g)
    k("global_load_dword v10, v9, s[60:61] offset:16 sc1")
    k("s_add_u32 s41, s41, 1")
    k("s_waitcnt vmcnt(0)")
    k("v_cmp_ne_u32 vcc, -1, v10")
    k("s_cmp_eq_u64 vcc, 0")
    k(f"s_cbranch_scc1 {gx}")
    k("s_sleep 8")
    k("s_cmp_lt_u32 s41, 0x4000")
    k(f"s_cbranch_scc1 {g}")
    k("s_mov_b32 s56, 1")
    k.place(gx)
    if OPT.get('z_rec'):
        k("s_mov_b64 exec, 1")
        k("v_mov_b32 v12, 0")
        k("v_mov_b32 v13, s56")
        k("v_mov_b32 v14, s41")
        k("global_atomic_add v12, v13, s[60:61] sc1")
        k("global_atomic_add v12, v14, s[60:61] offset:4 sc1")
    k("s_mov_b64 exec, -1")
    k(f"v_mov_b32 v4, {ROLE}")
    k("v_mov_b32 v5, s56")
    k("ds_write_b32 v4, v5")
    k("s_waitcnt lgkmcnt(0)")
    k.place(nw)
    k(f"s_lshl_b32 s40, s28, 5")
    k(f"s_add_u32 s40, s40, s27")
    k(f"s_lshl_b32 s40, s40, 7")
    k(f"s_add_u32 s40, s40, {FLG}")
    k("v_mov_b32 v8, 1")
    k("v_mov_b32 v9, 0")
    k(f"s_xor_b32 s{SLOC}, s3, 1")
    k("s_waitcnt vmcnt(0)")
    stamp(k, 1)
    k("s_barrier")
    k(f"s_cmp_lg_u32 s{SW}, 8")
    k(f"s_cbranch_scc1 {RLAB[0]}")
    nf = k.label("nofire")
    k("s_cmp_eq_u32 s56, 1")
    k(f"s_cbranch_scc1 {nf}")
    k("s_mov_b64 exec, 1")
    if OPT.get('p1m', 0) == 1: pub_store(k, ["buffer_store_dword v8, v9, s[20:23], s40 offen"])
    else: k("buffer_store_dword v8, v9, s[20:23], s40 offen sc1")
    k("s_mov_b64 exec, -1")
    k.place(nf)
    stamp(k, 0)
    role_read(k)
    k(f"v_mov_b32 v4, {PROG}")
    k("v_mov_b32 v5, 0")
    for o in (0, 16, 20, 32, 48): k(f"ds_write_b32 v4, v5 offset:{o}")
    k(f"s_lshr_b32 s42, s{SHEAD}, 2")
    k(f"s_lshl_b32 s42, s42, 5")
    flag_poll(k, 42)
    stamp(k, 2); rstamp(k, 3)
    k("s_waitcnt lgkmcnt(0)")
    k("s_barrier")

def rowmax(k, S, dst, t1, t2):
    k(f"v_max3_f32 v{dst}, v{S}, v{S+1}, v{S+2}")
    k(f"v_max3_f32 v{t1}, v{S+3}, v{S+4}, v{S+5}")
    k(f"v_max3_f32 v{dst}, v{dst}, v{S+6}, v{S+7}")
    k(f"v_max3_f32 v{t1}, v{t1}, v{S+8}, v{S+9}")
    k(f"v_max3_f32 v{dst}, v{dst}, v{S+10}, v{S+11}")
    k(f"v_max3_f32 v{t1}, v{t1}, v{S+12}, v{S+13}")
    k(f"v_max3_f32 v{dst}, v{dst}, v{S+14}, v{S+15}")
    k(f"v_max_f32 v{t1}, v{dst}, v{t1}")
    k(f"v_mov_b32 v{t2}, v{t1}")
    k.nop(2)
    k(f"v_permlane32_swap_b32 v{t1}, v{t2}")
    k.nop(1)
    k(f"v_max_f32 v{dst}, v{t1}, v{t2}")

def p2_compute(k, tail):
    Q = 8; KB = [12, 16]; V1 = [20, 28]; V2 = [24, 32]; P = 36; SS = [48, 64]; CN = 80; O = 96
    VKA, VVA, VINC = 4, 5, 47
    PRG, VPR = 112, 6
    chk, spin = k.label("chk"), k.label("spin")
    def spinf(k):
        k.place(spin)
        k("s_sleep 1")
        k(f"ds_read_b32 v{PRG}, v{VPR}")
        k("s_waitcnt lgkmcnt(0)")
        k(f"s_branch {chk}")
    tail.append(spinf)
    k(f"""
    s_lshl_b32 s30, s{SQB}, 3
    s_add_u32 s30, s30, s{SW}
    s_lshl_b32 s31, s30, 10
    s_lshl_b32 s29, s{SHEAD}, 16
    s_add_u32 s31, s31, s29
    buffer_load_dwordx4 v[{Q}:{Q+3}], v3, s[20:23], s31 offen {OPT['ld']}
    v_mov_b32 v{VKA}, v3
    v_lshrrev_b32 v6, 5, v2
    v_lshlrev_b32 v6, 8, v6
    v_and_b32 v7, 15, v2
    v_lshl_add_u32 v{VVA}, v7, 4, v6
    v_add_u32 v{VVA}, 0x10000, v{VVA}
    v_and_b32 v6, 27, v2
    v_mov_b32 v7, {hex(ONES)}
    v_cmp_eq_u32 vcc, 16, v6
    s_mov_b32 s36, 0xffff
    s_mov_b32 s37, 0xffff
    v_cndmask_b32 v7, 0, v7, vcc
    s_lshl_b32 s42, s30, 15
    s_lshl_b32 s41, s{SHEAD}, 10
    s_add_u32 s42, s42, s41
    s_add_u32 s42, s42, {OF}
    """)
    for r in range(16): k(f"v_mov_b32 v{V1[0]+r}, v7")
    k(f"v_mov_b32 v{VPR}, {PROG}")
    for r in range(8): k(f"v_mov_b32 v{P+r}, 0")
    for r in range(16): k(f"v_mov_b32 v{O+r}, 0")
    def vread(kk, buf, off):
        kk("s_mov_b64 exec, s[36:37]")
        kk(f"ds_read_b128 v[{V1[buf]}:{V1[buf]+3}], v{VVA} offset:{off}")
        kk(f"ds_read_b128 v[{V2[buf]}:{V2[buf]+3}], v{VVA} offset:{off+512}")
        kk("s_mov_b64 exec, -1")
    stamp(k, 4)
    k("s_barrier")
    stamp(k, 5)
    k(f"ds_read_b128 v[{KB[0]}:{KB[0]+3}], v{VKA}")
    k(f"ds_read_b128 v[{KB[1]}:{KB[1]+3}], v{VKA} offset:1024")
    vread(k, 0, 0)
    k("s_waitcnt vmcnt(0) lgkmcnt(3)")
    k(f"{MFMA} v[{SS[0]}:{SS[0]+15}], v[{KB[0]}:{KB[0]+3}], v[{Q}:{Q+3}], 0")
    k.nop(12)
    rowmax(k, SS[0], 44, 45, 46)
    for r in range(16): k(f"v_sub_f32 v{CN+r}, 0, v44")
    k.nop(2)
    k(f"{MFMA} v[{SS[0]}:{SS[0]+15}], v[{KB[0]}:{KB[0]+3}], v[{Q}:{Q+3}], v[{CN}:{CN+15}]")
    k("s_mov_b32 s38, 0")
    k.nop(10)
    loop = k.label("loop")
    k(".p2align 6")
    k.place(loop)
    pr = OPT['prio']
    for t in range(8):
        cur, nx = SS[t & 1], SS[(t+1) & 1]
        e = lambda i: k(f"v_exp_f32 v{cur+i}, v{cur+i}")
        c = lambda i: k(f"v_cvt_pk_bf16_f32 v{P+i}, v{cur+2*i}, v{cur+2*i+1}")
        k("s_waitcnt lgkmcnt(0)")
        if t == 6:
            k.place(chk)
            k(f"v_cmp_ge_u32 vcc, s38, v{PRG}")
            k("s_cmp_lg_u64 vcc, 0")
            k(f"s_cbranch_scc1 {spin}")
        kb = KB[(t+1) & 1]
        pb = (t+1) & 1
        sp = (lambda n: k(f"s_setprio {n}")) if pr else (lambda n: None)
        k(f"{MFMA} v[{nx}:{nx+15}], v[{kb}:{kb+3}], v[{Q}:{Q+3}], v[{CN}:{CN+15}]")
        sp(0)
        k(f"ds_read_b128 v[{KB[t&1]}:{KB[t&1]+3}], v{VKA} offset:{(t+2)*1024}")
        e(0); e(1)
        k(f"{MFMA} v[{O}:{O+15}], v[{V2[pb]}:{V2[pb]+3}], v[{P+4}:{P+7}], v[{O}:{O+15}]")
        vread(k, pb, (t+1)*1024)
        if t == 5: k(f"ds_read_b32 v{PRG}, v{VPR}")
        e(2); e(3); sp(1); c(0); e(4); e(5); c(1); e(6); e(7); sp(2); c(2); e(8); e(9); c(3); e(10); e(11)
        k(f"{MFMA} v[{O}:{O+15}], v[{V1[t&1]}:{V1[t&1]+3}], v[{P}:{P+3}], v[{O}:{O+15}]")
        c(4); e(12); e(13); sp(3); c(5); e(14); e(15); c(6)
        if t == 7:
            k(f"v_add_u32 v{VKA}, 8192, v{VKA}")
            k(f"v_add_u32 v{VVA}, 8192, v{VVA}")
            k("s_add_u32 s38, s38, 1")
            k(f"v_mov_b32 v{PRG}, s38")
            k(f"ds_write_b32 v{VPR}, v{PRG} offset:32")
            k("s_cmp_lt_u32 s38, 8")
        c(7)
    k(f"s_cbranch_scc1 {loop}")
    k("s_setprio 0")
    stamp(k, 6)
    k.nop(1)
    k(f"{MFMA} v[{O}:{O+15}], v[{V2[1]}:{V2[1]+3}], v[{P+4}:{P+7}], v[{O}:{O+15}]")
    if OPT.get('loc', 8) & 7:
        k(f"ds_read_b32 v{PRG}, v{VPR} offset:16")
        k("s_waitcnt lgkmcnt(0)")
        k(f"v_readfirstlane_b32 s{SLOC}, v{PRG}")
        k.nop(11)
    else:
        k("s_waitcnt lgkmcnt(0)")
        k.nop(11)
    fb, fin = k.label("fb"), k.label("fin")
    def finish(k):
        k(f"v_rcp_f32 v44, v{O+8}")
        k.nop(1)
        for r in range(8): k(f"v_mul_f32 v{SS[1]+r}, v{O+r}, v44")
        for r in range(4): k(f"v_cvt_pk_bf16_f32 v{P+r}, v{SS[1]+2*r}, v{SS[1]+2*r+1}")
        pub_store(k, [f"buffer_store_dwordx4 v[{P}:{P+3}], v3, s[20:23], s42 offen"], 0)
    finish(k)
    k(f"""
    v_max3_f32 v44, abs(v{O}), abs(v{O+1}), abs(v{O+2})
    v_max3_f32 v45, abs(v{O+3}), abs(v{O+4}), abs(v{O+5})
    v_max3_f32 v44, v44, abs(v{O+6}), abs(v{O+7})
    v_add_f32 v46, v{O}, v{O+1}
    v_max3_f32 v44, v44, v45, v{O+8}
    s_mov_b32 s39, {hex(f32(2.0**100))}
    """)
    for r in range(2, 9): k(f"v_add_f32 v46, v46, v{O+r}")
    k(f"v_and_b32 v46, 0x7fffffff, v46")
    k(f"v_cmp_ngt_f32 vcc, s39, v44")
    k(f"v_cmp_ngt_f32 s[40:41], s39, v46")
    k.nop(1)
    k("s_or_b64 s[40:41], s[40:41], vcc")
    k("s_cmp_lg_u64 s[40:41], 0")
    k(f"s_cbranch_scc1 {fb}")
    if OPT.get('forcefb'):
        k(f"s_bitcmp1_b32 s{SW}, 0")
        k(f"s_cbranch_scc1 {fb}")
    k.place(fin)
    k("s_waitcnt vmcnt(0)")
    k("s_barrier")
    k("s_barrier")
    def fallback(k):
        k.place(fb)
        k(f"v_mov_b32 v{VKA}, v3")
        k(f"v_subrev_u32 v{VVA}, 0x10000, v{VVA}")
        k(f"v_mov_b32 v7, 0xff7fffff")
        for r in range(16): k(f"v_mov_b32 v{O+r}, 0")
        k("s_mov_b32 s38, 0")
        fl = k.label("fl")
        k.place(fl)
        S = SS[0]
        k(f"ds_read_b128 v[{KB[0]}:{KB[0]+3}], v{VKA}")
        vread(k, 0, 0)
        k("s_waitcnt lgkmcnt(0)")
        k(f"{MFMA} v[{S}:{S+15}], v[{KB[0]}:{KB[0]+3}], v[{Q}:{Q+3}], 0")
        k.nop(14)
        rowmax(k, S, 44, 45, 46)
        k("v_max_f32 v44, v44, v7")
        k("v_sub_f32 v45, v7, v44")
        k("v_exp_f32 v45, v45")
        k("v_mov_b32 v7, v44")
        for r in range(16): k(f"v_sub_f32 v{S+r}, v{S+r}, v44")
        for r in range(16): k(f"v_mul_f32 v{O+r}, v{O+r}, v45")
        for r in range(16): k(f"v_exp_f32 v{S+r}, v{S+r}")
        k.nop(1)
        for r in range(8): k(f"v_cvt_pk_bf16_f32 v{P+r}, v{S+2*r}, v{S+2*r+1}")
        k.nop(2)
        k(f"{MFMA} v[{O}:{O+15}], v[{V1[0]}:{V1[0]+3}], v[{P}:{P+3}], v[{O}:{O+15}]")
        k(f"{MFMA} v[{O}:{O+15}], v[{V2[0]}:{V2[0]+3}], v[{P+4}:{P+7}], v[{O}:{O+15}]")
        k(f"v_add_u32 v{VKA}, 1024, v{VKA}")
        k(f"v_add_u32 v{VVA}, 1024, v{VVA}")
        k("s_add_u32 s38, s38, 1")
        k("s_cmp_lt_u32 s38, 64")
        k.nop(14)
        k(f"s_cbranch_scc1 {fl}")
        k("s_waitcnt vmcnt(0)")
        finish(k)
        k(f"s_branch {fin}")
    tail.append(fallback)

def p2_relayout(k):
    k(f"""
    s_sub_u32 s29, s{SW}, 9
    """)
    early = OPT.get('rl_early', 0)
    if early < 2:
        k("s_waitcnt lgkmcnt(0)")
        k("s_barrier")
    if early < 1:
        k("s_barrier")
    loads, stores = relayout(k)
    loads(0); loads(1)
    srd(k, 44, 8, 512*1024)
    k("s_and_b32 s35, s29, 1")
    k("s_lshl_b32 s36, s2, 1")
    k("s_add_u32 s35, s35, s36")
    k("s_lshl_b32 s36, s35, 10")
    k("buffer_load_dwordx4 v[72:75], v3, s[44:47], s36 offen")
    if early >= 2:
        k("s_waitcnt lgkmcnt(0)")
        k("s_barrier")
    if early >= 1:
        k("s_barrier")
    k("s_waitcnt vmcnt(27)")
    stores(0)
    loads(2)
    k("s_waitcnt vmcnt(26)")
    stores(1)
    k(f"s_mov_b32 s36, {hex(ONES)}")
    k("v_dot2_f32_bf16 v76, v72, s36, 0")
    for d in range(1, 4): k(f"v_dot2_f32_bf16 v76, v{72+d}, s36, v76")
    k.nop(1)
    for ctl in ("quad_perm:[1,0,3,2]", "quad_perm:[2,3,0,1]", "row_half_mirror", "row_mirror"):
        k.nop(2)
        k(f"v_add_f32_dpp v76, v76, v76 {ctl} row_mask:0xf bank_mask:0xf")
    k.nop(1)
    for i in range(4): k(f"v_readlane_b32 s{48+i}, v76, {16*i}")
    k(f"""
    s_lshr_b32 s36, s35, 4
    s_lshl_b32 s36, s36, 6
    s_bfe_u32 s43, s35, 0x10002
    s_lshl_b32 s43, s43, 4
    s_add_u32 s36, s36, s43
    v_mov_b32 v76, s48
    v_add_f32 v76, s49, v76
    v_add_f32 v76, s50, v76
    v_add_f32 v76, s51, v76
    v_mul_f32 v76, {hex(f32(1/512))}, v76
    s_bfe_u32 s43, s35, 0x10003
    s_lshl_b32 s43, s43, 3
    s_add_u32 s36, s36, s43
    v_cvt_pk_bf16_f32 v77, v76, v76
    s_and_b32 s43, s35, 3
    s_lshl_b32 s43, s43, 1
    s_add_u32 s36, s36, s43
    v_and_b32 v78, 0xffff0000, v77
    v_sub_f32 v78, v76, v78
    s_add_u32 s36, s36, {WBT}
    v_cvt_pk_bf16_f32 v78, v78, v78
    v_mov_b32 v79, 0
    s_mov_b64 exec, 1
    buffer_store_short v77, v79, s[20:23], s36 offen sc1
    buffer_store_short v78, v79, s[20:23], s36 offen offset:32 sc1
    s_mov_b64 exec, -1
    """)
    k("s_waitcnt vmcnt(0)")
    stores(2)
    k("s_waitcnt vmcnt(0)")
    na = k.label("noarr")
    k(f"v_mov_b32 v5, {PROG + 48}")
    k("v_mov_b32 v6, 1")
    k("s_mov_b64 exec, 1")
    k("ds_add_rtn_u32 v7, v5, v6")
    k("s_waitcnt lgkmcnt(0)")
    k("v_readfirstlane_b32 s42, v7")
    k("s_cmp_lg_u32 s42, 2")
    k(f"s_cbranch_scc1 {na}")
    k(f"s_add_u32 s42, s{SXCD}, {CW}")
    arrive(k, 42)
    k.place(na)
    k("s_endpgm")

def p2_helper(k, done):
    ld = OPT['ld']
    k(f"s_lshl_b32 s33, s{SHEAD}, 16")
    def kv(c):
        k(f"s_add_u32 s31, s{SHEAD}, {c}" if OPT.get('kvrot', 0) else f"s_mov_b32 s31, {c}")
        k("s_and_b32 s31, s31, 7")
        k("s_lshl_b32 s31, s31, 13")
        k("s_add_u32 s31, s31, s33")
        for base, l in ((KF, 0), (VF, 65536)):
            for g in range(2):
                k(f"s_add_u32 s34, s31, {base + g*4096}")
                k(f"s_mov_b32 m0, {l + c*8192 + g*4096}")
                k.nop(1)
                for q in range(4):
                    k(f"buffer_load_dwordx4 v3, s[20:23], s34 offen" + (f" offset:{q*1024}" if q else "") + f" {ld} lds")
    kv(0); kv(1)
    k("s_waitcnt vmcnt(16)")
    k("s_barrier")
    issued = 2
    def publish(c):
        k(f"v_mov_b32 v5, {c if c < 7 else 64}")
        k("ds_write_b32 v4, v5")
    while issued < OPT.get('kvd', 3): kv(issued); issued += 1
    for c in range(1, 8):
        k(f"s_waitcnt vmcnt({16*(issued - 1 - c)})")
        publish(c)
        if issued < 8: kv(issued); issued += 1
    stamp(k, 12)
    k("s_setprio 3")
    k(f"s_xor_b32 s{SLOC}, s3, 1")
    m5 = OPT.get('t5', 0)
    if m5:
        k(f"s_lshl_b32 s43, s{SXCD}, 5")
        k(f"s_add_u32 s43, s43, s{SIDX}")
        if m5 & 1:
            k(f"s_mul_i32 s42, s43, {172*128}")
            k(f"s_add_u32 s42, s42, {ACT}")
            touch(k, 42, 172)
        for bit, base in ((2, HF), (4, OF)):
            if m5 & bit:
                k(f"s_lshl_b32 s42, s43, 13")
                k(f"s_add_u32 s42, s42, {base}")
                touch(k, 42, 64)
        if m5 & 8:
            srd(k, 44, 18, 2*MB)
            k("s_lshl_b32 s42, s43, 13")
            k("buffer_load_dword v40, v12, s[44:47], s42 offen")
    k("s_mov_b32 s55, 0")
    if OPT.get('t2', 1):
        again, skip, ok = k.label("t2a"), k.label("t2s"), k.label("t2o")
        k(f"""
        s_mov_b32 s40, {CNT + CW*256}
        s_mov_b32 exec_lo, 0xff
        s_mov_b32 exec_hi, 0
        v_lshlrev_b32 v9, 8, v2
        s_mov_b32 s41, 0
        """)
        k.place(again)
        k(f"s_sleep {OPT.get('slpw', 32)}")
        k("buffer_load_dword v10, v9, s[20:23], s40 offen sc1")
        k("ds_read_b32 v11, v4 offset:32")
        k("s_waitcnt vmcnt(0) lgkmcnt(0)")
        k("v_readfirstlane_b32 s41, v11")
        k("v_cmp_gt_u32 vcc, 32, v10")
        k(f"s_cmp_ge_u32 s41, {OPT.get('t2lim', 6)}")
        k(f"s_cbranch_scc1 {skip}")
        k("s_cmp_lg_u64 vcc, 0")
        k(f"s_cbranch_scc1 {again}")
        k("s_mov_b32 s55, 1")
        k("s_mov_b64 exec, -1")
        if OPT.get('woe', 1):
            k(f"s_lshr_b32 s44, s{SIDX}, 2")
            k(f"s_lshl_b32 s44, s44, 16")
            k(f"s_add_u32 s44, s44, {WOF}")
            for lw in range(4):
                for j in range(NWE):
                    k(f"s_add_u32 s46, s44, {(lw & 1)*32768 + (lw >> 1)*16384 + j*1024}")
                    k(f"s_mov_b32 m0, {wo_addr(j) + lw*1024}")
                    k.nop(1)
                    k(f"buffer_load_dwordx4 v3, s[20:23], s46 offen {ld} lds")
            k(f"s_mov_b32 s46, {WBT}")
            k(f"s_mov_b32 m0, {WBL}")
            k.nop(1)
            k(f"buffer_load_dwordx4 v3, s[20:23], s46 offen {ld} lds")
            k(f"buffer_load_dwordx4 v3, s[20:23], s46 offen offset:1024 {ld} lds")
            k(f"v_mov_b32 v5, 1")
            k("s_waitcnt vmcnt(0)")
            k("ds_write_b32 v4, v5 offset:20")
        for base, tot in [(WOF, 4096), (WGF, 43*256), (WGF + 43*32768, 43*256), (WDF, 43*256)][OPT.get('t2a', 0):OPT.get('t2b', 3)]:
            per = tot // 32
            k(f"s_mul_i32 s42, s{SIDX}, {per*128}")
            k(f"s_add_u32 s42, s42, {base}")
            touch(k, 42, per)
        k.place(skip)
        k("s_mov_b64 exec, -1")

def res_cfg(mode):
    if mode == 'wo':
        return dict(NKS=32, JL=16, WIN=16, BSRC=OF, ASRC=WOF, RES=XF)
    return dict(NKS=86, JL=39, WIN=OPT.get('win5', 12), BSRC=ACT, ASRC=WDF, RES=HF)

def res_map(k):
    k(f"""
    s_lshl_b32 s27, s{SXCD}, 2
    s_and_b32 s28, s{SIDX}, 3
    s_add_u32 s27, s27, s28
    s_lshr_b32 s28, s{SIDX}, 2
    """)

def res_consumer(k, mode, sb):
    c_ = res_cfg(mode); NKS, JL, WIN = c_['NKS'], c_['JL'], c_['WIN']
    NH = NKS // 2
    wo = mode == 'wo'
    SRB, SCB = 27, 28
    ld = OPT['ld']
    R, ACC, AB, AT, AM, WM = 8, 16, 48, 80, 144, 160
    BW = 80 if wo else 112
    res_map(k)
    k(f"""
    s_and_b32 s29, s{SW}, 1
    s_lshl_b32 s30, s{SRB}, 1
    s_add_u32 s30, s30, s29
    s_lshr_b32 s31, s{SW}, 1
    s_lshl_b32 s32, s{SCB}, 1
    s_add_u32 s32, s32, s31
    s_mul_i32 s33, s31, 3072
    v_add_u32 v6, s33, v3
    s_lshl_b32 s33, s31, 10
    s_add_u32 s33, s33, 1024
    v_add_u32 v7, s33, v3
    s_mul_i32 s34, s31, {NH}
    s_mul_i32 s35, s30, {NKS}
    s_add_u32 s35, s35, s34
    s_lshl_b32 s35, s35, 10
    s_add_u32 s35, s35, {c_['BSRC']}
    """)
    if wo:
        k(f"""
        s_lshl_b32 s40, s30, 5
        s_lshl_b32 s41, s32, 1
        s_add_u32 s40, s40, s41
        s_lshl_b32 s40, s40, 10
        s_add_u32 s41, s40, {XF}
        buffer_load_dwordx4 v[{R}:{R+3}], v3, s[20:23], s41 offen {ld}
        buffer_load_dwordx4 v[{R+4}:{R+7}], v3, s[20:23], s41 offen offset:1024 {ld}
        s_add_u32 s41, s40, {HF}
        s_lshl_b32 s47, s32, 13
        s_lshl_b32 s48, s30, 7
        s_add_u32 s47, s47, s48
        s_add_u32 s47, s47, {ST}
        s_add_u32 s48, s48, {MX}
        v_and_b32 v0, 1, v2
        v_lshlrev_b32 v0, 5, v0
        v_lshrrev_b32 v1, 5, v2
        v_lshl_add_u32 v0, v1, 4, v0
        s_lshl_b32 s33, s31, 10
        s_add_u32 s33, s33, {WBL}
        v_add_u32 v0, s33, v0
        """)
    else:
        for q in range(2):
            k(f"s_xor_b32 s36, s32, {q}")
            k(f"s_mul_i32 s36, s36, {NKS}")
            k(f"s_add_u32 s36, s36, s34")
            k(f"s_lshl_b32 s36, s36, 10")
            k(f"s_add_u32 s36, s36, {c_['ASRC'] + JL*1024}")
            for j in range(NH - JL):
                r = AT + 8*j + 4*q
                k(f"buffer_load_dwordx4 v[{r}:{r+3}], v3, s[20:23], s36 offen" + (f" offset:{j*1024}" if j else "") + f" {ld}")
        srd(k, 52, 18, 2*MB)
        k(f"""
        v_and_b32 v8, 31, v2
        v_lshlrev_b32 v8, 10, v8
        v_lshrrev_b32 v9, 5, v2
        v_lshl_add_u32 v8, v9, 4, v8
        s_lshl_b32 s47, s30, 15
        s_lshl_b32 s48, s32, 6
        s_add_u32 s47, s47, s48
        """)
        if OPT.get('fl', 1):
            k(f"""
            s_lshl_b32 s36, s31, 2
            v_add_u32 v10, s36, v9
            v_and_b32 v12, 7, v2
            v_xor_b32 v10, v10, v12
            v_xor_b32 v11, 2, v10
            v_and_b32 v13, 31, v2
            s_lshl_b32 s36, s29, 12
            s_add_u32 s36, s36, 32768
            v_lshl_add_u32 v13, v13, 7, s36
            v_lshl_add_u32 v10, v10, 4, v13
            v_lshl_add_u32 v11, v11, 4, v13
            v_lshrrev_b32 v13, 3, v2
            v_xor_b32 v14, v12, v13
            v_lshlrev_b32 v14, 4, v14
            v_lshl_add_u32 v13, v13, 10, v14
            s_lshl_b32 s36, s{SW}, 11
            s_add_u32 s36, s36, 32768
            v_add_u32 v12, s36, v3
            s_lshl_b32 s47, s{SRB}, 16
            s_lshl_b32 s48, s{SW}, 14
            s_add_u32 s47, s47, s48
            s_lshl_b32 s48, s{SCB}, 7
            s_add_u32 s47, s47, s48
            """)
    RED = 5*20480 if wo else 0
    if wo:
        for v, x in ((4, 2), (5, 0)):
            k(f"s_xor_b32 s36, s{SW}, {x}")
            k(f"s_lshl_b32 s37, s36, 12")
            k(f"s_add_u32 s37, s37, {RED}")
            k(f"v_add_u32 v{v}, s37, v3")
            k(f"s_lshl_b32 s36, s36, 8")
            k(f"s_add_u32 s{38 + (x >> 1)}, s36, {RED + 16384}")
    else:
        k(f"s_xor_b32 s36, s{SW}, 2")
        k(f"s_lshl_b32 s36, s36, 12")
        k(f"v_add_u32 v4, s36, v3")
        k(f"s_lshl_b32 s36, s{SW}, 12")
        k(f"v_add_u32 v5, s36, v3")
    k("s_mov_b32 s45, 0xffff0000")
    RS_ = R if wo else KEEP
    if wo: k("s_waitcnt vmcnt(0)")
    for d in range(8):
        k(f"v_lshlrev_b32 v{ACC+2*d}, 16, v{RS_+d}")
        k(f"v_and_b32 v{ACC+2*d+1}, s45, v{RS_+d}")
    if wo: k("s_setprio 3")
    k("s_barrier")
    stamp(k, sb)
    if wo:
        k("v_and_b32 v1, 31, v2")
        k("v_lshlrev_b32 v1, 2, v1")
        k(f"buffer_load_dword v1, v1, s[20:23], s48 offen {ld}")
    def bload(j):
        if j % 4 == 0: k(f"s_add_u32 s36, s35, {j*1024}")
        r = BW + 4*(j % WIN)
        k(f"buffer_load_dwordx4 v[{r}:{r+3}], v3, s[20:23], s36 offen" + (f" offset:{(j % 4)*1024}" if j % 4 else "") + f" {ld}")
    ds = []; seg = [0]
    def ard(j, q):
        if j < JL:
            if not wo and j == JM and q == 0: k("s_barrier")
            ad = wo_addr(j) if wo else j*4096
            if q == 0 and not (0 <= ad - seg[0] <= 61440):
                k(f"v_add_u32 v6, {ad - seg[0]}, v6")
                k(f"v_add_u32 v7, {ad - seg[0]}, v7")
                seg[0] = ad
            r = AB + 8*(j & 3) + 4*q
            k(f"ds_read_b128 v[{r}:{r+3}], v{6+q} offset:{ad - seg[0]}"); ds.append(j)
    def mrd(j):
        if wo and j < NH:
            k(f"ds_read_b128 v[{WM+4*(j&1)}:{WM+4*(j&1)+3}], v0 offset:{j*64}"); ds.append(j)
    nb = min(WIN, NH)
    for j in range(nb): bload(j)
    if wo: k("s_setprio 0")
    for j in range(3):
        ard(j, 0); ard(j, 1)
        if j < 2: mrd(j)
    for j in range(NH):
        lg = (len(ds) - 1 - max(i for i, x in enumerate(ds) if x == j)) if j in ds else None
        k(f"s_waitcnt vmcnt({nb - 1 - j})" + (f" lgkmcnt({lg})" if lg is not None else ""))
        A = AB + 8*(j & 3) if j < JL else AT + 8*(j - JL)
        B = BW + 4*(j % WIN)
        if wo and j == NH - 1:
            k(f"{MFMA} v[{AM}:{AM+15}], v[{WM+4*(j&1)}:{WM+4*(j&1)+3}], v[{B}:{B+3}], v[{AM}:{AM+15}]")
        for q in ((1, 0) if j == NH - 1 else (0, 1)):
            C = "0" if (j == 0 and q == 1) else f"v[{ACC+16*q}:{ACC+16*q+15}]"
            k(f"{MFMA} v[{ACC+16*q}:{ACC+16*q+15}], v[{A+4*q}:{A+4*q+3}], v[{B}:{B+3}], {C}")
            ard(j + 3, q)
        if wo and j < NH - 1:
            C = "0" if j == 0 else f"v[{AM}:{AM+15}]"
            k(f"{MFMA} v[{AM}:{AM+15}], v[{WM+4*(j&1)}:{WM+4*(j&1)+3}], v[{B}:{B+3}], {C}")
            mrd(j + 2)
        if nb < NH:
            bload(nb); nb += 1
    stamp(k, sb + 1)
    U = 48
    if wo:
        k(f"v_lshl_add_u32 v{R}, v2, 2, s39")
        k(f"v_lshl_add_u32 v{R+1}, v2, 2, s38")
        k.nop(9)
    else:
        k.nop(10)
        k("s_barrier")
    for g in range(4):
        k(f"ds_write_b128 v4, v[{ACC+16+4*g}:{ACC+19+4*g}] offset:{g*1024}")
    if wo:
        k(f"v_add_f32 v{AM}, v{AM}, v{AM+1}")
        k(f"ds_write_b32 v{R}, v{AM}")
        k(f"v_add_f32 v0, v{AM}, v1")
    k("s_waitcnt lgkmcnt(0)")
    k("s_barrier")
    if wo and OPT.get('z_st'): stamp(k, 0)
    if wo: k(f"ds_read_b32 v1, v{R+1}")
    for g in range(4):
        k(f"ds_read_b128 v[{U+4*g}:{U+4*g+3}], v5 offset:{g*1024}")
    P = 64
    for g in range(4):
        k(f"s_waitcnt lgkmcnt({3-g})")
        if wo and g == 0: k("v_add_f32 v0, v0, v1")
        for r in (4*g, 4*g+2):
            k(f"v_pk_add_f32 v[{ACC+r}:{ACC+r+1}], v[{ACC+r}:{ACC+r+1}], v[{U+r}:{U+r+1}]")
        if wo:
            for r in (4*g, 4*g+2):
                k(f"v_pk_add_f32 v[{U+r}:{U+r+1}], v[{ACC+r}:{ACC+r+1}], v[0:1] op_sel_hi:[1,0] neg_lo:[0,1] neg_hi:[0,1]")
            for d in (2*g, 2*g+1):
                k(f"v_cvt_pk_bf16_f32 v{P+d}, v{U+2*d}, v{U+2*d+1}")
            if g & 1:
                pub_store(k, [f"buffer_store_dwordx4 v[{P+2*g-2}:{P+2*g+1}], v3, s[20:23], s41 offen" + (" offset:1024" if g == 3 else "")], 1)
        else:
            for d in (2*g, 2*g+1):
                k(f"v_cvt_pk_bf16_f32 v{P+d}, v{ACC+2*d}, v{ACC+2*d+1}")
    if wo:
        SQ = 72
        k(f"v_dot2_f32_bf16 v{SQ}, v{P}, v{P}, 0")
        k(f"v_dot2_f32_bf16 v{SQ+1}, v{P+1}, v{P+1}, 0")
        for d in range(2, 8):
            k(f"v_dot2_f32_bf16 v{SQ+(d&1)}, v{P+d}, v{P+d}, v{SQ+(d&1)}")
        k("v_lshlrev_b32 v0, 2, v2")
        k.nop(2)
        k(f"v_add_f32 v{SQ}, v{SQ}, v{SQ+1}")
        half_sum(k, SQ, 74, 75)
        k("s_mov_b32 exec_hi, 0")
        pub_store(k, [f"buffer_store_dword v{SQ}, v0, s[20:23], s47 offen"], 1)
        k("s_mov_b64 exec, -1")
        if OPT.get('z_st'): stamp(k, 1)
        for d in range(8):
            k(f"v_cvt_pk_bf16_f32 v{KEEP+d}, v{ACC+2*d}, v{ACC+2*d+1}")
        k("v_lshlrev_b32 v0, 7, v2")
        k("s_waitcnt vmcnt(0)")
        k("s_barrier")
        if OPT.get('rf', 0) & 1:
            k("s_mov_b64 exec, 0xffff")
            k(f"buffer_load_dword v1, v0, s[20:23], s41 offen {ld}")
            k("s_mov_b64 exec, -1")
    else:
        k.nop(2)
        k(f"""
        v_permlane32_swap_b32 v{P}, v{P+2}
        v_permlane32_swap_b32 v{P+1}, v{P+3}
        v_permlane32_swap_b32 v{P+4}, v{P+6}
        v_permlane32_swap_b32 v{P+5}, v{P+7}
        """)
        sto = OPT.get('sto', '')
        if OPT.get('fl', 1):
            k(f"ds_write_b128 v10, v[{P}:{P+3}]")
            k(f"ds_write_b128 v11, v[{P+4}:{P+7}]")
            k("s_waitcnt lgkmcnt(0)")
            k("s_barrier")
            k(f"ds_read_b128 v[{P}:{P+3}], v12")
            k(f"ds_read_b128 v[{P+4}:{P+7}], v12 offset:1024")
            k("s_waitcnt lgkmcnt(1)")
            k(f"buffer_store_dwordx4 v[{P}:{P+3}], v13, s[52:55], s47 offen {sto}")
            k("s_add_u32 s47, s47, 8192")
            k("s_waitcnt lgkmcnt(0)")
            k(f"buffer_store_dwordx4 v[{P+4}:{P+7}], v13, s[52:55], s47 offen {sto}")
        else:
            k.nop(1)
            k(f"buffer_store_dwordx4 v[{P}:{P+3}], v8, s[52:55], s47 offen {sto}")
            k(f"buffer_store_dwordx4 v[{P+4}:{P+7}], v8, s[52:55], s47 offen offset:32 {sto}")

def res_wsetup(k, mode):
    c_ = res_cfg(mode); NKS = c_['NKS']
    k(f"""
    s_sub_u32 s45, s{SW}, 4
    s_lshr_b32 s44, s{SIDX}, 2
    s_lshl_b32 s44, s44, 1
    s_and_b32 s46, s45, 1
    s_add_u32 s44, s44, s46
    s_mul_i32 s44, s44, {NKS}
    s_lshr_b32 s46, s45, 1
    s_mul_i32 s46, s46, {NKS//2}
    s_add_u32 s44, s44, s46
    s_lshl_b32 s44, s44, 10
    s_add_u32 s44, s44, {c_['ASRC']}
    s_lshl_b32 s45, s45, 10
    """)

NWE = 7
JM = 25
def wo_addr(j):
    if j < NWE: return 132096 + j*4096
    j -= NWE
    return (j >> 1)*20480 + 12288 + (j & 1)*4096

def res_wload(k, j0, j1, wo=False):
    for j in range(j0, j1):
        k(f"s_add_u32 s46, s44, {j*1024}")
        dma(k, 3, 20, 46, f"s45, {wo_addr(j) if wo else j*4096}", 0, OPT['ld'])

SLOT4, RING4, NCH4 = 20480, 8, 16
def p4_map(k):
    k(f"""
    s_lshl_b32 s27, s{SXCD}, 1
    s_cmp_ge_u32 s{SIDX}, 15
    s_cselect_b32 s28, 1, 0
    s_add_u32 s27, s27, s28
    s_mul_i32 s28, s28, 15
    s_sub_u32 s28, s{SIDX}, s28
    s_min_u32 s28, s28, 15
    """)

def p4_consumer(k):
    ld = OPT['ld']
    skip, fin = k.label("p4skip"), k.label("p4fin")
    XB = [8, 16]; WB = [24, 36]; ACC = 64; R2 = [0, 4]; STR = 48
    p4_map(k)
    k("s_cmp_eq_u32 s28, 15")
    k(f"s_cbranch_scc1 {skip}")
    k(f"""
    s_and_b32 s29, s{SW}, 1
    s_lshr_b32 s31, s{SW}, 1
    s_lshl_b32 s30, s27, 2
    s_lshl_b32 s33, s29, 1
    s_add_u32 s30, s30, s33
    s_lshl_b32 s33, s29, 12
    s_add_u32 s33, s33, 12288
    v_add_u32 v7, s33, v3
    s_mul_i32 s33, s31, 6144
    v_add_u32 v6, s33, v3
    s_mul_i32 s40, s30, 86
    s_mul_i32 s41, s28, 6
    s_mul_i32 s33, s31, 3
    s_add_u32 s41, s41, s33
    s_add_u32 s40, s40, s41
    s_lshl_b32 s40, s40, 10
    s_add_u32 s40, s40, {ACT}
    s_mov_b32 s47, 0
    s_lshl_b32 s32, s30, 7
    s_add_u32 s32, s32, {ST}
    v_and_b32 v4, 31, v2
    v_lshlrev_b32 v4, 2, v4
    v_lshrrev_b32 v8, 5, v2
    v_lshl_add_u32 v4, v8, 13, v4
    s_mov_b32 s48, 0
    """)
    for r in range(96): k(f"v_mov_b32 v{ACC+r}, 0")
    k("s_barrier")
    stamp(k, 9)
    for i in range(8):
        k(f"s_add_u32 s35, s32, {i*16384}")
        k(f"buffer_load_dword v{STR+i}, v4, s[20:23], s35 offen {ld}")
        k(f"buffer_load_dword v{STR+8+i}, v4, s[20:23], s35 offen offset:128 {ld}")
    def wrd(u, b, m):
        return f"ds_read_b128 v[{b+4*m}:{b+4*m+3}], v6 offset:{m*2048 + (u & 1)*1024}"
    def xrd(u, b, t):
        return f"ds_read_b128 v[{b+4*t}:{b+4*t+3}], v7 offset:{t*2048 + (u & 1)*1024}"
    def reads(u):
        return [wrd(u, WB[u & 1], 0), xrd(u, XB[u & 1], 0), xrd(u, XB[u & 1], 1), wrd(u, WB[u & 1], 1), wrd(u, WB[u & 1], 2)]
    k("s_barrier")
    stamp(k, 10)
    for l in reads(0): k(l)
    ml = k.label("p4ml")
    k(".p2align 3")
    k.place(ml)
    for u in range(2):
        if u == 1:
            k(f"s_add_u32 s48, s48, 1")
            k(f"s_and_b32 s48, s48, {RING4-1}")
            k(f"s_cselect_b32 s49, s50, s51")
            k("s_add_u32 s47, s47, 1")
            k("s_barrier")
            k("v_add_u32 v7, s49, v7")
            k("v_add_u32 v6, s49, v6")
            k(f"s_cmp_lt_u32 s47, {NCH4 - 1}")
        b, x = WB[u], XB[u]
        nx = reads(u + 1)
        for i in range(6):
            m, t = i >> 1, i & 1
            if i == 0: k("s_waitcnt lgkmcnt(2)")
            if i == 2: k("s_waitcnt lgkmcnt(2)")
            k(f"{MFMA} v[{ACC+16*i}:{ACC+16*i+15}], v[{b+4*m}:{b+4*m+3}], v[{x+4*t}:{x+4*t+3}], v[{ACC+16*i}:{ACC+16*i+15}]")
            if i < 5: k(nx[i])
    k(f"s_cbranch_scc1 {ml}")
    P = 48
    def mf(i, u):
        m, t = i >> 1, i & 1
        return f"{MFMA} v[{ACC+16*i}:{ACC+16*i+15}], v[{WB[u]+4*m}:{WB[u]+4*m+3}], v[{XB[u]+4*t}:{XB[u]+4*t+3}], v[{ACC+16*i}:{ACC+16*i+15}]"
    st_ = []
    for t in range(2):
        S = STR + 8*t
        st_ += [f"v_add_f32 v{S+i}, v{S+i}, v{S+i+1}" for i in (0, 2, 4, 6)]
        st_ += [f"v_add_f32 v{S}, v{S}, v{S+2}", f"v_add_f32 v{S+4}, v{S+4}, v{S+6}", f"v_add_f32 v{S}, v{S}, v{S+4}", f"v_mov_b32 v{S+1}, v{S}"]
    st_ += ["s_nop 0"] + [f"v_permlane32_swap_b32 v{STR+8*t}, v{STR+8*t+1}" for t in range(2)]
    for t in range(2):
        S = STR + 8*t
        st_ += [f"v_add_f32 v{S}, v{S}, v{S+1}", f"v_mov_b32 v{S+1}, {hex(f32(1e-5))}", f"v_fmac_f32 v{S+1}, {hex(f32(1/512))}, v{S}",
                f"v_rcp_f32 v{R2[t]}, v{S+1}"]
    def ep(i, pk):
        m, t = i >> 1, i & 1
        G = ACC + 16*i
        pr = P + 4*(i & 3) if i < 4 else 8 + 4*(i - 4)
        o = [f"v_max_f32 v{G+r}, 0, v{G+r}" for r in range(8)]
        if pk:
            o += [f"v_pk_mul_f32 v[{G+r}:{G+r+1}], v[{G+r}:{G+r+1}], v[{R2[t]}:{R2[t]+1}] op_sel_hi:[1,0]" for r in range(8, 16, 2)]
            o += [f"v_pk_mul_f32 v[{G+r}:{G+r+1}], v[{G+r}:{G+r+1}], v[{G+8+r}:{G+9+r}]" for r in range(0, 8, 2)]
        else:
            o += [f"v_mul_f32 v{G+r}, v{G+r}, v{R2[t]}" for r in range(8, 16)]
            o += [f"v_mul_f32 v{G+r}, v{G+r}, v{G+8+r}" for r in range(8)]
        o += [f"v_cvt_pk_bf16_f32 v{pr+d}, v{G+2*d}, v{G+2*d+1}" for d in range(4)]
        return o, pr
    def store(i, pr, so):
        pub_store(k, [f"buffer_store_dwordx4 v[{pr}:{pr+3}], v3, s[20:23], s{so} offen"], 2)
    for i in range(6):
        m, t = i >> 1, i & 1
        if t == 0:
            k(f"s_add_u32 s33, s41, {m}")
            k("s_cmp_ge_u32 s33, 86")
            k("s_cselect_b32 s33, 0x40000000, s40")
        k(f"s_add_u32 s{42+i}, s33, {t*86*1024 + m*1024}")
    for l in reads(1): k(l)
    k("s_waitcnt vmcnt(0) lgkmcnt(5)")
    q = list(st_)
    for i in (0, 1, 2, 3):
        k(mf(i, 0))
        for _ in range(5):
            if q: k(q.pop(0))
    k("s_waitcnt lgkmcnt(0)")
    k("s_barrier")
    for i, u in ((0, 1), (1, 1), (4, 0), (5, 0)):
        k(mf(i, u))
        for _ in range(4):
            if q: k(q.pop(0))
    assert not q
    k.nop(3)
    e0, p0 = ep(0, False); e1, p1 = ep(1, False)
    q = e0 + ["ST0"] + e1 + ["ST1"]
    for i in (2, 3, 4, 5):
        k(mf(i, 1))
        for _ in range(6):
            k(q.pop(0))
    stamp(k, 11)
    for l in q:
        if l == "ST0": store(0, p0, 42)
        elif l == "ST1": store(1, p1, 43)
        else: k(l)
    for i in range(2, 6):
        o, pr = ep(i, True)
        for l in o: k(l)
        store(i, pr, 42 + i)
    k.place(fin)
    if OPT.get('z_st'): stamp(k, 2)
    if OPT.get('rf', 0) & 2:
        k("v_and_b32 v4, 31, v2")
        k("v_lshlrev_b32 v4, 7, v4")
        k("v_lshrrev_b32 v5, 5, v2")
        k(f"v_mul_u32_u24 v5, {86*1024}, v5")
        k("v_add_u32 v4, v4, v5")
        k("s_waitcnt vmcnt(0)")
        k("s_barrier")
        k("s_mov_b32 exec_lo, 0xffffff")
        k("s_mov_b32 exec_hi, 0xffffff")
        k(f"buffer_load_dword v1, v4, s[20:23], s40 offen {ld}")
        k("s_mov_b64 exec, -1")
        j4 = k.label("p4j")
        k(f"s_branch {j4}")
        k.place(skip)
        k("s_barrier")
        k.place(j4)
    else:
        k("s_waitcnt vmcnt(0)")
        k.place(skip)
        k("s_barrier")

def p4_loader(k):
    ld = OPT['ld']
    D = OPT['depth4']
    skip, join = k.label("p4lskip"), k.label("p4ljoin")
    k("s_barrier")
    res_wsetup(k, 'down')
    p4_map(k)
    k("s_cmp_eq_u32 s28, 15")
    k(f"s_cbranch_scc1 {skip}")
    k(f"""
    s_sub_u32 s29, s{SW}, 4
    s_lshl_b32 s30, s27, 2
    s_add_u32 s30, s30, s29
    s_lshl_b32 s31, s30, 15
    s_add_u32 s31, s31, {HF}
    s_mul_i32 s33, s28, {6*32768}
    s_and_b32 s34, s29, 1
    s_lshl_b32 s34, s34, 10
    s_add_u32 s33, s33, s34
    s_lshr_b32 s35, s29, 1
    s_mul_i32 s37, s35, {3*32768}
    s_add_u32 s33, s33, s37
    s_mul_i32 s35, s35, 6144
    s_add_u32 s34, s34, s35
    s_lshl_b32 s36, s29, 11
    s_cmp_eq_u32 s28, 14
    s_cselect_b32 s39, 0x40000000, 0
    s_lshr_b32 s38, s29, 1
    s_mul_i32 s38, s38, s39
    s_add_u32 s33, s33, s38
    s_sub_u32 s39, s39, s38
    s_add_u32 s39, s39, s33
    """)
    order = []
    def crot(c):
        r = OPT.get('p4rot', 0)
        k(f"s_add_u32 s40, s{(0, 28, SIDX)[r]}, {c}" if r else f"s_mov_b32 s40, {c}")
        k("s_and_b32 s40, s40, 15")
        k("s_lshl_b32 s40, s40, 11")
    def hpart(c):
        if OPT.get('z4b') and c > 0:
            order.append(('h', c)); order.pop(); return
        crot(c)
        k(f"s_add_u32 s35, s31, s40")
        dma(k, 3, 20, 35, f"s36, {(c % RING4)*SLOT4 + 12288}", 0, ld)
        k(f"buffer_load_dwordx4 v3, s[20:23], s35 offen offset:1024 {ld} lds")
        order.extend([('h', c)]*2)
    def wpart(c):
        if OPT.get('z4b') and c > 0: return
        crot(c)
        for t in range(3):
            k(f"s_add_u32 s35, s{33 if t < 2 else 39}, s40")
            k(f"s_add_u32 s35, s35, {WGF + t*32768}")
            dma(k, 3, 20, 35, f"s34, {(c % RING4)*SLOT4 + t*2048}", 0, ld)
        order.extend([('w', c)]*3)
    nw = OPT.get('p4pre', 5)
    for c in range(nw): wpart(c)
    k("s_barrier")
    k("s_barrier")
    while nw < OPT.get('p4pre2', 7): wpart(nw); nw += 1
    k("s_barrier")
    nh = 4
    for c in range(nh): hpart(c)
    for c in range(NCH4 + 1):
        if c < NCH4:
            last = max([i for i, o in enumerate(order) if o[1] == c] or [len(order) - 1])
            k(f"s_waitcnt vmcnt({len(order) - 1 - last})")
        k("s_barrier")
        m = 0
        while nh < NCH4 and nh <= c + D and m < 2:
            assert nh - RING4 <= c - 2
            hpart(nh); nh += 1; m += 1
        m = 0
        while nw < NCH4 and nw - RING4 <= c - 2 and m < 2:
            wpart(nw); nw += 1; m += 1
        if c >= 10:
            assert nh == NCH4 and nw == NCH4
            if not OPT.get('z4a'):
                res_wload(k, 5*(c-10), 5*(c-10) + 5); order.extend([('d', -1)]*5)
    k("s_barrier")
    k(f"s_branch {join}")
    k.place(skip)
    k("s_barrier")
    k("s_barrier")
    k("s_barrier")
    res_wload(k, 0, 35)
    k.place(join)
    res_wload(k, 35, 39)
    k(f"s_waitcnt vmcnt({39 - JM})")
    k("s_barrier")
    k("s_waitcnt vmcnt(0)")
    k("s_barrier")

def clean(k, n):
    m = OPT.get('wb', 0)
    if not (m >> n) & 1: return
    l = k.label("ncl")
    k(f"s_and_b32 s47, s{SIDX}, {OPT.get('wbm', 31)}")
    k(f"s_cmp_lg_u32 s47, 0")
    k(f"s_cbranch_scc1 {l}")
    k("buffer_wbl2 sc1")
    k.place(l)

def poller(k):
    sl = OPT.get('slpl', 2)
    k(f"s_lshl_b32 s43, s{SXCD}, 5")
    k(f"s_add_u32 s43, s43, {F2}")
    k(f"s_lshl_b32 s42, s{SQB}, 5")
    k(f"s_add_u32 s42, s42, s{SHEAD}")
    k(f"s_add_u32 s42, s42, {F2}")
    flag_prep(k, 42)
    k("s_waitcnt lgkmcnt(0)")
    k("s_barrier")
    flag_fire(k, not OPT.get('amap', 1))
    stamp(k, 6); rstamp(k, 4)
    seen = k.label("cwseen")
    k("s_cmp_eq_u32 s55, 1")
    k(f"s_cbranch_scc1 {seen}")
    k(f"s_mov_b32 s42, {CW}")
    poll(k, 42, 32, 8, 0)
    k.place(seen)
    k("s_barrier")
    flag_poll(k, 43, 32, OPT.get('slp2', 2))
    stamp(k, 7)
    k("s_barrier")
    res_map(k)
    k("s_lshr_b32 s43, s27, 1")
    k("s_and_b32 s44, s27, 1")
    k("s_lshl_b32 s45, s28, 1")
    k("s_add_u32 s44, s44, s45")
    k("s_lshl_b32 s42, s43, 4")
    k("s_add_u32 s42, s42, s44")
    k(f"s_add_u32 s42, s42, {F3}")
    flag_prep(k, 42)
    p4_map(k)
    k("s_lshl_b32 s46, s27, 4")
    k(f"s_add_u32 s42, s46, {F3}")
    k("s_barrier")
    k("s_barrier")
    flag_fire(k, True)
    stamp(k, 8)
    idle = k.label("pidle")
    k("s_cmp_eq_u32 s28, 15")
    k(f"s_cbranch_scc1 {idle}")
    flag_poll(k, 42, 16, sl)
    stamp(k, 9); rstamp(k, 5)
    k("s_barrier")
    k("s_add_u32 s42, s46, s28")
    k(f"s_add_u32 s42, s42, {F4}")
    flag_prep(k, 42)
    for i in range(NCH4 + 1): k("s_barrier")
    k("s_barrier")
    flag_fire(k, True)
    stamp(k, 10); rstamp(k, 13)
    j = k.label("pjoin")
    k(f"s_branch {j}")
    k.place(idle)
    k("s_barrier")
    k.place(j)
    k("s_lshl_b32 s42, s43, 4")
    k(f"s_add_u32 s42, s42, {F4}")
    flag_poll(k, 42, 15, sl)
    stamp(k, 11)
    k("s_barrier")
    diag_end(k)

def diag_end(k):
    if not DIAG: return
    k("s_waitcnt vmcnt(0)")
    stamp(k, 14)
    k("s_memrealtime s[94:95]")
    k(f"s_lshl_b32 s40, s2, 4")
    k(f"s_add_u32 s40, s40, s{SW}")
    k(f"s_lshl_b32 s40, s40, 7")
    k(f"s_add_u32 s40, s40, {DIAGB}")
    k("s_waitcnt lgkmcnt(0)")
    for i in range(15):
        k(f"s_sub_u32 s{64+2*i}, s{64+2*i}, s96")
        k(f"v_mov_b32 v{8+i}, s{64+2*i}")
    k("v_mov_b32 v23, s94")
    k("v_mov_b32 v24, s98")
    k("v_mov_b32 v4, 0")
    k("s_mov_b64 exec, 1")
    for i in range(4):
        k(f"buffer_store_dwordx4 v[{8+4*i}:{11+4*i}], v4, s[20:23], s40 offen offset:{16*i}")
    k(f"buffer_store_dword v24, v4, s[20:23], s40 offen offset:64")
    k(f"v_mov_b32 v25, s{SXCD}")
    k(f"buffer_store_dword v25, v4, s[20:23], s40 offen offset:68")
    if OPT.get('dbgout') is not None:
        l = k.label("dbo")
        k(f"s_lshl_b32 s41, s{SW}, 8")
        k(f"s_or_b32 s41, s41, s2")
        k(f"s_cmp_lg_u32 s41, {OPT['dbgout']}")
        k(f"s_cbranch_scc1 {l}")
        k("v_sub_u32 v8, v23, v24")
        for i in range(4):
            k(f"global_store_dwordx4 v4, v[{8+4*i}:{11+4*i}], s[60:61] offset:{4+16*i}")
        k.place(l)

def build(path):
    k = Kern(NAME)
    done, roleL, roleH, p2 = k.label("done"), k.label("L"), k.label("H"), k.label("p2")
    tail = []
    k(f"""
    s_load_dwordx4 s[4:7], s[0:1], 0
    s_load_dwordx4 s[60:63], s[0:1], 64
    s_load_dwordx8 s[8:15], s[0:1], 16
    s_load_dwordx4 s[16:19], s[0:1], 48
    s_cmp_ge_u32 s2, 256
    s_cbranch_scc1 {done}
    """)
    if DIAG:
        k("s_memtime s[96:97]")
        k("s_memrealtime s[98:99]")
    k(f"""
    v_lshrrev_b32 v1, 6, v0
    v_and_b32 v2, 63, v0
    s_getreg_b32 s{SXCD}, hwreg(HW_REG_XCC_ID, 0, 3)
    s_getreg_b32 s{SIDX}, hwreg(HW_REG_HW_ID, 13, 2)
    v_readfirstlane_b32 s{SW}, v1
    s_getreg_b32 s29, hwreg(HW_REG_HW_ID, 8, 3)
    v_lshlrev_b32 v3, 4, v2
    s_lshl_b32 s{SIDX}, s{SIDX}, 3
    s_or_b32 s{SIDX}, s{SIDX}, s29
    s_mov_b32 s3, 0
    s_mov_b32 s50, {SLOT4}
    s_mov_b32 s51, {-(RING4-1)*SLOT4}
    """)
    if OPT.get('fakehw'): k(f"s_and_b32 s{SIDX}, s{SIDX}, 30")
    sw = OPT.get('swap', 1)
    if sw == 1:
        k(f"s_lshr_b32 s29, s{SW}, 1")
        k(f"s_andn2_b32 s29, 4, s29")
        k(f"s_xor_b32 s{SW}, s{SW}, s29")
    roleC = k.label("C")
    k.place(RESTART)
    p1_map(k)
    k(f"s_cmp_ge_u32 s{SW}, 8")
    k(f"s_cbranch_scc1 {roleH}")
    k(f"s_cmp_lt_u32 s{SW}, 4")
    k(f"s_cbranch_scc1 {roleC}")
    p1_loader(k)
    k(f"s_branch {p2}")
    k.place(roleH)
    p1_helper(k)
    H2 = k.label("H2")
    k(f"s_branch {H2}")
    k.place(roleC)
    p1_consumer(k)
    k.place(p2)
    p2_compute(k, tail)
    L3 = k.label("L3")
    k(f"s_cmp_ge_u32 s{SW}, 4")
    k(f"s_cbranch_scc1 {L3}")
    res_consumer(k, 'wo', 7)
    if OPT.get('cprio', 1): k(f"s_setprio {OPT.get('cprio', 1)}")
    p4_consumer(k)
    res_consumer(k, 'down', 12)
    diag_end(k)
    k.place(done)
    k("s_endpgm")
    k.place(L3)
    res_wsetup(k, 'wo')
    if OPT.get('woe', 1):
        got = k.label("woe")
        k(f"v_mov_b32 v4, {PROG + 20}")
        k("ds_read_b32 v4, v4")
        res_wload(k, NWE, 16, True)
        k("s_waitcnt lgkmcnt(0)")
        k("v_readfirstlane_b32 s47, v4")
        k.nop(1)
        k("s_cmp_eq_u32 s47, 1")
        k(f"s_cbranch_scc1 {got}")
        res_wload(k, 0, NWE, True)
    else:
        res_wload(k, 0, 16, True)
    k(f"s_and_b32 s45, s45, 1024")
    k(f"s_add_u32 s46, s45, {WBT}")
    dma(k, 3, 20, 46, f"s45, {WBL}", 0, OPT['ld'])
    if OPT.get('woe', 1): k.place(got)
    k("s_waitcnt vmcnt(0)")
    p4_loader(k)
    diag_end(k)
    k("s_endpgm")
    k.place(H2)
    p2_helper(k, done)
    poller(k)
    k("s_endpgm")
    k.place(RLAB[0])
    role_read(k)
    p2_relayout(k)
    for f in tail: f(k)
    k(f".fill (32768 - (. - {NAME}))/4, 4, 0xbf810000")
    hdr = """; Kernarg: 0 A_x, 8 A_wqkv, 16 A_wo, 24 B_x (unused), 32 W_gate, 40 W_up, 48 W_down, 56 out, 64 debug, 72 ws
; pre-LN transformer block in one persistent launch (256 workgroups, one per CU); generated by gen/gen5.py
; @launch grid=(256,1,1) block=(768,1,1) lds=163840
.amdgcn_target "amdgcn-amd-amdhsa--gfx950"
"""
    open(path, "w").write(hdr + k.text(168, 102 if DIAG else 64))

if __name__ == "__main__":
    for a in sys.argv[2:]:
        if "=" in a:
            kk, vv = a.split("=")
            OPT[kk] = int(vv) if vv.lstrip("-").isdigit() else vv.replace("+", " ")
    DIAG = "--diag" in sys.argv
    build(sys.argv[1])
```

```python
import sys, math
from dsl import Kern
from gen import (MB, QF, KF, VF, OF, XF, HF, ACT, WOF, WGF, WUF, WDF, ST, WS_SIZE, f32, ONES, MFMA, srd, half_sum,
                 finish_stats)
CNT = 25*MB
MX = 24*MB + 512*1024
WBT = MX + 65536
DIAGB = 28*MB
C1, C2, C3, C4, CW = 0, 8, 16, 32, 48
CSTRIP = 131072
PROG = CSTRIP
ROLE = 163832
WBL = 160768
KEEP = 160
NAME = "sequential_preLN__softmax_full_mha__glu_gated_reglu__prompt_kernel"
OPT = dict(slp=8, kvd=2, d1=4, prio=1, ld="sc1", st="sc1", nb2=4, depth4=5)
SXCD, SIDX, SW = 24, 25, 26
SHEAD, SQB = 62, 63
SCHK = 49
KC0, KC1 = 2, 4
EARLY = 65532
MF16 = "v_mfma_f32_16x16x32_bf16"
DIAG = False

def rstamp(k, i):
    if DIAG:
        k(f"s_memrealtime s[{64+2*i}:{65+2*i}]")
        k("s_waitcnt lgkmcnt(0)")
        k(f"s_add_u32 s{64+2*i}, s{64+2*i}, s96")

def stamp(k, i):
    if DIAG: k(f"s_memtime s[{64+2*i}:{65+2*i}]")

def norm4(x, t, rs, nb, smask):
    ops = []
    for d in range(4):
        a, b = t[2*(d & 1)], t[2*(d & 1) + 1]
        ops.append([f"v_lshlrev_b32 v{a}, 16, v{x+d}", f"v_and_b32 v{b}, s{smask}, v{x+d}",
                    f"v_fma_f32 v{a}, v{a}, v{rs}, v{nb}", f"v_fma_f32 v{b}, v{b}, v{rs}, v{nb}",
                    f"v_cvt_pk_bf16_f32 v{x+d}, v{a}, v{b}"])
    o = []
    for p in (0, 2):
        for a, b in zip(ops[p], ops[p+1]): o += [a, b]
    return o

def lane_regs(k):
    k("v_mbcnt_lo_u32_b32 v2, -1, 0")
    k("v_mbcnt_hi_u32_b32 v2, -1, v2")
    k("v_lshlrev_b32 v3, 4, v2")

def dma(k, vo, srd_, so, m0expr, off=0, flag=""):
    k(f"s_add_u32 m0, {m0expr}")
    k.nop(1)
    k(f"buffer_load_dwordx4 v{vo}, s[{srd_}:{srd_+3}], s{so} offen" + (f" offset:{off}" if off else "") + f" {flag} lds")

def row8_sum(k, regs):
    for ctl in ("quad_perm:[1,0,3,2]", "quad_perm:[2,3,0,1]", "row_half_mirror"):
        k.nop(2)
        for r in regs:
            k(f"v_add_f32_dpp v{r}, v{r}, v{r} {ctl} row_mask:0xf bank_mask:0xf")

def arrive(k, sidx, va=8, vb=9):
    k(f"s_lshl_b32 s40, s{sidx}, 8")
    k(f"s_add_u32 s40, s40, {CNT}")
    k("s_mov_b64 exec, 1")
    k(f"v_mov_b32 v{va}, 1")
    k(f"v_mov_b32 v{vb}, 0")
    k(f"buffer_atomic_add v{va}, v{vb}, s[20:23], s40 offen sc1")

FLG = CNT + 65536
F1, F2, F3, F4 = 0, 256, 512, 768
SLOC = 59
def pub_store(k, lines, stage=3):
    if not (OPT.get('loc', 8) >> stage) & 1:
        for l in lines: k(l + " " + OPT['st'])
        return
    a, b = k.label("ps"), k.label("pe")
    k(f"s_cmp_eq_u32 s{SLOC}, 1")
    k(f"s_cbranch_scc1 {a}")
    for l in lines: k(l + " " + OPT['st'])
    k(f"s_branch {b}")
    k.place(a)
    for l in lines: k(l + (" " + OPT.get('locf', '') if stage != 3 else ""))
    k.place(b)

def flag_set(k, sline, val="1", local=False):
    k(f"s_lshl_b32 s40, s{sline}, 7")
    k(f"s_add_u32 s40, s40, {FLG}")
    k("s_mov_b64 exec, 1")
    k(f"v_mov_b32 v8, {val}")
    k("v_mov_b32 v9, 0")
    if local: pub_store(k, ["buffer_store_dword v8, v9, s[20:23], s40 offen"])
    else: k("buffer_store_dword v8, v9, s[20:23], s40 offen sc1")

def flag_prep(k, sline):
    k(f"s_lshl_b32 s39, s{sline}, 7")
    k(f"s_add_u32 s39, s39, {FLG}")
    k("s_mov_b64 exec, 1")
    k("v_mov_b32 v14, 1")
    k("v_mov_b32 v15, 0")

def flag_fire(k, local):
    if local: pub_store(k, ["buffer_store_dword v14, v15, s[20:23], s39 offen"])
    else: k("buffer_store_dword v14, v15, s[20:23], s39 offen sc1")

def flag_poll(k, sline, n=32, slp=None):
    poll(k, sline, 1, n, slp, sh=7, base=FLG)

def poll(k, sidx, target, nlines=1, slp=None, sh=8, base=None):
    lp, out = k.label("poll"), k.label("pollx")
    k(f"s_lshl_b32 s40, s{sidx}, {sh}")
    k(f"s_add_u32 s40, s40, {CNT if base is None else base}")
    k(f"s_mov_b32 exec_lo, {hex((1 << nlines) - 1)}")
    k("s_mov_b32 exec_hi, 0")
    k(f"v_lshlrev_b32 v9, {sh}, v2")
    k("s_mov_b32 s41, 0")
    slp = OPT.get('slp', 2) if slp is None else slp
    k.place(lp)
    k("buffer_load_dword v10, v9, s[20:23], s40 offen sc1")
    k("s_add_u32 s41, s41, 1")
    k("s_cmp_gt_u32 s41, 0x40000")
    k(f"s_cbranch_scc1 {out}")
    k("s_waitcnt vmcnt(0)")
    k(f"v_cmp_gt_u32 vcc, {target}, v10" if target <= 64 else f"v_cmp_gt_u32 vcc, {hex(target)}, v10")
    k(f"s_cmp_eq_u64 vcc, 0")
    k(f"s_cbranch_scc1 {out}")
    if slp: k(f"s_sleep {slp}")
    k(f"s_branch {lp}")
    k.place(out)
    k("s_waitcnt vmcnt(0)")
    k("s_mov_b64 exec, -1")

def touch(k, base_s, nlines, reg=40):
    k("v_lshlrev_b32 v12, 7, v2")
    for i in range((nlines + 63)//64):
        rem = nlines - 64*i
        if rem < 64:
            k(f"s_mov_b32 exec_lo, {hex((1 << min(rem, 32)) - 1)}")
            k(f"s_mov_b32 exec_hi, {hex((1 << max(rem - 32, 0)) - 1)}")
        k(f"s_add_u32 s41, s{base_s}, {i*8192}")
        k(f"buffer_load_dword v{reg+i}, v12, s[20:23], s41 offen sc1")
    k("s_mov_b64 exec, -1")

def cold_touch(k):
    if OPT.get('t1', 1) == 2:
        l8 = k.label("t8")
        srd(k, 44, 4, 2*MB)
        srd(k, 52, 6, 512*3072)
        k(f"""
        s_lshr_b32 s31, s{SXCD}, 1
        s_lshl_b32 s31, s31, 9
        s_lshl_b32 s32, s{SIDX}, 4
        s_add_u32 s31, s31, s32
        s_lshl_b32 s31, s31, 10
        s_lshl_b32 s32, s29, 7
        s_add_u32 s31, s31, s32
        v_lshlrev_b32 v12, 10, v2
        v_mul_u32_u24 v13, 43, v2
        v_lshrrev_b32 v13, 9, v13
        v_mul_u32_u24 v14, 12, v13
        v_sub_u32 v14, v2, v14
        v_lshrrev_b32 v15, 2, v14
        v_and_b32 v14, 3, v14
        v_lshlrev_b32 v14, 7, v14
        v_lshl_add_u32 v14, v15, 10, v14
        v_mul_u32_u24 v13, 3072, v13
        v_add_u32 v13, v13, v14
        s_lshl_b32 s32, s29, 6
        s_lshl_b32 s33, s{SIDX}, 1
        s_add_u32 s32, s32, s33
        s_mul_i32 s32, s32, 3072
        s_and_b32 s33, s{SXCD}, 1
        s_lshl_b32 s33, s33, 9
        s_add_u32 s32, s32, s33
        s_add_u32 s33, s32, {256*3072}
        s_mov_b32 exec_hi, 0
        s_mov_b32 exec_lo, 0xffff
        buffer_load_dword v40, v12, s[44:47], s31 offen
        buffer_load_dword v42, v12, s[44:47], s31 offen offset:512
        """)
        if OPT.get('t1w', 0):
            k("""
            s_mov_b32 exec_lo, 0xffffff
            buffer_load_dword v41, v13, s[52:55], s32 offen
            buffer_load_dword v43, v13, s[52:55], s33 offen
            """)
        k("s_mov_b64 exec, -1")
        return
    if OPT.get('t1', 1):
        l9, l10, l11 = k.label("t9"), k.label("t10"), k.label("t11")
        if OPT.get('t1d', 0): k(f"s_sleep {OPT['t1d']}")
        k(f"s_cmp_lg_u32 s{SW}, 9")
        k(f"s_cbranch_scc1 {l9}")
        srd(k, 44, 4, 2*MB)
        k("s_lshl_b32 s31, s2, 13")
        k("v_lshlrev_b32 v12, 7, v2")
        msk = sum(1 << i for i in range(32) if (i & 7) >= OPT.get('t1x', 0))
        k(f"s_mov_b32 exec_lo, {hex(msk)}")
        k(f"s_mov_b32 exec_hi, {hex(msk)}")
        k("buffer_load_dword v40, v12, s[44:47], s31 offen")
        k("s_mov_b64 exec, -1")
        k.place(l9)
        k(f"s_cmp_lg_u32 s{SW}, 10")
        k(f"s_cbranch_scc1 {l10}")
        k(f"s_cmp_lt_u32 s2, {32*OPT.get('t1x', 0) if OPT.get('t1w', 0) else 256}")
        k(f"s_cbranch_scc1 {l10}")
        srd(k, 44, 6, 512*3072)
        k("s_mul_i32 s31, s2, 6144")
        k("v_lshlrev_b32 v12, 7, v2")
        k("s_mov_b32 exec_hi, 0xffff")
        k("buffer_load_dword v40, v12, s[44:47], s31 offen")
        k("s_mov_b64 exec, -1")
        k.place(l10)

RESTART = NAME + "_restart"
REDO = NAME + "_redo"
TAIL = []
def role_word(k, addr, back, par=None):
    if par == 'loop':
        k("s_and_b32 s0, s47, 1")
        k("s_lshl_b32 s0, s0, 2")
        k(f"s_sub_u32 s0, {addr}, s0")
        k("v_mov_b32 v1, s0")
    else:
        k(f"v_mov_b32 v1, {addr - 4*(par or 0)}")
    k("ds_read_b32 v1, v1")
    k("s_waitcnt lgkmcnt(0)")
    k(f"v_readfirstlane_b32 s0, v1")
    k.nop(1)
    k("s_cmp_eq_u32 s0, 0")
    k(f"s_cbranch_scc1 {back}")
    if addr == EARLY:
        k(f"s_mov_b32 s{SCHK}, 2")
        k("s_cmp_eq_u32 s0, 2")
        k(f"s_cbranch_scc1 {back}")
    k(f"s_branch {REDO}")

def redo(k):
    k.place(REDO)
    k(f"s_and_b32 s{SIDX}, s0, 31")
    k("s_mov_b32 s3, 2")
    k(f"s_mov_b32 s{SCHK}, 0")
    k("s_cmp_eq_u32 s0, 1")
    k(f"s_cbranch_scc0 {REDO}1")
    k(f"s_and_b32 s{SXCD}, s2, 7")
    k(f"s_lshr_b32 s{SIDX}, s2, 3")
    k("s_mov_b32 s3, 1")
    k.place(REDO + "1")
    k("s_waitcnt vmcnt(0)")
    k("s_barrier")
    k(f"s_branch {RESTART}")

def early_check(k, tail, last=None):
    side, back = k.label("ec"), k.label("ecb")
    k(f"s_cmp_eq_u32 s{SCHK}, 1")
    k(f"s_cbranch_scc1 {side}")
    k.place(back)
    def f(k):
        k.place(side)
        if last == 'loop':
            k(f"s_cmp_eq_u32 s47, {KC1 - 1}")
            k(f"s_cselect_b32 s{SCHK}, 2, 1")
        role_word(k, EARLY, back, last)
    tail.append(f)

def role_read(k):
    ok = k.label("rok")
    role_word(k, ROLE, ok)
    k.place(ok)
    if OPT.get('amap', 1):
        k(f"s_lshl_b32 s{SHEAD}, s{SXCD}, 2")
        k(f"s_and_b32 s{SQB}, s{SIDX}, 3")
        k(f"s_add_u32 s{SHEAD}, s{SHEAD}, s{SQB}")
        k(f"s_lshr_b32 s{SQB}, s{SIDX}, 2")
    else:
        k(f"s_mov_b32 s{SHEAD}, s{SIDX}")
        k(f"s_mov_b32 s{SQB}, s{SXCD}")

def p1_map(k):
    if OPT.get('p1m', 1) == 1:
        k(f"s_mov_b32 s27, s{SIDX}")
        k(f"s_mov_b32 s28, s{SXCD}")
        return
    k(f"""
    s_lshr_b32 s27, s{SXCD}, 1
    s_lshl_b32 s27, s27, 3
    s_and_b32 s28, s{SIDX}, 7
    s_add_u32 s27, s27, s28
    s_and_b32 s28, s{SXCD}, 1
    s_lshl_b32 s28, s28, 2
    s_lshr_b32 s29, s{SIDX}, 3
    """)
    if OPT.get('cbrev', 0): k("s_xor_b32 s29, s29, 3")
    k("s_add_u32 s28, s28, s29")
EXC = 65536 + 3*12288
EXS = 65536 + 2*12288

def p1_consumer(k):
    if OPT.get('cprio', 1): k(f"s_setprio {OPT.get('cprio', 1)}")
    k(f"s_and_b32 s{SLOC}, s3, 1"); k(f"s_xor_b32 s{SLOC}, s{SLOC}, 1")
    SRB, SCB = 27, 28
    VXA, VWA = 12, 16
    WB = [20, 32, 44, 56]; XB = [68, 72, 76, 80]; ACC = 84; CS = 132; SEL = 144
    k(f"""
    v_and_b32 v8, 31, v2
    v_lshrrev_b32 v4, 5, v2
    v_lshrrev_b32 v5, 1, v8
    v_and_b32 v5, 7, v5
    s_and_b32 s34, s{SW}, 1
    s_lshl_b32 s35, s34, 12
    v_lshlrev_b32 v6, 7, v8
    v_add_u32 v6, s35, v6
    """)
    for u in range(4):
        k(f"v_add_u32 v7, {2*u}, v4")
        k(f"v_xor_b32 v7, v7, v5")
        k(f"v_lshl_add_u32 v{VXA+u}, v7, 4, v6")
    k(f"""
    s_lshr_b32 s36, s{SW}, 1
    v_bfe_u32 v5, v2, 2, 2
    v_lshl_add_u32 v6, v4, 3, v5
    v_lshlrev_b32 v6, 7, v6
    v_bfe_u32 v7, v2, 4, 1
    v_lshlrev_b32 v7, 1, v7
    v_bfe_u32 v11, v2, 1, 1
    v_add_u32 v7, v7, v11
    s_lshl_b32 s37, s36, 2
    v_add_u32 v7, s37, v7
    v_lshrrev_b32 v5, 1, v5
    v_lshlrev_b32 v5, 2, v5
    v_xor_b32 v7, v7, v5
    v_lshl_add_u32 v6, v7, 4, v6
    v_and_b32 v7, 1, v2
    v_lshl_add_u32 v{VWA+1}, v7, 3, v6
    v_add_u32 v{VWA+1}, 0x10000, v{VWA+1}
    v_mov_b32 v{VWA}, v{VWA+1}
    v_and_b32 v5, 15, v2
    v_bfe_u32 v7, v2, 4, 1
    v_cmp_eq_u32 vcc, v5, v7
    v_mov_b32 v6, {hex(ONES)}
    s_mov_b32 s47, 0
    v_cndmask_b32 v{SEL}, 0, v6, vcc
    """)
    for i in range(1, 4): k(f"v_mov_b32 v{SEL+i}, v{SEL}")
    for i in range(60): k(f"v_mov_b32 v{ACC+i}, 0")
    k(f"""
    s_lshl_b32 s40, s{SCB}, 2
    s_lshl_b32 s41, s36, 1
    s_add_u32 s40, s40, s41
    s_lshl_b32 s40, s40, 16
    s_lshl_b32 s41, s{SRB}, 1
    s_add_u32 s41, s41, s34
    s_lshl_b32 s41, s41, 10
    s_add_u32 s40, s40, s41
    v_bfe_u32 v9, v2, 4, 1
    v_lshlrev_b32 v9, 16, v9
    v_lshl_add_u32 v9, v4, 8, v9
    v_lshl_add_u32 v9, v5, 4, v9
    s_add_u32 s43, s40, {QF + 65536}
    s_add_u32 s44, s40, {KF}
    s_add_u32 s45, s40, {KF + 65536}
    s_add_u32 s46, s40, {VF}
    s_mov_b32 s48, 0
    """)
    k(f"""
    s_lshl_b32 s35, s34, 1
    s_add_u32 s35, s35, s36
    s_mul_i32 s35, s35, 384
    s_add_u32 s35, s35, {EXC}
    v_lshl_add_u32 v5, v2, 2, s35
    s_mul_i32 s37, s36, 384
    s_add_u32 s37, s37, {EXC}
    v_lshl_add_u32 v6, v4, 4, s37
    v_lshl_add_u32 v7, v8, 2, s37
    s_lshl_b32 s38, s34, 7
    s_add_u32 s38, s38, {EXS}
    v_lshl_add_u32 v10, v8, 2, s38
    v_lshl_add_u32 v11, v4, 4, s38
    """)
    k("s_waitcnt lgkmcnt(0)")
    srd(k, 20, 62, WS_SIZE)
    def xrd(u, b): k(f"ds_read_b128 v[{b}:{b+3}], v{VXA+u}")
    def wrd(u, b, p):
        for r in range(2):
            k(f"ds_read_b64_tr_b16 v[{b+4*p+2*r}:{b+4*p+2*r+1}], v{VWA} offset:{(u >> 1)*12288 + p*4096 + (u & 1)*2048 + r*512}")
    stamp(k, 0)
    k("s_barrier")
    stamp(k, 1)
    for u in range(2):
        xrd(u, XB[u])
        for p in range(3): wrd(u, WB[u], p)
    odd, ep = k.label("p1odd"), k.label("p1ep")
    def M(p, u):
        b, x = WB[u], XB[u]
        if p < 2: k(f"{MFMA} v[{ACC+16*p}:{ACC+16*p+15}], v[{b+4*p}:{b+4*p+3}], v[{x}:{x+3}], v[{ACC+16*p}:{ACC+16*p+15}]")
        else: k(f"{MFMA} v[{ACC+32}:{ACC+47}], v[{x}:{x+3}], v[{b+8}:{b+11}], v[{ACC+32}:{ACC+47}]")
    def CSM(p, u):
        k(f"{MF16} v[{CS+4*p}:{CS+4*p+3}], v[{SEL}:{SEL+3}], v[{WB[u]+4*p}:{WB[u]+4*p+3}], v[{CS+4*p}:{CS+4*p+3}]")
    def step(u, par):
        nu = (u+2) & 3
        k("s_waitcnt lgkmcnt(7)")
        for p in range(3):
            M(p, u)
            if p == 0: xrd(nu, XB[nu])
            wrd(nu, WB[nu], p)
            if (u & 1) == par: CSM(p, u)
    k("s_cmp_eq_u32 s34, 1")
    k(f"s_cbranch_scc1 {odd}")
    for par in range(2):
        if par == 1: k.place(odd)
        ml = k.label("p1ml")
        k(".p2align 3")
        k.place(ml)
        for u in range(4):
            if u == 2:
                k("s_add_u32 s48, s48, 24576")
                k(f"s_cmp_eq_u32 s48, {8*12288}")
                k("s_cselect_b32 s48, 0, s48")
                k(f"v_add_u32 v{VXA}, 8192, v{VXA}")
                k(f"v_add_u32 v{VXA+1}, 8192, v{VXA+1}")
                k("s_barrier")
                early_check(k, TAIL, 'loop')
                k(f"v_add_u32 v{VWA}, s48, v{VWA+1}")
            step(u, par)
            if u == 3:
                for q in range(2, 4): k(f"v_add_u32 v{VXA+q}, 8192, v{VXA+q}")
                k("s_add_u32 s47, s47, 1")
                k("s_cmp_lt_u32 s47, 7")
        k(f"s_cbranch_scc1 {ml}")
        step(0, par); step(1, par)
        k(f"s_waitcnt lgkmcnt({7 if par == 0 else 0})")
        for p in range(3): CSM(p, 2 + par)
        if par == 0: k(f"s_branch {ep}")
    k.place(ep)
    A, RSV, NBV = 20, 44, 60
    BQ = [36, 40, 68, 72]
    RS, NB, CV = 132, 134, 136
    k("s_waitcnt lgkmcnt(0)")
    M(0, 2); M(0, 3)
    k(f"s_mov_b32 s42, {hex(f32(0.25*math.log2(math.e)))}")
    k.nop(3)
    k("s_mov_b64 exec, 0xffff")
    for p in range(3):
        k(f"ds_write2_b32 v5, v{CS+4*p}, v{CS+4*p+1} offset0:{32*p} offset1:{32*p+16}")
    k("s_mov_b64 exec, -1")
    M(1, 2)
    k("s_waitcnt lgkmcnt(0)")
    k("s_barrier")
    k(f"ds_read_b32 v{RS}, v10")
    k(f"ds_read_b32 v{NB}, v10 offset:256")
    M(1, 3)
    def csrd(p):
        for g in range(4):
            k(f"ds_read_b128 v[{A+4*g}:{A+4*g+3}], v6 offset:{p*128 + g*32}")
            k(f"ds_read_b128 v[{BQ[g]}:{BQ[g]+3}], v6 offset:{768 + p*128 + g*32}")
    csrd(0)
    M(2, 2)
    k(f"ds_read_b32 v{CV}, v7 offset:256")
    k(f"ds_read_b32 v{CV+1}, v7 offset:{768 + 256}")
    k("s_waitcnt lgkmcnt(10)")
    k(f"v_mul_f32 v138, s42, v{RS}")
    k(f"v_mul_f32 v140, s42, v{NB}")
    M(2, 3)
    stamp(k, 2)
    st = OPT['st']
    P = 144
    def fold(acc, rs, nb):
        for r in range(0, 16, 2):
            bq = BQ[r >> 2] + (r & 3)
            k(f"v_pk_add_f32 v[{A+r}:{A+r+1}], v[{A+r}:{A+r+1}], v[{bq}:{bq+1}]")
        for r in range(0, 16, 2):
            k(f"v_pk_mul_f32 v[{A+r}:{A+r+1}], v[{A+r}:{A+r+1}], v[{nb}:{nb+1}] op_sel_hi:[1,0]")
        for r in range(0, 16, 2):
            k(f"v_pk_fma_f32 v[{acc+r}:{acc+r+1}], v[{acc+r}:{acc+r+1}], v[{rs}:{rs+1}], v[{A+r}:{A+r+1}] op_sel_hi:[1,0,1]")
    def pack(acc, p, so0, so1, va, off1=0):
        for d in range(8):
            k(f"v_cvt_pk_bf16_f32 v{p+d}, v{acc+2*d}, v{acc+2*d+1}")
            if d == 3: pub_store(k, [f"buffer_store_dwordx4 v[{p}:{p+3}], v{va}, s[20:23], s{so0} offen"], 4)
        pub_store(k, [f"buffer_store_dwordx4 v[{p+4}:{p+7}], v{va}, s[20:23], s{so1} offen" + (f" offset:{off1}" if off1 else "")], 4)
    k("s_waitcnt lgkmcnt(2)")
    fold(ACC, 138, 140)
    csrd(1)
    for g in range(4):
        k(f"ds_read_b128 v[{RSV+4*g}:{RSV+4*g+3}], v11 offset:{g*32}")
    pack(ACC, P, 40, 43, 3)
    k("s_waitcnt lgkmcnt(4)")
    fold(ACC+16, RS, NB)
    for g in range(4):
        k(f"ds_read_b128 v[{NBV+4*g}:{NBV+4*g+3}], v11 offset:{256 + g*32}")
    pack(ACC+16, P+8, 44, 45, 3)
    k(f"v_add_f32 v{CV}, v{CV}, v{CV+1}")
    k("s_waitcnt lgkmcnt(0)")
    for r in range(0, 16, 2):
        k(f"v_pk_mul_f32 v[{NBV+r}:{NBV+r+1}], v[{NBV+r}:{NBV+r+1}], v[{CV}:{CV+1}] op_sel_hi:[1,0]")
    for r in range(0, 16, 2):
        k(f"v_pk_fma_f32 v[{ACC+32+r}:{ACC+33+r}], v[{ACC+32+r}:{ACC+33+r}], v[{RSV+r}:{RSV+r+1}], v[{NBV+r}:{NBV+r+1}]")
    pack(ACC+32, P+16, 46, 46, 9, 512)
    stamp(k, 3)
    k("s_waitcnt vmcnt(0)")
    k("s_barrier")
    role_read(k)
    k("s_barrier")

def relayout(k):
    st = OPT['st']
    PRE = [16, 44, 80]
    k(f"""
    v_and_b32 v6, 31, v2
    v_lshrrev_b32 v7, 5, v2
    v_lshlrev_b32 v12, 10, v6
    v_lshl_add_u32 v12, v7, 3, v12
    v_mul_u32_u24 v13, {4*2752}, v7
    v_lshl_add_u32 v13, v6, 1, v13
    v_lshlrev_b32 v14, 12, v7
    v_lshl_add_u32 v14, v6, 1, v14
    s_lshl_b32 s42, s2, 3
    s_mul_i32 s43, s29, 3
    s_add_u32 s42, s42, s43
    """)
    def wload(reg, voffreg, soffreg, pitch):
        for j in range(8):
            row = 8*(j >> 2) + (j & 3)
            k(f"s_add_u32 s49, s{soffreg}, {row*pitch}")
            k(f"buffer_load_ushort v{reg+j}, v{voffreg}, s[44:47], s49 offen")
    def item_loads(i):
        P_, D0 = PRE[i], (37, 52, 32)[i]
        k(f"s_add_u32 s{D0+2}, s42, {i}")
        if i == 2:
            k("s_cmp_eq_u32 s29, 2")
            k(f"s_cselect_b32 s{D0+2}, 0xfff, s{D0+2}")
        G = D0 + 2
        srd(k, 44, 4, 2*MB)
        k(f"""
        s_lshr_b32 s43, s{G}, 5
        s_lshl_b32 s43, s43, 15
        s_and_b32 s48, s{G}, 31
        s_lshl_b32 s48, s48, 5
        s_add_u32 s43, s43, s48
        buffer_load_dwordx2 v[{P_}:{P_+1}], v12, s[44:47], s43 offen
        buffer_load_dwordx2 v[{P_+2}:{P_+3}], v12, s[44:47], s43 offen offset:16
        s_mov_b32 s50, {(2**32 + 42)//43}
        s_mul_hi_u32 s51, s{G}, s50
        s_mul_i32 s58, s51, 43
        s_sub_u32 s58, s{G}, s58
        s_mul_i32 s59, s51, {16*2752}
        s_lshl_b32 s48, s58, 6
        s_add_u32 s59, s59, s48
        s_lshl_b32 s{D0}, s58, 6
        s_add_u32 s{D0}, s{D0}, s51
        s_lshl_b32 s{D0}, s{D0}, 10
        s_cmp_lt_u32 s{G}, 1376
        s_cselect_b32 s50, {512*2752}, 0
        s_mov_b32 s44, s12
        s_and_b32 s45, s13, 0xffff
        s_mov_b32 s46, s50
        """)
        wload(P_+4, 13, 59, 2752)
        k("s_mov_b32 s44, s14")
        k("s_and_b32 s45, s15, 0xffff")
        wload(P_+12, 13, 59, 2752)
        k(f"""
        s_sub_u32 s48, s{G}, 1376
        s_cmp_lt_u32 s{G}, 1376
        s_cselect_b32 s48, s{G}, s48
        s_cselect_b32 s44, s16, s8
        s_cselect_b32 s45, s17, s9
        s_cselect_b32 s46, {1376*1024}, 0
        s_cselect_b32 s50, 86, 32
        s_cselect_b32 s43, {WDF - WOF}, 0
        s_and_b32 s45, s45, 0xffff
        s_sub_u32 s51, s{G}, 1376
        s_cmp_lt_u32 s51, 512
        s_cselect_b32 s46, {512*1024}, s46
        s_and_b32 s58, s48, 15
        s_lshr_b32 s51, s48, 4
        s_lshl_b32 s59, s51, 14
        s_lshl_b32 s48, s58, 6
        s_add_u32 s59, s59, s48
        s_mul_i32 s{D0+1}, s58, s50
        s_add_u32 s{D0+1}, s{D0+1}, s51
        s_lshl_b32 s{D0+1}, s{D0+1}, 10
        s_add_u32 s{D0+1}, s{D0+1}, s43
        """)
        wload(P_+20, 14, 59, 1024)
    def pack_store(reg, dstreg, base):
        for d in range(4):
            k(f"v_lshl_or_b32 v{reg+d}, v{reg+2*d+1}, 16, v{reg+2*d}")
        k(f"s_add_u32 s49, s{dstreg}, {base}")
        k(f"buffer_store_dwordx4 v[{reg}:{reg+3}], v3, s[20:23], s49 offen {st}")
    def item_stores(i):
        P_, D0 = PRE[i], (37, 52, 32)[i]
        G = D0 + 2
        l1, l2 = k.label("is1"), k.label("is2")
        if i == 2:
            k("s_cmp_eq_u32 s29, 2")
            k(f"s_cbranch_scc1 {l2}")
        k(f"s_lshl_b32 s43, s{G}, 10")
        k(f"s_add_u32 s43, s43, {XF}")
        k(f"buffer_store_dwordx4 v[{P_}:{P_+3}], v3, s[20:23], s43 offen {st}")
        k(f"s_cmp_lt_u32 s{G}, 1376")
        k(f"s_cbranch_scc0 {l1}")
        for reg in (P_+4, P_+12):
            for d in range(4):
                k(f"v_lshl_or_b32 v{reg+d}, v{reg+2*d+1}, 16, v{reg+2*d}")
        k.nop(2)
        for d in range(4):
            k(f"v_permlane16_swap_b32 v{P_+4+d}, v{P_+12+d}")
        k(f"s_add_u32 s49, s{D0}, {WGF}")
        k(f"buffer_store_dwordx4 v[{P_+4}:{P_+7}], v3, s[20:23], s49 offen {st}")
        k(f"s_add_u32 s49, s{D0}, {WGF + 32768}")
        k(f"buffer_store_dwordx4 v[{P_+12}:{P_+15}], v3, s[20:23], s49 offen {st}")
        k.place(l1)
        k(f"s_cmp_lt_u32 s{G}, 1888")
        k(f"s_cbranch_scc0 {l2}")
        pack_store(P_+20, D0+1, WOF)
        k.place(l2)
    return item_loads, item_stores

def p1_loader(k):
    SRB, SCB = 27, 28
    VXE, VXO, VW = 8, 9, 10
    k(f"""
    s_sub_u32 s29, s{SW}, 4
    v_lshrrev_b32 v11, 3, v2
    v_and_b32 v4, 7, v2
    v_lshrrev_b32 v5, 4, v2
    v_xor_b32 v6, v4, v5
    v_lshlrev_b32 v6, 4, v6
    s_lshl_b32 s35, s29, 4
    v_add_u32 v7, s35, v11
    v_lshlrev_b32 v12, 10, v7
    v_add_u32 v{VXE}, v12, v6
    v_xor_b32 v6, 64, v6
    v_add_u32 v{VXO}, v12, v6
    v_add_u32 v{VXO}, 8192, v{VXO}
    s_lshl_b32 s35, s29, 3
    v_add_u32 v7, s35, v11
    v_and_b32 v5, 1, v5
    v_lshlrev_b32 v5, 2, v5
    v_xor_b32 v5, v4, v5
    v_lshlrev_b32 v5, 4, v5
    v_mul_u32_u24 v7, 3072, v7
    v_add_u32 v{VW}, v7, v5
    s_lshl_b32 s31, s29, 10
    s_lshl_b32 s36, s29, 11
    s_lshl_b32 s30, s{SRB}, 16
    s_lshl_b32 s32, s{SCB}, 7
    """)
    if OPT.get('z_mix'):
        for p, d in ((1, 3), (2, 5)):
            k(f"s_add_u32 s{37+p}, s{SCB}, {d}")
            k(f"s_and_b32 s{37+p}, s{37+p}, 7")
            k(f"s_sub_u32 s{37+p}, s{37+p}, s{SCB}")
            k(f"s_lshl_b32 s{37+p}, s{37+p}, 7")
    k("s_mov_b32 s54, 0x200000")
    k("s_mov_b32 s55, 0x20000")
    k(f"s_mov_b32 s58, {512*3072}")
    k("s_mov_b32 s59, 0x20000")
    k("s_waitcnt lgkmcnt(0)")
    k("s_mov_b32 s52, s4")
    k("s_and_b32 s53, s5, 0xffff")
    k("s_mov_b32 s56, s6")
    k("s_and_b32 s57, s7, 0xffff")
    n = lambda c: 3 + (0 if c & 1 else 2)
    def issue(c):
        if OPT.get('z_nodma1') and c > 2: return
        rot = OPT.get('krot', 1)
        if not c & 1:
            if rot:
                k(f"s_add_u32 s37, s{(0, SRB, SCB, SRB)[rot]}, {c//2}")
                if rot == 3: k(f"s_add_u32 s37, s37, s{SCB}")
                k("s_and_b32 s37, s37, 7")
                k("s_lshl_b32 s33, s37, 7")
                k("s_add_u32 s33, s33, s30")
                k(f"s_mul_i32 s37, s37, {64*3072}")
                k("s_add_u32 s37, s37, s32")
            else:
                k(f"s_add_u32 s33, s30, {(c//2)*128}")
                k(f"s_add_u32 s37, s32, {(c//2)*64*3072}")
            for o in range(2):
                dma(k, VXE if o == 0 else VXO, 52, 33, f"s36, {(c//2)*8192 + o*1024}", 0, OPT.get('xf', ''))
        for p in range(3):
            k(f"s_add_u32 s33, s37, {(c & 1)*32*3072 + p*1024}")
            if OPT.get('z_mix') and p: k(f"s_add_u32 s33, s33, s{37+p}")
            dma(k, VW, 56, 33, f"s31, {65536 + (c % 8)*12288 + p*4096}", 0, OPT.get('wf', ''))
    issued = OPT.get('d1', 4)
    for c in range(issued): issue(c)
    srd(k, 20, 62, WS_SIZE)
    for P in range(8):
        k(f"s_waitcnt vmcnt({sum(n(j) for j in range(2*P+2, issued))})")
        k("s_barrier")
        if 1 <= P <= KC1: early_check(k, TAIL, (P - 1) & 1)
        m = 0
        while issued < 16 and issued - 8 <= 2*P - 3 and m < 4:
            issue(issued); issued += 1; m += 1
    k("s_barrier")
    k("s_barrier")
    role_read(k)
    k("s_barrier")

RLAB = [None]
def p1_helper(k):
    RLAB[0] = k.label('RL')
    k(f"s_setprio {OPT.get('hprio', 3)}")
    k("s_waitcnt lgkmcnt(0)")
    srd(k, 20, 62, WS_SIZE)
    X, SQ, SX, T, RS, NB = 16, 24, 28, 32, 36, 38
    init_done = k.label("initd")
    k(f"""
    s_lshl_b32 s57, s3, 8
    s_or_b32 s57, s57, s{SW}
    s_cmp_lg_u32 s57, 8
    s_cbranch_scc1 {init_done}
    s_lshl_b32 s30, s2, 7
    s_add_u32 s30, s30, {FLG}
    v_lshl_add_u32 v4, v2, 15, s30
    s_and_b32 s30, s2, 7
    s_lshl_b32 s30, s30, 8
    s_add_u32 s30, s30, {CNT + CW*256}
    v_mov_b32 v5, 0
    v_writelane_b32 v4, s30, 4
    s_mov_b64 exec, 31
    buffer_store_dword v5, v4, s[20:23], 0 offen sc1
    s_mov_b64 exec, -1
    """)
    k.place(init_done)
    def mark():
        l = k.label("mk")
        k("s_cmp_lg_u32 s57, 8")
        k(f"s_cbranch_scc1 {l}")
        k(f"s_lshl_b32 s30, s{SXCD}, 5")
        k(f"s_lshr_b32 s31, s{SIDX}, 3")
        k(f"s_cmp_lg_u32 s{SCHK}, 0")
        k(f"s_cselect_b32 s31, s31, s{SIDX}")
        k(f"s_cselect_b32 s32, 4, 0")
        k("s_add_u32 s30, s30, s32")
        k(f"s_lshl_b32 s31, 1, s31")
        k("s_mov_b64 exec, 1")
        k("v_mov_b32 v45, s30")
        k("v_mov_b32 v46, s31")
        k("s_waitcnt vmcnt(0)")
        k("global_atomic_or v45, v46, s[60:61] offset:16 sc1")
        k("s_mov_b64 exec, -1")
        k.place(l)
    def peek(c):
        l, w = k.label("pk"), k.label("pkw")
        k(f"s_cmp_lg_u32 s{SW}, 10")
        k(f"s_cbranch_scc1 {l}")
        k(f"s_cmp_lg_u32 s{SCHK}, 1")
        k(f"s_cbranch_scc1 {l}")
        k(f"s_lshl_b32 s30, s{SXCD}, 5")
        k("v_mov_b32 v47, s30")
        k(f"v_mov_b32 v50, {EARLY - 4*(c & 1)}")
        k("s_mov_b32 s56, 0")
        if c >= KC0 - 1:
            k("s_waitcnt vmcnt(0)")
            k("v_readfirstlane_b32 s30, v48")
            k.nop(1)
            k(f"s_lshr_b32 s30, s30, s{SIDX}")
            k("s_and_b32 s30, s30, 0xff")
            k("s_bcnt1_i32_b32 s31, s30")
            k("s_cmp_lg_u32 s31, 7")
            k(f"s_cbranch_scc1 {w}")
            k("s_ff0_i32_b32 s30, s30")
            k(f"s_add_u32 s56, s30, s{SIDX}")
            k("s_or_b32 s56, s56, 0x100")
            k("s_cmp_eq_u32 s30, 0")
            k("s_cselect_b32 s56, 2, s56")
        k.place(w)
        k("v_mov_b32 v49, s56")
        k("ds_write_b32 v50, v49")
        if c < KC1 - 1: k("global_load_dword v48, v47, s[60:61] offset:16 sc1")
        k("s_waitcnt lgkmcnt(0)")
        k.place(l)
    k(f"""
    s_sub_u32 s29, s{SW}, 8
    s_lshl_b32 s30, s29, 10
    v_add_u32 v4, s30, v3
    s_mov_b32 s39, {hex(ONES)}
    """)
    if OPT.get('t1at', 0) < 0: cold_touch(k)
    if OPT.get('t7'):
        l7 = k.label("t7")
        k(f"s_cmp_lg_u32 s{SW}, 10")
        k(f"s_cbranch_scc1 {l7}")
        srd(k, 44, 6, 512*3072)
        k("s_lshr_b32 s31, s2, 3")
        k(f"s_mul_i32 s31, s31, {48*1024}")
        k("v_lshlrev_b32 v12, 10, v2")
        k("s_mov_b32 exec_hi, 0xffff")
        k("buffer_load_dword v40, v12, s[44:47], s31 offen offset:384")
        if OPT['t7'] > 1: k("buffer_load_dword v41, v12, s[44:47], s31 offen offset:896")
        k("s_mov_b64 exec, -1")
        k.place(l7)
    for c in range(8):
        k("s_barrier")
        if 1 <= c <= KC1: early_check(k, TAIL, (c - 1) & 1)
        if c == 0: mark()
        if c < KC1: peek(c)
        if c == OPT.get('t1at', 0): cold_touch(k)
        if c == OPT.get('t6at', 99):
            l6 = k.label("t6")
            k(f"s_cmp_eq_u32 s{SW}, 8")
            k(f"s_cbranch_scc1 {l6}")
            k(f"s_sub_u32 s42, s{SW}, 9")
            k(f"s_lshl_b32 s42, s42, 21")
            k("s_lshl_b32 s43, s2, 13")
            k("s_add_u32 s42, s42, s43")
            touch(k, 42, 64, 47)
            k.place(l6)
        if c == OPT.get('tcat', 7):
            l11 = k.label("t11b")
            k(f"s_cmp_lg_u32 s{SW}, 11")
            k(f"s_cbranch_scc1 {l11}")
            if True:
                here = k.label("here")
                k("s_getpc_b64 s[44:45]")
                k.place(here)
                k(f"s_sub_u32 s44, s44, {here}-{NAME}")
                k("s_subb_u32 s45, s45, 0")
                k("v_lshlrev_b32 v12, 7, v2")
                for i in range(4):
                    k(f"global_load_dword v{40+i}, v12, s[44:45]")
                    if i < 3: k("v_add_u32 v12, 8192, v12")
            k.place(l11)

        if c < 8 and not (OPT.get('z_nostat') and c > 0):
            cc = c
            k(f"ds_read_b128 v[{X}:{X+3}], v4 offset:{cc*8192}")
            k(f"ds_read_b128 v[{X+4}:{X+7}], v4 offset:{cc*8192 + 4096}")
            for hf in range(2):
                k(f"s_waitcnt lgkmcnt({1-hf})")
                for d in range(4):
                    r = X + 4*hf + d
                    q, sx = SQ + 2*hf + (d & 1), SX + 2*hf + (d & 1)
                    first = (cc == 0 and d < 2)
                    k(f"v_dot2_f32_bf16 v{q}, v{r}, v{r}, {'0' if first else 'v%d' % q}")
                    k(f"v_dot2_f32_bf16 v{sx}, v{r}, s39, {'0' if first else 'v%d' % sx}")
        if c == 7:
            k.nop(3)
            k(f"v_add_f32 v{SQ}, v{SQ}, v{SQ+1}")
            k(f"v_add_f32 v{SQ+2}, v{SQ+2}, v{SQ+3}")
            k(f"v_add_f32 v{SX}, v{SX}, v{SX+1}")
            k(f"v_add_f32 v{SX+2}, v{SX+2}, v{SX+3}")
            row8_sum(k, [SQ, SQ+2, SX, SX+2])
        if c == 7:
            for hf in range(2):
                finish_stats(k, SX + 2*hf, SQ + 2*hf, RS + hf, NB + hf, T, T+1)
            k(f"""
            v_lshrrev_b32 v5, 3, v2
            s_lshl_b32 s30, s29, 5
            s_add_u32 s30, s30, {EXS}
            v_lshl_add_u32 v5, v5, 2, s30
            ds_write2_b32 v5, v{RS}, v{RS+1} offset0:0 offset1:32
            ds_write2_b32 v5, v{NB}, v{NB+1} offset0:64 offset1:96
            """)
    k("s_waitcnt lgkmcnt(0)")
    k("s_barrier")
    nm = k.label("nomx")
    k(f"""
    s_cmp_lg_u32 s28, 0
    s_cbranch_scc1 {nm}
    s_lshl_b32 s30, s27, 8
    s_lshl_b32 s31, s29, 5
    s_add_u32 s30, s30, s31
    s_add_u32 s30, s30, {MX}
    v_lshrrev_b32 v5, 3, v2
    v_lshlrev_b32 v5, 2, v5
    s_mov_b32 exec_lo, 0x01010101
    s_mov_b32 exec_hi, 0x01010101
    buffer_store_dword v{SX}, v5, s[20:23], s30 offen sc1
    buffer_store_dword v{SX+2}, v5, s[20:23], s30 offen offset:128 sc1
    s_mov_b64 exec, -1
    """)
    k.place(nm)
    nw, g, gx, g2 = k.label("nrw"), k.label("gate"), k.label("gatex"), k.label("gate2")
    k("s_mov_b32 s56, 0")
    k(f"s_cmp_lg_u32 s{SW}, 8")
    k(f"s_cbranch_scc1 {nw}")
    k("s_cmp_eq_u32 s3, 1")
    k(f"s_cbranch_scc1 {gx}")
    k("s_mov_b32 s41, 0")
    k("v_lshlrev_b32 v9, 5, v2")
    k("s_mov_b64 exec, 0xff")
    k.place(g)
    k("global_load_dwordx2 v[10:11], v9, s[60:61] offset:16 sc1")
    k("s_add_u32 s41, s41, 1")
    k("s_mov_b64 s[30:31], 0")
    k("s_waitcnt vmcnt(0)")
    for se in range(4):
        k(f"v_bfe_u32 v12, v10, {8*se}, 8")
        k(f"v_bfe_u32 v13, v11, {se}, 1")
        k("v_bcnt_u32_b32 v12, v12, v13")
        k("v_cmp_ne_u32 vcc, 8, v12")
        k("s_or_b64 s[30:31], s[30:31], vcc")
    k(f"s_cbranch_scc0 {g2}")
    k("s_sleep 8")
    k("s_cmp_lt_u32 s41, 0x4000")
    k(f"s_cbranch_scc1 {g}")
    k("s_mov_b32 s56, 1")
    k(f"s_branch {gx}")
    k.place(g2)
    k(f"s_cmp_eq_u32 s{SCHK}, 0")
    k(f"s_cbranch_scc1 {gx}")
    k(f"v_readlane_b32 s30, v10, s{SXCD}")
    k.nop(1)
    k(f"s_lshr_b32 s30, s30, s{SIDX}")
    k("s_ff0_i32_b32 s30, s30")
    k("s_cmp_eq_u32 s30, 0")
    k(f"s_cbranch_scc1 {gx}")
    k(f"s_add_u32 s56, s30, s{SIDX}")
    k("s_or_b32 s56, s56, 0x100")
    k.place(gx)
    if OPT.get('z_rec'):
        k("s_mov_b64 exec, 1")
        k("v_mov_b32 v12, 0")
        k("v_mov_b32 v13, s56")
        k("v_mov_b32 v14, s41")
        k("global_atomic_add v12, v13, s[60:61] sc1")
        k("global_atomic_add v12, v14, s[60:61] offset:4 sc1")
    k("s_mov_b64 exec, -1")
    k(f"v_mov_b32 v4, {ROLE}")
    k("v_mov_b32 v5, s56")
    k("ds_write_b32 v4, v5")
    k("s_waitcnt lgkmcnt(0)")
    k.place(nw)
    k(f"s_lshl_b32 s40, s28, 5")
    k(f"s_add_u32 s40, s40, s27")
    k(f"s_lshl_b32 s40, s40, 7")
    k(f"s_add_u32 s40, s40, {FLG}")
    k("v_mov_b32 v8, 1")
    k("v_mov_b32 v9, 0")
    k(f"s_and_b32 s{SLOC}, s3, 1"); k(f"s_xor_b32 s{SLOC}, s{SLOC}, 1")
    k("s_waitcnt vmcnt(0)")
    stamp(k, 1)
    k("s_barrier")
    k(f"s_cmp_lg_u32 s{SW}, 8")
    k(f"s_cbranch_scc1 {RLAB[0]}")
    nf = k.label("nofire")
    k("s_cmp_lg_u32 s56, 0")
    k(f"s_cbranch_scc1 {nf}")
    k("s_mov_b64 exec, 1")
    if OPT.get('p1m', 1) == 1: pub_store(k, ["buffer_store_dword v8, v9, s[20:23], s40 offen"])
    else: k("buffer_store_dword v8, v9, s[20:23], s40 offen sc1")
    k("s_mov_b64 exec, -1")
    k.place(nf)
    stamp(k, 0)
    role_read(k)
    k(f"v_mov_b32 v4, {PROG}")
    k("v_mov_b32 v5, 0")
    for o in (0, 16, 20, 32, 48): k(f"ds_write_b32 v4, v5 offset:{o}")
    k(f"s_lshr_b32 s42, s{SHEAD}, 2")
    k(f"s_lshl_b32 s42, s42, 5")
    flag_poll(k, 42)
    stamp(k, 2); rstamp(k, 3)
    k("s_waitcnt lgkmcnt(0)")
    k("s_barrier")

def rowmax(k, S, dst, t1, t2):
    k(f"v_max3_f32 v{dst}, v{S}, v{S+1}, v{S+2}")
    k(f"v_max3_f32 v{t1}, v{S+3}, v{S+4}, v{S+5}")
    k(f"v_max3_f32 v{dst}, v{dst}, v{S+6}, v{S+7}")
    k(f"v_max3_f32 v{t1}, v{t1}, v{S+8}, v{S+9}")
    k(f"v_max3_f32 v{dst}, v{dst}, v{S+10}, v{S+11}")
    k(f"v_max3_f32 v{t1}, v{t1}, v{S+12}, v{S+13}")
    k(f"v_max3_f32 v{dst}, v{dst}, v{S+14}, v{S+15}")
    k(f"v_max_f32 v{t1}, v{dst}, v{t1}")
    k(f"v_mov_b32 v{t2}, v{t1}")
    k.nop(2)
    k(f"v_permlane32_swap_b32 v{t1}, v{t2}")
    k.nop(1)
    k(f"v_max_f32 v{dst}, v{t1}, v{t2}")

def p2_compute(k, tail):
    Q = 8; KB = [12, 16]; V1 = [20, 28]; V2 = [24, 32]; P = 36; SS = [48, 64]; CN = 80; O = 96
    VKA, VVA, VINC = 4, 5, 47
    PRG, VPR = 112, 6
    chk, spin = k.label("chk"), k.label("spin")
    def spinf(k):
        k.place(spin)
        k("s_sleep 1")
        k(f"ds_read_b32 v{PRG}, v{VPR}")
        k("s_waitcnt lgkmcnt(0)")
        k(f"s_branch {chk}")
    tail.append(spinf)
    k(f"""
    s_lshl_b32 s30, s{SQB}, 3
    s_add_u32 s30, s30, s{SW}
    s_lshl_b32 s31, s30, 10
    s_lshl_b32 s29, s{SHEAD}, 16
    s_add_u32 s31, s31, s29
    buffer_load_dwordx4 v[{Q}:{Q+3}], v3, s[20:23], s31 offen {OPT['ld']}
    v_mov_b32 v{VKA}, v3
    v_lshrrev_b32 v6, 5, v2
    v_lshlrev_b32 v6, 8, v6
    v_and_b32 v7, 15, v2
    v_lshl_add_u32 v{VVA}, v7, 4, v6
    v_add_u32 v{VVA}, 0x10000, v{VVA}
    v_and_b32 v6, 27, v2
    v_mov_b32 v7, {hex(ONES)}
    v_cmp_eq_u32 vcc, 16, v6
    s_mov_b32 s36, 0xffff
    s_mov_b32 s37, 0xffff
    v_cndmask_b32 v7, 0, v7, vcc
    s_lshl_b32 s42, s30, 15
    s_lshl_b32 s41, s{SHEAD}, 10
    s_add_u32 s42, s42, s41
    s_add_u32 s42, s42, {OF}
    """)
    for r in range(16): k(f"v_mov_b32 v{V1[0]+r}, v7")
    k(f"v_mov_b32 v{VPR}, {PROG}")
    for r in range(8): k(f"v_mov_b32 v{P+r}, 0")
    for r in range(16): k(f"v_mov_b32 v{O+r}, 0")
    def vread(kk, buf, off):
        kk("s_mov_b64 exec, s[36:37]")
        kk(f"ds_read_b128 v[{V1[buf]}:{V1[buf]+3}], v{VVA} offset:{off}")
        kk(f"ds_read_b128 v[{V2[buf]}:{V2[buf]+3}], v{VVA} offset:{off+512}")
        kk("s_mov_b64 exec, -1")
    stamp(k, 4)
    k("s_barrier")
    stamp(k, 5)
    k(f"ds_read_b128 v[{KB[0]}:{KB[0]+3}], v{VKA}")
    k(f"ds_read_b128 v[{KB[1]}:{KB[1]+3}], v{VKA} offset:1024")
    vread(k, 0, 0)
    k("s_waitcnt vmcnt(0) lgkmcnt(3)")
    k(f"{MFMA} v[{SS[0]}:{SS[0]+15}], v[{KB[0]}:{KB[0]+3}], v[{Q}:{Q+3}], 0")
    k.nop(12)
    rowmax(k, SS[0], 44, 45, 46)
    for r in range(16): k(f"v_sub_f32 v{CN+r}, 0, v44")
    k.nop(2)
    k(f"{MFMA} v[{SS[0]}:{SS[0]+15}], v[{KB[0]}:{KB[0]+3}], v[{Q}:{Q+3}], v[{CN}:{CN+15}]")
    k("s_mov_b32 s38, 0")
    k.nop(10)
    loop = k.label("loop")
    k(".p2align 6")
    k.place(loop)
    pr = OPT['prio']
    for t in range(8):
        cur, nx = SS[t & 1], SS[(t+1) & 1]
        e = lambda i: k(f"v_exp_f32 v{cur+i}, v{cur+i}")
        c = lambda i: k(f"v_cvt_pk_bf16_f32 v{P+i}, v{cur+2*i}, v{cur+2*i+1}")
        k("s_waitcnt lgkmcnt(0)")
        if t == 6:
            k.place(chk)
            k(f"v_cmp_ge_u32 vcc, s38, v{PRG}")
            k("s_cmp_lg_u64 vcc, 0")
            k(f"s_cbranch_scc1 {spin}")
        kb = KB[(t+1) & 1]
        pb = (t+1) & 1
        sp = (lambda n: k(f"s_setprio {n}")) if pr else (lambda n: None)
        k(f"{MFMA} v[{nx}:{nx+15}], v[{kb}:{kb+3}], v[{Q}:{Q+3}], v[{CN}:{CN+15}]")
        sp(0)
        k(f"ds_read_b128 v[{KB[t&1]}:{KB[t&1]+3}], v{VKA} offset:{(t+2)*1024}")
        e(0); e(1)
        k(f"{MFMA} v[{O}:{O+15}], v[{V2[pb]}:{V2[pb]+3}], v[{P+4}:{P+7}], v[{O}:{O+15}]")
        vread(k, pb, (t+1)*1024)
        if t == 5: k(f"ds_read_b32 v{PRG}, v{VPR}")
        e(2); e(3); sp(1); c(0); e(4); e(5); c(1); e(6); e(7); sp(2); c(2); e(8); e(9); c(3); e(10); e(11)
        k(f"{MFMA} v[{O}:{O+15}], v[{V1[t&1]}:{V1[t&1]+3}], v[{P}:{P+3}], v[{O}:{O+15}]")
        c(4); e(12); e(13); sp(3); c(5); e(14); e(15); c(6)
        if t == 7:
            k(f"v_add_u32 v{VKA}, 8192, v{VKA}")
            k(f"v_add_u32 v{VVA}, 8192, v{VVA}")
            k("s_add_u32 s38, s38, 1")
            k(f"v_mov_b32 v{PRG}, s38")
            k(f"ds_write_b32 v{VPR}, v{PRG} offset:32")
            k("s_cmp_lt_u32 s38, 8")
        c(7)
    k(f"s_cbranch_scc1 {loop}")
    k("s_setprio 0")
    stamp(k, 6)
    k.nop(1)
    k(f"{MFMA} v[{O}:{O+15}], v[{V2[1]}:{V2[1]+3}], v[{P+4}:{P+7}], v[{O}:{O+15}]")
    if True:
        k("s_waitcnt lgkmcnt(0)")
        k.nop(11)
    fb, fin = k.label("fb"), k.label("fin")
    def finish(k):
        k(f"v_rcp_f32 v44, v{O+8}")
        k.nop(1)
        for r in range(8): k(f"v_mul_f32 v{SS[1]+r}, v{O+r}, v44")
        for r in range(4): k(f"v_cvt_pk_bf16_f32 v{P+r}, v{SS[1]+2*r}, v{SS[1]+2*r+1}")
        pub_store(k, [f"buffer_store_dwordx4 v[{P}:{P+3}], v3, s[20:23], s42 offen"], 0)
    finish(k)
    k(f"""
    v_max3_f32 v44, abs(v{O}), abs(v{O+1}), abs(v{O+2})
    v_max3_f32 v45, abs(v{O+3}), abs(v{O+4}), abs(v{O+5})
    v_max3_f32 v44, v44, abs(v{O+6}), abs(v{O+7})
    v_add_f32 v46, v{O}, v{O+1}
    v_max3_f32 v44, v44, v45, v{O+8}
    s_mov_b32 s39, {hex(f32(2.0**100))}
    """)
    for r in range(2, 9): k(f"v_add_f32 v46, v46, v{O+r}")
    k(f"v_and_b32 v46, 0x7fffffff, v46")
    k(f"v_cmp_ngt_f32 vcc, s39, v44")
    k(f"v_cmp_ngt_f32 s[40:41], s39, v46")
    k.nop(1)
    k("s_or_b64 s[40:41], s[40:41], vcc")
    k("s_cmp_lg_u64 s[40:41], 0")
    k(f"s_cbranch_scc1 {fb}")
    if OPT.get('forcefb'):
        k(f"s_bitcmp1_b32 s{SW}, 0")
        k(f"s_cbranch_scc1 {fb}")
    k.place(fin)
    k("s_waitcnt vmcnt(0)")
    k("s_barrier")
    k("s_barrier")
    def fallback(k):
        k.place(fb)
        k(f"v_mov_b32 v{VKA}, v3")
        k(f"v_subrev_u32 v{VVA}, 0x10000, v{VVA}")
        k(f"v_mov_b32 v7, 0xff7fffff")
        for r in range(16): k(f"v_mov_b32 v{O+r}, 0")
        k("s_mov_b32 s38, 0")
        fl = k.label("fl")
        k.place(fl)
        S = SS[0]
        k(f"ds_read_b128 v[{KB[0]}:{KB[0]+3}], v{VKA}")
        vread(k, 0, 0)
        k("s_waitcnt lgkmcnt(0)")
        k(f"{MFMA} v[{S}:{S+15}], v[{KB[0]}:{KB[0]+3}], v[{Q}:{Q+3}], 0")
        k.nop(14)
        rowmax(k, S, 44, 45, 46)
        k("v_max_f32 v44, v44, v7")
        k("v_sub_f32 v45, v7, v44")
        k("v_exp_f32 v45, v45")
        k("v_mov_b32 v7, v44")
        for r in range(16): k(f"v_sub_f32 v{S+r}, v{S+r}, v44")
        for r in range(16): k(f"v_mul_f32 v{O+r}, v{O+r}, v45")
        for r in range(16): k(f"v_exp_f32 v{S+r}, v{S+r}")
        k.nop(1)
        for r in range(8): k(f"v_cvt_pk_bf16_f32 v{P+r}, v{S+2*r}, v{S+2*r+1}")
        k.nop(2)
        k(f"{MFMA} v[{O}:{O+15}], v[{V1[0]}:{V1[0]+3}], v[{P}:{P+3}], v[{O}:{O+15}]")
        k(f"{MFMA} v[{O}:{O+15}], v[{V2[0]}:{V2[0]+3}], v[{P+4}:{P+7}], v[{O}:{O+15}]")
        k(f"v_add_u32 v{VKA}, 1024, v{VKA}")
        k(f"v_add_u32 v{VVA}, 1024, v{VVA}")
        k("s_add_u32 s38, s38, 1")
        k("s_cmp_lt_u32 s38, 64")
        k.nop(14)
        k(f"s_cbranch_scc1 {fl}")
        k("s_waitcnt vmcnt(0)")
        finish(k)
        k(f"s_branch {fin}")
    tail.append(fallback)

def p2_relayout(k):
    k(f"""
    s_sub_u32 s29, s{SW}, 9
    """)
    early = OPT.get('rl_early', 0)
    if early < 2:
        k("s_waitcnt lgkmcnt(0)")
        k("s_barrier")
    if early < 1:
        k("s_barrier")
    loads, stores = relayout(k)
    loads(0); loads(1)
    srd(k, 44, 8, 512*1024)
    k("s_and_b32 s35, s29, 1")
    k("s_lshl_b32 s36, s2, 1")
    k("s_add_u32 s35, s35, s36")
    k("s_lshl_b32 s36, s35, 10")
    k("buffer_load_dwordx4 v[72:75], v3, s[44:47], s36 offen")
    if early >= 2:
        k("s_waitcnt lgkmcnt(0)")
        k("s_barrier")
    if early >= 1:
        k("s_barrier")
    k("s_waitcnt vmcnt(27)")
    stores(0)
    loads(2)
    k("s_waitcnt vmcnt(26)")
    stores(1)
    k(f"s_mov_b32 s36, {hex(ONES)}")
    k("v_dot2_f32_bf16 v76, v72, s36, 0")
    for d in range(1, 4): k(f"v_dot2_f32_bf16 v76, v{72+d}, s36, v76")
    k.nop(1)
    for ctl in ("quad_perm:[1,0,3,2]", "quad_perm:[2,3,0,1]", "row_half_mirror", "row_mirror"):
        k.nop(2)
        k(f"v_add_f32_dpp v76, v76, v76 {ctl} row_mask:0xf bank_mask:0xf")
    k.nop(1)
    for i in range(4): k(f"v_readlane_b32 s{48+i}, v76, {16*i}")
    k(f"""
    s_lshr_b32 s36, s35, 4
    s_lshl_b32 s36, s36, 6
    s_bfe_u32 s43, s35, 0x10002
    s_lshl_b32 s43, s43, 4
    s_add_u32 s36, s36, s43
    v_mov_b32 v76, s48
    v_add_f32 v76, s49, v76
    v_add_f32 v76, s50, v76
    v_add_f32 v76, s51, v76
    v_mul_f32 v76, {hex(f32(1/512))}, v76
    s_bfe_u32 s43, s35, 0x10003
    s_lshl_b32 s43, s43, 3
    s_add_u32 s36, s36, s43
    v_cvt_pk_bf16_f32 v77, v76, v76
    s_and_b32 s43, s35, 3
    s_lshl_b32 s43, s43, 1
    s_add_u32 s36, s36, s43
    v_and_b32 v78, 0xffff0000, v77
    v_sub_f32 v78, v76, v78
    s_add_u32 s36, s36, {WBT}
    v_cvt_pk_bf16_f32 v78, v78, v78
    v_mov_b32 v79, 0
    s_mov_b64 exec, 1
    buffer_store_short v77, v79, s[20:23], s36 offen sc1
    buffer_store_short v78, v79, s[20:23], s36 offen offset:32 sc1
    s_mov_b64 exec, -1
    """)
    k("s_waitcnt vmcnt(0)")
    stores(2)
    k("s_waitcnt vmcnt(0)")
    na = k.label("noarr")
    k(f"v_mov_b32 v5, {PROG + 48}")
    k("v_mov_b32 v6, 1")
    k("s_mov_b64 exec, 1")
    k("ds_add_rtn_u32 v7, v5, v6")
    k("s_waitcnt lgkmcnt(0)")
    k("v_readfirstlane_b32 s42, v7")
    k("s_cmp_lg_u32 s42, 2")
    k(f"s_cbranch_scc1 {na}")
    k(f"s_add_u32 s42, s{SXCD}, {CW}")
    arrive(k, 42)
    k.place(na)
    k("s_endpgm")

def p2_helper(k, done):
    ld = OPT['ld']
    k(f"s_lshl_b32 s33, s{SHEAD}, 16")
    def kv(c):
        k(f"s_add_u32 s31, s{SHEAD}, {c}" if OPT.get('kvrot', 0) else f"s_mov_b32 s31, {c}")
        k("s_and_b32 s31, s31, 7")
        k("s_lshl_b32 s31, s31, 13")
        k("s_add_u32 s31, s31, s33")
        for base, l in ((KF, 0), (VF, 65536)):
            for g in range(2):
                k(f"s_add_u32 s34, s31, {base + g*4096}")
                k(f"s_mov_b32 m0, {l + c*8192 + g*4096}")
                k.nop(1)
                for q in range(4):
                    k(f"buffer_load_dwordx4 v3, s[20:23], s34 offen" + (f" offset:{q*1024}" if q else "") + f" {ld} lds")
    kv(0); kv(1)
    k("s_waitcnt vmcnt(16)")
    k("s_barrier")
    issued = 2
    def publish(c):
        k(f"v_mov_b32 v5, {c if c < 7 else 64}")
        k("ds_write_b32 v4, v5")
    while issued < OPT.get('kvd', 3): kv(issued); issued += 1
    for c in range(1, 8):
        k(f"s_waitcnt vmcnt({16*(issued - 1 - c)})")
        publish(c)
        if issued < 8: kv(issued); issued += 1
    stamp(k, 12)
    clean(k, 2)
    k("s_setprio 3")
    k(f"s_and_b32 s{SLOC}, s3, 1"); k(f"s_xor_b32 s{SLOC}, s{SLOC}, 1")
    m5 = OPT.get('t5', 0)
    if m5:
        k(f"s_lshl_b32 s43, s{SXCD}, 5")
        k(f"s_add_u32 s43, s43, s{SIDX}")
        if m5 & 1:
            k(f"s_mul_i32 s42, s43, {172*128}")
            k(f"s_add_u32 s42, s42, {ACT}")
            touch(k, 42, 172)
        for bit, base in ((2, HF), (4, OF)):
            if m5 & bit:
                k(f"s_lshl_b32 s42, s43, 13")
                k(f"s_add_u32 s42, s42, {base}")
                touch(k, 42, 64)
        if m5 & 8:
            srd(k, 44, 18, 2*MB)
            k("s_lshl_b32 s42, s43, 13")
            k("buffer_load_dword v40, v12, s[44:47], s42 offen")
    k("s_mov_b32 s55, 0")
    if OPT.get('t2', 1):
        again, skip, ok = k.label("t2a"), k.label("t2s"), k.label("t2o")
        k(f"""
        s_mov_b32 s40, {CNT + CW*256}
        s_mov_b32 exec_lo, 0xff
        s_mov_b32 exec_hi, 0
        v_lshlrev_b32 v9, 8, v2
        s_mov_b32 s41, 0
        """)
        k.place(again)
        k(f"s_sleep {OPT.get('slpw', 32)}")
        k("buffer_load_dword v10, v9, s[20:23], s40 offen sc1")
        k("ds_read_b32 v11, v4 offset:32")
        k("s_waitcnt vmcnt(0) lgkmcnt(0)")
        k("v_readfirstlane_b32 s41, v11")
        k("v_cmp_gt_u32 vcc, 32, v10")
        k(f"s_cmp_ge_u32 s41, {OPT.get('t2lim', 6)}")
        k(f"s_cbranch_scc1 {skip}")
        k("s_cmp_lg_u64 vcc, 0")
        k(f"s_cbranch_scc1 {again}")
        k("s_mov_b32 s55, 1")
        k("s_mov_b64 exec, -1")
        if OPT.get('woe', 1):
            k(f"s_lshr_b32 s44, s{SIDX}, 2")
            k(f"s_lshl_b32 s44, s44, 16")
            k(f"s_add_u32 s44, s44, {WOF}")
            for lw in range(4):
                for j in range(NWE):
                    k(f"s_add_u32 s46, s44, {(lw & 1)*32768 + (lw >> 1)*16384 + j*1024}")
                    k(f"s_mov_b32 m0, {wo_addr(j) + lw*1024}")
                    k.nop(1)
                    k(f"buffer_load_dwordx4 v3, s[20:23], s46 offen {ld} lds")
            k(f"s_mov_b32 s46, {WBT}")
            k(f"s_mov_b32 m0, {WBL}")
            k.nop(1)
            k(f"buffer_load_dwordx4 v3, s[20:23], s46 offen {ld} lds")
            k(f"buffer_load_dwordx4 v3, s[20:23], s46 offen offset:1024 {ld} lds")
            k(f"v_mov_b32 v5, 1")
            k("s_waitcnt vmcnt(0)")
            k("ds_write_b32 v4, v5 offset:20")
        for base, tot in [(WOF, 4096), (WGF, 43*256), (WGF + 43*32768, 43*256), (WDF, 43*256)][OPT.get('t2a', 0):OPT.get('t2b', 3)]:
            per = tot // 32
            k(f"s_mul_i32 s42, s{SIDX}, {per*128}")
            k(f"s_add_u32 s42, s42, {base}")
            touch(k, 42, per)
        k.place(skip)
        k("s_mov_b64 exec, -1")

def res_cfg(mode):
    if mode == 'wo':
        return dict(NKS=32, JL=16, WIN=16, BSRC=OF, ASRC=WOF, RES=XF)
    return dict(NKS=86, JL=39, WIN=OPT.get('win5', 12), BSRC=ACT, ASRC=WDF, RES=HF)

def res_map(k):
    k(f"""
    s_lshl_b32 s27, s{SXCD}, 2
    s_and_b32 s28, s{SIDX}, 3
    s_add_u32 s27, s27, s28
    s_lshr_b32 s28, s{SIDX}, 2
    """)

def res_consumer(k, mode, sb):
    c_ = res_cfg(mode); NKS, JL, WIN = c_['NKS'], c_['JL'], c_['WIN']
    NH = NKS // 2
    wo = mode == 'wo'
    SRB, SCB = 27, 28
    ld = OPT['ld']
    R, ACC, AB, AT, AM, WM = 8, 16, 48, 80, 144, 160
    BW = 80 if wo else 112
    res_map(k)
    k(f"""
    s_and_b32 s29, s{SW}, 1
    s_lshl_b32 s30, s{SRB}, 1
    s_add_u32 s30, s30, s29
    s_lshr_b32 s31, s{SW}, 1
    s_lshl_b32 s32, s{SCB}, 1
    s_add_u32 s32, s32, s31
    s_mul_i32 s33, s31, 3072
    v_add_u32 v6, s33, v3
    s_lshl_b32 s33, s31, 10
    s_add_u32 s33, s33, 1024
    v_add_u32 v7, s33, v3
    s_mul_i32 s34, s31, {NH}
    s_mul_i32 s35, s30, {NKS}
    s_add_u32 s35, s35, s34
    s_lshl_b32 s35, s35, 10
    s_add_u32 s35, s35, {c_['BSRC']}
    """)
    if wo:
        k(f"""
        s_lshl_b32 s40, s30, 5
        s_lshl_b32 s41, s32, 1
        s_add_u32 s40, s40, s41
        s_lshl_b32 s40, s40, 10
        s_add_u32 s41, s40, {XF}
        buffer_load_dwordx4 v[{R}:{R+3}], v3, s[20:23], s41 offen {ld}
        buffer_load_dwordx4 v[{R+4}:{R+7}], v3, s[20:23], s41 offen offset:1024 {ld}
        s_add_u32 s41, s40, {HF}
        s_lshl_b32 s47, s32, 13
        s_lshl_b32 s48, s30, 7
        s_add_u32 s47, s47, s48
        s_add_u32 s47, s47, {ST}
        s_add_u32 s48, s48, {MX}
        v_and_b32 v0, 1, v2
        v_lshlrev_b32 v0, 5, v0
        v_lshrrev_b32 v1, 5, v2
        v_lshl_add_u32 v0, v1, 4, v0
        s_lshl_b32 s33, s31, 10
        s_add_u32 s33, s33, {WBL}
        v_add_u32 v0, s33, v0
        """)
    else:
        for q in range(2):
            k(f"s_xor_b32 s36, s32, {q}")
            k(f"s_mul_i32 s36, s36, {NKS}")
            k(f"s_add_u32 s36, s36, s34")
            k(f"s_lshl_b32 s36, s36, 10")
            k(f"s_add_u32 s36, s36, {c_['ASRC'] + JL*1024}")
            for j in range(NH - JL):
                r = AT + 8*j + 4*q
                k(f"buffer_load_dwordx4 v[{r}:{r+3}], v3, s[20:23], s36 offen" + (f" offset:{j*1024}" if j else "") + f" {ld}")
        srd(k, 52, 18, 2*MB)
        k(f"""
        v_and_b32 v8, 31, v2
        v_lshlrev_b32 v8, 10, v8
        v_lshrrev_b32 v9, 5, v2
        v_lshl_add_u32 v8, v9, 4, v8
        s_lshl_b32 s47, s30, 15
        s_lshl_b32 s48, s32, 6
        s_add_u32 s47, s47, s48
        """)
        if OPT.get('fl', 1):
            k(f"""
            s_lshl_b32 s36, s31, 2
            v_add_u32 v10, s36, v9
            v_and_b32 v12, 7, v2
            v_xor_b32 v10, v10, v12
            v_xor_b32 v11, 2, v10
            v_and_b32 v13, 31, v2
            s_lshl_b32 s36, s29, 12
            s_add_u32 s36, s36, 32768
            v_lshl_add_u32 v13, v13, 7, s36
            v_lshl_add_u32 v10, v10, 4, v13
            v_lshl_add_u32 v11, v11, 4, v13
            v_lshrrev_b32 v13, 3, v2
            v_xor_b32 v14, v12, v13
            v_lshlrev_b32 v14, 4, v14
            v_lshl_add_u32 v13, v13, 10, v14
            s_lshl_b32 s36, s{SW}, 11
            s_add_u32 s36, s36, 32768
            v_add_u32 v12, s36, v3
            s_lshl_b32 s47, s{SRB}, 16
            s_lshl_b32 s48, s{SW}, 14
            s_add_u32 s47, s47, s48
            s_lshl_b32 s48, s{SCB}, 7
            s_add_u32 s47, s47, s48
            """)
    RED = 5*20480 if wo else 0
    if wo:
        for v, x in ((4, 2), (5, 0)):
            k(f"s_xor_b32 s36, s{SW}, {x}")
            k(f"s_lshl_b32 s37, s36, 12")
            k(f"s_add_u32 s37, s37, {RED}")
            k(f"v_add_u32 v{v}, s37, v3")
            k(f"s_lshl_b32 s36, s36, 8")
            k(f"s_add_u32 s{38 + (x >> 1)}, s36, {RED + 16384}")
    else:
        k(f"s_xor_b32 s36, s{SW}, 2")
        k(f"s_lshl_b32 s36, s36, 12")
        k(f"v_add_u32 v4, s36, v3")
        k(f"s_lshl_b32 s36, s{SW}, 12")
        k(f"v_add_u32 v5, s36, v3")
    k("s_mov_b32 s45, 0xffff0000")
    RS_ = R if wo else KEEP
    if wo: k("s_waitcnt vmcnt(0)")
    for d in range(8):
        k(f"v_lshlrev_b32 v{ACC+2*d}, 16, v{RS_+d}")
        k(f"v_and_b32 v{ACC+2*d+1}, s45, v{RS_+d}")
    if wo: k("s_setprio 3")
    k("s_barrier")
    stamp(k, sb)
    if wo:
        k("v_and_b32 v1, 31, v2")
        k("v_lshlrev_b32 v1, 2, v1")
        k(f"buffer_load_dword v1, v1, s[20:23], s48 offen {ld}")
    def bload(j):
        if j % 4 == 0: k(f"s_add_u32 s36, s35, {j*1024}")
        r = BW + 4*(j % WIN)
        k(f"buffer_load_dwordx4 v[{r}:{r+3}], v3, s[20:23], s36 offen" + (f" offset:{(j % 4)*1024}" if j % 4 else "") + f" {ld}")
    ds = []; seg = [0]
    def ard(j, q):
        if j < JL:
            if not wo and j == JM and q == 0: k("s_barrier")
            ad = wo_addr(j) if wo else j*4096
            if q == 0 and not (0 <= ad - seg[0] <= 61440):
                k(f"v_add_u32 v6, {ad - seg[0]}, v6")
                k(f"v_add_u32 v7, {ad - seg[0]}, v7")
                seg[0] = ad
            r = AB + 8*(j & 3) + 4*q
            k(f"ds_read_b128 v[{r}:{r+3}], v{6+q} offset:{ad - seg[0]}"); ds.append(j)
    def mrd(j):
        if wo and j < NH:
            k(f"ds_read_b128 v[{WM+4*(j&1)}:{WM+4*(j&1)+3}], v0 offset:{j*64}"); ds.append(j)
    nb = min(WIN, NH)
    for j in range(nb): bload(j)
    if wo: k("s_setprio 0")
    for j in range(3):
        ard(j, 0); ard(j, 1)
        if j < 2: mrd(j)
    for j in range(NH):
        lg = (len(ds) - 1 - max(i for i, x in enumerate(ds) if x == j)) if j in ds else None
        k(f"s_waitcnt vmcnt({nb - 1 - j})" + (f" lgkmcnt({lg})" if lg is not None else ""))
        A = AB + 8*(j & 3) if j < JL else AT + 8*(j - JL)
        B = BW + 4*(j % WIN)
        if wo and j == NH - 1:
            k(f"{MFMA} v[{AM}:{AM+15}], v[{WM+4*(j&1)}:{WM+4*(j&1)+3}], v[{B}:{B+3}], v[{AM}:{AM+15}]")
        for q in ((1, 0) if j == NH - 1 else (0, 1)):
            C = "0" if (j == 0 and q == 1) else f"v[{ACC+16*q}:{ACC+16*q+15}]"
            k(f"{MFMA} v[{ACC+16*q}:{ACC+16*q+15}], v[{A+4*q}:{A+4*q+3}], v[{B}:{B+3}], {C}")
            ard(j + 3, q)
        if wo and j < NH - 1:
            C = "0" if j == 0 else f"v[{AM}:{AM+15}]"
            k(f"{MFMA} v[{AM}:{AM+15}], v[{WM+4*(j&1)}:{WM+4*(j&1)+3}], v[{B}:{B+3}], {C}")
            mrd(j + 2)
        if nb < NH:
            bload(nb); nb += 1
    stamp(k, sb + 1)
    U = 48
    if wo:
        k(f"v_lshl_add_u32 v{R}, v2, 2, s39")
        k(f"v_lshl_add_u32 v{R+1}, v2, 2, s38")
        k.nop(9)
    else:
        k.nop(10)
        k("s_barrier")
    for g in range(4):
        k(f"ds_write_b128 v4, v[{ACC+16+4*g}:{ACC+19+4*g}] offset:{g*1024}")
    if wo:
        k(f"v_add_f32 v{AM}, v{AM}, v{AM+1}")
        k(f"ds_write_b32 v{R}, v{AM}")
        k(f"v_add_f32 v0, v{AM}, v1")
    k("s_waitcnt lgkmcnt(0)")
    k("s_barrier")
    if wo and OPT.get('z_st'): stamp(k, 0)
    if wo: k(f"ds_read_b32 v1, v{R+1}")
    for g in range(4):
        k(f"ds_read_b128 v[{U+4*g}:{U+4*g+3}], v5 offset:{g*1024}")
    P = 64
    for g in range(4):
        k(f"s_waitcnt lgkmcnt({3-g})")
        if wo and g == 0: k("v_add_f32 v0, v0, v1")
        for r in (4*g, 4*g+2):
            k(f"v_pk_add_f32 v[{ACC+r}:{ACC+r+1}], v[{ACC+r}:{ACC+r+1}], v[{U+r}:{U+r+1}]")
        if wo:
            for r in (4*g, 4*g+2):
                k(f"v_pk_add_f32 v[{U+r}:{U+r+1}], v[{ACC+r}:{ACC+r+1}], v[0:1] op_sel_hi:[1,0] neg_lo:[0,1] neg_hi:[0,1]")
            for d in (2*g, 2*g+1):
                k(f"v_cvt_pk_bf16_f32 v{P+d}, v{U+2*d}, v{U+2*d+1}")
            if g & 1:
                pub_store(k, [f"buffer_store_dwordx4 v[{P+2*g-2}:{P+2*g+1}], v3, s[20:23], s41 offen" + (" offset:1024" if g == 3 else "")], 1)
        else:
            for d in (2*g, 2*g+1):
                k(f"v_cvt_pk_bf16_f32 v{P+d}, v{ACC+2*d}, v{ACC+2*d+1}")
    if wo:
        SQ = 72
        k(f"v_dot2_f32_bf16 v{SQ}, v{P}, v{P}, 0")
        k(f"v_dot2_f32_bf16 v{SQ+1}, v{P+1}, v{P+1}, 0")
        for d in range(2, 8):
            k(f"v_dot2_f32_bf16 v{SQ+(d&1)}, v{P+d}, v{P+d}, v{SQ+(d&1)}")
        k("v_lshlrev_b32 v0, 2, v2")
        k.nop(2)
        k(f"v_add_f32 v{SQ}, v{SQ}, v{SQ+1}")
        half_sum(k, SQ, 74, 75)
        k("s_mov_b32 exec_hi, 0")
        pub_store(k, [f"buffer_store_dword v{SQ}, v0, s[20:23], s47 offen"], 1)
        k("s_mov_b64 exec, -1")
        if OPT.get('z_st'): stamp(k, 1)
        for d in range(8):
            k(f"v_cvt_pk_bf16_f32 v{KEEP+d}, v{ACC+2*d}, v{ACC+2*d+1}")
        k("v_lshlrev_b32 v0, 7, v2")
        k("s_waitcnt vmcnt(0)")
        k("s_barrier")
        if OPT.get('rf', 0) & 1:
            k("s_mov_b64 exec, 0xffff")
            k(f"buffer_load_dword v1, v0, s[20:23], s41 offen {ld}")
            k("s_mov_b64 exec, -1")
    else:
        k.nop(2)
        k(f"""
        v_permlane32_swap_b32 v{P}, v{P+2}
        v_permlane32_swap_b32 v{P+1}, v{P+3}
        v_permlane32_swap_b32 v{P+4}, v{P+6}
        v_permlane32_swap_b32 v{P+5}, v{P+7}
        """)
        sto = OPT.get('sto', '')
        if OPT.get('fl', 1):
            k(f"ds_write_b128 v10, v[{P}:{P+3}]")
            k(f"ds_write_b128 v11, v[{P+4}:{P+7}]")
            k("s_waitcnt lgkmcnt(0)")
            k("s_barrier")
            k(f"ds_read_b128 v[{P}:{P+3}], v12")
            k(f"ds_read_b128 v[{P+4}:{P+7}], v12 offset:1024")
            k("s_waitcnt lgkmcnt(1)")
            k(f"buffer_store_dwordx4 v[{P}:{P+3}], v13, s[52:55], s47 offen {sto}")
            k("s_add_u32 s47, s47, 8192")
            k("s_waitcnt lgkmcnt(0)")
            k(f"buffer_store_dwordx4 v[{P+4}:{P+7}], v13, s[52:55], s47 offen {sto}")
        else:
            k.nop(1)
            k(f"buffer_store_dwordx4 v[{P}:{P+3}], v8, s[52:55], s47 offen {sto}")
            k(f"buffer_store_dwordx4 v[{P+4}:{P+7}], v8, s[52:55], s47 offen offset:32 {sto}")

def res_wsetup(k, mode):
    c_ = res_cfg(mode); NKS = c_['NKS']
    k(f"""
    s_sub_u32 s45, s{SW}, 4
    s_lshr_b32 s44, s{SIDX}, 2
    s_lshl_b32 s44, s44, 1
    s_and_b32 s46, s45, 1
    s_add_u32 s44, s44, s46
    s_mul_i32 s44, s44, {NKS}
    s_lshr_b32 s46, s45, 1
    s_mul_i32 s46, s46, {NKS//2}
    s_add_u32 s44, s44, s46
    s_lshl_b32 s44, s44, 10
    s_add_u32 s44, s44, {c_['ASRC']}
    s_lshl_b32 s45, s45, 10
    """)

NWE = 7
JM = 25
def wo_addr(j):
    if j < NWE: return 132096 + j*4096
    j -= NWE
    return (j >> 1)*20480 + 12288 + (j & 1)*4096

def res_wload(k, j0, j1, wo=False):
    for j in range(j0, j1):
        k(f"s_add_u32 s46, s44, {j*1024}")
        dma(k, 3, 20, 46, f"s45, {wo_addr(j) if wo else j*4096}", 0, OPT['ld'])

SLOT4, RING4, NCH4 = 20480, 8, 16
def p4_map(k):
    k(f"""
    s_lshl_b32 s27, s{SXCD}, 1
    s_cmp_ge_u32 s{SIDX}, 15
    s_cselect_b32 s28, 1, 0
    s_add_u32 s27, s27, s28
    s_mul_i32 s28, s28, 15
    s_sub_u32 s28, s{SIDX}, s28
    s_min_u32 s28, s28, 15
    """)

def p4_consumer(k):
    ld = OPT['ld']
    skip, fin = k.label("p4skip"), k.label("p4fin")
    XB = [8, 16]; WB = [24, 36]; ACC = 64; R2 = [0, 4]; STR = 48
    p4_map(k)
    k("s_cmp_eq_u32 s28, 15")
    k(f"s_cbranch_scc1 {skip}")
    k(f"""
    s_and_b32 s29, s{SW}, 1
    s_lshr_b32 s31, s{SW}, 1
    s_lshl_b32 s30, s27, 2
    s_lshl_b32 s33, s29, 1
    s_add_u32 s30, s30, s33
    s_lshl_b32 s33, s29, 12
    s_add_u32 s33, s33, 12288
    v_add_u32 v7, s33, v3
    s_mul_i32 s33, s31, 6144
    v_add_u32 v6, s33, v3
    s_mul_i32 s40, s30, 86
    s_mul_i32 s41, s28, 6
    s_mul_i32 s33, s31, 3
    s_add_u32 s41, s41, s33
    s_add_u32 s40, s40, s41
    s_lshl_b32 s40, s40, 10
    s_add_u32 s40, s40, {ACT}
    s_mov_b32 s47, 0
    s_lshl_b32 s32, s30, 7
    s_add_u32 s32, s32, {ST}
    v_and_b32 v4, 31, v2
    v_lshlrev_b32 v4, 2, v4
    v_lshrrev_b32 v8, 5, v2
    v_lshl_add_u32 v4, v8, 13, v4
    s_mov_b32 s48, 0
    """)
    for r in range(96): k(f"v_mov_b32 v{ACC+r}, 0")
    k("s_barrier")
    stamp(k, 9)
    for i in range(8):
        k(f"s_add_u32 s35, s32, {i*16384}")
        k(f"buffer_load_dword v{STR+i}, v4, s[20:23], s35 offen {ld}")
        k(f"buffer_load_dword v{STR+8+i}, v4, s[20:23], s35 offen offset:128 {ld}")
    def wrd(u, b, m):
        return f"ds_read_b128 v[{b+4*m}:{b+4*m+3}], v6 offset:{m*2048 + (u & 1)*1024}"
    def xrd(u, b, t):
        return f"ds_read_b128 v[{b+4*t}:{b+4*t+3}], v7 offset:{t*2048 + (u & 1)*1024}"
    def reads(u):
        return [wrd(u, WB[u & 1], 0), xrd(u, XB[u & 1], 0), xrd(u, XB[u & 1], 1), wrd(u, WB[u & 1], 1), wrd(u, WB[u & 1], 2)]
    k("s_barrier")
    stamp(k, 10)
    for l in reads(0): k(l)
    ml = k.label("p4ml")
    k(".p2align 3")
    k.place(ml)
    for u in range(2):
        if u == 1:
            k(f"s_add_u32 s48, s48, 1")
            k(f"s_and_b32 s48, s48, {RING4-1}")
            k(f"s_cselect_b32 s49, s50, s51")
            k("s_add_u32 s47, s47, 1")
            k("s_barrier")
            k("v_add_u32 v7, s49, v7")
            k("v_add_u32 v6, s49, v6")
            k(f"s_cmp_lt_u32 s47, {NCH4 - 1}")
        b, x = WB[u], XB[u]
        nx = reads(u + 1)
        for i in range(6):
            m, t = i >> 1, i & 1
            if i == 0: k("s_waitcnt lgkmcnt(2)")
            if i == 2: k("s_waitcnt lgkmcnt(2)")
            k(f"{MFMA} v[{ACC+16*i}:{ACC+16*i+15}], v[{b+4*m}:{b+4*m+3}], v[{x+4*t}:{x+4*t+3}], v[{ACC+16*i}:{ACC+16*i+15}]")
            if i < 5: k(nx[i])
    k(f"s_cbranch_scc1 {ml}")
    P = 48
    def mf(i, u):
        m, t = i >> 1, i & 1
        return f"{MFMA} v[{ACC+16*i}:{ACC+16*i+15}], v[{WB[u]+4*m}:{WB[u]+4*m+3}], v[{XB[u]+4*t}:{XB[u]+4*t+3}], v[{ACC+16*i}:{ACC+16*i+15}]"
    st_ = []
    for t in range(2):
        S = STR + 8*t
        st_ += [f"v_add_f32 v{S+i}, v{S+i}, v{S+i+1}" for i in (0, 2, 4, 6)]
        st_ += [f"v_add_f32 v{S}, v{S}, v{S+2}", f"v_add_f32 v{S+4}, v{S+4}, v{S+6}", f"v_add_f32 v{S}, v{S}, v{S+4}", f"v_mov_b32 v{S+1}, v{S}"]
    st_ += ["s_nop 0"] + [f"v_permlane32_swap_b32 v{STR+8*t}, v{STR+8*t+1}" for t in range(2)]
    for t in range(2):
        S = STR + 8*t
        st_ += [f"v_add_f32 v{S}, v{S}, v{S+1}", f"v_mov_b32 v{S+1}, {hex(f32(1e-5))}", f"v_fmac_f32 v{S+1}, {hex(f32(1/512))}, v{S}",
                f"v_rcp_f32 v{R2[t]}, v{S+1}"]
    def ep(i, pk):
        m, t = i >> 1, i & 1
        G = ACC + 16*i
        pr = P + 4*(i & 3) if i < 4 else 8 + 4*(i - 4)
        o = [f"v_max_f32 v{G+r}, 0, v{G+r}" for r in range(8)]
        if pk:
            o += [f"v_pk_mul_f32 v[{G+r}:{G+r+1}], v[{G+r}:{G+r+1}], v[{R2[t]}:{R2[t]+1}] op_sel_hi:[1,0]" for r in range(8, 16, 2)]
            o += [f"v_pk_mul_f32 v[{G+r}:{G+r+1}], v[{G+r}:{G+r+1}], v[{G+8+r}:{G+9+r}]" for r in range(0, 8, 2)]
        else:
            o += [f"v_mul_f32 v{G+r}, v{G+r}, v{R2[t]}" for r in range(8, 16)]
            o += [f"v_mul_f32 v{G+r}, v{G+r}, v{G+8+r}" for r in range(8)]
        o += [f"v_cvt_pk_bf16_f32 v{pr+d}, v{G+2*d}, v{G+2*d+1}" for d in range(4)]
        return o, pr
    def store(i, pr, so):
        pub_store(k, [f"buffer_store_dwordx4 v[{pr}:{pr+3}], v3, s[20:23], s{so} offen"], 2)
    for i in range(6):
        m, t = i >> 1, i & 1
        if t == 0:
            k(f"s_add_u32 s33, s41, {m}")
            k("s_cmp_ge_u32 s33, 86")
            k("s_cselect_b32 s33, 0x40000000, s40")
        k(f"s_add_u32 s{42+i}, s33, {t*86*1024 + m*1024}")
    for l in reads(1): k(l)
    k("s_waitcnt vmcnt(0) lgkmcnt(5)")
    q = list(st_)
    for i in (0, 1, 2, 3):
        k(mf(i, 0))
        for _ in range(5):
            if q: k(q.pop(0))
    k("s_waitcnt lgkmcnt(0)")
    k("s_barrier")
    for i, u in ((0, 1), (1, 1), (4, 0), (5, 0)):
        k(mf(i, u))
        for _ in range(4):
            if q: k(q.pop(0))
    assert not q
    k.nop(3)
    e0, p0 = ep(0, False); e1, p1 = ep(1, False)
    q = e0 + ["ST0"] + e1 + ["ST1"]
    for i in (2, 3, 4, 5):
        k(mf(i, 1))
        for _ in range(6):
            k(q.pop(0))
    stamp(k, 11)
    for l in q:
        if l == "ST0": store(0, p0, 42)
        elif l == "ST1": store(1, p1, 43)
        else: k(l)
    for i in range(2, 6):
        o, pr = ep(i, True)
        for l in o: k(l)
        store(i, pr, 42 + i)
    k.place(fin)
    if OPT.get('z_st'): stamp(k, 2)
    if OPT.get('rf', 0) & 2:
        k("v_and_b32 v4, 31, v2")
        k("v_lshlrev_b32 v4, 7, v4")
        k("v_lshrrev_b32 v5, 5, v2")
        k(f"v_mul_u32_u24 v5, {86*1024}, v5")
        k("v_add_u32 v4, v4, v5")
        k("s_waitcnt vmcnt(0)")
        k("s_barrier")
        k("s_mov_b32 exec_lo, 0xffffff")
        k("s_mov_b32 exec_hi, 0xffffff")
        k(f"buffer_load_dword v1, v4, s[20:23], s40 offen {ld}")
        k("s_mov_b64 exec, -1")
        j4 = k.label("p4j")
        k(f"s_branch {j4}")
        k.place(skip)
        k("s_barrier")
        k.place(j4)
    else:
        k("s_waitcnt vmcnt(0)")
        k.place(skip)
        k("s_barrier")

def p4_loader(k):
    ld = OPT['ld']
    D = OPT['depth4']
    skip, join = k.label("p4lskip"), k.label("p4ljoin")
    k("s_barrier")
    res_wsetup(k, 'down')
    p4_map(k)
    k("s_cmp_eq_u32 s28, 15")
    k(f"s_cbranch_scc1 {skip}")
    k(f"""
    s_sub_u32 s29, s{SW}, 4
    s_lshl_b32 s30, s27, 2
    s_add_u32 s30, s30, s29
    s_lshl_b32 s31, s30, 15
    s_add_u32 s31, s31, {HF}
    s_mul_i32 s33, s28, {6*32768}
    s_and_b32 s34, s29, 1
    s_lshl_b32 s34, s34, 10
    s_add_u32 s33, s33, s34
    s_lshr_b32 s35, s29, 1
    s_mul_i32 s37, s35, {3*32768}
    s_add_u32 s33, s33, s37
    s_mul_i32 s35, s35, 6144
    s_add_u32 s34, s34, s35
    s_lshl_b32 s36, s29, 11
    s_cmp_eq_u32 s28, 14
    s_cselect_b32 s39, 0x40000000, 0
    s_lshr_b32 s38, s29, 1
    s_mul_i32 s38, s38, s39
    s_add_u32 s33, s33, s38
    s_sub_u32 s39, s39, s38
    s_add_u32 s39, s39, s33
    """)
    order = []
    def crot(c):
        r = OPT.get('p4rot', 0)
        k(f"s_add_u32 s40, s{(0, 28, SIDX)[r]}, {c}" if r else f"s_mov_b32 s40, {c}")
        k("s_and_b32 s40, s40, 15")
        k("s_lshl_b32 s40, s40, 11")
    def hpart(c):
        if OPT.get('z4b') and c > 0:
            order.append(('h', c)); order.pop(); return
        crot(c)
        k(f"s_add_u32 s35, s31, s40")
        dma(k, 3, 20, 35, f"s36, {(c % RING4)*SLOT4 + 12288}", 0, ld)
        k(f"buffer_load_dwordx4 v3, s[20:23], s35 offen offset:1024 {ld} lds")
        order.extend([('h', c)]*2)
    def wpart(c):
        if OPT.get('z4b') and c > 0: return
        crot(c)
        for t in range(3):
            k(f"s_add_u32 s35, s{33 if t < 2 else 39}, s40")
            k(f"s_add_u32 s35, s35, {WGF + t*32768}")
            dma(k, 3, 20, 35, f"s34, {(c % RING4)*SLOT4 + t*2048}", 0, ld)
        order.extend([('w', c)]*3)
    nw = OPT.get('p4pre', 5)
    for c in range(nw): wpart(c)
    k("s_barrier")
    k("s_barrier")
    while nw < OPT.get('p4pre2', 7): wpart(nw); nw += 1
    k("s_barrier")
    nh = 4
    for c in range(nh): hpart(c)
    for c in range(NCH4 + 1):
        if c < NCH4:
            last = max([i for i, o in enumerate(order) if o[1] == c] or [len(order) - 1])
            k(f"s_waitcnt vmcnt({len(order) - 1 - last})")
        k("s_barrier")
        m = 0
        while nh < NCH4 and nh <= c + D and m < 2:
            assert nh - RING4 <= c - 2
            hpart(nh); nh += 1; m += 1
        m = 0
        while nw < NCH4 and nw - RING4 <= c - 2 and m < 2:
            wpart(nw); nw += 1; m += 1
        if c >= 10:
            assert nh == NCH4 and nw == NCH4
            if not OPT.get('z4a'):
                res_wload(k, 5*(c-10), 5*(c-10) + 5); order.extend([('d', -1)]*5)
    k("s_barrier")
    k(f"s_branch {join}")
    k.place(skip)
    k("s_barrier")
    k("s_barrier")
    k("s_barrier")
    res_wload(k, 0, 35)
    k.place(join)
    res_wload(k, 35, 39)
    k(f"s_waitcnt vmcnt({39 - JM})")
    k("s_barrier")
    k("s_waitcnt vmcnt(0)")
    k("s_barrier")

def clean(k, n):
    m = OPT.get('wb', 0)
    if not (m >> n) & 1: return
    l = k.label("ncl")
    k(f"s_and_b32 s47, s{SIDX}, {OPT.get('wbm', 31)}")
    k(f"s_cmp_lg_u32 s47, 0")
    k(f"s_cbranch_scc1 {l}")
    k("buffer_wbl2 sc1")
    k.place(l)

def poller(k):
    sl = OPT.get('slpl', 2)
    k(f"s_lshl_b32 s43, s{SXCD}, 5")
    k(f"s_add_u32 s43, s43, {F2}")
    k(f"s_lshl_b32 s42, s{SQB}, 5")
    k(f"s_add_u32 s42, s42, s{SHEAD}")
    k(f"s_add_u32 s42, s42, {F2}")
    flag_prep(k, 42)
    k("s_waitcnt lgkmcnt(0)")
    k("s_barrier")
    flag_fire(k, not OPT.get('amap', 1))
    stamp(k, 6); rstamp(k, 4)
    seen = k.label("cwseen")
    k("s_cmp_eq_u32 s55, 1")
    k(f"s_cbranch_scc1 {seen}")
    k(f"s_mov_b32 s42, {CW}")
    poll(k, 42, 32, 8, 0)
    k.place(seen)
    k("s_barrier")
    flag_poll(k, 43, 32, OPT.get('slp2', 2))
    stamp(k, 7)
    k("s_barrier")
    res_map(k)
    k("s_lshr_b32 s43, s27, 1")
    k("s_and_b32 s44, s27, 1")
    k("s_lshl_b32 s45, s28, 1")
    k("s_add_u32 s44, s44, s45")
    k("s_lshl_b32 s42, s43, 4")
    k("s_add_u32 s42, s42, s44")
    k(f"s_add_u32 s42, s42, {F3}")
    flag_prep(k, 42)
    p4_map(k)
    k("s_lshl_b32 s46, s27, 4")
    k(f"s_add_u32 s42, s46, {F3}")
    k("s_barrier")
    k("s_barrier")
    flag_fire(k, True)
    stamp(k, 8)
    idle = k.label("pidle")
    k("s_cmp_eq_u32 s28, 15")
    k(f"s_cbranch_scc1 {idle}")
    flag_poll(k, 42, 16, sl)
    stamp(k, 9); rstamp(k, 5)
    k("s_barrier")
    clean(k, 0)
    k("s_add_u32 s42, s46, s28")
    k(f"s_add_u32 s42, s42, {F4}")
    flag_prep(k, 42)
    for i in range(NCH4 + 1): k("s_barrier")
    k("s_barrier")
    flag_fire(k, True)
    stamp(k, 10); rstamp(k, 13)
    j = k.label("pjoin")
    k(f"s_branch {j}")
    k.place(idle)
    k("s_barrier")
    k.place(j)
    k("s_lshl_b32 s42, s43, 4")
    k(f"s_add_u32 s42, s42, {F4}")
    flag_poll(k, 42, 15, sl)
    stamp(k, 11)
    k("s_barrier")
    diag_end(k)

def diag_end(k):
    if not DIAG: return
    k("s_waitcnt vmcnt(0)")
    stamp(k, 14)
    k("s_memrealtime s[94:95]")
    k(f"s_lshl_b32 s40, s2, 4")
    k(f"s_add_u32 s40, s40, s{SW}")
    k(f"s_lshl_b32 s40, s40, 7")
    k(f"s_add_u32 s40, s40, {DIAGB}")
    k("s_waitcnt lgkmcnt(0)")
    for i in range(15):
        k(f"s_sub_u32 s{64+2*i}, s{64+2*i}, s96")
        k(f"v_mov_b32 v{8+i}, s{64+2*i}")
    k("v_mov_b32 v23, s94")
    k("v_mov_b32 v24, s98")
    k("v_mov_b32 v4, 0")
    k("s_mov_b64 exec, 1")
    for i in range(4):
        k(f"buffer_store_dwordx4 v[{8+4*i}:{11+4*i}], v4, s[20:23], s40 offen offset:{16*i}")
    k(f"buffer_store_dword v24, v4, s[20:23], s40 offen offset:64")
    k(f"v_mov_b32 v25, s{SXCD}")
    k(f"buffer_store_dword v25, v4, s[20:23], s40 offen offset:68")
    if OPT.get('dbgout') is not None:
        l = k.label("dbo")
        k(f"s_lshl_b32 s41, s{SW}, 8")
        k(f"s_or_b32 s41, s41, s2")
        k(f"s_cmp_lg_u32 s41, {OPT['dbgout']}")
        k(f"s_cbranch_scc1 {l}")
        k("v_sub_u32 v8, v23, v24")
        for i in range(4):
            k(f"global_store_dwordx4 v4, v[{8+4*i}:{11+4*i}], s[60:61] offset:{4+16*i}")
        k.place(l)

def build(path):
    k = Kern(NAME)
    done, roleL, roleH, p2 = k.label("done"), k.label("L"), k.label("H"), k.label("p2")
    tail = []
    k(f"""
    s_load_dwordx4 s[4:7], s[0:1], 0
    s_load_dwordx4 s[60:63], s[0:1], 64
    s_load_dwordx8 s[8:15], s[0:1], 16
    s_load_dwordx4 s[16:19], s[0:1], 48
    s_cmp_ge_u32 s2, 256
    s_cbranch_scc1 {done}
    """)
    if DIAG:
        k("s_memtime s[96:97]")
        k("s_memrealtime s[98:99]")
    k(f"""
    v_lshrrev_b32 v1, 6, v0
    v_and_b32 v2, 63, v0
    s_getreg_b32 s{SXCD}, hwreg(HW_REG_XCC_ID, 0, 3)
    s_getreg_b32 s{SIDX}, hwreg(HW_REG_HW_ID, 13, 2)
    v_readfirstlane_b32 s{SW}, v1
    s_getreg_b32 s29, hwreg(HW_REG_HW_ID, 8, 4)
    v_lshlrev_b32 v3, 4, v2
    """)
    if OPT.get('fakehole'):
        k("s_and_b32 s29, s29, 7")
        k("s_cmp_ge_u32 s29, 3")
        k("s_addc_u32 s29, s29, 0")
    k(f"""
    s_lshl_b32 s{SIDX}, s{SIDX}, 3
    s_cmp_ge_u32 s29, 8
    s_cselect_b32 s{SCHK}, 1, 0
    s_and_b32 s29, s29, 7
    s_or_b32 s{SIDX}, s{SIDX}, s29
    s_mov_b32 s3, 0
    s_mov_b32 s50, {SLOT4}
    s_mov_b32 s51, {-(RING4-1)*SLOT4}
    """)
    if OPT.get('fakehw'): k(f"s_and_b32 s{SIDX}, s{SIDX}, 30")
    sw = OPT.get('swap', 1)
    if sw == 1:
        k(f"s_lshr_b32 s29, s{SW}, 1")
        k(f"s_andn2_b32 s29, 4, s29")
        k(f"s_xor_b32 s{SW}, s{SW}, s29")
    roleC = k.label("C")
    k.place(RESTART)
    p1_map(k)
    k(f"s_cmp_ge_u32 s{SW}, 8")
    k(f"s_cbranch_scc1 {roleH}")
    k(f"s_cmp_lt_u32 s{SW}, 4")
    k(f"s_cbranch_scc1 {roleC}")
    p1_loader(k)
    k(f"s_branch {p2}")
    k.place(roleH)
    p1_helper(k)
    H2 = k.label("H2")
    k(f"s_branch {H2}")
    k.place(roleC)
    p1_consumer(k)
    k.place(p2)
    p2_compute(k, tail)
    L3 = k.label("L3")
    k(f"s_cmp_ge_u32 s{SW}, 4")
    k(f"s_cbranch_scc1 {L3}")
    res_consumer(k, 'wo', 7)
    if OPT.get('cprio', 1): k(f"s_setprio {OPT.get('cprio', 1)}")
    p4_consumer(k)
    res_consumer(k, 'down', 12)
    diag_end(k)
    k.place(done)
    k("s_endpgm")
    k.place(L3)
    res_wsetup(k, 'wo')
    if OPT.get('woe', 1):
        got = k.label("woe")
        k(f"v_mov_b32 v4, {PROG + 20}")
        k("ds_read_b32 v4, v4")
        res_wload(k, NWE, 16, True)
        k("s_waitcnt lgkmcnt(0)")
        k("v_readfirstlane_b32 s47, v4")
        k.nop(1)
        k("s_cmp_eq_u32 s47, 1")
        k(f"s_cbranch_scc1 {got}")
        res_wload(k, 0, NWE, True)
    else:
        res_wload(k, 0, 16, True)
    k(f"s_and_b32 s45, s45, 1024")
    k(f"s_add_u32 s46, s45, {WBT}")
    dma(k, 3, 20, 46, f"s45, {WBL}", 0, OPT['ld'])
    if OPT.get('woe', 1): k.place(got)
    k("s_waitcnt vmcnt(0)")
    p4_loader(k)
    diag_end(k)
    k("s_endpgm")
    k.place(H2)
    p2_helper(k, done)
    poller(k)
    k("s_endpgm")
    k.place(RLAB[0])
    role_read(k)
    p2_relayout(k)
    for f in tail + TAIL: f(k)
    redo(k)
    k(f".fill (32768 - (. - {NAME}))/4, 4, 0xbf810000")
    hdr = """; Kernarg: 0 A_x, 8 A_wqkv, 16 A_wo, 24 B_x (unused), 32 W_gate, 40 W_up, 48 W_down, 56 out, 64 debug, 72 ws
; pre-LN transformer block in one persistent launch (256 workgroups, one per CU); generated by gen/gen5.py
; @launch grid=(256,1,1) block=(768,1,1) lds=163840
.amdgcn_target "amdgcn-amd-amdhsa--gfx950"
"""
    open(path, "w").write(hdr + k.text(168, 102 if DIAG else 64))

if __name__ == "__main__":
    for a in sys.argv[2:]:
        if "=" in a:
            kk, vv = a.split("=")
            OPT[kk] = int(vv) if vv.lstrip("-").isdigit() else vv.replace("+", " ")
    DIAG = "--diag" in sys.argv
    build(sys.argv[1])
```

```python
import sys, math
from dsl import Kern
from gen import (MB, QF, KF, VF, OF, XF, HF, ACT, WOF, WGF, WUF, WDF, ST, WS_SIZE, f32, ONES, MFMA, srd, half_sum,
                 finish_stats)
CNT = 25*MB
MX = 24*MB + 512*1024
WBT = MX + 65536
DIAGB = 28*MB
C1, C2, C3, C4, CW = 0, 8, 16, 32, 48
CSTRIP = 131072
PROG = CSTRIP
ROLE = 163832
WBL = 160768
KEEP = 160
NAME = "sequential_preLN__softmax_full_mha__glu_gated_reglu__prompt_kernel"
OPT = dict(slp=8, kvd=2, d1=4, prio=1, ld="sc1", st="sc1", nb2=4, depth4=5)
SXCD, SIDX, SW = 24, 25, 26
SHEAD, SQB = 62, 63
SCHK = 49
KC0, KC1 = 2, 4
EARLY = 65532
MF16 = "v_mfma_f32_16x16x32_bf16"
DIAG = False

def rstamp(k, i):
    if DIAG:
        k(f"s_memrealtime s[{64+2*i}:{65+2*i}]")
        k("s_waitcnt lgkmcnt(0)")
        k(f"s_add_u32 s{64+2*i}, s{64+2*i}, s96")

def stamp(k, i):
    if DIAG: k(f"s_memtime s[{64+2*i}:{65+2*i}]")

def norm4(x, t, rs, nb, smask):
    ops = []
    for d in range(4):
        a, b = t[2*(d & 1)], t[2*(d & 1) + 1]
        ops.append([f"v_lshlrev_b32 v{a}, 16, v{x+d}", f"v_and_b32 v{b}, s{smask}, v{x+d}",
                    f"v_fma_f32 v{a}, v{a}, v{rs}, v{nb}", f"v_fma_f32 v{b}, v{b}, v{rs}, v{nb}",
                    f"v_cvt_pk_bf16_f32 v{x+d}, v{a}, v{b}"])
    o = []
    for p in (0, 2):
        for a, b in zip(ops[p], ops[p+1]): o += [a, b]
    return o

def lane_regs(k):
    k("v_mbcnt_lo_u32_b32 v2, -1, 0")
    k("v_mbcnt_hi_u32_b32 v2, -1, v2")
    k("v_lshlrev_b32 v3, 4, v2")

def dma(k, vo, srd_, so, m0expr, off=0, flag=""):
    k(f"s_add_u32 m0, {m0expr}")
    k.nop(1)
    k(f"buffer_load_dwordx4 v{vo}, s[{srd_}:{srd_+3}], s{so} offen" + (f" offset:{off}" if off else "") + f" {flag} lds")

def row8_sum(k, regs):
    for ctl in ("quad_perm:[1,0,3,2]", "quad_perm:[2,3,0,1]", "row_half_mirror"):
        k.nop(2)
        for r in regs:
            k(f"v_add_f32_dpp v{r}, v{r}, v{r} {ctl} row_mask:0xf bank_mask:0xf")

def arrive(k, sidx, va=8, vb=9):
    k(f"s_lshl_b32 s40, s{sidx}, 8")
    k(f"s_add_u32 s40, s40, {CNT}")
    k("s_mov_b64 exec, 1")
    k(f"v_mov_b32 v{va}, 1")
    k(f"v_mov_b32 v{vb}, 0")
    k(f"buffer_atomic_add v{va}, v{vb}, s[20:23], s40 offen sc1")

PRS = CNT + 32768
MAG0, MAG1 = 0x5ca1ab1e, 0x0b5e55ed
FLG = CNT + 65536
F1, F2, F3, F4 = 0, 256, 512, 768
SLOC = 59
def pub_store(k, lines, stage=3):
    if not (OPT.get('loc', 8) >> stage) & 1:
        for l in lines: k(l + " " + OPT['st'])
        return
    a, b = k.label("ps"), k.label("pe")
    k(f"s_cmp_eq_u32 s{SLOC}, 1")
    k(f"s_cbranch_scc1 {a}")
    for l in lines: k(l + " " + OPT['st'])
    k(f"s_branch {b}")
    k.place(a)
    for l in lines: k(l + (" " + OPT.get('locf', '') if stage != 3 else ""))
    k.place(b)

def flag_set(k, sline, val="1", local=False):
    k(f"s_lshl_b32 s40, s{sline}, 7")
    k(f"s_add_u32 s40, s40, {FLG}")
    k("s_mov_b64 exec, 1")
    k(f"v_mov_b32 v8, {val}")
    k("v_mov_b32 v9, 0")
    if local: pub_store(k, ["buffer_store_dword v8, v9, s[20:23], s40 offen"])
    else: k("buffer_store_dword v8, v9, s[20:23], s40 offen sc1")

def flag_prep(k, sline):
    k(f"s_lshl_b32 s39, s{sline}, 7")
    k(f"s_add_u32 s39, s39, {FLG}")
    k("s_mov_b64 exec, 1")
    k("v_mov_b32 v14, 1")
    k("v_mov_b32 v15, 0")

def flag_fire(k, local):
    if local: pub_store(k, ["buffer_store_dword v14, v15, s[20:23], s39 offen"])
    else: k("buffer_store_dword v14, v15, s[20:23], s39 offen sc1")

def flag_poll(k, sline, n=32, slp=None):
    poll(k, sline, 1, n, slp, sh=7, base=FLG)

def poll(k, sidx, target, nlines=1, slp=None, sh=8, base=None):
    lp, out = k.label("poll"), k.label("pollx")
    k(f"s_lshl_b32 s40, s{sidx}, {sh}")
    k(f"s_add_u32 s40, s40, {CNT if base is None else base}")
    k(f"s_mov_b32 exec_lo, {hex((1 << nlines) - 1)}")
    k("s_mov_b32 exec_hi, 0")
    k(f"v_lshlrev_b32 v9, {sh}, v2")
    k("s_mov_b32 s41, 0")
    slp = OPT.get('slp', 2) if slp is None else slp
    k.place(lp)
    k("buffer_load_dword v10, v9, s[20:23], s40 offen sc1")
    k("s_add_u32 s41, s41, 1")
    k("s_cmp_gt_u32 s41, 0x40000")
    k(f"s_cbranch_scc1 {out}")
    k("s_waitcnt vmcnt(0)")
    k(f"v_cmp_gt_u32 vcc, {target}, v10" if target <= 64 else f"v_cmp_gt_u32 vcc, {hex(target)}, v10")
    k(f"s_cmp_eq_u64 vcc, 0")
    k(f"s_cbranch_scc1 {out}")
    if slp: k(f"s_sleep {slp}")
    k(f"s_branch {lp}")
    k.place(out)
    k("s_waitcnt vmcnt(0)")
    k("s_mov_b64 exec, -1")

def touch(k, base_s, nlines, reg=40):
    k("v_lshlrev_b32 v12, 7, v2")
    for i in range((nlines + 63)//64):
        rem = nlines - 64*i
        if rem < 64:
            k(f"s_mov_b32 exec_lo, {hex((1 << min(rem, 32)) - 1)}")
            k(f"s_mov_b32 exec_hi, {hex((1 << max(rem - 32, 0)) - 1)}")
        k(f"s_add_u32 s41, s{base_s}, {i*8192}")
        k(f"buffer_load_dword v{reg+i}, v12, s[20:23], s41 offen sc1")
    k("s_mov_b64 exec, -1")

def cold_touch(k):
    if OPT.get('t1', 1) == 2:
        l8 = k.label("t8")
        srd(k, 44, 4, 2*MB)
        srd(k, 52, 6, 512*3072)
        k(f"""
        s_lshr_b32 s31, s{SXCD}, 1
        s_lshl_b32 s31, s31, 9
        s_lshl_b32 s32, s{SIDX}, 4
        s_add_u32 s31, s31, s32
        s_lshl_b32 s31, s31, 10
        s_lshl_b32 s32, s29, 7
        s_add_u32 s31, s31, s32
        v_lshlrev_b32 v12, 10, v2
        v_mul_u32_u24 v13, 43, v2
        v_lshrrev_b32 v13, 9, v13
        v_mul_u32_u24 v14, 12, v13
        v_sub_u32 v14, v2, v14
        v_lshrrev_b32 v15, 2, v14
        v_and_b32 v14, 3, v14
        v_lshlrev_b32 v14, 7, v14
        v_lshl_add_u32 v14, v15, 10, v14
        v_mul_u32_u24 v13, 3072, v13
        v_add_u32 v13, v13, v14
        s_lshl_b32 s32, s29, 6
        s_lshl_b32 s33, s{SIDX}, 1
        s_add_u32 s32, s32, s33
        s_mul_i32 s32, s32, 3072
        s_and_b32 s33, s{SXCD}, 1
        s_lshl_b32 s33, s33, 9
        s_add_u32 s32, s32, s33
        s_add_u32 s33, s32, {256*3072}
        s_mov_b32 exec_hi, 0
        s_mov_b32 exec_lo, 0xffff
        buffer_load_dword v40, v12, s[44:47], s31 offen
        buffer_load_dword v42, v12, s[44:47], s31 offen offset:512
        """)
        if OPT.get('t1w', 0):
            k("""
            s_mov_b32 exec_lo, 0xffffff
            buffer_load_dword v41, v13, s[52:55], s32 offen
            buffer_load_dword v43, v13, s[52:55], s33 offen
            """)
        k("s_mov_b64 exec, -1")
        return
    if OPT.get('t1', 1):
        l9, l10, l11 = k.label("t9"), k.label("t10"), k.label("t11")
        if OPT.get('t1d', 0): k(f"s_sleep {OPT['t1d']}")
        k(f"s_cmp_lg_u32 s{SW}, 9")
        k(f"s_cbranch_scc1 {l9}")
        srd(k, 44, 4, 2*MB)
        k("s_lshl_b32 s31, s2, 13")
        k("v_lshlrev_b32 v12, 7, v2")
        msk = sum(1 << i for i in range(32) if (i & 7) >= OPT.get('t1x', 0))
        k(f"s_mov_b32 exec_lo, {hex(msk)}")
        k(f"s_mov_b32 exec_hi, {hex(msk)}")
        k("buffer_load_dword v40, v12, s[44:47], s31 offen")
        k("s_mov_b64 exec, -1")
        k.place(l9)
        k(f"s_cmp_lg_u32 s{SW}, 10")
        k(f"s_cbranch_scc1 {l10}")
        k(f"s_cmp_lt_u32 s2, {32*OPT.get('t1x', 0) if OPT.get('t1w', 0) else 256}")
        k(f"s_cbranch_scc1 {l10}")
        srd(k, 44, 6, 512*3072)
        k("s_mul_i32 s31, s2, 6144")
        k("v_lshlrev_b32 v12, 7, v2")
        k("s_mov_b32 exec_hi, 0xffff")
        k("buffer_load_dword v40, v12, s[44:47], s31 offen")
        k("s_mov_b64 exec, -1")
        k.place(l10)

RESTART = NAME + "_restart"
REDO = NAME + "_redo"
TAIL = []
def role_word(k, addr, back, par=None):
    if par == 'loop':
        k("s_and_b32 s0, s47, 1")
        k("s_lshl_b32 s0, s0, 2")
        k(f"s_sub_u32 s0, {addr}, s0")
        k("v_mov_b32 v1, s0")
    else:
        k(f"v_mov_b32 v1, {addr - 4*(par or 0)}")
    k("ds_read_b32 v1, v1")
    k("s_waitcnt lgkmcnt(0)")
    k(f"v_readfirstlane_b32 s0, v1")
    k.nop(1)
    k("s_cmp_eq_u32 s0, 0")
    k(f"s_cbranch_scc1 {back}")
    if addr == EARLY:
        k(f"s_mov_b32 s{SCHK}, 2")
        k("s_cmp_eq_u32 s0, 2")
        k(f"s_cbranch_scc1 {back}")
    k(f"s_branch {REDO}")

def redo(k):
    k.place(REDO)
    k(f"s_and_b32 s{SIDX}, s0, 31")
    k("s_mov_b32 s3, 2")
    k(f"s_mov_b32 s{SCHK}, 0")
    k("s_cmp_eq_u32 s0, 1")
    k(f"s_cbranch_scc0 {REDO}1")
    k(f"s_and_b32 s{SXCD}, s2, 7")
    k(f"s_lshr_b32 s{SIDX}, s2, 3")
    k("s_mov_b32 s3, 1")
    k.place(REDO + "1")
    if OPT.get('rdrain', 1): k("s_waitcnt vmcnt(0)")
    k("s_barrier")
    k(f"s_branch {RESTART}")

def early_check(k, tail, last=None):
    side, back = k.label("ec"), k.label("ecb")
    k(f"s_cmp_eq_u32 s{SCHK}, 1")
    k(f"s_cbranch_scc1 {side}")
    k.place(back)
    def f(k):
        k.place(side)
        if last == 'loop':
            k(f"s_cmp_eq_u32 s47, {KC1 - 1}")
            k(f"s_cselect_b32 s{SCHK}, 2, 1")
        role_word(k, EARLY, back, last)
    tail.append(f)

def role_read(k):
    ok = k.label("rok")
    role_word(k, ROLE, ok)
    k.place(ok)
    if OPT.get('amap', 1):
        k(f"s_lshl_b32 s{SHEAD}, s{SXCD}, 2")
        k(f"s_and_b32 s{SQB}, s{SIDX}, 3")
        k(f"s_add_u32 s{SHEAD}, s{SHEAD}, s{SQB}")
        k(f"s_lshr_b32 s{SQB}, s{SIDX}, 2")
    else:
        k(f"s_mov_b32 s{SHEAD}, s{SIDX}")
        k(f"s_mov_b32 s{SQB}, s{SXCD}")

def p1_map(k):
    if OPT.get('p1m', 1) == 1:
        k(f"s_mov_b32 s27, s{SIDX}")
        k(f"s_mov_b32 s28, s{SXCD}")
        return
    k(f"""
    s_lshr_b32 s27, s{SXCD}, 1
    s_lshl_b32 s27, s27, 3
    s_and_b32 s28, s{SIDX}, 7
    s_add_u32 s27, s27, s28
    s_and_b32 s28, s{SXCD}, 1
    s_lshl_b32 s28, s28, 2
    s_lshr_b32 s29, s{SIDX}, 3
    """)
    if OPT.get('cbrev', 0): k("s_xor_b32 s29, s29, 3")
    k("s_add_u32 s28, s28, s29")
EXC = 65536 + 3*12288
EXS = 65536 + 2*12288

def p1_consumer(k):
    if OPT.get('cprio', 1): k(f"s_setprio {OPT.get('cprio', 1)}")
    k(f"s_and_b32 s{SLOC}, s3, 1"); k(f"s_xor_b32 s{SLOC}, s{SLOC}, 1")
    SRB, SCB = 27, 28
    VXA, VWA = 12, 16
    WB = [20, 32, 44, 56]; XB = [68, 72, 76, 80]; ACC = 84; CS = 132; SEL = 144
    k(f"""
    v_and_b32 v8, 31, v2
    v_lshrrev_b32 v4, 5, v2
    v_lshrrev_b32 v5, 1, v8
    v_and_b32 v5, 7, v5
    s_and_b32 s34, s{SW}, 1
    s_lshl_b32 s35, s34, 12
    v_lshlrev_b32 v6, 7, v8
    v_add_u32 v6, s35, v6
    """)
    for u in range(4):
        k(f"v_add_u32 v7, {2*u}, v4")
        k(f"v_xor_b32 v7, v7, v5")
        k(f"v_lshl_add_u32 v{VXA+u}, v7, 4, v6")
    k(f"""
    s_lshr_b32 s36, s{SW}, 1
    v_bfe_u32 v5, v2, 2, 2
    v_lshl_add_u32 v6, v4, 3, v5
    v_lshlrev_b32 v6, 7, v6
    v_bfe_u32 v7, v2, 4, 1
    v_lshlrev_b32 v7, 1, v7
    v_bfe_u32 v11, v2, 1, 1
    v_add_u32 v7, v7, v11
    s_lshl_b32 s37, s36, 2
    v_add_u32 v7, s37, v7
    v_lshrrev_b32 v5, 1, v5
    v_lshlrev_b32 v5, 2, v5
    v_xor_b32 v7, v7, v5
    v_lshl_add_u32 v6, v7, 4, v6
    v_and_b32 v7, 1, v2
    v_lshl_add_u32 v{VWA+1}, v7, 3, v6
    v_add_u32 v{VWA+1}, 0x10000, v{VWA+1}
    v_mov_b32 v{VWA}, v{VWA+1}
    v_and_b32 v5, 15, v2
    v_bfe_u32 v7, v2, 4, 1
    v_cmp_eq_u32 vcc, v5, v7
    v_mov_b32 v6, {hex(ONES)}
    s_mov_b32 s47, 0
    v_cndmask_b32 v{SEL}, 0, v6, vcc
    """)
    for i in range(1, 4): k(f"v_mov_b32 v{SEL+i}, v{SEL}")
    for i in range(60): k(f"v_mov_b32 v{ACC+i}, 0")
    k(f"""
    s_lshl_b32 s40, s{SCB}, 2
    s_lshl_b32 s41, s36, 1
    s_add_u32 s40, s40, s41
    s_lshl_b32 s40, s40, 16
    s_lshl_b32 s41, s{SRB}, 1
    s_add_u32 s41, s41, s34
    s_lshl_b32 s41, s41, 10
    s_add_u32 s40, s40, s41
    v_bfe_u32 v9, v2, 4, 1
    v_lshlrev_b32 v9, 16, v9
    v_lshl_add_u32 v9, v4, 8, v9
    v_lshl_add_u32 v9, v5, 4, v9
    s_add_u32 s43, s40, {QF + 65536}
    s_add_u32 s44, s40, {KF}
    s_add_u32 s45, s40, {KF + 65536}
    s_add_u32 s46, s40, {VF}
    s_mov_b32 s48, 0
    """)
    k(f"""
    s_lshl_b32 s35, s34, 1
    s_add_u32 s35, s35, s36
    s_mul_i32 s35, s35, 384
    s_add_u32 s35, s35, {EXC}
    v_lshl_add_u32 v5, v2, 2, s35
    s_mul_i32 s37, s36, 384
    s_add_u32 s37, s37, {EXC}
    v_lshl_add_u32 v6, v4, 4, s37
    v_lshl_add_u32 v7, v8, 2, s37
    s_lshl_b32 s38, s34, 7
    s_add_u32 s38, s38, {EXS}
    v_lshl_add_u32 v10, v8, 2, s38
    v_lshl_add_u32 v11, v4, 4, s38
    """)
    k("s_waitcnt lgkmcnt(0)")
    srd(k, 20, 62, WS_SIZE)
    def xrd(u, b): k(f"ds_read_b128 v[{b}:{b+3}], v{VXA+u}")
    def wrd(u, b, p):
        for r in range(2):
            k(f"ds_read_b64_tr_b16 v[{b+4*p+2*r}:{b+4*p+2*r+1}], v{VWA} offset:{(u >> 1)*12288 + p*4096 + (u & 1)*2048 + r*512}")
    stamp(k, 0)
    k("s_barrier")
    early_check(k, TAIL, 1)
    stamp(k, 1)
    for u in range(2):
        xrd(u, XB[u])
        for p in range(3): wrd(u, WB[u], p)
    odd, ep = k.label("p1odd"), k.label("p1ep")
    def M(p, u):
        b, x = WB[u], XB[u]
        if p < 2: k(f"{MFMA} v[{ACC+16*p}:{ACC+16*p+15}], v[{b+4*p}:{b+4*p+3}], v[{x}:{x+3}], v[{ACC+16*p}:{ACC+16*p+15}]")
        else: k(f"{MFMA} v[{ACC+32}:{ACC+47}], v[{x}:{x+3}], v[{b+8}:{b+11}], v[{ACC+32}:{ACC+47}]")
    def CSM(p, u):
        k(f"{MF16} v[{CS+4*p}:{CS+4*p+3}], v[{SEL}:{SEL+3}], v[{WB[u]+4*p}:{WB[u]+4*p+3}], v[{CS+4*p}:{CS+4*p+3}]")
    def step(u, par):
        nu = (u+2) & 3
        k("s_waitcnt lgkmcnt(7)")
        for p in range(3):
            M(p, u)
            if p == 0: xrd(nu, XB[nu])
            wrd(nu, WB[nu], p)
            if (u & 1) == par: CSM(p, u)
    k("s_cmp_eq_u32 s34, 1")
    k(f"s_cbranch_scc1 {odd}")
    for par in range(2):
        if par == 1: k.place(odd)
        ml = k.label("p1ml")
        k(".p2align 3")
        k.place(ml)
        for u in range(4):
            if u == 2:
                k("s_add_u32 s48, s48, 24576")
                k(f"s_cmp_eq_u32 s48, {8*12288}")
                k("s_cselect_b32 s48, 0, s48")
                k(f"v_add_u32 v{VXA}, 8192, v{VXA}")
                k(f"v_add_u32 v{VXA+1}, 8192, v{VXA+1}")
                k("s_barrier")
                early_check(k, TAIL, 'loop')
                k(f"v_add_u32 v{VWA}, s48, v{VWA+1}")
            step(u, par)
            if u == 3:
                for q in range(2, 4): k(f"v_add_u32 v{VXA+q}, 8192, v{VXA+q}")
                k("s_add_u32 s47, s47, 1")
                k("s_cmp_lt_u32 s47, 7")
        k(f"s_cbranch_scc1 {ml}")
        step(0, par); step(1, par)
        k(f"s_waitcnt lgkmcnt({7 if par == 0 else 0})")
        for p in range(3): CSM(p, 2 + par)
        if par == 0: k(f"s_branch {ep}")
    k.place(ep)
    A, RSV, NBV = 20, 44, 60
    BQ = [36, 40, 68, 72]
    RS, NB, CV = 132, 134, 136
    k("s_waitcnt lgkmcnt(0)")
    M(0, 2); M(0, 3)
    k(f"s_mov_b32 s42, {hex(f32(0.25*math.log2(math.e)))}")
    k.nop(3)
    k("s_mov_b64 exec, 0xffff")
    for p in range(3):
        k(f"ds_write2_b32 v5, v{CS+4*p}, v{CS+4*p+1} offset0:{32*p} offset1:{32*p+16}")
    k("s_mov_b64 exec, -1")
    M(1, 2)
    k("s_waitcnt lgkmcnt(0)")
    k("s_barrier")
    k(f"ds_read_b32 v{RS}, v10")
    k(f"ds_read_b32 v{NB}, v10 offset:256")
    M(1, 3)
    def csrd(p):
        for g in range(4):
            k(f"ds_read_b128 v[{A+4*g}:{A+4*g+3}], v6 offset:{p*128 + g*32}")
            k(f"ds_read_b128 v[{BQ[g]}:{BQ[g]+3}], v6 offset:{768 + p*128 + g*32}")
    csrd(0)
    M(2, 2)
    k(f"ds_read_b32 v{CV}, v7 offset:256")
    k(f"ds_read_b32 v{CV+1}, v7 offset:{768 + 256}")
    k("s_waitcnt lgkmcnt(10)")
    k(f"v_mul_f32 v138, s42, v{RS}")
    k(f"v_mul_f32 v140, s42, v{NB}")
    M(2, 3)
    stamp(k, 2)
    st = OPT['st']
    P = 144
    def fold(acc, rs, nb):
        for r in range(0, 16, 2):
            bq = BQ[r >> 2] + (r & 3)
            k(f"v_pk_add_f32 v[{A+r}:{A+r+1}], v[{A+r}:{A+r+1}], v[{bq}:{bq+1}]")
        for r in range(0, 16, 2):
            k(f"v_pk_mul_f32 v[{A+r}:{A+r+1}], v[{A+r}:{A+r+1}], v[{nb}:{nb+1}] op_sel_hi:[1,0]")
        for r in range(0, 16, 2):
            k(f"v_pk_fma_f32 v[{acc+r}:{acc+r+1}], v[{acc+r}:{acc+r+1}], v[{rs}:{rs+1}], v[{A+r}:{A+r+1}] op_sel_hi:[1,0,1]")
    def pack(acc, p, so0, so1, va, off1=0):
        for d in range(8):
            k(f"v_cvt_pk_bf16_f32 v{p+d}, v{acc+2*d}, v{acc+2*d+1}")
            if d == 3: pub_store(k, [f"buffer_store_dwordx4 v[{p}:{p+3}], v{va}, s[20:23], s{so0} offen"], 4)
        pub_store(k, [f"buffer_store_dwordx4 v[{p+4}:{p+7}], v{va}, s[20:23], s{so1} offen" + (f" offset:{off1}" if off1 else "")], 4)
    k("s_waitcnt lgkmcnt(2)")
    fold(ACC, 138, 140)
    csrd(1)
    for g in range(4):
        k(f"ds_read_b128 v[{RSV+4*g}:{RSV+4*g+3}], v11 offset:{g*32}")
    pack(ACC, P, 40, 43, 3)
    k("s_waitcnt lgkmcnt(4)")
    fold(ACC+16, RS, NB)
    for g in range(4):
        k(f"ds_read_b128 v[{NBV+4*g}:{NBV+4*g+3}], v11 offset:{256 + g*32}")
    pack(ACC+16, P+8, 44, 45, 3)
    k(f"v_add_f32 v{CV}, v{CV}, v{CV+1}")
    k("s_waitcnt lgkmcnt(0)")
    for r in range(0, 16, 2):
        k(f"v_pk_mul_f32 v[{NBV+r}:{NBV+r+1}], v[{NBV+r}:{NBV+r+1}], v[{CV}:{CV+1}] op_sel_hi:[1,0]")
    for r in range(0, 16, 2):
        k(f"v_pk_fma_f32 v[{ACC+32+r}:{ACC+33+r}], v[{ACC+32+r}:{ACC+33+r}], v[{RSV+r}:{RSV+r+1}], v[{NBV+r}:{NBV+r+1}]")
    pack(ACC+32, P+16, 46, 46, 9, 512)
    stamp(k, 3)
    k("s_waitcnt vmcnt(0)")
    k("s_barrier")
    role_read(k)
    k("s_barrier")

def relayout(k):
    st = OPT['st']
    PRE = [16, 44, 80]
    k(f"""
    v_and_b32 v6, 31, v2
    v_lshrrev_b32 v7, 5, v2
    v_lshlrev_b32 v12, 10, v6
    v_lshl_add_u32 v12, v7, 3, v12
    v_mul_u32_u24 v13, {4*2752}, v7
    v_lshl_add_u32 v13, v6, 1, v13
    v_lshlrev_b32 v14, 12, v7
    v_lshl_add_u32 v14, v6, 1, v14
    s_lshl_b32 s42, s2, 3
    s_mul_i32 s43, s29, 3
    s_add_u32 s42, s42, s43
    """)
    def wload(reg, voffreg, soffreg, pitch):
        for j in range(8):
            row = 8*(j >> 2) + (j & 3)
            k(f"s_add_u32 s49, s{soffreg}, {row*pitch}")
            k(f"buffer_load_ushort v{reg+j}, v{voffreg}, s[44:47], s49 offen")
    def item_loads(i):
        P_, D0 = PRE[i], (37, 52, 32)[i]
        k(f"s_add_u32 s{D0+2}, s42, {i}")
        if i == 2:
            k("s_cmp_eq_u32 s29, 2")
            k(f"s_cselect_b32 s{D0+2}, 0xfff, s{D0+2}")
        G = D0 + 2
        srd(k, 44, 4, 2*MB)
        k(f"""
        s_lshr_b32 s43, s{G}, 5
        s_lshl_b32 s43, s43, 15
        s_and_b32 s48, s{G}, 31
        s_lshl_b32 s48, s48, 5
        s_add_u32 s43, s43, s48
        buffer_load_dwordx2 v[{P_}:{P_+1}], v12, s[44:47], s43 offen
        buffer_load_dwordx2 v[{P_+2}:{P_+3}], v12, s[44:47], s43 offen offset:16
        s_mov_b32 s50, {(2**32 + 42)//43}
        s_mul_hi_u32 s51, s{G}, s50
        s_mul_i32 s58, s51, 43
        s_sub_u32 s58, s{G}, s58
        s_mul_i32 s59, s51, {16*2752}
        s_lshl_b32 s48, s58, 6
        s_add_u32 s59, s59, s48
        s_lshl_b32 s{D0}, s58, 6
        s_add_u32 s{D0}, s{D0}, s51
        s_lshl_b32 s{D0}, s{D0}, 10
        s_cmp_lt_u32 s{G}, 1376
        s_cselect_b32 s50, {512*2752}, 0
        s_mov_b32 s44, s12
        s_and_b32 s45, s13, 0xffff
        s_mov_b32 s46, s50
        """)
        wload(P_+4, 13, 59, 2752)
        k("s_mov_b32 s44, s14")
        k("s_and_b32 s45, s15, 0xffff")
        wload(P_+12, 13, 59, 2752)
        k(f"""
        s_sub_u32 s48, s{G}, 1376
        s_cmp_lt_u32 s{G}, 1376
        s_cselect_b32 s48, s{G}, s48
        s_cselect_b32 s44, s16, s8
        s_cselect_b32 s45, s17, s9
        s_cselect_b32 s46, {1376*1024}, 0
        s_cselect_b32 s50, 86, 32
        s_cselect_b32 s43, {WDF - WOF}, 0
        s_and_b32 s45, s45, 0xffff
        s_sub_u32 s51, s{G}, 1376
        s_cmp_lt_u32 s51, 512
        s_cselect_b32 s46, {512*1024}, s46
        s_and_b32 s58, s48, 15
        s_lshr_b32 s51, s48, 4
        s_lshl_b32 s59, s51, 14
        s_lshl_b32 s48, s58, 6
        s_add_u32 s59, s59, s48
        s_mul_i32 s{D0+1}, s58, s50
        s_add_u32 s{D0+1}, s{D0+1}, s51
        s_lshl_b32 s{D0+1}, s{D0+1}, 10
        s_add_u32 s{D0+1}, s{D0+1}, s43
        """)
        wload(P_+20, 14, 59, 1024)
    def pack_store(reg, dstreg, base):
        for d in range(4):
            k(f"v_lshl_or_b32 v{reg+d}, v{reg+2*d+1}, 16, v{reg+2*d}")
        k(f"s_add_u32 s49, s{dstreg}, {base}")
        k(f"buffer_store_dwordx4 v[{reg}:{reg+3}], v3, s[20:23], s49 offen {st}")
    def item_stores(i):
        P_, D0 = PRE[i], (37, 52, 32)[i]
        G = D0 + 2
        l1, l2 = k.label("is1"), k.label("is2")
        if i == 2:
            k("s_cmp_eq_u32 s29, 2")
            k(f"s_cbranch_scc1 {l2}")
        k(f"s_lshl_b32 s43, s{G}, 10")
        k(f"s_add_u32 s43, s43, {XF}")
        k(f"buffer_store_dwordx4 v[{P_}:{P_+3}], v3, s[20:23], s43 offen {st}")
        k(f"s_cmp_lt_u32 s{G}, 1376")
        k(f"s_cbranch_scc0 {l1}")
        for reg in (P_+4, P_+12):
            for d in range(4):
                k(f"v_lshl_or_b32 v{reg+d}, v{reg+2*d+1}, 16, v{reg+2*d}")
        k.nop(2)
        for d in range(4):
            k(f"v_permlane16_swap_b32 v{P_+4+d}, v{P_+12+d}")
        k(f"s_add_u32 s49, s{D0}, {WGF}")
        k(f"buffer_store_dwordx4 v[{P_+4}:{P_+7}], v3, s[20:23], s49 offen {st}")
        k(f"s_add_u32 s49, s{D0}, {WGF + 32768}")
        k(f"buffer_store_dwordx4 v[{P_+12}:{P_+15}], v3, s[20:23], s49 offen {st}")
        k.place(l1)
        k(f"s_cmp_lt_u32 s{G}, 1888")
        k(f"s_cbranch_scc0 {l2}")
        pack_store(P_+20, D0+1, WOF)
        k.place(l2)
    return item_loads, item_stores

def p1_loader(k):
    SRB, SCB = 27, 28
    VXE, VXO, VW = 8, 9, 10
    k(f"""
    s_sub_u32 s29, s{SW}, 4
    v_lshrrev_b32 v11, 3, v2
    v_and_b32 v4, 7, v2
    v_lshrrev_b32 v5, 4, v2
    v_xor_b32 v6, v4, v5
    v_lshlrev_b32 v6, 4, v6
    s_lshl_b32 s35, s29, 4
    v_add_u32 v7, s35, v11
    v_lshlrev_b32 v12, 10, v7
    v_add_u32 v{VXE}, v12, v6
    v_xor_b32 v6, 64, v6
    v_add_u32 v{VXO}, v12, v6
    v_add_u32 v{VXO}, 8192, v{VXO}
    s_lshl_b32 s35, s29, 3
    v_add_u32 v7, s35, v11
    v_and_b32 v5, 1, v5
    v_lshlrev_b32 v5, 2, v5
    v_xor_b32 v5, v4, v5
    v_lshlrev_b32 v5, 4, v5
    v_mul_u32_u24 v7, 3072, v7
    v_add_u32 v{VW}, v7, v5
    s_lshl_b32 s31, s29, 10
    s_lshl_b32 s36, s29, 11
    s_lshl_b32 s30, s{SRB}, 16
    s_lshl_b32 s32, s{SCB}, 7
    """)
    if OPT.get('z_mix'):
        for p, d in ((1, 3), (2, 5)):
            k(f"s_add_u32 s{37+p}, s{SCB}, {d}")
            k(f"s_and_b32 s{37+p}, s{37+p}, 7")
            k(f"s_sub_u32 s{37+p}, s{37+p}, s{SCB}")
            k(f"s_lshl_b32 s{37+p}, s{37+p}, 7")
    k("s_mov_b32 s54, 0x200000")
    k("s_mov_b32 s55, 0x20000")
    k(f"s_mov_b32 s58, {512*3072}")
    k("s_mov_b32 s59, 0x20000")
    k("s_waitcnt lgkmcnt(0)")
    k("s_mov_b32 s52, s4")
    k("s_and_b32 s53, s5, 0xffff")
    k("s_mov_b32 s56, s6")
    k("s_and_b32 s57, s7, 0xffff")
    n = lambda c: 3 + (0 if c & 1 else 2)
    def issue(c):
        if OPT.get('z_nodma1') and c > 2: return
        rot = OPT.get('krot', 1)
        if not c & 1:
            if rot:
                k(f"s_add_u32 s37, s{(0, SRB, SCB, SRB)[rot]}, {c//2}")
                if rot == 3: k(f"s_add_u32 s37, s37, s{SCB}")
                k("s_and_b32 s37, s37, 7")
                k("s_lshl_b32 s33, s37, 7")
                k("s_add_u32 s33, s33, s30")
                k(f"s_mul_i32 s37, s37, {64*3072}")
                k("s_add_u32 s37, s37, s32")
            else:
                k(f"s_add_u32 s33, s30, {(c//2)*128}")
                k(f"s_add_u32 s37, s32, {(c//2)*64*3072}")
            for o in range(2):
                dma(k, VXE if o == 0 else VXO, 52, 33, f"s36, {(c//2)*8192 + o*1024}", 0, OPT.get('xf', ''))
        for p in range(3):
            k(f"s_add_u32 s33, s37, {(c & 1)*32*3072 + p*1024}")
            if OPT.get('z_mix') and p: k(f"s_add_u32 s33, s33, s{37+p}")
            dma(k, VW, 56, 33, f"s31, {65536 + (c % 8)*12288 + p*4096}", 0, OPT.get('wf', ''))
    issued = OPT.get('d1', 4)
    for c in range(issued): issue(c)
    srd(k, 20, 62, WS_SIZE)
    for P in range(8):
        k(f"s_waitcnt vmcnt({sum(n(j) for j in range(2*P+2, issued))})")
        k("s_barrier")
        if P <= KC1: early_check(k, TAIL, (P - 1) & 1)
        m = 0
        while issued < 16 and issued - 8 <= 2*P - 3 and m < 4:
            issue(issued); issued += 1; m += 1
    k("s_barrier")
    k("s_barrier")
    role_read(k)
    k("s_barrier")

RLAB = [None]
PRESENCE = [None]
def p1_helper(k):
    RLAB[0] = k.label('RL')
    k(f"s_setprio {OPT.get('hprio', 3)}")
    k("s_waitcnt lgkmcnt(0)")
    srd(k, 20, 62, WS_SIZE)
    X, SQ, SX, T, RS, NB = 16, 24, 28, 32, 36, 38
    init_done = k.label("initd")
    k(f"""
    s_lshl_b32 s57, s3, 8
    s_or_b32 s57, s57, s{SW}
    s_cmp_lg_u32 s57, 8
    s_cbranch_scc1 {init_done}
    s_lshl_b32 s30, s2, 7
    s_add_u32 s30, s30, {FLG}
    v_lshl_add_u32 v4, v2, 15, s30
    s_and_b32 s30, s2, 7
    s_lshl_b32 s30, s30, 8
    s_add_u32 s30, s30, {CNT + CW*256}
    v_mov_b32 v5, 0
    v_writelane_b32 v4, s30, 4
    s_mov_b64 exec, 31
    buffer_store_dword v5, v4, s[20:23], 0 offen sc1
    s_mov_b64 exec, -1
    """)
    k.place(init_done)
    def presence(k, on):
        k(f"s_lshl_b32 s30, s{SXCD}, 2")
        k(f"s_lshr_b32 s31, s{SIDX}, 3")
        k("s_add_u32 s30, s30, s31")
        k("s_lshl_b32 s30, s30, 7")
        k(f"s_add_u32 s30, s30, {PRS}")
        if on is None: return
        k("s_lshl_b32 s31, s1, 3")
        k("s_mov_b64 exec, 1")
        k("v_mov_b32 v50, s31")
        k(f"v_mov_b32 v52, {hex(MAG0) if on else 0}")
        k(f"v_mov_b32 v53, {hex(MAG1) if on else 0}")
        k("buffer_store_dwordx2 v[52:53], v50, s[20:23], s30 offen")
        k("s_mov_b64 exec, -1")
    PRESENCE[0] = presence
    def hint():
        l9, l, lp, w = k.label("h9"), k.label("hi"), k.label("hil"), k.label("hiw")
        k("s_cmp_lg_u32 s57, 9")
        k(f"s_cbranch_scc1 {l9}")
        presence(k, True)
        k.place(l9)
        k("s_cmp_lg_u32 s57, 10")
        k(f"s_cbranch_scc1 {l}")
        k(f"s_cmp_lg_u32 s{SCHK}, 1")
        k(f"s_cbranch_scc1 {l}")
        presence(k, None)
        k("v_lshlrev_b32 v50, 3, v2")
        k("s_mov_b32 s41, 0")
        k(f"s_mov_b32 s32, {hex(MAG1)}")
        k("s_mov_b64 exec, 0xff")
        k.place(lp)
        k("s_sleep 4")
        k("buffer_load_dwordx2 v[52:53], v50, s[20:23], s30 offen sc1")
        k("s_mov_b32 s56, 0")
        k("s_add_u32 s41, s41, 1")
        k(f"s_cmp_gt_u32 s41, {OPT.get('hintn', 3)}")
        k(f"s_cbranch_scc1 {w}")
        k("s_waitcnt vmcnt(0)")
        k(f"v_cmp_eq_u32 vcc, {hex(MAG0)}, v52")
        k("v_cmp_eq_u32 s[34:35], s32, v53")
        k.nop(1)
        k("s_and_b32 s31, vcc_lo, s34")
        k("s_bcnt1_i32_b32 s33, s31")
        k("s_cmp_lg_u32 s33, 7")
        k(f"s_cbranch_scc1 {lp}")
        k("s_ff0_i32_b32 s31, s31")
        if OPT.get('badhint'): k("s_mov_b32 s31, 5")
        k(f"s_add_u32 s56, s31, s{SIDX}")
        k("s_or_b32 s56, s56, 0x100")
        k("s_cmp_eq_u32 s31, 0")
        k("s_cselect_b32 s56, 2, s56")
        k.place(w)
        k("s_mov_b64 exec, -1")
        k(f"v_mov_b32 v50, {EARLY - 4}")
        k("v_mov_b32 v49, s56")
        k("ds_write_b32 v50, v49")
        k("s_waitcnt vmcnt(0) lgkmcnt(0)")
        k.place(l)
    def mark():
        l = k.label("mk")
        k("s_cmp_lg_u32 s57, 8")
        k(f"s_cbranch_scc1 {l}")
        k(f"s_lshl_b32 s30, s{SXCD}, 5")
        k(f"s_lshr_b32 s31, s{SIDX}, 3")
        k(f"s_cmp_lg_u32 s{SCHK}, 0")
        k(f"s_cselect_b32 s31, s31, s{SIDX}")
        k(f"s_cselect_b32 s32, 4, 0")
        k("s_add_u32 s30, s30, s32")
        k(f"s_lshl_b32 s31, 1, s31")
        k("s_mov_b64 exec, 1")
        k("v_mov_b32 v45, s30")
        k("v_mov_b32 v46, s31")
        k("s_waitcnt vmcnt(0)")
        k("global_atomic_or v45, v46, s[60:61] offset:16 sc1")
        k("s_mov_b64 exec, -1")
        k.place(l)
    def peek(c):
        l, w = k.label("pk"), k.label("pkw")
        k(f"s_cmp_lg_u32 s{SW}, 10")
        k(f"s_cbranch_scc1 {l}")
        k(f"s_cmp_lg_u32 s{SCHK}, 1")
        k(f"s_cbranch_scc1 {l}")
        k(f"s_lshl_b32 s30, s{SXCD}, 5")
        k("v_mov_b32 v47, s30")
        k(f"v_mov_b32 v50, {EARLY - 4*(c & 1)}")
        k("s_mov_b32 s56, 0")
        if c >= KC0 - 1:
            k("s_waitcnt vmcnt(0)")
            k("v_readfirstlane_b32 s30, v48")
            k.nop(1)
            k(f"s_lshr_b32 s30, s30, s{SIDX}")
            k("s_and_b32 s30, s30, 0xff")
            k("s_bcnt1_i32_b32 s31, s30")
            k("s_cmp_lg_u32 s31, 7")
            k(f"s_cbranch_scc1 {w}")
            k("s_ff0_i32_b32 s30, s30")
            k(f"s_add_u32 s56, s30, s{SIDX}")
            k("s_or_b32 s56, s56, 0x100")
            k("s_cmp_eq_u32 s30, 0")
            k("s_cselect_b32 s56, 2, s56")
        k.place(w)
        k("v_mov_b32 v49, s56")
        k("ds_write_b32 v50, v49")
        if c < KC1 - 1: k("global_load_dword v48, v47, s[60:61] offset:16 sc1")
        k("s_waitcnt lgkmcnt(0)")
        k.place(l)
    k(f"""
    s_sub_u32 s29, s{SW}, 8
    s_lshl_b32 s30, s29, 10
    v_add_u32 v4, s30, v3
    s_mov_b32 s39, {hex(ONES)}
    """)
    if OPT.get('t1at', 0) < 0: cold_touch(k)
    if OPT.get('t7'):
        l7 = k.label("t7")
        k(f"s_cmp_lg_u32 s{SW}, 10")
        k(f"s_cbranch_scc1 {l7}")
        srd(k, 44, 6, 512*3072)
        k("s_lshr_b32 s31, s2, 3")
        k(f"s_mul_i32 s31, s31, {48*1024}")
        k("v_lshlrev_b32 v12, 10, v2")
        k("s_mov_b32 exec_hi, 0xffff")
        k("buffer_load_dword v40, v12, s[44:47], s31 offen offset:384")
        if OPT['t7'] > 1: k("buffer_load_dword v41, v12, s[44:47], s31 offen offset:896")
        k("s_mov_b64 exec, -1")
        k.place(l7)
    hint()
    if OPT.get('mk0', 1): mark()
    for c in range(8):
        k("s_barrier")
        if c <= KC1: early_check(k, TAIL, (c - 1) & 1)
        if c == 0 and not OPT.get('mk0', 1): mark()
        if c < KC1: peek(c)
        if c == OPT.get('t1at', 0): cold_touch(k)
        if c == OPT.get('t6at', 99):
            l6 = k.label("t6")
            k(f"s_cmp_eq_u32 s{SW}, 8")
            k(f"s_cbranch_scc1 {l6}")
            k(f"s_sub_u32 s42, s{SW}, 9")
            k(f"s_lshl_b32 s42, s42, 21")
            k("s_lshl_b32 s43, s2, 13")
            k("s_add_u32 s42, s42, s43")
            touch(k, 42, 64, 47)
            k.place(l6)
        if c == OPT.get('tcat', 7):
            l11 = k.label("t11b")
            k(f"s_cmp_lg_u32 s{SW}, 11")
            k(f"s_cbranch_scc1 {l11}")
            if True:
                here = k.label("here")
                k("s_getpc_b64 s[44:45]")
                k.place(here)
                k(f"s_sub_u32 s44, s44, {here}-{NAME}")
                k("s_subb_u32 s45, s45, 0")
                k("v_lshlrev_b32 v12, 7, v2")
                for i in range(4):
                    k("v_add_u32 v12, 8192, v12")
                    k(f"global_load_dword v{40+i}, v12, s[44:45]")
            k.place(l11)

        if c < 8 and not (OPT.get('z_nostat') and c > 0):
            cc = c
            k(f"ds_read_b128 v[{X}:{X+3}], v4 offset:{cc*8192}")
            k(f"ds_read_b128 v[{X+4}:{X+7}], v4 offset:{cc*8192 + 4096}")
            for hf in range(2):
                k(f"s_waitcnt lgkmcnt({1-hf})")
                for d in range(4):
                    r = X + 4*hf + d
                    q, sx = SQ + 2*hf + (d & 1), SX + 2*hf + (d & 1)
                    first = (cc == 0 and d < 2)
                    k(f"v_dot2_f32_bf16 v{q}, v{r}, v{r}, {'0' if first else 'v%d' % q}")
                    k(f"v_dot2_f32_bf16 v{sx}, v{r}, s39, {'0' if first else 'v%d' % sx}")
        if c == 7:
            k.nop(3)
            k(f"v_add_f32 v{SQ}, v{SQ}, v{SQ+1}")
            k(f"v_add_f32 v{SQ+2}, v{SQ+2}, v{SQ+3}")
            k(f"v_add_f32 v{SX}, v{SX}, v{SX+1}")
            k(f"v_add_f32 v{SX+2}, v{SX+2}, v{SX+3}")
            row8_sum(k, [SQ, SQ+2, SX, SX+2])
        if c == 7:
            for hf in range(2):
                finish_stats(k, SX + 2*hf, SQ + 2*hf, RS + hf, NB + hf, T, T+1)
            k(f"""
            v_lshrrev_b32 v5, 3, v2
            s_lshl_b32 s30, s29, 5
            s_add_u32 s30, s30, {EXS}
            v_lshl_add_u32 v5, v5, 2, s30
            ds_write2_b32 v5, v{RS}, v{RS+1} offset0:0 offset1:32
            ds_write2_b32 v5, v{NB}, v{NB+1} offset0:64 offset1:96
            """)
    k("s_waitcnt lgkmcnt(0)")
    k("s_barrier")
    nm = k.label("nomx")
    k(f"""
    s_cmp_lg_u32 s28, 0
    s_cbranch_scc1 {nm}
    s_lshl_b32 s30, s27, 8
    s_lshl_b32 s31, s29, 5
    s_add_u32 s30, s30, s31
    s_add_u32 s30, s30, {MX}
    v_lshrrev_b32 v5, 3, v2
    v_lshlrev_b32 v5, 2, v5
    s_mov_b32 exec_lo, 0x01010101
    s_mov_b32 exec_hi, 0x01010101
    buffer_store_dword v{SX}, v5, s[20:23], s30 offen sc1
    buffer_store_dword v{SX+2}, v5, s[20:23], s30 offen offset:128 sc1
    s_mov_b64 exec, -1
    """)
    k.place(nm)
    nw, g, gx, g2 = k.label("nrw"), k.label("gate"), k.label("gatex"), k.label("gate2")
    k("s_mov_b32 s56, 0")
    k(f"s_cmp_lg_u32 s{SW}, 8")
    k(f"s_cbranch_scc1 {nw}")
    k("s_cmp_eq_u32 s3, 1")
    k(f"s_cbranch_scc1 {gx}")
    k("s_mov_b32 s41, 0")
    k("v_lshlrev_b32 v9, 5, v2")
    k("s_mov_b64 exec, 0xff")
    k.place(g)
    k("global_load_dwordx2 v[10:11], v9, s[60:61] offset:16 sc1")
    k("s_add_u32 s41, s41, 1")
    k("s_mov_b64 s[30:31], 0")
    k("s_waitcnt vmcnt(0)")
    for se in range(4):
        k(f"v_bfe_u32 v12, v10, {8*se}, 8")
        k(f"v_bfe_u32 v13, v11, {se}, 1")
        k("v_bcnt_u32_b32 v12, v12, v13")
        k("v_cmp_ne_u32 vcc, 8, v12")
        k("s_or_b64 s[30:31], s[30:31], vcc")
    k(f"s_cbranch_scc0 {g2}")
    k("s_sleep 8")
    k("s_cmp_lt_u32 s41, 0x4000")
    k(f"s_cbranch_scc1 {g}")
    k("s_mov_b32 s56, 1")
    k(f"s_branch {gx}")
    k.place(g2)
    k("s_cmp_lt_u32 s1, 8")
    k(f"s_cbranch_scc1 {gx}")
    k(f"v_readlane_b32 s30, v10, s{SXCD}")
    k(f"s_and_b32 s31, s{SIDX}, 24")
    k("s_lshr_b32 s30, s30, s31")
    k("s_ff0_i32_b32 s30, s30")
    k("s_add_u32 s30, s30, s31")
    k(f"s_cmp_eq_u32 s30, s{SIDX}")
    k(f"s_cbranch_scc1 {gx}")
    k("s_or_b32 s56, s30, 0x100")
    k.place(gx)
    if OPT.get('z_rec'):
        k("s_mov_b64 exec, 1")
        k("v_mov_b32 v12, 0")
        k("v_mov_b32 v13, s56")
        k("v_mov_b32 v14, s41")
        k("global_atomic_add v12, v13, s[60:61] sc1")
        k("global_atomic_add v12, v14, s[60:61] offset:4 sc1")
    k("s_mov_b64 exec, -1")
    k(f"v_mov_b32 v4, {ROLE}")
    k("v_mov_b32 v5, s56")
    k("ds_write_b32 v4, v5")
    k("s_waitcnt lgkmcnt(0)")
    k.place(nw)
    k(f"s_lshl_b32 s40, s28, 5")
    k(f"s_add_u32 s40, s40, s27")
    k(f"s_lshl_b32 s40, s40, 7")
    k(f"s_add_u32 s40, s40, {FLG}")
    k("v_mov_b32 v8, 1")
    k("v_mov_b32 v9, 0")
    k(f"s_and_b32 s{SLOC}, s3, 1"); k(f"s_xor_b32 s{SLOC}, s{SLOC}, 1")
    k("s_waitcnt vmcnt(0)")
    stamp(k, 1)
    k("s_barrier")
    k(f"s_cmp_lg_u32 s{SW}, 8")
    k(f"s_cbranch_scc1 {RLAB[0]}")
    nf = k.label("nofire")
    k("s_cmp_lg_u32 s56, 0")
    k(f"s_cbranch_scc1 {nf}")
    k("s_mov_b64 exec, 1")
    if OPT.get('p1m', 1) == 1: pub_store(k, ["buffer_store_dword v8, v9, s[20:23], s40 offen"])
    else: k("buffer_store_dword v8, v9, s[20:23], s40 offen sc1")
    k("s_mov_b64 exec, -1")
    k.place(nf)
    stamp(k, 0)
    role_read(k)
    k(f"v_mov_b32 v4, {PROG}")
    k("v_mov_b32 v5, 0")
    for o in (0, 16, 20, 32, 48): k(f"ds_write_b32 v4, v5 offset:{o}")
    k(f"s_lshr_b32 s42, s{SHEAD}, 2")
    k(f"s_lshl_b32 s42, s42, 5")
    flag_poll(k, 42)
    stamp(k, 2); rstamp(k, 3)
    k("s_waitcnt lgkmcnt(0)")
    k("s_barrier")

def rowmax(k, S, dst, t1, t2):
    k(f"v_max3_f32 v{dst}, v{S}, v{S+1}, v{S+2}")
    k(f"v_max3_f32 v{t1}, v{S+3}, v{S+4}, v{S+5}")
    k(f"v_max3_f32 v{dst}, v{dst}, v{S+6}, v{S+7}")
    k(f"v_max3_f32 v{t1}, v{t1}, v{S+8}, v{S+9}")
    k(f"v_max3_f32 v{dst}, v{dst}, v{S+10}, v{S+11}")
    k(f"v_max3_f32 v{t1}, v{t1}, v{S+12}, v{S+13}")
    k(f"v_max3_f32 v{dst}, v{dst}, v{S+14}, v{S+15}")
    k(f"v_max_f32 v{t1}, v{dst}, v{t1}")
    k(f"v_mov_b32 v{t2}, v{t1}")
    k.nop(2)
    k(f"v_permlane32_swap_b32 v{t1}, v{t2}")
    k.nop(1)
    k(f"v_max_f32 v{dst}, v{t1}, v{t2}")

def p2_compute(k, tail):
    Q = 8; KB = [12, 16]; V1 = [20, 28]; V2 = [24, 32]; P = 36; SS = [48, 64]; CN = 80; O = 96
    VKA, VVA, VINC = 4, 5, 47
    PRG, VPR = 112, 6
    chk, spin = k.label("chk"), k.label("spin")
    def spinf(k):
        k.place(spin)
        k("s_sleep 1")
        k(f"ds_read_b32 v{PRG}, v{VPR}")
        k("s_waitcnt lgkmcnt(0)")
        k(f"s_branch {chk}")
    tail.append(spinf)
    k(f"""
    s_lshl_b32 s30, s{SQB}, 3
    s_add_u32 s30, s30, s{SW}
    s_lshl_b32 s31, s30, 10
    s_lshl_b32 s29, s{SHEAD}, 16
    s_add_u32 s31, s31, s29
    buffer_load_dwordx4 v[{Q}:{Q+3}], v3, s[20:23], s31 offen {OPT['ld']}
    v_mov_b32 v{VKA}, v3
    v_lshrrev_b32 v6, 5, v2
    v_lshlrev_b32 v6, 8, v6
    v_and_b32 v7, 15, v2
    v_lshl_add_u32 v{VVA}, v7, 4, v6
    v_add_u32 v{VVA}, 0x10000, v{VVA}
    v_and_b32 v6, 27, v2
    v_mov_b32 v7, {hex(ONES)}
    v_cmp_eq_u32 vcc, 16, v6
    s_mov_b32 s36, 0xffff
    s_mov_b32 s37, 0xffff
    v_cndmask_b32 v7, 0, v7, vcc
    s_lshl_b32 s42, s30, 15
    s_lshl_b32 s41, s{SHEAD}, 10
    s_add_u32 s42, s42, s41
    s_add_u32 s42, s42, {OF}
    """)
    for r in range(16): k(f"v_mov_b32 v{V1[0]+r}, v7")
    k(f"v_mov_b32 v{VPR}, {PROG}")
    for r in range(8): k(f"v_mov_b32 v{P+r}, 0")
    for r in range(16): k(f"v_mov_b32 v{O+r}, 0")
    def vread(kk, buf, off):
        kk("s_mov_b64 exec, s[36:37]")
        kk(f"ds_read_b128 v[{V1[buf]}:{V1[buf]+3}], v{VVA} offset:{off}")
        kk(f"ds_read_b128 v[{V2[buf]}:{V2[buf]+3}], v{VVA} offset:{off+512}")
        kk("s_mov_b64 exec, -1")
    stamp(k, 4)
    k("s_barrier")
    stamp(k, 5)
    k(f"ds_read_b128 v[{KB[0]}:{KB[0]+3}], v{VKA}")
    k(f"ds_read_b128 v[{KB[1]}:{KB[1]+3}], v{VKA} offset:1024")
    vread(k, 0, 0)
    k("s_waitcnt vmcnt(0) lgkmcnt(3)")
    k(f"{MFMA} v[{SS[0]}:{SS[0]+15}], v[{KB[0]}:{KB[0]+3}], v[{Q}:{Q+3}], 0")
    k.nop(12)
    rowmax(k, SS[0], 44, 45, 46)
    for r in range(16): k(f"v_sub_f32 v{CN+r}, 0, v44")
    k.nop(2)
    k(f"{MFMA} v[{SS[0]}:{SS[0]+15}], v[{KB[0]}:{KB[0]+3}], v[{Q}:{Q+3}], v[{CN}:{CN+15}]")
    k("s_mov_b32 s38, 0")
    k.nop(10)
    loop = k.label("loop")
    k(".p2align 6")
    k.place(loop)
    pr = OPT['prio']
    for t in range(8):
        cur, nx = SS[t & 1], SS[(t+1) & 1]
        e = lambda i: k(f"v_exp_f32 v{cur+i}, v{cur+i}")
        c = lambda i: k(f"v_cvt_pk_bf16_f32 v{P+i}, v{cur+2*i}, v{cur+2*i+1}")
        k("s_waitcnt lgkmcnt(0)")
        if t == 6:
            k.place(chk)
            k(f"v_cmp_ge_u32 vcc, s38, v{PRG}")
            k("s_cmp_lg_u64 vcc, 0")
            k(f"s_cbranch_scc1 {spin}")
        kb = KB[(t+1) & 1]
        pb = (t+1) & 1
        sp = (lambda n: k(f"s_setprio {n}")) if pr else (lambda n: None)
        k(f"{MFMA} v[{nx}:{nx+15}], v[{kb}:{kb+3}], v[{Q}:{Q+3}], v[{CN}:{CN+15}]")
        sp(0)
        k(f"ds_read_b128 v[{KB[t&1]}:{KB[t&1]+3}], v{VKA} offset:{(t+2)*1024}")
        e(0); e(1)
        k(f"{MFMA} v[{O}:{O+15}], v[{V2[pb]}:{V2[pb]+3}], v[{P+4}:{P+7}], v[{O}:{O+15}]")
        vread(k, pb, (t+1)*1024)
        if t == 5: k(f"ds_read_b32 v{PRG}, v{VPR}")
        e(2); e(3); sp(1); c(0); e(4); e(5); c(1); e(6); e(7); sp(2); c(2); e(8); e(9); c(3); e(10); e(11)
        k(f"{MFMA} v[{O}:{O+15}], v[{V1[t&1]}:{V1[t&1]+3}], v[{P}:{P+3}], v[{O}:{O+15}]")
        c(4); e(12); e(13); sp(3); c(5); e(14); e(15); c(6)
        if t == 7:
            k(f"v_add_u32 v{VKA}, 8192, v{VKA}")
            k(f"v_add_u32 v{VVA}, 8192, v{VVA}")
            k("s_add_u32 s38, s38, 1")
            k(f"v_mov_b32 v{PRG}, s38")
            k(f"ds_write_b32 v{VPR}, v{PRG} offset:32")
            k("s_cmp_lt_u32 s38, 8")
        c(7)
    k(f"s_cbranch_scc1 {loop}")
    k("s_setprio 0")
    stamp(k, 6)
    k.nop(1)
    k(f"{MFMA} v[{O}:{O+15}], v[{V2[1]}:{V2[1]+3}], v[{P+4}:{P+7}], v[{O}:{O+15}]")
    if True:
        k("s_waitcnt lgkmcnt(0)")
        k.nop(11)
    fb, fin = k.label("fb"), k.label("fin")
    def finish(k):
        k(f"v_rcp_f32 v44, v{O+8}")
        k.nop(1)
        for r in range(8): k(f"v_mul_f32 v{SS[1]+r}, v{O+r}, v44")
        for r in range(4): k(f"v_cvt_pk_bf16_f32 v{P+r}, v{SS[1]+2*r}, v{SS[1]+2*r+1}")
        pub_store(k, [f"buffer_store_dwordx4 v[{P}:{P+3}], v3, s[20:23], s42 offen"], 0)
    finish(k)
    k(f"""
    v_max3_f32 v44, abs(v{O}), abs(v{O+1}), abs(v{O+2})
    v_max3_f32 v45, abs(v{O+3}), abs(v{O+4}), abs(v{O+5})
    v_max3_f32 v44, v44, abs(v{O+6}), abs(v{O+7})
    v_add_f32 v46, v{O}, v{O+1}
    v_max3_f32 v44, v44, v45, v{O+8}
    s_mov_b32 s39, {hex(f32(2.0**100))}
    """)
    for r in range(2, 9): k(f"v_add_f32 v46, v46, v{O+r}")
    k(f"v_and_b32 v46, 0x7fffffff, v46")
    k(f"v_cmp_ngt_f32 vcc, s39, v44")
    k(f"v_cmp_ngt_f32 s[40:41], s39, v46")
    k.nop(1)
    k("s_or_b64 s[40:41], s[40:41], vcc")
    k("s_cmp_lg_u64 s[40:41], 0")
    k(f"s_cbranch_scc1 {fb}")
    if OPT.get('forcefb'):
        k(f"s_bitcmp1_b32 s{SW}, 0")
        k(f"s_cbranch_scc1 {fb}")
    k.place(fin)
    k("s_waitcnt vmcnt(0)")
    k("s_barrier")
    k("s_barrier")
    def fallback(k):
        k.place(fb)
        k(f"v_mov_b32 v{VKA}, v3")
        k(f"v_subrev_u32 v{VVA}, 0x10000, v{VVA}")
        k(f"v_mov_b32 v7, 0xff7fffff")
        for r in range(16): k(f"v_mov_b32 v{O+r}, 0")
        k("s_mov_b32 s38, 0")
        fl = k.label("fl")
        k.place(fl)
        S = SS[0]
        k(f"ds_read_b128 v[{KB[0]}:{KB[0]+3}], v{VKA}")
        vread(k, 0, 0)
        k("s_waitcnt lgkmcnt(0)")
        k(f"{MFMA} v[{S}:{S+15}], v[{KB[0]}:{KB[0]+3}], v[{Q}:{Q+3}], 0")
        k.nop(14)
        rowmax(k, S, 44, 45, 46)
        k("v_max_f32 v44, v44, v7")
        k("v_sub_f32 v45, v7, v44")
        k("v_exp_f32 v45, v45")
        k("v_mov_b32 v7, v44")
        for r in range(16): k(f"v_sub_f32 v{S+r}, v{S+r}, v44")
        for r in range(16): k(f"v_mul_f32 v{O+r}, v{O+r}, v45")
        for r in range(16): k(f"v_exp_f32 v{S+r}, v{S+r}")
        k.nop(1)
        for r in range(8): k(f"v_cvt_pk_bf16_f32 v{P+r}, v{S+2*r}, v{S+2*r+1}")
        k.nop(2)
        k(f"{MFMA} v[{O}:{O+15}], v[{V1[0]}:{V1[0]+3}], v[{P}:{P+3}], v[{O}:{O+15}]")
        k(f"{MFMA} v[{O}:{O+15}], v[{V2[0]}:{V2[0]+3}], v[{P+4}:{P+7}], v[{O}:{O+15}]")
        k(f"v_add_u32 v{VKA}, 1024, v{VKA}")
        k(f"v_add_u32 v{VVA}, 1024, v{VVA}")
        k("s_add_u32 s38, s38, 1")
        k("s_cmp_lt_u32 s38, 64")
        k.nop(14)
        k(f"s_cbranch_scc1 {fl}")
        k("s_waitcnt vmcnt(0)")
        finish(k)
        k(f"s_branch {fin}")
    tail.append(fallback)

def p2_relayout(k):
    k(f"""
    s_sub_u32 s29, s{SW}, 9
    """)
    if True:
        le = k.label("pe")
        k(f"s_cmp_lg_u32 s{SW}, 9")
        k(f"s_cbranch_scc1 {le}")
        k(f"s_mov_b32 s34, s{SXCD}")
        k(f"s_mov_b32 s35, s{SIDX}")
        k(f"s_getreg_b32 s{SXCD}, hwreg(HW_REG_XCC_ID, 0, 3)")
        k(f"s_getreg_b32 s{SIDX}, hwreg(HW_REG_HW_ID, 13, 2)")
        k(f"s_lshl_b32 s{SIDX}, s{SIDX}, 3")
        PRESENCE[0](k, False)
        k(f"s_mov_b32 s{SXCD}, s34")
        k(f"s_mov_b32 s{SIDX}, s35")
        k.place(le)
    early = OPT.get('rl_early', 0)
    if early < 2:
        k("s_waitcnt lgkmcnt(0)")
        k("s_barrier")
    if early < 1:
        k("s_barrier")
    loads, stores = relayout(k)
    loads(0); loads(1)
    srd(k, 44, 8, 512*1024)
    k("s_and_b32 s35, s29, 1")
    k("s_lshl_b32 s36, s2, 1")
    k("s_add_u32 s35, s35, s36")
    k("s_lshl_b32 s36, s35, 10")
    k("buffer_load_dwordx4 v[72:75], v3, s[44:47], s36 offen")
    if early >= 2:
        k("s_waitcnt lgkmcnt(0)")
        k("s_barrier")
    if early >= 1:
        k("s_barrier")
    k("s_waitcnt vmcnt(27)")
    stores(0)
    loads(2)
    k("s_waitcnt vmcnt(26)")
    stores(1)
    k(f"s_mov_b32 s36, {hex(ONES)}")
    k("v_dot2_f32_bf16 v76, v72, s36, 0")
    for d in range(1, 4): k(f"v_dot2_f32_bf16 v76, v{72+d}, s36, v76")
    k.nop(1)
    for ctl in ("quad_perm:[1,0,3,2]", "quad_perm:[2,3,0,1]", "row_half_mirror", "row_mirror"):
        k.nop(2)
        k(f"v_add_f32_dpp v76, v76, v76 {ctl} row_mask:0xf bank_mask:0xf")
    k.nop(1)
    for i in range(4): k(f"v_readlane_b32 s{48+i}, v76, {16*i}")
    k(f"""
    s_lshr_b32 s36, s35, 4
    s_lshl_b32 s36, s36, 6
    s_bfe_u32 s43, s35, 0x10002
    s_lshl_b32 s43, s43, 4
    s_add_u32 s36, s36, s43
    v_mov_b32 v76, s48
    v_add_f32 v76, s49, v76
    v_add_f32 v76, s50, v76
    v_add_f32 v76, s51, v76
    v_mul_f32 v76, {hex(f32(1/512))}, v76
    s_bfe_u32 s43, s35, 0x10003
    s_lshl_b32 s43, s43, 3
    s_add_u32 s36, s36, s43
    v_cvt_pk_bf16_f32 v77, v76, v76
    s_and_b32 s43, s35, 3
    s_lshl_b32 s43, s43, 1
    s_add_u32 s36, s36, s43
    v_and_b32 v78, 0xffff0000, v77
    v_sub_f32 v78, v76, v78
    s_add_u32 s36, s36, {WBT}
    v_cvt_pk_bf16_f32 v78, v78, v78
    v_mov_b32 v79, 0
    s_mov_b64 exec, 1
    buffer_store_short v77, v79, s[20:23], s36 offen sc1
    buffer_store_short v78, v79, s[20:23], s36 offen offset:32 sc1
    s_mov_b64 exec, -1
    """)
    k("s_waitcnt vmcnt(0)")
    stores(2)
    k("s_waitcnt vmcnt(0)")
    na = k.label("noarr")
    k(f"v_mov_b32 v5, {PROG + 48}")
    k("v_mov_b32 v6, 1")
    k("s_mov_b64 exec, 1")
    k("ds_add_rtn_u32 v7, v5, v6")
    k("s_waitcnt lgkmcnt(0)")
    k("v_readfirstlane_b32 s42, v7")
    k("s_cmp_lg_u32 s42, 2")
    k(f"s_cbranch_scc1 {na}")
    k(f"s_add_u32 s42, s{SXCD}, {CW}")
    arrive(k, 42)
    k.place(na)
    k("s_endpgm")

def p2_helper(k, done):
    ld = OPT['ld']
    k(f"s_lshl_b32 s33, s{SHEAD}, 16")
    def kv(c):
        k(f"s_add_u32 s31, s{SHEAD}, {c}" if OPT.get('kvrot', 0) else f"s_mov_b32 s31, {c}")
        k("s_and_b32 s31, s31, 7")
        k("s_lshl_b32 s31, s31, 13")
        k("s_add_u32 s31, s31, s33")
        for base, l in ((KF, 0), (VF, 65536)):
            for g in range(2):
                k(f"s_add_u32 s34, s31, {base + g*4096}")
                k(f"s_mov_b32 m0, {l + c*8192 + g*4096}")
                k.nop(1)
                for q in range(4):
                    k(f"buffer_load_dwordx4 v3, s[20:23], s34 offen" + (f" offset:{q*1024}" if q else "") + f" {ld} lds")
    kv(0); kv(1)
    k("s_waitcnt vmcnt(16)")
    k("s_barrier")
    issued = 2
    def publish(c):
        k(f"v_mov_b32 v5, {c if c < 7 else 64}")
        k("ds_write_b32 v4, v5")
    while issued < OPT.get('kvd', 3): kv(issued); issued += 1
    for c in range(1, 8):
        k(f"s_waitcnt vmcnt({16*(issued - 1 - c)})")
        publish(c)
        if issued < 8: kv(issued); issued += 1
    stamp(k, 12)
    clean(k, 2)
    k("s_setprio 3")
    k(f"s_and_b32 s{SLOC}, s3, 1"); k(f"s_xor_b32 s{SLOC}, s{SLOC}, 1")
    m5 = OPT.get('t5', 0)
    if m5:
        k(f"s_lshl_b32 s43, s{SXCD}, 5")
        k(f"s_add_u32 s43, s43, s{SIDX}")
        if m5 & 1:
            k(f"s_mul_i32 s42, s43, {172*128}")
            k(f"s_add_u32 s42, s42, {ACT}")
            touch(k, 42, 172)
        for bit, base in ((2, HF), (4, OF)):
            if m5 & bit:
                k(f"s_lshl_b32 s42, s43, 13")
                k(f"s_add_u32 s42, s42, {base}")
                touch(k, 42, 64)
        if m5 & 8:
            srd(k, 44, 18, 2*MB)
            k("s_lshl_b32 s42, s43, 13")
            k("buffer_load_dword v40, v12, s[44:47], s42 offen")
    k("s_mov_b32 s55, 0")
    if OPT.get('t2', 1):
        again, skip, ok = k.label("t2a"), k.label("t2s"), k.label("t2o")
        k(f"""
        s_mov_b32 s40, {CNT + CW*256}
        s_mov_b32 exec_lo, 0xff
        s_mov_b32 exec_hi, 0
        v_lshlrev_b32 v9, 8, v2
        s_mov_b32 s41, 0
        """)
        k.place(again)
        k(f"s_sleep {OPT.get('slpw', 32)}")
        k("buffer_load_dword v10, v9, s[20:23], s40 offen sc1")
        k("ds_read_b32 v11, v4 offset:32")
        k("s_waitcnt vmcnt(0) lgkmcnt(0)")
        k("v_readfirstlane_b32 s41, v11")
        k("v_cmp_gt_u32 vcc, 32, v10")
        k(f"s_cmp_ge_u32 s41, {OPT.get('t2lim', 6)}")
        k(f"s_cbranch_scc1 {skip}")
        k("s_cmp_lg_u64 vcc, 0")
        k(f"s_cbranch_scc1 {again}")
        k("s_mov_b32 s55, 1")
        k("s_mov_b64 exec, -1")
        if OPT.get('woe', 1):
            k(f"s_lshr_b32 s44, s{SIDX}, 2")
            k(f"s_lshl_b32 s44, s44, 16")
            k(f"s_add_u32 s44, s44, {WOF}")
            for lw in range(4):
                for j in range(NWE):
                    k(f"s_add_u32 s46, s44, {(lw & 1)*32768 + (lw >> 1)*16384 + j*1024}")
                    k(f"s_mov_b32 m0, {wo_addr(j) + lw*1024}")
                    k.nop(1)
                    k(f"buffer_load_dwordx4 v3, s[20:23], s46 offen {ld} lds")
            k(f"s_mov_b32 s46, {WBT}")
            k(f"s_mov_b32 m0, {WBL}")
            k.nop(1)
            k(f"buffer_load_dwordx4 v3, s[20:23], s46 offen {ld} lds")
            k(f"buffer_load_dwordx4 v3, s[20:23], s46 offen offset:1024 {ld} lds")
            k(f"v_mov_b32 v5, 1")
            k("s_waitcnt vmcnt(0)")
            k("ds_write_b32 v4, v5 offset:20")
        for base, tot in [(WOF, 4096), (WGF, 43*256), (WGF + 43*32768, 43*256), (WDF, 43*256)][OPT.get('t2a', 0):OPT.get('t2b', 3)]:
            per = tot // 32
            k(f"s_mul_i32 s42, s{SIDX}, {per*128}")
            k(f"s_add_u32 s42, s42, {base}")
            touch(k, 42, per)
        k.place(skip)
        k("s_mov_b64 exec, -1")

def res_cfg(mode):
    if mode == 'wo':
        return dict(NKS=32, JL=16, WIN=16, BSRC=OF, ASRC=WOF, RES=XF)
    return dict(NKS=86, JL=39, WIN=OPT.get('win5', 12), BSRC=ACT, ASRC=WDF, RES=HF)

def res_map(k):
    k(f"""
    s_lshl_b32 s27, s{SXCD}, 2
    s_and_b32 s28, s{SIDX}, 3
    s_add_u32 s27, s27, s28
    s_lshr_b32 s28, s{SIDX}, 2
    """)

def res_consumer(k, mode, sb):
    c_ = res_cfg(mode); NKS, JL, WIN = c_['NKS'], c_['JL'], c_['WIN']
    NH = NKS // 2
    wo = mode == 'wo'
    SRB, SCB = 27, 28
    ld = OPT['ld']
    R, ACC, AB, AT, AM, WM = 8, 16, 48, 80, 144, 160
    BW = 80 if wo else 112
    res_map(k)
    k(f"""
    s_and_b32 s29, s{SW}, 1
    s_lshl_b32 s30, s{SRB}, 1
    s_add_u32 s30, s30, s29
    s_lshr_b32 s31, s{SW}, 1
    s_lshl_b32 s32, s{SCB}, 1
    s_add_u32 s32, s32, s31
    s_mul_i32 s33, s31, 3072
    v_add_u32 v6, s33, v3
    s_lshl_b32 s33, s31, 10
    s_add_u32 s33, s33, 1024
    v_add_u32 v7, s33, v3
    s_mul_i32 s34, s31, {NH}
    s_mul_i32 s35, s30, {NKS}
    s_add_u32 s35, s35, s34
    s_lshl_b32 s35, s35, 10
    s_add_u32 s35, s35, {c_['BSRC']}
    """)
    if wo:
        k(f"""
        s_lshl_b32 s40, s30, 5
        s_lshl_b32 s41, s32, 1
        s_add_u32 s40, s40, s41
        s_lshl_b32 s40, s40, 10
        s_add_u32 s41, s40, {XF}
        buffer_load_dwordx4 v[{R}:{R+3}], v3, s[20:23], s41 offen {ld}
        buffer_load_dwordx4 v[{R+4}:{R+7}], v3, s[20:23], s41 offen offset:1024 {ld}
        s_add_u32 s41, s40, {HF}
        s_lshl_b32 s47, s32, 13
        s_lshl_b32 s48, s30, 7
        s_add_u32 s47, s47, s48
        s_add_u32 s47, s47, {ST}
        s_add_u32 s48, s48, {MX}
        v_and_b32 v0, 1, v2
        v_lshlrev_b32 v0, 5, v0
        v_lshrrev_b32 v1, 5, v2
        v_lshl_add_u32 v0, v1, 4, v0
        s_lshl_b32 s33, s31, 10
        s_add_u32 s33, s33, {WBL}
        v_add_u32 v0, s33, v0
        """)
    else:
        for q in range(2):
            k(f"s_xor_b32 s36, s32, {q}")
            k(f"s_mul_i32 s36, s36, {NKS}")
            k(f"s_add_u32 s36, s36, s34")
            k(f"s_lshl_b32 s36, s36, 10")
            k(f"s_add_u32 s36, s36, {c_['ASRC'] + JL*1024}")
            for j in range(NH - JL):
                r = AT + 8*j + 4*q
                k(f"buffer_load_dwordx4 v[{r}:{r+3}], v3, s[20:23], s36 offen" + (f" offset:{j*1024}" if j else "") + f" {ld}")
        srd(k, 52, 18, 2*MB)
        k(f"""
        v_and_b32 v8, 31, v2
        v_lshlrev_b32 v8, 10, v8
        v_lshrrev_b32 v9, 5, v2
        v_lshl_add_u32 v8, v9, 4, v8
        s_lshl_b32 s47, s30, 15
        s_lshl_b32 s48, s32, 6
        s_add_u32 s47, s47, s48
        """)
        if OPT.get('fl', 1):
            k(f"""
            s_lshl_b32 s36, s31, 2
            v_add_u32 v10, s36, v9
            v_and_b32 v12, 7, v2
            v_xor_b32 v10, v10, v12
            v_xor_b32 v11, 2, v10
            v_and_b32 v13, 31, v2
            s_lshl_b32 s36, s29, 12
            s_add_u32 s36, s36, 32768
            v_lshl_add_u32 v13, v13, 7, s36
            v_lshl_add_u32 v10, v10, 4, v13
            v_lshl_add_u32 v11, v11, 4, v13
            v_lshrrev_b32 v13, 3, v2
            v_xor_b32 v14, v12, v13
            v_lshlrev_b32 v14, 4, v14
            v_lshl_add_u32 v13, v13, 10, v14
            s_lshl_b32 s36, s{SW}, 11
            s_add_u32 s36, s36, 32768
            v_add_u32 v12, s36, v3
            s_lshl_b32 s47, s{SRB}, 16
            s_lshl_b32 s48, s{SW}, 14
            s_add_u32 s47, s47, s48
            s_lshl_b32 s48, s{SCB}, 7
            s_add_u32 s47, s47, s48
            """)
    RED = 5*20480 if wo else 0
    if wo:
        for v, x in ((4, 2), (5, 0)):
            k(f"s_xor_b32 s36, s{SW}, {x}")
            k(f"s_lshl_b32 s37, s36, 12")
            k(f"s_add_u32 s37, s37, {RED}")
            k(f"v_add_u32 v{v}, s37, v3")
            k(f"s_lshl_b32 s36, s36, 8")
            k(f"s_add_u32 s{38 + (x >> 1)}, s36, {RED + 16384}")
    else:
        k(f"s_xor_b32 s36, s{SW}, 2")
        k(f"s_lshl_b32 s36, s36, 12")
        k(f"v_add_u32 v4, s36, v3")
        k(f"s_lshl_b32 s36, s{SW}, 12")
        k(f"v_add_u32 v5, s36, v3")
    k("s_mov_b32 s45, 0xffff0000")
    RS_ = R if wo else KEEP
    if wo: k("s_waitcnt vmcnt(0)")
    for d in range(8):
        k(f"v_lshlrev_b32 v{ACC+2*d}, 16, v{RS_+d}")
        k(f"v_and_b32 v{ACC+2*d+1}, s45, v{RS_+d}")
    if wo: k("s_setprio 3")
    k("s_barrier")
    stamp(k, sb)
    if wo:
        k("v_and_b32 v1, 31, v2")
        k("v_lshlrev_b32 v1, 2, v1")
        k(f"buffer_load_dword v1, v1, s[20:23], s48 offen {ld}")
    def bload(j):
        if j % 4 == 0: k(f"s_add_u32 s36, s35, {j*1024}")
        r = BW + 4*(j % WIN)
        k(f"buffer_load_dwordx4 v[{r}:{r+3}], v3, s[20:23], s36 offen" + (f" offset:{(j % 4)*1024}" if j % 4 else "") + f" {ld}")
    ds = []; seg = [0]
    def ard(j, q):
        if j < JL:
            if not wo and j == JM and q == 0: k("s_barrier")
            ad = wo_addr(j) if wo else j*4096
            if q == 0 and not (0 <= ad - seg[0] <= 61440):
                k(f"v_add_u32 v6, {ad - seg[0]}, v6")
                k(f"v_add_u32 v7, {ad - seg[0]}, v7")
                seg[0] = ad
            r = AB + 8*(j & 3) + 4*q
            k(f"ds_read_b128 v[{r}:{r+3}], v{6+q} offset:{ad - seg[0]}"); ds.append(j)
    def mrd(j):
        if wo and j < NH:
            k(f"ds_read_b128 v[{WM+4*(j&1)}:{WM+4*(j&1)+3}], v0 offset:{j*64}"); ds.append(j)
    nb = min(WIN, NH)
    for j in range(nb): bload(j)
    if wo: k("s_setprio 0")
    for j in range(3):
        ard(j, 0); ard(j, 1)
        if j < 2: mrd(j)
    for j in range(NH):
        lg = (len(ds) - 1 - max(i for i, x in enumerate(ds) if x == j)) if j in ds else None
        k(f"s_waitcnt vmcnt({nb - 1 - j})" + (f" lgkmcnt({lg})" if lg is not None else ""))
        A = AB + 8*(j & 3) if j < JL else AT + 8*(j - JL)
        B = BW + 4*(j % WIN)
        if wo and j == NH - 1:
            k(f"{MFMA} v[{AM}:{AM+15}], v[{WM+4*(j&1)}:{WM+4*(j&1)+3}], v[{B}:{B+3}], v[{AM}:{AM+15}]")
        for q in ((1, 0) if j == NH - 1 else (0, 1)):
            C = "0" if (j == 0 and q == 1) else f"v[{ACC+16*q}:{ACC+16*q+15}]"
            k(f"{MFMA} v[{ACC+16*q}:{ACC+16*q+15}], v[{A+4*q}:{A+4*q+3}], v[{B}:{B+3}], {C}")
            ard(j + 3, q)
        if wo and j < NH - 1:
            C = "0" if j == 0 else f"v[{AM}:{AM+15}]"
            k(f"{MFMA} v[{AM}:{AM+15}], v[{WM+4*(j&1)}:{WM+4*(j&1)+3}], v[{B}:{B+3}], {C}")
            mrd(j + 2)
        if nb < NH:
            bload(nb); nb += 1
    stamp(k, sb + 1)
    U = 48
    if wo:
        k(f"v_lshl_add_u32 v{R}, v2, 2, s39")
        k(f"v_lshl_add_u32 v{R+1}, v2, 2, s38")
        k.nop(9)
    else:
        k.nop(10)
        k("s_barrier")
    for g in range(4):
        k(f"ds_write_b128 v4, v[{ACC+16+4*g}:{ACC+19+4*g}] offset:{g*1024}")
    if wo:
        k(f"v_add_f32 v{AM}, v{AM}, v{AM+1}")
        k(f"ds_write_b32 v{R}, v{AM}")
        k(f"v_add_f32 v0, v{AM}, v1")
    k("s_waitcnt lgkmcnt(0)")
    k("s_barrier")
    if wo and OPT.get('z_st'): stamp(k, 0)
    if wo: k(f"ds_read_b32 v1, v{R+1}")
    for g in range(4):
        k(f"ds_read_b128 v[{U+4*g}:{U+4*g+3}], v5 offset:{g*1024}")
    P = 64
    for g in range(4):
        k(f"s_waitcnt lgkmcnt({3-g})")
        if wo and g == 0: k("v_add_f32 v0, v0, v1")
        for r in (4*g, 4*g+2):
            k(f"v_pk_add_f32 v[{ACC+r}:{ACC+r+1}], v[{ACC+r}:{ACC+r+1}], v[{U+r}:{U+r+1}]")
        if wo:
            for r in (4*g, 4*g+2):
                k(f"v_pk_add_f32 v[{U+r}:{U+r+1}], v[{ACC+r}:{ACC+r+1}], v[0:1] op_sel_hi:[1,0] neg_lo:[0,1] neg_hi:[0,1]")
            for d in (2*g, 2*g+1):
                k(f"v_cvt_pk_bf16_f32 v{P+d}, v{U+2*d}, v{U+2*d+1}")
            if g & 1:
                pub_store(k, [f"buffer_store_dwordx4 v[{P+2*g-2}:{P+2*g+1}], v3, s[20:23], s41 offen" + (" offset:1024" if g == 3 else "")], 1)
        else:
            for d in (2*g, 2*g+1):
                k(f"v_cvt_pk_bf16_f32 v{P+d}, v{ACC+2*d}, v{ACC+2*d+1}")
    if wo:
        SQ = 72
        k(f"v_dot2_f32_bf16 v{SQ}, v{P}, v{P}, 0")
        k(f"v_dot2_f32_bf16 v{SQ+1}, v{P+1}, v{P+1}, 0")
        for d in range(2, 8):
            k(f"v_dot2_f32_bf16 v{SQ+(d&1)}, v{P+d}, v{P+d}, v{SQ+(d&1)}")
        k("v_lshlrev_b32 v0, 2, v2")
        k.nop(2)
        k(f"v_add_f32 v{SQ}, v{SQ}, v{SQ+1}")
        half_sum(k, SQ, 74, 75)
        k("s_mov_b32 exec_hi, 0")
        pub_store(k, [f"buffer_store_dword v{SQ}, v0, s[20:23], s47 offen"], 1)
        k("s_mov_b64 exec, -1")
        if OPT.get('z_st'): stamp(k, 1)
        for d in range(8):
            k(f"v_cvt_pk_bf16_f32 v{KEEP+d}, v{ACC+2*d}, v{ACC+2*d+1}")
        k("v_lshlrev_b32 v0, 7, v2")
        k("s_waitcnt vmcnt(0)")
        k("s_barrier")
        if OPT.get('rf', 0) & 1:
            k("s_mov_b64 exec, 0xffff")
            k(f"buffer_load_dword v1, v0, s[20:23], s41 offen {ld}")
            k("s_mov_b64 exec, -1")
    else:
        k.nop(2)
        k(f"""
        v_permlane32_swap_b32 v{P}, v{P+2}
        v_permlane32_swap_b32 v{P+1}, v{P+3}
        v_permlane32_swap_b32 v{P+4}, v{P+6}
        v_permlane32_swap_b32 v{P+5}, v{P+7}
        """)
        sto = OPT.get('sto', '')
        if OPT.get('fl', 1):
            k(f"ds_write_b128 v10, v[{P}:{P+3}]")
            k(f"ds_write_b128 v11, v[{P+4}:{P+7}]")
            k("s_waitcnt lgkmcnt(0)")
            k("s_barrier")
            k(f"ds_read_b128 v[{P}:{P+3}], v12")
            k(f"ds_read_b128 v[{P+4}:{P+7}], v12 offset:1024")
            k("s_waitcnt lgkmcnt(1)")
            k(f"buffer_store_dwordx4 v[{P}:{P+3}], v13, s[52:55], s47 offen {sto}")
            k("s_add_u32 s47, s47, 8192")
            k("s_waitcnt lgkmcnt(0)")
            k(f"buffer_store_dwordx4 v[{P+4}:{P+7}], v13, s[52:55], s47 offen {sto}")
        else:
            k.nop(1)
            k(f"buffer_store_dwordx4 v[{P}:{P+3}], v8, s[52:55], s47 offen {sto}")
            k(f"buffer_store_dwordx4 v[{P+4}:{P+7}], v8, s[52:55], s47 offen offset:32 {sto}")

def res_wsetup(k, mode):
    c_ = res_cfg(mode); NKS = c_['NKS']
    k(f"""
    s_sub_u32 s45, s{SW}, 4
    s_lshr_b32 s44, s{SIDX}, 2
    s_lshl_b32 s44, s44, 1
    s_and_b32 s46, s45, 1
    s_add_u32 s44, s44, s46
    s_mul_i32 s44, s44, {NKS}
    s_lshr_b32 s46, s45, 1
    s_mul_i32 s46, s46, {NKS//2}
    s_add_u32 s44, s44, s46
    s_lshl_b32 s44, s44, 10
    s_add_u32 s44, s44, {c_['ASRC']}
    s_lshl_b32 s45, s45, 10
    """)

NWE = 7
JM = 25
def wo_addr(j):
    if j < NWE: return 132096 + j*4096
    j -= NWE
    return (j >> 1)*20480 + 12288 + (j & 1)*4096

def res_wload(k, j0, j1, wo=False):
    for j in range(j0, j1):
        k(f"s_add_u32 s46, s44, {j*1024}")
        dma(k, 3, 20, 46, f"s45, {wo_addr(j) if wo else j*4096}", 0, OPT['ld'])

SLOT4, RING4, NCH4 = 20480, 8, 16
def p4_map(k):
    k(f"""
    s_lshl_b32 s27, s{SXCD}, 1
    s_cmp_ge_u32 s{SIDX}, 15
    s_cselect_b32 s28, 1, 0
    s_add_u32 s27, s27, s28
    s_mul_i32 s28, s28, 15
    s_sub_u32 s28, s{SIDX}, s28
    s_min_u32 s28, s28, 15
    """)

def p4_consumer(k):
    ld = OPT['ld']
    skip, fin = k.label("p4skip"), k.label("p4fin")
    XB = [8, 16]; WB = [24, 36]; ACC = 64; R2 = [0, 4]; STR = 48
    p4_map(k)
    k("s_cmp_eq_u32 s28, 15")
    k(f"s_cbranch_scc1 {skip}")
    k(f"""
    s_and_b32 s29, s{SW}, 1
    s_lshr_b32 s31, s{SW}, 1
    s_lshl_b32 s30, s27, 2
    s_lshl_b32 s33, s29, 1
    s_add_u32 s30, s30, s33
    s_lshl_b32 s33, s29, 12
    s_add_u32 s33, s33, 12288
    v_add_u32 v7, s33, v3
    s_mul_i32 s33, s31, 6144
    v_add_u32 v6, s33, v3
    s_mul_i32 s40, s30, 86
    s_mul_i32 s41, s28, 6
    s_mul_i32 s33, s31, 3
    s_add_u32 s41, s41, s33
    s_add_u32 s40, s40, s41
    s_lshl_b32 s40, s40, 10
    s_add_u32 s40, s40, {ACT}
    s_mov_b32 s47, 0
    s_lshl_b32 s32, s30, 7
    s_add_u32 s32, s32, {ST}
    v_and_b32 v4, 31, v2
    v_lshlrev_b32 v4, 2, v4
    v_lshrrev_b32 v8, 5, v2
    v_lshl_add_u32 v4, v8, 13, v4
    s_mov_b32 s48, 0
    """)
    for r in range(96): k(f"v_mov_b32 v{ACC+r}, 0")
    k("s_barrier")
    stamp(k, 9)
    for i in range(8):
        k(f"s_add_u32 s35, s32, {i*16384}")
        k(f"buffer_load_dword v{STR+i}, v4, s[20:23], s35 offen {ld}")
        k(f"buffer_load_dword v{STR+8+i}, v4, s[20:23], s35 offen offset:128 {ld}")
    def wrd(u, b, m):
        return f"ds_read_b128 v[{b+4*m}:{b+4*m+3}], v6 offset:{m*2048 + (u & 1)*1024}"
    def xrd(u, b, t):
        return f"ds_read_b128 v[{b+4*t}:{b+4*t+3}], v7 offset:{t*2048 + (u & 1)*1024}"
    def reads(u):
        return [wrd(u, WB[u & 1], 0), xrd(u, XB[u & 1], 0), xrd(u, XB[u & 1], 1), wrd(u, WB[u & 1], 1), wrd(u, WB[u & 1], 2)]
    k("s_barrier")
    stamp(k, 10)
    for l in reads(0): k(l)
    ml = k.label("p4ml")
    k(".p2align 3")
    k.place(ml)
    for u in range(2):
        if u == 1:
            k(f"s_add_u32 s48, s48, 1")
            k(f"s_and_b32 s48, s48, {RING4-1}")
            k(f"s_cselect_b32 s49, s50, s51")
            k("s_add_u32 s47, s47, 1")
            k("s_barrier")
            k("v_add_u32 v7, s49, v7")
            k("v_add_u32 v6, s49, v6")
            k(f"s_cmp_lt_u32 s47, {NCH4 - 1}")
        b, x = WB[u], XB[u]
        nx = reads(u + 1)
        for i in range(6):
            m, t = i >> 1, i & 1
            if i == 0: k("s_waitcnt lgkmcnt(2)")
            if i == 2: k("s_waitcnt lgkmcnt(2)")
            k(f"{MFMA} v[{ACC+16*i}:{ACC+16*i+15}], v[{b+4*m}:{b+4*m+3}], v[{x+4*t}:{x+4*t+3}], v[{ACC+16*i}:{ACC+16*i+15}]")
            if i < 5: k(nx[i])
    k(f"s_cbranch_scc1 {ml}")
    P = 48
    def mf(i, u):
        m, t = i >> 1, i & 1
        return f"{MFMA} v[{ACC+16*i}:{ACC+16*i+15}], v[{WB[u]+4*m}:{WB[u]+4*m+3}], v[{XB[u]+4*t}:{XB[u]+4*t+3}], v[{ACC+16*i}:{ACC+16*i+15}]"
    st_ = []
    for t in range(2):
        S = STR + 8*t
        st_ += [f"v_add_f32 v{S+i}, v{S+i}, v{S+i+1}" for i in (0, 2, 4, 6)]
        st_ += [f"v_add_f32 v{S}, v{S}, v{S+2}", f"v_add_f32 v{S+4}, v{S+4}, v{S+6}", f"v_add_f32 v{S}, v{S}, v{S+4}", f"v_mov_b32 v{S+1}, v{S}"]
    st_ += ["s_nop 0"] + [f"v_permlane32_swap_b32 v{STR+8*t}, v{STR+8*t+1}" for t in range(2)]
    for t in range(2):
        S = STR + 8*t
        st_ += [f"v_add_f32 v{S}, v{S}, v{S+1}", f"v_mov_b32 v{S+1}, {hex(f32(1e-5))}", f"v_fmac_f32 v{S+1}, {hex(f32(1/512))}, v{S}",
                f"v_rcp_f32 v{R2[t]}, v{S+1}"]
    def ep(i, pk):
        m, t = i >> 1, i & 1
        G = ACC + 16*i
        pr = P + 4*(i & 3) if i < 4 else 8 + 4*(i - 4)
        o = [f"v_max_f32 v{G+r}, 0, v{G+r}" for r in range(8)]
        if pk:
            o += [f"v_pk_mul_f32 v[{G+r}:{G+r+1}], v[{G+r}:{G+r+1}], v[{R2[t]}:{R2[t]+1}] op_sel_hi:[1,0]" for r in range(8, 16, 2)]
            o += [f"v_pk_mul_f32 v[{G+r}:{G+r+1}], v[{G+r}:{G+r+1}], v[{G+8+r}:{G+9+r}]" for r in range(0, 8, 2)]
        else:
            o += [f"v_mul_f32 v{G+r}, v{G+r}, v{R2[t]}" for r in range(8, 16)]
            o += [f"v_mul_f32 v{G+r}, v{G+r}, v{G+8+r}" for r in range(8)]
        o += [f"v_cvt_pk_bf16_f32 v{pr+d}, v{G+2*d}, v{G+2*d+1}" for d in range(4)]
        return o, pr
    def store(i, pr, so):
        pub_store(k, [f"buffer_store_dwordx4 v[{pr}:{pr+3}], v3, s[20:23], s{so} offen"], 2)
    for i in range(6):
        m, t = i >> 1, i & 1
        if t == 0:
            k(f"s_add_u32 s33, s41, {m}")
            k("s_cmp_ge_u32 s33, 86")
            k("s_cselect_b32 s33, 0x40000000, s40")
        k(f"s_add_u32 s{42+i}, s33, {t*86*1024 + m*1024}")
    for l in reads(1): k(l)
    k("s_waitcnt vmcnt(0) lgkmcnt(5)")
    q = list(st_)
    for i in (0, 1, 2, 3):
        k(mf(i, 0))
        for _ in range(5):
            if q: k(q.pop(0))
    k("s_waitcnt lgkmcnt(0)")
    k("s_barrier")
    for i, u in ((0, 1), (1, 1), (4, 0), (5, 0)):
        k(mf(i, u))
        for _ in range(4):
            if q: k(q.pop(0))
    assert not q
    k.nop(3)
    e0, p0 = ep(0, False); e1, p1 = ep(1, False)
    q = e0 + ["ST0"] + e1 + ["ST1"]
    for i in (2, 3, 4, 5):
        k(mf(i, 1))
        for _ in range(6):
            k(q.pop(0))
    stamp(k, 11)
    for l in q:
        if l == "ST0": store(0, p0, 42)
        elif l == "ST1": store(1, p1, 43)
        else: k(l)
    for i in range(2, 6):
        o, pr = ep(i, True)
        for l in o: k(l)
        store(i, pr, 42 + i)
    k.place(fin)
    if OPT.get('z_st'): stamp(k, 2)
    if OPT.get('rf', 0) & 2:
        k("v_and_b32 v4, 31, v2")
        k("v_lshlrev_b32 v4, 7, v4")
        k("v_lshrrev_b32 v5, 5, v2")
        k(f"v_mul_u32_u24 v5, {86*1024}, v5")
        k("v_add_u32 v4, v4, v5")
        k("s_waitcnt vmcnt(0)")
        k("s_barrier")
        k("s_mov_b32 exec_lo, 0xffffff")
        k("s_mov_b32 exec_hi, 0xffffff")
        k(f"buffer_load_dword v1, v4, s[20:23], s40 offen {ld}")
        k("s_mov_b64 exec, -1")
        j4 = k.label("p4j")
        k(f"s_branch {j4}")
        k.place(skip)
        k("s_barrier")
        k.place(j4)
    else:
        k("s_waitcnt vmcnt(0)")
        k.place(skip)
        k("s_barrier")

def p4_loader(k):
    ld = OPT['ld']
    D = OPT['depth4']
    skip, join = k.label("p4lskip"), k.label("p4ljoin")
    k("s_barrier")
    res_wsetup(k, 'down')
    p4_map(k)
    k("s_cmp_eq_u32 s28, 15")
    k(f"s_cbranch_scc1 {skip}")
    k(f"""
    s_sub_u32 s29, s{SW}, 4
    s_lshl_b32 s30, s27, 2
    s_add_u32 s30, s30, s29
    s_lshl_b32 s31, s30, 15
    s_add_u32 s31, s31, {HF}
    s_mul_i32 s33, s28, {6*32768}
    s_and_b32 s34, s29, 1
    s_lshl_b32 s34, s34, 10
    s_add_u32 s33, s33, s34
    s_lshr_b32 s35, s29, 1
    s_mul_i32 s37, s35, {3*32768}
    s_add_u32 s33, s33, s37
    s_mul_i32 s35, s35, 6144
    s_add_u32 s34, s34, s35
    s_lshl_b32 s36, s29, 11
    s_cmp_eq_u32 s28, 14
    s_cselect_b32 s39, 0x40000000, 0
    s_lshr_b32 s38, s29, 1
    s_mul_i32 s38, s38, s39
    s_add_u32 s33, s33, s38
    s_sub_u32 s39, s39, s38
    s_add_u32 s39, s39, s33
    """)
    order = []
    def crot(c):
        r = OPT.get('p4rot', 0)
        k(f"s_add_u32 s40, s{(0, 28, SIDX)[r]}, {c}" if r else f"s_mov_b32 s40, {c}")
        k("s_and_b32 s40, s40, 15")
        k("s_lshl_b32 s40, s40, 11")
    def hpart(c):
        if OPT.get('z4b') and c > 0:
            order.append(('h', c)); order.pop(); return
        crot(c)
        k(f"s_add_u32 s35, s31, s40")
        dma(k, 3, 20, 35, f"s36, {(c % RING4)*SLOT4 + 12288}", 0, ld)
        k(f"buffer_load_dwordx4 v3, s[20:23], s35 offen offset:1024 {ld} lds")
        order.extend([('h', c)]*2)
    def wpart(c):
        if OPT.get('z4b') and c > 0: return
        crot(c)
        for t in range(3):
            k(f"s_add_u32 s35, s{33 if t < 2 else 39}, s40")
            k(f"s_add_u32 s35, s35, {WGF + t*32768}")
            dma(k, 3, 20, 35, f"s34, {(c % RING4)*SLOT4 + t*2048}", 0, ld)
        order.extend([('w', c)]*3)
    nw = OPT.get('p4pre', 5)
    for c in range(nw): wpart(c)
    k("s_barrier")
    k("s_barrier")
    while nw < OPT.get('p4pre2', 7): wpart(nw); nw += 1
    k("s_barrier")
    nh = 4
    for c in range(nh): hpart(c)
    for c in range(NCH4 + 1):
        if c < NCH4:
            last = max([i for i, o in enumerate(order) if o[1] == c] or [len(order) - 1])
            k(f"s_waitcnt vmcnt({len(order) - 1 - last})")
        k("s_barrier")
        m = 0
        while nh < NCH4 and nh <= c + D and m < 2:
            assert nh - RING4 <= c - 2
            hpart(nh); nh += 1; m += 1
        m = 0
        while nw < NCH4 and nw - RING4 <= c - 2 and m < 2:
            wpart(nw); nw += 1; m += 1
        if c >= 10:
            assert nh == NCH4 and nw == NCH4
            if not OPT.get('z4a'):
                res_wload(k, 5*(c-10), 5*(c-10) + 5); order.extend([('d', -1)]*5)
    k("s_barrier")
    k(f"s_branch {join}")
    k.place(skip)
    k("s_barrier")
    k("s_barrier")
    k("s_barrier")
    res_wload(k, 0, 35)
    k.place(join)
    res_wload(k, 35, 39)
    k(f"s_waitcnt vmcnt({39 - JM})")
    k("s_barrier")
    k("s_waitcnt vmcnt(0)")
    k("s_barrier")

def clean(k, n):
    m = OPT.get('wb', 0)
    if not (m >> n) & 1: return
    l = k.label("ncl")
    k(f"s_and_b32 s47, s{SIDX}, {OPT.get('wbm', 31)}")
    k(f"s_cmp_lg_u32 s47, 0")
    k(f"s_cbranch_scc1 {l}")
    k("buffer_wbl2 sc1")
    k.place(l)

def poller(k):
    sl = OPT.get('slpl', 2)
    k(f"s_lshl_b32 s43, s{SXCD}, 5")
    k(f"s_add_u32 s43, s43, {F2}")
    k(f"s_lshl_b32 s42, s{SQB}, 5")
    k(f"s_add_u32 s42, s42, s{SHEAD}")
    k(f"s_add_u32 s42, s42, {F2}")
    flag_prep(k, 42)
    k("s_waitcnt lgkmcnt(0)")
    k("s_barrier")
    flag_fire(k, not OPT.get('amap', 1))
    stamp(k, 6); rstamp(k, 4)
    seen = k.label("cwseen")
    k("s_cmp_eq_u32 s55, 1")
    k(f"s_cbranch_scc1 {seen}")
    k(f"s_mov_b32 s42, {CW}")
    poll(k, 42, 32, 8, 0)
    k.place(seen)
    k("s_barrier")
    flag_poll(k, 43, 32, OPT.get('slp2', 2))
    stamp(k, 7)
    k("s_barrier")
    res_map(k)
    k("s_lshr_b32 s43, s27, 1")
    k("s_and_b32 s44, s27, 1")
    k("s_lshl_b32 s45, s28, 1")
    k("s_add_u32 s44, s44, s45")
    k("s_lshl_b32 s42, s43, 4")
    k("s_add_u32 s42, s42, s44")
    k(f"s_add_u32 s42, s42, {F3}")
    flag_prep(k, 42)
    p4_map(k)
    k("s_lshl_b32 s46, s27, 4")
    k(f"s_add_u32 s42, s46, {F3}")
    k("s_barrier")
    k("s_barrier")
    flag_fire(k, True)
    stamp(k, 8)
    idle = k.label("pidle")
    k("s_cmp_eq_u32 s28, 15")
    k(f"s_cbranch_scc1 {idle}")
    flag_poll(k, 42, 16, sl)
    stamp(k, 9); rstamp(k, 5)
    k("s_barrier")
    clean(k, 0)
    k("s_add_u32 s42, s46, s28")
    k(f"s_add_u32 s42, s42, {F4}")
    flag_prep(k, 42)
    for i in range(NCH4 + 1): k("s_barrier")
    k("s_barrier")
    flag_fire(k, True)
    stamp(k, 10); rstamp(k, 13)
    j = k.label("pjoin")
    k(f"s_branch {j}")
    k.place(idle)
    k("s_barrier")
    k.place(j)
    k("s_lshl_b32 s42, s43, 4")
    k(f"s_add_u32 s42, s42, {F4}")
    flag_poll(k, 42, 15, sl)
    stamp(k, 11)
    k("s_barrier")
    diag_end(k)

def diag_end(k):
    if not DIAG: return
    k("s_waitcnt vmcnt(0)")
    stamp(k, 14)
    k("s_memrealtime s[94:95]")
    k(f"s_lshl_b32 s40, s2, 4")
    k(f"s_add_u32 s40, s40, s{SW}")
    k(f"s_lshl_b32 s40, s40, 7")
    k(f"s_add_u32 s40, s40, {DIAGB}")
    k("s_waitcnt lgkmcnt(0)")
    for i in range(15):
        k(f"s_sub_u32 s{64+2*i}, s{64+2*i}, s96")
        k(f"v_mov_b32 v{8+i}, s{64+2*i}")
    k("v_mov_b32 v23, s94")
    k("v_mov_b32 v24, s98")
    k("v_mov_b32 v4, 0")
    k("s_mov_b64 exec, 1")
    for i in range(4):
        k(f"buffer_store_dwordx4 v[{8+4*i}:{11+4*i}], v4, s[20:23], s40 offen offset:{16*i}")
    k(f"buffer_store_dword v24, v4, s[20:23], s40 offen offset:64")
    k(f"v_mov_b32 v25, s{SXCD}")
    k(f"buffer_store_dword v25, v4, s[20:23], s40 offen offset:68")
    if OPT.get('dbgout') is not None:
        l = k.label("dbo")
        k(f"s_lshl_b32 s41, s{SW}, 8")
        k(f"s_or_b32 s41, s41, s2")
        k(f"s_cmp_lg_u32 s41, {OPT['dbgout']}")
        k(f"s_cbranch_scc1 {l}")
        k("v_sub_u32 v8, v23, v24")
        for i in range(4):
            k(f"global_store_dwordx4 v4, v[{8+4*i}:{11+4*i}], s[60:61] offset:{4+16*i}")
        k.place(l)

def build(path):
    k = Kern(NAME)
    done, roleL, roleH, p2 = k.label("done"), k.label("L"), k.label("H"), k.label("p2")
    tail = []
    k(f"""
    s_load_dwordx4 s[4:7], s[0:1], 0
    s_load_dwordx4 s[60:63], s[0:1], 64
    s_load_dwordx8 s[8:15], s[0:1], 16
    s_load_dwordx4 s[16:19], s[0:1], 48
    s_cmp_ge_u32 s2, 256
    s_cbranch_scc1 {done}
    """)
    if DIAG:
        k("s_memtime s[96:97]")
        k("s_memrealtime s[98:99]")
    k(f"""
    v_lshrrev_b32 v1, 6, v0
    v_and_b32 v2, 63, v0
    s_getreg_b32 s{SXCD}, hwreg(HW_REG_XCC_ID, 0, 3)
    s_getreg_b32 s{SIDX}, hwreg(HW_REG_HW_ID, 13, 2)
    v_readfirstlane_b32 s{SW}, v1
    s_getreg_b32 s29, hwreg(HW_REG_HW_ID, 8, 4)
    v_lshlrev_b32 v3, 4, v2
    """)
    if OPT.get('fakehole'):
        k("s_and_b32 s29, s29, 7")
        k("s_cmp_ge_u32 s29, 3")
        k("s_addc_u32 s29, s29, 0")
    k(f"""
    s_lshl_b32 s{SIDX}, s{SIDX}, 3
    s_cmp_ge_u32 s29, 8
    s_cselect_b32 s{SCHK}, 1, 0
    s_mov_b32 s1, s29
    s_and_b32 s29, s29, 7
    s_or_b32 s{SIDX}, s{SIDX}, s29
    s_mov_b32 s3, 0
    s_mov_b32 s50, {SLOT4}
    s_mov_b32 s51, {-(RING4-1)*SLOT4}
    """)
    if OPT.get('fakehw'): k(f"s_and_b32 s{SIDX}, s{SIDX}, 30")
    sw = OPT.get('swap', 1)
    if sw == 1:
        k(f"s_lshr_b32 s29, s{SW}, 1")
        k(f"s_andn2_b32 s29, 4, s29")
        k(f"s_xor_b32 s{SW}, s{SW}, s29")
    roleC = k.label("C")
    k.place(RESTART)
    p1_map(k)
    k(f"s_cmp_ge_u32 s{SW}, 8")
    k(f"s_cbranch_scc1 {roleH}")
    k(f"s_cmp_lt_u32 s{SW}, 4")
    k(f"s_cbranch_scc1 {roleC}")
    p1_loader(k)
    k(f"s_branch {p2}")
    k.place(roleH)
    p1_helper(k)
    H2 = k.label("H2")
    k(f"s_branch {H2}")
    k.place(roleC)
    p1_consumer(k)
    k.place(p2)
    p2_compute(k, tail)
    L3 = k.label("L3")
    k(f"s_cmp_ge_u32 s{SW}, 4")
    k(f"s_cbranch_scc1 {L3}")
    res_consumer(k, 'wo', 7)
    if OPT.get('cprio', 1): k(f"s_setprio {OPT.get('cprio', 1)}")
    p4_consumer(k)
    res_consumer(k, 'down', 12)
    diag_end(k)
    k.place(done)
    k("s_endpgm")
    k.place(L3)
    res_wsetup(k, 'wo')
    if OPT.get('woe', 1):
        got = k.label("woe")
        k(f"v_mov_b32 v4, {PROG + 20}")
        k("ds_read_b32 v4, v4")
        res_wload(k, NWE, 16, True)
        k("s_waitcnt lgkmcnt(0)")
        k("v_readfirstlane_b32 s47, v4")
        k.nop(1)
        k("s_cmp_eq_u32 s47, 1")
        k(f"s_cbranch_scc1 {got}")
        res_wload(k, 0, NWE, True)
    else:
        res_wload(k, 0, 16, True)
    k(f"s_and_b32 s45, s45, 1024")
    k(f"s_add_u32 s46, s45, {WBT}")
    dma(k, 3, 20, 46, f"s45, {WBL}", 0, OPT['ld'])
    if OPT.get('woe', 1): k.place(got)
    k("s_waitcnt vmcnt(0)")
    p4_loader(k)
    diag_end(k)
    k("s_endpgm")
    k.place(H2)
    p2_helper(k, done)
    poller(k)
    k("s_endpgm")
    k.place(RLAB[0])
    role_read(k)
    p2_relayout(k)
    for f in tail + TAIL: f(k)
    redo(k)
    k(f".fill (40960 - (. - {NAME}))/4, 4, 0xbf810000")
    hdr = """; Kernarg: 0 A_x, 8 A_wqkv, 16 A_wo, 24 B_x (unused), 32 W_gate, 40 W_up, 48 W_down, 56 out, 64 debug, 72 ws
; pre-LN transformer block in one persistent launch (256 workgroups, one per CU); generated by gen/gen5.py
; @launch grid=(256,1,1) block=(768,1,1) lds=163840
.amdgcn_target "amdgcn-amd-amdhsa--gfx950"
"""
    open(path, "w").write(hdr + k.text(168, 102 if DIAG else 64))

if __name__ == "__main__":
    for a in sys.argv[2:]:
        if "=" in a:
            kk, vv = a.split("=")
            OPT[kk] = int(vv) if vv.lstrip("-").isdigit() else vv.replace("+", " ")
    DIAG = "--diag" in sys.argv
    build(sys.argv[1])
```

```python
import sys, math
from dsl import Kern
from gen import (MB, QF, KF, VF, OF, XF, HF, ACT, WOF, WGF, WUF, WDF, ST, WS_SIZE, f32, ONES, MFMA, srd, half_sum,
                 finish_stats)
CNT = 25*MB
MX = 24*MB + 512*1024
WBT = MX + 65536
DIAGB = 28*MB
C1, C2, C3, C4, CW = 0, 8, 16, 32, 48
CSTRIP = 131072
PROG = CSTRIP
ROLE = 163832
WBL = 160768
KEEP = 160
NAME = "sequential_preLN__softmax_full_mha__glu_gated_reglu__prompt_kernel"
OPT = dict(slp=8, kvd=2, d1=4, prio=1, ld="sc1", st="sc1", nb2=4, depth4=5)
SXCD, SIDX, SW = 24, 25, 26
SHEAD, SQB = 62, 63
SCHK = 49
KC0, KC1 = 2, 4
EARLY = 65532
MF16 = "v_mfma_f32_16x16x32_bf16"
DIAG = False

def rstamp(k, i):
    if DIAG:
        k(f"s_memrealtime s[{64+2*i}:{65+2*i}]")
        k("s_waitcnt lgkmcnt(0)")
        k(f"s_add_u32 s{64+2*i}, s{64+2*i}, s96")

def stamp(k, i):
    if DIAG: k(f"s_memtime s[{64+2*i}:{65+2*i}]")

def norm4(x, t, rs, nb, smask):
    ops = []
    for d in range(4):
        a, b = t[2*(d & 1)], t[2*(d & 1) + 1]
        ops.append([f"v_lshlrev_b32 v{a}, 16, v{x+d}", f"v_and_b32 v{b}, s{smask}, v{x+d}",
                    f"v_fma_f32 v{a}, v{a}, v{rs}, v{nb}", f"v_fma_f32 v{b}, v{b}, v{rs}, v{nb}",
                    f"v_cvt_pk_bf16_f32 v{x+d}, v{a}, v{b}"])
    o = []
    for p in (0, 2):
        for a, b in zip(ops[p], ops[p+1]): o += [a, b]
    return o

def lane_regs(k):
    k("v_mbcnt_lo_u32_b32 v2, -1, 0")
    k("v_mbcnt_hi_u32_b32 v2, -1, v2")
    k("v_lshlrev_b32 v3, 4, v2")

def dma(k, vo, srd_, so, m0expr, off=0, flag=""):
    k(f"s_add_u32 m0, {m0expr}")
    k.nop(1)
    k(f"buffer_load_dwordx4 v{vo}, s[{srd_}:{srd_+3}], s{so} offen" + (f" offset:{off}" if off else "") + f" {flag} lds")

def row8_sum(k, regs):
    for ctl in ("quad_perm:[1,0,3,2]", "quad_perm:[2,3,0,1]", "row_half_mirror"):
        k.nop(2)
        for r in regs:
            k(f"v_add_f32_dpp v{r}, v{r}, v{r} {ctl} row_mask:0xf bank_mask:0xf")

def arrive(k, sidx, va=8, vb=9):
    k(f"s_lshl_b32 s40, s{sidx}, 8")
    k(f"s_add_u32 s40, s40, {CNT}")
    k("s_mov_b64 exec, 1")
    k(f"v_mov_b32 v{va}, 1")
    k(f"v_mov_b32 v{vb}, 0")
    k(f"buffer_atomic_add v{va}, v{vb}, s[20:23], s40 offen sc1")

PRS = CNT + 32768
MAG0, MAG1 = 0x5ca1ab1e, 0x0b5e55ed
FLG = CNT + 65536
F1, F2, F3, F4 = 0, 256, 512, 768
SLOC = 59
def pub_store(k, lines, stage=3):
    if not (OPT.get('loc', 8) >> stage) & 1:
        for l in lines: k(l + " " + OPT['st'])
        return
    a, b = k.label("ps"), k.label("pe")
    k(f"s_cmp_eq_u32 s{SLOC}, 1")
    k(f"s_cbranch_scc1 {a}")
    for l in lines: k(l + " " + OPT['st'])
    k(f"s_branch {b}")
    k.place(a)
    for l in lines: k(l + (" " + OPT.get('locf', '') if stage != 3 else ""))
    k.place(b)

def re_store(k, lines, stage):
    if not ((OPT.get('loc', 8) >> stage) & 1 and OPT.get('rs', 1)): return
    a = k.label("rs")
    k(f"s_cmp_lg_u32 s{SLOC}, 1")
    k(f"s_cbranch_scc1 {a}")
    for l in lines: k(l + (" sc1" if l.startswith("buffer") else ""))
    k.place(a)

def flag_set(k, sline, val="1", local=False):
    k(f"s_lshl_b32 s40, s{sline}, 7")
    k(f"s_add_u32 s40, s40, {FLG}")
    k("s_mov_b64 exec, 1")
    k(f"v_mov_b32 v8, {val}")
    k("v_mov_b32 v9, 0")
    if local: pub_store(k, ["buffer_store_dword v8, v9, s[20:23], s40 offen"])
    else: k("buffer_store_dword v8, v9, s[20:23], s40 offen sc1")

def flag_prep(k, sline):
    k(f"s_lshl_b32 s39, s{sline}, 7")
    k(f"s_add_u32 s39, s39, {FLG}")
    k("s_mov_b64 exec, 1")
    k("v_mov_b32 v14, 1")
    k("v_mov_b32 v15, 0")

def flag_fire(k, local):
    if local: pub_store(k, ["buffer_store_dword v14, v15, s[20:23], s39 offen"])
    else: k("buffer_store_dword v14, v15, s[20:23], s39 offen sc1")

def flag_poll(k, sline, n=32, slp=None, depth=1):
    if depth == 1:
        poll(k, sline, 1, n, slp, sh=7, base=FLG)
        return
    lp, out = k.label("pp"), k.label("ppx")
    k(f"s_lshl_b32 s40, s{sline}, 7")
    k(f"s_add_u32 s40, s40, {FLG}")
    k(f"s_mov_b32 exec_lo, {hex((1 << n) - 1)}")
    k("s_mov_b32 exec_hi, 0")
    k("v_lshlrev_b32 v9, 7, v2")
    k("s_mov_b32 s41, 0")
    for i in range(depth - 1):
        k(f"buffer_load_dword v{20+i}, v9, s[20:23], s40 offen sc1")
        k(f"s_sleep {slp}")
    k.place(lp)
    for i in range(depth):
        k(f"buffer_load_dword v{20 + (i + depth - 1) % depth}, v9, s[20:23], s40 offen sc1")
        k(f"s_waitcnt vmcnt({depth - 1})")
        k(f"v_cmp_eq_u32 vcc, 0, v{20+i}")
        k("s_cmp_eq_u64 vcc, 0")
        k(f"s_cbranch_scc1 {out}")
        k(f"s_sleep {slp}")
    k("s_add_u32 s41, s41, 1")
    k("s_cmp_lt_u32 s41, 0x20000")
    k(f"s_cbranch_scc1 {lp}")
    k.place(out)
    k("s_mov_b64 exec, -1")

def poll(k, sidx, target, nlines=1, slp=None, sh=8, base=None):
    lp, out = k.label("poll"), k.label("pollx")
    k(f"s_lshl_b32 s40, s{sidx}, {sh}")
    k(f"s_add_u32 s40, s40, {CNT if base is None else base}")
    k(f"s_mov_b32 exec_lo, {hex((1 << nlines) - 1)}")
    k("s_mov_b32 exec_hi, 0")
    k(f"v_lshlrev_b32 v9, {sh}, v2")
    k("s_mov_b32 s41, 0")
    slp = OPT.get('slp', 2) if slp is None else slp
    k.place(lp)
    k("buffer_load_dword v10, v9, s[20:23], s40 offen sc1")
    k("s_add_u32 s41, s41, 1")
    k("s_cmp_gt_u32 s41, 0x40000")
    k(f"s_cbranch_scc1 {out}")
    k("s_waitcnt vmcnt(0)")
    k(f"v_cmp_gt_u32 vcc, {target}, v10" if target <= 64 else f"v_cmp_gt_u32 vcc, {hex(target)}, v10")
    k(f"s_cmp_eq_u64 vcc, 0")
    k(f"s_cbranch_scc1 {out}")
    if slp: k(f"s_sleep {slp}")
    k(f"s_branch {lp}")
    k.place(out)
    k("s_waitcnt vmcnt(0)")
    k("s_mov_b64 exec, -1")

def touch(k, base_s, nlines, reg=40):
    k("v_lshlrev_b32 v12, 7, v2")
    for i in range((nlines + 63)//64):
        rem = nlines - 64*i
        if rem < 64:
            k(f"s_mov_b32 exec_lo, {hex((1 << min(rem, 32)) - 1)}")
            k(f"s_mov_b32 exec_hi, {hex((1 << max(rem - 32, 0)) - 1)}")
        k(f"s_add_u32 s41, s{base_s}, {i*8192}")
        k(f"buffer_load_dword v{reg+i}, v12, s[20:23], s41 offen sc1")
    k("s_mov_b64 exec, -1")

def cold_touch(k):
    if OPT.get('t1', 1) == 2:
        l8 = k.label("t8")
        srd(k, 44, 4, 2*MB)
        srd(k, 52, 6, 512*3072)
        k(f"""
        s_lshr_b32 s31, s{SXCD}, 1
        s_lshl_b32 s31, s31, 9
        s_lshl_b32 s32, s{SIDX}, 4
        s_add_u32 s31, s31, s32
        s_lshl_b32 s31, s31, 10
        s_lshl_b32 s32, s29, 7
        s_add_u32 s31, s31, s32
        v_lshlrev_b32 v12, 10, v2
        v_mul_u32_u24 v13, 43, v2
        v_lshrrev_b32 v13, 9, v13
        v_mul_u32_u24 v14, 12, v13
        v_sub_u32 v14, v2, v14
        v_lshrrev_b32 v15, 2, v14
        v_and_b32 v14, 3, v14
        v_lshlrev_b32 v14, 7, v14
        v_lshl_add_u32 v14, v15, 10, v14
        v_mul_u32_u24 v13, 3072, v13
        v_add_u32 v13, v13, v14
        s_lshl_b32 s32, s29, 6
        s_lshl_b32 s33, s{SIDX}, 1
        s_add_u32 s32, s32, s33
        s_mul_i32 s32, s32, 3072
        s_and_b32 s33, s{SXCD}, 1
        s_lshl_b32 s33, s33, 9
        s_add_u32 s32, s32, s33
        s_add_u32 s33, s32, {256*3072}
        s_mov_b32 exec_hi, 0
        s_mov_b32 exec_lo, 0xffff
        buffer_load_dword v40, v12, s[44:47], s31 offen
        buffer_load_dword v42, v12, s[44:47], s31 offen offset:512
        """)
        if OPT.get('t1w', 0):
            k("""
            s_mov_b32 exec_lo, 0xffffff
            buffer_load_dword v41, v13, s[52:55], s32 offen
            buffer_load_dword v43, v13, s[52:55], s33 offen
            """)
        k("s_mov_b64 exec, -1")
        return
    if OPT.get('t1', 1):
        l9, l10, l11 = k.label("t9"), k.label("t10"), k.label("t11")
        if OPT.get('t1d', 0): k(f"s_sleep {OPT['t1d']}")
        k(f"s_cmp_lg_u32 s{SW}, 9")
        k(f"s_cbranch_scc1 {l9}")
        srd(k, 44, 4, 2*MB)
        k("s_lshl_b32 s31, s2, 13")
        k("v_lshlrev_b32 v12, 7, v2")
        msk = sum(1 << i for i in range(32) if (i & 7) >= OPT.get('t1x', 0))
        k(f"s_mov_b32 exec_lo, {hex(msk)}")
        k(f"s_mov_b32 exec_hi, {hex(msk)}")
        k("buffer_load_dword v40, v12, s[44:47], s31 offen")
        k("s_mov_b64 exec, -1")
        k.place(l9)
        k(f"s_cmp_lg_u32 s{SW}, 10")
        k(f"s_cbranch_scc1 {l10}")
        k(f"s_cmp_lt_u32 s2, {32*OPT.get('t1x', 0) if OPT.get('t1w', 0) else 256}")
        k(f"s_cbranch_scc1 {l10}")
        srd(k, 44, 6, 512*3072)
        k("s_mul_i32 s31, s2, 6144")
        k("v_lshlrev_b32 v12, 7, v2")
        k("s_mov_b32 exec_hi, 0xffff")
        k("buffer_load_dword v40, v12, s[44:47], s31 offen")
        k("s_mov_b64 exec, -1")
        k.place(l10)

RESTART = NAME + "_restart"
REDO = NAME + "_redo"
TAIL = []
def role_word(k, addr, back, par=None):
    if par == 'loop':
        k("s_and_b32 s0, s47, 1")
        k("s_lshl_b32 s0, s0, 2")
        k(f"s_sub_u32 s0, {addr}, s0")
        k("v_mov_b32 v1, s0")
    else:
        k(f"v_mov_b32 v1, {addr - 4*(par or 0)}")
    k("ds_read_b32 v1, v1")
    k("s_waitcnt lgkmcnt(0)")
    k(f"v_readfirstlane_b32 s0, v1")
    k.nop(1)
    k("s_cmp_eq_u32 s0, 0")
    k(f"s_cbranch_scc1 {back}")
    if addr == EARLY:
        k(f"s_mov_b32 s{SCHK}, 2")
        k("s_cmp_eq_u32 s0, 2")
        k(f"s_cbranch_scc1 {back}")
    k(f"s_branch {REDO}")

def redo(k):
    k.place(REDO)
    k(f"s_and_b32 s{SIDX}, s0, 31")
    k("s_mov_b32 s3, 2")
    k(f"s_mov_b32 s{SCHK}, 0")
    k("s_cmp_eq_u32 s0, 1")
    k(f"s_cbranch_scc0 {REDO}1")
    k(f"s_and_b32 s{SXCD}, s2, 7")
    k(f"s_lshr_b32 s{SIDX}, s2, 3")
    k("s_mov_b32 s3, 1")
    k.place(REDO + "1")
    if OPT.get('rdrain', 1): k("s_waitcnt vmcnt(0)")
    k("s_barrier")
    k(f"s_branch {RESTART}")

def early_check(k, tail, last=None):
    side, back = k.label("ec"), k.label("ecb")
    k(f"s_cmp_eq_u32 s{SCHK}, 1")
    k(f"s_cbranch_scc1 {side}")
    k.place(back)
    def f(k):
        k.place(side)
        if last == 'loop':
            k(f"s_cmp_eq_u32 s47, {KC1 - 1}")
            k(f"s_cselect_b32 s{SCHK}, 2, 1")
        role_word(k, EARLY, back, last)
    tail.append(f)

def role_read(k):
    ok = k.label("rok")
    role_word(k, ROLE, ok)
    k.place(ok)
    if OPT.get('amap', 1):
        k(f"s_lshl_b32 s{SHEAD}, s{SXCD}, 2")
        k(f"s_and_b32 s{SQB}, s{SIDX}, 3")
        k(f"s_add_u32 s{SHEAD}, s{SHEAD}, s{SQB}")
        k(f"s_lshr_b32 s{SQB}, s{SIDX}, 2")
    else:
        k(f"s_mov_b32 s{SHEAD}, s{SIDX}")
        k(f"s_mov_b32 s{SQB}, s{SXCD}")

def p1_map(k):
    if OPT.get('p1m', 1) == 1:
        k(f"s_mov_b32 s27, s{SIDX}")
        k(f"s_mov_b32 s28, s{SXCD}")
        return
    k(f"""
    s_lshr_b32 s27, s{SXCD}, 1
    s_lshl_b32 s27, s27, 3
    s_and_b32 s28, s{SIDX}, 7
    s_add_u32 s27, s27, s28
    s_and_b32 s28, s{SXCD}, 1
    s_lshl_b32 s28, s28, 2
    s_lshr_b32 s29, s{SIDX}, 3
    """)
    if OPT.get('cbrev', 0): k("s_xor_b32 s29, s29, 3")
    k("s_add_u32 s28, s28, s29")
EXC = 65536 + 3*12288
EXS = 65536 + 2*12288

def p1_consumer(k):
    if OPT.get('cprio', 1): k(f"s_setprio {OPT.get('cprio', 1)}")
    k(f"s_and_b32 s{SLOC}, s3, 1"); k(f"s_xor_b32 s{SLOC}, s{SLOC}, 1")
    SRB, SCB = 27, 28
    VXA, VWA = 12, 16
    WB = [20, 32, 44, 56]; XB = [68, 72, 76, 80]; ACC = 84; CS = 132; SEL = 144
    k(f"""
    v_and_b32 v8, 31, v2
    v_lshrrev_b32 v4, 5, v2
    v_lshrrev_b32 v5, 1, v8
    v_and_b32 v5, 7, v5
    s_and_b32 s34, s{SW}, 1
    s_lshl_b32 s35, s34, 12
    v_lshlrev_b32 v6, 7, v8
    v_add_u32 v6, s35, v6
    """)
    for u in range(4):
        k(f"v_add_u32 v7, {2*u}, v4")
        k(f"v_xor_b32 v7, v7, v5")
        k(f"v_lshl_add_u32 v{VXA+u}, v7, 4, v6")
    k(f"""
    s_lshr_b32 s36, s{SW}, 1
    v_bfe_u32 v5, v2, 2, 2
    v_lshl_add_u32 v6, v4, 3, v5
    v_lshlrev_b32 v6, 7, v6
    v_bfe_u32 v7, v2, 4, 1
    v_lshlrev_b32 v7, 1, v7
    v_bfe_u32 v11, v2, 1, 1
    v_add_u32 v7, v7, v11
    s_lshl_b32 s37, s36, 2
    v_add_u32 v7, s37, v7
    v_lshlrev_b32 v5, 1, v5
    v_xor_b32 v7, v7, v5
    v_lshl_add_u32 v6, v7, 4, v6
    v_and_b32 v7, 1, v2
    v_lshl_add_u32 v{VWA+1}, v7, 3, v6
    v_add_u32 v{VWA+1}, 0x10000, v{VWA+1}
    v_mov_b32 v{VWA}, v{VWA+1}
    v_and_b32 v5, 15, v2
    v_bfe_u32 v7, v2, 4, 1
    v_cmp_eq_u32 vcc, v5, v7
    v_mov_b32 v6, {hex(ONES)}
    s_mov_b32 s47, 0
    v_cndmask_b32 v{SEL}, 0, v6, vcc
    """)
    for i in range(1, 4): k(f"v_mov_b32 v{SEL+i}, v{SEL}")
    for i in range(60): k(f"v_mov_b32 v{ACC+i}, 0")
    k(f"""
    s_lshl_b32 s40, s{SCB}, 2
    s_lshl_b32 s41, s36, 1
    s_add_u32 s40, s40, s41
    s_lshl_b32 s40, s40, 16
    s_lshl_b32 s41, s{SRB}, 1
    s_add_u32 s41, s41, s34
    s_lshl_b32 s41, s41, 10
    s_add_u32 s40, s40, s41
    v_bfe_u32 v9, v2, 4, 1
    v_lshlrev_b32 v9, 16, v9
    v_lshl_add_u32 v9, v4, 8, v9
    v_lshl_add_u32 v9, v5, 4, v9
    s_add_u32 s43, s40, {QF + 65536}
    s_add_u32 s44, s40, {KF}
    s_add_u32 s45, s40, {KF + 65536}
    s_add_u32 s46, s40, {VF}
    s_mov_b32 s48, 0
    """)
    k(f"""
    s_lshl_b32 s35, s34, 1
    s_add_u32 s35, s35, s36
    s_mul_i32 s35, s35, 384
    s_add_u32 s35, s35, {EXC}
    v_lshl_add_u32 v5, v2, 2, s35
    s_mul_i32 s37, s36, 384
    s_add_u32 s37, s37, {EXC}
    v_lshl_add_u32 v6, v4, 4, s37
    v_lshl_add_u32 v7, v8, 2, s37
    s_lshl_b32 s38, s34, 7
    s_add_u32 s38, s38, {EXS}
    v_lshl_add_u32 v10, v8, 2, s38
    v_lshl_add_u32 v11, v4, 4, s38
    """)
    k("s_waitcnt lgkmcnt(0)")
    srd(k, 20, 62, WS_SIZE)
    def xrd(u, b): k(f"ds_read_b128 v[{b}:{b+3}], v{VXA+u}")
    def wrd(u, b, p):
        for r in range(2):
            k(f"ds_read_b64_tr_b16 v[{b+4*p+2*r}:{b+4*p+2*r+1}], v{VWA} offset:{(u >> 1)*12288 + p*4096 + (u & 1)*2048 + r*512}")
    stamp(k, 0)
    k("s_barrier")
    early_check(k, TAIL, 1)
    stamp(k, 1)
    for u in range(2):
        xrd(u, XB[u])
        for p in range(3): wrd(u, WB[u], p)
    odd, ep = k.label("p1odd"), k.label("p1ep")
    def M(p, u):
        b, x = WB[u], XB[u]
        if p < 2: k(f"{MFMA} v[{ACC+16*p}:{ACC+16*p+15}], v[{b+4*p}:{b+4*p+3}], v[{x}:{x+3}], v[{ACC+16*p}:{ACC+16*p+15}]")
        else: k(f"{MFMA} v[{ACC+32}:{ACC+47}], v[{x}:{x+3}], v[{b+8}:{b+11}], v[{ACC+32}:{ACC+47}]")
    def CSM(p, u):
        k(f"{MF16} v[{CS+4*p}:{CS+4*p+3}], v[{SEL}:{SEL+3}], v[{WB[u]+4*p}:{WB[u]+4*p+3}], v[{CS+4*p}:{CS+4*p+3}]")
    def step(u, par):
        nu = (u+2) & 3
        k("s_waitcnt lgkmcnt(7)")
        for p in range(3):
            M(p, u)
            if p == 0: xrd(nu, XB[nu])
            wrd(nu, WB[nu], p)
            if (u & 1) == par: CSM(p, u)
    k("s_cmp_eq_u32 s34, 1")
    k(f"s_cbranch_scc1 {odd}")
    for par in range(2):
        if par == 1: k.place(odd)
        ml = k.label("p1ml")
        k(".p2align 3")
        k.place(ml)
        for u in range(4):
            if u == 2:
                k("s_add_u32 s48, s48, 24576")
                k(f"s_cmp_eq_u32 s48, {8*12288}")
                k("s_cselect_b32 s48, 0, s48")
                k(f"v_add_u32 v{VXA}, 8192, v{VXA}")
                k(f"v_add_u32 v{VXA+1}, 8192, v{VXA+1}")
                k("s_barrier")
                early_check(k, TAIL, 'loop')
                k(f"v_add_u32 v{VWA}, s48, v{VWA+1}")
            step(u, par)
            if u == 3:
                for q in range(2, 4): k(f"v_add_u32 v{VXA+q}, 8192, v{VXA+q}")
                k("s_add_u32 s47, s47, 1")
                k("s_cmp_lt_u32 s47, 7")
        k(f"s_cbranch_scc1 {ml}")
        step(0, par); step(1, par)
        k(f"s_waitcnt lgkmcnt({7 if par == 0 else 0})")
        for p in range(3): CSM(p, 2 + par)
        if par == 0: k(f"s_branch {ep}")
    k.place(ep)
    A, RSV, NBV = 20, 44, 60
    BQ = [36, 40, 68, 72]
    RS, NB, CV = 132, 134, 136
    k("s_waitcnt lgkmcnt(0)")
    M(0, 2); M(0, 3)
    k(f"s_mov_b32 s42, {hex(f32(0.25*math.log2(math.e)))}")
    k.nop(3)
    k("s_mov_b64 exec, 0xffff")
    for p in range(3):
        k(f"ds_write2_b32 v5, v{CS+4*p}, v{CS+4*p+1} offset0:{32*p} offset1:{32*p+16}")
    k("s_mov_b64 exec, -1")
    M(1, 2)
    k("s_waitcnt lgkmcnt(0)")
    k("s_barrier")
    k(f"ds_read_b32 v{RS}, v10")
    k(f"ds_read_b32 v{NB}, v10 offset:256")
    M(1, 3)
    def csrd(p):
        for g in range(4):
            k(f"ds_read_b128 v[{A+4*g}:{A+4*g+3}], v6 offset:{p*128 + g*32}")
            k(f"ds_read_b128 v[{BQ[g]}:{BQ[g]+3}], v6 offset:{768 + p*128 + g*32}")
    csrd(0)
    M(2, 2)
    k(f"ds_read_b32 v{CV}, v7 offset:256")
    k(f"ds_read_b32 v{CV+1}, v7 offset:{768 + 256}")
    k("s_waitcnt lgkmcnt(10)")
    k(f"v_mul_f32 v138, s42, v{RS}")
    k(f"v_mul_f32 v140, s42, v{NB}")
    M(2, 3)
    stamp(k, 2)
    st = OPT['st']
    P = 144
    def fold(acc, rs, nb):
        for r in range(0, 16, 2):
            bq = BQ[r >> 2] + (r & 3)
            k(f"v_pk_add_f32 v[{A+r}:{A+r+1}], v[{A+r}:{A+r+1}], v[{bq}:{bq+1}]")
        for r in range(0, 16, 2):
            k(f"v_pk_mul_f32 v[{A+r}:{A+r+1}], v[{A+r}:{A+r+1}], v[{nb}:{nb+1}] op_sel_hi:[1,0]")
        for r in range(0, 16, 2):
            k(f"v_pk_fma_f32 v[{acc+r}:{acc+r+1}], v[{acc+r}:{acc+r+1}], v[{rs}:{rs+1}], v[{A+r}:{A+r+1}] op_sel_hi:[1,0,1]")
    def pack(acc, p, so0, so1, va, off1=0):
        for d in range(8):
            k(f"v_cvt_pk_bf16_f32 v{p+d}, v{acc+2*d}, v{acc+2*d+1}")
            if d == 3: pub_store(k, [f"buffer_store_dwordx4 v[{p}:{p+3}], v{va}, s[20:23], s{so0} offen"], 4)
        pub_store(k, [f"buffer_store_dwordx4 v[{p+4}:{p+7}], v{va}, s[20:23], s{so1} offen" + (f" offset:{off1}" if off1 else "")], 4)
    k("s_waitcnt lgkmcnt(2)")
    fold(ACC, 138, 140)
    csrd(1)
    for g in range(4):
        k(f"ds_read_b128 v[{RSV+4*g}:{RSV+4*g+3}], v11 offset:{g*32}")
    pack(ACC, P, 40, 43, 3)
    k("s_waitcnt lgkmcnt(4)")
    fold(ACC+16, RS, NB)
    for g in range(4):
        k(f"ds_read_b128 v[{NBV+4*g}:{NBV+4*g+3}], v11 offset:{256 + g*32}")
    pack(ACC+16, P+8, 44, 45, 3)
    k(f"v_add_f32 v{CV}, v{CV}, v{CV+1}")
    k("s_waitcnt lgkmcnt(0)")
    for r in range(0, 16, 2):
        k(f"v_pk_mul_f32 v[{NBV+r}:{NBV+r+1}], v[{NBV+r}:{NBV+r+1}], v[{CV}:{CV+1}] op_sel_hi:[1,0]")
    for r in range(0, 16, 2):
        k(f"v_pk_fma_f32 v[{ACC+32+r}:{ACC+33+r}], v[{ACC+32+r}:{ACC+33+r}], v[{RSV+r}:{RSV+r+1}], v[{NBV+r}:{NBV+r+1}]")
    pack(ACC+32, P+16, 46, 46, 9, 512)
    stamp(k, 3)
    k("s_waitcnt vmcnt(0)")
    k("s_barrier")
    role_read(k)
    k("s_barrier")

def relayout(k):
    st = OPT['st']
    PRE = [16, 44, 80]
    k(f"""
    v_and_b32 v6, 31, v2
    v_lshrrev_b32 v7, 5, v2
    v_lshlrev_b32 v12, 10, v6
    v_lshl_add_u32 v12, v7, 3, v12
    v_mul_u32_u24 v13, {4*2752}, v7
    v_lshl_add_u32 v13, v6, 1, v13
    v_lshlrev_b32 v14, 12, v7
    v_lshl_add_u32 v14, v6, 1, v14
    s_lshl_b32 s42, s2, 3
    s_mul_i32 s43, s29, 3
    s_add_u32 s42, s42, s43
    """)
    def wload(reg, voffreg, soffreg, pitch):
        for j in range(8):
            row = 8*(j >> 2) + (j & 3)
            k(f"s_add_u32 s49, s{soffreg}, {row*pitch}")
            k(f"buffer_load_ushort v{reg+j}, v{voffreg}, s[44:47], s49 offen")
    def item_loads(i):
        P_, D0 = PRE[i], (37, 52, 32)[i]
        k(f"s_add_u32 s{D0+2}, s42, {i}")
        if i == 2:
            k("s_cmp_eq_u32 s29, 2")
            k(f"s_cselect_b32 s{D0+2}, 0xfff, s{D0+2}")
        G = D0 + 2
        srd(k, 44, 4, 2*MB)
        k(f"""
        s_lshr_b32 s43, s{G}, 5
        s_lshl_b32 s43, s43, 15
        s_and_b32 s48, s{G}, 31
        s_lshl_b32 s48, s48, 5
        s_add_u32 s43, s43, s48
        buffer_load_dwordx2 v[{P_}:{P_+1}], v12, s[44:47], s43 offen
        buffer_load_dwordx2 v[{P_+2}:{P_+3}], v12, s[44:47], s43 offen offset:16
        s_mov_b32 s50, {(2**32 + 42)//43}
        s_mul_hi_u32 s51, s{G}, s50
        s_mul_i32 s58, s51, 43
        s_sub_u32 s58, s{G}, s58
        s_mul_i32 s59, s51, {16*2752}
        s_lshl_b32 s48, s58, 6
        s_add_u32 s59, s59, s48
        s_lshl_b32 s{D0}, s58, 6
        s_add_u32 s{D0}, s{D0}, s51
        s_lshl_b32 s{D0}, s{D0}, 10
        s_cmp_lt_u32 s{G}, 1376
        s_cselect_b32 s50, {512*2752}, 0
        s_mov_b32 s44, s12
        s_and_b32 s45, s13, 0xffff
        s_mov_b32 s46, s50
        """)
        wload(P_+4, 13, 59, 2752)
        k("s_mov_b32 s44, s14")
        k("s_and_b32 s45, s15, 0xffff")
        wload(P_+12, 13, 59, 2752)
        k(f"""
        s_sub_u32 s48, s{G}, 1376
        s_cmp_lt_u32 s{G}, 1376
        s_cselect_b32 s48, s{G}, s48
        s_cselect_b32 s44, s16, s8
        s_cselect_b32 s45, s17, s9
        s_cselect_b32 s46, {1376*1024}, 0
        s_cselect_b32 s50, 86, 32
        s_cselect_b32 s43, {WDF - WOF}, 0
        s_and_b32 s45, s45, 0xffff
        s_sub_u32 s51, s{G}, 1376
        s_cmp_lt_u32 s51, 512
        s_cselect_b32 s46, {512*1024}, s46
        s_and_b32 s58, s48, 15
        s_lshr_b32 s51, s48, 4
        s_lshl_b32 s59, s51, 14
        s_lshl_b32 s48, s58, 6
        s_add_u32 s59, s59, s48
        s_mul_i32 s{D0+1}, s58, s50
        s_add_u32 s{D0+1}, s{D0+1}, s51
        s_lshl_b32 s{D0+1}, s{D0+1}, 10
        s_add_u32 s{D0+1}, s{D0+1}, s43
        """)
        wload(P_+20, 14, 59, 1024)
    def pack_store(reg, dstreg, base):
        for d in range(4):
            k(f"v_lshl_or_b32 v{reg+d}, v{reg+2*d+1}, 16, v{reg+2*d}")
        k(f"s_add_u32 s49, s{dstreg}, {base}")
        k(f"buffer_store_dwordx4 v[{reg}:{reg+3}], v3, s[20:23], s49 offen {st}")
    def item_stores(i):
        P_, D0 = PRE[i], (37, 52, 32)[i]
        G = D0 + 2
        l1, l2 = k.label("is1"), k.label("is2")
        if i == 2:
            k("s_cmp_eq_u32 s29, 2")
            k(f"s_cbranch_scc1 {l2}")
        k(f"s_lshl_b32 s43, s{G}, 10")
        k(f"s_add_u32 s43, s43, {XF}")
        k(f"buffer_store_dwordx4 v[{P_}:{P_+3}], v3, s[20:23], s43 offen {st}")
        k(f"s_cmp_lt_u32 s{G}, 1376")
        k(f"s_cbranch_scc0 {l1}")
        for reg in (P_+4, P_+12):
            for d in range(4):
                k(f"v_lshl_or_b32 v{reg+d}, v{reg+2*d+1}, 16, v{reg+2*d}")
        k.nop(2)
        for d in range(4):
            k(f"v_permlane16_swap_b32 v{P_+4+d}, v{P_+12+d}")
        k(f"s_add_u32 s49, s{D0}, {WGF}")
        k(f"buffer_store_dwordx4 v[{P_+4}:{P_+7}], v3, s[20:23], s49 offen {st}")
        k(f"s_add_u32 s49, s{D0}, {WGF + 32768}")
        k(f"buffer_store_dwordx4 v[{P_+12}:{P_+15}], v3, s[20:23], s49 offen {st}")
        k.place(l1)
        k(f"s_cmp_lt_u32 s{G}, 1888")
        k(f"s_cbranch_scc0 {l2}")
        pack_store(P_+20, D0+1, WOF)
        k.place(l2)
    return item_loads, item_stores

def p1_loader(k):
    SRB, SCB = 27, 28
    VXE, VXO, VW = 8, 9, 10
    k(f"""
    s_sub_u32 s29, s{SW}, 4
    v_lshrrev_b32 v11, 3, v2
    v_and_b32 v4, 7, v2
    v_lshrrev_b32 v5, 4, v2
    v_xor_b32 v6, v4, v5
    v_lshlrev_b32 v6, 4, v6
    s_lshl_b32 s35, s29, 4
    v_add_u32 v7, s35, v11
    v_lshlrev_b32 v12, 10, v7
    v_add_u32 v{VXE}, v12, v6
    v_xor_b32 v6, 64, v6
    v_add_u32 v{VXO}, v12, v6
    v_add_u32 v{VXO}, 8192, v{VXO}
    s_lshl_b32 s35, s29, 3
    v_add_u32 v7, s35, v11
    v_and_b32 v5, 3, v11
    v_lshlrev_b32 v5, 1, v5
    v_xor_b32 v5, v4, v5
    v_lshlrev_b32 v5, 4, v5
    v_mul_u32_u24 v7, 3072, v7
    v_add_u32 v{VW}, v7, v5
    s_lshl_b32 s31, s29, 10
    s_lshl_b32 s36, s29, 11
    s_lshl_b32 s30, s{SRB}, 16
    s_lshl_b32 s32, s{SCB}, 7
    """)
    if OPT.get('z_mix'):
        for p, d in ((1, 3), (2, 5)):
            k(f"s_add_u32 s{37+p}, s{SCB}, {d}")
            k(f"s_and_b32 s{37+p}, s{37+p}, 7")
            k(f"s_sub_u32 s{37+p}, s{37+p}, s{SCB}")
            k(f"s_lshl_b32 s{37+p}, s{37+p}, 7")
    k("s_mov_b32 s54, 0x200000")
    k("s_mov_b32 s55, 0x20000")
    k(f"s_mov_b32 s58, {512*3072}")
    k("s_mov_b32 s59, 0x20000")
    k("s_waitcnt lgkmcnt(0)")
    k("s_mov_b32 s52, s4")
    k("s_and_b32 s53, s5, 0xffff")
    k("s_mov_b32 s56, s6")
    k("s_and_b32 s57, s7, 0xffff")
    order = []
    def rotp(P):
        k(f"s_add_u32 s37, s{SRB}, {P}")
        k("s_and_b32 s37, s37, 7")
    def xissue(P):
        rotp(P)
        k("s_lshl_b32 s33, s37, 7")
        k("s_add_u32 s33, s33, s30")
        for o in range(2):
            dma(k, VXE if o == 0 else VXO, 52, 33, f"s36, {P*8192 + o*1024}")
        order.extend([P]*2)
    def wissue(c):
        rotp(c//2)
        k(f"s_mul_i32 s37, s37, {64*3072}")
        k("s_add_u32 s37, s37, s32")
        for p in range(3):
            k(f"s_add_u32 s33, s37, {(c & 1)*32*3072 + p*1024}")
            dma(k, VW, 56, 33, f"s31, {65536 + (c % 8)*12288 + p*4096}")
        order.extend([c//2]*3)
    nx, nw = 0, 0
    while nw < OPT.get('d1', 4):
        if nx <= nw//2: xissue(nx); nx += 1
        wissue(nw); nw += 1
    while nx < OPT.get('xup', 2): xissue(nx); nx += 1
    srd(k, 20, 62, WS_SIZE)
    for P in range(8):
        last = max(i for i, o in enumerate(order) if o == P)
        k(f"s_waitcnt vmcnt({len(order) - 1 - last})")
        k("s_barrier")
        if P <= KC1: early_check(k, TAIL, (P - 1) & 1)
        while nx < min(7, OPT.get('xup2', 0)) and P == 0: xissue(nx); nx += 1
        m = 0
        while nw < 16 and nw - 8 <= 2*P - 3 and m < 4:
            if nx <= nw//2:
                assert nx < 7 or P > KC1
                xissue(nx); nx += 1
            wissue(nw); nw += 1; m += 1
    k("s_barrier")
    k("s_barrier")
    role_read(k)
    k("s_barrier")

RLAB = [None]
PRESENCE = [None]
def p1_helper(k):
    RLAB[0] = k.label('RL')
    k(f"s_setprio {OPT.get('hprio', 3)}")
    k("s_waitcnt lgkmcnt(0)")
    srd(k, 20, 62, WS_SIZE)
    X, SQ, SX, T, RS, NB = 16, 24, 28, 32, 36, 38
    init_done = k.label("initd")
    k(f"""
    s_lshl_b32 s57, s3, 8
    s_or_b32 s57, s57, s{SW}
    s_cmp_lg_u32 s57, 8
    s_cbranch_scc1 {init_done}
    s_lshl_b32 s30, s2, 7
    s_add_u32 s30, s30, {FLG}
    v_lshl_add_u32 v4, v2, 15, s30
    s_and_b32 s30, s2, 7
    s_lshl_b32 s30, s30, 8
    s_add_u32 s30, s30, {CNT + CW*256}
    v_mov_b32 v5, 0
    v_writelane_b32 v4, s30, 4
    s_mov_b64 exec, 31
    buffer_store_dword v5, v4, s[20:23], 0 offen sc1
    s_mov_b64 exec, -1
    """)
    k.place(init_done)
    def presence(k, on):
        k(f"s_lshl_b32 s30, s{SXCD}, 2")
        k(f"s_lshr_b32 s31, s{SIDX}, 3")
        k("s_add_u32 s30, s30, s31")
        k("s_lshl_b32 s30, s30, 7")
        k(f"s_add_u32 s30, s30, {PRS}")
        if on is None: return
        k("s_lshl_b32 s31, s1, 3")
        k("s_mov_b64 exec, 1")
        k("v_mov_b32 v50, s31")
        k(f"v_mov_b32 v52, {hex(MAG0) if on else 0}")
        k(f"v_mov_b32 v53, {hex(MAG1) if on else 0}")
        k("buffer_store_dwordx2 v[52:53], v50, s[20:23], s30 offen")
        k("s_mov_b64 exec, -1")
    PRESENCE[0] = presence
    def hint():
        l9, l, lp, w = k.label("h9"), k.label("hi"), k.label("hil"), k.label("hiw")
        k("s_cmp_lg_u32 s57, 9")
        k(f"s_cbranch_scc1 {l9}")
        presence(k, True)
        k.place(l9)
        k("s_cmp_lg_u32 s57, 10")
        k(f"s_cbranch_scc1 {l}")
        k(f"s_cmp_lg_u32 s{SCHK}, 1")
        k(f"s_cbranch_scc1 {l}")
        presence(k, None)
        k("v_lshlrev_b32 v50, 3, v2")
        k("s_mov_b32 s41, 0")
        k(f"s_mov_b32 s32, {hex(MAG1)}")
        k("s_mov_b64 exec, 0xff")
        k.place(lp)
        k("s_sleep 4")
        k("buffer_load_dwordx2 v[52:53], v50, s[20:23], s30 offen sc1")
        k("s_mov_b32 s56, 0")
        k("s_add_u32 s41, s41, 1")
        k(f"s_cmp_gt_u32 s41, {OPT.get('hintn', 3)}")
        k(f"s_cbranch_scc1 {w}")
        k("s_waitcnt vmcnt(0)")
        k(f"v_cmp_eq_u32 vcc, {hex(MAG0)}, v52")
        k("v_cmp_eq_u32 s[34:35], s32, v53")
        k.nop(1)
        k("s_and_b32 s31, vcc_lo, s34")
        k("s_bcnt1_i32_b32 s33, s31")
        k("s_cmp_lg_u32 s33, 7")
        k(f"s_cbranch_scc1 {lp}")
        k("s_ff0_i32_b32 s31, s31")
        if OPT.get('badhint'): k("s_mov_b32 s31, 5")
        k(f"s_add_u32 s56, s31, s{SIDX}")
        k("s_or_b32 s56, s56, 0x100")
        k("s_cmp_eq_u32 s31, 0")
        k("s_cselect_b32 s56, 2, s56")
        k.place(w)
        k("s_mov_b64 exec, -1")
        k(f"v_mov_b32 v50, {EARLY - 4}")
        k("v_mov_b32 v49, s56")
        k("ds_write_b32 v50, v49")
        k("s_waitcnt vmcnt(0) lgkmcnt(0)")
        k.place(l)
    def mark():
        l = k.label("mk")
        k("s_cmp_lg_u32 s57, 8")
        k(f"s_cbranch_scc1 {l}")
        k(f"s_lshl_b32 s30, s{SXCD}, 5")
        k(f"s_lshr_b32 s31, s{SIDX}, 3")
        k(f"s_cmp_lg_u32 s{SCHK}, 0")
        k(f"s_cselect_b32 s31, s31, s{SIDX}")
        k(f"s_cselect_b32 s32, 4, 0")
        k("s_add_u32 s30, s30, s32")
        k(f"s_lshl_b32 s31, 1, s31")
        k("s_mov_b64 exec, 1")
        k("v_mov_b32 v45, s30")
        k("v_mov_b32 v46, s31")
        k("s_waitcnt vmcnt(0)")
        k("global_atomic_or v45, v46, s[60:61] offset:16 sc1")
        k("s_mov_b64 exec, -1")
        k.place(l)
    def peek(c):
        l, w = k.label("pk"), k.label("pkw")
        k(f"s_cmp_lg_u32 s{SW}, 10")
        k(f"s_cbranch_scc1 {l}")
        k(f"s_cmp_lg_u32 s{SCHK}, 1")
        k(f"s_cbranch_scc1 {l}")
        k(f"s_lshl_b32 s30, s{SXCD}, 5")
        k("v_mov_b32 v47, s30")
        k(f"v_mov_b32 v50, {EARLY - 4*(c & 1)}")
        k("s_mov_b32 s56, 0")
        if c >= KC0 - 1:
            k("s_waitcnt vmcnt(0)")
            k("v_readfirstlane_b32 s30, v48")
            k.nop(1)
            k(f"s_lshr_b32 s30, s30, s{SIDX}")
            k("s_and_b32 s30, s30, 0xff")
            k("s_bcnt1_i32_b32 s31, s30")
            k("s_cmp_lg_u32 s31, 7")
            k(f"s_cbranch_scc1 {w}")
            k("s_ff0_i32_b32 s30, s30")
            k(f"s_add_u32 s56, s30, s{SIDX}")
            k("s_or_b32 s56, s56, 0x100")
            k("s_cmp_eq_u32 s30, 0")
            k("s_cselect_b32 s56, 2, s56")
        k.place(w)
        k("v_mov_b32 v49, s56")
        k("ds_write_b32 v50, v49")
        if c < KC1 - 1: k("global_load_dword v48, v47, s[60:61] offset:16 sc1")
        k("s_waitcnt lgkmcnt(0)")
        k.place(l)
    k(f"""
    s_sub_u32 s29, s{SW}, 8
    s_lshl_b32 s30, s29, 10
    v_add_u32 v4, s30, v3
    s_mov_b32 s39, {hex(ONES)}
    """)
    if OPT.get('t1at', 0) < 0: cold_touch(k)
    if OPT.get('t7'):
        l7 = k.label("t7")
        k(f"s_cmp_lg_u32 s{SW}, 10")
        k(f"s_cbranch_scc1 {l7}")
        srd(k, 44, 6, 512*3072)
        k("s_lshr_b32 s31, s2, 3")
        k(f"s_mul_i32 s31, s31, {48*1024}")
        k("v_lshlrev_b32 v12, 10, v2")
        k("s_mov_b32 exec_hi, 0xffff")
        k("buffer_load_dword v40, v12, s[44:47], s31 offen offset:384")
        if OPT['t7'] > 1: k("buffer_load_dword v41, v12, s[44:47], s31 offen offset:896")
        k("s_mov_b64 exec, -1")
        k.place(l7)
    hint()
    if OPT.get('mk0', 1): mark()
    for c in range(8):
        k("s_barrier")
        if c <= KC1: early_check(k, TAIL, (c - 1) & 1)
        if c == 0 and not OPT.get('mk0', 1): mark()
        if c < KC1: peek(c)
        if c == OPT.get('t1at', 0): cold_touch(k)
        if c == OPT.get('t6at', 99):
            l6 = k.label("t6")
            k(f"s_cmp_eq_u32 s{SW}, 8")
            k(f"s_cbranch_scc1 {l6}")
            k(f"s_sub_u32 s42, s{SW}, 9")
            k(f"s_lshl_b32 s42, s42, 21")
            k("s_lshl_b32 s43, s2, 13")
            k("s_add_u32 s42, s42, s43")
            touch(k, 42, 64, 47)
            k.place(l6)
        if c == OPT.get('tcat', 7):
            l11 = k.label("t11b")
            k(f"s_cmp_lg_u32 s{SW}, 11")
            k(f"s_cbranch_scc1 {l11}")
            if True:
                here = k.label("here")
                k("s_getpc_b64 s[44:45]")
                k.place(here)
                k(f"s_sub_u32 s44, s44, {here}-{NAME}")
                k("s_subb_u32 s45, s45, 0")
                k("v_lshlrev_b32 v12, 7, v2")
                for i in range(4):
                    k("v_add_u32 v12, 8192, v12")
                    k(f"global_load_dword v{40+i}, v12, s[44:45]")
            k.place(l11)

        if c < 8 and not (OPT.get('z_nostat') and c > 0):
            cc = c
            k(f"ds_read_b128 v[{X}:{X+3}], v4 offset:{cc*8192}")
            k(f"ds_read_b128 v[{X+4}:{X+7}], v4 offset:{cc*8192 + 4096}")
            for hf in range(2):
                k(f"s_waitcnt lgkmcnt({1-hf})")
                for d in range(4):
                    r = X + 4*hf + d
                    q, sx = SQ + 2*hf + (d & 1), SX + 2*hf + (d & 1)
                    first = (cc == 0 and d < 2)
                    k(f"v_dot2_f32_bf16 v{q}, v{r}, v{r}, {'0' if first else 'v%d' % q}")
                    k(f"v_dot2_f32_bf16 v{sx}, v{r}, s39, {'0' if first else 'v%d' % sx}")
        if c == 7:
            k.nop(3)
            k(f"v_add_f32 v{SQ}, v{SQ}, v{SQ+1}")
            k(f"v_add_f32 v{SQ+2}, v{SQ+2}, v{SQ+3}")
            k(f"v_add_f32 v{SX}, v{SX}, v{SX+1}")
            k(f"v_add_f32 v{SX+2}, v{SX+2}, v{SX+3}")
            row8_sum(k, [SQ, SQ+2, SX, SX+2])
        if c == 7:
            for hf in range(2):
                finish_stats(k, SX + 2*hf, SQ + 2*hf, RS + hf, NB + hf, T, T+1)
            k(f"""
            v_lshrrev_b32 v5, 3, v2
            s_lshl_b32 s30, s29, 5
            s_add_u32 s30, s30, {EXS}
            v_lshl_add_u32 v5, v5, 2, s30
            ds_write2_b32 v5, v{RS}, v{RS+1} offset0:0 offset1:32
            ds_write2_b32 v5, v{NB}, v{NB+1} offset0:64 offset1:96
            """)
    k("s_waitcnt lgkmcnt(0)")
    k("s_barrier")
    nm = k.label("nomx")
    k(f"""
    s_cmp_lg_u32 s28, 0
    s_cbranch_scc1 {nm}
    s_lshl_b32 s30, s27, 8
    s_lshl_b32 s31, s29, 5
    s_add_u32 s30, s30, s31
    s_add_u32 s30, s30, {MX}
    v_lshrrev_b32 v5, 3, v2
    v_lshlrev_b32 v5, 2, v5
    s_mov_b32 exec_lo, 0x01010101
    s_mov_b32 exec_hi, 0x01010101
    buffer_store_dword v{SX}, v5, s[20:23], s30 offen sc1
    buffer_store_dword v{SX+2}, v5, s[20:23], s30 offen offset:128 sc1
    s_mov_b64 exec, -1
    """)
    k.place(nm)
    nw, g, gx, g2 = k.label("nrw"), k.label("gate"), k.label("gatex"), k.label("gate2")
    k("s_mov_b32 s56, 0")
    k(f"s_cmp_lg_u32 s{SW}, 8")
    k(f"s_cbranch_scc1 {nw}")
    k("s_cmp_eq_u32 s3, 1")
    k(f"s_cbranch_scc1 {gx}")
    k("s_mov_b32 s41, 0")
    k("v_lshlrev_b32 v9, 5, v2")
    k("s_mov_b64 exec, 0xff")
    k.place(g)
    k("global_load_dwordx2 v[10:11], v9, s[60:61] offset:16 sc1")
    k("s_add_u32 s41, s41, 1")
    k("s_mov_b64 s[30:31], 0")
    k("s_waitcnt vmcnt(0)")
    for se in range(4):
        k(f"v_bfe_u32 v12, v10, {8*se}, 8")
        k(f"v_bfe_u32 v13, v11, {se}, 1")
        k("v_bcnt_u32_b32 v12, v12, v13")
        k("v_cmp_ne_u32 vcc, 8, v12")
        k("s_or_b64 s[30:31], s[30:31], vcc")
    k(f"s_cbranch_scc0 {g2}")
    k("s_sleep 8")
    k("s_cmp_lt_u32 s41, 0x4000")
    k(f"s_cbranch_scc1 {g}")
    k("s_mov_b32 s56, 1")
    k(f"s_branch {gx}")
    k.place(g2)
    k("s_cmp_lt_u32 s1, 8")
    k(f"s_cbranch_scc1 {gx}")
    k(f"v_readlane_b32 s30, v10, s{SXCD}")
    k(f"s_and_b32 s31, s{SIDX}, 24")
    k("s_lshr_b32 s30, s30, s31")
    k("s_ff0_i32_b32 s30, s30")
    k("s_add_u32 s30, s30, s31")
    k(f"s_cmp_eq_u32 s30, s{SIDX}")
    k(f"s_cbranch_scc1 {gx}")
    k("s_or_b32 s56, s30, 0x100")
    k.place(gx)
    if OPT.get('z_rec'):
        k("s_mov_b64 exec, 1")
        k("v_mov_b32 v12, 0")
        k("v_mov_b32 v13, s56")
        k("v_mov_b32 v14, s41")
        k("global_atomic_add v12, v13, s[60:61] sc1")
        k("global_atomic_add v12, v14, s[60:61] offset:4 sc1")
    k("s_mov_b64 exec, -1")
    k(f"v_mov_b32 v4, {ROLE}")
    k("v_mov_b32 v5, s56")
    k("ds_write_b32 v4, v5")
    k("s_waitcnt lgkmcnt(0)")
    k.place(nw)
    k(f"s_lshl_b32 s40, s28, 5")
    k(f"s_add_u32 s40, s40, s27")
    k(f"s_lshl_b32 s40, s40, 7")
    k(f"s_add_u32 s40, s40, {FLG}")
    k("v_mov_b32 v8, 1")
    k("v_mov_b32 v9, 0")
    k(f"s_and_b32 s{SLOC}, s3, 1"); k(f"s_xor_b32 s{SLOC}, s{SLOC}, 1")
    k("s_waitcnt vmcnt(0)")
    stamp(k, 1)
    k("s_barrier")
    k(f"s_cmp_lg_u32 s{SW}, 8")
    k(f"s_cbranch_scc1 {RLAB[0]}")
    nf = k.label("nofire")
    k("s_cmp_lg_u32 s56, 0")
    k(f"s_cbranch_scc1 {nf}")
    k("s_mov_b64 exec, 1")
    if OPT.get('p1m', 1) == 1: pub_store(k, ["buffer_store_dword v8, v9, s[20:23], s40 offen"])
    else: k("buffer_store_dword v8, v9, s[20:23], s40 offen sc1")
    k("s_mov_b64 exec, -1")
    k.place(nf)
    stamp(k, 0)
    role_read(k)
    k(f"v_mov_b32 v4, {PROG}")
    k("v_mov_b32 v5, 0")
    for o in (0, 16, 20, 32, 48): k(f"ds_write_b32 v4, v5 offset:{o}")
    k(f"s_lshr_b32 s42, s{SHEAD}, 2")
    k(f"s_lshl_b32 s42, s42, 5")
    flag_poll(k, 42, 32, OPT.get('slp', 8) if OPT.get('pdl', 1) == 1 else OPT.get('slpl', 2), OPT.get('pdl', 1))
    stamp(k, 2); rstamp(k, 3)

def rowmax(k, S, dst, t1, t2):
    k(f"v_max3_f32 v{dst}, v{S}, v{S+1}, v{S+2}")
    k(f"v_max3_f32 v{t1}, v{S+3}, v{S+4}, v{S+5}")
    k(f"v_max3_f32 v{dst}, v{dst}, v{S+6}, v{S+7}")
    k(f"v_max3_f32 v{t1}, v{t1}, v{S+8}, v{S+9}")
    k(f"v_max3_f32 v{dst}, v{dst}, v{S+10}, v{S+11}")
    k(f"v_max3_f32 v{t1}, v{t1}, v{S+12}, v{S+13}")
    k(f"v_max3_f32 v{dst}, v{dst}, v{S+14}, v{S+15}")
    k(f"v_max_f32 v{t1}, v{dst}, v{t1}")
    k(f"v_mov_b32 v{t2}, v{t1}")
    k.nop(2)
    k(f"v_permlane32_swap_b32 v{t1}, v{t2}")
    k.nop(1)
    k(f"v_max_f32 v{dst}, v{t1}, v{t2}")

def p2_compute(k, tail):
    Q = 8; KB = [12, 16]; V1 = [20, 28]; V2 = [24, 32]; P = 36; SS = [48, 64]; CN = 80; O = 96
    VKA, VVA, VINC = 4, 5, 47
    PRG, VPR = 112, 6
    chk, spin = k.label("chk"), k.label("spin")
    def spinf(k):
        k.place(spin)
        k("s_sleep 1")
        k(f"ds_read_b32 v{PRG}, v{VPR}")
        k("s_waitcnt lgkmcnt(0)")
        k(f"s_branch {chk}")
    tail.append(spinf)
    k(f"""
    s_lshl_b32 s30, s{SQB}, 3
    s_add_u32 s30, s30, s{SW}
    s_lshl_b32 s31, s30, 10
    s_lshl_b32 s29, s{SHEAD}, 16
    s_add_u32 s31, s31, s29
    buffer_load_dwordx4 v[{Q}:{Q+3}], v3, s[20:23], s31 offen {OPT.get('ldq', OPT['ld'])}
    v_mov_b32 v{VKA}, v3
    v_lshrrev_b32 v6, 5, v2
    v_lshlrev_b32 v6, 8, v6
    v_and_b32 v7, 15, v2
    v_lshl_add_u32 v{VVA}, v7, 4, v6
    v_add_u32 v{VVA}, 0x10000, v{VVA}
    v_and_b32 v6, 27, v2
    v_mov_b32 v7, {hex(ONES)}
    v_cmp_eq_u32 vcc, 16, v6
    s_mov_b32 s36, 0xffff
    s_mov_b32 s37, 0xffff
    v_cndmask_b32 v7, 0, v7, vcc
    s_lshl_b32 s42, s30, 15
    s_lshl_b32 s41, s{SHEAD}, 10
    s_add_u32 s42, s42, s41
    s_add_u32 s42, s42, {OF}
    """)
    for r in range(16): k(f"v_mov_b32 v{V1[0]+r}, v7")
    k(f"v_mov_b32 v{VPR}, {PROG}")
    for r in range(8): k(f"v_mov_b32 v{P+r}, 0")
    for r in range(16): k(f"v_mov_b32 v{O+r}, 0")
    def vread(kk, buf, off):
        kk("s_mov_b64 exec, s[36:37]")
        kk(f"ds_read_b128 v[{V1[buf]}:{V1[buf]+3}], v{VVA} offset:{off}")
        kk(f"ds_read_b128 v[{V2[buf]}:{V2[buf]+3}], v{VVA} offset:{off+512}")
        kk("s_mov_b64 exec, -1")
    stamp(k, 4)
    k("s_barrier")
    stamp(k, 5)
    k(f"ds_read_b128 v[{KB[0]}:{KB[0]+3}], v{VKA}")
    k(f"ds_read_b128 v[{KB[1]}:{KB[1]+3}], v{VKA} offset:1024")
    vread(k, 0, 0)
    k("s_waitcnt vmcnt(0) lgkmcnt(3)")
    k(f"{MFMA} v[{SS[0]}:{SS[0]+15}], v[{KB[0]}:{KB[0]+3}], v[{Q}:{Q+3}], 0")
    k.nop(12)
    rowmax(k, SS[0], 44, 45, 46)
    for r in range(16): k(f"v_sub_f32 v{CN+r}, 0, v44")
    k.nop(2)
    k(f"{MFMA} v[{SS[0]}:{SS[0]+15}], v[{KB[0]}:{KB[0]+3}], v[{Q}:{Q+3}], v[{CN}:{CN+15}]")
    k("s_mov_b32 s38, 0")
    k.nop(10)
    loop = k.label("loop")
    k(".p2align 6")
    k.place(loop)
    pr = OPT['prio']
    for t in range(8):
        cur, nx = SS[t & 1], SS[(t+1) & 1]
        e = lambda i: k(f"v_exp_f32 v{cur+i}, v{cur+i}")
        c = lambda i: k(f"v_cvt_pk_bf16_f32 v{P+i}, v{cur+2*i}, v{cur+2*i+1}")
        k("s_waitcnt lgkmcnt(0)")
        if t == 6:
            k.place(chk)
            k(f"v_cmp_ge_u32 vcc, s38, v{PRG}")
            k("s_cmp_lg_u64 vcc, 0")
            k(f"s_cbranch_scc1 {spin}")
        kb = KB[(t+1) & 1]
        pb = (t+1) & 1
        sp = (lambda n: k(f"s_setprio {n}")) if pr else (lambda n: None)
        k(f"{MFMA} v[{nx}:{nx+15}], v[{kb}:{kb+3}], v[{Q}:{Q+3}], v[{CN}:{CN+15}]")
        sp(0)
        k(f"ds_read_b128 v[{KB[t&1]}:{KB[t&1]+3}], v{VKA} offset:{(t+2)*1024}")
        e(0); e(1)
        k(f"{MFMA} v[{O}:{O+15}], v[{V2[pb]}:{V2[pb]+3}], v[{P+4}:{P+7}], v[{O}:{O+15}]")
        vread(k, pb, (t+1)*1024)
        if t == 5: k(f"ds_read_b32 v{PRG}, v{VPR}")
        e(2); e(3); sp(1); c(0); e(4); e(5); c(1); e(6); e(7); sp(2); c(2); e(8); e(9); c(3); e(10); e(11)
        k(f"{MFMA} v[{O}:{O+15}], v[{V1[t&1]}:{V1[t&1]+3}], v[{P}:{P+3}], v[{O}:{O+15}]")
        c(4); e(12); e(13); sp(3); c(5); e(14); e(15); c(6)
        if t == 7:
            k(f"v_add_u32 v{VKA}, 8192, v{VKA}")
            k(f"v_add_u32 v{VVA}, 8192, v{VVA}")
            k("s_add_u32 s38, s38, 1")
            k(f"v_mov_b32 v{PRG}, s38")
            k(f"ds_write_b32 v{VPR}, v{PRG} offset:32")
            k("s_cmp_lt_u32 s38, 8")
        c(7)
    k(f"s_cbranch_scc1 {loop}")
    k("s_setprio 0")
    stamp(k, 6)
    k.nop(1)
    k(f"{MFMA} v[{O}:{O+15}], v[{V2[1]}:{V2[1]+3}], v[{P+4}:{P+7}], v[{O}:{O+15}]")
    if True:
        k("s_waitcnt lgkmcnt(0)")
        k.nop(11)
    fb, fin = k.label("fb"), k.label("fin")
    def finish(k):
        k(f"v_rcp_f32 v44, v{O+8}")
        k.nop(1)
        for r in range(8): k(f"v_mul_f32 v{SS[1]+r}, v{O+r}, v44")
        for r in range(4): k(f"v_cvt_pk_bf16_f32 v{P+r}, v{SS[1]+2*r}, v{SS[1]+2*r+1}")
        pub_store(k, [f"buffer_store_dwordx4 v[{P}:{P+3}], v3, s[20:23], s42 offen"], 0)
    finish(k)
    k(f"""
    v_max3_f32 v44, abs(v{O}), abs(v{O+1}), abs(v{O+2})
    v_max3_f32 v45, abs(v{O+3}), abs(v{O+4}), abs(v{O+5})
    v_max3_f32 v44, v44, abs(v{O+6}), abs(v{O+7})
    v_add_f32 v46, v{O}, v{O+1}
    v_max3_f32 v44, v44, v45, v{O+8}
    s_mov_b32 s39, {hex(f32(2.0**100))}
    """)
    for r in range(2, 9): k(f"v_add_f32 v46, v46, v{O+r}")
    k(f"v_and_b32 v46, 0x7fffffff, v46")
    k(f"v_cmp_ngt_f32 vcc, s39, v44")
    k(f"v_cmp_ngt_f32 s[40:41], s39, v46")
    k.nop(1)
    k("s_or_b64 s[40:41], s[40:41], vcc")
    k("s_cmp_lg_u64 s[40:41], 0")
    k(f"s_cbranch_scc1 {fb}")
    if OPT.get('forcefb'):
        k(f"s_bitcmp1_b32 s{SW}, 0")
        k(f"s_cbranch_scc1 {fb}")
    k.place(fin)
    k("s_waitcnt vmcnt(0)")
    k("s_barrier")
    k("s_barrier")
    def fallback(k):
        k.place(fb)
        k(f"v_mov_b32 v{VKA}, v3")
        k(f"v_subrev_u32 v{VVA}, 0x10000, v{VVA}")
        k(f"v_mov_b32 v7, 0xff7fffff")
        for r in range(16): k(f"v_mov_b32 v{O+r}, 0")
        k("s_mov_b32 s38, 0")
        fl = k.label("fl")
        k.place(fl)
        S = SS[0]
        k(f"ds_read_b128 v[{KB[0]}:{KB[0]+3}], v{VKA}")
        vread(k, 0, 0)
        k("s_waitcnt lgkmcnt(0)")
        k(f"{MFMA} v[{S}:{S+15}], v[{KB[0]}:{KB[0]+3}], v[{Q}:{Q+3}], 0")
        k.nop(14)
        rowmax(k, S, 44, 45, 46)
        k("v_max_f32 v44, v44, v7")
        k("v_sub_f32 v45, v7, v44")
        k("v_exp_f32 v45, v45")
        k("v_mov_b32 v7, v44")
        for r in range(16): k(f"v_sub_f32 v{S+r}, v{S+r}, v44")
        for r in range(16): k(f"v_mul_f32 v{O+r}, v{O+r}, v45")
        for r in range(16): k(f"v_exp_f32 v{S+r}, v{S+r}")
        k.nop(1)
        for r in range(8): k(f"v_cvt_pk_bf16_f32 v{P+r}, v{S+2*r}, v{S+2*r+1}")
        k.nop(2)
        k(f"{MFMA} v[{O}:{O+15}], v[{V1[0]}:{V1[0]+3}], v[{P}:{P+3}], v[{O}:{O+15}]")
        k(f"{MFMA} v[{O}:{O+15}], v[{V2[0]}:{V2[0]+3}], v[{P+4}:{P+7}], v[{O}:{O+15}]")
        k(f"v_add_u32 v{VKA}, 1024, v{VKA}")
        k(f"v_add_u32 v{VVA}, 1024, v{VVA}")
        k("s_add_u32 s38, s38, 1")
        k("s_cmp_lt_u32 s38, 64")
        k.nop(14)
        k(f"s_cbranch_scc1 {fl}")
        k("s_waitcnt vmcnt(0)")
        finish(k)
        k(f"s_branch {fin}")
    tail.append(fallback)

def p2_relayout(k):
    k(f"""
    s_sub_u32 s29, s{SW}, 9
    """)
    if True:
        le = k.label("pe")
        k(f"s_cmp_lg_u32 s{SW}, 9")
        k(f"s_cbranch_scc1 {le}")
        k(f"s_mov_b32 s34, s{SXCD}")
        k(f"s_mov_b32 s35, s{SIDX}")
        k(f"s_getreg_b32 s{SXCD}, hwreg(HW_REG_XCC_ID, 0, 3)")
        k(f"s_getreg_b32 s{SIDX}, hwreg(HW_REG_HW_ID, 13, 2)")
        k(f"s_lshl_b32 s{SIDX}, s{SIDX}, 3")
        PRESENCE[0](k, False)
        k(f"s_mov_b32 s{SXCD}, s34")
        k(f"s_mov_b32 s{SIDX}, s35")
        k.place(le)
    early = OPT.get('rl_early', 0)
    if early < 2:
        k("s_waitcnt lgkmcnt(0)")
        k("s_barrier")
    if early < 1:
        k("s_barrier")
    loads, stores = relayout(k)
    if OPT.get('z_nopre'): loads = stores = (lambda i: None)
    loads(0); loads(1)
    srd(k, 44, 8, 512*1024)
    k("s_and_b32 s35, s29, 1")
    k("s_lshl_b32 s36, s2, 1")
    k("s_add_u32 s35, s35, s36")
    k("s_lshl_b32 s36, s35, 10")
    k("buffer_load_dwordx4 v[72:75], v3, s[44:47], s36 offen")
    if early >= 2:
        k("s_waitcnt lgkmcnt(0)")
        k("s_barrier")
    if early >= 1:
        k("s_barrier")
    k("s_waitcnt vmcnt(27)")
    stores(0)
    loads(2)
    k("s_waitcnt vmcnt(26)")
    stores(1)
    k(f"s_mov_b32 s36, {hex(ONES)}")
    k("v_dot2_f32_bf16 v76, v72, s36, 0")
    for d in range(1, 4): k(f"v_dot2_f32_bf16 v76, v{72+d}, s36, v76")
    k.nop(1)
    for ctl in ("quad_perm:[1,0,3,2]", "quad_perm:[2,3,0,1]", "row_half_mirror", "row_mirror"):
        k.nop(2)
        k(f"v_add_f32_dpp v76, v76, v76 {ctl} row_mask:0xf bank_mask:0xf")
    k.nop(1)
    for i in range(4): k(f"v_readlane_b32 s{48+i}, v76, {16*i}")
    k(f"""
    s_lshr_b32 s36, s35, 4
    s_lshl_b32 s36, s36, 6
    s_bfe_u32 s43, s35, 0x10002
    s_lshl_b32 s43, s43, 4
    s_add_u32 s36, s36, s43
    v_mov_b32 v76, s48
    v_add_f32 v76, s49, v76
    v_add_f32 v76, s50, v76
    v_add_f32 v76, s51, v76
    v_mul_f32 v76, {hex(f32(1/512))}, v76
    s_bfe_u32 s43, s35, 0x10003
    s_lshl_b32 s43, s43, 3
    s_add_u32 s36, s36, s43
    v_cvt_pk_bf16_f32 v77, v76, v76
    s_and_b32 s43, s35, 3
    s_lshl_b32 s43, s43, 1
    s_add_u32 s36, s36, s43
    v_and_b32 v78, 0xffff0000, v77
    v_sub_f32 v78, v76, v78
    s_add_u32 s36, s36, {WBT}
    v_cvt_pk_bf16_f32 v78, v78, v78
    v_mov_b32 v79, 0
    s_mov_b64 exec, 1
    buffer_store_short v77, v79, s[20:23], s36 offen sc1
    buffer_store_short v78, v79, s[20:23], s36 offen offset:32 sc1
    s_mov_b64 exec, -1
    """)
    k("s_waitcnt vmcnt(0)")
    stores(2)
    k("s_waitcnt vmcnt(0)")
    na = k.label("noarr")
    k(f"v_mov_b32 v5, {PROG + 48}")
    k("v_mov_b32 v6, 1")
    k("s_mov_b64 exec, 1")
    k("ds_add_rtn_u32 v7, v5, v6")
    k("s_waitcnt lgkmcnt(0)")
    k("v_readfirstlane_b32 s42, v7")
    k("s_cmp_lg_u32 s42, 2")
    k(f"s_cbranch_scc1 {na}")
    k(f"s_add_u32 s42, s{SXCD}, {CW}")
    arrive(k, 42)
    k.place(na)
    k("s_endpgm")

def p2_helper(k, done):
    ld = OPT['ld']
    k(f"s_lshl_b32 s33, s{SHEAD}, 16")
    def kv(c):
        k(f"s_add_u32 s31, s{SHEAD}, {c}" if OPT.get('kvrot', 0) else f"s_mov_b32 s31, {c}")
        k("s_and_b32 s31, s31, 7")
        k("s_lshl_b32 s31, s31, 13")
        k("s_add_u32 s31, s31, s33")
        for base, l in ((KF, 0), (VF, 65536)):
            for g in range(2):
                k(f"s_add_u32 s34, s31, {base + g*4096}")
                k(f"s_mov_b32 m0, {l + c*8192 + g*4096}")
                k.nop(1)
                for q in range(4):
                    k(f"buffer_load_dwordx4 v3, s[20:23], s34 offen" + (f" offset:{q*1024}" if q else "") + f" {OPT.get('ldq', ld)} lds")
    kv(0)
    k("s_waitcnt lgkmcnt(0)")
    k("s_barrier")
    kv(1)
    k("s_waitcnt vmcnt(16)")
    k("s_barrier")
    issued = 2
    def publish(c):
        k(f"v_mov_b32 v5, {c if c < 7 else 64}")
        k("ds_write_b32 v4, v5")
    while issued < OPT.get('kvd', 3): kv(issued); issued += 1
    for c in range(1, 8):
        k(f"s_waitcnt vmcnt({16*(issued - 1 - c)})")
        publish(c)
        if issued < 8: kv(issued); issued += 1
    stamp(k, 12)
    clean(k, 2)
    k("s_setprio 3")
    k(f"s_and_b32 s{SLOC}, s3, 1"); k(f"s_xor_b32 s{SLOC}, s{SLOC}, 1")
    m5 = OPT.get('t5', 0)
    if m5:
        k(f"s_lshl_b32 s43, s{SXCD}, 5")
        k(f"s_add_u32 s43, s43, s{SIDX}")
        if m5 & 1:
            k(f"s_mul_i32 s42, s43, {172*128}")
            k(f"s_add_u32 s42, s42, {ACT}")
            touch(k, 42, 172)
        for bit, base in ((2, HF), (4, OF)):
            if m5 & bit:
                k(f"s_lshl_b32 s42, s43, 13")
                k(f"s_add_u32 s42, s42, {base}")
                touch(k, 42, 64)
        if m5 & 8:
            srd(k, 44, 18, 2*MB)
            k("s_lshl_b32 s42, s43, 13")
            k("buffer_load_dword v40, v12, s[44:47], s42 offen")
    k("s_mov_b32 s55, 0")
    if OPT.get('t2', 1):
        again, skip, ok = k.label("t2a"), k.label("t2s"), k.label("t2o")
        k(f"""
        s_mov_b32 s40, {CNT + CW*256}
        s_mov_b32 exec_lo, 0xff
        s_mov_b32 exec_hi, 0
        v_lshlrev_b32 v9, 8, v2
        s_mov_b32 s41, 0
        """)
        k.place(again)
        k(f"s_sleep {OPT.get('slpw', 32)}")
        k("buffer_load_dword v10, v9, s[20:23], s40 offen sc1")
        k("ds_read_b32 v11, v4 offset:32")
        k("s_waitcnt vmcnt(0) lgkmcnt(0)")
        k("v_readfirstlane_b32 s41, v11")
        k("v_cmp_gt_u32 vcc, 32, v10")
        k(f"s_cmp_ge_u32 s41, {OPT.get('t2lim', 6)}")
        k(f"s_cbranch_scc1 {skip}")
        k("s_cmp_lg_u64 vcc, 0")
        k(f"s_cbranch_scc1 {again}")
        k("s_mov_b32 s55, 1")
        k("s_mov_b64 exec, -1")
        if OPT.get('woe', 1):
            k(f"s_lshr_b32 s44, s{SIDX}, 2")
            k(f"s_lshl_b32 s44, s44, 16")
            k(f"s_add_u32 s44, s44, {WOF}")
            for lw in range(4):
                for j in range(NWE):
                    k(f"s_add_u32 s46, s44, {(lw & 1)*32768 + (lw >> 1)*16384 + j*1024}")
                    k(f"s_mov_b32 m0, {wo_addr(j) + lw*1024}")
                    k.nop(1)
                    k(f"buffer_load_dwordx4 v3, s[20:23], s46 offen {ld} lds")
            k(f"s_mov_b32 s46, {WBT}")
            k(f"s_mov_b32 m0, {WBL}")
            k.nop(1)
            k(f"buffer_load_dwordx4 v3, s[20:23], s46 offen {ld} lds")
            k(f"buffer_load_dwordx4 v3, s[20:23], s46 offen offset:1024 {ld} lds")
            k(f"v_mov_b32 v5, 1")
            k("s_waitcnt vmcnt(0)")
            k("ds_write_b32 v4, v5 offset:20")
        for base, tot in [(WOF, 4096), (WGF, 43*256), (WGF + 43*32768, 43*256), (WDF, 43*256)][OPT.get('t2a', 0):OPT.get('t2b', 3)]:
            per = tot // 32
            k(f"s_mul_i32 s42, s{SIDX}, {per*128}")
            k(f"s_add_u32 s42, s42, {base}")
            touch(k, 42, per)
        k.place(skip)
        k("s_mov_b64 exec, -1")

def res_cfg(mode):
    if mode == 'wo':
        return dict(NKS=32, JL=16, WIN=16, BSRC=OF, ASRC=WOF, RES=XF)
    return dict(NKS=86, JL=39, WIN=OPT.get('win5', 12), BSRC=ACT, ASRC=WDF, RES=HF)

def res_map(k):
    k(f"""
    s_lshl_b32 s27, s{SXCD}, 2
    s_and_b32 s28, s{SIDX}, 3
    s_add_u32 s27, s27, s28
    s_lshr_b32 s28, s{SIDX}, 2
    """)

def res_consumer(k, mode, sb):
    c_ = res_cfg(mode); NKS, JL, WIN = c_['NKS'], c_['JL'], c_['WIN']
    NH = NKS // 2
    wo = mode == 'wo'
    SRB, SCB = 27, 28
    ld = OPT['ld']
    R, ACC, AB, AT, AM, WM = 8, 16, 48, 80, 144, 160
    BW = 80 if wo else 112
    res_map(k)
    k(f"""
    s_and_b32 s29, s{SW}, 1
    s_lshl_b32 s30, s{SRB}, 1
    s_add_u32 s30, s30, s29
    s_lshr_b32 s31, s{SW}, 1
    s_lshl_b32 s32, s{SCB}, 1
    s_add_u32 s32, s32, s31
    s_mul_i32 s33, s31, 3072
    v_add_u32 v6, s33, v3
    s_lshl_b32 s33, s31, 10
    s_add_u32 s33, s33, 1024
    v_add_u32 v7, s33, v3
    s_mul_i32 s34, s31, {NH}
    s_mul_i32 s35, s30, {NKS}
    s_add_u32 s35, s35, s34
    s_lshl_b32 s35, s35, 10
    s_add_u32 s35, s35, {c_['BSRC']}
    """)
    if wo:
        k(f"""
        s_lshl_b32 s40, s30, 5
        s_lshl_b32 s41, s32, 1
        s_add_u32 s40, s40, s41
        s_lshl_b32 s40, s40, 10
        s_add_u32 s41, s40, {XF}
        buffer_load_dwordx4 v[{R}:{R+3}], v3, s[20:23], s41 offen {ld}
        buffer_load_dwordx4 v[{R+4}:{R+7}], v3, s[20:23], s41 offen offset:1024 {ld}
        s_add_u32 s41, s40, {HF}
        s_lshl_b32 s47, s32, 13
        s_lshl_b32 s48, s30, 7
        s_add_u32 s47, s47, s48
        s_add_u32 s47, s47, {ST}
        s_add_u32 s48, s48, {MX}
        v_and_b32 v0, 1, v2
        v_lshlrev_b32 v0, 5, v0
        v_lshrrev_b32 v1, 5, v2
        v_lshl_add_u32 v0, v1, 4, v0
        s_lshl_b32 s33, s31, 10
        s_add_u32 s33, s33, {WBL}
        v_add_u32 v0, s33, v0
        """)
    else:
        for q in range(2):
            k(f"s_xor_b32 s36, s32, {q}")
            k(f"s_mul_i32 s36, s36, {NKS}")
            k(f"s_add_u32 s36, s36, s34")
            k(f"s_lshl_b32 s36, s36, 10")
            k(f"s_add_u32 s36, s36, {c_['ASRC'] + JL*1024}")
            for j in range(NH - JL):
                r = AT + 8*j + 4*q
                k(f"buffer_load_dwordx4 v[{r}:{r+3}], v3, s[20:23], s36 offen" + (f" offset:{j*1024}" if j else "") + f" {ld}")
        srd(k, 52, 18, 2*MB)
        k(f"""
        v_and_b32 v8, 31, v2
        v_lshlrev_b32 v8, 10, v8
        v_lshrrev_b32 v9, 5, v2
        v_lshl_add_u32 v8, v9, 4, v8
        s_lshl_b32 s47, s30, 15
        s_lshl_b32 s48, s32, 6
        s_add_u32 s47, s47, s48
        """)
        if OPT.get('fl', 1):
            k(f"""
            s_lshl_b32 s36, s31, 2
            v_add_u32 v10, s36, v9
            v_and_b32 v12, 7, v2
            v_xor_b32 v10, v10, v12
            v_xor_b32 v11, 2, v10
            v_and_b32 v13, 31, v2
            s_lshl_b32 s36, s29, 12
            s_add_u32 s36, s36, 32768
            v_lshl_add_u32 v13, v13, 7, s36
            v_lshl_add_u32 v10, v10, 4, v13
            v_lshl_add_u32 v11, v11, 4, v13
            v_lshrrev_b32 v13, 3, v2
            v_xor_b32 v14, v12, v13
            v_lshlrev_b32 v14, 4, v14
            v_lshl_add_u32 v13, v13, 10, v14
            s_lshl_b32 s36, s{SW}, 11
            s_add_u32 s36, s36, 32768
            v_add_u32 v12, s36, v3
            s_lshl_b32 s47, s{SRB}, 16
            s_lshl_b32 s48, s{SW}, 14
            s_add_u32 s47, s47, s48
            s_lshl_b32 s48, s{SCB}, 7
            s_add_u32 s47, s47, s48
            """)
    RED = 5*20480 if wo else 0
    if wo:
        for v, x in ((4, 2), (5, 0)):
            k(f"s_xor_b32 s36, s{SW}, {x}")
            k(f"s_lshl_b32 s37, s36, 12")
            k(f"s_add_u32 s37, s37, {RED}")
            k(f"v_add_u32 v{v}, s37, v3")
            k(f"s_lshl_b32 s36, s36, 8")
            k(f"s_add_u32 s{38 + (x >> 1)}, s36, {RED + 16384}")
    else:
        k(f"s_xor_b32 s36, s{SW}, 2")
        k(f"s_lshl_b32 s36, s36, 12")
        k(f"v_add_u32 v4, s36, v3")
        k(f"s_lshl_b32 s36, s{SW}, 12")
        k(f"v_add_u32 v5, s36, v3")
    k("s_mov_b32 s45, 0xffff0000")
    RS_ = R if wo else KEEP
    if wo: k("s_waitcnt vmcnt(0)")
    for d in range(8):
        k(f"v_lshlrev_b32 v{ACC+2*d}, 16, v{RS_+d}")
        k(f"v_and_b32 v{ACC+2*d+1}, s45, v{RS_+d}")
    if wo: k("s_setprio 3")
    k("s_barrier")
    stamp(k, sb)
    if wo:
        k("v_and_b32 v1, 31, v2")
        k("v_lshlrev_b32 v1, 2, v1")
        k(f"buffer_load_dword v1, v1, s[20:23], s48 offen {ld}")
    def bload(j):
        if j % 4 == 0: k(f"s_add_u32 s36, s35, {j*1024}")
        r = BW + 4*(j % WIN)
        k(f"buffer_load_dwordx4 v[{r}:{r+3}], v3, s[20:23], s36 offen" + (f" offset:{(j % 4)*1024}" if j % 4 else "") + f" {ld if wo else OPT.get('lda', ld)}")
    ds = []; seg = [0]
    def ard(j, q):
        if j < JL:
            if not wo and j == JM and q == 0: k("s_barrier")
            ad = wo_addr(j) if wo else j*4096
            if q == 0 and not (0 <= ad - seg[0] <= 61440):
                k(f"v_add_u32 v6, {ad - seg[0]}, v6")
                k(f"v_add_u32 v7, {ad - seg[0]}, v7")
                seg[0] = ad
            r = AB + 8*(j & 3) + 4*q
            k(f"ds_read_b128 v[{r}:{r+3}], v{6+q} offset:{ad - seg[0]}"); ds.append(j)
    def mrd(j):
        if wo and j < NH:
            k(f"ds_read_b128 v[{WM+4*(j&1)}:{WM+4*(j&1)+3}], v0 offset:{j*64}"); ds.append(j)
    nb = min(WIN, NH)
    for j in range(nb): bload(j)
    if wo: k("s_setprio 0")
    for j in range(3):
        ard(j, 0); ard(j, 1)
        if j < 2: mrd(j)
    for j in range(NH):
        lg = (len(ds) - 1 - max(i for i, x in enumerate(ds) if x == j)) if j in ds else None
        k(f"s_waitcnt vmcnt({nb - 1 - j})" + (f" lgkmcnt({lg})" if lg is not None else ""))
        A = AB + 8*(j & 3) if j < JL else AT + 8*(j - JL)
        B = BW + 4*(j % WIN)
        if wo and j == NH - 1:
            k(f"{MFMA} v[{AM}:{AM+15}], v[{WM+4*(j&1)}:{WM+4*(j&1)+3}], v[{B}:{B+3}], v[{AM}:{AM+15}]")
        for q in ((1, 0) if j == NH - 1 else (0, 1)):
            C = "0" if (j == 0 and q == 1) else f"v[{ACC+16*q}:{ACC+16*q+15}]"
            k(f"{MFMA} v[{ACC+16*q}:{ACC+16*q+15}], v[{A+4*q}:{A+4*q+3}], v[{B}:{B+3}], {C}")
            ard(j + 3, q)
        if wo and j < NH - 1:
            C = "0" if j == 0 else f"v[{AM}:{AM+15}]"
            k(f"{MFMA} v[{AM}:{AM+15}], v[{WM+4*(j&1)}:{WM+4*(j&1)+3}], v[{B}:{B+3}], {C}")
            mrd(j + 2)
        if nb < NH:
            bload(nb); nb += 1
    stamp(k, sb + 1)
    U = 48
    if wo:
        k(f"v_lshl_add_u32 v{R}, v2, 2, s39")
        k(f"v_lshl_add_u32 v{R+1}, v2, 2, s38")
        k.nop(9)
    else:
        k.nop(10)
        k("s_barrier")
    for g in range(4):
        k(f"ds_write_b128 v4, v[{ACC+16+4*g}:{ACC+19+4*g}] offset:{g*1024}")
    if wo:
        k(f"v_add_f32 v{AM}, v{AM}, v{AM+1}")
        k(f"ds_write_b32 v{R}, v{AM}")
        k(f"v_add_f32 v0, v{AM}, v1")
    k("s_waitcnt lgkmcnt(0)")
    k("s_barrier")
    if wo and OPT.get('z_st'): stamp(k, 0)
    if wo: k(f"ds_read_b32 v1, v{R+1}")
    for g in range(4):
        k(f"ds_read_b128 v[{U+4*g}:{U+4*g+3}], v5 offset:{g*1024}")
    P = 64
    for g in range(4):
        k(f"s_waitcnt lgkmcnt({3-g})")
        if wo and g == 0: k("v_add_f32 v0, v0, v1")
        for r in (4*g, 4*g+2):
            k(f"v_pk_add_f32 v[{ACC+r}:{ACC+r+1}], v[{ACC+r}:{ACC+r+1}], v[{U+r}:{U+r+1}]")
        if wo:
            for r in (4*g, 4*g+2):
                k(f"v_pk_add_f32 v[{U+r}:{U+r+1}], v[{ACC+r}:{ACC+r+1}], v[0:1] op_sel_hi:[1,0] neg_lo:[0,1] neg_hi:[0,1]")
            for d in (2*g, 2*g+1):
                k(f"v_cvt_pk_bf16_f32 v{P+d}, v{U+2*d}, v{U+2*d+1}")
            if g & 1:
                pub_store(k, [f"buffer_store_dwordx4 v[{P+2*g-2}:{P+2*g+1}], v3, s[20:23], s41 offen" + (" offset:1024" if g == 3 else "")], 1)
        else:
            for d in (2*g, 2*g+1):
                k(f"v_cvt_pk_bf16_f32 v{P+d}, v{ACC+2*d}, v{ACC+2*d+1}")
    if wo:
        SQ = 72
        k(f"v_dot2_f32_bf16 v{SQ}, v{P}, v{P}, 0")
        k(f"v_dot2_f32_bf16 v{SQ+1}, v{P+1}, v{P+1}, 0")
        for d in range(2, 8):
            k(f"v_dot2_f32_bf16 v{SQ+(d&1)}, v{P+d}, v{P+d}, v{SQ+(d&1)}")
        k("v_lshlrev_b32 v0, 2, v2")
        k.nop(2)
        k(f"v_add_f32 v{SQ}, v{SQ}, v{SQ+1}")
        half_sum(k, SQ, 74, 75)
        k("s_mov_b32 exec_hi, 0")
        pub_store(k, [f"buffer_store_dword v{SQ}, v0, s[20:23], s47 offen"], 1)
        k("s_mov_b64 exec, -1")
        if OPT.get('z_st'): stamp(k, 1)
        for d in range(8):
            k(f"v_cvt_pk_bf16_f32 v{KEEP+d}, v{ACC+2*d}, v{ACC+2*d+1}")
        k("v_lshlrev_b32 v0, 7, v2")
        k("s_waitcnt vmcnt(0)")
        k("s_barrier")
        re_store(k, [f"buffer_store_dwordx4 v[{P}:{P+3}], v3, s[20:23], s41 offen",
                     f"buffer_store_dwordx4 v[{P+4}:{P+7}], v3, s[20:23], s41 offen offset:1024"], 1)
        if OPT.get('rf', 0) & 1:
            k("s_mov_b64 exec, 0xffff")
            k(f"buffer_load_dword v1, v0, s[20:23], s41 offen {ld}")
            k("s_mov_b64 exec, -1")
    else:
        k.nop(2)
        k(f"""
        v_permlane32_swap_b32 v{P}, v{P+2}
        v_permlane32_swap_b32 v{P+1}, v{P+3}
        v_permlane32_swap_b32 v{P+4}, v{P+6}
        v_permlane32_swap_b32 v{P+5}, v{P+7}
        """)
        sto = OPT.get('sto', '')
        if OPT.get('fl', 1):
            k(f"ds_write_b128 v10, v[{P}:{P+3}]")
            k(f"ds_write_b128 v11, v[{P+4}:{P+7}]")
            k("s_waitcnt lgkmcnt(0)")
            k("s_barrier")
            k(f"ds_read_b128 v[{P}:{P+3}], v12")
            k(f"ds_read_b128 v[{P+4}:{P+7}], v12 offset:1024")
            k("s_waitcnt lgkmcnt(1)")
            k(f"buffer_store_dwordx4 v[{P}:{P+3}], v13, s[52:55], s47 offen {sto}")
            k("s_add_u32 s47, s47, 8192")
            k("s_waitcnt lgkmcnt(0)")
            k(f"buffer_store_dwordx4 v[{P+4}:{P+7}], v13, s[52:55], s47 offen {sto}")
        else:
            k.nop(1)
            k(f"buffer_store_dwordx4 v[{P}:{P+3}], v8, s[52:55], s47 offen {sto}")
            k(f"buffer_store_dwordx4 v[{P+4}:{P+7}], v8, s[52:55], s47 offen offset:32 {sto}")

def res_wsetup(k, mode):
    c_ = res_cfg(mode); NKS = c_['NKS']
    k(f"""
    s_sub_u32 s45, s{SW}, 4
    s_lshr_b32 s44, s{SIDX}, 2
    s_lshl_b32 s44, s44, 1
    s_and_b32 s46, s45, 1
    s_add_u32 s44, s44, s46
    s_mul_i32 s44, s44, {NKS}
    s_lshr_b32 s46, s45, 1
    s_mul_i32 s46, s46, {NKS//2}
    s_add_u32 s44, s44, s46
    s_lshl_b32 s44, s44, 10
    s_add_u32 s44, s44, {c_['ASRC']}
    s_lshl_b32 s45, s45, 10
    """)

NWE = 7
JM = 25
def wo_addr(j):
    if j < NWE: return 132096 + j*4096
    j -= NWE
    return (j >> 1)*20480 + 12288 + (j & 1)*4096

def res_wload(k, j0, j1, wo=False):
    for j in range(j0, j1):
        k(f"s_add_u32 s46, s44, {j*1024}")
        dma(k, 3, 20, 46, f"s45, {wo_addr(j) if wo else j*4096}", 0, OPT['ld'])

SLOT4, RING4, NCH4 = 20480, 8, 16
def p4_map(k):
    k(f"""
    s_lshl_b32 s27, s{SXCD}, 1
    s_cmp_ge_u32 s{SIDX}, 15
    s_cselect_b32 s28, 1, 0
    s_add_u32 s27, s27, s28
    s_mul_i32 s28, s28, 15
    s_sub_u32 s28, s{SIDX}, s28
    s_min_u32 s28, s28, 15
    """)

def p4_consumer(k):
    ld = OPT['ld']
    skip, fin = k.label("p4skip"), k.label("p4fin")
    XB = [8, 16]; WB = [24, 36]; ACC = 64; R2 = [0, 4]; STR = 48
    p4_map(k)
    k("s_cmp_eq_u32 s28, 15")
    k(f"s_cbranch_scc1 {skip}")
    k(f"""
    s_and_b32 s29, s{SW}, 1
    s_lshr_b32 s31, s{SW}, 1
    s_lshl_b32 s30, s27, 2
    s_lshl_b32 s33, s29, 1
    s_add_u32 s30, s30, s33
    s_lshl_b32 s33, s29, 12
    s_add_u32 s33, s33, 12288
    v_add_u32 v7, s33, v3
    s_mul_i32 s33, s31, 6144
    v_add_u32 v6, s33, v3
    s_mul_i32 s40, s30, 86
    s_mul_i32 s41, s28, 6
    s_mul_i32 s33, s31, 3
    s_add_u32 s41, s41, s33
    s_add_u32 s40, s40, s41
    s_lshl_b32 s40, s40, 10
    s_add_u32 s40, s40, {ACT}
    s_mov_b32 s47, 0
    s_lshl_b32 s32, s30, 7
    s_add_u32 s32, s32, {ST}
    v_and_b32 v4, 31, v2
    v_lshlrev_b32 v4, 2, v4
    v_lshrrev_b32 v8, 5, v2
    v_lshl_add_u32 v4, v8, 13, v4
    s_mov_b32 s48, 0
    """)
    for r in range(96): k(f"v_mov_b32 v{ACC+r}, 0")
    k("s_barrier")
    stamp(k, 9)
    for i in range(8):
        k(f"s_add_u32 s35, s32, {i*16384}")
        k(f"buffer_load_dword v{STR+i}, v4, s[20:23], s35 offen {OPT.get('ldh', ld)}")
        k(f"buffer_load_dword v{STR+8+i}, v4, s[20:23], s35 offen offset:128 {OPT.get('ldh', ld)}")
    def wrd(u, b, m):
        return f"ds_read_b128 v[{b+4*m}:{b+4*m+3}], v6 offset:{m*2048 + (u & 1)*1024}"
    def xrd(u, b, t):
        return f"ds_read_b128 v[{b+4*t}:{b+4*t+3}], v7 offset:{t*2048 + (u & 1)*1024}"
    def reads(u):
        return [wrd(u, WB[u & 1], 0), xrd(u, XB[u & 1], 0), xrd(u, XB[u & 1], 1), wrd(u, WB[u & 1], 1), wrd(u, WB[u & 1], 2)]
    k("s_barrier")
    stamp(k, 10)
    for l in reads(0): k(l)
    ml = k.label("p4ml")
    k(".p2align 3")
    k.place(ml)
    for u in range(2):
        if u == 1:
            k(f"s_add_u32 s48, s48, 1")
            k(f"s_and_b32 s48, s48, {RING4-1}")
            k(f"s_cselect_b32 s49, s50, s51")
            k("s_add_u32 s47, s47, 1")
            k("s_barrier")
            k("v_add_u32 v7, s49, v7")
            k("v_add_u32 v6, s49, v6")
            k(f"s_cmp_lt_u32 s47, {NCH4 - 1}")
        b, x = WB[u], XB[u]
        nx = reads(u + 1)
        for i in range(6):
            m, t = i >> 1, i & 1
            if i == 0: k("s_waitcnt lgkmcnt(2)")
            if i == 2: k("s_waitcnt lgkmcnt(2)")
            k(f"{MFMA} v[{ACC+16*i}:{ACC+16*i+15}], v[{b+4*m}:{b+4*m+3}], v[{x+4*t}:{x+4*t+3}], v[{ACC+16*i}:{ACC+16*i+15}]")
            if i < 5: k(nx[i])
    k(f"s_cbranch_scc1 {ml}")
    P = 48
    def mf(i, u):
        m, t = i >> 1, i & 1
        return f"{MFMA} v[{ACC+16*i}:{ACC+16*i+15}], v[{WB[u]+4*m}:{WB[u]+4*m+3}], v[{XB[u]+4*t}:{XB[u]+4*t+3}], v[{ACC+16*i}:{ACC+16*i+15}]"
    st_ = []
    for t in range(2):
        S = STR + 8*t
        st_ += [f"v_add_f32 v{S+i}, v{S+i}, v{S+i+1}" for i in (0, 2, 4, 6)]
        st_ += [f"v_add_f32 v{S}, v{S}, v{S+2}", f"v_add_f32 v{S+4}, v{S+4}, v{S+6}", f"v_add_f32 v{S}, v{S}, v{S+4}", f"v_mov_b32 v{S+1}, v{S}"]
    st_ += ["s_nop 0"] + [f"v_permlane32_swap_b32 v{STR+8*t}, v{STR+8*t+1}" for t in range(2)]
    for t in range(2):
        S = STR + 8*t
        st_ += [f"v_add_f32 v{S}, v{S}, v{S+1}", f"v_mov_b32 v{S+1}, {hex(f32(1e-5))}", f"v_fmac_f32 v{S+1}, {hex(f32(1/512))}, v{S}",
                f"v_rcp_f32 v{R2[t]}, v{S+1}"]
    def ep(i, pk):
        m, t = i >> 1, i & 1
        G = ACC + 16*i
        pr = P + 4*(i & 3) if i < 4 else 8 + 4*(i - 4)
        o = [f"v_max_f32 v{G+r}, 0, v{G+r}" for r in range(8)]
        if pk:
            o += [f"v_pk_mul_f32 v[{G+r}:{G+r+1}], v[{G+r}:{G+r+1}], v[{R2[t]}:{R2[t]+1}] op_sel_hi:[1,0]" for r in range(8, 16, 2)]
            o += [f"v_pk_mul_f32 v[{G+r}:{G+r+1}], v[{G+r}:{G+r+1}], v[{G+8+r}:{G+9+r}]" for r in range(0, 8, 2)]
        else:
            o += [f"v_mul_f32 v{G+r}, v{G+r}, v{R2[t]}" for r in range(8, 16)]
            o += [f"v_mul_f32 v{G+r}, v{G+r}, v{G+8+r}" for r in range(8)]
        o += [f"v_cvt_pk_bf16_f32 v{pr+d}, v{G+2*d}, v{G+2*d+1}" for d in range(4)]
        return o, pr
    def store(i, pr, so):
        pub_store(k, [f"buffer_store_dwordx4 v[{pr}:{pr+3}], v3, s[20:23], s{so} offen"], 2)
    for i in range(6):
        m, t = i >> 1, i & 1
        if t == 0:
            k(f"s_add_u32 s33, s41, {m}")
            k("s_cmp_ge_u32 s33, 86")
            k("s_cselect_b32 s33, 0x40000000, s40")
        k(f"s_add_u32 s{42+i}, s33, {t*86*1024 + m*1024}")
    for l in reads(1): k(l)
    k("s_waitcnt vmcnt(0) lgkmcnt(5)")
    q = list(st_)
    for i in (0, 1, 2, 3):
        k(mf(i, 0))
        for _ in range(5):
            if q: k(q.pop(0))
    k("s_waitcnt lgkmcnt(0)")
    k("s_barrier")
    for i, u in ((0, 1), (1, 1), (4, 0), (5, 0)):
        k(mf(i, u))
        for _ in range(4):
            if q: k(q.pop(0))
    assert not q
    k.nop(3)
    e0, p0 = ep(0, False); e1, p1 = ep(1, False)
    q = e0 + ["ST0"] + e1 + ["ST1"]
    for i in (2, 3, 4, 5):
        k(mf(i, 1))
        for _ in range(6):
            k(q.pop(0))
    stamp(k, 11)
    for l in q:
        if l == "ST0": store(0, p0, 42)
        elif l == "ST1": store(1, p1, 43)
        else: k(l)
    for i in range(2, 6):
        o, pr = ep(i, True)
        for l in o: k(l)
        store(i, pr, 42 + i)
    k.place(fin)
    if OPT.get('z_st'): stamp(k, 2)
    if OPT.get('rf', 0) & 2:
        k("v_and_b32 v4, 31, v2")
        k("v_lshlrev_b32 v4, 7, v4")
        k("v_lshrrev_b32 v5, 5, v2")
        k(f"v_mul_u32_u24 v5, {86*1024}, v5")
        k("v_add_u32 v4, v4, v5")
        k("s_waitcnt vmcnt(0)")
        k("s_barrier")
        k("s_mov_b32 exec_lo, 0xffffff")
        k("s_mov_b32 exec_hi, 0xffffff")
        k(f"buffer_load_dword v1, v4, s[20:23], s40 offen {ld}")
        k("s_mov_b64 exec, -1")
        j4 = k.label("p4j")
        k(f"s_branch {j4}")
        k.place(skip)
        k("s_barrier")
        k.place(j4)
    else:
        k("s_waitcnt vmcnt(0)")
        k("s_barrier")
        re_store(k, [f"buffer_store_dwordx4 v[{ep(i, True)[1]}:{ep(i, True)[1]+3}], v3, s[20:23], s{42+i} offen" for i in range(6)], 2)
        j4 = k.label("p4j")
        k(f"s_branch {j4}")
        k.place(skip)
        k("s_barrier")
        k.place(j4)

def p4_loader(k):
    ld = OPT['ld']
    D = OPT['depth4']
    skip, join = k.label("p4lskip"), k.label("p4ljoin")
    k("s_barrier")
    res_wsetup(k, 'down')
    p4_map(k)
    k("s_cmp_eq_u32 s28, 15")
    k(f"s_cbranch_scc1 {skip}")
    k(f"""
    s_sub_u32 s29, s{SW}, 4
    s_lshl_b32 s30, s27, 2
    s_add_u32 s30, s30, s29
    s_lshl_b32 s31, s30, 15
    s_add_u32 s31, s31, {HF}
    s_mul_i32 s33, s28, {6*32768}
    s_and_b32 s34, s29, 1
    s_lshl_b32 s34, s34, 10
    s_add_u32 s33, s33, s34
    s_lshr_b32 s35, s29, 1
    s_mul_i32 s37, s35, {3*32768}
    s_add_u32 s33, s33, s37
    s_mul_i32 s35, s35, 6144
    s_add_u32 s34, s34, s35
    s_lshl_b32 s36, s29, 11
    s_cmp_eq_u32 s28, 14
    s_cselect_b32 s39, 0x40000000, 0
    s_lshr_b32 s38, s29, 1
    s_mul_i32 s38, s38, s39
    s_add_u32 s33, s33, s38
    s_sub_u32 s39, s39, s38
    s_add_u32 s39, s39, s33
    """)
    order = []
    def crot(c):
        r = OPT.get('p4rot', 0)
        k(f"s_add_u32 s40, s{(0, 28, SIDX)[r]}, {c}" if r else f"s_mov_b32 s40, {c}")
        k("s_and_b32 s40, s40, 15")
        k("s_lshl_b32 s40, s40, 11")
    def hpart(c):
        if OPT.get('z4b') and c > 0:
            order.append(('h', c)); order.pop(); return
        crot(c)
        k(f"s_add_u32 s35, s31, s40")
        dma(k, 3, 20, 35, f"s36, {(c % RING4)*SLOT4 + 12288}", 0, OPT.get('ldh', ld))
        k(f"buffer_load_dwordx4 v3, s[20:23], s35 offen offset:1024 {OPT.get('ldh', ld)} lds")
        order.extend([('h', c)]*2)
    def wpart(c):
        if OPT.get('z4b') and c > 0: return
        crot(c)
        for t in range(3):
            k(f"s_add_u32 s35, s{33 if t < 2 else 39}, s40")
            k(f"s_add_u32 s35, s35, {WGF + t*32768}")
            dma(k, 3, 20, 35, f"s34, {(c % RING4)*SLOT4 + t*2048}", 0, ld)
        order.extend([('w', c)]*3)
    nw = OPT.get('p4pre', 5)
    for c in range(nw): wpart(c)
    k("s_barrier")
    k("s_barrier")
    while nw < OPT.get('p4pre2', 7): wpart(nw); nw += 1
    k("s_barrier")
    nh = 4
    for c in range(1 if OPT.get('h0', 1) else 0, nh): hpart(c)
    for c in range(NCH4 + 1):
        if c < NCH4:
            last = max([i for i, o in enumerate(order) if o[1] == c] or [len(order) - 1])
            k(f"s_waitcnt vmcnt({len(order) - 1 - last})")
        k("s_barrier")
        m = 0
        while nh < NCH4 and nh <= c + D and m < 2:
            assert nh - RING4 <= c - 2
            hpart(nh); nh += 1; m += 1
        m = 0
        while nw < NCH4 and nw - RING4 <= c - 2 and m < 2:
            wpart(nw); nw += 1; m += 1
        if c >= 10:
            assert nh == NCH4 and nw == NCH4
            if not OPT.get('z4a'):
                res_wload(k, 5*(c-10), 5*(c-10) + 5); order.extend([('d', -1)]*5)
    k("s_barrier")
    k(f"s_branch {join}")
    k.place(skip)
    k("s_barrier")
    k("s_barrier")
    k("s_barrier")
    res_wload(k, 0, 35)
    k.place(join)
    res_wload(k, 35, 39)
    k(f"s_waitcnt vmcnt({39 - JM})")
    k("s_barrier")
    k("s_waitcnt vmcnt(0)")
    k("s_barrier")

def clean(k, n):
    m = OPT.get('wb', 0)
    if not (m >> n) & 1: return
    l = k.label("ncl")
    k(f"s_and_b32 s47, s{SIDX}, {OPT.get('wbm', 31)}")
    k(f"s_cmp_lg_u32 s47, 0")
    k(f"s_cbranch_scc1 {l}")
    k("buffer_wbl2 sc1")
    k.place(l)

def poller(k):
    sl = OPT.get('slpl', 2)
    k(f"s_lshl_b32 s43, s{SXCD}, 5")
    k(f"s_add_u32 s43, s43, {F2}")
    k(f"s_lshl_b32 s42, s{SQB}, 5")
    k(f"s_add_u32 s42, s42, s{SHEAD}")
    k(f"s_add_u32 s42, s42, {F2}")
    flag_prep(k, 42)
    k("s_waitcnt lgkmcnt(0)")
    k("s_barrier")
    flag_fire(k, not OPT.get('amap', 1))
    stamp(k, 6); rstamp(k, 4)
    seen = k.label("cwseen")
    k("s_cmp_eq_u32 s55, 1")
    k(f"s_cbranch_scc1 {seen}")
    k(f"s_mov_b32 s42, {CW}")
    poll(k, 42, 32, 8, 0)
    k.place(seen)
    k("s_barrier")
    flag_poll(k, 43, 32, OPT.get('slp2', 2), OPT.get('pd2', 1))
    stamp(k, 7)
    k("s_barrier")
    res_map(k)
    k("s_lshr_b32 s43, s27, 1")
    k("s_and_b32 s44, s27, 1")
    k("s_lshl_b32 s45, s28, 1")
    k("s_add_u32 s44, s44, s45")
    k("s_lshl_b32 s42, s43, 4")
    k("s_add_u32 s42, s42, s44")
    k(f"s_add_u32 s42, s42, {F3}")
    flag_prep(k, 42)
    p4_map(k)
    k("s_lshl_b32 s46, s27, 4")
    k(f"s_add_u32 s42, s46, {F3}")
    k("s_barrier")
    k("s_barrier")
    flag_fire(k, True)
    stamp(k, 8)
    idle = k.label("pidle")
    k("s_cmp_eq_u32 s28, 15")
    k(f"s_cbranch_scc1 {idle}")
    k("s_lshl_b32 s47, s27, 17")
    k(f"s_add_u32 s47, s47, {HF}")
    flag_poll(k, 42, 16, sl, OPT.get('pdl', 1))
    if OPT.get('h0', 1):
        for t in range(4):
            k(f"s_add_u32 s48, s47, {t*32768}")
            k(f"s_mov_b32 m0, {12288 + t*2048}")
            k.nop(1)
            k(f"buffer_load_dwordx4 v3, s[20:23], s48 offen {OPT['ld']} lds")
            k(f"buffer_load_dwordx4 v3, s[20:23], s48 offen offset:1024 {OPT['ld']} lds")
    stamp(k, 9); rstamp(k, 5)
    k("s_barrier")
    clean(k, 0)
    k("s_add_u32 s42, s46, s28")
    k(f"s_add_u32 s42, s42, {F4}")
    flag_prep(k, 42)
    k("s_waitcnt vmcnt(0)")
    for i in range(NCH4 + 1): k("s_barrier")
    k("s_barrier")
    flag_fire(k, True)
    stamp(k, 10); rstamp(k, 13)
    j = k.label("pjoin")
    k(f"s_branch {j}")
    k.place(idle)
    k("s_barrier")
    k.place(j)
    k("s_lshl_b32 s42, s43, 4")
    k(f"s_add_u32 s42, s42, {F4}")
    flag_poll(k, 42, 15, sl, OPT.get('pdl', 1))
    stamp(k, 11)
    k("s_barrier")
    diag_end(k)

def diag_end(k):
    if not DIAG: return
    k("s_waitcnt vmcnt(0)")
    stamp(k, 14)
    k("s_memrealtime s[94:95]")
    k(f"s_lshl_b32 s40, s2, 4")
    k(f"s_add_u32 s40, s40, s{SW}")
    k(f"s_lshl_b32 s40, s40, 7")
    k(f"s_add_u32 s40, s40, {DIAGB}")
    k("s_waitcnt lgkmcnt(0)")
    for i in range(15):
        k(f"s_sub_u32 s{64+2*i}, s{64+2*i}, s96")
        k(f"v_mov_b32 v{8+i}, s{64+2*i}")
    k("v_mov_b32 v23, s94")
    k("v_mov_b32 v24, s98")
    k("v_mov_b32 v4, 0")
    k("s_mov_b64 exec, 1")
    for i in range(4):
        k(f"buffer_store_dwordx4 v[{8+4*i}:{11+4*i}], v4, s[20:23], s40 offen offset:{16*i}")
    k(f"buffer_store_dword v24, v4, s[20:23], s40 offen offset:64")
    k(f"v_mov_b32 v25, s{SXCD}")
    k(f"buffer_store_dword v25, v4, s[20:23], s40 offen offset:68")
    if OPT.get('dbgout') is not None:
        l = k.label("dbo")
        k(f"s_lshl_b32 s41, s{SW}, 8")
        k(f"s_or_b32 s41, s41, s2")
        k(f"s_cmp_lg_u32 s41, {OPT['dbgout']}")
        k(f"s_cbranch_scc1 {l}")
        k("v_sub_u32 v8, v23, v24")
        for i in range(4):
            k(f"global_store_dwordx4 v4, v[{8+4*i}:{11+4*i}], s[60:61] offset:{4+16*i}")
        k.place(l)

def build(path):
    k = Kern(NAME)
    done, roleL, roleH, p2 = k.label("done"), k.label("L"), k.label("H"), k.label("p2")
    tail = []
    k(f"""
    s_load_dwordx4 s[4:7], s[0:1], 0
    s_load_dwordx4 s[60:63], s[0:1], 64
    s_load_dwordx8 s[8:15], s[0:1], 16
    s_load_dwordx4 s[16:19], s[0:1], 48
    s_cmp_ge_u32 s2, 256
    s_cbranch_scc1 {done}
    """)
    if DIAG:
        k("s_memtime s[96:97]")
        k("s_memrealtime s[98:99]")
    k(f"""
    v_lshrrev_b32 v1, 6, v0
    v_and_b32 v2, 63, v0
    s_getreg_b32 s{SXCD}, hwreg(HW_REG_XCC_ID, 0, 3)
    s_getreg_b32 s{SIDX}, hwreg(HW_REG_HW_ID, 13, 2)
    v_readfirstlane_b32 s{SW}, v1
    s_getreg_b32 s29, hwreg(HW_REG_HW_ID, 8, 4)
    v_lshlrev_b32 v3, 4, v2
    """)
    if OPT.get('fakehole'):
        k("s_and_b32 s29, s29, 7")
        k("s_cmp_ge_u32 s29, 3")
        k("s_addc_u32 s29, s29, 0")
    k(f"""
    s_lshl_b32 s{SIDX}, s{SIDX}, 3
    s_cmp_ge_u32 s29, 8
    s_cselect_b32 s{SCHK}, 1, 0
    s_mov_b32 s1, s29
    s_and_b32 s29, s29, 7
    s_or_b32 s{SIDX}, s{SIDX}, s29
    s_mov_b32 s3, 0
    s_mov_b32 s50, {SLOT4}
    s_mov_b32 s51, {-(RING4-1)*SLOT4}
    """)
    if OPT.get('fakehw'): k(f"s_and_b32 s{SIDX}, s{SIDX}, 30")
    sw = OPT.get('swap', 1)
    if sw == 1:
        k(f"s_lshr_b32 s29, s{SW}, 1")
        k(f"s_andn2_b32 s29, 4, s29")
        k(f"s_xor_b32 s{SW}, s{SW}, s29")
    roleC = k.label("C")
    k.place(RESTART)
    p1_map(k)
    k(f"s_cmp_ge_u32 s{SW}, 8")
    k(f"s_cbranch_scc1 {roleH}")
    k(f"s_cmp_lt_u32 s{SW}, 4")
    k(f"s_cbranch_scc1 {roleC}")
    p1_loader(k)
    k(f"s_branch {p2}")
    k.place(roleH)
    p1_helper(k)
    H2 = k.label("H2")
    k(f"s_branch {H2}")
    k.place(roleC)
    p1_consumer(k)
    k.place(p2)
    p2_compute(k, tail)
    L3 = k.label("L3")
    k(f"s_cmp_ge_u32 s{SW}, 4")
    k(f"s_cbranch_scc1 {L3}")
    res_consumer(k, 'wo', 7)
    if OPT.get('cprio', 1): k(f"s_setprio {OPT.get('cprio', 1)}")
    p4_consumer(k)
    res_consumer(k, 'down', 12)
    diag_end(k)
    k.place(done)
    k("s_endpgm")
    k.place(L3)
    res_wsetup(k, 'wo')
    if OPT.get('woe', 1):
        got = k.label("woe")
        k(f"v_mov_b32 v4, {PROG + 20}")
        k("ds_read_b32 v4, v4")
        res_wload(k, NWE, 16, True)
        k("s_waitcnt lgkmcnt(0)")
        k("v_readfirstlane_b32 s47, v4")
        k.nop(1)
        k("s_cmp_eq_u32 s47, 1")
        k(f"s_cbranch_scc1 {got}")
        res_wload(k, 0, NWE, True)
    else:
        res_wload(k, 0, 16, True)
    k(f"s_and_b32 s45, s45, 1024")
    k(f"s_add_u32 s46, s45, {WBT}")
    dma(k, 3, 20, 46, f"s45, {WBL}", 0, OPT['ld'])
    if OPT.get('woe', 1): k.place(got)
    k("s_waitcnt vmcnt(0)")
    p4_loader(k)
    diag_end(k)
    k("s_endpgm")
    k.place(H2)
    p2_helper(k, done)
    poller(k)
    k("s_endpgm")
    k.place(RLAB[0])
    role_read(k)
    p2_relayout(k)
    for f in tail + TAIL: f(k)
    redo(k)
    k(f".fill (40960 - (. - {NAME}))/4, 4, 0xbf810000")
    hdr = """; Kernarg: 0 A_x, 8 A_wqkv, 16 A_wo, 24 B_x (unused), 32 W_gate, 40 W_up, 48 W_down, 56 out, 64 debug, 72 ws
; Pre-LN transformer block in one persistent launch: 256 workgroups (one per CU, 160 KB LDS), 12 waves each.
;   producer; flag lines are cleared at the start of every launch.  A workgroup's role comes from its die / shader
;   placement falls back to roles from the workgroup id and write-through flags).
; @launch grid=(256,1,1) block=(768,1,1) lds=163840
.amdgcn_target "amdgcn-amd-amdhsa--gfx950"
"""
    open(path, "w").write(hdr + k.text(168, 102 if DIAG else 64))

if __name__ == "__main__":
    for a in sys.argv[2:]:
        if "=" in a:
            kk, vv = a.split("=")
            OPT[kk] = int(vv) if vv.lstrip("-").isdigit() else vv.replace("+", " ")
    DIAG = "--diag" in sys.argv
    build(sys.argv[1])
```
